```python
import torch

def _softmax(x, axis=-1):
    return torch.softmax(x, dim=axis)

def _gelu(x):
    return torch.nn.functional.gelu(x, approximate='tanh')

def _silu(x):
    return torch.nn.functional.silu(x)

def _sigmoid(x):
    return torch.sigmoid(x)

def _layernorm(x, axis=-1, eps=1e-05):
    m = x.mean(dim=axis, keepdim=True)
    v = x.var(dim=axis, keepdim=True, unbiased=False)
    return (x - m) / torch.sqrt(v + eps)

def _scatter_add(tgt, idx, src, axis=0):
    return tgt.clone().index_add_(axis, idx, src)

def _segment_sum(src, seg, n):
    out = torch.zeros((n,) + src.shape[1:], dtype=src.dtype)
    return out.index_add_(0, seg, src)

def _pad(x, pw):
    flat = tuple((v for pair in reversed(pw) for v in pair))
    return torch.nn.functional.pad(x, flat)
kernel_name = 'parallel_sum__sliding_local_dilated__mixer_gmlp__prompt'

def setup_inputs():

    _w = lambda a: (lambda t: t.to(torch.bfloat16) if t.is_floating_point() else t)(torch.as_tensor(a))

    def _A_setup():
        B, S, D = (1, 2048, 576)
        return {'x': _w((lambda *s: torch.randn(*s, dtype=torch.bfloat16) * 0.05)(B, S, D)), 'wqkv': _w((lambda *s: torch.randn(*s, dtype=torch.bfloat16) * 0.2)(D, 3 * D)), 'wo': _w((lambda *s: torch.randn(*s, dtype=torch.bfloat16) * 0.1)(D, D))}
    _A_in = _A_setup()

    def _B_setup():
        B, S, D, F = (1, 2048, 576, 4608)
        Fh = F // 2
        return {'x': _w((lambda *s: torch.randn(*s, dtype=torch.bfloat16) * 0.05)(B, S, D)), 'w_in': _w((lambda *s: torch.randn(*s, dtype=torch.bfloat16) * 0.8)(D, 2 * Fh)), 'w_sp': _w(0.01 * (lambda *s: torch.randn(*s, dtype=torch.bfloat16) * 0.8)(S, S)), 'b_sp': _w(1.0 + 0.01 * (lambda *s: torch.randn(*s, dtype=torch.bfloat16) * 0.05)(S)), 'w_out': _w((lambda *s: torch.randn(*s, dtype=torch.bfloat16) * 0.05)(Fh, D))}
    _B_in = _B_setup()
    return {'A_x': _A_in['x'], 'A_wqkv': _A_in['wqkv'], 'A_wo': _A_in['wo'], 'B_x': _B_in['x'], 'B_w_in': _B_in['w_in'], 'B_w_sp': _B_in['w_sp'], 'B_b_sp': _B_in['b_sp'], 'B_w_out': _B_in['w_out']}

def reference(A_x, A_wqkv, A_wo, B_x, B_w_in, B_w_sp, B_b_sp, B_w_out):

    def _A_ref(x, wqkv, wo):
        B, S, D = x.shape
        H = 32
        Dh = D // H
        W, dil = (8, 2)
        qkv = (lambda x, *d: x.permute(*d))((x @ wqkv).reshape(B, S, 3, H, Dh), 2, 0, 3, 1, 4)
        q, k, v = (qkv[0], qkv[1], qkv[2])
        scale = Dh ** (-0.5)
        pos = torch.arange(S)
        off = torch.arange(W) * dil
        idx = pos[:, None] - off[None, :]
        mask = idx >= 0
        idx_c = torch.where(mask, idx, 0).reshape(-1)
        kg = k[:, :, idx_c, :].reshape(B, H, S, W, Dh)
        vg = v[:, :, idx_c, :].reshape(B, H, S, W, Dh)
        logits = torch.einsum('bhsd,bhswd->bhsw', q, kg) * scale
        logits = torch.where(mask[None, None, :, :], logits, -1000000000.0)
        attn = _softmax(logits, axis=-1)
        o = torch.einsum('bhsw,bhswd->bhsd', attn, vg)
        return (lambda x, *d: x.permute(*d))(o, 0, 2, 1, 3).reshape(B, S, D) @ wo

    def _B_ref(x, w_in, w_sp, b_sp, w_out):
        B, S, D = x.shape
        F = w_in.shape[-1]
        Fh = F // 2
        z = _gelu(torch.einsum('bsd,df->bsf', x, w_in))
        z1 = z[..., :Fh].clone()
        z2 = _layernorm(z[..., Fh:], axis=-1)
        g = torch.einsum('ts,bsf->btf', w_sp, z2) + b_sp[None, :, None]
        return torch.einsum('bsf,fd->bsd', z1 * g, w_out)
    x = A_x
    xn = _layernorm(x, axis=-1)
    return x + _A_ref(xn, A_wqkv, A_wo) + _B_ref(xn, B_w_in, B_w_sp, B_b_sp, B_w_out)
```

```python
import re

def expand(tok):
    tok = tok.strip()
    neg = tok.startswith('-')
    if neg: tok = tok[1:]
    m = re.fullmatch(r'abs\((.*)\)', tok) or re.fullmatch(r'\|(.*)\|', tok)
    if m: tok = m.group(1)
    m = re.fullmatch(r'([vsa])(\d+)', tok)
    if m: return [m.group(1) + m.group(2)]
    m = re.fullmatch(r'([vsa])\[(\d+):(\d+)\]', tok)
    if m: return [m.group(1) + str(i) for i in range(int(m.group(2)), int(m.group(3)) + 1)]
    if tok in ('vcc', 'exec', 'm0', 'scc'): return [tok]
    if tok in ('vcc_lo', 'vcc_hi'): return ['vcc']
    if tok in ('exec_lo', 'exec_hi'): return ['exec']
    return []

TRANS = ('v_exp_f32', 'v_log_f32', 'v_rcp_f32', 'v_rsq_f32', 'v_sqrt_f32', 'v_sin_f32', 'v_cos_f32')

class I:
    __slots__ = ('text', 'op', 'reads', 'writes', 'kind', 'tok_w', 'tok_r', 'wide', 'dpp', 'srcc', 'srcab', 'vm', 'lg', 'label')
    def __init__(self, text, tok_w=(), tok_r=()):
        self.text = text
        self.tok_w = set(tok_w); self.tok_r = set(tok_r)
        self.wide = False; self.dpp = False; self.srcc = set(); self.srcab = set(); self.vm = None; self.lg = None
        self.label = None
        t = text.split(';')[0].strip()
        if t.endswith(':'):
            self.op = 'label'; self.kind = 'label'; self.reads = set(); self.writes = set(); self.label = t[:-1]; return
        parts = t.split(None, 1)
        op = parts[0]; self.op = op
        rest = parts[1] if len(parts) > 1 else ''
        ops = []; depth = 0; cur = ''
        for ch in rest:
            if ch in '[(': depth += 1
            if ch in '])': depth -= 1
            if ch == ',' and depth == 0:
                ops.append(cur.strip()); cur = ''
            else: cur += ch
        if cur.strip(): ops.append(cur.strip())
        mods = ''
        if ops:
            last = ops[-1].split(None, 1)
            ops[-1] = last[0]
            mods = last[1] if len(last) > 1 else ''
        R = set(); W = set()
        ex = [expand(o) for o in ops]
        def allr(k):
            for e in ex[k:]: R.update(e)
        if op.startswith('v_mfma'):
            self.kind = 'mfma'; W.update(ex[0]); allr(1); self.srcc = set(ex[3]); self.srcab = set(ex[1]) | set(ex[2])
        elif op.startswith('v_cmp'):
            self.kind = 'valu'; W.update(ex[0]); allr(1)
        elif op.startswith('v_readfirstlane') or op.startswith('v_readlane'):
            self.kind = 'valu'; W.update(ex[0]); allr(1)
        elif op.startswith('v_permlane'):
            self.kind = 'valu'; W.update(ex[0]); W.update(ex[1]); allr(0)
        elif op.startswith(('v_add_co', 'v_sub_co', 'v_addc_co', 'v_subb_co')):
            self.kind = 'valu'; W.update(ex[0]); W.update(ex[1]); allr(2)
        elif op.startswith('v_'):
            self.kind = 'trans' if op.replace('_e32', '').replace('_e64', '') in TRANS else 'valu'
            W.update(ex[0]); allr(1)
            if op.startswith(('v_fmac', 'v_dot2c', 'v_mac')): R.update(ex[0])
            if '_dpp' in op or 'quad_perm' in mods or 'row_' in mods:
                self.dpp = True; R.update(ex[0])
        elif op.startswith('ds_read') or op.startswith('ds_bpermute') or op.startswith('ds_swizzle') or '_rtn_' in op:
            self.kind = 'ds'; W.update(ex[0]); allr(1)
        elif op.startswith('ds_'):
            self.kind = 'ds'; allr(0)
        elif op.startswith('buffer_load') or op.startswith('global_load'):
            self.kind = 'vmem'
            if ' lds' in (' ' + mods):
                allr(0); R.add('m0'); self.kind = 'dma'
            else:
                W.update(ex[0]); allr(1)
        elif op.startswith('buffer_store') or op.startswith('global_store'):
            self.kind = 'vmem'; allr(0)
            if op.endswith(('x3', 'x4')): self.wide = True; self.srcc = set(ex[0]) if op.startswith('buffer') else set(ex[1])
        elif op.startswith('buffer_atomic'):
            self.kind = 'vmem'; allr(0)
            if 'sc0' in mods: W.update(ex[0])
        elif op.startswith(('buffer_wbl2', 'buffer_inv')):
            self.kind = 'vmem'
        elif op.startswith(('s_load', 's_memtime', 's_memrealtime')):
            self.kind = 'smem'; W.update(ex[0]); allr(1)
        elif op == 's_waitcnt':
            self.kind = 'wait'
            m = re.search(r'vmcnt\((\d+)\)', rest); self.vm = int(m.group(1)) if m else None
            m = re.search(r'lgkmcnt\((\d+)\)', rest); self.lg = int(m.group(1)) if m else None
        elif op == 's_nop':
            self.kind = 'nop'; self.vm = int(rest, 0)
        elif op in ('s_barrier', 's_endpgm', 's_sleep', 's_setprio'):
            self.kind = 'misc'
        elif op.startswith('s_cbranch') or op == 's_branch':
            self.kind = 'branch'
            if 'scc' in op: R.add('scc')
            if 'vcc' in op: R.add('vcc')
            if 'exec' in op: R.add('exec')
        elif op.startswith('s_cmp') or op.startswith('s_bitcmp'):
            self.kind = 'salu'; W.add('scc'); allr(0)
        elif op.startswith('s_'):
            self.kind = 'salu'; W.update(ex[0]); allr(1)
            if op.startswith(('s_cselect', 's_addc', 's_subb')): R.add('scc')
            if not op.startswith(('s_mov', 's_cselect', 's_mul', 's_getreg', 's_movk', 's_getpc')): W.add('scc')
            if 'saveexec' in op: W.add('exec'); R.add('exec')
        elif op == 'need':
            self.kind = 'need'
        else:
            raise ValueError('unknown op ' + text)
        self.reads = R; self.writes = W

class Stream(list):
    def __call__(self, text, tok_w=(), tok_r=()):
        for line in text.strip().split('\n'):
            line = line.strip()
            if not line or line.startswith(';'): continue
            self.append(I(line, tok_w, tok_r))
    def need(self, *toks):
        self.append(I('need', tok_r=toks))

def interleave(main, side, start=0, end=None, weight=None):
    idx = [i for i, x in enumerate(main) if x.kind == 'mfma']
    if end is None: end = len(idx)
    idx = idx[start:end]
    out = Stream()
    n = len(idx)
    if n == 0:
        return Stream(list(main) + list(side))
    w = [(weight(x) if weight else (2 if x.kind == 'trans' else (0 if x.kind in ('need', 'label') else 1))) for x in side]
    total = sum(w)
    pos = 0; acc = 0.0; k = 0
    slot = {j: t for t, j in enumerate(idx)}
    for i, x in enumerate(main):
        out.append(x)
        if i in slot:
            target = total * (slot[i] + 1) / n
            while pos < len(side) and (acc + w[pos] <= target + 1e-9 or slot[i] == n - 1):
                out.append(side[pos]); acc += w[pos]; pos += 1
    assert pos == len(side)
    return out

class Finisher:
    def __init__(self):
        self.vmq = []
        self.lgq = []
        self.hist = []
        self.out = []
    def state(self):
        return ([frozenset(x) for x in self.vmq], [(frozenset(a), b) for a, b in self.lgq])
    def _emit(self, ins):
        self.out.append(ins)
        st = (ins.vm + 1) if ins.kind == 'nop' else (0 if ins.kind in ('label', 'need') else 1)
        self.hist.append((ins, st))
        if len(self.hist) > 40: self.hist.pop(0)
    def _required_gap(self, p, c):
        g = 0
        vw = {r for r in p.writes if r[0] in 'va' and r not in ('vcc',)}
        sw = {r for r in p.writes if r[0] == 's' and r != 'scc' or r == 'vcc'}
        pv = p.kind in ('valu', 'trans')
        cv = c.kind in ('valu', 'trans')
        if pv:
            if c.kind == 'mfma' and vw & c.reads: g = max(g, 2)
            if c.dpp and vw & c.reads: g = max(g, 2)
            if c.op.startswith('v_permlane') and vw & c.reads: g = max(g, 2)
            if c.op.startswith(('v_readlane', 'v_readfirstlane')) and vw & c.reads: g = max(g, 1)
            if cv and sw & c.reads: g = max(g, 4 if c.op.startswith(('v_readlane', 'v_writelane')) else 2)
            if c.kind in ('vmem', 'dma') and sw & c.reads: g = max(g, 5)
            if c.kind in ('salu', 'branch', 'smem') and sw & c.reads: g = max(g, 1)
            if p.kind == 'trans' and c.kind != 'trans' and vw & c.reads: g = max(g, 1)
            if 'exec' in p.writes and (c.dpp or c.kind == 'mfma' or c.op.startswith(('v_readlane', 'v_readfirstlane', 'v_permlane'))): g = max(g, 5)
            if ('sdwa' in p.op or 'op_sel' in p.text) and cv and vw & (c.reads | c.writes): g = max(g, 1)
            if p.op.startswith('v_dot'):
                if c.op == p.op:
                    ops = [o.strip() for o in c.text.split(None, 1)[1].split(',')]
                    ab = set(expand(ops[1])) | set(expand(ops[2].split()[0]))
                    if vw & ab: g = max(g, 3)
                elif vw & (c.reads | c.writes): g = max(g, 3)
        if p.kind == 'mfma':
            passes = 8 if '32x32' in p.op else 4
            if c.kind == 'mfma':
                if vw & c.srcab: g = max(g, passes + 4)
                if vw & c.srcc and not (c.srcc == vw and c.op == p.op): g = max(g, passes + 2)
                if vw & c.writes and not (c.writes == vw and c.srcc == vw): g = max(g, passes + 2)
            elif c.kind in ('valu', 'trans', 'vmem', 'dma', 'ds') and vw & (c.reads | c.writes): g = max(g, passes + 4)
            if cv and p.srcc & c.writes: g = max(g, passes - 1)
            if c.kind in ('ds', 'vmem') and p.srcc & c.writes: g = max(g, passes - 1)
        if p.kind == 'salu' and 'm0' in p.writes and c.kind == 'dma': g = max(g, 1)
        if p.kind == 'vmem' and p.wide and p.srcc & c.writes: g = max(g, 2)
        return g
    def add(self, ins):
        if ins.kind == 'wait':
            if ins.vm is not None:
                while len(self.vmq) > ins.vm: self.vmq.pop(0)
            if ins.lg is not None:
                if ins.lg == 0: self.lgq = []
                elif not any(b for a, b in self.lgq):
                    while len(self.lgq) > ins.lg: self.lgq.pop(0)
            self._emit(ins); return
        touch = ins.reads | ins.writes | ins.tok_r
        vm = None; lg = None
        for k in range(len(self.vmq) - 1, -1, -1):
            if self.vmq[k] & touch:
                vm = len(self.vmq) - 1 - k; break
        for k in range(len(self.lgq) - 1, -1, -1):
            if self.lgq[k][0] & touch:
                lg = len(self.lgq) - 1 - k
                if any(b for a, b in self.lgq): lg = 0
                break
        if vm is not None or lg is not None:
            t = 's_waitcnt'
            if vm is not None: t += ' vmcnt(%d)' % min(vm, 63)
            if lg is not None: t += ' lgkmcnt(%d)' % min(lg, 15)
            self.add(I(t))
        if ins.kind == 'need':
            return
        need = 0; dist = 0
        for p, st in reversed(self.hist):
            if p.kind not in ('label', 'need', 'nop', 'wait'):
                g = self._required_gap(p, ins)
                need = max(need, g - dist)
            dist += st
            if dist > 24: break
        while need > 0:
            k = min(need, 16)
            self._emit(I('s_nop %d' % (k - 1))); need -= k
        self._emit(ins)
        if ins.kind in ('vmem', 'dma'):
            self.vmq.append(set(r for r in ins.writes if r[0] in 'va') | ins.tok_w)
        elif ins.kind == 'ds':
            self.lgq.append((set(ins.writes) | ins.tok_w, False))
        elif ins.kind == 'smem':
            self.lgq.append((set(ins.writes) | ins.tok_w, True))
    def run(self, stream):
        for x in stream: self.add(x)
    def loop(self, label, body, tail):
        import copy
        s0 = self.state()
        start = len(self.out)
        self.add(I(label + ':'))
        self.run(body); self.run(tail)
        first = [x.text for x in self.out[start:]]
        s1 = self.state()
        f2 = Finisher(); f2.vmq = [set(x) for x in self.vmq]; f2.lgq = [(set(a), b) for a, b in self.lgq]; f2.hist = list(self.hist)
        f2.add(I(label + ':')); f2.run(body); f2.run(tail)
        second = [x.text for x in f2.out]
        if first != second:
            import difflib
            print('\n'.join(difflib.unified_diff(first, second, lineterm='', n=2)))
            raise AssertionError('loop %s: first pass differs from steady state' % label)
        assert f2.state() == s1, 'loop %s: queue state not steady' % label
    def text(self):
        return '\n'.join((x.text if x.kind == 'label' else '    ' + x.text) for x in self.out) + '\n'

def kernel_text(name, body_text, vgpr, sgpr=96):
    acc = (vgpr + 3) // 4 * 4
    head = '.text\n.globl %s\n.p2align 8\n.type %s,@function\n%s:\n' % (name, name, name)
    return head + body_text
def descriptor(name, vgpr, sgpr=96):
    acc = min(256, (vgpr + 3) // 4 * 4)
    return '''.p2align 6
.amdhsa_kernel %s
  .amdhsa_next_free_vgpr %d
  .amdhsa_next_free_sgpr %d
  .amdhsa_accum_offset %d
  .amdhsa_group_segment_fixed_size 0
  .amdhsa_kernarg_size 88
  .amdhsa_user_sgpr_count 2
  .amdhsa_user_sgpr_kernarg_segment_ptr 1
  .amdhsa_system_sgpr_workgroup_id_x 1
.end_amdhsa_kernel
''' % (name, vgpr, sgpr, acc)
```

```python
import sys
from common import *
from k2 import gen_k2, K2_LDS
from k3 import gen_k3, K3_LDS
from k1 import gen_k1, K1_LDS
def assemble_file(path, kernels):
    o = []
    for name, text, vg, grid, block, lds in kernels:
        o.append('; @launch kernel=%s grid=(%d,1,1) block=(%d,1,1) lds=%d' % (name, grid, block, lds))
    o.append('.amdgcn_target "amdgcn-amd-amdhsa--gfx950"')
    for name, text, vg, grid, block, lds in kernels:
        o.append(kernel_text(name, text, vg))
    o.append('.section .rodata,"a"')
    for name, text, vg, grid, block, lds in kernels:
        o.append(descriptor(name, vg, 100))
    open(path, 'w').write('\n'.join(o))
if __name__ == '__main__':
    for nm, kw in (('', {}), ('_d2', dict(D=2)), ('_d3', dict(D=3)), ('_norot', dict(rot=False))):
        t, vg = gen_k2(stamp=True, **kw)
        assemble_file('k2%s.s' % nm, [('k2_kernel', t, vg, 256, 512, K2_LDS)])
    t, vg = gen_k3(stamp=True)
    assemble_file('k3.s', [('k3_kernel', t, vg, 234, 256, K3_LDS)])
    t, vg = gen_k1(stamp=True)
    assemble_file('k1.s', [('k1_kernel', t, vg, 256, 512, K1_LDS)])
```

```python
from asmlib import *
Z1P_OFF = 0x0;        Z1P_SZ = 128 * 72 * 1024
Z2P_OFF = 0x900000;   Z2P_SZ = 16 * 64 * 9 * 1024
AP_OFF  = 0x1200000;  AP_SZ  = 128 * 90 * 1024
ST_OFF  = 0x1D40000;  ST_SZ  = 16 * 16 * 2 * 128 * 8
TS_OFF  = 0x2000000

def srd(S, d, lo, hi, size, off=0):
    if off:
        S('s_add_u32 s%d, s%d, 0x%x' % (d, lo, off))
        S('s_addc_u32 s%d, s%d, 0' % (d + 1, hi))
    else:
        S('s_mov_b32 s%d, s%d' % (d, lo))
        S('s_mov_b32 s%d, s%d' % (d + 1, hi))
    S('s_mov_b32 s%d, 0x%x' % (d + 2, size))
    S('s_mov_b32 s%d, 0x00020000' % (d + 3))

def weave(mf, groups, first=0, last=None):
    out = Stream()
    n = len(mf) if last is None else last
    span = n - first
    k = 0
    for j, x in enumerate(mf):
        out.append(x)
        if first <= j < n:
            while k < len(groups) and (k + 1) * span <= (j - first + 1) * len(groups):
                out.extend(groups[k]); k += 1
    while k < len(groups):
        out.extend(groups[k]); k += 1
    return out

def G(text, **kw):
    s = Stream(); s(text, **kw); return list(s)

def stamp_begin(S, sreg):
    S('s_memtime s[%d:%d]' % (sreg, sreg + 1))
def stamp_end(S, sreg, ws_lo, slot, tmp_s, tmp_v, nwg_stride=64):
    S('s_memtime s[%d:%d]' % (tmp_s, tmp_s + 1))
    S('s_waitcnt lgkmcnt(0)')
    S('s_sub_u32 s%d, s%d, s%d' % (tmp_s + 2, tmp_s, sreg))
    srd(S, tmp_s + 4, ws_lo, ws_lo + 1, 0x100000, TS_OFF)
    S('s_lshl_b32 s%d, s2, 6' % (tmp_s + 3))
    S('s_add_u32 s%d, s%d, %d' % (tmp_s + 3, tmp_s + 3, slot * 65536))
    S('v_lshrrev_b32 v%d, 6, v0' % tmp_v)
    S('v_lshlrev_b32 v%d, 2, v%d' % (tmp_v, tmp_v))
    S('v_mov_b32 v%d, s%d' % (tmp_v + 1, tmp_s + 2))
    S('buffer_store_dword v%d, v%d, s[%d:%d], s%d offen' % (tmp_v + 1, tmp_v, tmp_s + 4, tmp_s + 7, tmp_s + 3))

def stamp_mid(S, sreg):
    S('s_memtime s[%d:%d]' % (sreg, sreg + 1))
def stamp_store(S, base, regs, ws_lo, slot, tmp_s, tmp_v):
    S('s_waitcnt lgkmcnt(0)')
    srd(S, tmp_s + 4, ws_lo, ws_lo + 1, 0x100000, TS_OFF)
    S('s_lshl_b32 s%d, s2, 8' % (tmp_s + 3))
    S('s_add_u32 s%d, s%d, %d' % (tmp_s + 3, tmp_s + 3, slot * 65536))
    S('v_lshrrev_b32 v%d, 6, v0' % tmp_v)
    S('v_lshlrev_b32 v%d, 5, v%d' % (tmp_v, tmp_v))
    for k, r in enumerate(regs):
        S('s_sub_u32 s%d, s%d, s%d' % (tmp_s + 2, r, base))
        S('v_mov_b32 v%d, s%d' % (tmp_v + 1, tmp_s + 2))
        S('buffer_store_dword v%d, v%d, s[%d:%d], s%d offen offset:%d' % (tmp_v + 1, tmp_v, tmp_s + 4, tmp_s + 7, tmp_s + 3, 4 * k))
```

```python
from common import *
import math, struct

def fbits(x): return struct.unpack('<I', struct.pack('<f', x))[0]
SLOT = 19456
T_OFF = 38912; XH_OFF = 120832; QB_OFF = 77824; ZB_OFF = 77824; SB_OFF = 139264
K1_LDS = 139264 + 2048
QP = 240; ZP = 296
XF = 112; S0 = 32; S1 = 72; WFR = 16
C1 = -2.0 * math.sqrt(2.0 / math.pi) * math.log2(math.e)
C2 = C1 * 0.044715
SCL = (18 ** -0.5) * math.log2(math.e)

def xf(j, b): r = XF + (j * 2 + b) * 4; return 'v[%d:%d]' % (r, r + 3)
def q4(r): return 'v[%d:%d]' % (r, r + 3)

vLane = 1; vWq = 2; vWz = 3; vT = 4; vTs = 5; vA1 = 6; vA2 = 7; vA3 = 8; vC2 = 9; vt0 = 10
sBLK = 54

def gelu(S, x, t):
    S('v_mul_f32 v%d, v%d, v%d' % (t, x, x))
    S('v_fma_f32 v%d, v%d, v%d, s78' % (t, t, vC2))
    S('v_mul_f32 v%d, v%d, v%d' % (t, t, x))
    S('v_exp_f32 v%d, v%d' % (t, t))
    S('v_add_f32 v%d, 1.0, v%d' % (t, t))
    S('v_rcp_f32 v%d, v%d' % (t, t))
    S('v_mul_f32 v%d, v%d, v%d' % (x, x, t))
def gelu4(S, x, t):
    subs = []
    for k in range(4):
        s = Stream(); gelu(s, x + k, t + k); subs.append(s)
    for i in range(7):
        for k in range(4): S.append(subs[k][i])

def gen_k1(stamp=False, xmap='84', rot=True):
    F = Finisher()
    S = Stream()
    S('''
    s_load_dwordx4 s[4:7], s[0:1], 0
    s_load_dwordx2 s[8:9], s[0:1], 32
    s_load_dwordx4 s[12:15], s[0:1], 72
    s_cmp_ge_u32 s2, 256
    s_cbranch_scc1 K1_END
    ''')
    if stamp: stamp_begin(S, 84)
    S('''
    v_lshrrev_b32 v10, 6, v0
    v_and_b32 v1, 63, v0
    v_readfirstlane_b32 s50, v10
    s_and_b32 s63, s2, 7
    s_lshr_b32 s64, s2, 3
    ''')
    if xmap == '84':
        S('''
        s_and_b32 s48, s63, 1
        s_lshl_b32 s48, s48, 3
        s_and_b32 s65, s64, 7
        s_add_u32 s48, s48, s65
        s_lshr_b32 s49, s63, 1
        s_lshl_b32 s49, s49, 2
        s_lshr_b32 s64, s64, 3
        s_add_u32 s49, s49, s64
        s_lshl_b32 s64, s64, 1
        s_add_u32 s53, s64, s65
        ''')
    else:
        S('''
        s_lshr_b32 s48, s63, 1
        s_lshl_b32 s48, s48, 2
        s_and_b32 s65, s64, 3
        s_add_u32 s48, s48, s65
        s_and_b32 s49, s63, 1
        s_lshl_b32 s49, s49, 3
        s_lshr_b32 s64, s64, 2
        s_add_u32 s49, s49, s64
        s_lshl_b32 s65, s65, 1
        s_add_u32 s53, s64, s65
        ''')
    if not rot: S('s_mov_b32 s53, 0')
    S('''
    s_sub_u32 s64, s53, 9
    s_cmp_ge_u32 s53, 9
    s_cselect_b32 s%d, s64, s53
    s_and_b32 s51, s50, 3
    s_and_b32 s52, s49, 1
    ''' % sBLK)
    for j in range(1, 9):
        S('s_add_u32 s%d, s%d, 1' % (sBLK + j, sBLK + j - 1))
        S('s_cmp_eq_u32 s%d, 9' % (sBLK + j))
        S('s_cselect_b32 s%d, 0, s%d' % (sBLK + j, sBLK + j))
    S('''
    s_lshl_b32 s63, s48, 7
    s_lshl_b32 s64, s50, 4
    s_add_u32 s63, s63, s64
    v_lshrrev_b32 v12, 3, v1
    v_and_b32 v13, 7, v1
    v_add_u32 v10, s63, v12
    v_mul_u32_u24 v10, 1152, v10
    v_lshl_add_u32 v10, v13, 4, v10
    v_add_u32 v11, 9216, v10
    s_waitcnt lgkmcnt(0)
    ''')
    srd(S, 16, 4, 5, 2048 * 1152)
    LN = 16; HL = 88
    def ln(g, j): return LN + (g * 9 + j) * 4
    for g in range(2):
        for j in range(9):
            if g == 0: S('s_lshl_b32 s%d, s%d, 7' % (69 + j, sBLK + j))
            S('buffer_load_dwordx4 %s, v%d, s[16:19], s%d offen' % (q4(ln(g, j)), 10 + g, 69 + j))
    S('''
    s_lshl_b32 s63, s48, 7
    s_lshl_b32 s64, s50, 1
    s_add_u32 s63, s63, s64
    s_sub_u32 s63, s63, 16
    v_lshrrev_b32 v14, 5, v1
    v_add_u32 v14, s63, v14
    s_movk_i32 s64, 1152
    v_mul_lo_u32 v14, v14, s64
    v_lshl_add_u32 v14, v13, 4, v14      ; + (c'&7)*16
    v_bfe_u32 v15, v1, 3, 2              ; (lane&31)>>3
    v_add_u32 v15, s%d, v15              ; + r
    ''' % sBLK)
    for t in range(3):
        S('v_add_u32 v100, %d, v15' % (4 * t))
        S('v_subrev_u32 v101, 9, v100')
        S('v_min_u32 v100, v100, v101')
        S('v_lshl_add_u32 v100, v100, 7, v14')
        if t == 2:
            S('v_and_b32 v101, 31, v1')
            S('v_cmp_gt_u32 vcc, 8, v101')
            S('v_mov_b32 v102, 0x7f000000')
            S('v_cndmask_b32 v100, v102, v100, vcc')
        S('buffer_load_dwordx4 %s, v100, s[16:19], 0 offen' % q4(HL + 4 * t))
    srd(S, 20, 6, 7, 576 * 3456)
    srd(S, 24, 8, 9, 576 * 9216)
    S('''
    v_cmp_le_u32 vcc, 18, v1
    v_subrev_u32 v100, 18, v1
    v_cndmask_b32 v100, v1, v100, vcc     ; ch
    v_cndmask_b32 v101, 0, 1, vcc         ; rr
    s_lshl_b32 s63, s50, 3
    v_add_u32 v101, s63, v101             ; 8w + rr
    s_mul_i32 s64, s49, 288
    v_mul_u32_u24 v102, 9216, v101
    v_lshl_add_u32 v102, v100, 4, v102
    v_add_u32 v%d, s64, v102
    v_mul_u32_u24 v102, 3456, v101
    v_lshl_add_u32 v102, v100, 4, v102
    s_mul_i32 s64, s49, 72
    v_add_u32 v102, s64, v102
    v_mov_b32 v103, 1152
    v_mov_b32 v104, %d
    v_cmp_le_u32 vcc, 5, v100
    v_cndmask_b32 v103, v103, v104, vcc
    v_mov_b32 v104, -160
    v_cmp_le_u32 vcc, 10, v100
    v_cndmask_b32 v103, v103, v104, vcc
    v_add_u32 v%d, v102, v103
    s_mov_b32 s64, -1
    s_mov_b32 s65, 15
    s_mov_b32 s66, 0x%x
    s_mov_b32 s67, 1
    s_mul_i32 s68, s50, 2432
    ''' % (vWz, 2304 - 80, vWq, (0x7fff | (0x7fff << 18)) & 0xffffffff))
    PH = [('Q', 3456, 0), ('Z2', 9216, 4608), ('Z1', 9216, 0)]
    def wdma(n):
        ph, j = divmod(n, 9)
        nm, pitch, add = PH[ph]
        P = Stream()
        P('s_mul_i32 s63, s%d, %d' % (sBLK + j, 64 * pitch))
        if add: P('s_add_u32 s63, s63, %d' % add)
        P('s_add_u32 m0, s68, %d' % ((n & 3) * SLOT))
        P('s_mov_b64 exec, s[%s]' % ('66:67' if ph == 0 else '64:65'))
        for e in range(4):
            if e: P('s_add_u32 s63, s63, %d' % (2 * pitch - 576))
            P('buffer_load_dwordx4 v%d, s[%s], s63 offen offset:%d lds' % (vWq if ph == 0 else vWz, '20:23' if ph == 0 else '24:27', e * 576), tok_w=['W%d' % n])
        P('s_mov_b64 exec, -1')
        return list(P)
    S.extend(wdma(0)); S.extend(wdma(1))
    srd(S, 28, 14, 15, AP_SZ, AP_OFF)
    srd(S, 32, 14, 15, Z1P_SZ, Z1P_OFF)
    srd(S, 36, 14, 15, Z2P_SZ, Z2P_OFF)
    srd(S, 40, 14, 15, ST_SZ, ST_OFF)
    srd(S, 44, 12, 13, 256)
    S('''
    s_mov_b32 s78, 0x%x
    s_mov_b32 s79, 0x%x
    s_mov_b32 s80, 0x05040100
    s_mov_b32 s81, 0x07060302
    s_mov_b32 s82, 0x3f803f80
    s_mov_b32 s83, 0x%x
    v_mov_b32 v%d, 0x%x
    ''' % (fbits(C1), fbits(SCL), fbits(1.0 / 576), vC2, fbits(C2)))
    S('''
    v_lshrrev_b32 v100, 3, v1
    v_and_b32 v101, 7, v1
    v_xor_b32 v102, v100, v101
    v_and_b32 v103, 3, v1
    v_lshl_add_u32 v102, v103, 4, v102
    v_lshlrev_b32 v102, 4, v102
    v_bfe_u32 v104, v1, 2, 1
    v_lshl_add_u32 v102, v104, 10, v102
    s_mul_i32 s63, s50, 10240
    s_add_u32 s63, s63, %d
    v_add_u32 v10, s63, v102
    s_lshl_b32 s63, s50, 1
    v_lshrrev_b32 v100, 5, v1
    v_add_u32 v100, s63, v100            ; halo row i
    v_xor_b32 v102, v100, v101
    v_lshl_add_u32 v102, v103, 4, v102
    v_lshlrev_b32 v102, 4, v102
    v_bfe_u32 v104, v1, 2, 3             ; ((lane&31)>>2) = 2*j + ((c&7)>>2)
    v_lshl_add_u32 v102, v104, 10, v102
    v_add_u32 v11, %d, v102
    v_and_b32 v100, 15, v1
    v_lshrrev_b32 v101, 4, v1
    v_xor_b32 v102, v100, v101
    v_lshl_add_u32 v102, v101, 4, v102
    v_lshlrev_b32 v14, 4, v102           ; plain frag read offset (even)
    s_mul_i32 s63, s51, 20480
    s_add_u32 s63, s63, %d
    v_add_u32 v12, s63, v14
    v_xor_b32 v13, 64, v12
    ''' % (T_OFF, XH_OFF, T_OFF))
    if stamp: stamp_mid(S, 86)
    def dots(regs, sa, qa):
        out = Stream()
        for k, r in enumerate(regs):
            out('v_dot2_f32_bf16 v%d, v%d, s82, %s' % (sa, r, '0' if k == 0 else 'v%d' % sa))
            out('v_dot2_f32_bf16 v%d, v%d, v%d, %s' % (qa, r, r, '0' if k == 0 else 'v%d' % qa))
        return out
    S.extend(dots(range(ln(0, 0), ln(0, 0) + 36), 100, 101))
    S.extend(dots(range(ln(1, 0), ln(1, 0) + 36), 102, 103))
    S.extend(dots(range(HL, HL + 12), 104, 105))
    for m in ('quad_perm:[1,0,3,2]', 'quad_perm:[2,3,0,1]', 'row_half_mirror'):
        for r in range(100, 106):
            S('v_add_f32_dpp v%d, v%d, v%d %s row_mask:0xf bank_mask:0xf' % (r, r, r, m))
    for r in (104, 105):
        S('v_add_f32_dpp v%d, v%d, v%d row_mirror row_mask:0xf bank_mask:0xf' % (r, r, r))
    for r in (104, 105):
        S('v_mov_b32 v%d, v%d' % (r + 2, r))
    for r in (104, 105):
        S('v_permlane16_swap_b32 v%d, v%d' % (r, r + 2))
        S('v_add_f32 v%d, v%d, v%d' % (r, r, r + 2))
    for r in (100, 102, 104):
        S('''
        v_mul_f32 v%d, s83, v%d
        v_mul_f32 v106, v%d, v%d
        v_fma_f32 v%d, v%d, s83, -v106
        v_max_f32 v%d, 0, v%d
        v_add_f32 v%d, 0x3727c5ac, v%d
        v_rsq_f32 v106, v%d
        v_mul_f32 v%d, v%d, v106
        v_sub_f32 v%d, 0, v%d
        v_mov_b32 v%d, v106
        ''' % (r, r, r, r, r + 1, r + 1, r + 1, r + 1, r + 1, r + 1, r + 1, r + 1, r, r + 1, r + 1, r))
    def norm(S, r, st, k):
        t = 106 + 2 * (k & 1)
        S('v_lshlrev_b32 v%d, 16, v%d' % (t, r))
        S('v_and_b32 v%d, 0xffff0000, v%d' % (t + 1, r))
        S('v_fma_f32 v%d, v%d, v%d, v%d' % (t, t, st, st + 1))
        S('v_fma_f32 v%d, v%d, v%d, v%d' % (t + 1, t + 1, st, st + 1))
        S('v_cvt_pk_bf16_f32 v%d, v%d, v%d' % (r, t, t + 1))
    def norm4(S, r, st):
        subs = []
        for d in range(4):
            s = Stream(); norm(s, r + d, st, d); subs.append(s)
        for pair in (0, 2):
            for i in range(5):
                S.append(subs[pair][i]); S.append(subs[pair + 1][i])
    for j in range(5):
        for g in range(2):
            norm4(S, ln(g, j), 100 + 2 * g)
            S('ds_write_b128 v10, %s offset:%d' % (q4(ln(g, j)), g * 128 + j * 2048), tok_w=['T'])
    S.need('T')
    S('s_barrier')
    for q in range(10):
        for b in range(2):
            S('ds_read_b128 %s, v%d offset:%d' % (xf(q, b), 13 if q & 1 else 12, b * 10240 + q * 1024), tok_w=['TR'])
    for j in range(5, 9):
        for g in range(2):
            norm4(S, ln(g, j), 100 + 2 * g)
    for t in range(3):
        norm4(S, HL + 4 * t, 104)
        if t == 2:
            S('s_mov_b32 exec_lo, 0xff')
            S('s_mov_b32 exec_hi, 0xff')
        S('ds_write_b128 v11, %s offset:%d' % (q4(HL + 4 * t), t * 8192), tok_w=['T'])
        if t == 2: S('s_mov_b64 exec, -1')
    S.need('TR')
    S('s_barrier')
    for j in range(5, 9):
        for g in range(2):
            S('ds_write_b128 v10, %s offset:%d' % (q4(ln(g, j)), g * 128 + (j - 5) * 2048), tok_w=['T'])
    hX = S1 + 32
    S('''
    v_lshrrev_b32 v100, 4, v1
    v_mul_u32_u24 v100, 2432, v100
    v_bfe_u32 v101, v1, 2, 2
    v_mul_u32_u24 v101, 288, v101
    v_and_b32 v102, 3, v1
    v_lshlrev_b32 v102, 3, v102
    v_add3_u32 v%d, v100, v101, v102
    v_add_u32 v%d, %d, v14
    v_xor_b32 v%d, 64, v%d
    ''' % (vT, vA1, XH_OFF, vA2, vA1))
    S.need('T')
    S('s_barrier')
    for q in range(10, 18):
        for b in range(2):
            S('ds_read_b128 %s, v%d offset:%d' % (xf(q, b), 13 if q & 1 else 12, b * 10240 + (q - 10) * 1024), tok_w=['TR'])
    S.need('TR', 'W0')
    S('s_barrier')
    S.extend(wdma(2))
    if stamp: stamp_mid(S, 88)
    S('s_cmp_ge_u32 s50, 4')
    S('s_cbranch_scc1 K1_H1')
    F.run(S)
    import copy
    txt = F.text()
    state = (F.vmq, F.lgq)
    for h in range(2):
        G2 = Finisher()
        G2.vmq = [set(x) for x in state[0]]; G2.lgq = [(set(a), b) for a, b in state[1]]
        G2.hist = list(F.hist)
        main_half(G2, h, wdma, stamp)
        txt += G2.text()
    return txt, 256

def main_half(F, h, wdma, stamp):
    S = Stream()
    if h: S('K1_H1:')
    hX = S1 + 32; hA = S1 + 28; vq = [S1 + k for k in range(4)]
    for c in range(4):
        if h == 0:
            S('s_add_u32 s63, s51, %d' % c)
            S('s_and_b32 s63, s63, 3')
            S('s_lshl_b32 s%d, s63, 5' % (69 + c))
            S('v_add_u32 v%d, s%d, v%d' % (vq[c], 69 + c, vT))
        else:
            S('v_add_u32 v%d, %d, v%d' % (vq[c], 128 + 32 * c, vT))
    ntile = [4, 5 - h, 4 + h]
    accbase = [S0, S1, S0]
    def acc(ph, c, b): return accbase[ph] + (c * 2 + b) * 4
    frs = []
    for n in range(27):
        ph, j = divmod(n, 9)
        for ks in range(2):
            for c in range(ntile[ph]):
                frs.append((n, ks, c))
    bias = {}
    def read(f):
        n, ks, c = frs[f]
        ph, j = divmod(n, 9)
        g = Stream()
        first = (ks == 0 and c == 0)
        if first and n > 0:
            toks = ['W%d' % n]
            if n == 10: toks.append('QB')
            if n == 26: toks.append('PUB')
            g.need(*toks)
            g('s_barrier')
            if n == 26 and h == 0:
                g.append('ATOMIC')
            if n + 2 < 27: g.extend(wdma(n + 2))
            if n == 18:
                if h == 0:
                    g('s_lshl_b32 s63, s52, 5')
                else:
                    g('s_lshl_b32 s63, s52, 5')
                    g('s_add_u32 s63, s63, 128')
                g('v_add_u32 v%d, s63, v%d' % (vA1, vT))
                bias[vA1] = bias.get(vT, 0)
                if h == 1:
                    g('s_cmp_eq_u32 s52, 0')
                    g('s_cselect_b32 s63, 256, 0')
                    g('v_add_u32 v%d, s63, v%d' % (vTs, vT))
                    bias[vTs] = bias.get(vT, 0)
        if ph == 0: ar, coff = vq[c], 0
        elif ph == 1: ar, coff = vT, 32 * (c + 5 * h)
        else:
            if c < 4: ar, coff = vA1, 32 * c
            else: ar, coff = vTs, 0
        want = (n & 3) >> 1
        if bias.get(ar, 0) != want:
            g('v_add_u32 v%d, %d, v%d' % (ar, 2 * SLOT if want else -2 * SLOT, ar))
            bias[ar] = want
        r = WFR + (f & 3) * 4
        for hh in range(2):
            g('ds_read_b64_tr_b16 v[%d:%d], v%d offset:%d' % (r + 2 * hh, r + 2 * hh + 1, ar, (n & 1) * SLOT + ks * 9728 + hh * 1152 + coff))
        if ph == 0 and c == 0:
            q = 2 * j + ks
            g('ds_read_b128 %s, v%d offset:%d' % (q4(hX + 4 * (q & 1)), vA2 if q & 1 else vA1, q * 1024))
        return g
    steps = [Stream() for _ in range(27)]
    for f in range(3): S.extend(read(f))
    for f, (n, ks, c) in enumerate(frs):
        ph, j = divmod(n, 9)
        q = 2 * j + ks
        M = steps[n]
        r = WFR + (f & 3) * 4
        for b in range(2):
            a = acc(ph, c, b)
            M('v_mfma_f32_16x16x32_bf16 %s, %s, %s, %s' % (q4(a), q4(r), xf(q, b), '0' if q == 0 else q4(a)))
        if ph == 0 and c == 0:
            M('v_mfma_f32_16x16x32_bf16 %s, %s, %s, %s' % (q4(hA), q4(r), q4(hX + 4 * (q & 1)), '0' if q == 0 else q4(hA)))
        if f + 3 < len(frs): M.extend(read(f + 3))
    def cat(a, b):
        o = Stream()
        for n in range(a, b): o.extend(steps[n])
        return o
    QW = Stream()
    QW('''
    v_and_b32 v10, 15, v1
    s_lshl_b32 s63, s51, 5
    v_add_u32 v11, s63, v10
    v_mul_u32_u24 v11, %d, v11
    v_lshrrev_b32 v12, 4, v1
    v_lshlrev_b32 v12, 3, v12
    v_mul_u32_u24 v10, %d, v10
    s_mov_b32 s63, %d
    v_add3_u32 v10, v10, v12, s63
    v_add3_u32 v11, v11, v12, s63
    ''' % (QP, QP, QB_OFF))
    for c in range(4):
        if h == 0: QW('v_add_u32 v13, s%d, v11' % (69 + c))
        for b in range(2):
            a = acc(0, c, b)
            QW('v_cvt_pk_bf16_f32 v%d, v%d, v%d' % (a, a, a + 1))
            QW('v_cvt_pk_bf16_f32 v%d, v%d, v%d' % (a + 1, a + 2, a + 3))
            grp = Stream()
            if h == 1 and c == 3: grp('s_mov_b32 exec_hi, 0')
            grp('ds_write_b64 v%d, v[%d:%d] offset:%d' % (13 if h == 0 else 11, a, a + 1, (16 + 16 * b) * QP + (0 if h == 0 else 128 + 32 * c)), tok_w=['QB'])
            if h == 1 and c == 3: grp('s_mov_b32 exec_hi, -1')
            QW.append(list(grp))
    return_hold = None
    QW('v_cvt_pk_bf16_f32 v%d, v%d, v%d' % (14, hA, hA + 1))
    QW('v_cvt_pk_bf16_f32 v%d, v%d, v%d' % (15, hA + 2, hA + 3))
    if h == 0:
        QW('v_add_u32 v10, s69, v10')
        QW('ds_write_b64 v10, v[14:15]', tok_w=['QB'])
    else:
        QW('ds_write_b64 v10, v[14:15] offset:128', tok_w=['QB'])
    AT = attention(h)
    E2 = epi_z2(h, ntile[1], lambda c, b: acc(1, c, b))
    out = Stream()
    out.extend(S)
    out.extend(cat(0, 9))
    if stamp: stamp_mid(out, 90)
    halo_part = [x for x in QW[-(4 if h == 0 else 3):]]
    head_part = QW[:10]
    rest = QW[10:-(4 if h == 0 else 3)]
    out.extend(head_part); out.extend(halo_part)
    out.extend(merge(steps[9], rest, 0, 2 * 2 * ntile[1] - 8))
    out.extend(merge(cat(10, 17), AT))
    out.extend(steps[17])
    if stamp: stamp_mid(out, 92)
    out.extend(merge(cat(18, 24), E2))
    out.extend(cat(24, 27))
    if stamp: stamp_mid(out, 94)
    tail(out, h, ntile, acc, stamp)
    for x in flatten(out):
        if x == 'ATOMIC':
            raw = Stream()
            raw('''s_cmp_lg_u32 s51, 0
            s_cbranch_scc1 K1_NOAT
            s_lshl_b32 s63, s48, 4
            v_mov_b32 v14, 0
            v_mov_b32 v15, 1
            s_mov_b64 exec, 1''')
            F.run(raw)
            at = I('buffer_atomic_add v15, v14, s[44:47], s63 offen sc1')
            F.add(at); F.vmq.pop()
            raw = Stream()
            raw('''s_mov_b64 exec, -1
            K1_NOAT:''')
            F.run(raw)
        else:
            F.add(x)

def flatten(lst):
    for x in lst:
        if isinstance(x, list):
            for y in flatten(x): yield y
        else: yield x

def merge(main, side, start=0, end=None):
    idx = [i for i, x in enumerate(main) if x != 'ATOMIC' and x.kind == 'mfma']
    if end is None: end = len(idx)
    idx = idx[start:end]
    n = len(idx)
    def wt(x):
        if isinstance(x, list): return sum(wt(y) for y in x)
        return 2 if x.kind == 'trans' else (0 if x.kind in ('need', 'label') else 1)
    w = [wt(x) for x in side]
    total = sum(w); pos = 0; acc = 0.0
    slot = {j: t for t, j in enumerate(idx)}
    out = Stream()
    for i, x in enumerate(main):
        out.append(x)
        if i in slot:
            target = total * (slot[i] + 1) / n
            while pos < len(side) and (acc + w[pos] <= target + 1e-9 or slot[i] == n - 1):
                out.append(side[pos]); acc += w[pos]; pos += 1
    assert pos == len(side)
    return out

def attention(h):
    A = Stream()
    R = S0
    qb = R; kb = (R + 12, R + 24); lg = R + 36
    vQ = 10; vKV = 11; vRow = 12; vO = 13
    off0 = 1 if h else 0
    A('''
    v_lshrrev_b32 v14, 1, v1
    s_lshl_b32 s99, s51, 5
    v_add_u32 v14, s99, v14              ; s_local
    v_mul_u32_u24 v10, %d, v14
    v_add_u32 v10, %d, v10
    v_and_b32 v15, 1, v1
    v_mul_u32_u24 v11, %d, v15
    v_sub_u32 v11, v10, v11
    v_subrev_u32 v11, %d, v11
    s_lshl_b32 s99, s48, 7
    v_lshlrev_b32 v15, 3, v15
    v_sub_u32 v12, v14, v15
    v_add_u32 v12, s99, v12
    v_lshrrev_b32 v15, 4, v14
    s_lshl_b32 s99, s48, 3
    v_add_u32 v15, s99, v15              ; tt
    v_mul_u32_u24 v13, 92160, v15
    v_and_b32 v15, 15, v14
    v_lshl_add_u32 v13, v15, 4, v13
    ''' % (QP, QB_OFF + 16 * QP, 8 * QP, 3 * 2 * QP))
    A('s_mul_i32 s63, s49, 36')
    if h: A('s_add_u32 s63, s63, 18')
    grp = []
    for d in range(9):
        grp += G('''
        s_lshr_b32 s%d, s63, 3
        s_lshl_b32 s%d, s%d, 8
        s_and_b32 s98, s63, 7
        s_lshl_b32 s98, s98, 1
        s_add_u32 s%d, s%d, s98
        s_add_u32 s63, s63, 2''' % (69 + d, 69 + d, 69 + d, 69 + d, 69 + d))
    pre = A.pop() if not h else None
    if h:
        p2 = A.pop(); p1 = A.pop(); A.append([p1, p2] + grp)
    else:
        A.append([pre] + grp)
    def rdvec(dst, addr, off):
        if h == 0:
            A('ds_read_b128 %s, v%d offset:%d' % (q4(dst), addr, off))
            A('ds_read_b128 %s, v%d offset:%d' % (q4(dst + 4), addr, off + 16))
            A('ds_read_b32 v%d, v%d offset:%d' % (dst + 8, addr, off + 32))
        else:
            for k in range(3):
                A('ds_read_b128 %s, v%d offset:%d' % (q4(dst + 4 * k), addr, off + 32 + 16 * k))
    rdvec(qb, vQ, 160)
    rdvec(kb[0], vKV, 3 * 480)
    rdvec(kb[1], vKV, 2 * 480)
    for u in range(4):
        k = kb[u & 1]
        for d in range(9):
            A('v_dot2_f32_bf16 v%d, v%d, v%d, %s' % (lg + u, qb + off0 + d, k + off0 + d, '0' if d == 0 else 'v%d' % (lg + u)))
        if u < 2: rdvec(k, vKV, (1 - u) * 480)
    A('v_mov_b32 v14, 0xce6e6b28')
    for u in range(4):
        A.append(G('''v_cmp_gt_i32 vcc, %d, v%d
        v_cndmask_b32 v%d, v%d, v14, vcc''' % (2 * u, vRow, lg + u, lg + u)))
    chunks = [(0, 4, 0), (16, 4, 0), (32, 1, 0)] if h == 0 else [(32, 3, 1), (48, 4, 0), (64, 2, 0)]
    vb = (R, R + 16)
    def rdv(ci, buf):
        boff, nd, skip = chunks[ci]
        for u in range(4):
            o = 80 + (3 - u) * 480 + boff
            if nd + skip == 1: A('ds_read_b32 v%d, v%d offset:%d' % (buf + 4 * u, vKV, o))
            elif nd + skip == 2: A('ds_read_b64 v[%d:%d], v%d offset:%d' % (buf + 4 * u, buf + 4 * u + 1, vKV, o))
            else: A('ds_read_b128 %s, v%d offset:%d' % (q4(buf + 4 * u), vKV, o))
    rdv(0, R)
    A('''
    v_max3_f32 v14, v%d, v%d, v%d
    v_max_f32 v14, v14, v%d
    v_mov_b32 v15, v14
    v_max_f32_dpp v14, v15, v15 quad_perm:[1,0,3,2] row_mask:0xf bank_mask:0xf
    ''' % (lg, lg + 1, lg + 2, lg + 3))
    A.pop(); A.pop()
    A('v_max_f32_dpp v15, v14, v14 quad_perm:[1,0,3,2] row_mask:0xf bank_mask:0xf')
    A('v_mul_f32 v15, s79, v15')
    for u in range(4): A('v_fma_f32 v%d, v%d, s79, -v15' % (lg + u, lg + u))
    for u in range(4): A('v_exp_f32 v%d, v%d' % (lg + u, lg + u))
    A('''
    v_add_f32 v14, v%d, v%d
    v_add_f32 v15, v%d, v%d
    v_add_f32 v14, v14, v15
    v_add_f32_dpp v14, v14, v14 quad_perm:[1,0,3,2] row_mask:0xf bank_mask:0xf
    v_rcp_f32 v14, v14
    ''' % (lg, lg + 1, lg + 2, lg + 3))
    for u in range(4): A('v_mul_f32 v%d, v%d, v14' % (lg + u, lg + u))
    A('v_cvt_pk_bf16_f32 v%d, v%d, v%d' % (lg, lg, lg + 1))
    A('v_cvt_pk_bf16_f32 v%d, v%d, v%d' % (lg + 1, lg + 2, lg + 3))
    ob = R + 16; tp = R + 24
    dglob = 0
    for ci, (boff, nd, skip) in enumerate(chunks):
        buf = R
        for d in range(nd):
            for pr in range(2):
                x0 = buf + 8 * pr + skip + d; x1 = x0 + 4
                t = tp + 2 * pr
                A('v_perm_b32 v%d, v%d, v%d, s80' % (t, x1, x0))
                A('v_perm_b32 v%d, v%d, v%d, s81' % (t + 1, x1, x0))
            for pr in range(2):
                t = tp + 2 * pr
                for e in range(2):
                    A('v_dot2_f32_bf16 v%d, v%d, v%d, %s' % (ob + 2 * d + e, t + e, lg + pr, '0' if pr == 0 else 'v%d' % (ob + 2 * d + e)))
        if ci < 2: rdv(ci + 1, R)
        for e in range(2 * nd):
            A('v_add_f32_dpp v%d, v%d, v%d quad_perm:[1,0,3,2] row_mask:0xf bank_mask:0xf' % (ob + e, ob + e, ob + e))
        for d in range(nd):
            A('v_cvt_pk_bf16_f32 v%d, v%d, v%d' % (tp + 4 + d, ob + 2 * d, ob + 2 * d + 1))
        grp = G('s_mov_b32 exec_lo, 0x55555555\ns_mov_b32 exec_hi, 0x55555555')
        for d in range(nd):
            grp += G('buffer_store_dword v%d, v%d, s[28:31], s%d offen' % (tp + 4 + d, vO, 69 + dglob + d))
        grp += G('s_mov_b64 exec, -1')
        A.append(grp)
        dglob += nd
    return A

def epi_z2(h, nt, acc):
    E = Stream()
    tmp = (S0 + 32) if h == 0 else (S1 + 32)
    st = (12, 13, 14, 15)
    E('''
    v_and_b32 v10, 15, v1
    s_lshl_b32 s63, s51, 5
    v_add_u32 v10, s63, v10
    v_mul_u32_u24 v10, %d, v10
    v_lshrrev_b32 v11, 4, v1
    v_lshlrev_b32 v11, 3, v11
    s_mov_b32 s63, %d
    v_add3_u32 v10, v10, v11, s63
    ''' % (ZP, ZB_OFF))
    g0 = [E.pop() for _ in range(8)][::-1]
    E.append(g0)
    for c in range(nt):
        T = c + 5 * h
        for b in range(2):
            a = acc(c, b)
            gelu4(E, a, tmp + 4 * b)
            E('v_cvt_pk_bf16_f32 v%d, v%d, v%d' % (a, a, a + 1))
            E('v_cvt_pk_bf16_f32 v%d, v%d, v%d' % (a + 1, a + 2, a + 3))
            E('ds_write_b64 v10, v[%d:%d] offset:%d' % (a, a + 1, 16 * b * ZP + 32 * T), tok_w=['ZB'])
            for d in range(2):
                z = (c == 0 and d == 0)
                E('v_dot2_f32_bf16 v%d, v%d, s82, %s' % (st[2 * b], a + d, '0' if z else 'v%d' % st[2 * b]))
                E('v_dot2_f32_bf16 v%d, v%d, v%d, %s' % (st[2 * b + 1], a + d, a + d, '0' if z else 'v%d' % st[2 * b + 1]))
    for sw in ('v_permlane16_swap_b32', 'v_permlane32_swap_b32'):
        for k in range(4): E('v_mov_b32 v%d, v%d' % (tmp + k, st[k]))
        for k in range(4): E('%s v%d, v%d' % (sw, st[k], tmp + k))
        for k in range(4): E('v_add_f32 v%d, v%d, v%d' % (st[k], st[k], tmp + k))
    E.append(G('''
    v_cmp_le_u32 vcc, 16, v1
    v_cndmask_b32 v12, v12, v14, vcc
    v_cndmask_b32 v13, v13, v15, vcc
    v_lshlrev_b32 v11, 3, v1
    s_lshl_b32 s63, s48, 4
    s_add_u32 s63, s63, s49
    s_lshl_b32 s63, s63, 11
    s_lshl_b32 s98, s51, 8
    s_add_u32 s63, s63, s98
    s_add_u32 s63, s63, %d
    s_mov_b32 exec_hi, 0''' % (1024 * h)) + G('buffer_store_dwordx2 v[12:13], v11, s[40:43], s63 offen sc0 sc1', tok_w=['PUB']) + G('s_mov_b32 exec_hi, -1'))
    return E

def tail(S, h, ntile, acc, stamp):
    nt = ntile[2]
    tmp = S1
    S('''
    s_lshl_b32 s63, s48, 3
    s_lshl_b32 s98, s51, 1
    s_add_u32 s63, s63, s98
    s_mul_i32 s63, s63, 72
    s_mul_i32 s98, s49, 9
    s_add_u32 s98, s98, s52
    s_lshr_b32 s98, s98, 1
    s_add_u32 s63, s63, s98
    s_lshl_b32 s69, s63, 10
    s_add_u32 s70, s69, 73728
    s_cmp_eq_u32 s52, 0
    s_cselect_b32 s63, 4608, 0
    s_sub_u32 s63, s63, 512
    s_add_u32 s71, s69, s63
    s_add_u32 s72, s70, s63
    v_lshlrev_b32 v10, 4, v1
    v_lshrrev_b32 v12, 5, v1
    v_lshlrev_b32 v12, 8, v12
    v_and_b32 v13, 15, v1
    v_lshl_add_u32 v12, v13, 4, v12
    v_bfe_u32 v13, v1, 4, 1
    v_lshl_add_u32 v11, v13, 3, v12
    ''')
    for p in range(2):
        for b in range(2):
            a0 = acc(2, 2 * p, b); a1 = acc(2, 2 * p + 1, b)
            gelu4(S, a0, tmp); gelu4(S, a1, tmp + 4)
            o = tmp + 8 + 4 * (2 * p + b)
            S('v_cvt_pk_bf16_f32 v%d, v%d, v%d' % (o, a0, a0 + 1))
            S('v_cvt_pk_bf16_f32 v%d, v%d, v%d' % (o + 1, a0 + 2, a0 + 3))
            S('v_cvt_pk_bf16_f32 v%d, v%d, v%d' % (o + 2, a1, a1 + 1))
            S('v_cvt_pk_bf16_f32 v%d, v%d, v%d' % (o + 3, a1 + 2, a1 + 3))
            for d in range(2): S('v_permlane32_swap_b32 v%d, v%d' % (o + d, o + 2 + d))
            for d in range(2): S('v_permlane16_swap_b32 v%d, v%d' % (o + d, o + 2 + d))
            S('buffer_store_dwordx4 %s, v10, s[32:35], s%d offen offset:%d' % (q4(o), 69 + b, (2 * h + p) * 1024))
    if h == 1:
        for b in range(2):
            a0 = acc(2, 4, b)
            gelu4(S, a0, tmp)
            o = tmp + 24 + 2 * b
            S('v_cvt_pk_bf16_f32 v%d, v%d, v%d' % (o, a0, a0 + 1))
            S('v_cvt_pk_bf16_f32 v%d, v%d, v%d' % (o + 1, a0 + 2, a0 + 3))
            S('buffer_store_dwordx2 v[%d:%d], v11, s[32:35], s%d offen' % (o, o + 1, 71 + b))
    if stamp: stamp_mid(S, 96)
    n2 = ntile[1]
    S('''
    v_lshrrev_b32 v12, 4, v1
    v_lshlrev_b32 v12, 3, v12
    v_bfe_u32 v13, v1, 2, 2
    v_add_u32 v12, v12, v13
    s_lshl_b32 s63, s51, 5
    v_add_u32 v12, s63, v12
    v_mul_u32_u24 v12, %d, v12
    v_and_b32 v13, 3, v1
    v_lshl_add_u32 v12, v13, 3, v12
    v_add_u32 v12, %d, v12
    ''' % (ZP, ZB_OFF))
    S.need('ZB')
    zf = XF
    for c in range(n2):
        T = c + 5 * h
        for hh in range(2):
            S('ds_read_b64_tr_b16 v[%d:%d], v12 offset:%d' % (zf + 4 * c + 2 * hh, zf + 4 * c + 2 * hh + 1, hh * 4 * ZP + 32 * T))
    if h == 0:
        S('''
        s_cmp_lg_u32 s51, 0
        s_cbranch_scc1 K1_NOPOLL
        s_lshl_b32 s63, s48, 4
        v_mov_b32 v14, 0
        s_mov_b32 s98, 0
        K1_POLL:
        buffer_load_dword v15, v14, s[44:47], s63 offen sc0 sc1
        s_waitcnt vmcnt(0)
        v_readfirstlane_b32 s99, v15
        s_add_u32 s98, s98, 1
        s_cmp_ge_u32 s99, 16
        s_cbranch_scc1 K1_NOPOLL
        s_sleep 1
        s_cmp_lt_u32 s98, 0x40000
        s_cbranch_scc1 K1_POLL
        K1_NOPOLL:
        ''')
    S('s_barrier')
    if stamp: stamp_mid(S, 98 - 98 + 100 - 2) if False else None
    pl = XF + 24
    S('''
    v_lshrrev_b32 v13, 4, v1
    v_lshlrev_b32 v13, 13, v13
    v_and_b32 v14, 15, v1
    v_lshl_add_u32 v13, v14, 4, v13
    s_lshl_b32 s63, s48, 15
    s_lshl_b32 s98, s51, 8
    s_add_u32 s63, s63, s98
    s_add_u32 s98, s63, 4096
    ''')
    for k in range(8):
        S('buffer_load_dwordx4 %s, v13, s[40:43], s%d offen offset:%d sc0 sc1' % (q4(pl + 4 * k), 63 if k < 4 else 98, (k & 3) * 1024))
    for k in range(4):
        for e in range(4): S('v_add_f32 v%d, v%d, v%d' % (pl + 4 * k + e, pl + 4 * k + e, pl + 16 + 4 * k + e))
    for k in range(2):
        for e in range(4): S('v_add_f32 v%d, v%d, v%d' % (pl + 4 * k + e, pl + 4 * k + e, pl + 8 + 4 * k + e))
    for e in range(4): S('v_add_f32 v%d, v%d, v%d' % (pl + e, pl + e, pl + 4 + e))
    for sw in ('v_permlane16_swap_b32', 'v_permlane32_swap_b32'):
        for k in range(4): S('v_mov_b32 v%d, v%d' % (pl + 4 + k, pl + k))
        for k in range(4): S('%s v%d, v%d' % (sw, pl + k, pl + 4 + k))
        for k in range(4): S('v_add_f32 v%d, v%d, v%d' % (pl + k, pl + k, pl + 4 + k))
    S('s_mov_b32 s63, 0x%x' % fbits(1.0 / 2304))
    for r in (pl, pl + 2):
        S('''
        v_mul_f32 v%d, s63, v%d
        v_mul_f32 v14, v%d, v%d
        v_fma_f32 v%d, v%d, s63, -v14
        v_max_f32 v%d, 0, v%d
        v_add_f32 v%d, 0x3727c5ac, v%d
        v_rsq_f32 v14, v%d
        v_mul_f32 v%d, v%d, v14
        v_sub_f32 v%d, 0, v%d
        v_mov_b32 v%d, v14
        ''' % (r, r, r, r, r + 1, r + 1, r + 1, r + 1, r + 1, r + 1, r + 1, r + 1, r, r + 1, r + 1, r))
    sr = XF + 64
    S('''
    s_lshl_b32 s63, s50, 8
    s_add_u32 s63, s63, %d
    v_and_b32 v14, 15, v1
    v_lshlrev_b32 v14, 4, v14
    v_add_u32 v14, s63, v14
    v_lshrrev_b32 v15, 4, v1
    v_lshlrev_b32 v15, 6, v15
    v_add_u32 v15, s63, v15
    ''' % SB_OFF)
    S('ds_write_b128 v14, %s' % q4(pl), tok_w=['SB'])
    S.need('SB')
    for k in range(4): S('ds_read_b128 %s, v15 offset:%d' % (q4(sr + 4 * k), 16 * k))
    S('''
    s_lshl_b32 s63, s49, 6
    s_lshl_b32 s98, s48, 2
    s_add_u32 s63, s63, s98
    s_add_u32 s63, s63, s51
    s_mul_i32 s63, s63, 9216
    s_add_u32 s63, s63, %d
    s_add_u32 s98, s63, 4096
    v_xor_b32 v11, 64, v10
    ''' % (5 * h * 1024))
    for c in range(n2):
        T = c + 5 * h
        for d in range(4):
            r = zf + 4 * c + d
            t = pl + 8 + 2 * (d & 1)
            S('v_lshlrev_b32 v%d, 16, v%d' % (t, r))
            S('v_and_b32 v%d, 0xffff0000, v%d' % (t + 1, r))
            S('v_fma_f32 v%d, v%d, v%d, v%d' % (t, t, sr + 4 * d, sr + 4 * d + 1))
            S('v_fma_f32 v%d, v%d, v%d, v%d' % (t + 1, t + 1, sr + 4 * d + 2, sr + 4 * d + 3))
            S('v_cvt_pk_bf16_f32 v%d, v%d, v%d' % (r, t, t + 1))
        S('buffer_store_dwordx4 %s, v%d, s[36:39], s%d offen offset:%d' % (q4(zf + 4 * c), 11 if T & 1 else 10, 63 if c < 4 else 98, (c & 3) * 1024))
    if stamp:
        S('s_waitcnt vmcnt(0)')
        stamp_mid(S, 70)
        stamp_store(S, 84, [86, 88, 90, 92, 94, 96, 70], 14, 0, 72, 12)
    if h == 1: S('K1_END:')
    S('s_endpgm')
```

```python
from common import *

K2_LDS = 4 * 34816
def gen_k2(stamp=False, rot=True, nodma=False, nomfma=False, noread=False, same=0, nobar=False, prio=0, xmap='48', onewait=True, D=1):
    F = Finisher()
    S = Stream()
    ACC = 8; FS = (80, 124); Z1 = 168
    vW = (204, 205, 206, 207); vZ = 208; vB0 = 209; vB1 = 210; vA0 = 211; vA1 = 212; vAs = 213; vP = 214; vS = 215
    SLOT = 34816
    def acc(a, b): r = ACC + (a * 2 + b) * 4; return 'v[%d:%d]' % (r, r + 3)
    def fB(s, b): r = FS[s] + b * 4; return 'v[%d:%d]' % (r, r + 3)
    def fA(s, a): r = FS[s] + 8 + a * 4; return 'v[%d:%d]' % (r, r + 3)
    def bar(X):
        if not nobar: X('s_barrier')
    S('''
    s_load_dwordx4 s[4:7], s[0:1], 40
    s_load_dwordx2 s[8:9], s[0:1], 80
    s_cmp_ge_u32 s2, 256
    s_cbranch_scc1 K2_END
    ''')
    if stamp: stamp_begin(S, 60)
    S('''
    v_lshrrev_b32 v1, 6, v0
    v_and_b32 v2, 63, v0
    v_readfirstlane_b32 s62, v1
    s_and_b32 s43, s2, 7
    s_lshr_b32 s46, s2, 3
    ''')
    if xmap == '48':
        S('''
        s_lshr_b32 s32, s43, 1
        s_lshl_b32 s32, s32, 2
        s_and_b32 s47, s46, 3
        s_add_u32 s32, s32, s47
        s_and_b32 s33, s43, 1
        s_lshl_b32 s33, s33, 3
        s_lshr_b32 s46, s46, 2
        s_add_u32 s33, s33, s46
        ''')
    else:
        S('''
        s_and_b32 s32, s43, 1
        s_lshl_b32 s32, s32, 3
        s_and_b32 s47, s46, 7
        s_add_u32 s32, s32, s47
        s_lshr_b32 s33, s43, 1
        s_lshl_b32 s33, s33, 2
        s_lshr_b32 s46, s46, 3
        s_add_u32 s33, s33, s46
        ''')
    S('''
    s_add_u32 s35, s46, s47
    s_and_b32 s35, s35, %d
    v_and_b32 v3, 15, v2
    v_lshrrev_b32 v4, 4, v2
    v_lshlrev_b32 v%d, 4, v2
    s_and_b32 s48, s33, 1
    s_and_b32 s34, s62, 3
    s_lshl_b32 s49, s34, 12
    ''' % (3 if rot else 0, vP))
    if same == 1:
        S('s_and_b32 s32, s32, 1')
        S('s_and_b32 s33, s33, 1')
    S('s_cmp_lt_u32 s62, 4')
    S('s_cbranch_scc1 K2_CONS')
    S('''
    s_lshl_b32 s46, s32, 7
    s_lshl_b32 s47, s34, 5
    s_add_u32 s46, s46, s47
    v_lshrrev_b32 v5, 3, v2
    v_add_u32 v5, s46, v5
    v_lshlrev_b32 v5, 12, v5
    v_and_b32 v6, 7, v2
    v_xor_b32 v6, v6, v4
    v_lshlrev_b32 v6, 4, v6
    v_add_u32 v%d, v5, v6
    v_xor_b32 v7, 64, v%d
    v_add_u32 v%d, 0x%x, v7
    v_add_u32 v%d, 0x%x, v%d
    v_add_u32 v%d, 0x%x, v7
    s_mul_i32 s46, s33, 589824
    s_mul_i32 s47, s34, 4608
    s_add_u32 s46, s46, s47
    v_add_u32 v%d, s46, v%d
    s_add_u32 s50, s47, 16384
    s_mov_b32 s44, -1
    s_mov_b32 s45, 0
    s_mov_b32 s36, 0
    s_waitcnt lgkmcnt(0)
    ''' % (vW[0], vW[0], vW[1], 0x8000 - 1024, vW[2], 0x10000 - 2048, vW[0], vW[3], 0x18000 - 3072, vZ, vP))
    srd(S, 12, 4, 5, 2048 * 4096)
    srd(S, 16, 8, 9, Z2P_SZ, Z2P_OFF)
    def sigma(P, p, base):
        if p == 0 and rot:
            P('''s_add_u32 s43, s%d, s35
            s_add_u32 s43, s43, %d
            s_and_b32 s43, s43, 31''' % (base, 4 * D))
        else:
            P('''s_add_u32 s43, s35, %d
            s_and_b32 s43, s43, 3
            s_add_u32 s43, s43, s%d''' % (p, base))
    def half_a(P, p, base):
        sigma(P, p, base)
        P('s_lshl_b32 s37, s43, 7')
        P('s_add_u32 m0, s49, %d' % (p * SLOT))
        for q in range(4):
            if not nodma: P('buffer_load_dwordx4 v%d, s[12:15], s37 offen offset:%d lds' % (vW[q], q * 1024), tok_w=['P%d' % p])
    def half_b(P, p, base):
        sigma(P, p, base)
        P('s_mul_i32 s38, s43, 18432')
        P('s_add_u32 m0, s50, %d' % (p * SLOT))
        if not nodma:
            P('s_mov_b64 exec, s[44:45]')
            P('buffer_load_dwordx4 v%d, s[16:19], s38 offen lds' % vZ, tok_w=['P%d' % p])
            P('s_mov_b64 exec, -1')
            for q in range(4):
                P('buffer_load_dwordx4 v%d, s[16:19], s38 offen offset:%d lds' % (vZ, 512 + q * 1024), tok_w=['P%d' % p])
    for p in range(2):
        half_a(S, p, 36); half_b(S, p, 36)
    S.need('P0')
    bar(S)
    half_a(S, 2, 36); half_b(S, 2, 36); half_a(S, 3, 36)
    def block(issue, last=False):
        B = Stream()
        B('s_add_u32 s51, s36, 4')
        for p in range(4):
            if last and p == 3: break
            B.need('P%d' % ((p + 1) & 3))
            bar(B)
            if p == 0:
                half_b(B, 3, 36)
                if issue: half_a(B, 0, 51)
            elif issue:
                half_b(B, p - 1, 51)
                half_a(B, p, 51)
        B('s_mov_b32 s36, s51')
        return B
    S('s_mov_b32 s41, 7')
    F.run(S)
    T = Stream()
    T('''s_sub_u32 s41, s41, 1
    s_cmp_lg_u32 s41, 0
    s_cbranch_scc1 K2_PLOOP''')
    F.loop('K2_PLOOP', block(True), T)
    P = block(False, last=True)
    P('K2_END:')
    P('s_endpgm')
    F.run(P)
    txt = F.text()
    F = Finisher()
    S = Stream()
    S('K2_CONS:')
    if prio: S('s_setprio %d' % prio)
    S('s_waitcnt lgkmcnt(0)')
    srd(S, 28, 6, 7, 4096)
    S('''
    s_lshl_b32 s46, s32, 8
    s_lshl_b32 s47, s34, 6
    s_add_u32 s46, s46, s47
    v_lshlrev_b32 v5, 1, v3
    buffer_load_ushort v216, v5, s[28:31], s46 offen
    buffer_load_ushort v217, v5, s[28:31], s46 offen offset:32
    ''')
    srd(S, 20, 8, 9, Z1P_SZ, Z1P_OFF)
    srd(S, 24, 8, 9, AP_SZ, AP_OFF)
    S('''
    v_lshrrev_b32 v5, 1, v3
    v_xor_b32 v5, v5, v4
    v_lshlrev_b32 v5, 4, v5
    v_lshlrev_b32 v6, 7, v3
    v_add3_u32 v%d, v5, v6, s49
    v_xor_b32 v%d, 64, v%d
    ''' % (vB0, vB1, vB0))
    S('''
    v_lshrrev_b32 v5, 3, v3
    v_add_u32 v5, s48, v5            ; o + (i>>3)
    v_and_b32 v6, 1, v5
    v_lshlrev_b32 v6, 2, v6          ; 4*(T&1)
    v_and_b32 v7, 3, v3
    v_bfe_u32 v1, v3, 2, 1
    v_lshl_add_u32 v7, v1, 3, v7     ; 8*((i>>2)&1) + (i&3)
    v_xor_b32 v7, v7, v6
    v_lshl_add_u32 v7, v4, 4, v7     ; + g*16
    v_lshlrev_b32 v7, 4, v7
    v_lshl_add_u32 v7, v5, 10, v7
    v_add_u32 v%d, 16384, v7
    v_xor_b32 v%d, 64, v%d
    s_cmp_eq_u32 s48, 0
    s_cselect_b32 s46, %d, 0
    s_add_u32 s46, s46, 16384
    v_add_u32 v%d, s46, v%d
    v_lshrrev_b32 v5, 1, v4
    v_lshlrev_b32 v5, 8, v5
    v_lshl_add_u32 v5, v3, 4, v5
    v_and_b32 v6, 1, v4
    v_lshl_add_u32 v%d, v6, 3, v5
    ''' % (vA0, vA1, vA0, 8192, vAs, vP, vS))
    S('''
    s_lshl_b32 s46, s32, 3
    s_lshl_b32 s47, s34, 1
    s_add_u32 s46, s46, s47          ; tt0
    s_mul_i32 s47, s33, 9
    s_add_u32 s47, s47, s48
    s_lshr_b32 s47, s47, 1           ; ff0
    s_mul_i32 s51, s46, 72
    s_add_u32 s51, s51, s47
    s_lshl_b32 s51, s51, 10
    s_add_u32 s52, s51, 73728        ; b=1
    s_mul_i32 s53, s46, 90
    s_add_u32 s53, s53, s47
    s_add_u32 s53, s53, 18
    s_lshl_b32 s53, s53, 10
    s_add_u32 s54, s53, 92160
    s_cmp_eq_u32 s48, 0
    s_cselect_b32 s46, 4608, 0
    s_sub_u32 s46, s46, 512
    s_add_u32 s55, s51, s46
    s_add_u32 s56, s52, s46
    s_add_u32 s57, s53, s46
    s_add_u32 s58, s54, s46
    ''')
    S('v_lshlrev_b32 v216, 16, v216')
    S('v_lshlrev_b32 v217, 16, v217')
    for a in range(9):
        for b in range(2):
            for r in range(4):
                S('v_mov_b32 v%d, v%d' % (ACC + (a * 2 + b) * 4 + r, 216 + b))
    def reads(s, h):
        g = []
        vB = vB1 if h else vB0
        for b in range(2):
            g.append(G('ds_read_b128 %s, v%d offset:%d' % (fB(s, b), vB, b * 2048)))
        for a in range(9):
            if a < 8:
                g.append(G('ds_read_b128 %s, v%d offset:%d' % (fA(s, a), vA1 if a & 1 else vA0, h * 9216 + (a >> 1) * 2048)))
            else:
                g.append(G('ds_read_b128 %s, v%d offset:%d' % (fA(s, a), vAs, h * 9216)))
        if noread: g = [G('s_nop 0')]
        return g
    def mfmas(s):
        m = Stream()
        for a in range(9):
            for b in range(2):
                m('v_mfma_f32_16x16x32_bf16 %s, %s, %s, %s' % (acc(a, b), fA(s, a), fB(s, b), acc(a, b)))
        if nomfma: m = Stream(m[:2])
        return m
    def adv():
        return [G('''s_add_u32 s42, s42, 1
        s_and_b32 s42, s42, 3
        s_cselect_b32 s40, s59, %d''' % (-3 * SLOT))] + [G('v_add_u32 v%d, s40, v%d' % (r, r)) for r in (vB0, vB1, vA0, vA1, vAs)]
    S('s_mov_b32 s42, 0')
    S('s_mov_b32 s59, %d' % SLOT)
    if stamp: stamp_mid(S, 72)
    bar(S)
    if stamp:
        stamp_mid(S, 74); S('s_waitcnt lgkmcnt(0)')
    for g in reads(0, 0): S.extend(g)
    S('s_mov_b32 s41, 29')
    F.run(S)
    def body(last=False, extra=None):
        B = Stream()
        if onewait: B('s_waitcnt lgkmcnt(0)')
        B.extend(weave(mfmas(0), reads(1, 1) + ([] if last else adv()), 0, 16))
        if not last:
            B('s_waitcnt lgkmcnt(0)')
            bar(B)
            g = reads(0, 0)
            if extra: g = g + extra
            B.extend(weave(mfmas(1), g, 0, 12 if not extra else 16))
        else:
            B.extend(mfmas(1))
        return B
    T = Stream()
    T('''s_sub_u32 s41, s41, 1
    s_cmp_lg_u32 s41, 0
    s_cbranch_scc1 K2_LOOP''')
    F.loop('K2_LOOP', body(), T)
    zl = []
    for b in range(2):
        for p in range(4):
            r = Z1 + (b * 4 + p) * 4
            zl.append(G('buffer_load_dwordx4 v[%d:%d], v%d, s[20:23], s%d offen offset:%d' % (r, r + 3, vP, 51 + b, p * 1024)))
        r = Z1 + 32 + b * 2
        zl.append(G('buffer_load_dwordx2 v[%d:%d], v%d, s[20:23], s%d offen' % (r, r + 1, vS, 55 + b)))
    F.run(body(extra=zl))
    F.run(body())
    F.run(body(last=True))
    E = Stream()
    if stamp: stamp_mid(E, 76)
    t0 = 216
    for b in range(2):
        for p in range(5):
            nd = 4 if p < 4 else 2
            zr = Z1 + (b * 4 + p) * 4 if p < 4 else Z1 + 32 + b * 2
            for d in range(nd):
                a = 2 * p + (d >> 1)
                ar = ACC + (a * 2 + b) * 4 + (d & 1) * 2
                t = t0 + (d & 1) * 2
                E('v_lshlrev_b32 v%d, 16, v%d' % (t, zr + d))
                E('v_and_b32 v%d, 0xffff0000, v%d' % (t + 1, zr + d))
                E('v_pk_mul_f32 v[%d:%d], v[%d:%d], v[%d:%d]' % (t, t + 1, t, t + 1, ar, ar + 1))
                E('v_cvt_pk_bf16_f32 v%d, v%d, v%d' % (zr + d, t, t + 1))
            if p < 4:
                E('buffer_store_dwordx4 v[%d:%d], v%d, s[24:27], s%d offen offset:%d' % (zr, zr + 3, vP, 53 + b, p * 1024))
            else:
                E('buffer_store_dwordx2 v[%d:%d], v%d, s[24:27], s%d offen' % (zr, zr + 1, vS, 57 + b))
    if stamp:
        stamp_mid(E, 78)
        E('s_waitcnt vmcnt(0)')
        stamp_mid(E, 80)
        stamp_store(E, 60, [72, 74, 76, 78, 80], 8, 1, 64, 216)
    E('s_endpgm')
    F.run(E)
    return txt + F.text(), 224
```

```python
from common import *

K3_RING = 4 * 4096
K3_P = 272
K3_RED = 4 * K3_RING
K3_LDS = K3_RED + 4 * 80 * K3_P
def gen_k3(stamp=False, rot=0):
    F = Finisher()
    S = Stream()
    ACC = 8
    AR = 88
    WF = 168
    vA = (200, 201, 202, 203, 204); vW = (205, 206, 207, 208); vT = (209, 210, 211, 212)
    XR = 216
    vO = 213; vR = 214
    def acc(ct, a): r = ACC + (ct * 5 + a) * 4; return 'v[%d:%d]' % (r, r + 3)
    def fa(s, a): r = AR + s * 20 + a * 4; return 'v[%d:%d]' % (r, r + 3)
    def fw(s, ct): r = WF + s * 16 + ct * 4; return r
    S('''
    s_load_dwordx2 s[4:5], s[0:1], 0
    s_load_dwordx2 s[6:7], s[0:1], 16
    s_load_dwordx4 s[8:11], s[0:1], 56
    s_load_dwordx2 s[12:13], s[0:1], 80
    s_cmp_ge_u32 s2, 234
    s_cbranch_scc1 K3_END
    ''')
    if stamp: stamp_begin(S, 60)
    S('''
    v_lshrrev_b32 v1, 6, v0
    v_and_b32 v2, 63, v0
    v_readfirstlane_b32 s34, v1
    s_and_b32 s43, s2, 7
    s_lshr_b32 s46, s2, 3
    s_mul_i32 s47, s43, 29
    s_min_u32 s43, s43, 2
    s_add_u32 s47, s47, s43
    s_add_u32 s47, s47, s46          ; tile
    s_mul_hi_u32 s32, s47, 0x1c71c71d ; mt
    s_mul_i32 s46, s32, 9
    s_sub_u32 s33, s47, s46          ; nt
    s_mul_i32 s46, s32, 460800       ; 5*92160*mt
    v_lshlrev_b32 v3, 4, v2
    v_add_u32 v%d, s46, v3
    ''' % vA[0])
    for a in range(1, 5):
        S('v_add_u32 v%d, %d, v%d' % (vA[a], 92160 * a, vA[0]))
    S('''
    v_lshrrev_b32 v3, 3, v2
    v_and_b32 v4, 2, v3
    v_and_b32 v5, 7, v2
    v_xor_b32 v5, v5, v4
    v_lshlrev_b32 v5, 4, v5
    v_mul_u32_u24 v3, 1152, v3
    s_lshl_b32 s46, s33, 7
    v_add3_u32 v%d, v3, v5, s46
    v_xor_b32 v5, 64, v5
    v_add3_u32 v6, v3, v5, s46
    v_add_u32 v%d, %d, v6
    v_add_u32 v%d, %d, v%d
    v_add_u32 v%d, %d, v6
    s_lshl_b32 s49, s34, 14          ; wave ring base
    s_mov_b32 s36, s34               ; kf of next stage to load
    s_waitcnt lgkmcnt(0)
    ''' % (vW[0], vW[1], 9216 - 1024, vW[2], 2 * (9216 - 1024), vW[0], vW[3], 3 * (9216 - 1024)))
    srd(S, 16, 12, 13, AP_SZ, AP_OFF)
    S('s_mov_b32 s23, 0x00020000')
    S('s_mov_b32 s50, %d' % (576 * 1152))
    S('s_mov_b32 s51, %d' % (2304 * 1152))
    def loads(slot):
        P = Stream()
        P('''
        s_sub_u32 s43, s36, 18
        s_cmp_lt_u32 s36, 18
        s_cselect_b32 s20, s6, s8
        s_cselect_b32 s21, s7, s9
        s_cselect_b32 s22, s50, s51
        s_cselect_b32 s43, s36, s43
        s_mul_i32 s37, s43, 36864
        s_lshl_b32 s38, s36, 10
        s_cmp_lt_u32 s36, 90
        s_cselect_b32 s38, s38, 0x7f000000
        s_add_u32 m0, s49, %d
        s_add_u32 s36, s36, 4
        ''' % (slot * 4096))
        g = [list(P)]
        for j in range(4):
            g.append(G('buffer_load_dwordx4 v%d, s[20:23], s37 offen offset:%d lds' % (vW[j], j * 1024), tok_w=['W%d' % slot]))
        for a in range(5):
            g.append(G('buffer_load_dwordx4 %s, v%d, s[16:19], s38 offen' % (fa(slot, a), vA[a])))
        return g
    for s in range(3):
        for g in loads(s): S.extend(g)
    S('''
    v_lshrrev_b32 v3, 4, v2          ; g
    v_bfe_u32 v4, v2, 2, 2           ; r
    v_and_b32 v5, 3, v2              ; c
    v_lshl_add_u32 v6, v3, 3, v4     ; 8g + r
    v_lshlrev_b32 v6, 7, v6
    v_add_u32 v6, s49, v6
    v_and_b32 v7, 1, v5
    v_lshl_add_u32 v6, v7, 3, v6     ; + (c&1)*8
    v_lshrrev_b32 v5, 1, v5
    v_lshl_add_u32 v6, v5, 4, v6     ; + (c>>1)*16
    v_and_b32 v4, 2, v4
    v_and_b32 v3, 1, v3
    v_lshl_or_b32 v4, v3, 2, v4      ; f
    v_lshlrev_b32 v4, 4, v4
    ''')
    for ct in range(4):
        S('v_xor_b32 v5, %d, v4' % (32 * ct))
        S('v_add_u32 v%d, v5, v6' % vT[ct])
    srd(S, 24, 4, 5, 2048 * 1152)
    srd(S, 28, 10, 11, 2048 * 1152)
    S('''
    v_lshrrev_b32 v3, 3, v0
    s_mul_i32 s46, s32, 80
    v_add_u32 v4, s46, v3
    v_mul_u32_u24 v4, 1152, v4
    v_and_b32 v5, 7, v0
    v_lshlrev_b32 v6, 4, v5
    s_lshl_b32 s46, s33, 7
    v_add3_u32 v%d, v4, v6, s46
    v_mul_u32_u24 v3, %d, v3
    v_lshlrev_b32 v5, 5, v5
    v_add3_u32 v%d, v3, v5, %s
    ''' % (vO, K3_P, vR, 's49'))
    S.pop()
    S('v_add_u32 v%d, v3, v5' % vR)
    S('v_add_u32 v%d, %d, v%d' % (vR, K3_RED, vR))
    def trreads(ws, slot):
        g = []
        for ct in range(4):
            for h in range(2):
                r = fw(ws, ct) + 2 * h
                g.append(G('ds_read_b64_tr_b16 v[%d:%d], v%d offset:%d' % (r, r + 1, vT[ct], slot * 4096 + h * 512)))
        return g
    def mf(ws, slot, first):
        m = Stream()
        for ct in range(4):
            for a in range(5):
                r = fw(ws, ct)
                m('v_mfma_f32_16x16x32_bf16 %s, v[%d:%d], %s, %s' % (acc(ct, a), r, r + 3, fa(slot, a), '0' if first else acc(ct, a)))
        return m
    S.need('W0')
    for g in trreads(0, 0): S.extend(g)
    def stage(q, ld=True, nxt=True, first=False, extra=None):
        slot = q & 3
        B = Stream()
        if ld:
            for g in loads((q + 3) & 3): B.extend(g)
        if extra:
            for g in extra: B.extend(g)
        g = []
        if nxt:
            n = Stream(); n.need('W%d' % ((q + 1) & 3))
            g = trreads((q + 1) & 1, (q + 1) & 3)
            g[0] = list(n) + g[0]
        B.extend(weave(mf(q & 1, slot, first), g, 2, 14))
        return B
    if stamp:
        stamp_mid(S, 72); S('s_waitcnt lgkmcnt(0)')
    S.extend(stage(0, first=True))
    S('s_mov_b32 s41, 5')
    F.run(S)
    B = Stream()
    for q in range(1, 5): B.extend(stage(q))
    T = Stream()
    T('''s_sub_u32 s41, s41, 1
    s_cmp_lg_u32 s41, 0
    s_cbranch_scc1 K3_LOOP''')
    F.loop('K3_LOOP', B, T)
    xl = []
    for rd in range(3):
        xl.append(G('buffer_load_dwordx4 v[%d:%d], v%d, s[24:27], s%d offen' % (XR + 4 * rd, XR + 4 * rd + 3, vO, 52 + rd)))
    E = Stream()
    E('s_mov_b32 s52, 0')
    E('s_mov_b32 s53, %d' % (32 * 1152))
    E('s_mov_b32 s54, %d' % (64 * 1152))
    E.extend(stage(21, ld=False, extra=xl))
    E.extend(stage(22, ld=False))
    E.extend(stage(23, ld=False, nxt=False))
    if stamp: stamp_mid(E, 74)
    E('''
    v_and_b32 v3, 15, v2
    v_mul_u32_u24 v3, %d, v3
    v_lshrrev_b32 v4, 4, v2
    v_lshl_add_u32 v3, v4, 4, v3
    s_mul_i32 s46, s34, %d
    s_add_u32 s46, s46, %d
    v_add_u32 v3, s46, v3
    ''' % (K3_P, 80 * K3_P, K3_RED))
    for a in range(5):
        for ct in range(4):
            E('ds_write_b128 v3, %s offset:%d' % (acc(ct, a), a * 16 * K3_P + ct * 64), tok_w=['RED'])
    E.need('RED')
    E('s_barrier')
    for rd in range(3):
        if rd == 2:
            E('s_cmp_ge_u32 s34, 2')
            E('s_cbranch_scc1 K3_DONE')
        base = 88 + rd * 32
        for c in range(4):
            if c == 3: E('v_add_u32 v4, %d, v%d' % (3 * 80 * K3_P, vR))
            for hh in range(2):
                r = base + c * 8 + hh * 4
                off = rd * 32 * K3_P + hh * 16 + (c * 80 * K3_P if c < 3 else 0)
                E('ds_read_b128 v[%d:%d], v%d offset:%d' % (r, r + 3, vR if c < 3 else 4, off))
        for e in range(8):
            E('v_add_f32 v%d, v%d, v%d' % (base + e, base + e, base + 8 + e))
            E('v_add_f32 v%d, v%d, v%d' % (base + 16 + e, base + 16 + e, base + 24 + e))
        for d in range(4):
            x = XR + 4 * rd + d
            E('v_lshlrev_b32 v5, 16, v%d' % x)
            E('v_and_b32 v6, 0xffff0000, v%d' % x)
            E('v_add_f32 v%d, v%d, v%d' % (base + 2 * d, base + 2 * d, base + 16 + 2 * d))
            E('v_add_f32 v%d, v%d, v%d' % (base + 2 * d + 1, base + 2 * d + 1, base + 17 + 2 * d))
            E('v_add_f32 v5, v5, v%d' % (base + 2 * d))
            E('v_add_f32 v6, v6, v%d' % (base + 2 * d + 1))
            E('v_cvt_pk_bf16_f32 v%d, v5, v6' % x)
        E('buffer_store_dwordx4 v[%d:%d], v%d, s[28:31], s%d offen' % (XR + 4 * rd, XR + 4 * rd + 3, vO, 52 + rd))
    E('K3_DONE:')
    if stamp:
        stamp_mid(E, 76)
        E('s_waitcnt vmcnt(0)')
        stamp_mid(E, 78)
        stamp_store(E, 60, [72, 74, 76, 78], 12, 2, 64, 4)
    E('K3_END:')
    E('s_endpgm')
    F.run(E)
    return F.text(), 228
```

```python
import sys
from build import *
HDR = open('parallel_sum__sliding_local_dilated__mixer_gmlp__prompt.s.ref').read().split('; Override launch')[0]
def make(path, stamp=False, k1={}, k2={}, k3={}):
    t1, v1 = gen_k1(stamp=stamp, **k1)
    t2, v2 = gen_k2(stamp=stamp, **k2)
    t3, v3 = gen_k3(stamp=stamp, **k3)
    assemble_file(path, [('k1_kernel', t1, v1, 256, 512, K1_LDS), ('k2_kernel', t2, v2, 256, 512, K2_LDS), ('k3_kernel', t3, v3, 234, 256, K3_LDS)])
    s = open(path).read()
    open(path, 'w').write(HDR + s)
if __name__ == '__main__':
    make('parallel_sum__sliding_local_dilated__mixer_gmlp__prompt.s')
    make('v_norot.s', k2=dict(rot=False))
    make('full_st.s', stamp=True)
```

```python
import sys
from common import *
from k2 import gen_k2, K2_LDS
from k3 import gen_k3, K3_LDS
from k1 import gen_k1, K1_LDS
def assemble_file(path, kernels):
    o = []
    for name, text, vg, grid, block, lds in kernels:
        o.append('; @launch kernel=%s grid=(%d,1,1) block=(%d,1,1) lds=%d' % (name, grid, block, lds))
    o.append('.amdgcn_target "amdgcn-amd-amdhsa--gfx950"')
    for name, text, vg, grid, block, lds in kernels:
        o.append(kernel_text(name, text, vg))
    o.append('.section .rodata,"a"')
    for name, text, vg, grid, block, lds in kernels:
        o.append(descriptor(name, vg, 102))
    open(path, 'w').write('\n'.join(o))
if __name__ == '__main__':
    for nm, kw in (('_a', dict(budget=72, xmap='48')), ('_b', dict(budget=72)), ('_c', dict(budget=72, nopf=1)), ('_d', dict(budget=72, xmap='48', rot=False))):
        t, vg = gen_k1(stamp=True, **kw)
        assemble_file('k1%s.s' % nm, [('k1_kernel', t, vg, 256, 512, K1_LDS)])
```

```python
from asmlib import *
Z1P_OFF = 0x0;        Z1P_SZ = 128 * 72 * 1024
Z2P_OFF = 0x900000;   Z2P_SZ = 16 * 64 * 9 * 1024
AP_OFF  = 0x1200000;  AP_SZ  = 128 * 90 * 1024
ST_OFF  = 0x1D40000;  ST_SZ  = 16 * 16 * 2 * 128 * 8
TS_OFF  = 0x2000000

def srd(S, d, lo, hi, size, off=0):
    if off:
        S('s_add_u32 s%d, s%d, 0x%x' % (d, lo, off))
        S('s_addc_u32 s%d, s%d, 0' % (d + 1, hi))
    else:
        S('s_mov_b32 s%d, s%d' % (d, lo))
        S('s_mov_b32 s%d, s%d' % (d + 1, hi))
    S('s_mov_b32 s%d, 0x%x' % (d + 2, size))
    S('s_mov_b32 s%d, 0x00020000' % (d + 3))

def weave(mf, groups, first=0, last=None):
    out = Stream()
    n = len(mf) if last is None else last
    span = n - first
    k = 0
    for j, x in enumerate(mf):
        out.append(x)
        if first <= j < n:
            while k < len(groups) and (k + 1) * span <= (j - first + 1) * len(groups):
                out.extend(groups[k]); k += 1
    while k < len(groups):
        out.extend(groups[k]); k += 1
    return out

def G(text, **kw):
    s = Stream(); s(text, **kw); return list(s)

def stamp_begin(S, sreg):
    S('s_memtime s[%d:%d]' % (sreg, sreg + 1))
    S('s_memrealtime s[100:101]')
def stamp_end(S, sreg, ws_lo, slot, tmp_s, tmp_v, nwg_stride=64):
    S('s_memtime s[%d:%d]' % (tmp_s, tmp_s + 1))
    S('s_waitcnt lgkmcnt(0)')
    S('s_sub_u32 s%d, s%d, s%d' % (tmp_s + 2, tmp_s, sreg))
    srd(S, tmp_s + 4, ws_lo, ws_lo + 1, 0x100000, TS_OFF)
    S('s_lshl_b32 s%d, s2, 6' % (tmp_s + 3))
    S('s_add_u32 s%d, s%d, %d' % (tmp_s + 3, tmp_s + 3, slot * 65536))
    S('v_lshrrev_b32 v%d, 6, v0' % tmp_v)
    S('v_lshlrev_b32 v%d, 2, v%d' % (tmp_v, tmp_v))
    S('v_mov_b32 v%d, s%d' % (tmp_v + 1, tmp_s + 2))
    S('buffer_store_dword v%d, v%d, s[%d:%d], s%d offen' % (tmp_v + 1, tmp_v, tmp_s + 4, tmp_s + 7, tmp_s + 3))

def stamp_mid(S, sreg):
    S('s_memtime s[%d:%d]' % (sreg, sreg + 1))
def stamp_store(S, base, regs, ws_lo, slot, tmp_s, tmp_v, wave_s=None):
    S('s_memrealtime s[%d:%d]' % (tmp_s, tmp_s + 1))
    S('s_waitcnt lgkmcnt(0)')
    srd(S, tmp_s + 4, ws_lo, ws_lo + 1, 0x100000, TS_OFF)
    S('s_lshl_b32 s%d, s2, 8' % (tmp_s + 3))
    S('s_add_u32 s%d, s%d, %d' % (tmp_s + 3, tmp_s + 3, slot * 65536))
    if wave_s is None:
        S('v_lshrrev_b32 v%d, 6, v0' % tmp_v)
    else:
        S('v_mov_b32 v%d, s%d' % (tmp_v, wave_s))
    S('v_lshlrev_b32 v%d, 5, v%d' % (tmp_v, tmp_v))
    for k, r in enumerate(regs):
        S('s_sub_u32 s%d, s%d, s%d' % (tmp_s + 2, r, base))
        S('v_mov_b32 v%d, s%d' % (tmp_v + 1, tmp_s + 2))
        S('buffer_store_dword v%d, v%d, s[%d:%d], s%d offen offset:%d' % (tmp_v + 1, tmp_v, tmp_s + 4, tmp_s + 7, tmp_s + 3, 4 * k))
    S('s_add_u32 s%d, s%d, 0x40000' % (tmp_s + 3, tmp_s + 3))
    S('v_mov_b32 v%d, s100' % (tmp_v + 1))
    S('buffer_store_dword v%d, v%d, s[%d:%d], s%d offen' % (tmp_v + 1, tmp_v, tmp_s + 4, tmp_s + 7, tmp_s + 3))
    S('v_mov_b32 v%d, s%d' % (tmp_v + 1, tmp_s))
    S('buffer_store_dword v%d, v%d, s[%d:%d], s%d offen offset:4' % (tmp_v + 1, tmp_v, tmp_s + 4, tmp_s + 7, tmp_s + 3))
```

```python
from common import *
import k1_v2 as V2
from k1_v2 import fbits, q4, gelu4, rowstats, dots, norm4, flatten, m64, setm, is_mem, C1, C2, SCL
SLOT = 20480
T1_OFF = 40960; T2_OFF = 81920; XH_OFF = 143360; ZB_OFF = 81920; QB_OFF = 119808; SB_OFF = 161792
K1_LDS = 163840
QP = 240; ZP = 296
XF = 112; ACC = 40; WFR = 16; NRING = 6
NR1 = 6; P1 = NR1 * 2048; P2 = (9 - NR1) * 2048
sBLK = 54
vT = 4; vC2 = 9
OPT = {}
assert all((i * 3277) >> 16 == i // 20 for i in range(1280)) and all((r * 43) >> 8 == r // 6 for r in range(18))
def xf(j, b): r = XF + (j * 2 + b) * 4; return 'v[%d:%d]' % (r, r + 3)
LN1 = 40; LN2 = XF + 16 * NR1; ST = 88
def ln(g, j): return LN1 + (g * NR1 + j) * 4 if j < NR1 else LN2 + (g * (9 - NR1) + j - NR1) * 4
PH = [('Z2', 9216, 4608), ('Q', 3456, 0), ('Z1', 9216, 0)]
vDZ = 16; vDQ = 21
def wt(x):
    if isinstance(x, str): return 1
    if isinstance(x, list): return sum(wt(y) for y in x)
    if x.kind in ('need', 'label'): return 0
    if x.kind in ('trans', 'mfma'): return 2
    if x.kind == 'salu': return 0.5
    return 1

def wdma(n):
    ph, j = divmod(n, 9)
    nm, pitch, add = PH[ph]
    P = Stream()
    P('s_mul_i32 s63, s%d, %d' % (sBLK + j, 64 * pitch))
    if add: P('s_add_u32 s63, s63, %d' % add)
    for e in range(5):
        P('s_add_u32 m0, s68, %d' % ((n & 3) * SLOT + e * 4096))
        P('buffer_load_dwordx4 v%d, s[%s], s63 offen lds' % ((vDQ if ph == 1 else vDZ) + e, '20:23' if ph == 1 else '24:27'), tok_w=['W%d' % n])
    return P

def head(S, stamp, xmap, rot):
    S('''
    s_load_dwordx4 s[4:7], s[0:1], 0
    s_load_dwordx2 s[8:9], s[0:1], 32
    s_load_dwordx4 s[12:15], s[0:1], 72
    s_load_dwordx2 s[10:11], s[0:1], 40
    s_cmp_ge_u32 s2, 256
    s_cbranch_scc1 K1_END
    ''')
    if stamp: stamp_begin(S, 84)
    S('''
    v_lshrrev_b32 v10, 6, v0
    v_and_b32 v1, 63, v0
    v_readfirstlane_b32 s50, v10
    s_and_b32 s63, s2, 7
    s_lshr_b32 s64, s2, 3
    ''')
    if xmap == '84':
        S('''
        s_and_b32 s48, s63, 1
        s_lshl_b32 s48, s48, 3
        s_and_b32 s65, s64, 7
        s_add_u32 s48, s48, s65
        s_lshr_b32 s49, s63, 1
        s_lshl_b32 s49, s49, 2
        s_lshr_b32 s64, s64, 3
        s_add_u32 s49, s49, s64
        s_lshl_b32 s64, s64, 1
        s_add_u32 s53, s64, s65
        ''')
    else:
        S('''
        s_lshr_b32 s48, s63, 1
        s_lshl_b32 s48, s48, 2
        s_and_b32 s65, s64, 3
        s_add_u32 s48, s48, s65
        s_and_b32 s49, s63, 1
        s_lshl_b32 s49, s49, 3
        s_lshr_b32 s64, s64, 2
        s_add_u32 s49, s49, s64
        s_lshl_b32 s65, s65, 1
        s_add_u32 s53, s64, s65
        ''')
    if not rot: S('s_mov_b32 s53, 0')
    S('''
    s_sub_u32 s64, s53, 9
    s_cmp_ge_u32 s53, 9
    s_cselect_b32 s%d, s64, s53
    s_and_b32 s51, s50, 3
    s_and_b32 s52, s49, 1
    s_lshl_b32 s63, s48, 7
    s_lshl_b32 s64, s50, 4
    s_add_u32 s63, s63, s64
    v_lshrrev_b32 v12, 3, v1
    v_and_b32 v13, 7, v1
    v_add_u32 v10, s63, v12
    v_mul_u32_u24 v10, 1152, v10
    v_lshl_add_u32 v10, v13, 4, v10
    v_add_u32 v11, 9216, v10
    ''' % sBLK)
    for j in range(1, 9):
        S('s_add_u32 s%d, s%d, 1' % (sBLK + j, sBLK + j - 1))
        S('s_cmp_eq_u32 s%d, 9' % (sBLK + j))
        S('s_cselect_b32 s%d, 0, s%d' % (sBLK + j, sBLK + j))
    for j in range(9): S('s_lshl_b32 s%d, s%d, 7' % (69 + j, sBLK + j))
    S('s_waitcnt lgkmcnt(0)')
    srd(S, 16, 4, 5, 2048 * 1152)
    for g in range(2):
        for j in range(9):
            S('buffer_load_dwordx4 %s, v%d, s[16:19], s%d offen' % (q4(ln(g, j)), 10 + g, 69 + j))
    srd(S, 28, 14, 15, AP_SZ, AP_OFF)
    srd(S, 36, 14, 15, Z2P_SZ, Z2P_OFF)
    srd(S, 40, 14, 15, ST_SZ, ST_OFF)
    srd(S, 44, 12, 13, 256)
    S('s_mov_b32 s79, 0x%x' % fbits(SCL))
    S('''
    s_mov_b32 s82, 0x3f803f80
    s_mov_b32 s83, 0x%x
    v_xor_b32 v102, v12, v13
    v_and_b32 v103, 3, v1
    v_lshl_add_u32 v102, v103, 4, v102
    v_lshlrev_b32 v102, 4, v102
    v_bfe_u32 v104, v1, 2, 1
    v_lshl_add_u32 v102, v104, 10, v102
    s_mul_i32 s63, s50, %d
    s_add_u32 s63, s63, %d
    v_add_u32 v5, s63, v102              ; transit write address
    v_and_b32 v101, 15, v1
    v_lshrrev_b32 v105, 4, v1
    v_xor_b32 v102, v101, v105
    v_lshl_add_u32 v102, v105, 4, v102
    v_lshlrev_b32 v6, 4, v102            ; plain frag read offset (even)
    v_mul_u32_u24 v105, 2560, v105
    v_bfe_u32 v101, v1, 2, 2
    v_mul_u32_u24 v101, 320, v101
    v_lshlrev_b32 v103, 3, v103
    v_add3_u32 v%d, v105, v101, v103
    s_cmp_ge_u32 s50, 4
    s_cbranch_scc1 K1_HELP
    ''' % (fbits(1.0 / 576), P1, T1_OFF, vT))

def layernorm(S, mid=None):
    for g in range(2):
        regs = [ln(g, j) + d for j in range(9) for d in range(4)]
        S.extend(dots(regs, ST + 2 * g, ST + 2 * g + 1))
        for m in ('quad_perm:[1,0,3,2]', 'quad_perm:[2,3,0,1]', 'row_half_mirror'):
            for r in range(ST + 2 * g, ST + 2 * g + 2):
                S('v_add_f32_dpp v%d, v%d, v%d %s row_mask:0xf bank_mask:0xf' % (r, r, r, m))
        rowstats(S, ST + 2 * g, ST + 6, 's83')
        for j in range(NR1):
            norm4(S, ln(g, j), ST + 2 * g, ST + 6)
            S('ds_write_b128 v5, %s offset:%d' % (q4(ln(g, j)), g * 128 + j * 2048), tok_w=['T'])
        if g == 0:
            for j in range(NR1, 9): norm4(S, ln(g, j), ST + 2 * g, ST + 6)
            if mid: S.extend(mid)
    S.need('T')
    S('s_barrier')
def t2_writes():
    A = Stream()
    for j in range(NR1, 9):
        for g in range(2):
            A('ds_write_b128 v5, %s offset:%d' % (q4(ln(g, j)), g * 128 + (j - NR1) * 2048), tok_w=['T2'])
    return A
def t2_addr(S):
    S('s_mul_i32 s63, s50, %d' % (P2 - P1))
    S('s_add_u32 s63, s63, %d' % (T2_OFF - T1_OFF))
    S('v_add_u32 v5, s63, v5')

def emit(F, out):
    for x in flatten(out):
        if isinstance(x, tuple) and x[0] == 'DMA5':
            _, n, txt, off = x
            lab = 'K1_D%d' % n
            F.run(G('s_cmp_eq_u32 s51, 3\ns_cbranch_scc1 %s\ns_add_u32 m0, s68, %d' % (lab, off)))
            F.add(I(txt)); F.vmq.pop()
            F.run(G(lab + ':'))
        elif x == 'ATOMIC':
            F.run(G('''s_cmp_lg_u32 s51, 0
            s_cbranch_scc1 K1_NOAT
            v_mov_b32 v7, 1
            s_mov_b64 exec, 1'''))
            F.add(I('buffer_atomic_add v7, v6, s[44:47], s9 offen sc1')); F.vmq.pop()
            F.run(G('s_mov_b64 exec, -1\nK1_NOAT:'))
        else:
            F.add(x)

def gen_k1(stamp=False, xmap='84', rot=True, **opt):
    OPT.clear(); OPT.update(opt); V2.OPT.clear()
    F = Finisher()
    S = Stream()
    head(S, stamp, xmap, rot)
    F.run(S)
    txt = F.text()
    for role in (compute, helper):
        G2 = Finisher()
        G2.vmq = [set(x) for x in F.vmq]; G2.lgq = [(set(a), b) for a, b in F.lgq]; G2.hist = list(F.hist)
        emit(G2, role(stamp))
        txt += G2.text()
    return txt, 256

def compute(stamp):
    S = Stream()
    vXe = 6; vXo = 7
    S('s_setprio %d' % OPT.get('prio', 2))
    srd(S, 32, 14, 15, Z1P_SZ, Z1P_OFF)
    S('''
    s_mul_i32 s63, s51, %d
    s_add_u32 s63, s63, %d
    v_add_u32 v6, s63, v6
    v_xor_b32 v7, 64, v6
    ''' % (2 * P1, T1_OFF))
    if stamp: stamp_mid(S, 86)
    layernorm(S)
    for q in range(2 * NR1):
        for b in range(2):
            S('ds_read_b128 %s, v%d offset:%d' % (xf(q, b), vXo if q & 1 else vXe, b * P1 + q * 1024), tok_w=['TR'])
    for j in range(NR1, 9): norm4(S, ln(1, j), ST + 2, ST + 6)
    t2_addr(S)
    S('s_mul_i32 s63, s51, %d' % (2 * (P2 - P1)))
    S('s_add_u32 s63, s63, %d' % (T2_OFF - T1_OFF))
    S.need('TR')
    S('s_barrier')
    S('v_add_u32 v6, s63, v6')
    S('v_add_u32 v7, s63, v7')
    if stamp: stamp_mid(S, 88)
    ntile = [9, 7, 9]
    def acc(c, b): return ACC + (c * 2 + b) * 4
    hA = ACC + 56; hX = ACC + 64; hW = ACC + 68
    vTa = 2; vTb = 3; vq2 = 6; vq4 = 8; vQb = 5; vXH = 9; vqh = 7; vTs = 0
    frs = [(n, ks, c) for n in range(27) for ks in range(2) for c in range(ntile[n // 9])]
    bias = {}
    extra_tok = {1: ['T2'], 9: ['TR2'], 10: ['HB'], 18: ['XHR'], 19: ['QB']}
    QIMM = {0: 0, 1: 32, 3: 120, 5: 160 + 48, 6: 192 + 48}
    def zaddr(mode):
        g = Stream()
        g("""v_bfe_u32 v15, v1, 4, 1
        v_lshlrev_b32 v15, 5, v15""")
        if mode == 0:
            g("""s_cmp_eq_u32 s52, 0
            s_cselect_b32 s98, 1, -1
            s_lshl_b32 s99, s52, 5
            v_mul_lo_u32 v15, v15, s98
            v_add3_u32 v%d, v%d, v15, s99
            v_sub_u32 v%d, v%d, v15
            v_add_u32 v%d, s99, v%d""" % (vTa, vT, vTb, vT, vTb, vTb))
        else:
            g("""s_lshl_b32 s99, s52, 6
            v_add3_u32 v%d, v%d, v15, s99
            v_sub_u32 v%d, v%d, v15
            v_add_u32 v%d, 256, v%d
            v_add_u32 v15, 32, v%d
            s_cmp_eq_u32 s52, 0
            s_cselect_b64 vcc, -1, 0
            v_cndmask_b32 v%d, v15, v%d, vcc
            v_add_u32 v%d, s99, v%d
            v_add_u32 v%d, %d, v%d
            v_add_u32 v%d, %d, v%d
            v_add_u32 v%d, %d, v%d""" % (vTa, vT, vTb, vT, vTs, vTa, vTb, vTs, vTs, vTb, vTb, vTa, 2 * SLOT, vTa, vTb, 2 * SLOT, vTb, vTs, 2 * SLOT, vTs))
        return g
    def qaddr():
        g = Stream()
        g("""v_bfe_u32 v15, v1, 4, 1
        v_lshlrev_b32 v15, 5, v15
        s_mul_i32 s98, s49, 72
        s_and_b32 s98, s98, 31
        v_add3_u32 v{qb}, v{T}, v15, s98
        v_and_b32 v15, 3, v1
        v_cmp_le_u32 vcc, 2, v15
        v_cndmask_b32 v14, 0, 24, vcc
        v_add_u32 v14, 152, v14
        v_add_u32 v{q4}, v{qb}, v14
        v_cmp_le_u32 vcc, 1, v15
        v_cndmask_b32 v14, 0, 24, vcc
        v_add_u32 v14, 64, v14
        v_add_u32 v{q2}, v{qb}, v14
        s_lshl_b32 s69, s51, 5
        s_cmp_eq_u32 s51, 3
        s_cselect_b32 s99, 24, 0
        s_add_u32 s99, s99, s69
        v_add_u32 v{qh}, s99, v{qb}
        s_cmp_eq_u32 s51, 2
        s_cselect_b64 vcc, -1, 0
        v_cndmask_b32 v{qh}, v{qh}, v{q2}, vcc
        v_and_b32 v14, 15, v1
        v_lshrrev_b32 v15, 4, v1
        v_xor_b32 v14, v14, v15
        v_lshl_add_u32 v14, v15, 4, v14
        v_lshlrev_b32 v14, 4, v14
        v_add_u32 v{xh}, {XH}, v14""".format(qb=vQb, T=vT, q4=vq4, q2=vq2, qh=vqh, xh=vXH, XH=XH_OFF))
        return g
    def toggle(g, ar, n):
        want = (n & 3) >> 1
        if bias.get(ar, 0) != want:
            g('v_add_u32 v%d, %d, v%d' % (ar, 2 * SLOT if want else -2 * SLOT, ar))
            bias[ar] = want
    def halo_read(q):
        g = Stream()
        n = 9 + q // 2
        g('ds_read_b128 %s, v%d offset:%d' % (q4(hX), vXH, q * 1024), tok_w=['XHR'])
        toggle(g, vqh, n)
        for hh in range(2):
            g('ds_read_b64_tr_b16 v[%d:%d], v%d offset:%d' % (hW + 2 * hh, hW + 2 * hh + 1, vqh, (n & 1) * SLOT + (q & 1) * 10240 + hh * 1280))
        return g
    def read(f):
        n, ks, c = frs[f]
        ph = n // 9
        g = Stream()
        if ks == 0 and c == 0:
            if n > 0:
                if n in extra_tok: g.need(*extra_tok[n])
                g('s_barrier')
            if n == 0: g.extend(zaddr(0))
            if n == 18:
                for r in (vTa, vTb, vTs): bias[r] = 1
        if ph == 0: ar, coff = (vTb if c & 1 else vTa), 32 * c
        elif ph == 1: ar, coff = (vq2, 0) if c == 2 else ((vq4, 0) if c == 4 else (vQb, QIMM[c]))
        else: ar, coff = ((vTb if c & 1 else vTa), 32 * c) if c < 8 else (vTs, 0)
        toggle(g, ar, n)
        r = WFR + (f % NRING) * 4
        for hh in range(2):
            g('ds_read_b64_tr_b16 v[%d:%d], v%d offset:%d' % (r + 2 * hh, r + 2 * hh + 1, ar, (n & 1) * SLOT + ks * 10240 + hh * 1280 + coff))
        return g
    D = NRING - 1
    for f in range(D): S.extend(read(f))
    def tmpr(ph, c, b):
        pairs = [12, 14, 2] if ph == 0 else [12, 14, 6, 8]
        return pairs[(2 * c + b) % len(pairs)]
    def cvt(ph, c, b):
        a = acc(c, b); t = tmpr(ph, c, b)
        return G('v_cvt_pk_bf16_f32 v%d, v%d, v%d\nv_cvt_pk_bf16_f32 v%d, v%d, v%d' % (t, a, a + 1, t + 1, a + 2, a + 3))
    def cvti(a):
        return G('v_cvt_pk_bf16_f32 v%d, v%d, v%d\nv_cvt_pk_bf16_f32 v%d, v%d, v%d' % (a, a, a + 1, a + 1, a + 2, a + 3))
    def dw(ph, c, b, src=None):
        t = tmpr(ph, c, b) if src is None else src
        if ph == 0:
            return G('ds_write_b64 v10, v[%d:%d] offset:%d' % (t, t + 1, 16 * b * ZP + 32 * c), tok_w=['HB'])
        return G('ds_write_b64 v11, v[%d:%d] offset:%d' % (t, t + 1, (16 + 16 * b) * QP + 32 * c), tok_w=['QB'])
    x2 = Stream()
    for q in range(2 * NR1, 18):
        for b in range(2):
            x2('ds_read_b128 %s, v%d offset:%d' % (xf(q, b), vXo if q & 1 else vXe, b * P2 + (q - 2 * NR1) * 1024), tok_w=['TR2'])
    t2 = t2_writes()
    addr = G('''
    v_and_b32 v10, 15, v1
    s_lshl_b32 s98, s51, 5
    v_add_u32 v10, s98, v10
    v_mul_u32_u24 v11, %d, v10
    v_mul_u32_u24 v10, %d, v10
    v_lshrrev_b32 v12, 4, v1
    v_lshlrev_b32 v12, 3, v12
    s_mov_b32 s98, %d
    v_add3_u32 v10, v10, v12, s98
    s_mov_b32 s98, %d
    v_add3_u32 v11, v11, v12, s98
    ''' % (QP, ZP, ZB_OFF, QB_OFF))
    hw = G('s_mul_i32 s98, s51, %d\nv_subrev_u32 v10, s98, v11\nv_add_u32 v4, s69, v10' % (32 * QP))
    light = [[3, list(addr) + list(qaddr())], [11, list(zaddr(1)) + hw]]
    for f, (n, ks, c) in enumerate(frs):
        ph, j = divmod(n, 9)
        q = 2 * j + ks
        r = WFR + (f % NRING) * 4
        if stamp and q == 0 and c == 0 and ph > 0: stamp_mid(S, 88 + 2 * ph)
        hand = (q == 0 and ph > 0)
        if hand and c == 0:
            S.extend(cvt(ph - 1, 0, 0))
        rd = read(f + D) if f + D < len(frs) else []
        if f % 2 == 0 and f + 1 < len(frs) and not OPT.get('allwait'):
            r1 = WFR + ((f + 1) % NRING) * 4
            S.need(*['v%d' % k for k in range(r1, r1 + 4)])
        for b in range(2):
            a = acc(c, b)
            S('v_mfma_f32_16x16x32_bf16 %s, %s, %s, %s' % (q4(a), q4(r), xf(q, b), '0' if q == 0 else q4(a)))
            S.extend(rd[:-1] if b == 0 else rd[-1:])
            if hand and c < 7:
                S.extend(dw(ph - 1, c, b))
                if ph == 1:
                    if c in (1, 2): S.extend(dw(0, 6 + c, b, acc(6 + c, b)))
                    if c == 2 and b == 1: S.extend(halo_read(0))
                else:
                    if c == 1: S.extend(G('ds_write_b64 v%d, v[%d:%d] offset:%d' % (10 if b else 4, hA + 4 * b, hA + 4 * b + 1, 128 * b), tok_w=['QB']))
                if 2 * c + b + 1 < 14: S.extend(cvt(ph - 1, c + b, 1 - b))
                if c == 0 or (c == 1 and ph == 1): S.extend(cvti(acc(7 + c, b)))
            if n == 0 and t2 and b == 1: S.append(t2.pop(0))
            if n in (1, 2) and x2 and b == 1 and (n == 2 or ks == 1 or c > 0): S.append(x2.pop(0))
            if light and n >= light[0][0]:
                x = light[0][1].pop(0); S.append(x)
                while x.kind == 'salu' and light[0][1]:
                    x = light[0][1].pop(0); S.append(x)
                if not light[0][1]: light.pop(0)
        if ph == 1 and c == 4:
            S('v_mfma_f32_16x16x32_bf16 %s, %s, %s, %s' % (q4(hA + 4), q4(r), q4(hX), '0' if q == 0 else q4(hA + 4)))
        if ph == 1 and c == 5:
            S('v_mfma_f32_16x16x32_bf16 %s, %s, %s, %s' % (q4(hA), q4(hW), q4(hX), '0' if q == 0 else q4(hA)))
            if q < 17 and (q & 1) == 0: S.extend(halo_read(q + 1))
        if ph == 1 and c == 6 and q < 17 and (q & 1) == 1: S.extend(halo_read(q + 1))
    assert not t2 and not x2
    if stamp: stamp_mid(S, 94)
    S('''
    s_lshl_b32 s63, s48, 3
    s_lshl_b32 s98, s51, 1
    s_add_u32 s63, s63, s98
    s_mul_i32 s63, s63, 72
    s_mul_i32 s98, s49, 9
    s_add_u32 s98, s98, s52
    s_lshr_b32 s98, s98, 1
    s_add_u32 s63, s63, s98
    s_lshl_b32 s69, s63, 10
    s_add_u32 s70, s69, 73728
    s_cmp_eq_u32 s52, 0
    s_cselect_b32 s63, 4608, 0
    s_sub_u32 s63, s63, 512
    s_add_u32 s71, s69, s63
    s_add_u32 s72, s70, s63
    v_lshlrev_b32 v10, 4, v1
    v_lshrrev_b32 v12, 5, v1
    v_lshlrev_b32 v12, 8, v12
    v_and_b32 v13, 15, v1
    v_lshl_add_u32 v12, v13, 4, v12
    v_bfe_u32 v13, v1, 4, 1
    v_lshl_add_u32 v12, v13, 3, v12
    ''')
    G1 = OPT.get('gelu1', False)
    if G1:
        S('s_mov_b32 s78, 0x%x' % fbits(C1))
        S('v_mov_b32 v%d, 0x%x' % (vC2, fbits(C2)))
    for p in range(4):
        for b in range(2):
            a0 = acc(2 * p, b); a1 = acc(2 * p + 1, b)
            if G1: gelu4(S, a0, XF); gelu4(S, a1, XF + 4)
            o = XF + 8 + 4 * (2 * p + b)
            S('v_cvt_pk_bf16_f32 v%d, v%d, v%d' % (o, a0, a0 + 1))
            S('v_cvt_pk_bf16_f32 v%d, v%d, v%d' % (o + 1, a0 + 2, a0 + 3))
            S('v_cvt_pk_bf16_f32 v%d, v%d, v%d' % (o + 2, a1, a1 + 1))
            S('v_cvt_pk_bf16_f32 v%d, v%d, v%d' % (o + 3, a1 + 2, a1 + 3))
            for d in range(2): S('v_permlane32_swap_b32 v%d, v%d' % (o + d, o + 2 + d))
            for d in range(2): S('v_permlane16_swap_b32 v%d, v%d' % (o + d, o + 2 + d))
            S('buffer_store_dwordx4 %s, v10, s[32:35], s%d offen offset:%d' % (q4(o), 69 + b, p * 1024))
    for b in range(2):
        a0 = acc(8, b)
        if G1: gelu4(S, a0, XF)
        o = XF + 40 + 2 * b
        S('v_cvt_pk_bf16_f32 v%d, v%d, v%d' % (o, a0, a0 + 1))
        S('v_cvt_pk_bf16_f32 v%d, v%d, v%d' % (o + 1, a0 + 2, a0 + 3))
        S('buffer_store_dwordx2 v[%d:%d], v12, s[32:35], s%d offen' % (o, o + 1, 71 + b))
    V2.S1 = 40; V2.QB_OFF = QB_OFF; V2.VOFF = 72; V2.QOFF = 144
    S.extend(V2.attention(0))
    if OPT.get('late'): S('s_barrier')
    poll(S, 'C')
    n2a, n2b = norm_z2(range(NZC))
    S.extend(n2a)
    S.extend(n2b)
    if stamp:
        stamp_mid(S, 96)
        S('s_waitcnt vmcnt(0)')
        stamp_mid(S, 70)
        stamp_store(S, 84, [86, 88, 90, 92, 94, 96, 70], 14, 0, 72, 12, wave_s=50)
    S('s_endpgm')
    return S

HL = 232
def helper(stamp):
    S = Stream()
    S('K1_HELP:')
    srd(S, 20, 6, 7, 576 * 3456)
    srd(S, 24, 8, 9, 576 * 9216)
    S('''
    s_lshl_b32 s68, s51, 10
    s_mul_i32 s64, s49, 288
    s_and_b32 s64, s64, -64
    s_mul_i32 s65, s49, 72
    s_and_b32 s65, s65, -32
    v_mov_b32 v106, 0x7f000000
    v_mov_b32 v107, 1152
    ''')
    for e in range(5):
        S('''
        s_lshl_b32 s63, s51, 6
        s_add_u32 s63, s63, {base}
        v_add_u32 v100, s63, v1
        v_mul_u32_u24 v101, 3277, v100
        v_lshrrev_b32 v101, 16, v101          ; row
        v_mul_u32_u24 v102, 20, v101
        v_sub_u32 v100, v100, v102            ; p
        v_bfe_u32 v102, v101, 3, 1
        v_lshlrev_b32 v102, 1, v102
        v_xor_b32 v103, v100, v102
        v_mul_u32_u24 v104, 9216, v101
        v_lshl_add_u32 v104, v103, 4, v104
        v_add_u32 v{z}, s64, v104
        v_sub_u32 v100, v100, v102            ; p'
        v_mul_u32_u24 v102, 43, v100
        v_lshrrev_b32 v102, 8, v102           ; section
        v_mul_u32_u24 v103, 6, v102
        v_sub_u32 v103, v100, v103            ; w
        v_add_u32 v102, 1, v102
        v_cmp_eq_u32 vcc, 3, v102
        v_cndmask_b32 v102, v102, 0, vcc
        v_mul_u32_u24 v102, v107, v102
        v_mul_u32_u24 v104, 3456, v101
        v_lshl_add_u32 v104, v103, 4, v104
        v_add3_u32 v104, v104, v102, s65
        v_cmp_gt_u32 vcc, 18, v100
        v_cndmask_b32 v{q}, v106, v104, vcc
        '''.format(base=256 * e, z=vDZ + e, q=vDQ + e))
    S.extend(wdma(0))
    srd(S, 4, 10, 11, 2048 * 4096)
    vHW = 26; vH0 = 27
    S('''
    s_mov_b32 s78, 0x%x
    s_mov_b32 s79, 0x%x
    v_mov_b32 v%d, 0x%x
    s_lshl_b32 s8, s2, 15
    s_lshl_b32 s9, s51, 11
    s_add_u32 s8, s8, s9
    v_lshlrev_b32 v8, 7, v1
    s_lshl_b32 s63, s51, 2
    v_lshrrev_b32 v100, 4, v1
    v_add_u32 v100, s63, v100            ; halo row i
    v_and_b32 v103, 3, v1
    v_xor_b32 v102, v100, v103
    v_lshl_add_u32 v102, v103, 4, v102
    v_lshlrev_b32 v102, 4, v102
    v_bfe_u32 v104, v1, 2, 2
    v_lshl_add_u32 v102, v104, 10, v102
    v_add_u32 v%d, %d, v102
    s_lshl_b32 s63, s48, 7
    s_sub_u32 s63, s63, 16
    v_add_u32 v100, s63, v100
    s_movk_i32 s63, 1152
    v_mul_lo_u32 v100, v100, s63
    v_lshl_add_u32 v100, v13, 4, v100
    v_bfe_u32 v101, v1, 3, 1
    v_add_u32 v101, s%d, v101
    ''' % (fbits(C1), fbits(SCL), vC2, fbits(C2), vHW, XH_OFF, sBLK))
    for t in range(5):
        S('v_add_u32 v102, %d, v101' % (2 * t))
        S('v_subrev_u32 v103, 9, v102')
        S('v_min_u32 v102, v102, v103')
        S('v_lshl_add_u32 v%d, v102, 7, v100' % (vH0 + t))
    S('''
    v_and_b32 v103, 15, v1
    v_cmp_gt_u32 vcc, 8, v103
    v_cndmask_b32 v%d, v106, v%d, vcc
    ''' % (vH0 + 4, vH0 + 4))
    if stamp: stamp_mid(S, 86)
    layernorm(S, mid=wdma(1))
    for t in range(5):
        S('buffer_load_dwordx4 %s, v%d, s[16:19], 0 offen' % (q4(HL + 4 * t), vH0 + t))
    for j in range(NR1, 9): norm4(S, ln(1, j), ST + 2, ST + 6)
    t2_addr(S)
    S.need('W0')
    S('s_barrier')
    if stamp: stamp_mid(S, 88)
    q1 = list(ln_halo(vHW))
    q2 = list(epi_z2())
    V2.S1 = 136; V2.QB_OFF = QB_OFF; V2.VOFF = 72; V2.QOFF = 144
    q3 = list(V2.attention(1))
    B = OPT.get('budget', 64)
    if OPT.get('noside'):
        q1 = []; q2 = q2[-1:]; q3 = []
    pub_step = None
    for n in range(27):
        if n > 0:
            toks = ['W%d' % n]
            if n == 1: toks.append('T2')
            if n == 9: toks.append('XH')
            if pub_step is not None and n == pub_step + 2: toks += ['PUB', 'ZB']
            if OPT.get('trace'):
                S('s_memtime s[96:97]\ns_waitcnt lgkmcnt(0)\ns_sub_u32 s96, s96, s84\nv_writelane_b32 v254, s96, %d' % n)
            S.need(*toks)
            if OPT.get('trace'):
                S('s_memtime s[96:97]\ns_waitcnt lgkmcnt(0)\ns_sub_u32 s96, s96, s84\nv_writelane_b32 v254, s96, %d' % (n + 32))
            S('s_barrier')
            if OPT.get('trace'):
                S('s_memtime s[96:97]\ns_waitcnt lgkmcnt(0)\ns_sub_u32 s96, s96, s84\nv_writelane_b32 v255, s96, %d' % n)
            if pub_step is not None and n == pub_step + 2: S.append('ATOMIC')
        if stamp and n in (9, 18): stamp_mid(S, 88 + 2 * (n // 9))
        mem = []
        if n + 2 < 27 and not OPT.get('nodma'):
            w = list(wdma(n + 2))
            mem = [w[:-8]] + [w[-8 + 2 * k:len(w) - 6 + 2 * k] for k in range(4)]
            assert sum(len(x) for x in mem) == len(w)
        if n in (2, 4, 6, 9) and not OPT.get('nopf'):
            mem.append(G('''s_mov_b32 m0, %d
            s_mov_b64 exec, 0xffff
            buffer_load_dword v8, s[4:7], s8 offen lds
            s_mov_b64 exec, -1
            s_add_u32 s8, s8, 8192''' % SB_OFF))
        work = []
        if n == 0: work += list(t2_writes())
        if n == 18: work += G('s_lshl_b32 s9, s48, 4\nv_mov_b32 v6, 0')
        def drain(q, budget):
            while q and budget > 0:
                x = q.pop(0); budget -= wt(x); work.append(x)
            return budget
        budget = B
        if 1 <= n <= 8: drain(q1, 32 if n < 8 else 1e9)
        if n >= 10 and q2:
            budget = drain(q2, budget)
            if not q2: pub_step = max(n, 17)
        elif n >= 19: drain(q3, OPT.get('abudget', 36))
        tot = sum(wt(x) for x in work); acc_ = 0.0; k = 0
        for x in work:
            while k < len(mem) and acc_ >= tot * k / (len(mem) + OPT.get('dmaslack', 1)):
                S.extend(mem[k]); k += 1
            S.append(x); acc_ += wt(x)
        while k < len(mem):
            S.extend(mem[k]); k += 1
    late = pub_step is None or pub_step + 2 > 26
    assert late == bool(OPT.get('late')), (pub_step, 'set late option accordingly')
    if late:
        S.extend(q2)
        S.need('ZB')
        h = len(q3) // 2
        S.extend(q3[:h]); q3 = q3[h:]
        S.need('PUB')
        S('s_barrier')
        S.append('ATOMIC')
    if stamp: stamp_mid(S, 94)
    S.extend(q3)
    poll(S, 'H')
    n2a, n2b = norm_z2(range(NZC, 9))
    S.extend(n2a)
    S.extend(n2b)
    if stamp:
        stamp_mid(S, 96)
        S('s_waitcnt vmcnt(0)')
        stamp_mid(S, 70)
        stamp_store(S, 84, [86, 88, 90, 92, 94, 96, 70], 14, 0, 72, 12, wave_s=50)
    if OPT.get('trace'):
        S('''s_lshl_b32 s75, s2, 11
        s_lshl_b32 s74, s51, 9
        s_add_u32 s75, s75, s74
        s_add_u32 s75, s75, 0x80000
        v_lshlrev_b32 v12, 2, v1
        buffer_store_dword v254, v12, s[76:79], s75 offen
        buffer_store_dword v255, v12, s[76:79], s75 offen offset:256''')
    S('K1_END:')
    S('s_endpgm')
    print('k1 helper: pub_step', pub_step, 'att left', sum(wt(x) for x in q3))
    return S

def poll(S, tag):
    S("""
    s_lshl_b32 s9, s48, 4
    v_mov_b32 v6, 0
    s_mov_b32 s10, 0
    K1_POLL%s:
    buffer_load_dword v7, v6, s[44:47], s9 offen sc0 sc1
    s_waitcnt vmcnt(0)
    v_readfirstlane_b32 s11, v7
    s_add_u32 s10, s10, 1
    s_cmp_ge_u32 s11, 16
    s_cbranch_scc1 K1_NOPOLL%s
    s_sleep 1
    s_cmp_lt_u32 s10, 0x40000
    s_cbranch_scc1 K1_POLL%s
    K1_NOPOLL%s:
    """ % (tag, tag, tag, tag))

def ln_halo(vHW):
    A = Stream()
    h0 = ST + 4; t = ST + 6
    for k in range(20):
        r = HL + k; tt = t + 2 * (k & 1)
        A('v_lshlrev_b32 v%d, 16, v%d' % (tt, r))
        A('v_and_b32 v%d, 0xffff0000, v%d' % (tt + 1, r))
        if k == 0:
            A('v_add_f32 v%d, v%d, v%d' % (h0, tt, tt + 1))
            A('v_mul_f32 v%d, v%d, v%d' % (h0 + 1, tt, tt))
        else:
            A('v_add_f32 v%d, v%d, v%d' % (h0, h0, tt))
            A('v_fmac_f32 v%d, v%d, v%d' % (h0 + 1, tt, tt))
            A('v_add_f32 v%d, v%d, v%d' % (h0, h0, tt + 1))
        A('v_fmac_f32 v%d, v%d, v%d' % (h0 + 1, tt + 1, tt + 1))
    for m in ('quad_perm:[1,0,3,2]', 'quad_perm:[2,3,0,1]', 'row_half_mirror', 'row_mirror'):
        for r in (h0, h0 + 1):
            A('v_add_f32_dpp v%d, v%d, v%d %s row_mask:0xf bank_mask:0xf' % (r, r, r, m))
    rowstats(A, h0, ST + 6, 's83')
    for t in range(5):
        norm4(A, HL + 4 * t, h0, ST + 6)
        g = Stream()
        if t == 4:
            g('s_mov_b32 exec_lo, 0x00ff00ff')
            g('s_mov_b32 exec_hi, 0x00ff00ff')
        g('ds_write_b128 v%d, %s offset:%d' % (vHW, q4(HL + 4 * t), t * 4096), tok_w=['XH'])
        if t == 4: g('s_mov_b64 exec, -1')
        A.append(list(g))
    return A

def epi_z2():
    E = Stream()
    PK = 60
    def pk(c, b): return PK + b * 20 + 2 * c
    E.append(G("""
    v_and_b32 v10, 15, v1
    v_lshlrev_b32 v11, 3, v10
    s_lshl_b32 s98, s51, 5
    v_add_u32 v10, s98, v10
    v_mul_u32_u24 v10, %d, v10
    v_lshrrev_b32 v12, 4, v1
    v_lshlrev_b32 v12, 3, v12
    s_mov_b32 s98, %d
    v_add3_u32 v10, v10, v12, s98
    """ % (ZP, ZB_OFF)))
    order = [(c, b) for b in range(2) for c in range(9)]
    for c, b in order:
        E('ds_read_b64 v[%d:%d], v10 offset:%d' % (pk(c, b), pk(c, b) + 1, 16 * b * ZP + 32 * c))
    for b in range(2):
        E('v_mov_b32 v%d, 0' % (pk(9, b)))
        E('v_mov_b32 v%d, 0' % (pk(9, b) + 1))
    for k in range(4): E('v_mov_b32 v%d, s82' % (132 + k))
    pend = None
    for k, (c, b) in enumerate(order):
        x = 100 + 8 * (k & 1); p = pk(c, b)
        E('v_lshlrev_b32 v%d, 16, v%d' % (x, p))
        E('v_and_b32 v%d, 0xffff0000, v%d' % (x + 1, p))
        E('v_lshlrev_b32 v%d, 16, v%d' % (x + 2, p + 1))
        E('v_and_b32 v%d, 0xffff0000, v%d' % (x + 3, p + 1))
        gelu4(E, x, x + 4)
        E('v_cvt_pk_bf16_f32 v%d, v%d, v%d' % (p, x, x + 1))
        E('v_cvt_pk_bf16_f32 v%d, v%d, v%d' % (p + 1, x + 2, x + 3))
        E('ds_write_b64 v10, v[%d:%d] offset:%d' % (p, p + 1, 16 * b * ZP + 32 * c), tok_w=['ZB'])
    D1 = [116, 120]; D2 = [124, 128]
    for c in range(0, 9, 2):
        for b in range(2):
            p = q4(pk(c, b))
            E('v_mfma_f32_16x16x32_bf16 %s, v[132:135], %s, %s' % (q4(D1[b]), p, '0' if c == 0 else q4(D1[b])))
            E('v_mfma_f32_16x16x32_bf16 %s, %s, %s, %s' % (q4(D2[b]), p, p, '0' if c == 0 else q4(D2[b])))
    g = G(setm('vcc', m64(lambda i, g: i & 1)))
    for b in range(2):
        g += G('v_cndmask_b32 v%d, v%d, v%d, vcc' % (D2[b], D2[b], D2[b] + 1))
        g += G('v_cndmask_b32 v%d, v%d, v%d, vcc' % (D2[b] + 2, D2[b] + 2, D2[b] + 3))
    g += G(setm('vcc', m64(lambda i, g: i & 2)))
    for b in range(2):
        g += G('v_cndmask_b32 v%d, v%d, v%d, vcc' % (D1[b] + 1, D2[b], D2[b] + 2))
    g += G("""
    s_lshl_b32 s99, s48, 4
    s_add_u32 s99, s99, s49
    s_lshl_b32 s99, s99, 10
    s_lshl_b32 s98, s51, 8
    s_add_u32 s99, s99, s98
    """) + G(setm('exec', m64(lambda i, g: g == i >> 2)))
    for b in range(2):
        g += G('buffer_store_dwordx2 v[%d:%d], v11, s[40:43], s99 offen offset:%d sc0 sc1' % (D1[b], D1[b] + 1, 128 * b), tok_w=['PUB'])
    g += G('s_mov_b64 exec, -1')
    E.append(g)
    return E

NZC = 4
def norm_z2(tiles):
    S = Stream()
    pl = 176; zf = 208; tb = 244; a0 = 248
    S("""
    v_lshrrev_b32 v%d, 4, v1
    v_lshlrev_b32 v%d, 12, v%d
    v_and_b32 v%d, 15, v1
    v_lshl_add_u32 v%d, v%d, 4, v%d
    s_lshl_b32 s9, s48, 14
    s_lshl_b32 s10, s51, 8
    s_add_u32 s9, s9, s10
    """ % (a0, a0, a0, a0 + 1, a0, a0 + 1, a0))
    for k in range(4):
        S('buffer_load_dwordx4 %s, v%d, s[40:43], s9 offen offset:%d sc0 sc1' % (q4(pl + 4 * k), a0, k * 1024))
    S("""
    v_lshrrev_b32 v{z}, 4, v1
    v_lshlrev_b32 v{r}, 6, v{z}
    v_lshlrev_b32 v{z}, 3, v{z}
    v_bfe_u32 v{t}, v1, 2, 2
    v_add_u32 v{z}, v{z}, v{t}
    s_lshl_b32 s9, s51, 5
    v_add_u32 v{z}, s9, v{z}
    v_mul_u32_u24 v{z}, {ZP}, v{z}
    v_and_b32 v{t}, 3, v1
    v_lshl_add_u32 v{z}, v{t}, 3, v{z}
    v_add_u32 v{z}, {ZB}, v{z}
    """.format(z=a0 + 2, r=a0 + 3, t=tb, ZP=ZP, ZB=ZB_OFF))
    S.need('ZB')
    for c in tiles:
        for hh in range(2):
            S('ds_read_b64_tr_b16 v[%d:%d], v%d offset:%d' % (zf + 4 * c + 2 * hh, zf + 4 * c + 2 * hh + 1, a0 + 2, hh * 4 * ZP + 32 * c))
    S("""
    s_lshl_b32 s9, s50, 8
    s_add_u32 s9, s9, {SB}
    v_lshlrev_b32 v{w}, 4, v{w}
    v_add_u32 v{w}, s9, v{w}
    v_add_u32 v{r}, s9, v{r}
    v_lshlrev_b32 v{p}, 4, v1
    v_xor_b32 v{p1}, 64, v{p}
    s_lshl_b32 s12, s49, 6
    s_lshl_b32 s13, s48, 2
    s_add_u32 s12, s12, s13
    s_add_u32 s12, s12, s51
    s_mul_i32 s12, s12, 9216
    s_add_u32 s13, s12, 4096
    s_add_u32 s10, s12, 8192
    s_mov_b32 s11, 0x{inv:x}
    """.format(SB=SB_OFF, w=a0 + 1, r=a0 + 3, p=a0 + 4, p1=a0 + 5, inv=fbits(1.0 / 2304)))
    A = S
    S = Stream()
    for k in range(2):
        for e in range(4): S('v_add_f32 v%d, v%d, v%d' % (pl + 4 * k + e, pl + 4 * k + e, pl + 8 + 4 * k + e))
    for e in range(4): S('v_add_f32 v%d, v%d, v%d' % (pl + e, pl + e, pl + 4 + e))
    for sw in ('v_permlane16_swap_b32', 'v_permlane32_swap_b32'):
        for k in range(4): S('v_mov_b32 v%d, v%d' % (pl + 4 + k, pl + k))
        for k in range(4): S('%s v%d, v%d' % (sw, pl + k, pl + 4 + k))
        for k in range(4): S('v_add_f32 v%d, v%d, v%d' % (pl + k, pl + k, pl + 4 + k))
    for r in (pl, pl + 2): rowstats(S, r, tb, 's11')
    S('ds_write_b128 v%d, %s' % (a0 + 1, q4(pl)), tok_w=['SB'])
    S.need('SB')
    sr = pl + 16
    for k in range(4): S('ds_read_b128 %s, v%d offset:%d' % (q4(sr + 4 * k), a0 + 3, 16 * k))
    for c in tiles:
        for d in range(4):
            r = zf + 4 * c + d
            t = tb + 2 * (d & 1)
            S('v_lshlrev_b32 v%d, 16, v%d' % (t, r))
            S('v_and_b32 v%d, 0xffff0000, v%d' % (t + 1, r))
            S('v_fma_f32 v%d, v%d, v%d, v%d' % (t, t, sr + 4 * d, sr + 4 * d + 1))
            S('v_fma_f32 v%d, v%d, v%d, v%d' % (t + 1, t + 1, sr + 4 * d + 2, sr + 4 * d + 3))
            S('v_cvt_pk_bf16_f32 v%d, v%d, v%d' % (r, t, t + 1))
        S('buffer_store_dwordx4 %s, v%d, s[36:39], s%d offen offset:%d' % (q4(zf + 4 * c), a0 + 5 if c & 1 else a0 + 4, (12, 13, 10)[c >> 2], (c & 3) * 1024))
    return A, S
```

```python
from common import *
import math, struct

def fbits(x): return struct.unpack('<I', struct.pack('<f', x))[0]
SLOT = 19456
T1_OFF = 38912; T2_OFF = 77824; XH_OFF = 143360; ZB_OFF = 77824; QB_OFF = 115712; SB_OFF = 161792
K1_LDS = 163840
QP = 240; ZP = 296; VOFF = 80; QOFF = 160
XF = 112; S0 = 32; S1 = 72; WFR = 16
C1 = -2.0 * math.sqrt(2.0 / math.pi) * math.log2(math.e)
C2 = C1 * 0.044715
SCL = (18 ** -0.5) * math.log2(math.e)
NR1 = 6
P1 = NR1 * 2048; P2 = (9 - NR1) * 2048

def xf(j, b): r = XF + (j * 2 + b) * 4; return 'v[%d:%d]' % (r, r + 3)
def q4(r): return 'v[%d:%d]' % (r, r + 3)

vWq = 2; vWz = 3; vT = 4; vTs = 5; vA1 = 6; vA2 = 7; vA3 = 8; vC2 = 9
sBLK = 54
OPT = {}

def gelu(S, x, t, sc1='s78', c2=vC2):
    S('v_mul_f32 v%d, v%d, v%d' % (t, x, x))
    S('v_fma_f32 v%d, v%d, v%d, %s' % (t, t, c2, sc1))
    S('v_mul_f32 v%d, v%d, v%d' % (t, t, x))
    S('v_exp_f32 v%d, v%d' % (t, t))
    S('v_add_f32 v%d, 1.0, v%d' % (t, t))
    S('v_rcp_f32 v%d, v%d' % (t, t))
    S('v_mul_f32 v%d, v%d, v%d' % (x, x, t))
def gelu4(S, x, t, **kw):
    subs = []
    for k in range(4):
        s = Stream(); gelu(s, x + k, t + k, **kw); subs.append(s)
    for i in range(7):
        for k in range(4): S.append(subs[k][i])

def flatten(lst):
    for x in lst:
        if isinstance(x, list):
            for y in flatten(x): yield y
        else: yield x

def is_mem(x):
    if isinstance(x, list): return any(is_mem(y) for y in x) and not any((not isinstance(y, (str, list))) and y.kind in ('valu', 'trans') for y in x)
    if isinstance(x, str): return False
    return x.kind in ('ds', 'vmem', 'dma')
def merge(main, side, start=0, end=None):
    segs = [[]]
    for x in main:
        if not isinstance(x, (str, list)) and x.kind == 'mfma' and not getattr(x, 'label', None) == 'side': segs.append([])
        segs[-1].append(x)
    nm = len(segs) - 1
    if end is None: end = nm
    if end < 0: end = nm + end
    n = end - start
    def wt(x):
        if isinstance(x, str): return 1
        if isinstance(x, list): return sum(wt(y) for y in x)
        if x.kind in ('need', 'label'): return 0
        if x.kind in ('trans', 'mfma'): return 2
        if x.kind == 'salu': return 0.3
        return 1
    if OPT.get('sidenolds'):
        side = [x for x in side if isinstance(x, (str, list)) or x.kind != 'ds']
    if OPT.get('sidenovalu'):
        side = [x for x in side if isinstance(x, (str, list)) or x.kind not in ('valu', 'trans')]
    w = [wt(x) for x in side]
    total = sum(w); pos = 0; acc = 0.0
    out = Stream()
    out.extend(segs[0])
    for k in range(nm):
        seg = segs[k + 1]
        cut = 1
        while cut < len(seg) and (isinstance(seg[cut], str) or is_mem(seg[cut]) or (not isinstance(seg[cut], list) and seg[cut].kind not in ('valu', 'trans', 'mfma'))): cut += 1
        if start <= k < end:
            target = total * (k - start + 1) / n
            last = (k == end - 1)
            mem = []; val = []
            seen_valu = False
            while pos < len(side) and (acc + w[pos] <= target + 1e-9 or last):
                x = side[pos]
                skip = (not isinstance(x, (str, list))) and x.kind in ('need', 'salu')
                if is_mem(x) and seen_valu and not last: break
                if not seen_valu and (is_mem(x) or skip): mem.append(x)
                else:
                    val.append(x)
                    if not skip: seen_valu = True
                acc += w[pos]; pos += 1
            if all(is_mem(y) or isinstance(y, str) or (not isinstance(y, list) and y.kind not in ('valu', 'trans')) for y in seg[cut:]) or True:
                out.extend(seg[:cut]); out.extend(mem); out.extend(seg[cut:]); out.extend(val)
        else:
            out.extend(seg)
    assert pos == len(side)
    return out

def rowstats(S, r, t, sinv):
    S('''
    v_mul_f32 v%d, %s, v%d
    v_mul_f32 v%d, v%d, v%d
    v_fma_f32 v%d, v%d, %s, -v%d
    v_max_f32 v%d, 0, v%d
    v_add_f32 v%d, 0x3727c5ac, v%d
    v_rsq_f32 v%d, v%d
    v_mul_f32 v%d, v%d, v%d
    v_sub_f32 v%d, 0, v%d
    v_mov_b32 v%d, v%d
    ''' % (r, sinv, r, t, r, r, r + 1, r + 1, sinv, t, r + 1, r + 1, r + 1, r + 1, t, r + 1, r + 1, r, t, r + 1, r + 1, r, t))
def dots(regs, sa, qa):
    out = Stream()
    for k, r in enumerate(regs):
        out('v_dot2_f32_bf16 v%d, v%d, s82, %s' % (sa, r, '0' if k == 0 else 'v%d' % sa))
        out('v_dot2_f32_bf16 v%d, v%d, v%d, %s' % (qa, r, r, '0' if k == 0 else 'v%d' % qa))
    return out
def norm4(S, r, st, tb):
    subs = []
    for d in range(4):
        t = tb + 2 * (d & 1)
        s = Stream()
        s('v_lshlrev_b32 v%d, 16, v%d' % (t, r + d))
        s('v_and_b32 v%d, 0xffff0000, v%d' % (t + 1, r + d))
        s('v_fma_f32 v%d, v%d, v%d, v%d' % (t, t, st, st + 1))
        s('v_fma_f32 v%d, v%d, v%d, v%d' % (t + 1, t + 1, st, st + 1))
        s('v_cvt_pk_bf16_f32 v%d, v%d, v%d' % (r + d, t, t + 1))
        subs.append(s)
    for pair in (0, 2):
        for i in range(5):
            S.append(subs[pair][i]); S.append(subs[pair + 1][i])

PH = [('Z2', 9216, 4608), ('Q', 3456, 0), ('Z1', 9216, 0)]
def wdma_groups(n):
    ph, j = divmod(n, 9)
    nm, pitch, add = PH[ph]
    out = []
    for e in range(4):
        P = Stream()
        if e == 0:
            P('s_mul_i32 s63, s%d, %d' % (sBLK + j, 64 * pitch))
            if add: P('s_add_u32 s63, s63, %d' % add)
            P('s_add_u32 m0, s68, %d' % ((n & 3) * SLOT))
        else:
            P('s_add_u32 s63, s63, %d' % (2 * pitch - 576))
        P('s_mov_b64 exec, s[%s]' % ('66:67' if ph == 1 else '64:65'))
        P('buffer_load_dwordx4 v%d, s[%s], s63 offen offset:%d lds' % (vWq if ph == 1 else vWz, '20:23' if ph == 1 else '24:27', e * 576), tok_w=['W%d' % n])
        P('s_mov_b64 exec, -1')
        out.append(list(P))
    return out

LN1 = 16
LN2 = XF + 16 * NR1
HL = S1 + 24
ST = S1
def ln(g, j): return LN1 + (g * NR1 + j) * 4 if j < NR1 else LN2 + (g * (9 - NR1) + j - NR1) * 4
vTW = S1 + 12; vHW = S1 + 13; vXe = S1 + 14; vXo = S1 + 15; vH0 = S1 + 16

def gen_k1(stamp=False, xmap='84', rot=True, **opt):
    OPT.clear(); OPT.update(opt)
    F = Finisher()
    S = Stream()
    S('''
    s_load_dwordx4 s[4:7], s[0:1], 0
    s_load_dwordx2 s[8:9], s[0:1], 32
    s_load_dwordx4 s[12:15], s[0:1], 72
    s_load_dwordx2 s[10:11], s[0:1], 40
    s_cmp_ge_u32 s2, 256
    s_cbranch_scc1 K1_END
    ''')
    if stamp: stamp_begin(S, 84)
    S('''
    v_lshrrev_b32 v10, 6, v0
    v_and_b32 v1, 63, v0
    v_readfirstlane_b32 s50, v10
    s_and_b32 s63, s2, 7
    s_lshr_b32 s64, s2, 3
    ''')
    if xmap == '84':
        S('''
        s_and_b32 s48, s63, 1
        s_lshl_b32 s48, s48, 3
        s_and_b32 s65, s64, 7
        s_add_u32 s48, s48, s65
        s_lshr_b32 s49, s63, 1
        s_lshl_b32 s49, s49, 2
        s_lshr_b32 s64, s64, 3
        s_add_u32 s49, s49, s64
        s_lshl_b32 s64, s64, 1
        s_add_u32 s53, s64, s65
        ''')
    else:
        S('''
        s_lshr_b32 s48, s63, 1
        s_lshl_b32 s48, s48, 2
        s_and_b32 s65, s64, 3
        s_add_u32 s48, s48, s65
        s_and_b32 s49, s63, 1
        s_lshl_b32 s49, s49, 3
        s_lshr_b32 s64, s64, 2
        s_add_u32 s49, s49, s64
        s_lshl_b32 s65, s65, 1
        s_add_u32 s53, s64, s65
        ''')
    if not rot: S('s_mov_b32 s53, 0')
    S('''
    s_sub_u32 s64, s53, 9
    s_cmp_ge_u32 s53, 9
    s_cselect_b32 s%d, s64, s53
    s_and_b32 s51, s50, 3
    s_and_b32 s52, s49, 1
    s_lshl_b32 s63, s48, 7
    s_lshl_b32 s64, s50, 4
    s_add_u32 s63, s63, s64
    v_lshrrev_b32 v12, 3, v1
    v_and_b32 v13, 7, v1
    v_add_u32 v10, s63, v12
    v_mul_u32_u24 v10, 1152, v10
    v_lshl_add_u32 v10, v13, 4, v10
    v_add_u32 v11, 9216, v10
    ''' % sBLK)
    for j in range(1, 9):
        S('s_add_u32 s%d, s%d, 1' % (sBLK + j, sBLK + j - 1))
        S('s_cmp_eq_u32 s%d, 9' % (sBLK + j))
        S('s_cselect_b32 s%d, 0, s%d' % (sBLK + j, sBLK + j))
    for j in range(9): S('s_lshl_b32 s%d, s%d, 7' % (69 + j, sBLK + j))
    S('s_waitcnt lgkmcnt(0)')
    srd(S, 16, 4, 5, 2048 * 1152)
    for g in range(2):
        for j in range(9):
            S('buffer_load_dwordx4 %s, v%d, s[16:19], s%d offen' % (q4(ln(g, j)), 10 + g, 69 + j))
    srd(S, 20, 6, 7, 576 * 3456)
    srd(S, 24, 8, 9, 576 * 9216)
    S('''
    v_cmp_le_u32 vcc, 18, v1
    v_subrev_u32 v100, 18, v1
    v_cndmask_b32 v100, v1, v100, vcc     ; ch
    v_cndmask_b32 v101, 0, 1, vcc         ; rr
    s_lshl_b32 s63, s50, 3
    v_add_u32 v101, s63, v101             ; 8w + rr
    s_mul_i32 s64, s49, 288
    v_mul_u32_u24 v102, 9216, v101
    v_lshl_add_u32 v102, v100, 4, v102
    v_add_u32 v%d, s64, v102
    v_mul_u32_u24 v102, 3456, v101
    v_lshl_add_u32 v102, v100, 4, v102
    s_mul_i32 s64, s49, 72
    v_add_u32 v102, s64, v102
    v_mov_b32 v103, 1152
    v_mov_b32 v104, %d
    v_cmp_le_u32 vcc, 5, v100
    v_cndmask_b32 v103, v103, v104, vcc
    v_mov_b32 v104, -160
    v_cmp_le_u32 vcc, 10, v100
    v_cndmask_b32 v103, v103, v104, vcc
    v_add_u32 v%d, v102, v103
    s_mov_b32 s64, -1
    s_mov_b32 s65, 15
    s_mov_b32 s66, 0x%x
    s_mov_b32 s67, 1
    s_mul_i32 s68, s50, 2432
    ''' % (vWz, 2304 - 80, vWq, (0x7fff | (0x7fff << 18)) & 0xffffffff))
    for g in wdma_groups(0): S.extend(g)
    srd(S, 28, 14, 15, AP_SZ, AP_OFF)
    srd(S, 32, 14, 15, Z1P_SZ, Z1P_OFF)
    srd(S, 36, 14, 15, Z2P_SZ, Z2P_OFF)
    srd(S, 40, 14, 15, ST_SZ, ST_OFF)
    srd(S, 44, 12, 13, 256)
    srd(S, 4, 10, 11, 2048 * 4096)
    S('''
    s_mov_b32 s78, 0x%x
    s_mov_b32 s79, 0x%x
    s_mov_b32 s80, 0x05040100
    s_mov_b32 s81, 0x07060302
    s_mov_b32 s82, 0x3f803f80
    s_mov_b32 s83, 0x%x
    v_mov_b32 v%d, 0x%x
    s_lshl_b32 s8, s2, 15
    s_lshl_b32 s9, s50, 8
    s_add_u32 s8, s8, s9                 ; prefetch offset
    v_lshlrev_b32 v%d, 7, v1
    ''' % (fbits(C1), fbits(SCL), fbits(1.0 / 576), vC2, fbits(C2), vA3))
    S('''
    v_xor_b32 v102, v12, v13
    v_and_b32 v103, 3, v1
    v_lshl_add_u32 v102, v103, 4, v102
    v_lshlrev_b32 v102, 4, v102
    v_bfe_u32 v104, v1, 2, 1
    v_lshl_add_u32 v102, v104, 10, v102
    s_mul_i32 s63, s50, %d
    s_add_u32 s63, s63, %d
    v_add_u32 v%d, s63, v102
    s_lshl_b32 s63, s50, 1
    v_lshrrev_b32 v100, 5, v1
    v_add_u32 v100, s63, v100            ; halo row i
    v_xor_b32 v102, v100, v13
    v_lshl_add_u32 v102, v103, 4, v102
    v_lshlrev_b32 v102, 4, v102
    v_bfe_u32 v104, v1, 2, 3
    v_lshl_add_u32 v102, v104, 10, v102
    v_add_u32 v%d, %d, v102
    v_and_b32 v101, 15, v1
    v_lshrrev_b32 v105, 4, v1
    v_xor_b32 v102, v101, v105
    v_lshl_add_u32 v102, v105, 4, v102
    v_lshlrev_b32 v102, 4, v102          ; plain frag read offset (even)
    s_mul_i32 s63, s51, %d
    s_add_u32 s63, s63, %d
    v_add_u32 v%d, s63, v102
    v_xor_b32 v%d, 64, v%d
    v_add_u32 v%d, %d, v102
    v_xor_b32 v%d, 64, v%d
    v_mul_u32_u24 v105, 2432, v105
    v_bfe_u32 v101, v1, 2, 2
    v_mul_u32_u24 v101, 288, v101
    v_lshlrev_b32 v103, 3, v103
    v_add3_u32 v%d, v105, v101, v103
    ''' % (P1, T1_OFF, vTW, vHW, XH_OFF, 2 * P1, T1_OFF, vXe, vXo, vXe, vA1, XH_OFF, vA2, vA1, vT))
    S('''
    s_lshl_b32 s63, s48, 7
    s_sub_u32 s63, s63, 16
    v_add_u32 v100, s63, v100
    s_movk_i32 s63, 1152
    v_mul_lo_u32 v100, v100, s63
    v_lshl_add_u32 v100, v13, 4, v100
    v_bfe_u32 v101, v1, 3, 2
    v_add_u32 v101, s%d, v101
    ''' % sBLK)
    for t in range(3):
        S('v_add_u32 v102, %d, v101' % (4 * t))
        S('v_subrev_u32 v103, 9, v102')
        S('v_min_u32 v102, v102, v103')
        S('v_lshl_add_u32 v%d, v102, 7, v100' % (vH0 + t))
    S('''
    v_and_b32 v103, 31, v1
    v_cmp_gt_u32 vcc, 8, v103
    v_mov_b32 v102, 0x7f000000
    v_cndmask_b32 v%d, v102, v%d, vcc
    ''' % (vH0 + 2, vH0 + 2))
    if stamp: stamp_mid(S, 86)
    for g in range(2):
        regs = [ln(g, j) + d for j in range(9) for d in range(4)]
        S.extend(dots(regs, ST + 2 * g, ST + 2 * g + 1))
        if g == 0:
            for x in wdma_groups(1): S.extend(x)
    for m in ('quad_perm:[1,0,3,2]', 'quad_perm:[2,3,0,1]', 'row_half_mirror'):
        for r in range(ST, ST + 4):
            S('v_add_f32_dpp v%d, v%d, v%d %s row_mask:0xf bank_mask:0xf' % (r, r, r, m))
    for g in range(2): rowstats(S, ST + 2 * g, ST + 6 + g, 's83')
    for j in range(NR1):
        for g in range(2):
            norm4(S, ln(g, j), ST + 2 * g, ST + 6)
            S('ds_write_b128 v%d, %s offset:%d' % (vTW, q4(ln(g, j)), g * 128 + j * 2048), tok_w=['T'])
    for t in range(3):
        S('buffer_load_dwordx4 %s, v%d, s[16:19], 0 offen' % (q4(HL + 4 * t), vH0 + t))
    S.need('T')
    S('s_barrier')
    for q in range(2 * NR1):
        for b in range(2):
            S('ds_read_b128 %s, v%d offset:%d' % (xf(q, b), vXo if q & 1 else vXe, b * P1 + q * 1024), tok_w=['TR'])
    d2 = T2_OFF - T1_OFF
    S('s_mul_i32 s63, s50, %d' % (P2 - P1))
    S('s_add_u32 s63, s63, %d' % d2)
    S('v_add_u32 v%d, s63, v%d' % (vTW, vTW))
    S.need('TR', 'W0')
    S('s_barrier')
    for g in wdma_groups(2): S.extend(g)
    S('s_mul_i32 s63, s51, %d' % (2 * (P2 - P1)))
    S('s_add_u32 s63, s63, %d' % d2)
    S('v_add_u32 v%d, s63, v%d' % (vXe, vXe))
    S('v_add_u32 v%d, s63, v%d' % (vXo, vXo))
    if stamp: stamp_mid(S, 88)
    S('s_cmp_ge_u32 s50, 4')
    S('s_cbranch_scc1 K1_H1')
    F.run(S)
    txt = F.text()
    state = (F.vmq, F.lgq)
    for h in range(2):
        G2 = Finisher()
        G2.vmq = [set(x) for x in state[0]]; G2.lgq = [(set(a), b) for a, b in state[1]]
        G2.hist = list(F.hist)
        main_half(G2, h, stamp)
        txt += G2.text()
    return txt, 256

def ln_round2():
    A = Stream()
    for j in range(NR1, 9):
        for g in range(2):
            norm4(A, ln(g, j), ST + 2 * g, ST + 6)
            A('ds_write_b128 v%d, %s offset:%d' % (vTW, q4(ln(g, j)), g * 128 + (j - NR1) * 2048), tok_w=['T2'])
    return A
def ln_halo():
    A = Stream()
    h0 = ST + 4
    U = S0 + 32 if False else None
    t = ST + 6
    for k in range(12):
        r = HL + k; tt = t + 2 * (k & 1)
        A('v_lshlrev_b32 v%d, 16, v%d' % (tt, r))
        A('v_and_b32 v%d, 0xffff0000, v%d' % (tt + 1, r))
        if k == 0:
            A('v_add_f32 v%d, v%d, v%d' % (h0, tt, tt + 1))
            A('v_mul_f32 v%d, v%d, v%d' % (h0 + 1, tt, tt))
        else:
            A('v_add_f32 v%d, v%d, v%d' % (h0, h0, tt))
            A('v_fmac_f32 v%d, v%d, v%d' % (h0 + 1, tt, tt))
            A('v_add_f32 v%d, v%d, v%d' % (h0, h0, tt + 1))
        A('v_fmac_f32 v%d, v%d, v%d' % (h0 + 1, tt + 1, tt + 1))
    for m in ('quad_perm:[1,0,3,2]', 'quad_perm:[2,3,0,1]', 'row_half_mirror', 'row_mirror'):
        for r in (h0, h0 + 1):
            A('v_add_f32_dpp v%d, v%d, v%d %s row_mask:0xf bank_mask:0xf' % (r, r, r, m))
    for r in (h0, h0 + 1): A('v_mov_b32 v%d, v%d' % (r + 2, r))
    for r in (h0, h0 + 1):
        A('v_permlane16_swap_b32 v%d, v%d' % (r, r + 2))
        A('v_add_f32 v%d, v%d, v%d' % (r, r, r + 2))
    rowstats(A, h0, ST + 6, 's83')
    for t in range(3):
        norm4(A, HL + 4 * t, h0, ST + 6)
        g = Stream()
        if t == 2:
            g('s_mov_b32 exec_lo, 0xff')
            g('s_mov_b32 exec_hi, 0xff')
        g('ds_write_b128 v%d, %s offset:%d' % (vHW, q4(HL + 4 * t), t * 8192), tok_w=['XH'])
        if t == 2: g('s_mov_b64 exec, -1')
        A.append(list(g))
    return A
def x_round2_reads():
    A = Stream()
    for q in range(2 * NR1, 18):
        for b in range(2):
            A('ds_read_b128 %s, v%d offset:%d' % (xf(q, b), vXo if q & 1 else vXe, b * P2 + (q - 2 * NR1) * 1024), tok_w=['TR2'])
    return A

def main_half(F, h, stamp):
    S = Stream()
    if h: S('K1_H1:')
    if OPT.get('prio') == h: S('s_setprio 1')
    hA = S1 + 32; hX = S1 + 36; vq = [S0 + 32 + k for k in range(4)]
    ntile = [4 + h, 4, 5 - h]
    accbase = [S0, S1, S0]
    def acc(ph, c, b): return accbase[ph] + (c * 2 + b) * 4
    frs = []
    for n in range(27):
        ph, j = divmod(n, 9)
        for ks in range(2):
            for c in range(ntile[ph]):
                frs.append((n, ks, c))
    bias = {}
    extra_tok = {4: ['T2'], 9: ['XH', 'TR2'], 18: ['XHR'], 19: ['QB'], 20: ['PUB'], }
    def halo_read(q):
        return G('ds_read_b128 %s, v%d offset:%d' % (q4(hX), vA2 if q & 1 else vA1, q * 1024), tok_w=['XHR'])
    def read(f):
        n, ks, c = frs[f]
        ph, j = divmod(n, 9)
        g = Stream()
        first = (ks == 0 and c == 0)
        if first and n > 0:
            if n == POLL_STEP and h == 0: g.append('POLL')
            g.need(*(['W%d' % n] + extra_tok.get(n, [])))
            if not OPT.get('nobar'): g('s_barrier')
            if n == 20 and h == 0: g.append('ATOMIC')
            if n == 9 and h == 0:
                for cc in range(4):
                    g('s_add_u32 s98, s51, %d' % cc)
                    g('s_and_b32 s98, s98, 3')
                    g('s_lshl_b32 s%d, s98, 5' % (69 + cc))
                    g('v_add_u32 v%d, s%d, v%d' % (vq[cc], 69 + cc, vT))
                    bias[vq[cc]] = bias.get(vT, 0)
            if n == 9: g.extend(halo_read(0))
            if n == 18:
                g('s_lshl_b32 s98, s52, 5')
                if h == 1: g('s_add_u32 s98, s98, 128')
                g('v_add_u32 v%d, s98, v%d' % (vTs + 0 if False else vA3, vT))
                bias[vA3] = bias.get(vT, 0)
                if h == 0:
                    g('s_cmp_eq_u32 s52, 0')
                    g('s_cselect_b32 s98, 256, 0')
                    g('v_add_u32 v%d, s98, v%d' % (vTs, vT))
                    bias[vTs] = bias.get(vT, 0)
        if ph == 0: ar, coff = vT, 32 * (c + 4 * h)
        elif ph == 1: ar, coff = (vq[c], 0) if h == 0 else (vT, 128 + 32 * c)
        else: ar, coff = (vA3, 32 * c) if c < 4 else (vTs, 0)
        want = (n & 3) >> 1
        if bias.get(ar, 0) != want:
            g('v_add_u32 v%d, %d, v%d' % (ar, 2 * SLOT if want else -2 * SLOT, ar))
            bias[ar] = want
        r = WFR + (f & 3) * 4
        for hh in range(2):
            if OPT.get('noread'): continue
            g('ds_read_b64_tr_b16 v[%d:%d], v%d offset:%d' % (r + 2 * hh, r + 2 * hh + 1, ar, (n & 1) * SLOT + ks * 9728 + hh * 1152 + coff))
        return g
    POLL_STEP = OPT.get('poll', 23)
    steps = [Stream() for _ in range(27)]
    for f in range(3): S.extend(read(f))
    for f, (n, ks, c) in enumerate(frs):
        ph, j = divmod(n, 9)
        q = 2 * j + ks
        M = steps[n]
        r = WFR + (f & 3) * 4
        rd = read(f + 3) if f + 3 < len(frs) else []
        for b in range(2):
            a = acc(ph, c, b)
            M('v_mfma_f32_16x16x32_bf16 %s, %s, %s, %s' % (q4(a), q4(r), xf(q, b), '0' if q == 0 else q4(a)))
            M.extend(rd[:-1] if b == 0 else rd[-1:])
        if ph == 1 and c == 0:
            M('v_mfma_f32_16x16x32_bf16 %s, %s, %s, %s' % (q4(hA), q4(r), q4(hX), '0' if q == 0 else q4(hA)))
            if q < 17: M.extend(halo_read(q + 1))
    for n in range(1, 25):
        if OPT.get('nodma'): break
        grp = wdma_groups(n + 2)
        if 1 <= n <= 16 and not OPT.get('nopf'):
            grp.append(G('''s_mov_b32 m0, %d
            s_mov_b64 exec, 3
            buffer_load_dword v%d, s[4:7], s8 offen lds
            s_mov_b64 exec, -1
            s_add_u32 s8, s8, 2048''' % (SB_OFF, vA3)))
        nm = sum(1 for x in steps[n] if not isinstance(x, (str, list)) and x.kind == 'mfma')
        if OPT.get('dma_burst'):
            steps[n] = merge(steps[n], [sum(grp, [])], 0, 1)
        else:
            lo, hi = (0, nm // 4 + 1) if h == 0 else (nm // 4, nm // 2 + 1)
            steps[n] = merge(steps[n], grp, lo, hi)
    def cat(a, b):
        o = Stream()
        for n in range(a, b): o.extend(steps[n])
        return o
    side = not OPT.get('noside')
    QW = Stream()
    QW.append(G('''
    v_and_b32 v10, 15, v1
    s_lshl_b32 s98, s51, 5
    v_add_u32 v11, s98, v10
    v_mul_u32_u24 v11, %d, v11
    v_lshrrev_b32 v12, 4, v1
    v_lshlrev_b32 v12, 3, v12
    v_mul_u32_u24 v10, %d, v10
    s_mov_b32 s98, %d
    v_add3_u32 v10, v10, v12, s98
    v_add3_u32 v11, v11, v12, s98
    ''' % (QP, QP, QB_OFF)))
    for c in range(4):
        if h == 0: QW('v_add_u32 v13, s%d, v11' % (69 + c))
        for b in range(2):
            a = acc(1, c, b)
            QW('v_cvt_pk_bf16_f32 v%d, v%d, v%d' % (a, a, a + 1))
            QW('v_cvt_pk_bf16_f32 v%d, v%d, v%d' % (a + 1, a + 2, a + 3))
            grp = Stream()
            if h == 1 and c == 3: grp('s_mov_b32 exec_hi, 0')
            grp('ds_write_b64 v%d, v[%d:%d] offset:%d' % (13 if h == 0 else 11, a, a + 1, (16 + 16 * b) * QP + (0 if h == 0 else 128 + 32 * c)), tok_w=['QB'])
            if h == 1 and c == 3: grp('s_mov_b32 exec_hi, -1')
            QW.append(list(grp))
    QW('v_cvt_pk_bf16_f32 v%d, v%d, v%d' % (hA, hA, hA + 1))
    QW('v_cvt_pk_bf16_f32 v%d, v%d, v%d' % (hA + 1, hA + 2, hA + 3))
    if h == 0:
        QW('v_add_u32 v10, s69, v10')
        QW('ds_write_b64 v10, v[%d:%d]' % (hA, hA + 1), tok_w=['QB'])
    else:
        QW('ds_write_b64 v10, v[%d:%d] offset:128' % (hA, hA + 1), tok_w=['QB'])
    out = Stream()
    out.extend(S)
    out.extend(merge(cat(0, 4), ln_round2(), 0, -8))
    steps[4] = merge(steps[4], x_round2_reads(), 0, -2)
    out.extend(merge(cat(4, 9), ln_halo(), 0, -8))
    if stamp: stamp_mid(out, 90)
    out.extend(merge(cat(9, 18), epi_z2(h, ntile[0], lambda c, b: acc(0, c, b)) if side else [], 2, -2))
    if stamp: stamp_mid(out, 92)
    out.extend(merge(steps[18], QW, 0, -8))
    n2a, n2b = norm_z2(h, ntile[0])
    steps[POLL_STEP] = merge(steps[POLL_STEP], n2a, 0, 6)
    out.extend(merge(cat(19, 25), attention(h) if side else [], 0, None))
    out.extend(merge(cat(25, 27), n2b, 0, None))
    if stamp: stamp_mid(out, 94)
    tail(out, h, ntile, acc, stamp)
    for x in flatten(out):
        if x == 'ATOMIC':
            raw = Stream()
            raw('''s_cmp_lg_u32 s51, 0
            s_cbranch_scc1 K1_NOAT
            s_lshl_b32 s9, s48, 4
            v_mov_b32 v6, 0
            v_mov_b32 v7, 1
            s_mov_b64 exec, 1''')
            F.run(raw)
            F.add(I('buffer_atomic_add v7, v6, s[44:47], s9 offen sc1')); F.vmq.pop()
            raw = Stream()
            raw('''s_mov_b64 exec, -1
            K1_NOAT:''')
            F.run(raw)
        elif x == 'POLL':
            keep = [set(q) for q in F.vmq]
            raw = Stream()
            raw('''
            s_cmp_lg_u32 s51, 0
            s_cbranch_scc1 K1_NOPOLL
            s_mov_b32 s10, 0
            K1_POLL:
            buffer_load_dword v7, v6, s[44:47], s9 offen sc0 sc1
            s_waitcnt vmcnt(0)
            v_readfirstlane_b32 s11, v7
            s_add_u32 s10, s10, 1
            s_cmp_ge_u32 s11, 16
            s_cbranch_scc1 K1_NOPOLL
            s_sleep 1
            s_cmp_lt_u32 s10, 0x40000
            s_cbranch_scc1 K1_POLL
            K1_NOPOLL:
            ''')
            F.run(raw)
            F.vmq = keep
        else:
            F.add(x)

def m64(f):
    v = 0
    for l in range(64):
        if f(l & 15, l >> 4): v |= 1 << l
    return v
def setm(reg, v):
    return 's_mov_b32 %s_lo, 0x%x\ns_mov_b32 %s_hi, 0x%x' % (reg, v & 0xffffffff, reg, v >> 32)

def attention(h):
    A = Stream()
    R = S1
    Qf = (R, R + 4); Kf = (R + 8, R + 12, R + 16)
    D = [[R + 20, R + 24], [R + 28, R + 32]]
    VA = R + 8; VB = R + 14
    O = [[R + 20, R + 24], [R + 28, R + 32]]
    Pk = (R, R + 4)
    tmp = R + 36
    vF = 10; vV = 11; vO0 = 12; vO1 = 13; vNeg = 14; vSh = 15
    w0 = 32 * h
    A.append(G("""
    v_and_b32 v12, 15, v1
    s_lshl_b32 s99, s51, 5
    v_add_u32 v13, s99, v12
    v_mul_u32_u24 v10, %d, v13
    v_lshrrev_b32 v14, 4, v1
    v_lshl_add_u32 v10, v14, 4, v10
    v_add_u32 v10, %d, v10
    """ % (QP, QB_OFF)))
    for b in range(2): A('ds_read_b128 %s, v%d offset:%d' % (q4(Qf[b]), vF, (16 + 16 * b) * QP + QOFF + w0))
    for kt in range(3): A('ds_read_b128 %s, v%d offset:%d' % (q4(Kf[kt]), vF, 16 * kt * QP + w0))
    A.append(G("""
    v_lshrrev_b32 v11, 2, v1
    v_add_u32 v11, s99, v11
    v_mul_u32_u24 v11, %d, v11
    v_and_b32 v15, 3, v1
    v_lshl_add_u32 v11, v15, 3, v11
    v_add_u32 v11, %d, v11
    """ % (QP, QB_OFF + VOFF + w0)))
    A.append(G("""
    s_mul_i32 s98, s49, 36
    s_add_u32 s98, s98, %d
    v_lshl_add_u32 v14, v14, 2, s98
    v_lshlrev_b32 v12, 4, v12
    v_lshrrev_b32 v15, 3, v14
    v_lshl_add_u32 v{t}, v15, 8, v12
    v_and_b32 v15, 7, v14
    v_lshl_add_u32 v{t}, v15, 1, v{t}
    v_add_u32 v14, 2, v14
    v_lshrrev_b32 v15, 3, v14
    v_lshl_add_u32 v13, v15, 8, v12
    v_and_b32 v15, 7, v14
    v_lshl_add_u32 v13, v15, 1, v13
    v_mov_b32 v{u}, v12
    v_mov_b32 v12, v{t}
    s_lshl_b32 s69, s48, 3
    s_lshl_b32 s70, s51, 1
    s_add_u32 s69, s69, s70
    s_mul_i32 s69, s69, 92160
    s_add_u32 s70, s69, 92160
    s_add_u32 s98, s98, 16
    s_lshr_b32 s71, s98, 3
    s_lshl_b32 s71, s71, 8
    s_and_b32 s99, s98, 7
    s_lshl_b32 s99, s99, 1
    s_add_u32 s71, s71, s99
    s_add_u32 s98, s98, 2
    s_lshr_b32 s73, s98, 3
    s_lshl_b32 s73, s73, 8
    s_and_b32 s99, s98, 7
    s_lshl_b32 s99, s99, 1
    s_add_u32 s73, s73, s99
    s_add_u32 s72, s71, s70
    s_add_u32 s71, s71, s69
    s_add_u32 s74, s73, s70
    s_add_u32 s73, s73, s69
    s_or_b32 s98, s48, s51
    s_cmp_eq_u32 s98, 0
    s_cselect_b32 s75, 0, -1
    s_mov_b32 s76, 0x55555555
    s_mov_b32 s77, 0x55555555
    v_mov_b32 v14, 0xce6e6b28
    v_and_b32 v15, 1, v1
    v_lshlrev_b32 v15, 4, v15
    """.format(t=tmp, u=tmp + 3) % (16 * h)))
    vRowOnly = tmp + 3
    for b in range(2):
        q = Qf[b]
        if h == 0:
            g = G('s_mov_b32 exec_lo, 0') + G('v_mov_b32 v%d, 0\nv_mov_b32 v%d, 0\nv_mov_b32 v%d, 0' % (q + 1, q + 2, q + 3)) + G('s_mov_b32 exec_hi, 0xffff0000') + G('v_mov_b32 v%d, 0' % q)
        else:
            g = G('s_mov_b32 exec_lo, 0') + G('v_mov_b32 v%d, 0\nv_mov_b32 v%d, 0' % (q + 2, q + 3)) + G('s_mov_b32 exec_hi, 0xffff0000') + G('v_mov_b32 v%d, 0' % (q + 1)) + G('s_mov_b32 exec_lo, 0xffff') + G('v_mov_b32 v%d, 0' % q)
        A.append(g + G('s_mov_b64 exec, -1'))
    for b in range(2):
        for s_ in range(2):
            A('v_mfma_f32_16x16x32_bf16 %s, %s, %s, 0' % (q4(D[b][s_]), q4(Kf[b + s_]), q4(Qf[b])))
    for kt in range(3):
        A('ds_read_b64_tr_b16 v[%d:%d], v%d offset:%d' % (VA + 2 * kt, VA + 2 * kt + 1, vV, 16 * kt * QP))
        A('ds_read_b64_tr_b16 v[%d:%d], v%d offset:%d' % (VB + 2 * kt, VB + 2 * kt + 1, vV, 16 * kt * QP + 32))
    for b in range(2):
        for s_ in range(2):
            d = D[b][s_]
            A('v_cndmask_b32 v%d, v%d, v%d, s[76:77]' % (d, d + 1, d))
            A('v_cndmask_b32 v%d, v%d, v%d, s[76:77]' % (d + 1, d + 3, d + 2))
    for s_ in range(2):
        for k in range(2):
            def valid(i, g, s_=s_, k=k):
                r = 2 * k + (i & 1)
                dl = i - 4 * g - r + (16 if s_ == 0 else 0)
                return 0 <= dl <= 14
            g = G(setm('vcc', m64(valid)))
            g += G('v_cndmask_b32 v%d, v14, v%d, vcc' % (D[1][s_] + k, D[1][s_] + k))
            if s_ == 0: g += G('s_and_b32 vcc_lo, vcc_lo, s75\ns_and_b32 vcc_hi, vcc_hi, s75')
            g += G('v_cndmask_b32 v%d, v14, v%d, vcc' % (D[0][s_] + k, D[0][s_] + k))
            A.append(g)
    def cand(b): return [D[b][0], D[b][0] + 1, D[b][1], D[b][1] + 1]
    def xred(op, x0, x1, t):
        A('v_permlane16_swap_b32 v%d, v%d' % (x0, x1))
        A('%s v%d, v%d, v%d' % (op, x0, x0, x1))
        A('v_mov_b32 v%d, v%d' % (x1, x0))
        A('v_permlane32_swap_b32 v%d, v%d' % (x0, x1))
        A('%s v%d, v%d, v%d' % (op, x0, x0, x1))
        A('v_mov_b32 v%d, v%d' % (x1, x0))
        A('v_permlane16_swap_b32 v%d, v%d' % (x0, x1))
    for b in range(2):
        c = cand(b)
        A('v_max3_f32 v%d, v%d, v%d, v%d' % (tmp + b, c[0], c[1], c[2]))
        A('v_max_f32 v%d, v%d, v%d' % (tmp + b, tmp + b, c[3]))
    xred('v_max_f32', tmp, tmp + 1, None)
    for b in range(2): A('v_mul_f32 v%d, s79, v%d' % (tmp + b, tmp + b))
    for b in range(2):
        for c in cand(b): A('v_fma_f32 v%d, v%d, s79, -v%d' % (c, c, tmp + b))
    for b in range(2):
        for c in cand(b): A('v_exp_f32 v%d, v%d' % (c, c))
    for b in range(2):
        c = cand(b)
        A('v_add_f32 v%d, v%d, v%d' % (tmp + b, c[0], c[1]))
        A('v_add_f32 v%d, v%d, v%d' % (c[0] + 2, c[2], c[3]))
    for b in range(2): A('v_add_f32 v%d, v%d, v%d' % (tmp + b, tmp + b, cand(b)[0] + 2))
    xred('v_add_f32', tmp, tmp + 1, None)
    for b in range(2): A('v_rcp_f32 v%d, v%d' % (tmp + b, tmp + b))
    for b in range(2):
        for c in cand(b): A('v_mul_f32 v%d, v%d, v%d' % (c, c, tmp + b))
    for b in range(2):
        for k, c in enumerate(cand(b)): A('v_cvt_pk_bf16_f32 v%d, v%d, 0' % (Pk[b] + k, c))
    for b in range(2):
        for k in range(4): A('v_lshlrev_b32 v%d, v15, v%d' % (Pk[b] + k, Pk[b] + k))
    for b in range(2):
        A('v_mfma_f32_16x16x32_bf16 %s, %s, %s, 0' % (q4(O[b][0]), q4(VA + 2 * b), q4(Pk[b])))
        A('v_mfma_f32_16x16x32_bf16 %s, %s, %s, 0' % (q4(O[b][1]), q4(VB + 2 * b), q4(Pk[b])))
    for b in range(2):
        o = O[b][0]; p = O[b][1]
        A('v_cvt_pk_bf16_f32 v%d, v%d, v%d' % (o, o, o + 1))
        A('v_cvt_pk_bf16_f32 v%d, v%d, v%d' % (o + 1, o + 2, o + 3))
        A('v_cvt_pk_bf16_f32 v%d, v%d, v%d' % (p, p, p + 1))
        if h: A('v_cvt_pk_bf16_f32 v%d, v%d, v%d' % (p + 1, p + 2, p + 3))
        g = G('buffer_store_dword v%d, v13, s[28:31], s%d offen' % (o + 1, 69 + b))
        if h: g += G('s_mov_b32 exec_lo, 0xffff0000')
        g += G('buffer_store_dword v%d, v12, s[28:31], s%d offen' % (o, 69 + b))
        g += G('s_mov_b64 exec, 0xffff')
        g += G('buffer_store_dword v%d, v%d, s[28:31], s%d offen' % (p, vRowOnly, 71 + b))
        if h: g += G('buffer_store_dword v%d, v%d, s[28:31], s%d offen' % (p + 1, vRowOnly, 73 + b))
        g += G('s_mov_b64 exec, -1')
        A.append(g)
    return A

def epi_z2(h, nt, acc):
    E = Stream()
    E.append(G("""
    v_and_b32 v10, 15, v1
    v_lshlrev_b32 v11, 3, v10
    s_lshl_b32 s98, s51, 5
    v_add_u32 v10, s98, v10
    v_mul_u32_u24 v10, %d, v10
    v_lshrrev_b32 v12, 4, v1
    v_lshlrev_b32 v12, 3, v12
    s_mov_b32 s98, %d
    v_add3_u32 v10, v10, v12, s98
    """ % (ZP, ZB_OFF)))
    for b in range(2):
        for c in range(nt):
            T = c + 4 * h
            a = acc(c, b)
            gelu4(E, a, 12)
            o = a if c % 2 == 0 else acc(c - 1, b) + 2
            E('v_cvt_pk_bf16_f32 v%d, v%d, v%d' % (o, a, a + 1))
            E('v_cvt_pk_bf16_f32 v%d, v%d, v%d' % (o + 1, a + 2, a + 3))
            E('ds_write_b64 v10, v[%d:%d] offset:%d' % (o, o + 1, 16 * b * ZP + 32 * T), tok_w=['ZB'])
            if c == 4:
                E('v_mov_b32 v%d, 0' % (a + 2))
                E('v_mov_b32 v%d, 0' % (a + 3))
    for k in range(4): E('v_mov_b32 v%d, s82' % (12 + k))
    D1 = [acc(1, 0), acc(1, 1)]; D2 = [acc(3, 0), acc(3, 1)]
    for c in range(0, nt, 2):
        for b in range(2):
            p = q4(acc(c, b))
            E('v_mfma_f32_16x16x32_bf16 %s, v[12:15], %s, %s' % (q4(D1[b]), p, '0' if c == 0 else q4(D1[b])))
            E('v_mfma_f32_16x16x32_bf16 %s, %s, %s, %s' % (q4(D2[b]), p, p, '0' if c == 0 else q4(D2[b])))
    g = G(setm('vcc', m64(lambda i, g: i & 1)))
    for b in range(2):
        g += G('v_cndmask_b32 v%d, v%d, v%d, vcc' % (D2[b], D2[b], D2[b] + 1))
        g += G('v_cndmask_b32 v%d, v%d, v%d, vcc' % (D2[b] + 2, D2[b] + 2, D2[b] + 3))
    g += G(setm('vcc', m64(lambda i, g: i & 2)))
    for b in range(2):
        g += G('v_cndmask_b32 v%d, v%d, v%d, vcc' % (D1[b] + 1, D2[b], D2[b] + 2))
    g += G("""
    s_lshl_b32 s99, s48, 4
    s_add_u32 s99, s99, s49
    s_lshl_b32 s99, s99, 11
    s_lshl_b32 s98, s51, 8
    s_add_u32 s99, s99, s98
    s_add_u32 s99, s99, %d
    """ % (1024 * h)) + G(setm('exec', m64(lambda i, g: g == i >> 2)))
    for b in range(2):
        g += G('buffer_store_dwordx2 v[%d:%d], v11, s[40:43], s99 offen offset:%d sc0 sc1' % (D1[b], D1[b] + 1, 128 * b), tok_w=['PUB'])
    g += G('s_mov_b64 exec, -1')
    E.append(g)
    return E

def norm_z2(h, n2):
    S = Stream()
    pl = XF; zf = XF + 32; tb = XF + 52; a0 = XF + 56
    S("""
    v_lshrrev_b32 v%d, 4, v1
    v_lshlrev_b32 v%d, 13, v%d
    v_and_b32 v%d, 15, v1
    v_lshl_add_u32 v%d, v%d, 4, v%d
    s_lshl_b32 s9, s48, 15
    s_lshl_b32 s10, s51, 8
    s_add_u32 s9, s9, s10
    s_add_u32 s10, s9, 4096
    """ % (a0, a0, a0, a0 + 1, a0, a0 + 1, a0))
    for k in range(8):
        S('buffer_load_dwordx4 %s, v%d, s[40:43], s%d offen offset:%d sc0 sc1' % (q4(pl + 4 * k), a0, 9 if k < 4 else 10, (k & 3) * 1024))
    A = S
    S = Stream()
    S("""
    v_lshrrev_b32 v{z}, 4, v1
    v_lshlrev_b32 v{r}, 6, v{z}
    v_lshlrev_b32 v{z}, 3, v{z}
    v_bfe_u32 v{t}, v1, 2, 2
    v_add_u32 v{z}, v{z}, v{t}
    s_lshl_b32 s9, s51, 5
    v_add_u32 v{z}, s9, v{z}
    v_mul_u32_u24 v{z}, {ZP}, v{z}
    v_and_b32 v{t}, 3, v1
    v_lshl_add_u32 v{z}, v{t}, 3, v{z}
    v_add_u32 v{z}, {ZB}, v{z}
    """.format(z=a0 + 2, r=a0 + 3, t=tb, ZP=ZP, ZB=ZB_OFF))
    S.need('ZB')
    for c in range(n2):
        T = c + 4 * h
        for hh in range(2):
            S('ds_read_b64_tr_b16 v[%d:%d], v%d offset:%d' % (zf + 4 * c + 2 * hh, zf + 4 * c + 2 * hh + 1, a0 + 2, hh * 4 * ZP + 32 * T))
    S("""
    s_lshl_b32 s9, s50, 8
    s_add_u32 s9, s9, {SB}
    v_lshlrev_b32 v{w}, 4, v{w}
    v_add_u32 v{w}, s9, v{w}
    v_add_u32 v{r}, s9, v{r}
    v_lshlrev_b32 v10, 4, v1
    v_xor_b32 v11, 64, v10
    s_lshl_b32 s12, s49, 6
    s_lshl_b32 s13, s48, 2
    s_add_u32 s12, s12, s13
    s_add_u32 s12, s12, s51
    s_mul_i32 s12, s12, 9216
    s_add_u32 s12, s12, {o}
    s_add_u32 s13, s12, 4096
    s_mov_b32 s11, 0x{inv:x}
    """.format(SB=SB_OFF, w=a0 + 1, r=a0 + 3, o=4 * h * 1024, inv=fbits(1.0 / 2304)))
    for k in range(4):
        for e in range(4): S('v_add_f32 v%d, v%d, v%d' % (pl + 4 * k + e, pl + 4 * k + e, pl + 16 + 4 * k + e))
    for k in range(2):
        for e in range(4): S('v_add_f32 v%d, v%d, v%d' % (pl + 4 * k + e, pl + 4 * k + e, pl + 8 + 4 * k + e))
    for e in range(4): S('v_add_f32 v%d, v%d, v%d' % (pl + e, pl + e, pl + 4 + e))
    for sw in ('v_permlane16_swap_b32', 'v_permlane32_swap_b32'):
        for k in range(4): S('v_mov_b32 v%d, v%d' % (pl + 4 + k, pl + k))
        for k in range(4): S('%s v%d, v%d' % (sw, pl + k, pl + 4 + k))
        for k in range(4): S('v_add_f32 v%d, v%d, v%d' % (pl + k, pl + k, pl + 4 + k))
    for r in (pl, pl + 2): rowstats(S, r, tb, 's11')
    S('ds_write_b128 v%d, %s' % (a0 + 1, q4(pl)), tok_w=['SB'])
    S.need('SB')
    sr = pl + 16
    for k in range(4): S('ds_read_b128 %s, v%d offset:%d' % (q4(sr + 4 * k), a0 + 3, 16 * k))
    for c in range(n2):
        T = c + 4 * h
        for d in range(4):
            r = zf + 4 * c + d
            t = tb + 2 * (d & 1)
            S('v_lshlrev_b32 v%d, 16, v%d' % (t, r))
            S('v_and_b32 v%d, 0xffff0000, v%d' % (t + 1, r))
            S('v_fma_f32 v%d, v%d, v%d, v%d' % (t, t, sr + 4 * d, sr + 4 * d + 1))
            S('v_fma_f32 v%d, v%d, v%d, v%d' % (t + 1, t + 1, sr + 4 * d + 2, sr + 4 * d + 3))
            S('v_cvt_pk_bf16_f32 v%d, v%d, v%d' % (r, t, t + 1))
        S('buffer_store_dwordx4 %s, v%d, s[36:39], s%d offen offset:%d' % (q4(zf + 4 * c), 11 if T & 1 else 10, 12 if c < 4 else 13, (c & 3) * 1024))
    return A, S

def tail(S, h, ntile, acc, stamp):
    S('''
    s_lshl_b32 s63, s48, 3
    s_lshl_b32 s98, s51, 1
    s_add_u32 s63, s63, s98
    s_mul_i32 s63, s63, 72
    s_mul_i32 s98, s49, 9
    s_add_u32 s98, s98, s52
    s_lshr_b32 s98, s98, 1
    s_add_u32 s63, s63, s98
    s_lshl_b32 s69, s63, 10
    s_add_u32 s70, s69, 73728
    s_cmp_eq_u32 s52, 0
    s_cselect_b32 s63, 4608, 0
    s_sub_u32 s63, s63, 512
    s_add_u32 s71, s69, s63
    s_add_u32 s72, s70, s63
    ''')
    G1 = OPT.get('gelu1', False)
    for p in range(2):
        for b in range(2):
            a0 = acc(2, 2 * p, b); a1 = acc(2, 2 * p + 1, b)
            if G1: gelu4(S, a0, S1); gelu4(S, a1, S1 + 4)
            o = S1 + 8 + 4 * (2 * p + b)
            S('v_cvt_pk_bf16_f32 v%d, v%d, v%d' % (o, a0, a0 + 1))
            S('v_cvt_pk_bf16_f32 v%d, v%d, v%d' % (o + 1, a0 + 2, a0 + 3))
            S('v_cvt_pk_bf16_f32 v%d, v%d, v%d' % (o + 2, a1, a1 + 1))
            S('v_cvt_pk_bf16_f32 v%d, v%d, v%d' % (o + 3, a1 + 2, a1 + 3))
            for d in range(2): S('v_permlane32_swap_b32 v%d, v%d' % (o + d, o + 2 + d))
            for d in range(2): S('v_permlane16_swap_b32 v%d, v%d' % (o + d, o + 2 + d))
            S('buffer_store_dwordx4 %s, v10, s[32:35], s%d offen offset:%d' % (q4(o), 69 + b, (2 * h + p) * 1024))
    if h == 0:
        S('''
        v_lshrrev_b32 v12, 5, v1
        v_lshlrev_b32 v12, 8, v12
        v_and_b32 v13, 15, v1
        v_lshl_add_u32 v12, v13, 4, v12
        v_bfe_u32 v13, v1, 4, 1
        v_lshl_add_u32 v12, v13, 3, v12
        ''')
        for b in range(2):
            a0 = acc(2, 4, b)
            if G1: gelu4(S, a0, S1)
            o = S1 + 24 + 2 * b
            S('v_cvt_pk_bf16_f32 v%d, v%d, v%d' % (o, a0, a0 + 1))
            S('v_cvt_pk_bf16_f32 v%d, v%d, v%d' % (o + 1, a0 + 2, a0 + 3))
            S('buffer_store_dwordx2 v[%d:%d], v12, s[32:35], s%d offen' % (o, o + 1, 71 + b))
    if stamp:
        stamp_mid(S, 96)
        S('s_waitcnt vmcnt(0)')
        stamp_mid(S, 70)
        stamp_store(S, 84, [86, 88, 90, 92, 94, 96, 70], 14, 0, 72, 12)
    if h == 1: S('K1_END:')
    S('s_endpgm')
```

```python
from common import *
from k1_v2 import fbits, gelu4, C1, C2, q4

K2_LDS = 4 * 34816
def epi_offsets(S):
    S('''
    s_lshl_b32 s46, s32, 3
    s_lshl_b32 s47, s34, 1
    s_add_u32 s46, s46, s47          ; tt0
    s_mul_i32 s47, s33, 9
    s_add_u32 s47, s47, s48
    s_lshr_b32 s47, s47, 1           ; ff0
    s_mul_i32 s51, s46, 72
    s_add_u32 s51, s51, s47
    s_lshl_b32 s51, s51, 10
    s_add_u32 s52, s51, 73728        ; b=1
    s_mul_i32 s53, s46, 90
    s_add_u32 s53, s53, s47
    s_add_u32 s53, s53, 18
    s_lshl_b32 s53, s53, 10
    s_add_u32 s54, s53, 92160
    s_cmp_eq_u32 s48, 0
    s_cselect_b32 s46, 4608, 0
    s_sub_u32 s46, s46, 512
    s_add_u32 s55, s51, s46
    s_add_u32 s56, s52, s46
    s_add_u32 s57, s53, s46
    s_add_u32 s58, s54, s46
    ''')

def gen_k2(stamp=False, rot=True, nodma=False, nomfma=False, noread=False, same=0, nobar=False, prio=0, xmap='48', onewait=True, D=1, gstart=2, gend=27, pf=True):
    F = Finisher()
    S = Stream()
    ACC = 8; FS = (80, 124); Z1 = 168
    vW = (204, 205, 206, 207); vZ = 208; vB0 = 209; vB1 = 210; vA0 = 211; vA1 = 212; vAs = 213; vP = 214; vS = 215
    SLOT = 34816
    def acc(a, b): r = ACC + (a * 2 + b) * 4; return 'v[%d:%d]' % (r, r + 3)
    def fB(s, b): r = FS[s] + b * 4; return 'v[%d:%d]' % (r, r + 3)
    def fA(s, a): r = FS[s] + 8 + a * 4; return 'v[%d:%d]' % (r, r + 3)
    def bar(X):
        if not nobar: X('s_barrier')
    S('''
    s_load_dwordx4 s[4:7], s[0:1], 40
    s_load_dwordx2 s[8:9], s[0:1], 80
    s_cmp_ge_u32 s2, 256
    s_cbranch_scc1 K2_END
    ''')
    if stamp: stamp_begin(S, 60)
    S('''
    v_lshrrev_b32 v1, 6, v0
    v_and_b32 v2, 63, v0
    v_readfirstlane_b32 s62, v1
    s_and_b32 s43, s2, 7
    s_lshr_b32 s46, s2, 3
    ''')
    if xmap == '48':
        S('''
        s_lshr_b32 s32, s43, 1
        s_lshl_b32 s32, s32, 2
        s_and_b32 s47, s46, 3
        s_add_u32 s32, s32, s47
        s_and_b32 s33, s43, 1
        s_lshl_b32 s33, s33, 3
        s_lshr_b32 s46, s46, 2
        s_add_u32 s33, s33, s46
        ''')
    else:
        S('''
        s_and_b32 s32, s43, 1
        s_lshl_b32 s32, s32, 3
        s_and_b32 s47, s46, 7
        s_add_u32 s32, s32, s47
        s_lshr_b32 s33, s43, 1
        s_lshl_b32 s33, s33, 2
        s_lshr_b32 s46, s46, 3
        s_add_u32 s33, s33, s46
        ''')
    S('''
    s_add_u32 s35, s46, s47
    s_and_b32 s35, s35, %d
    v_and_b32 v3, 15, v2
    v_lshrrev_b32 v4, 4, v2
    v_lshlrev_b32 v%d, 4, v2
    s_and_b32 s48, s33, 1
    s_and_b32 s34, s62, 3
    s_lshl_b32 s49, s34, 12
    ''' % (3 if rot else 0, vP))
    if same == 1:
        S('s_and_b32 s32, s32, 1')
        S('s_and_b32 s33, s33, 1')
    S('s_cmp_lt_u32 s62, 4')
    S('s_cbranch_scc1 K2_CONS')
    S('''
    s_lshl_b32 s46, s32, 7
    s_lshl_b32 s47, s34, 5
    s_add_u32 s46, s46, s47
    v_lshrrev_b32 v5, 3, v2
    v_add_u32 v5, s46, v5
    v_lshlrev_b32 v5, 12, v5
    v_and_b32 v6, 7, v2
    v_xor_b32 v6, v6, v4
    v_lshlrev_b32 v6, 4, v6
    v_add_u32 v%d, v5, v6
    v_xor_b32 v7, 64, v%d
    v_add_u32 v%d, 0x%x, v7
    v_add_u32 v%d, 0x%x, v%d
    v_add_u32 v%d, 0x%x, v7
    s_mul_i32 s46, s33, 589824
    s_mul_i32 s47, s34, 4608
    s_add_u32 s46, s46, s47
    v_add_u32 v%d, s46, v%d
    s_add_u32 s50, s47, 16384
    s_mov_b32 s44, -1
    s_mov_b32 s45, 0
    s_mov_b32 s36, 0
    s_waitcnt lgkmcnt(0)
    ''' % (vW[0], vW[0], vW[1], 0x8000 - 1024, vW[2], 0x10000 - 2048, vW[0], vW[3], 0x18000 - 3072, vZ, vP))
    srd(S, 12, 4, 5, 2048 * 4096)
    srd(S, 16, 8, 9, Z2P_SZ, Z2P_OFF)
    def sigma(P, p, base):
        if p == 0 and rot:
            P('''s_add_u32 s43, s%d, s35
            s_add_u32 s43, s43, %d
            s_and_b32 s43, s43, 31''' % (base, 4 * D))
        else:
            P('''s_add_u32 s43, s35, %d
            s_and_b32 s43, s43, 3
            s_add_u32 s43, s43, s%d''' % (p, base))
    def half_a(P, p, base):
        sigma(P, p, base)
        P('s_lshl_b32 s37, s43, 7')
        P('s_add_u32 m0, s49, %d' % (p * SLOT))
        for q in range(4):
            if not nodma: P('buffer_load_dwordx4 v%d, s[12:15], s37 offen offset:%d lds' % (vW[q], q * 1024), tok_w=['P%d' % p])
    def half_b(P, p, base):
        sigma(P, p, base)
        P('s_mul_i32 s38, s43, 18432')
        P('s_add_u32 m0, s50, %d' % (p * SLOT))
        if not nodma:
            P('s_mov_b64 exec, s[44:45]')
            P('buffer_load_dwordx4 v%d, s[16:19], s38 offen lds' % vZ, tok_w=['P%d' % p])
            P('s_mov_b64 exec, -1')
            for q in range(4):
                P('buffer_load_dwordx4 v%d, s[16:19], s38 offen offset:%d lds' % (vZ, 512 + q * 1024), tok_w=['P%d' % p])
    for p in range(2):
        half_a(S, p, 36); half_b(S, p, 36)
    S.need('P0')
    bar(S)
    half_a(S, 2, 36); half_b(S, 2, 36); half_a(S, 3, 36)
    srd(S, 20, 8, 9, Z1P_SZ, Z1P_OFF)
    S("""
    v_lshrrev_b32 v5, 1, v4
    v_lshlrev_b32 v5, 8, v5
    v_lshl_add_u32 v5, v3, 4, v5
    v_and_b32 v6, 1, v4
    v_lshl_add_u32 v%d, v6, 3, v5
    s_mov_b32 s78, 0x%x
    v_mov_b32 v9, 0x%x
    s_mul_i32 s63, s34, 9216
    v_add_u32 v10, s63, v%d
    v_lshlrev_b32 v11, 3, v2
    v_add_u32 v11, s63, v11
    """ % (vS, fbits(C1), fbits(C2), vP))
    S2 = Stream(); epi_offsets(S2)
    for x in S2: S(x.text.replace('s51', 's64').replace('s52', 's65'))
    zl = Stream()
    for b in range(2):
        for p in range(4):
            r = Z1 + (b * 4 + p) * 4
            zl('buffer_load_dwordx4 v[%d:%d], v%d, s[20:23], s%d offen offset:%d' % (r, r + 3, vP, 64 + b, p * 1024))
        r = Z1 + 32 + b * 2
        zl('buffer_load_dwordx2 v[%d:%d], v%d, s[20:23], s%d offen' % (r, r + 1, vS, 55 + b))
    gw = []
    for k in range(18):
        g = Stream()
        p = Z1 + 2 * k; x = 16 + 8 * (k & 1)
        g('v_lshlrev_b32 v%d, 16, v%d' % (x, p))
        g('v_and_b32 v%d, 0xffff0000, v%d' % (x + 1, p))
        g('v_lshlrev_b32 v%d, 16, v%d' % (x + 2, p + 1))
        g('v_and_b32 v%d, 0xffff0000, v%d' % (x + 3, p + 1))
        gelu4(g, x, x + 4)
        g('v_cvt_pk_bf16_f32 v%d, v%d, v%d' % (p, x, x + 1))
        g('v_cvt_pk_bf16_f32 v%d, v%d, v%d' % (p + 1, x + 2, x + 3))
        gw += list(g)
    per = -(-len(gw) // (gend - gstart))
    for m in range(8):
        issue = m < 7
        S('s_add_u32 s51, s36, 4')
        for p in range(4):
            n = 4 * m + p
            if n == 31: break
            toks = ['P%d' % ((p + 1) & 3)]
            if n == 30: toks.append('Z1L')
            S.need(*toks)
            bar(S)
            H = [Stream(), Stream()]
            if p == 0:
                half_b(H[0], 3, 36)
                if issue: half_a(H[1], 0, 51)
            elif issue:
                half_b(H[0], p - 1, 51)
                half_a(H[1], p, 51)
            w = []
            if gstart <= n: w = gw[:per]; gw = gw[per:]
            S.extend(H[0]); S.extend(w[:len(w) // 2]); S.extend(H[1]); S.extend(w[len(w) // 2:])
            if n == 0: S.extend(zl)
            if n == 29:
                assert not gw
                for k in range(8): S('ds_write_b128 v10, %s offset:%d' % (q4(Z1 + 4 * k), k * 1024), tok_w=['Z1L'])
                for b in range(2): S('ds_write_b64 v11, v[%d:%d] offset:%d' % (Z1 + 32 + 2 * b, Z1 + 33 + 2 * b, 8192 + 512 * b), tok_w=['Z1L'])
        S('s_mov_b32 s36, s51')
    S('K2_END:')
    S('s_endpgm')
    F.run(S)
    txt = F.text()
    F = Finisher()
    S = Stream()
    S('K2_CONS:')
    if prio: S('s_setprio %d' % prio)
    S('s_waitcnt lgkmcnt(0)')
    srd(S, 28, 6, 7, 4096)
    S('''
    s_lshl_b32 s46, s32, 8
    s_lshl_b32 s47, s34, 6
    s_add_u32 s46, s46, s47
    v_lshlrev_b32 v5, 1, v3
    buffer_load_ushort v216, v5, s[28:31], s46 offen
    buffer_load_ushort v217, v5, s[28:31], s46 offen offset:32
    ''')
    srd(S, 24, 8, 9, AP_SZ, AP_OFF)
    if pf:
        S('''s_load_dwordx2 s[16:17], s[0:1], 56
        s_load_dwordx2 s[20:21], s[0:1], 16
        s_mov_b32 s18, %d
        s_mov_b32 s19, 0x00020000
        s_mov_b32 s22, %d
        s_mov_b32 s23, 0x00020000''' % (2304 * 1152, 576 * 1152))
    S('''
    v_lshrrev_b32 v5, 1, v3
    v_xor_b32 v5, v5, v4
    v_lshlrev_b32 v5, 4, v5
    v_lshlrev_b32 v6, 7, v3
    v_add3_u32 v%d, v5, v6, s49
    v_xor_b32 v%d, 64, v%d
    ''' % (vB0, vB1, vB0))
    S('''
    v_lshrrev_b32 v5, 3, v3
    v_add_u32 v5, s48, v5            ; o + (i>>3)
    v_and_b32 v6, 1, v5
    v_lshlrev_b32 v6, 2, v6          ; 4*(T&1)
    v_and_b32 v7, 3, v3
    v_bfe_u32 v1, v3, 2, 1
    v_lshl_add_u32 v7, v1, 3, v7     ; 8*((i>>2)&1) + (i&3)
    v_xor_b32 v7, v7, v6
    v_lshl_add_u32 v7, v4, 4, v7     ; + g*16
    v_lshlrev_b32 v7, 4, v7
    v_lshl_add_u32 v7, v5, 10, v7
    v_add_u32 v%d, 16384, v7
    v_xor_b32 v%d, 64, v%d
    s_cmp_eq_u32 s48, 0
    s_cselect_b32 s46, %d, 0
    s_add_u32 s46, s46, 16384
    v_add_u32 v%d, s46, v%d
    v_lshrrev_b32 v5, 1, v4
    v_lshlrev_b32 v5, 8, v5
    v_lshl_add_u32 v5, v3, 4, v5
    v_and_b32 v6, 1, v4
    v_lshl_add_u32 v%d, v6, 3, v5
    ''' % (vA0, vA1, vA0, 8192, vAs, vP, vS))
    epi_offsets(S)
    S('v_lshlrev_b32 v216, 16, v216')
    S('v_lshlrev_b32 v217, 16, v217')
    for a in range(9):
        for b in range(2):
            for r in range(4):
                S('v_mov_b32 v%d, v%d' % (ACC + (a * 2 + b) * 4 + r, 216 + b))
    def reads(s, h):
        g = []
        vB = vB1 if h else vB0
        for b in range(2):
            g.append(G('ds_read_b128 %s, v%d offset:%d' % (fB(s, b), vB, b * 2048)))
        for a in range(9):
            if a < 8:
                g.append(G('ds_read_b128 %s, v%d offset:%d' % (fA(s, a), vA1 if a & 1 else vA0, h * 9216 + (a >> 1) * 2048)))
            else:
                g.append(G('ds_read_b128 %s, v%d offset:%d' % (fA(s, a), vAs, h * 9216)))
        if noread: g = [G('s_nop 0')]
        return g
    def mfmas(s):
        m = Stream()
        for a in range(9):
            for b in range(2):
                m('v_mfma_f32_16x16x32_bf16 %s, %s, %s, %s' % (acc(a, b), fA(s, a), fB(s, b), acc(a, b)))
        if nomfma: m = Stream(m[:2])
        return m
    def adv():
        return [G('''s_add_u32 s42, s42, 1
        s_and_b32 s42, s42, 3
        s_cselect_b32 s40, s59, %d''' % (-3 * SLOT))] + [G('v_add_u32 v%d, s40, v%d' % (r, r)) for r in (vB0, vB1, vA0, vA1, vAs)]
    S('s_mov_b32 s42, 0')
    S('s_mov_b32 s59, %d' % SLOT)
    if stamp: stamp_mid(S, 72)
    bar(S)
    if stamp:
        stamp_mid(S, 74); S('s_waitcnt lgkmcnt(0)')
    for g in reads(0, 0): S.extend(g)
    S('s_mov_b32 s41, 29')
    if pf:
        S('''s_waitcnt lgkmcnt(0)
        s_mul_i32 s46, s2, 10368
        s_mul_i32 s47, s34, 2688
        s_add_u32 s46, s46, s47
        v_lshlrev_b32 v5, 7, v2
        s_mov_b64 exec, 0x1fffff
        buffer_load_dword v218, v5, s[16:19], s46 offen
        s_mul_i32 s46, s2, 2688
        s_mul_i32 s47, s34, 768
        s_add_u32 s46, s46, s47
        s_mov_b64 exec, 0x3f
        buffer_load_dword v219, v5, s[20:23], s46 offen
        s_mov_b64 exec, -1''')
    F.run(S)
    def body(last=False, extra=None):
        B = Stream()
        if onewait: B('s_waitcnt lgkmcnt(0)')
        B.extend(weave(mfmas(0), reads(1, 1) + ([] if last else adv()), 0, 16))
        if not last:
            B('s_waitcnt lgkmcnt(0)')
            bar(B)
            g = reads(0, 0)
            if extra: g = g + extra
            B.extend(weave(mfmas(1), g, 0, 12 if not extra else 16))
        else:
            B.extend(mfmas(1))
        return B
    T = Stream()
    T('''s_sub_u32 s41, s41, 1
    s_cmp_lg_u32 s41, 0
    s_cbranch_scc1 K2_LOOP''')
    F.loop('K2_LOOP', body(), T)
    zl = [G('s_mul_i32 s63, s34, 9216\nv_add_u32 v5, s63, v%d\nv_lshlrev_b32 v6, 3, v2\nv_add_u32 v6, s63, v6' % vP)]
    zr = []
    for k in range(8): zr.append(G('ds_read_b128 %s, v5 offset:%d' % (q4(Z1 + 4 * k), k * 1024)))
    for b in range(2): zr.append(G('ds_read_b64 v[%d:%d], v6 offset:%d' % (Z1 + 32 + 2 * b, Z1 + 33 + 2 * b, 8192 + 512 * b)))
    F.run(body(extra=zl))
    F.run(body(extra=zr))
    F.run(body(last=True))
    E = Stream()
    if stamp: stamp_mid(E, 76)
    t0 = 216
    for b in range(2):
        for p in range(5):
            nd = 4 if p < 4 else 2
            zr = Z1 + (b * 4 + p) * 4 if p < 4 else Z1 + 32 + b * 2
            for d in range(nd):
                a = 2 * p + (d >> 1)
                ar = ACC + (a * 2 + b) * 4 + (d & 1) * 2
                t = 220 + (d & 1) * 2
                E('v_lshlrev_b32 v%d, 16, v%d' % (t, zr + d))
                E('v_and_b32 v%d, 0xffff0000, v%d' % (t + 1, zr + d))
                E('v_pk_mul_f32 v[%d:%d], v[%d:%d], v[%d:%d]' % (t, t + 1, t, t + 1, ar, ar + 1))
                E('v_cvt_pk_bf16_f32 v%d, v%d, v%d' % (zr + d, t, t + 1))
            if p < 4:
                E('buffer_store_dwordx4 v[%d:%d], v%d, s[24:27], s%d offen offset:%d' % (zr, zr + 3, vP, 53 + b, p * 1024))
            else:
                E('buffer_store_dwordx2 v[%d:%d], v%d, s[24:27], s%d offen' % (zr, zr + 1, vS, 57 + b))
    if stamp:
        stamp_mid(E, 78)
        E('s_waitcnt vmcnt(0)')
        stamp_mid(E, 80)
        stamp_store(E, 60, [72, 74, 76, 78, 80], 8, 1, 64, 216)
    E('s_endpgm')
    F.run(E)
    return txt + F.text(), 224
```

```python
import sys
from build import *
HDR = open('parallel_sum__sliding_local_dilated__mixer_gmlp__prompt.s.ref').read().split('; Override launch')[0]
def make(path, stamp=False, k1={}, k2={}, k3={}):
    t1, v1 = gen_k1(stamp=stamp, **k1)
    t2, v2 = gen_k2(stamp=stamp, **k2)
    t3, v3 = gen_k3(stamp=stamp, **k3)
    assemble_file(path, [('k1_kernel', t1, v1, 256, 512, K1_LDS), ('k2_kernel', t2, v2, 256, 512, K2_LDS), ('k3_kernel', t3, v3, 234, 256, K3_LDS)])
    s = open(path).read()
    open(path, 'w').write(HDR + s)
if __name__ == '__main__':
    K1 = dict(budget=66)
    make('parallel_sum__sliding_local_dilated__mixer_gmlp__prompt.s', k1=K1, k2=dict(prio=1))
    make('v_norot.s', k1=K1, k2=dict(rot=False, prio=1))
    make('full_st.s', stamp=True, k1=K1, k2=dict(prio=1))
    make('full_st_norot.s', stamp=True, k1=K1, k2=dict(rot=False, prio=1))
```

```python
from common import *
import k1_v2 as V2
from k1_v2 import fbits, q4, gelu4, rowstats, dots, norm4, flatten, m64, setm, is_mem, C1, C2, SCL
SLOT = 20480
T1_OFF = 40960; T2_OFF = 81920; XH_OFF = 143360; ZB_OFF = 81920; QB_OFF = 119808; SB_OFF = 161792
K1_LDS = 163840
QP = 240; ZP = 296
XF = 112; ACC = 40; WFR = 16; NRING = 6
NR1 = 6; P1 = NR1 * 2048; P2 = (9 - NR1) * 2048
sBLK = 54
vT = 4; vC2 = 9
OPT = {}
assert all((i * 3277) >> 16 == i // 20 for i in range(1280)) and all((r * 43) >> 8 == r // 6 for r in range(18))
def xf(j, b): r = XF + (j * 2 + b) * 4; return 'v[%d:%d]' % (r, r + 3)
LN1 = 40; LN2 = XF + 16 * NR1; ST = 88
def ln(g, j): return (LN1 + (g * NR1 + j) * 4 if g < 2 else 16 + 4 * j) if j < NR1 else LN2 + (g * (9 - NR1) + j - NR1) * 4
PH = [('Z2', 9216, 4608), ('Q', 3456, 0), ('Z1', 9216, 0)]
vDZ = 16; vDQ = 21
def wt(x):
    if isinstance(x, str): return 1
    if isinstance(x, list): return sum(wt(y) for y in x)
    if x.kind in ('need', 'label'): return 0
    if x.kind in ('trans', 'mfma'): return 2
    if x.kind == 'salu': return 0.5
    return 1

def wdma(n):
    ph, j = divmod(n, 9)
    nm, pitch, add = PH[ph]
    P = Stream()
    P('s_mul_i32 s63, s%d, %d' % (sBLK + j, 64 * pitch))
    if add: P('s_add_u32 s63, s63, %d' % add)
    for e in range(5):
        P('s_add_u32 m0, s68, %d' % ((n & 3) * SLOT + e * 4096))
        P('buffer_load_dwordx4 v%d, s[%s], s63 offen lds' % ((vDQ if ph == 1 else vDZ) + e, '20:23' if ph == 1 else '24:27'), tok_w=['W%d' % n])
    return P

def head(S, stamp, xmap, rot):
    S('''
    s_load_dwordx4 s[4:7], s[0:1], 0
    s_load_dwordx2 s[8:9], s[0:1], 32
    s_load_dwordx4 s[12:15], s[0:1], 72
    s_load_dwordx2 s[10:11], s[0:1], 40
    s_cmp_ge_u32 s2, 256
    s_cbranch_scc1 K1_END
    ''')
    if stamp: stamp_begin(S, 84)
    S('''
    v_lshrrev_b32 v10, 6, v0
    v_and_b32 v1, 63, v0
    v_readfirstlane_b32 s50, v10
    s_and_b32 s63, s2, 7
    s_lshr_b32 s64, s2, 3
    ''')
    if xmap == '84':
        S('''
        s_and_b32 s48, s63, 1
        s_lshl_b32 s48, s48, 3
        s_and_b32 s65, s64, 7
        s_add_u32 s48, s48, s65
        s_lshr_b32 s49, s63, 1
        s_lshl_b32 s49, s49, 2
        s_lshr_b32 s64, s64, 3
        s_add_u32 s49, s49, s64
        s_lshl_b32 s64, s64, 1
        s_add_u32 s53, s64, s65
        ''')
    else:
        S('''
        s_lshr_b32 s48, s63, 1
        s_lshl_b32 s48, s48, 2
        s_and_b32 s65, s64, 3
        s_add_u32 s48, s48, s65
        s_and_b32 s49, s63, 1
        s_lshl_b32 s49, s49, 3
        s_lshr_b32 s64, s64, 2
        s_add_u32 s49, s49, s64
        s_lshl_b32 s65, s65, 1
        s_add_u32 s53, s64, s65
        ''')
    if not rot: S('s_mov_b32 s53, 0')
    S('''
    s_sub_u32 s64, s53, 9
    s_cmp_ge_u32 s53, 9
    s_cselect_b32 s%d, s64, s53
    s_and_b32 s51, s50, 3
    s_and_b32 s52, s49, 1
    s_lshl_b32 s63, s48, 7
    s_lshl_b32 s64, s51, 5
    s_add_u32 s63, s63, s64
    s_lshr_b32 s64, s50, 2
    s_mul_i32 s64, s64, 24
    s_add_u32 s63, s63, s64
    v_lshrrev_b32 v12, 3, v1
    v_and_b32 v13, 7, v1
    v_add_u32 v10, s63, v12
    v_mul_u32_u24 v10, 1152, v10
    v_lshl_add_u32 v10, v13, 4, v10
    v_add_u32 v11, 9216, v10
    v_add_u32 v14, 18432, v10
    ''' % sBLK)
    for j in range(1, 9):
        S('s_add_u32 s%d, s%d, 1' % (sBLK + j, sBLK + j - 1))
        S('s_cmp_eq_u32 s%d, 9' % (sBLK + j))
        S('s_cselect_b32 s%d, 0, s%d' % (sBLK + j, sBLK + j))
    for j in range(9): S('s_lshl_b32 s%d, s%d, 7' % (69 + j, sBLK + j))
    S('s_waitcnt lgkmcnt(0)')
    srd(S, 16, 4, 5, 2048 * 1152)
    S('s_cmp_ge_u32 s50, 4')
    S('s_cbranch_scc1 K1_HELP')

def xloads(S, gs):
    for g in gs:
        for j in range(9):
            S('buffer_load_dwordx4 %s, v%d, s[16:19], s%d offen' % (q4(ln(g, j)), (10, 11, 14)[g], 69 + j))
def common_setup(S):
    srd(S, 28, 14, 15, AP_SZ, AP_OFF)
    srd(S, 36, 14, 15, Z2P_SZ, Z2P_OFF)
    srd(S, 40, 14, 15, ST_SZ, ST_OFF)
    srd(S, 44, 12, 13, 256)
    S('s_mov_b32 s79, 0x%x' % fbits(SCL))
    S('''
    s_mov_b32 s82, 0x3f803f80
    s_mov_b32 s83, 0x%x
    v_xor_b32 v102, v12, v13
    v_and_b32 v103, 3, v1
    v_lshl_add_u32 v102, v103, 4, v102
    v_lshlrev_b32 v102, 4, v102
    v_bfe_u32 v104, v1, 2, 1
    v_lshl_add_u32 v102, v104, 10, v102
    s_mul_i32 s63, s51, %d
    s_add_u32 s63, s63, %d
    v_add_u32 v5, s63, v102              ; transit write address
    v_and_b32 v101, 15, v1
    v_lshrrev_b32 v105, 4, v1
    v_xor_b32 v102, v101, v105
    v_lshl_add_u32 v102, v105, 4, v102
    v_lshlrev_b32 v6, 4, v102            ; plain frag read offset (even)
    v_mul_u32_u24 v105, 2560, v105
    v_bfe_u32 v101, v1, 2, 2
    v_mul_u32_u24 v101, 320, v101
    v_lshlrev_b32 v103, 3, v103
    v_add3_u32 v%d, v105, v101, v103
    ''' % (fbits(1.0 / 576), 2 * P1, T1_OFF, vT))

def goff(k, P): return (k >> 1) * P + (k & 1) * 128
def layernorm(S, ks, mid=None, mid2=None):
    ng = len(ks)
    for g in range(ng):
        st = ST + 2 * g
        regs = [ln(g, j) + d for j in range(9) for d in range(4)]
        S.extend(dots(regs, st, st + 1))
        if OPT.get('ptrace'): stamp_mid(S, 88 + 4 * (g & 1))
        if g == 0 and ng > 1: xloads(S, [1, 2] if OPT.get('x12', 0) else [1])
        for m in ('quad_perm:[1,0,3,2]', 'quad_perm:[2,3,0,1]', 'row_half_mirror'):
            for r in range(st, st + 2):
                S('v_add_f32_dpp v%d, v%d, v%d %s row_mask:0xf bank_mask:0xf' % (r, r, r, m))
        rowstats(S, st, ST + 6, 's83')
        if g == ng - 1 and mid: S.extend(mid)
        for j in range(NR1):
            norm4(S, ln(g, j), st, ST + 6)
            S('ds_write_b128 v5, %s offset:%d' % (q4(ln(g, j)), goff(ks[g], P1) + j * 2048), tok_w=['T'])
        if g < ng - 1:
            for j in range(NR1, 9): norm4(S, ln(g, j), st, ST + 6)
            if OPT.get('ptrace'): stamp_mid(S, 90)
        if g == 0 and ng > 2 and not OPT.get('x12', 0): xloads(S, [2])
    if mid2: S.extend(mid2)
    if OPT.get('ptrace'): stamp_mid(S, 94)
    S.need('T')
    S('s_barrier')
    if OPT.get('ptrace'): stamp_mid(S, 96)
def t2_writes(ks):
    A = Stream()
    for j in range(NR1, 9):
        for g in range(len(ks)):
            A('ds_write_b128 v5, %s offset:%d' % (q4(ln(g, j)), goff(ks[g], P2) + (j - NR1) * 2048), tok_w=['T2'])
    return A
def t2_addr(S):
    S('s_mul_i32 s63, s51, %d' % (2 * (P2 - P1)))
    S('s_add_u32 s63, s63, %d' % (T2_OFF - T1_OFF))
    S('v_add_u32 v5, s63, v5')

def emit(F, out):
    for x in flatten(out):
        if isinstance(x, tuple) and x[0] == 'DMA5':
            _, n, txt, off = x
            lab = 'K1_D%d' % n
            F.run(G('s_cmp_eq_u32 s51, 3\ns_cbranch_scc1 %s\ns_add_u32 m0, s68, %d' % (lab, off)))
            F.add(I(txt)); F.vmq.pop()
            F.run(G(lab + ':'))
        elif isinstance(x, tuple) and x[0] == 'KEEPQ':
            if x[1] == 0: keep = [set(q) for q in F.vmq]
            else: F.vmq = keep
        elif x == 'ATOMIC':
            F.run(G('''s_cmp_lg_u32 s51, 0
            s_cbranch_scc1 K1_NOAT
            v_mov_b32 v7, 1
            s_mov_b64 exec, 1'''))
            F.add(I('buffer_atomic_add v7, v6, s[44:47], s9 offen sc1')); F.vmq.pop()
            F.run(G('s_mov_b64 exec, -1\nK1_NOAT:'))
        else:
            F.add(x)

def gen_k1(stamp=False, xmap='84', rot=True, **opt):
    OPT.clear(); OPT.update(opt); V2.OPT.clear()
    global stamp_mid
    import common
    if OPT.get('ptrace'):
        seen = {}
        def sm(S, r):
            k = (id(S), r)
            if r == 88 and k in seen: r = 70
            k = (id(S), r)
            if k in seen: return
            seen[k] = 1
            if r == 70: common.stamp_mid(S, 66); return
            common.stamp_mid(S, r)
        stamp_mid = sm
    else:
        stamp_mid = common.stamp_mid
    F = Finisher()
    S = Stream()
    head(S, stamp, xmap, rot)
    F.run(S)
    txt = F.text()
    for role in (compute, helper):
        G2 = Finisher()
        G2.vmq = [set(x) for x in F.vmq]; G2.lgq = [(set(a), b) for a, b in F.lgq]; G2.hist = list(F.hist)
        emit(G2, role(stamp))
        txt += G2.text()
    return txt, 256

def compute(stamp):
    S = Stream()
    vXe = 6; vXo = 7
    xloads(S, [0])
    common_setup(S)
    srd(S, 32, 14, 15, Z1P_SZ, Z1P_OFF)
    S('''
    s_mul_i32 s63, s51, %d
    s_add_u32 s63, s63, %d
    v_add_u32 v6, s63, v6
    v_xor_b32 v7, 64, v6
    ''' % (2 * P1, T1_OFF))
    if stamp: stamp_mid(S, 86)
    layernorm(S, [0, 1, 2])
    for q in range(2 * NR1):
        for b in range(2):
            S('ds_read_b128 %s, v%d offset:%d' % (xf(q, b), vXo if q & 1 else vXe, b * P1 + q * 1024), tok_w=['TR'])
    for j in range(NR1, 9): norm4(S, ln(2, j), ST + 4, ST + 6)
    t2_addr(S)
    S('s_mul_i32 s63, s51, %d' % (2 * (P2 - P1)))
    S('s_add_u32 s63, s63, %d' % (T2_OFF - T1_OFF))
    S.need('TR')
    S('s_barrier')
    S('v_add_u32 v6, s63, v6')
    S('v_add_u32 v7, s63, v7')
    S('s_setprio %d' % OPT.get('prio', 2))
    if stamp: stamp_mid(S, 88)
    ntile = [9, 7, 9]
    def acc(c, b): return ACC + (c * 2 + b) * 4
    hA = ACC + 56; hX = ACC + 64; hW = ACC + 68
    vTa = 2; vTb = 3; vq2 = 6; vq4 = 8; vQb = 5; vXH = 9; vqh = 7; vTs = 0
    frs = [(n, ks, c) for n in range(27) for ks in range(2) for c in range(ntile[n // 9])]
    bias = {}
    extra_tok = {1: ['T2'], 9: ['TR2'], 10: ['HB'], 18: ['XHR'], 19: ['QB']}
    QIMM = {0: 0, 1: 32, 3: 120, 5: 160 + 48, 6: 192 + 48}
    def zaddr(mode):
        g = Stream()
        g("""v_bfe_u32 v15, v1, 4, 1
        v_lshlrev_b32 v15, 5, v15""")
        if mode == 0:
            g("""s_cmp_eq_u32 s52, 0
            s_cselect_b32 s98, 1, -1
            s_lshl_b32 s99, s52, 5
            v_mul_lo_u32 v15, v15, s98
            v_add3_u32 v%d, v%d, v15, s99
            v_sub_u32 v%d, v%d, v15
            v_add_u32 v%d, s99, v%d""" % (vTa, vT, vTb, vT, vTb, vTb))
        else:
            g("""s_lshl_b32 s99, s52, 6
            v_add3_u32 v%d, v%d, v15, s99
            v_sub_u32 v%d, v%d, v15
            v_add_u32 v%d, 256, v%d
            v_add_u32 v15, 32, v%d
            s_cmp_eq_u32 s52, 0
            s_cselect_b64 vcc, -1, 0
            v_cndmask_b32 v%d, v15, v%d, vcc
            v_add_u32 v%d, s99, v%d
            v_add_u32 v%d, %d, v%d
            v_add_u32 v%d, %d, v%d
            v_add_u32 v%d, %d, v%d""" % (vTa, vT, vTb, vT, vTs, vTa, vTb, vTs, vTs, vTb, vTb, vTa, 2 * SLOT, vTa, vTb, 2 * SLOT, vTb, vTs, 2 * SLOT, vTs))
        return g
    def qaddr():
        g = Stream()
        g("""v_bfe_u32 v15, v1, 4, 1
        v_lshlrev_b32 v15, 5, v15
        s_mul_i32 s98, s49, 72
        s_and_b32 s98, s98, 31
        v_add3_u32 v{qb}, v{T}, v15, s98
        v_and_b32 v15, 3, v1
        v_cmp_le_u32 vcc, 2, v15
        v_cndmask_b32 v14, 0, 24, vcc
        v_add_u32 v14, 152, v14
        v_add_u32 v{q4}, v{qb}, v14
        v_cmp_le_u32 vcc, 1, v15
        v_cndmask_b32 v14, 0, 24, vcc
        v_add_u32 v14, 64, v14
        v_add_u32 v{q2}, v{qb}, v14
        s_lshl_b32 s69, s51, 5
        s_cmp_eq_u32 s51, 3
        s_cselect_b32 s99, 24, 0
        s_add_u32 s99, s99, s69
        v_add_u32 v{qh}, s99, v{qb}
        s_cmp_eq_u32 s51, 2
        s_cselect_b64 vcc, -1, 0
        v_cndmask_b32 v{qh}, v{qh}, v{q2}, vcc
        v_and_b32 v14, 15, v1
        v_lshrrev_b32 v15, 4, v1
        v_xor_b32 v14, v14, v15
        v_lshl_add_u32 v14, v15, 4, v14
        v_lshlrev_b32 v14, 4, v14
        v_add_u32 v{xh}, {XH}, v14""".format(qb=vQb, T=vT, q4=vq4, q2=vq2, qh=vqh, xh=vXH, XH=XH_OFF))
        return g
    def toggle(g, ar, n):
        want = (n & 3) >> 1
        if bias.get(ar, 0) != want:
            g('v_add_u32 v%d, %d, v%d' % (ar, 2 * SLOT if want else -2 * SLOT, ar))
            bias[ar] = want
    def halo_read(q):
        g = Stream()
        n = 9 + q // 2
        g('ds_read_b128 %s, v%d offset:%d' % (q4(hX), vXH, q * 1024), tok_w=['XHR'])
        toggle(g, vqh, n)
        for hh in range(2):
            g('ds_read_b64_tr_b16 v[%d:%d], v%d offset:%d' % (hW + 2 * hh, hW + 2 * hh + 1, vqh, (n & 1) * SLOT + (q & 1) * 10240 + hh * 1280))
        return g
    def read(f):
        n, ks, c = frs[f]
        ph = n // 9
        g = Stream()
        if ks == 0 and c == 0:
            if n > 0:
                if n in extra_tok: g.need(*extra_tok[n])
                g('s_barrier')
            if n == 0: g.extend(zaddr(0))
            if n == 18:
                for r in (vTa, vTb, vTs): bias[r] = 1
        if ph == 0: ar, coff = (vTb if c & 1 else vTa), 32 * c
        elif ph == 1: ar, coff = (vq2, 0) if c == 2 else ((vq4, 0) if c == 4 else (vQb, QIMM[c]))
        else: ar, coff = ((vTb if c & 1 else vTa), 32 * c) if c < 8 else (vTs, 0)
        toggle(g, ar, n)
        r = WFR + (f % NRING) * 4
        for hh in range(2):
            g('ds_read_b64_tr_b16 v[%d:%d], v%d offset:%d' % (r + 2 * hh, r + 2 * hh + 1, ar, (n & 1) * SLOT + ks * 10240 + hh * 1280 + coff))
        return g
    D = NRING - 1
    for f in range(D): S.extend(read(f))
    def tmpr(ph, c, b):
        pairs = [12, 14, 2] if ph == 0 else [12, 14, 6, 8]
        return pairs[(2 * c + b) % len(pairs)]
    def cvt(ph, c, b):
        a = acc(c, b); t = tmpr(ph, c, b)
        return G('v_cvt_pk_bf16_f32 v%d, v%d, v%d\nv_cvt_pk_bf16_f32 v%d, v%d, v%d' % (t, a, a + 1, t + 1, a + 2, a + 3))
    def cvti(a):
        return G('v_cvt_pk_bf16_f32 v%d, v%d, v%d\nv_cvt_pk_bf16_f32 v%d, v%d, v%d' % (a, a, a + 1, a + 1, a + 2, a + 3))
    def dw(ph, c, b, src=None):
        t = tmpr(ph, c, b) if src is None else src
        if OPT.get('nodw'): return []
        if ph == 0:
            return G('ds_write_b64 v10, v[%d:%d] offset:%d' % (t, t + 1, 16 * b * ZP + 32 * c), tok_w=['HB'])
        return G('ds_write_b64 v11, v[%d:%d] offset:%d' % (t, t + 1, (16 + 16 * b) * QP + 32 * c), tok_w=['QB'])
    x2 = Stream()
    for q in range(2 * NR1, 18):
        for b in range(2):
            x2('ds_read_b128 %s, v%d offset:%d' % (xf(q, b), vXo if q & 1 else vXe, b * P2 + (q - 2 * NR1) * 1024), tok_w=['TR2'])
    t2 = t2_writes([0, 1, 2])
    addr = G('''
    v_and_b32 v10, 15, v1
    s_lshl_b32 s98, s51, 5
    v_add_u32 v10, s98, v10
    v_mul_u32_u24 v11, %d, v10
    v_mul_u32_u24 v10, %d, v10
    v_lshrrev_b32 v12, 4, v1
    v_lshlrev_b32 v12, 3, v12
    s_mov_b32 s98, %d
    v_add3_u32 v10, v10, v12, s98
    s_mov_b32 s98, %d
    v_add3_u32 v11, v11, v12, s98
    ''' % (QP, ZP, ZB_OFF, QB_OFF))
    hw = G('s_mul_i32 s98, s51, %d\nv_subrev_u32 v10, s98, v11\nv_add_u32 v4, s69, v10' % (32 * QP))
    light = [[3, list(addr) + list(qaddr())], [11, list(zaddr(1)) + hw]]
    for f, (n, ks, c) in enumerate(frs):
        ph, j = divmod(n, 9)
        q = 2 * j + ks
        r = WFR + (f % NRING) * 4
        if stamp and q == 0 and c == 0 and ph > 0 and not OPT.get('trace'): stamp_mid(S, 88 + 2 * ph)
        hand = (q == 0 and ph > 0)
        if hand and c == 0:
            S.extend(cvt(ph - 1, 0, 0))
        rd = read(f + D) if f + D < len(frs) else []
        if f % 2 == 0 and f + 1 < len(frs) and not OPT.get('allwait'):
            r1 = WFR + ((f + 1) % NRING) * 4
            S.need(*['v%d' % k for k in range(r1, r1 + 4)])
        for b in range(2):
            a = acc(c, b)
            S('v_mfma_f32_16x16x32_bf16 %s, %s, %s, %s' % (q4(a), q4(r), xf(q, b), '0' if q == 0 else q4(a)))
            S.extend(rd[:-1] if b == 0 else rd[-1:])
            if hand and c < 7:
                S.extend(dw(ph - 1, c, b))
                if ph == 1:
                    if c in (1, 2): S.extend(dw(0, 6 + c, b, acc(6 + c, b)))
                    if c == 2 and b == 1: S.extend(halo_read(0))
                else:
                    if c == 1: S.extend(G('ds_write_b64 v%d, v[%d:%d] offset:%d' % (10 if b else 4, hA + 4 * b, hA + 4 * b + 1, 128 * b), tok_w=['QB']))
                if 2 * c + b + 1 < 14: S.extend(cvt(ph - 1, c + b, 1 - b))
                if c == 0 or (c == 1 and ph == 1): S.extend(cvti(acc(7 + c, b)))
            if n == 0 and t2 and b == 1: S.append(t2.pop(0))
            if n in (1, 2) and x2 and b == 1 and (n == 2 or ks == 1 or c > 0): S.append(x2.pop(0))
            if n == OPT.get('pollc', 26) and ks == 0 and c == 0 and b == 0: S.extend(poll_issue(XF + 1, XF))
            if light and n >= light[0][0]:
                x = light[0][1].pop(0); S.append(x)
                while x.kind == 'salu' and light[0][1]:
                    x = light[0][1].pop(0); S.append(x)
                if not light[0][1]: light.pop(0)
        if ph == 1 and c == 4:
            S('v_mfma_f32_16x16x32_bf16 %s, %s, %s, %s' % (q4(hA + 4), q4(r), q4(hX), '0' if q == 0 else q4(hA + 4)))
        if ph == 1 and c == 5:
            S('v_mfma_f32_16x16x32_bf16 %s, %s, %s, %s' % (q4(hA), q4(hW), q4(hX), '0' if q == 0 else q4(hA)))
            if q < 17 and (q & 1) == 0: S.extend(halo_read(q + 1))
        if ph == 1 and c == 6 and q < 17 and (q & 1) == 1: S.extend(halo_read(q + 1))
    assert not t2 and not x2
    n2a, n2b = norm_z2(range(NZC))
    poll(S, 'C', XF + 1, XF)
    S.extend(n2a)
    if stamp: stamp_mid(S, 94)
    S('''
    s_lshl_b32 s63, s48, 3
    s_lshl_b32 s98, s51, 1
    s_add_u32 s63, s63, s98
    s_mul_i32 s63, s63, 72
    s_mul_i32 s98, s49, 9
    s_add_u32 s98, s98, s52
    s_lshr_b32 s98, s98, 1
    s_add_u32 s63, s63, s98
    s_lshl_b32 s69, s63, 10
    s_add_u32 s70, s69, 73728
    s_cmp_eq_u32 s52, 0
    s_cselect_b32 s63, 4608, 0
    s_sub_u32 s63, s63, 512
    s_add_u32 s71, s69, s63
    s_add_u32 s72, s70, s63
    v_lshlrev_b32 v10, 4, v1
    v_lshrrev_b32 v12, 5, v1
    v_lshlrev_b32 v12, 8, v12
    v_and_b32 v13, 15, v1
    v_lshl_add_u32 v12, v13, 4, v12
    v_bfe_u32 v13, v1, 4, 1
    v_lshl_add_u32 v12, v13, 3, v12
    ''')
    G1 = OPT.get('gelu1', False)
    if G1:
        S('s_mov_b32 s78, 0x%x' % fbits(C1))
        S('v_mov_b32 v%d, 0x%x' % (vC2, fbits(C2)))
    for p in range(4):
        for b in range(2):
            a0 = acc(2 * p, b); a1 = acc(2 * p + 1, b)
            if G1: gelu4(S, a0, XF); gelu4(S, a1, XF + 4)
            o = XF + 8 + 4 * (2 * p + b)
            S('v_cvt_pk_bf16_f32 v%d, v%d, v%d' % (o, a0, a0 + 1))
            S('v_cvt_pk_bf16_f32 v%d, v%d, v%d' % (o + 1, a0 + 2, a0 + 3))
            S('v_cvt_pk_bf16_f32 v%d, v%d, v%d' % (o + 2, a1, a1 + 1))
            S('v_cvt_pk_bf16_f32 v%d, v%d, v%d' % (o + 3, a1 + 2, a1 + 3))
            for d in range(2): S('v_permlane32_swap_b32 v%d, v%d' % (o + d, o + 2 + d))
            for d in range(2): S('v_permlane16_swap_b32 v%d, v%d' % (o + d, o + 2 + d))
            S('buffer_store_dwordx4 %s, v10, s[32:35], s%d offen offset:%d' % (q4(o), 69 + b, p * 1024))
    for b in range(2):
        a0 = acc(8, b)
        if G1: gelu4(S, a0, XF)
        o = XF + 40 + 2 * b
        S('v_cvt_pk_bf16_f32 v%d, v%d, v%d' % (o, a0, a0 + 1))
        S('v_cvt_pk_bf16_f32 v%d, v%d, v%d' % (o + 1, a0 + 2, a0 + 3))
        S('buffer_store_dwordx2 v[%d:%d], v12, s[32:35], s%d offen' % (o, o + 1, 71 + b))
    V2.S1 = 40; V2.QB_OFF = QB_OFF; V2.VOFF = 72; V2.QOFF = 144
    S.extend(V2.attention(0))
    if OPT.get('late'): S('s_barrier')
    S.extend(n2b)
    if stamp:
        stamp_mid(S, 96)
        S('s_waitcnt vmcnt(0)')
        stamp_mid(S, 70)
        stamp_store(S, 84, [86, 88, 90, 92, 94, 96, 70 if not OPT.get('ptrace') else 66], 14, 0, 72, 12, wave_s=50)
    S('s_endpgm')
    return S

HL = 232
def helper(stamp):
    S = Stream()
    S('K1_HELP:')
    xloads(S, [0])
    common_setup(S)
    srd(S, 20, 6, 7, 576 * 3456)
    srd(S, 24, 8, 9, 576 * 9216)
    S('''
    s_lshl_b32 s68, s51, 10
    s_mul_i32 s64, s49, 288
    s_and_b32 s64, s64, -64
    s_mul_i32 s65, s49, 72
    s_and_b32 s65, s65, -32
    v_mov_b32 v106, 0x7f000000
    v_mov_b32 v107, 1152
    ''')
    Q0 = Stream()
    for e in range(5):
        pre = """
        s_lshl_b32 s98, s51, 6
        s_add_u32 s98, s98, {base}
        v_add_u32 v100, s98, v1
        v_mul_u32_u24 v101, 3277, v100
        v_lshrrev_b32 v101, 16, v101          ; row
        v_mul_u32_u24 v102, 20, v101
        v_sub_u32 v100, v100, v102            ; p
        v_bfe_u32 v102, v101, 3, 1
        v_lshlrev_b32 v102, 1, v102
        """.format(base=256 * e)
        S(pre + """
        v_xor_b32 v103, v100, v102
        v_mul_u32_u24 v104, 9216, v101
        v_lshl_add_u32 v104, v103, 4, v104
        v_add_u32 v{z}, s64, v104
        """.format(z=vDZ + e))
        Q0(pre + """
        v_sub_u32 v100, v100, v102            ; p'
        v_mul_u32_u24 v102, 43, v100
        v_lshrrev_b32 v102, 8, v102           ; section
        v_mul_u32_u24 v103, 6, v102
        v_sub_u32 v103, v100, v103            ; w
        v_add_u32 v102, 1, v102
        v_cmp_eq_u32 vcc, 3, v102
        v_cndmask_b32 v102, v102, 0, vcc
        v_mul_u32_u24 v102, v107, v102
        v_mul_u32_u24 v104, 3456, v101
        v_lshl_add_u32 v104, v103, 4, v104
        v_add3_u32 v104, v104, v102, s65
        v_cmp_gt_u32 vcc, 18, v100
        v_cndmask_b32 v{q}, v106, v104, vcc
        """.format(q=vDQ + e))
    srd(S, 4, 10, 11, 2048 * 4096)
    vHW = 26; vH0 = 27
    QH = Stream()
    QH('v_and_b32 v108, 7, v1')
    QH('''
    s_mov_b32 s78, 0x%x
    s_mov_b32 s79, 0x%x
    v_mov_b32 v%d, 0x%x
    s_lshl_b32 s8, s2, 15
    s_lshl_b32 s9, s51, 11
    s_add_u32 s8, s8, s9
    v_lshlrev_b32 v8, 7, v1
    s_lshl_b32 s98, s51, 2
    v_lshrrev_b32 v100, 4, v1
    v_add_u32 v100, s98, v100            ; halo row i
    v_and_b32 v103, 3, v1
    v_xor_b32 v102, v100, v103
    v_lshl_add_u32 v102, v103, 4, v102
    v_lshlrev_b32 v102, 4, v102
    v_bfe_u32 v104, v1, 2, 2
    v_lshl_add_u32 v102, v104, 10, v102
    v_add_u32 v%d, %d, v102
    s_lshl_b32 s98, s48, 7
    s_sub_u32 s98, s98, 16
    v_add_u32 v100, s98, v100
    s_movk_i32 s98, 1152
    v_mul_lo_u32 v100, v100, s98
    v_lshl_add_u32 v100, v108, 4, v100
    v_bfe_u32 v101, v1, 3, 1
    v_add_u32 v101, s%d, v101
    ''' % (fbits(C1), fbits(SCL), vC2, fbits(C2), vHW, XH_OFF, sBLK))
    for t in range(5):
        QH('v_add_u32 v102, %d, v101' % (2 * t))
        QH('v_subrev_u32 v103, 9, v102')
        QH('v_min_u32 v102, v102, v103')
        QH('v_lshl_add_u32 v%d, v102, 7, v100' % (vH0 + t))
    QH('''
    v_and_b32 v103, 15, v1
    v_cmp_gt_u32 vcc, 8, v103
    v_cndmask_b32 v%d, v106, v%d, vcc
    ''' % (vH0 + 4, vH0 + 4))
    for t in range(5):
        QH('buffer_load_dwordx4 %s, v%d, s[16:19], 0 offen' % (q4(HL + 4 * t), vH0 + t))
    if stamp: stamp_mid(S, 86)
    layernorm(S, [3], mid=wdma(0), mid2=wdma(1))
    for j in range(NR1, 9): norm4(S, ln(0, j), ST, ST + 6)
    t2_addr(S)
    S.need('W0')
    S('s_barrier')
    if stamp: stamp_mid(S, 88)
    q1 = list(QH) + list(Q0) + list(ln_halo(vHW))
    q2 = list(epi_z2())
    V2.S1 = 136; V2.QB_OFF = QB_OFF; V2.VOFF = 72; V2.QOFF = 144
    q3 = list(V2.attention(1))
    B = OPT.get('budget', 64)
    if OPT.get('noside'):
        q1 = []; q2 = q2[-1:]; q3 = []
    pub_step = None
    for n in range(27):
        if n > 0:
            toks = ['W%d' % n]
            if n == 1: toks.append('T2')
            if n == 9: toks.append('XH')
            if pub_step is not None and n == pub_step + 2: toks += ['PUB', 'ZB']
            if OPT.get('trace'):
                S('s_memtime s[96:97]\ns_waitcnt lgkmcnt(0)\ns_sub_u32 s96, s96, s84\nv_writelane_b32 v254, s96, %d' % n)
            S.need(*toks)
            if OPT.get('trace'):
                S('s_memtime s[96:97]\ns_waitcnt lgkmcnt(0)\ns_sub_u32 s96, s96, s84\nv_writelane_b32 v254, s96, %d' % (n + 32))
            S('s_barrier')
            if OPT.get('trace'):
                S('s_memtime s[96:97]\ns_waitcnt lgkmcnt(0)\ns_sub_u32 s96, s96, s84\nv_writelane_b32 v255, s96, %d' % n)
            if pub_step is not None and n == pub_step + 2: S.append('ATOMIC')
        if stamp and n in (9, 18): stamp_mid(S, 88 + 2 * (n // 9))
        mem = []
        if n + 2 < 27 and not OPT.get('nodma'):
            w = list(wdma(n + 2))
            mem = [w[:-8]] + [w[-8 + 2 * k:len(w) - 6 + 2 * k] for k in range(4)]
            assert sum(len(x) for x in mem) == len(w)
        if n in (2, 4, 6, 9) and not OPT.get('nopf'):
            mem.append(G('''s_mov_b32 m0, %d
            s_mov_b64 exec, 0xffff
            buffer_load_dword v8, s[4:7], s8 offen lds
            s_mov_b64 exec, -1
            s_add_u32 s8, s8, 8192''' % SB_OFF))
        work = []
        if n == 0: work += list(t2_writes([3]))
        if n == 18: work += G('s_lshl_b32 s9, s48, 4\nv_mov_b32 v6, 0')
        if n == 26: work += poll_issue(3, 2)
        def drain(q, budget):
            while q and budget > 0:
                x = q.pop(0); budget -= wt(x); work.append(x)
            return budget
        budget = B
        if 0 <= n <= 8: drain(q1, OPT.get('b1', 46) if n < 8 else 1e9)
        if n >= 10 and q2:
            budget = drain(q2, budget)
            if not q2: pub_step = max(n, 17)
        elif n >= 19: drain(q3, OPT.get('abudget', 36))
        tot = sum(wt(x) for x in work); acc_ = 0.0; k = 0
        for x in work:
            while k < len(mem) and acc_ >= tot * k / (len(mem) + OPT.get('dmaslack', 1)):
                S.extend(mem[k]); k += 1
            S.append(x); acc_ += wt(x)
        while k < len(mem):
            S.extend(mem[k]); k += 1
    late = pub_step is None or pub_step + 2 > 26
    assert late == bool(OPT.get('late')), (pub_step, 'set late option accordingly')
    if late:
        S.extend(q2)
        S.need('ZB')
        h = len(q3) // 2
        S.extend(q3[:h]); q3 = q3[h:]
        S.need('PUB')
        S('s_barrier')
        S.append('ATOMIC')
    if stamp: stamp_mid(S, 94)
    poll(S, 'H', 3, 2)
    n2a, n2b = norm_z2(range(NZC, 9))
    S.extend(n2a)
    S.extend(q3)
    S.extend(n2b)
    if stamp:
        stamp_mid(S, 96)
        S('s_waitcnt vmcnt(0)')
        stamp_mid(S, 70)
        stamp_store(S, 84, [86, 88, 90, 92, 94, 96, 70 if not OPT.get('ptrace') else 66], 14, 0, 72, 12, wave_s=50)
    if OPT.get('trace'):
        S('''s_lshl_b32 s75, s2, 11
        s_lshl_b32 s74, s51, 9
        s_add_u32 s75, s75, s74
        s_add_u32 s75, s75, 0x80000
        v_lshlrev_b32 v12, 2, v1
        buffer_store_dword v254, v12, s[76:79], s75 offen
        buffer_store_dword v255, v12, s[76:79], s75 offen offset:256''')
    S('K1_END:')
    S('s_endpgm')
    print('k1 helper: pub_step', pub_step, 'att left', sum(wt(x) for x in q3))
    return S

def poll_issue(vr, va):
    return G('s_lshl_b32 s9, s48, 4\nv_mov_b32 v%d, 0' % va) + G('buffer_load_dword v%d, v%d, s[44:47], s9 offen sc0 sc1' % (vr, va))
def poll(S, tag, vr=7, va=6):
    S('v_readfirstlane_b32 s11, v%d' % vr)
    S('s_mov_b32 s10, 0')
    S('s_cmp_ge_u32 s11, 16')
    S('s_cbranch_scc1 K1_NOPOLL%s' % tag)
    S.append(('KEEPQ', 0))
    S("""
    K1_POLL%s:
    s_sleep 8
    buffer_load_dword v7, v6, s[44:47], s9 offen sc0 sc1
    s_waitcnt vmcnt(0)
    v_readfirstlane_b32 s11, v7
    s_add_u32 s10, s10, 1
    s_cmp_ge_u32 s11, 16
    s_cbranch_scc1 K1_NOPOLL%s
    s_cmp_lt_u32 s10, 0x20000
    s_cbranch_scc1 K1_POLL%s
    K1_NOPOLL%s:
    """.replace('v7', 'v%d' % vr).replace('v6', 'v%d' % va) % (tag, tag, tag, tag))
    S.append(('KEEPQ', 1))

def ln_halo(vHW):
    A = Stream()
    h0 = ST + 4; t = ST + 6
    for k in range(20):
        r = HL + k; tt = t + 2 * (k & 1)
        A('v_lshlrev_b32 v%d, 16, v%d' % (tt, r))
        A('v_and_b32 v%d, 0xffff0000, v%d' % (tt + 1, r))
        if k == 0:
            A('v_add_f32 v%d, v%d, v%d' % (h0, tt, tt + 1))
            A('v_mul_f32 v%d, v%d, v%d' % (h0 + 1, tt, tt))
        else:
            A('v_add_f32 v%d, v%d, v%d' % (h0, h0, tt))
            A('v_fmac_f32 v%d, v%d, v%d' % (h0 + 1, tt, tt))
            A('v_add_f32 v%d, v%d, v%d' % (h0, h0, tt + 1))
        A('v_fmac_f32 v%d, v%d, v%d' % (h0 + 1, tt + 1, tt + 1))
    for m in ('quad_perm:[1,0,3,2]', 'quad_perm:[2,3,0,1]', 'row_half_mirror', 'row_mirror'):
        for r in (h0, h0 + 1):
            A('v_add_f32_dpp v%d, v%d, v%d %s row_mask:0xf bank_mask:0xf' % (r, r, r, m))
    rowstats(A, h0, ST + 6, 's83')
    for t in range(5):
        norm4(A, HL + 4 * t, h0, ST + 6)
        g = Stream()
        if t == 4:
            g('s_mov_b32 exec_lo, 0x00ff00ff')
            g('s_mov_b32 exec_hi, 0x00ff00ff')
        g('ds_write_b128 v%d, %s offset:%d' % (vHW, q4(HL + 4 * t), t * 4096), tok_w=['XH'])
        if t == 4: g('s_mov_b64 exec, -1')
        A.append(list(g))
    return A

def epi_z2():
    E = Stream()
    PK = 60
    def pk(c, b): return PK + b * 20 + 2 * c
    E.append(G("""
    v_and_b32 v10, 15, v1
    v_lshlrev_b32 v11, 3, v10
    s_lshl_b32 s98, s51, 5
    v_add_u32 v10, s98, v10
    v_mul_u32_u24 v10, %d, v10
    v_lshrrev_b32 v12, 4, v1
    v_lshlrev_b32 v12, 3, v12
    s_mov_b32 s98, %d
    v_add3_u32 v10, v10, v12, s98
    """ % (ZP, ZB_OFF)))
    order = [(c, b) for b in range(2) for c in range(9)]
    for c, b in order:
        E('ds_read_b64 v[%d:%d], v10 offset:%d' % (pk(c, b), pk(c, b) + 1, 16 * b * ZP + 32 * c))
    for b in range(2):
        E('v_mov_b32 v%d, 0' % (pk(9, b)))
        E('v_mov_b32 v%d, 0' % (pk(9, b) + 1))
    for k in range(4): E('v_mov_b32 v%d, s82' % (132 + k))
    pend = None
    for k, (c, b) in enumerate(order):
        x = 100 + 8 * (k & 1); p = pk(c, b)
        E('v_lshlrev_b32 v%d, 16, v%d' % (x, p))
        E('v_and_b32 v%d, 0xffff0000, v%d' % (x + 1, p))
        E('v_lshlrev_b32 v%d, 16, v%d' % (x + 2, p + 1))
        E('v_and_b32 v%d, 0xffff0000, v%d' % (x + 3, p + 1))
        gelu4(E, x, x + 4)
        E('v_cvt_pk_bf16_f32 v%d, v%d, v%d' % (p, x, x + 1))
        E('v_cvt_pk_bf16_f32 v%d, v%d, v%d' % (p + 1, x + 2, x + 3))
        E('ds_write_b64 v10, v[%d:%d] offset:%d' % (p, p + 1, 16 * b * ZP + 32 * c), tok_w=['ZB'])
    D1 = [116, 120]; D2 = [124, 128]
    for c in range(0, 9, 2):
        for b in range(2):
            p = q4(pk(c, b))
            E('v_mfma_f32_16x16x32_bf16 %s, v[132:135], %s, %s' % (q4(D1[b]), p, '0' if c == 0 else q4(D1[b])))
            E('v_mfma_f32_16x16x32_bf16 %s, %s, %s, %s' % (q4(D2[b]), p, p, '0' if c == 0 else q4(D2[b])))
    g = G(setm('vcc', m64(lambda i, g: i & 1)))
    for b in range(2):
        g += G('v_cndmask_b32 v%d, v%d, v%d, vcc' % (D2[b], D2[b], D2[b] + 1))
        g += G('v_cndmask_b32 v%d, v%d, v%d, vcc' % (D2[b] + 2, D2[b] + 2, D2[b] + 3))
    g += G(setm('vcc', m64(lambda i, g: i & 2)))
    for b in range(2):
        g += G('v_cndmask_b32 v%d, v%d, v%d, vcc' % (D1[b] + 1, D2[b], D2[b] + 2))
    g += G("""
    s_lshl_b32 s99, s48, 4
    s_add_u32 s99, s99, s49
    s_lshl_b32 s99, s99, 10
    s_lshl_b32 s98, s51, 8
    s_add_u32 s99, s99, s98
    """) + G(setm('exec', m64(lambda i, g: g == i >> 2)))
    for b in range(2):
        g += G('buffer_store_dwordx2 v[%d:%d], v11, s[40:43], s99 offen offset:%d sc0 sc1' % (D1[b], D1[b] + 1, 128 * b), tok_w=['PUB'])
    g += G('s_mov_b64 exec, -1')
    E.append(g)
    return E

NZC = 4
def norm_z2(tiles):
    S = Stream()
    pl = 176; zf = 208; tb = 244; a0 = 248
    S("""
    v_lshrrev_b32 v%d, 4, v1
    v_lshlrev_b32 v%d, 12, v%d
    v_and_b32 v%d, 15, v1
    v_lshl_add_u32 v%d, v%d, 4, v%d
    s_lshl_b32 s9, s48, 14
    s_lshl_b32 s10, s51, 8
    s_add_u32 s9, s9, s10
    """ % (a0, a0, a0, a0 + 1, a0, a0 + 1, a0))
    for k in range(4):
        S('buffer_load_dwordx4 %s, v%d, s[40:43], s9 offen offset:%d sc0 sc1' % (q4(pl + 4 * k), a0, k * 1024))
    S("""
    v_lshrrev_b32 v{z}, 4, v1
    v_lshlrev_b32 v{r}, 6, v{z}
    v_lshlrev_b32 v{z}, 3, v{z}
    v_bfe_u32 v{t}, v1, 2, 2
    v_add_u32 v{z}, v{z}, v{t}
    s_lshl_b32 s9, s51, 5
    v_add_u32 v{z}, s9, v{z}
    v_mul_u32_u24 v{z}, {ZP}, v{z}
    v_and_b32 v{t}, 3, v1
    v_lshl_add_u32 v{z}, v{t}, 3, v{z}
    v_add_u32 v{z}, {ZB}, v{z}
    """.format(z=a0 + 2, r=a0 + 3, t=tb, ZP=ZP, ZB=ZB_OFF))
    S.need('ZB')
    for c in tiles:
        for hh in range(2):
            S('ds_read_b64_tr_b16 v[%d:%d], v%d offset:%d' % (zf + 4 * c + 2 * hh, zf + 4 * c + 2 * hh + 1, a0 + 2, hh * 4 * ZP + 32 * c))
    S("""
    s_lshl_b32 s9, s50, 8
    s_add_u32 s9, s9, {SB}
    v_lshlrev_b32 v{w}, 4, v{w}
    v_add_u32 v{w}, s9, v{w}
    v_add_u32 v{r}, s9, v{r}
    v_lshlrev_b32 v{p}, 4, v1
    v_xor_b32 v{p1}, 64, v{p}
    s_lshl_b32 s12, s49, 6
    s_lshl_b32 s13, s48, 2
    s_add_u32 s12, s12, s13
    s_add_u32 s12, s12, s51
    s_mul_i32 s12, s12, 9216
    s_add_u32 s13, s12, 4096
    s_add_u32 s10, s12, 8192
    s_mov_b32 s11, 0x{inv:x}
    """.format(SB=SB_OFF, w=a0 + 1, r=a0 + 3, p=a0 + 4, p1=a0 + 5, inv=fbits(1.0 / 2304)))
    A = S
    S = Stream()
    for k in range(2):
        for e in range(4): S('v_add_f32 v%d, v%d, v%d' % (pl + 4 * k + e, pl + 4 * k + e, pl + 8 + 4 * k + e))
    for e in range(4): S('v_add_f32 v%d, v%d, v%d' % (pl + e, pl + e, pl + 4 + e))
    for sw in ('v_permlane16_swap_b32', 'v_permlane32_swap_b32'):
        for k in range(4): S('v_mov_b32 v%d, v%d' % (pl + 4 + k, pl + k))
        for k in range(4): S('%s v%d, v%d' % (sw, pl + k, pl + 4 + k))
        for k in range(4): S('v_add_f32 v%d, v%d, v%d' % (pl + k, pl + k, pl + 4 + k))
    for r in (pl, pl + 2): rowstats(S, r, tb, 's11')
    S('ds_write_b128 v%d, %s' % (a0 + 1, q4(pl)), tok_w=['SB'])
    S.need('SB')
    sr = pl + 16
    for k in range(4): S('ds_read_b128 %s, v%d offset:%d' % (q4(sr + 4 * k), a0 + 3, 16 * k))
    for c in tiles:
        for d in range(4):
            r = zf + 4 * c + d
            t = tb + 2 * (d & 1)
            S('v_lshlrev_b32 v%d, 16, v%d' % (t, r))
            S('v_and_b32 v%d, 0xffff0000, v%d' % (t + 1, r))
            S('v_fma_f32 v%d, v%d, v%d, v%d' % (t, t, sr + 4 * d, sr + 4 * d + 1))
            S('v_fma_f32 v%d, v%d, v%d, v%d' % (t + 1, t + 1, sr + 4 * d + 2, sr + 4 * d + 3))
            S('v_cvt_pk_bf16_f32 v%d, v%d, v%d' % (r, t, t + 1))
        S('buffer_store_dwordx4 %s, v%d, s[36:39], s%d offen offset:%d' % (q4(zf + 4 * c), a0 + 5 if c & 1 else a0 + 4, (12, 13, 10)[c >> 2], (c & 3) * 1024))
    return A, S
```

```python
from common import *
from k1_v2 import fbits, gelu4, C1, C2, q4

ZST = 4 * 34816
K2_LDS = ZST + 6 * 4096
def epi_offsets(S):
    S('''
    s_lshl_b32 s46, s32, 3
    s_lshl_b32 s47, s34, 1
    s_add_u32 s46, s46, s47          ; tt0
    s_mul_i32 s47, s33, 9
    s_add_u32 s47, s47, s48
    s_lshr_b32 s47, s47, 1           ; ff0
    s_mul_i32 s51, s46, 72
    s_add_u32 s51, s51, s47
    s_lshl_b32 s51, s51, 10
    s_add_u32 s52, s51, 73728        ; b=1
    s_mul_i32 s53, s46, 90
    s_add_u32 s53, s53, s47
    s_add_u32 s53, s53, 18
    s_lshl_b32 s53, s53, 10
    s_add_u32 s54, s53, 92160
    s_cmp_eq_u32 s48, 0
    s_cselect_b32 s46, 4608, 0
    s_sub_u32 s46, s46, 512
    s_add_u32 s55, s51, s46
    s_add_u32 s56, s52, s46
    s_add_u32 s57, s53, s46
    s_add_u32 s58, s54, s46
    ''')

def gen_k2(stamp=False, rot=True, nodma=False, nomfma=False, noread=False, same=0, nobar=False, prio=0, xmap='48', onewait=True, D=1, gstart=2, gend=30, pf=True, gelu=True, zstart=29, zl0=0, gq=13):
    F = Finisher()
    S = Stream()
    ACC = 8; FS = (80, 124); Z1 = 168
    vW = (204, 205, 206, 207); vZ = 208; vB0 = 209; vB1 = 210; vA0 = 211; vA1 = 212; vAs = 213; vP = 214; vS = 215
    SLOT = 34816
    ZLD = [zl0 + 3 * k for k in range(9)]
    def acc(a, b): r = ACC + (a * 2 + b) * 4; return 'v[%d:%d]' % (r, r + 3)
    def fB(s, b): r = FS[s] + b * 4; return 'v[%d:%d]' % (r, r + 3)
    def fA(s, a): r = FS[s] + 8 + a * 4; return 'v[%d:%d]' % (r, r + 3)
    def bar(X):
        if not nobar: X('s_barrier')
    S('''
    s_load_dwordx4 s[4:7], s[0:1], 40
    s_load_dwordx2 s[8:9], s[0:1], 80
    s_cmp_ge_u32 s2, 256
    s_cbranch_scc1 K2_END
    ''')
    if stamp: stamp_begin(S, 60)
    S('''
    v_lshrrev_b32 v1, 6, v0
    v_and_b32 v2, 63, v0
    v_readfirstlane_b32 s62, v1
    s_and_b32 s43, s2, 7
    s_lshr_b32 s46, s2, 3
    ''')
    if xmap == '48':
        S('''
        s_lshr_b32 s32, s43, 1
        s_lshl_b32 s32, s32, 2
        s_and_b32 s47, s46, 3
        s_add_u32 s32, s32, s47
        s_and_b32 s33, s43, 1
        s_lshl_b32 s33, s33, 3
        s_lshr_b32 s46, s46, 2
        s_add_u32 s33, s33, s46
        ''')
    else:
        S('''
        s_and_b32 s32, s43, 1
        s_lshl_b32 s32, s32, 3
        s_and_b32 s47, s46, 7
        s_add_u32 s32, s32, s47
        s_lshr_b32 s33, s43, 1
        s_lshl_b32 s33, s33, 2
        s_lshr_b32 s46, s46, 3
        s_add_u32 s33, s33, s46
        ''')
    S('''
    s_add_u32 s35, s46, s47
    s_and_b32 s35, s35, %d
    v_and_b32 v3, 15, v2
    v_lshrrev_b32 v4, 4, v2
    v_lshlrev_b32 v%d, 4, v2
    s_and_b32 s48, s33, 1
    s_and_b32 s34, s62, 3
    s_lshl_b32 s49, s34, 12
    ''' % (3 if rot else 0, vP))
    if same == 1:
        S('s_and_b32 s32, s32, 1')
        S('s_and_b32 s33, s33, 1')
    S('s_cmp_lt_u32 s62, 4')
    S('s_cbranch_scc1 K2_CONS')
    S('''
    s_lshl_b32 s46, s32, 7
    s_lshl_b32 s47, s34, 5
    s_add_u32 s46, s46, s47
    v_lshrrev_b32 v5, 3, v2
    v_add_u32 v5, s46, v5
    v_lshlrev_b32 v5, 12, v5
    v_and_b32 v6, 7, v2
    v_xor_b32 v6, v6, v4
    v_lshlrev_b32 v6, 4, v6
    v_add_u32 v%d, v5, v6
    v_xor_b32 v7, 64, v%d
    v_add_u32 v%d, 0x%x, v7
    v_add_u32 v%d, 0x%x, v%d
    v_add_u32 v%d, 0x%x, v7
    s_mul_i32 s46, s33, 589824
    s_mul_i32 s47, s34, 4608
    s_add_u32 s46, s46, s47
    v_add_u32 v%d, s46, v%d
    s_add_u32 s50, s47, 16384
    s_mov_b32 s44, -1
    s_mov_b32 s45, 0
    s_mov_b32 s36, 0
    s_waitcnt lgkmcnt(0)
    ''' % (vW[0], vW[0], vW[1], 0x8000 - 1024, vW[2], 0x10000 - 2048, vW[0], vW[3], 0x18000 - 3072, vZ, vP))
    srd(S, 12, 4, 5, 2048 * 4096)
    srd(S, 16, 8, 9, Z2P_SZ, Z2P_OFF)
    def sigma(P, p, base):
        if p == 0 and rot:
            P('''s_add_u32 s43, s%d, s35
            s_add_u32 s43, s43, %d
            s_and_b32 s43, s43, 31''' % (base, 4 * D))
        else:
            P('''s_add_u32 s43, s35, %d
            s_and_b32 s43, s43, 3
            s_add_u32 s43, s43, s%d''' % (p, base))
    def half_a(P, p, base):
        sigma(P, p, base)
        P('s_lshl_b32 s37, s43, 7')
        P('s_add_u32 m0, s49, %d' % (p * SLOT))
        for q in range(4):
            if not nodma: P('buffer_load_dwordx4 v%d, s[12:15], s37 offen offset:%d lds' % (vW[q], q * 1024), tok_w=['P%d' % p])
    def half_b(P, p, base):
        sigma(P, p, base)
        P('s_mul_i32 s38, s43, 18432')
        P('s_add_u32 m0, s50, %d' % (p * SLOT))
        if not nodma:
            P('s_mov_b64 exec, s[44:45]')
            P('buffer_load_dwordx4 v%d, s[16:19], s38 offen lds' % vZ, tok_w=['P%d' % p])
            P('s_mov_b64 exec, -1')
            for q in range(4):
                P('buffer_load_dwordx4 v%d, s[16:19], s38 offen offset:%d lds' % (vZ, 512 + q * 1024), tok_w=['P%d' % p])
    for p in range(2):
        half_a(S, p, 36); half_b(S, p, 36)
    S.need('P0')
    bar(S)
    half_a(S, 2, 36); half_b(S, 2, 36); half_a(S, 3, 36)
    srd(S, 20, 8, 9, Z1P_SZ, Z1P_OFF)
    S2 = Stream(); epi_offsets(S2)
    for x in S2: S(x.text.replace('s51', 's64').replace('s52', 's65'))
    S("""
    s_lshl_b32 s66, s34, 10
    s_add_u32 s66, s66, %d
    v_and_b32 v5, 31, v2
    v_lshlrev_b32 v5, 4, v5
    v_lshrrev_b32 v6, 5, v2
    v_mul_u32_u24 v6, 73728, v6
    v_add_u32 v5, v5, v6
    """ % ZST)
    def piece(P, k):
        if nodma: return
        P('s_add_u32 m0, s66, %d' % ((k % 6) * 4096))
        if k < 8:
            P('s_add_u32 s67, s%d, %d' % (64 + (k >> 2), (k & 3) * 1024))
            P('buffer_load_dwordx4 v%d, s[20:23], s67 offen lds' % vP, tok_w=['Z%d' % k])
        else:
            P('buffer_load_dwordx4 v5, s[20:23], s55 offen lds', tok_w=['Z%d' % k])
    for m in range(8):
        issue = m < 7
        S('s_add_u32 s51, s36, 4')
        for p in range(4):
            n = 4 * m + p
            if n == 31: break
            toks = ['P%d' % ((p + 1) & 3)] + ['Z%d' % k for k in range(9) if ZLD[k] + 2 == n]
            S.need(*toks)
            bar(S)
            if p == 0:
                half_b(S, 3, 36)
                if issue: half_a(S, 0, 51)
            elif issue:
                half_b(S, p - 1, 51)
                half_a(S, p, 51)
            for k in range(9):
                if ZLD[k] == n: piece(S, k)
        S('s_mov_b32 s36, s51')
    S('K2_END:')
    S('s_endpgm')
    F.run(S)
    txt = F.text()
    F = Finisher()
    S = Stream()
    S('K2_CONS:')
    if prio: S('s_setprio %d' % prio)
    S('s_waitcnt lgkmcnt(0)')
    srd(S, 28, 6, 7, 4096)
    S('''
    s_lshl_b32 s46, s32, 8
    s_lshl_b32 s47, s34, 6
    s_add_u32 s46, s46, s47
    v_lshlrev_b32 v5, 1, v3
    buffer_load_ushort v216, v5, s[28:31], s46 offen
    buffer_load_ushort v217, v5, s[28:31], s46 offen offset:32
    ''')
    srd(S, 24, 8, 9, AP_SZ, AP_OFF)
    if pf:
        S('''s_load_dwordx2 s[16:17], s[0:1], 56
        s_load_dwordx2 s[12:13], s[0:1], 16
        s_mov_b32 s18, %d
        s_mov_b32 s19, 0x00020000
        s_mov_b32 s14, %d
        s_mov_b32 s15, 0x00020000''' % (2304 * 1152, 576 * 1152))
    S('''
    v_lshrrev_b32 v5, 1, v3
    v_xor_b32 v5, v5, v4
    v_lshlrev_b32 v5, 4, v5
    v_lshlrev_b32 v6, 7, v3
    v_add3_u32 v%d, v5, v6, s49
    v_xor_b32 v%d, 64, v%d
    ''' % (vB0, vB1, vB0))
    S('''
    v_lshrrev_b32 v5, 3, v3
    v_add_u32 v5, s48, v5            ; o + (i>>3)
    v_and_b32 v6, 1, v5
    v_lshlrev_b32 v6, 2, v6          ; 4*(T&1)
    v_and_b32 v7, 3, v3
    v_bfe_u32 v1, v3, 2, 1
    v_lshl_add_u32 v7, v1, 3, v7     ; 8*((i>>2)&1) + (i&3)
    v_xor_b32 v7, v7, v6
    v_lshl_add_u32 v7, v4, 4, v7     ; + g*16
    v_lshlrev_b32 v7, 4, v7
    v_lshl_add_u32 v7, v5, 10, v7
    v_add_u32 v%d, 16384, v7
    v_xor_b32 v%d, 64, v%d
    s_cmp_eq_u32 s48, 0
    s_cselect_b32 s46, %d, 0
    s_add_u32 s46, s46, 16384
    v_add_u32 v%d, s46, v%d
    v_lshrrev_b32 v5, 1, v4
    v_lshlrev_b32 v5, 8, v5
    v_lshl_add_u32 v5, v3, 4, v5
    v_and_b32 v6, 1, v4
    v_lshl_add_u32 v%d, v6, 3, v5
    ''' % (vA0, vA1, vA0, 8192, vAs, vP, vS))
    epi_offsets(S)
    S('v_lshlrev_b32 v216, 16, v216')
    S('v_lshlrev_b32 v217, 16, v217')
    for a in range(9):
        for b in range(2):
            for r in range(4):
                S('v_mov_b32 v%d, v%d' % (ACC + (a * 2 + b) * 4 + r, 216 + b))
    HI = 224
    for k, r in enumerate((vB0, vB1, vA0, vA1, vAs)): S('v_add_u32 v%d, %d, v%d' % (HI + k, 2 * SLOT, r))
    S('s_mov_b32 s78, 0x%x' % fbits(C1))
    S('v_mov_b32 v7, 0x%x' % fbits(C2))
    def reads(s, h, n):
        g = []
        hi = (n & 3) >> 1; so = (n & 1) * SLOT
        R = lambda r: r if not hi else HI + (vB0, vB1, vA0, vA1, vAs).index(r)
        vB = vB1 if h else vB0
        for b in range(2):
            g.append(I('ds_read_b128 %s, v%d offset:%d' % (fB(s, b), R(vB), so + b * 2048)))
        for a in range(9):
            if a < 8:
                g.append(I('ds_read_b128 %s, v%d offset:%d' % (fA(s, a), R(vA1 if a & 1 else vA0), so + h * 9216 + (a >> 1) * 2048)))
            else:
                g.append(I('ds_read_b128 %s, v%d offset:%d' % (fA(s, a), R(vAs), so + h * 9216)))
        if noread: g = []
        return g
    def mfmas(s):
        m = Stream()
        for a in range(9):
            for b in range(2):
                m('v_mfma_f32_16x16x32_bf16 %s, %s, %s, %s' % (acc(a, b), fA(s, a), fB(s, b), acc(a, b)))
        return m
    if stamp: stamp_mid(S, 72)
    bar(S)
    if stamp:
        stamp_mid(S, 74); S('s_waitcnt lgkmcnt(0)')
    S.extend(reads(0, 0, 0))
    zl = Stream()
    if pf:
        zl.append(G("""s_mul_i32 s46, s2, 10368
        s_mul_i32 s47, s34, 2688
        s_add_u32 s46, s46, s47
        s_mov_b64 exec, 0x1fffff
        buffer_load_dword v218, v6, s[16:19], s46 offen
        s_mov_b64 exec, -1"""))
        zl.append(G("""s_mul_i32 s46, s2, 2688
        s_mul_i32 s47, s34, 768
        s_add_u32 s46, s46, s47
        s_mov_b64 exec, 0x3f
        buffer_load_dword v219, v6, s[12:15], s46 offen
        s_mov_b64 exec, -1"""))
        S('v_lshlrev_b32 v6, 7, v2')
    S('''s_lshl_b32 s46, s34, 10
    s_add_u32 s46, s46, %d
    v_add_u32 v229, s46, v%d
    v_add_u32 v230, s46, v%d''' % (ZST, vP, vS))
    zr = {}
    for k in range(8): zr[ZLD[k] + 2] = [I('ds_read_b128 %s, v229 offset:%d' % (q4(Z1 + 4 * k), (k % 6) * 4096))]
    zr[ZLD[8] + 2] = [G('ds_read_b64 v[%d:%d], v230 offset:%d\nds_read_b64 v[%d:%d], v230 offset:%d' % (Z1 + 32, Z1 + 33, 2 * 4096, Z1 + 34, Z1 + 35, 2 * 4096 + 512))]
    gw = []
    for k in range(18 if gelu else 0):
        g = Stream()
        p = Z1 + 2 * k; x = 232 + 8 * (k & 1)
        g('v_lshlrev_b32 v%d, 16, v%d' % (x, p))
        g('v_and_b32 v%d, 0xffff0000, v%d' % (x + 1, p))
        g('v_lshlrev_b32 v%d, 16, v%d' % (x + 2, p + 1))
        g('v_and_b32 v%d, 0xffff0000, v%d' % (x + 3, p + 1))
        gelu4(g, x, x + 4, c2=7)
        g('v_cvt_pk_bf16_f32 v%d, v%d, v%d' % (p, x, x + 1))
        g('v_cvt_pk_bf16_f32 v%d, v%d, v%d' % (p + 1, x + 2, x + 3))
        gw += [(ZLD[k // 2] + 3, x) for x in g]
    quota = gq
    def half(B, ms, rds, n, mem):
        left = quota if n >= gstart else 0
        for k, m in enumerate(ms):
            B.append(m)
            room = 2
            if rds: B.append(rds.pop(0)); room = 1
            elif mem:
                x = mem.pop(0); room = 1
                if isinstance(x, list): B.extend(x)
                else: B.append(x)
            while gw and left > 0 and room > 0 and k < 17 and gw[0][0] <= n:
                need = 2 if gw[0][1].kind == 'trans' else 1
                if need > room: break
                B.append(gw.pop(0)[1]); room -= need; left -= 1
    for n in range(32):
        S('s_waitcnt lgkmcnt(0)')
        half(S, mfmas(0), reads(1, 1, n), n, zl if n >= zstart else None)
        if n < 31:
            S('s_waitcnt lgkmcnt(0)')
            bar(S)
        half(S, mfmas(1), reads(0, 0, n + 1) if n < 31 else [], n, zr.get(n) or (zl if n >= zstart else None))
    assert not gw and not zl, (len(gw), len(zl))
    F.run(S)
    E = Stream()
    if stamp: stamp_mid(E, 76)
    t0 = 216
    for b in range(2):
        for p in range(5):
            nd = 4 if p < 4 else 2
            zr = Z1 + (b * 4 + p) * 4 if p < 4 else Z1 + 32 + b * 2
            for d in range(nd):
                a = 2 * p + (d >> 1)
                ar = ACC + (a * 2 + b) * 4 + (d & 1) * 2
                t = 220 + (d & 1) * 2
                E('v_lshlrev_b32 v%d, 16, v%d' % (t, zr + d))
                E('v_and_b32 v%d, 0xffff0000, v%d' % (t + 1, zr + d))
                E('v_pk_mul_f32 v[%d:%d], v[%d:%d], v[%d:%d]' % (t, t + 1, t, t + 1, ar, ar + 1))
                E('v_cvt_pk_bf16_f32 v%d, v%d, v%d' % (zr + d, t, t + 1))
            if p < 4:
                E('buffer_store_dwordx4 v[%d:%d], v%d, s[24:27], s%d offen offset:%d' % (zr, zr + 3, vP, 53 + b, p * 1024))
            else:
                E('buffer_store_dwordx2 v[%d:%d], v%d, s[24:27], s%d offen' % (zr, zr + 1, vS, 57 + b))
    if stamp:
        stamp_mid(E, 78)
        E('s_waitcnt vmcnt(0)')
        stamp_mid(E, 80)
        stamp_store(E, 60, [72, 74, 76, 78, 80], 8, 1, 64, 216)
    E('s_endpgm')
    F.run(E)
    return txt + F.text(), 248
```

```python
import sys
from build import *
HDR = open('parallel_sum__sliding_local_dilated__mixer_gmlp__prompt.s.ref').read().split('; Override launch')[0]
def make(path, stamp=False, k1={}, k2={}, k3={}):
    t1, v1 = gen_k1(stamp=stamp, **k1)
    t2, v2 = gen_k2(stamp=stamp, **k2)
    t3, v3 = gen_k3(stamp=stamp, **k3)
    assemble_file(path, [('k1_kernel', t1, v1, 256, 512, K1_LDS), ('k2_kernel', t2, v2, 256, 512, K2_LDS), ('k3_kernel', t3, v3, 234, 256, K3_LDS)])
    s = open(path).read()
    open(path, 'w').write(HDR + s)
if __name__ == '__main__':
    K1 = dict(budget=72)
    make('parallel_sum__sliding_local_dilated__mixer_gmlp__prompt.s', k1=K1, k2=dict(prio=1, rot=False, xmap='84'))
    make('full_st.s', stamp=True, k1=K1, k2=dict(prio=1, rot=False, xmap='84'))
    make('full_st_b.s', stamp=True, k1=K1, k2=dict(rot=False, prio=1))
```

```python
import sys
from final import *
import build, k2_v1
def make2(path, g2, k1={}, k2={}, k3={}, lds2=None, stamp=False):
    t1, v1 = gen_k1(stamp=stamp, **k1)
    t2, v2 = g2(stamp=stamp, **k2)
    t3, v3 = gen_k3(stamp=stamp, **k3)
    assemble_file(path, [('k1_kernel', t1, v1, 256, 512, K1_LDS), ('k2_kernel', t2, v2, 256, 512, lds2 or K2_LDS), ('k3_kernel', t3, v3, 234, 256, K3_LDS)])
    s = open(path).read()
    open(path, 'w').write(HDR + s)
D = 'cdna_kernels/'
make2(D + 'va.s', k2_v1.gen_k2, k1=dict(budget=72, gelu1=1), k2=dict(prio=1, rot=False, xmap='84'), lds2=k2_v1.K2_LDS)
make2(D + 'vb.s', gen_k2, k1=dict(budget=72, nopf=1), k2=dict(prio=1, rot=False, xmap='84', pf=False))
make2(D + 'vc.s', gen_k2, k1=dict(budget=72), k2=dict(prio=1, rot=True, xmap='84'))
```

```python
import sys
from common import *
from k2 import gen_k2, K2_LDS
from k3 import gen_k3, K3_LDS
from k1 import gen_k1, K1_LDS
def assemble_file(path, kernels):
    o = []
    for name, text, vg, grid, block, lds in kernels:
        o.append('; @launch kernel=%s grid=(%d,1,1) block=(%d,1,1) lds=%d' % (name, grid, block, lds))
    o.append('.amdgcn_target "amdgcn-amd-amdhsa--gfx950"')
    for name, text, vg, grid, block, lds in kernels:
        o.append(kernel_text(name, text, vg))
    o.append('TEXT_END:\n    s_endpgm')
    o.append('.section .rodata,"a"')
    if any('K1_TAB' in k[1] for k in kernels):
        import k1 as _k1
        o.append(_k1.table_text())
    for name, text, vg, grid, block, lds in kernels:
        o.append(descriptor(name, vg, 102))
    open(path, 'w').write('\n'.join(o))
if __name__ == '__main__':
    for nm, kw in (('_a', dict(budget=66, nc=4, zzq=1, wt=0)), ('_b', dict(budget=66, nc=4, zzq=1, slp=24)), ('_c', dict(budget=66, nc=4, zzq=1, wt=0, trace=1)), ('_d', dict(budget=66, nc=4, zzq=1, trace=1))):
        t, vg = gen_k1(stamp=True, **kw)
        assemble_file('k1%s.s' % nm, [('k1_kernel', t, vg, 256, 512, K1_LDS)])
```

```python
from asmlib import *
Z1P_OFF = 0x0;        Z1P_SZ = 128 * 72 * 1024
Z2P_OFF = 0x900000;   Z2P_SZ = 16 * 64 * 9 * 1024
AP_OFF  = 0x1200000;  AP_SZ  = 128 * 90 * 1024
ST_OFF  = 0x1D40000;  ST_SZ  = 16 * 16 * 2 * 128 * 8
CN_OFF  = 0x1DC0000;  CN_SZ = 4096; FL_OFF = 0x1DC2000; FL_SZ = 65536
QK_OFF  = 0x2200000;  QK_SZ = 16 * 576 * 288
TS_OFF  = 0x2000000

def srd(S, d, lo, hi, size, off=0):
    if off:
        S('s_add_u32 s%d, s%d, 0x%x' % (d, lo, off))
        S('s_addc_u32 s%d, s%d, 0' % (d + 1, hi))
    else:
        S('s_mov_b32 s%d, s%d' % (d, lo))
        S('s_mov_b32 s%d, s%d' % (d + 1, hi))
    S('s_mov_b32 s%d, 0x%x' % (d + 2, size))
    S('s_mov_b32 s%d, 0x00020000' % (d + 3))

def weave(mf, groups, first=0, last=None):
    out = Stream()
    n = len(mf) if last is None else last
    span = n - first
    k = 0
    for j, x in enumerate(mf):
        out.append(x)
        if first <= j < n:
            while k < len(groups) and (k + 1) * span <= (j - first + 1) * len(groups):
                out.extend(groups[k]); k += 1
    while k < len(groups):
        out.extend(groups[k]); k += 1
    return out

def G(text, **kw):
    s = Stream(); s(text, **kw); return list(s)

def stamp_begin(S, sreg):
    S('s_memtime s[%d:%d]' % (sreg, sreg + 1))
    S('s_memrealtime s[100:101]')
def stamp_end(S, sreg, ws_lo, slot, tmp_s, tmp_v, nwg_stride=64):
    S('s_memtime s[%d:%d]' % (tmp_s, tmp_s + 1))
    S('s_waitcnt lgkmcnt(0)')
    S('s_sub_u32 s%d, s%d, s%d' % (tmp_s + 2, tmp_s, sreg))
    srd(S, tmp_s + 4, ws_lo, ws_lo + 1, 0x100000, TS_OFF)
    S('s_lshl_b32 s%d, s2, 6' % (tmp_s + 3))
    S('s_add_u32 s%d, s%d, %d' % (tmp_s + 3, tmp_s + 3, slot * 65536))
    S('v_lshrrev_b32 v%d, 6, v0' % tmp_v)
    S('v_lshlrev_b32 v%d, 2, v%d' % (tmp_v, tmp_v))
    S('v_mov_b32 v%d, s%d' % (tmp_v + 1, tmp_s + 2))
    S('buffer_store_dword v%d, v%d, s[%d:%d], s%d offen' % (tmp_v + 1, tmp_v, tmp_s + 4, tmp_s + 7, tmp_s + 3))

def stamp_mid(S, sreg):
    S('s_memtime s[%d:%d]' % (sreg, sreg + 1))
def stamp_store(S, base, regs, ws_lo, slot, tmp_s, tmp_v, wave_s=None):
    S('s_memrealtime s[%d:%d]' % (tmp_s, tmp_s + 1))
    S('s_waitcnt lgkmcnt(0)')
    srd(S, tmp_s + 4, ws_lo, ws_lo + 1, 0x100000, TS_OFF)
    S('s_lshl_b32 s%d, s2, 8' % (tmp_s + 3))
    S('s_add_u32 s%d, s%d, %d' % (tmp_s + 3, tmp_s + 3, slot * 65536))
    if wave_s is None:
        S('v_lshrrev_b32 v%d, 6, v0' % tmp_v)
    else:
        S('v_mov_b32 v%d, s%d' % (tmp_v, wave_s))
    S('v_lshlrev_b32 v%d, 5, v%d' % (tmp_v, tmp_v))
    for k, r in enumerate(regs):
        S('s_sub_u32 s%d, s%d, s%d' % (tmp_s + 2, r, base))
        S('v_mov_b32 v%d, s%d' % (tmp_v + 1, tmp_s + 2))
        S('buffer_store_dword v%d, v%d, s[%d:%d], s%d offen offset:%d' % (tmp_v + 1, tmp_v, tmp_s + 4, tmp_s + 7, tmp_s + 3, 4 * k))
    S('s_add_u32 s%d, s%d, 0x40000' % (tmp_s + 3, tmp_s + 3))
    S('v_mov_b32 v%d, s100' % (tmp_v + 1))
    S('buffer_store_dword v%d, v%d, s[%d:%d], s%d offen' % (tmp_v + 1, tmp_v, tmp_s + 4, tmp_s + 7, tmp_s + 3))
    S('v_mov_b32 v%d, s%d' % (tmp_v + 1, tmp_s))
    S('buffer_store_dword v%d, v%d, s[%d:%d], s%d offen offset:4' % (tmp_v + 1, tmp_v, tmp_s + 4, tmp_s + 7, tmp_s + 3))
    S('s_getreg_b32 s%d, hwreg(HW_REG_XCC_ID)' % tmp_s)
    S('v_mov_b32 v%d, s%d' % (tmp_v + 1, tmp_s))
    S('buffer_store_dword v%d, v%d, s[%d:%d], s%d offen offset:8' % (tmp_v + 1, tmp_v, tmp_s + 4, tmp_s + 7, tmp_s + 3))

_cp = [0]
def code_prefetch(start, end, lane_v, va, vd, sa, lines, neg=False):
    _cp[0] += 1
    lab = 'CPF%d' % _cp[0]
    return G("""s_getpc_b64 s[{sa}:{sb}]
    {lab}:
    s_add_u32 s{sa}, s{sa}, {start}-{lab}
    s_addc_u32 s{sb}, s{sb}, {hi}
    s_lshr_b32 s{sc}, s2, 3
    s_mul_i32 s{sc}, s{sc}, {span}
    v_lshlrev_b32 v{va}, 7, v{lane}
    v_add_u32 v{va}, s{sc}, v{va}
    v_mov_b32 v{vd}, ({end}-{start})-4
    v_min_u32 v{va}, v{va}, v{vd}
    v_mov_b32 v{vb}, s{sb}
    v_add_co_u32 v{va}, vcc, s{sa}, v{va}
    v_addc_co_u32 v{vb}, vcc, 0, v{vb}, vcc
    s_mov_b64 exec, {mask}
    global_load_dword v{vd}, v[{va}:{vb}], off
    s_mov_b64 exec, -1""".format(sa=sa, sb=sa + 1, sc=sa + 2, lab=lab, start=start, end=end, span=lines * 128, va=va, vb=va + 1, vd=vd, lane=lane_v, mask=hex((1 << lines) - 1), hi=-1 if neg else 0))
```

```python
from common import *
import k1_v2 as V2
from k1_v2 import fbits, q4, gelu4, rowstats, dots, norm4, flatten, m64, setm, is_mem, C1, C2, SCL
SLOT = 20480
T1_OFF = 40960; T2_OFF = 81920; XH_OFF = 143360; ZB_OFF = 81920; QB_OFF = 119808; SB_OFF = 161792
K1_LDS = 163840
QP = 240; ZP = 296
XF = 112; ACC = 40; WFR = 16; NRING = 5
NR1 = 6; P1 = NR1 * 2048; P2 = (9 - NR1) * 2048
sBLK = 54
vT = 4; vC2 = 9
OPT = {}
assert all((i * 3277) >> 16 == i // 20 for i in range(1280)) and all((r * 43) >> 8 == r // 6 for r in range(18))
def xf(j, b): r = XF + (j * 2 + b) * 4; return 'v[%d:%d]' % (r, r + 3)
LN1 = 40; LN2 = XF + 16 * NR1; ST = 88
def ln(g, j): return (LN1 + (g * NR1 + j) * 4 if g < 2 else 16 + 4 * j) if j < NR1 else LN2 + (g * (9 - NR1) + j - NR1) * 4
PH = [('Z2', 9216, 4608), ('Q', 3456, 0), ('Z1', 9216, 0)]
vDZ = 16; vDQ = 21
def wt(x):
    if isinstance(x, str): return 1
    if isinstance(x, list): return sum(wt(y) for y in x)
    if x.kind in ('need', 'label'): return 0
    if x.kind in ('trans', 'mfma'): return 2
    if x.kind == 'salu': return 0.5
    return 1

def wdma(n):
    ph, j = divmod(n, 9)
    nm, pitch, add = PH[ph]
    P = Stream()
    P('s_mul_i32 s63, s%d, %d' % (sBLK + j, 64 * pitch))
    if add: P('s_add_u32 s63, s63, %d' % add)
    P('s_add_u32 s63, s63, s%d' % (65 if ph == 1 else 64))
    for e in range(5):
        P('s_add_u32 m0, s68, %d' % ((n & 3) * SLOT + e * 4096))
        P('buffer_load_dwordx4 v%d, s[%s], s63 offen lds' % ((vDQ if ph == 1 else vDZ) + e, '20:23' if ph == 1 else '24:27'), tok_w=['W%d' % n])
    return P

def head(S, stamp, xmap, rot):
    S('''
    s_load_dwordx4 s[4:7], s[0:1], 0
    s_load_dwordx2 s[8:9], s[0:1], 32
    s_load_dwordx4 s[12:15], s[0:1], 72
    s_load_dwordx2 s[10:11], s[0:1], 40
    s_cmp_ge_u32 s2, 256
    s_cbranch_scc1 K1_END
    ''')
    if stamp: stamp_begin(S, 84)
    S('''
    v_lshrrev_b32 v10, 6, v0
    v_and_b32 v1, 63, v0
    v_readfirstlane_b32 s50, v10
    s_and_b32 s63, s2, 7
    s_lshr_b32 s64, s2, 3
    ''')
    if xmap == '84':
        S('''
        s_and_b32 s48, s63, 1
        s_lshl_b32 s48, s48, 3
        s_and_b32 s65, s64, 7
        s_add_u32 s48, s48, s65
        s_lshr_b32 s49, s63, 1
        s_lshl_b32 s49, s49, 2
        s_lshr_b32 s64, s64, 3
        s_add_u32 s49, s49, s64
        s_lshl_b32 s64, s64, 1
        s_add_u32 s53, s64, s65
        ''')
    else:
        S('''
        s_lshr_b32 s48, s63, 1
        s_lshl_b32 s48, s48, 2
        s_and_b32 s65, s64, 3
        s_add_u32 s48, s48, s65
        s_and_b32 s49, s63, 1
        s_lshl_b32 s49, s49, 3
        s_lshr_b32 s64, s64, 2
        s_add_u32 s49, s49, s64
        s_lshl_b32 s65, s65, 1
        s_add_u32 s53, s64, s65
        ''')
    if not rot: S('s_mov_b32 s53, 0')
    S('''
    s_sub_u32 s64, s53, 9
    s_cmp_ge_u32 s53, 9
    s_cselect_b32 s%d, s64, s53
    s_and_b32 s51, s50, 3
    s_and_b32 s52, s49, 1
    s_lshl_b32 s63, s48, 7
    s_lshl_b32 s64, s51, 5
    s_add_u32 s63, s63, s64
    s_lshr_b32 s64, s50, 2
    s_mul_i32 s64, s64, 24
    s_add_u32 s63, s63, s64
    v_lshrrev_b32 v12, 3, v1
    v_and_b32 v13, 7, v1
    v_add_u32 v10, s63, v12
    v_mul_u32_u24 v10, 1152, v10
    v_lshl_add_u32 v10, v13, 4, v10
    v_add_u32 v11, 9216, v10
    v_add_u32 v14, 18432, v10
    ''' % sBLK)
    for j in range(1, 9):
        S('s_add_u32 s%d, s%d, 1' % (sBLK + j, sBLK + j - 1))
        S('s_cmp_eq_u32 s%d, 9' % (sBLK + j))
        S('s_cselect_b32 s%d, 0, s%d' % (sBLK + j, sBLK + j))
    for j in range(9): S('s_lshl_b32 s%d, s%d, 7' % (69 + j, sBLK + j))
    S('s_waitcnt lgkmcnt(0)')
    srd(S, 16, 4, 5, 2048 * 1152)
    S('s_cmp_ge_u32 s50, 4')
    S('s_cbranch_scc1 K1_HELP')

def xloads(S, gs):
    for g in gs:
        for j in range(9):
            S('buffer_load_dwordx4 %s, v%d, s[16:19], s%d offen' % (q4(ln(g, j)), (10, 11, 14)[g], 69 + j))
def common_setup(S):
    srd(S, 28, 14, 15, AP_SZ, AP_OFF)
    srd(S, 36, 14, 15, Z2P_SZ, Z2P_OFF)
    srd(S, 40, 14, 15, ST_SZ, ST_OFF)
    srd(S, 44, 12, 13, 256)
    S('s_mov_b32 s79, 0x%x' % fbits(SCL))
    S('''
    s_mov_b32 s82, 0x3f803f80
    s_mov_b32 s83, 0x%x
    v_xor_b32 v102, v12, v13
    v_and_b32 v103, 3, v1
    v_lshl_add_u32 v102, v103, 4, v102
    v_lshlrev_b32 v102, 4, v102
    v_bfe_u32 v104, v1, 2, 1
    v_lshl_add_u32 v102, v104, 10, v102
    s_mul_i32 s63, s51, %d
    s_add_u32 s63, s63, %d
    v_add_u32 v5, s63, v102              ; transit write address
    v_and_b32 v101, 15, v1
    v_lshrrev_b32 v105, 4, v1
    v_xor_b32 v102, v101, v105
    v_lshl_add_u32 v102, v105, 4, v102
    v_lshlrev_b32 v6, 4, v102            ; plain frag read offset (even)
    v_mul_u32_u24 v105, 2560, v105
    v_bfe_u32 v101, v1, 2, 2
    v_mul_u32_u24 v101, 320, v101
    v_lshlrev_b32 v103, 3, v103
    v_add3_u32 v%d, v105, v101, v103
    ''' % (fbits(1.0 / 576), 2 * P1, T1_OFF, vT))

def goff(k, P): return (k >> 1) * P + (k & 1) * 128
def layernorm(S, ks, mid=None, mid2=None):
    ng = len(ks)
    for g in range(ng):
        st = ST + 2 * g
        regs = [ln(g, j) + d for j in range(9) for d in range(4)]
        S.extend(dots(regs, st, st + 1))
        if OPT.get('ptrace'): stamp_mid(S, 88 + 4 * (g & 1))
        if g == 0 and ng > 1: xloads(S, [1, 2] if OPT.get('x12', 0) else [1])
        for m in ('quad_perm:[1,0,3,2]', 'quad_perm:[2,3,0,1]', 'row_half_mirror'):
            for r in range(st, st + 2):
                S('v_add_f32_dpp v%d, v%d, v%d %s row_mask:0xf bank_mask:0xf' % (r, r, r, m))
        rowstats(S, st, ST + 6, 's83')
        if g == ng - 1 and mid: S.extend(mid)
        for j in range(NR1):
            norm4(S, ln(g, j), st, ST + 6)
            S('ds_write_b128 v5, %s offset:%d' % (q4(ln(g, j)), goff(ks[g], P1) + j * 2048), tok_w=['T'])
        if g < ng - 1:
            for j in range(NR1, 9): norm4(S, ln(g, j), st, ST + 6)
            if OPT.get('ptrace'): stamp_mid(S, 90)
        if g == 0 and ng > 2 and not OPT.get('x12', 0): xloads(S, [2])
    if mid2: S.extend(mid2)
    if OPT.get('ptrace'): stamp_mid(S, 94)
    S.need('T')
    S('s_barrier')
    if OPT.get('ptrace'): stamp_mid(S, 96)
def t2_writes(ks):
    A = Stream()
    for j in range(NR1, 9):
        for g in range(len(ks)):
            A('ds_write_b128 v5, %s offset:%d' % (q4(ln(g, j)), goff(ks[g], P2) + (j - NR1) * 2048), tok_w=['T2'])
    return A
def t2_addr(S):
    S('s_mul_i32 s63, s51, %d' % (2 * (P2 - P1)))
    S('s_add_u32 s63, s63, %d' % (T2_OFF - T1_OFF))
    S('v_add_u32 v5, s63, v5')

def emit(F, out):
    for x in flatten(out):
        if isinstance(x, tuple) and x[0] == 'DMA5':
            _, n, txt, off = x
            lab = 'K1_D%d' % n
            F.run(G('s_cmp_eq_u32 s51, 3\ns_cbranch_scc1 %s\ns_add_u32 m0, s68, %d' % (lab, off)))
            F.add(I(txt)); F.vmq.pop()
            F.run(G(lab + ':'))
        elif isinstance(x, tuple) and x[0] == 'KEEPQ':
            if x[1] == 0: keep = [set(q) for q in F.vmq]
            else: F.vmq = keep
        elif x == 'POLLISSUE':
            F.run(G('s_cmp_lg_u32 s51, 0\ns_cbranch_scc1 K1_NOPI'))
            F.run(poll_issue(3, 6)); F.vmq.pop()
            F.run(G('K1_NOPI:'))
        elif x == 'ZERO':
            Z = Stream()
            Z('s_or_b32 s12, s2, s51\ns_cmp_lg_u32 s12, 0\ns_cbranch_scc1 K1_NOZ')
            srd(Z, 4, 14, 15, CN_SZ, CN_OFF)
            Z('v_lshlrev_b32 v33, 6, v1\nv_mov_b32 v32, 0')
            F.run(Z)
            F.add(I('buffer_store_dword v32, v33, s[4:7], 0 offen')); F.vmq.pop()
            F.run(G('K1_NOZ:'))
        elif x == 'ATOMIC':
            F.run(G('''s_cmp_lg_u32 s51, 0
            s_cbranch_scc1 K1_NOAT
            v_mov_b32 v7, 1
            s_mov_b64 exec, 1'''))
            F.add(I('buffer_atomic_add v7, v6, s[44:47], s9 offen sc1')); F.vmq.pop()
            F.run(G('s_mov_b64 exec, -1\nK1_NOAT:'))
        else:
            F.add(x)

def table_text():
    out = ['.p2align 8', 'K1_TAB:']
    for rg in range(4):
        vals = []
        for lane in range(64):
            v = []
            zq = []
            for e in range(5):
                i = 64 * (rg + 4 * e) + lane
                row, p = divmod(i, 20)
                sh = 2 * ((row >> 3) & 1)
                v.append(row * 9216 + (p ^ sh) * 16)
                pp = p - sh
                zq.append(row * 3456 + (1152, 2304, 0)[pp // 6] + (pp % 6) * 16 if 0 <= pp < 18 else 0x7f000000)
            hi = 4 * rg + (lane >> 4); g = lane & 3
            v += zq + [XH_OFF + ((lane >> 2) & 3) * 1024 + (g * 16 + (hi ^ g)) * 16, (hi * 1152 + (lane & 7) * 16)]
            vals.append(v)
        for q in range(3):
            for l0 in range(0, 64, 4):
                out.append('.long ' + ','.join(str(x) for l in range(l0, l0 + 4) for x in vals[l][4 * q:4 * q + 4]))
    return '\n'.join(out) + '\n'

def gen_k1(stamp=False, xmap='84', rot=True, **opt):
    OPT.clear(); OPT.update(opt); V2.OPT.clear()
    global stamp_mid
    import common
    if OPT.get('ptrace'):
        seen = {}
        def sm(S, r):
            k = (id(S), r)
            if r == 88 and k in seen: r = 70
            k = (id(S), r)
            if k in seen: return
            seen[k] = 1
            if r == 70: common.stamp_mid(S, 66); return
            common.stamp_mid(S, r)
        stamp_mid = sm
    else:
        stamp_mid = common.stamp_mid
    F = Finisher()
    S = Stream()
    head(S, stamp, xmap, rot)
    F.run(S)
    txt = F.text()
    for role in (compute, helper):
        G2 = Finisher()
        G2.vmq = [set(x) for x in F.vmq]; G2.lgq = [(set(a), b) for a, b in F.lgq]; G2.hist = list(F.hist)
        emit(G2, role(stamp))
        txt += G2.text()
    return txt, 256

def compute(stamp):
    S = Stream()
    vXe = 6; vXo = 7
    xloads(S, [0])
    common_setup(S)
    srd(S, 32, 14, 15, Z1P_SZ, Z1P_OFF)
    S('''
    s_mul_i32 s63, s51, %d
    s_add_u32 s63, s63, %d
    v_add_u32 v6, s63, v6
    v_xor_b32 v7, 64, v6
    ''' % (2 * P1, T1_OFF))
    if stamp: stamp_mid(S, 86)
    layernorm(S, [0, 1, 2])
    for q in range(2 * NR1):
        for b in range(2):
            S('ds_read_b128 %s, v%d offset:%d' % (xf(q, b), vXo if q & 1 else vXe, b * P1 + q * 1024), tok_w=['TR'])
    for j in range(NR1, 9): norm4(S, ln(2, j), ST + 4, ST + 6)
    t2_addr(S)
    S('s_mul_i32 s63, s51, %d' % (2 * (P2 - P1)))
    S('s_add_u32 s63, s63, %d' % (T2_OFF - T1_OFF))
    S.need('TR')
    S('s_barrier')
    S('v_add_u32 v6, s63, v6')
    S('v_add_u32 v7, s63, v7')
    S('s_setprio %d' % OPT.get('prio', 2))
    if stamp: stamp_mid(S, 88)
    ntile = [9, 7, 9]
    def acc(c, b): return ACC + (c * 2 + b) * 4
    hA = ACC + 56; hX = ACC + 64; hW = ACC + 68
    vTa = 2; vTb = 3; vq2 = 6; vq4 = 8; vQb = 5; vXH = 9; vqh = 7; vTs = 4
    frs = [(n, ks, c) for n in range(27) for ks in range(2) for c in range(ntile[n // 9])]
    bias = {}
    extra_tok = {1: ['T2'], 9: ['TR2'], 10: ['HB'], 18: ['XHR'], 19: ['QB']}
    QIMM = {0: 0, 1: 32, 3: 120, 5: 160 + 48, 6: 192 + 48}
    def zaddr(mode):
        g = Stream()
        g("""v_bfe_u32 v15, v1, 4, 1
        v_lshlrev_b32 v15, 5, v15""")
        if mode == 0:
            g("""s_cmp_eq_u32 s52, 0
            s_cselect_b32 s98, 1, -1
            s_lshl_b32 s99, s52, 5
            v_mul_lo_u32 v15, v15, s98
            v_add3_u32 v%d, v%d, v15, s99
            v_sub_u32 v%d, v%d, v15
            v_add_u32 v%d, s99, v%d""" % (vTa, vT, vTb, vT, vTb, vTb))
        else:
            g("""s_lshl_b32 s99, s52, 6
            v_add3_u32 v%d, v%d, v15, s99
            v_sub_u32 v%d, v%d, v15
            v_add_u32 v%d, 256, v%d
            v_add_u32 v15, 32, v%d
            s_cmp_eq_u32 s52, 0
            s_cselect_b64 vcc, -1, 0
            v_cndmask_b32 v%d, v15, v%d, vcc
            v_add_u32 v%d, s99, v%d
            v_add_u32 v%d, %d, v%d
            v_add_u32 v%d, %d, v%d
            v_add_u32 v%d, %d, v%d""" % (vTa, vT, vTb, vT, vTs, vTa, vTb, vTs, vTs, vTb, vTb, vTa, 2 * SLOT, vTa, vTb, 2 * SLOT, vTb, vTs, 2 * SLOT, vTs))
        return g
    def qaddr():
        g = Stream()
        g("""v_bfe_u32 v15, v1, 4, 1
        v_lshlrev_b32 v15, 5, v15
        s_mul_i32 s98, s49, 72
        s_and_b32 s98, s98, 31
        v_add3_u32 v{qb}, v{T}, v15, s98
        v_and_b32 v15, 3, v1
        v_cmp_le_u32 vcc, 2, v15
        v_cndmask_b32 v14, 0, 24, vcc
        v_add_u32 v14, 152, v14
        v_add_u32 v{q4}, v{qb}, v14
        v_cmp_le_u32 vcc, 1, v15
        v_cndmask_b32 v14, 0, 24, vcc
        v_add_u32 v14, 64, v14
        v_add_u32 v{q2}, v{qb}, v14
        s_lshl_b32 s69, s51, 5
        s_cmp_eq_u32 s51, 3
        s_cselect_b32 s99, 24, 0
        s_add_u32 s99, s99, s69
        v_add_u32 v{qh}, s99, v{qb}
        s_cmp_eq_u32 s51, 2
        s_cselect_b64 vcc, -1, 0
        v_cndmask_b32 v{qh}, v{qh}, v{q2}, vcc
        v_and_b32 v14, 15, v1
        v_lshrrev_b32 v15, 4, v1
        v_xor_b32 v14, v14, v15
        v_lshl_add_u32 v14, v15, 4, v14
        v_lshlrev_b32 v14, 4, v14
        v_add_u32 v{xh}, {XH}, v14""".format(qb=vQb, T=vT, q4=vq4, q2=vq2, qh=vqh, xh=vXH, XH=XH_OFF))
        return g
    def toggle(g, ar, n):
        want = (n & 3) >> 1
        if bias.get(ar, 0) != want:
            g('v_add_u32 v%d, %d, v%d' % (ar, 2 * SLOT if want else -2 * SLOT, ar))
            bias[ar] = want
    def halo_read(q):
        g = Stream()
        n = 9 + q // 2
        g('ds_read_b128 %s, v%d offset:%d' % (q4(hX), vXH, q * 1024), tok_w=['XHR'])
        toggle(g, vqh, n)
        for hh in range(2):
            g('ds_read_b64_tr_b16 v[%d:%d], v%d offset:%d' % (hW + 2 * hh, hW + 2 * hh + 1, vqh, (n & 1) * SLOT + (q & 1) * 10240 + hh * 1280))
        return g
    def read(f):
        n, ks, c = frs[f]
        ph = n // 9
        g = Stream()
        if ks == 0 and c == 0:
            if n > 0:
                if n in extra_tok: g.need(*extra_tok[n])
                if n > 10: g.need('ZCdone')
                g('s_barrier')
            if n == 0: g.extend(zaddr(0))
            if n == 18:
                for r in (vTa, vTb, vTs): bias[r] = 1
        if ph == 0: ar, coff = (vTb if c & 1 else vTa), 32 * c
        elif ph == 1: ar, coff = (vq2, 0) if c == 2 else ((vq4, 0) if c == 4 else (vQb, QIMM[c]))
        else: ar, coff = ((vTb if c & 1 else vTa), 32 * c) if c < 8 else (vTs, 0)
        toggle(g, ar, n)
        r = WFR + (f % NRING) * 4
        for hh in range(2):
            if OPT.get('halfread') and hh == 1:
                g('s_nop 0'); continue
            g('ds_read_b64_tr_b16 v[%d:%d], v%d offset:%d' % (r + 2 * hh, r + 2 * hh + 1, ar, (n & 1) * SLOT + ks * 10240 + hh * 1280 + coff))
        return g
    D = NRING - 1
    for f in range(D): S.extend(read(f))
    def tmpr(ph, c, b):
        pairs = [12, 14, 2] if ph == 0 else [12, 14, 6, 8]
        return pairs[(2 * c + b) % len(pairs)]
    def cvt(ph, c, b):
        a = acc(c, b); t = tmpr(ph, c, b)
        return G('v_cvt_pk_bf16_f32 v%d, v%d, v%d\nv_cvt_pk_bf16_f32 v%d, v%d, v%d' % (t, a, a + 1, t + 1, a + 2, a + 3))
    def cvti(a):
        return G('v_cvt_pk_bf16_f32 v%d, v%d, v%d\nv_cvt_pk_bf16_f32 v%d, v%d, v%d' % (a, a, a + 1, a + 1, a + 2, a + 3))
    def dw(ph, c, b, src=None):
        t = tmpr(ph, c, b) if src is None else src
        if OPT.get('nodw'): return []
        if ph == 0:
            return G('ds_write_b64 v10, v[%d:%d] offset:%d' % (t, t + 1, 16 * b * ZP + 32 * c), tok_w=['HB'])
        return G('ds_write_b64 v11, v[%d:%d] offset:%d' % (t, t + 1, (16 + 16 * b) * QP + 32 * c), tok_w=['QB'])
    x2 = Stream()
    for q in range(2 * NR1, 18):
        for b in range(2):
            x2('ds_read_b128 %s, v%d offset:%d' % (xf(q, b), vXo if q & 1 else vXe, b * P2 + (q - 2 * NR1) * 1024), tok_w=['TR2'])
    t2 = t2_writes([0, 1, 2])
    addr = G('''
    v_and_b32 v10, 15, v1
    s_lshl_b32 s98, s51, 5
    v_add_u32 v10, s98, v10
    v_mul_u32_u24 v11, %d, v10
    v_mul_u32_u24 v10, %d, v10
    v_lshrrev_b32 v12, 4, v1
    v_lshlrev_b32 v12, 3, v12
    s_mov_b32 s98, %d
    v_add3_u32 v10, v10, v12, s98
    s_mov_b32 s98, %d
    v_add3_u32 v11, v11, v12, s98
    ''' % (QP, ZP, ZB_OFF, QB_OFF))
    hw = G('s_mul_i32 s98, s51, %d\nv_subrev_u32 v5, s98, v11\nv_add_u32 v38, s69, v5' % (32 * QP))
    NC = OPT.get('nc', 0)
    share = []
    for k in range(NC):
        c = 9 - NC + k
        g = Stream()
        off = 16 * ZP + 32 * c
        g('ds_read_b64 v[12:13], v10 offset:%d' % off)
        for _ in range(OPT.get('rgap', 6)): g.append(None)
        g("""v_and_b32 v15, 0xffff0000, v13
        v_lshlrev_b32 v14, 16, v13
        v_and_b32 v13, 0xffff0000, v12
        v_lshlrev_b32 v12, 16, v12""")
        gelu4(g, 12, 36, c2=0)
        g('v_cvt_pk_bf16_f32 v36, v12, v13')
        g('v_cvt_pk_bf16_f32 v37, v14, v15')
        g('ds_write_b64 v10, v[36:37] offset:%d' % off, tok_w=['ZCdone'] if k == NC - 1 else [])
        share.append(list(g))
    light = [[3, list(addr) + list(qaddr()) + G('s_mov_b32 s78, 0x%x\nv_mov_b32 v0, 0x%x' % (fbits(C1), fbits(C2)))], [10, list(zaddr(1))]]
    cur = []
    zc_step = [None]
    for f, (n, ks, c) in enumerate(frs):
        ph, j = divmod(n, 9)
        q = 2 * j + ks
        r = WFR + (f % NRING) * 4
        if stamp and q == 0 and c == 0 and ph > 0 and not OPT.get('trace'): stamp_mid(S, 88 + 2 * ph)
        hand = (q == 0 and ph > 0)
        if hand and c == 0:
            if ph == 2: S.extend(hw)
            S.extend(cvt(ph - 1, 0, 0))
        rd = read(f + D) if f + D < len(frs) else []
        if f % 2 == 0 and f + 1 < len(frs) and not OPT.get('allwait'):
            r1 = WFR + ((f + 1) % NRING) * 4
            S.need(*['v%d' % k for k in range(r1, r1 + 4)])
        for b in range(2):
            a = acc(c, b)
            S('v_mfma_f32_16x16x32_bf16 %s, %s, %s, %s' % (q4(a), q4(r), xf(q, b), '0' if q == 0 else q4(a)))
            S.extend(rd[:-1] if b == 0 else rd[-1:])
            if hand and c < 7:
                S.extend(dw(ph - 1, c, b))
                if ph == 1:
                    if c in (1, 2): S.extend(dw(0, 6 + c, b, acc(6 + c, b)))
                    if c == 2 and b == 1: S.extend(halo_read(0))
                else:
                    if c == 1: S.extend(G('ds_write_b64 v%d, v[%d:%d] offset:%d' % (5 if b else 38, hA + 4 * b, hA + 4 * b + 1, 128 * b), tok_w=['QB']))
                if 2 * c + b + 1 < 14: S.extend(cvt(ph - 1, c + b, 1 - b))
                if c == 0 or (c == 1 and ph == 1): S.extend(cvti(acc(7 + c, b)))
            if n == 0 and t2 and b == 1: S.append(t2.pop(0))
            if n in (1, 2) and x2 and b == 1 and (n == 2 or ks == 1 or c > 0): S.append(x2.pop(0))
            gaps_left = sum(2 for ff in range(f, len(frs)) if frs[ff][0] < 18) - 12
            if not cur and share and not (light and n >= light[0][0]) and n >= 10 and (n >= 19 or gaps_left > len(share[0])) and not hand:
                cur.extend(share.pop(0))
            if cur:
                x = cur.pop(0)
                if x is not None: S.append(x)
                if not cur and not share: zc_step[0] = n
            elif light and n >= light[0][0]:
                x = light[0][1].pop(0); S.append(x)
                while x.kind == 'salu' and light[0][1]:
                    x = light[0][1].pop(0); S.append(x)
                if not light[0][1]: light.pop(0)
        if ph == 1 and c == 4:
            S('v_mfma_f32_16x16x32_bf16 %s, %s, %s, %s' % (q4(hA + 4), q4(r), q4(hX), '0' if q == 0 else q4(hA + 4)))
        if ph == 1 and c == 5:
            S('v_mfma_f32_16x16x32_bf16 %s, %s, %s, %s' % (q4(hA), q4(hW), q4(hX), '0' if q == 0 else q4(hA)))
            if q < 17 and (q & 1) == 0: S.extend(halo_read(q + 1))
        if ph == 1 and c == 6 and q < 17 and (q & 1) == 1: S.extend(halo_read(q + 1))
    assert not t2 and not x2 and not share and not cur
    OPT['zc_step'] = zc_step[0]
    n2a, n2b = norm_z2(range(NZC))
    S('s_barrier')
    S.extend(n2a)
    if stamp: stamp_mid(S, 94)
    S('''
    s_lshl_b32 s63, s48, 3
    s_lshl_b32 s98, s51, 1
    s_add_u32 s63, s63, s98
    s_mul_i32 s63, s63, 72
    s_mul_i32 s98, s49, 9
    s_add_u32 s98, s98, s52
    s_lshr_b32 s98, s98, 1
    s_add_u32 s63, s63, s98
    s_lshl_b32 s69, s63, 10
    s_add_u32 s70, s69, 73728
    s_cmp_eq_u32 s52, 0
    s_cselect_b32 s63, 4608, 0
    s_sub_u32 s63, s63, 512
    s_add_u32 s71, s69, s63
    s_add_u32 s72, s70, s63
    v_lshlrev_b32 v10, 4, v1
    v_lshrrev_b32 v12, 5, v1
    v_lshlrev_b32 v12, 8, v12
    v_and_b32 v13, 15, v1
    v_lshl_add_u32 v12, v13, 4, v12
    v_bfe_u32 v13, v1, 4, 1
    v_lshl_add_u32 v12, v13, 3, v12
    ''')
    G1 = OPT.get('gelu1', False)
    if G1:
        S('s_mov_b32 s78, 0x%x' % fbits(C1))
        S('v_mov_b32 v%d, 0x%x' % (vC2, fbits(C2)))
    for p in range(4):
        for b in range(2):
            a0 = acc(2 * p, b); a1 = acc(2 * p + 1, b)
            if G1: gelu4(S, a0, XF); gelu4(S, a1, XF + 4)
            o = XF + 8 + 4 * (2 * p + b)
            S('v_cvt_pk_bf16_f32 v%d, v%d, v%d' % (o, a0, a0 + 1))
            S('v_cvt_pk_bf16_f32 v%d, v%d, v%d' % (o + 1, a0 + 2, a0 + 3))
            S('v_cvt_pk_bf16_f32 v%d, v%d, v%d' % (o + 2, a1, a1 + 1))
            S('v_cvt_pk_bf16_f32 v%d, v%d, v%d' % (o + 3, a1 + 2, a1 + 3))
            for d in range(2): S('v_permlane32_swap_b32 v%d, v%d' % (o + d, o + 2 + d))
            for d in range(2): S('v_permlane16_swap_b32 v%d, v%d' % (o + d, o + 2 + d))
            S('buffer_store_dwordx4 %s, v10, s[32:35], s%d offen offset:%d' % (q4(o), 69 + b, p * 1024))
    for b in range(2):
        a0 = acc(8, b)
        if G1: gelu4(S, a0, XF)
        o = XF + 40 + 2 * b
        S('v_cvt_pk_bf16_f32 v%d, v%d, v%d' % (o, a0, a0 + 1))
        S('v_cvt_pk_bf16_f32 v%d, v%d, v%d' % (o + 1, a0 + 2, a0 + 3))
        S('buffer_store_dwordx2 v[%d:%d], v12, s[32:35], s%d offen' % (o, o + 1, 71 + b))
    V2.S1 = 40; V2.QB_OFF = QB_OFF; V2.VOFF = 72; V2.QOFF = 144
    S.extend(V2.attention(0))
    if OPT.get('late'): S('s_barrier')
    S.extend(n2b)
    if stamp:
        stamp_mid(S, 96)
        S('s_waitcnt vmcnt(0)')
        stamp_mid(S, 70)
        stamp_store(S, 84, [86, 88, 90, 92, 94, 96, 70 if not OPT.get('ptrace') else 66], 14, 0, 72, 12, wave_s=50)
    S('s_endpgm')
    return S

HL = 232
def helper(stamp):
    S = Stream()
    S('K1_HELP:')
    if OPT.get('cpf'): S.extend(code_prefetch('k1_kernel', 'k2_kernel', 1, 32, 34, 64, 12, neg=True))
    S("""s_getpc_b64 s[64:65]
    s_add_u32 s64, s64, K1_TAB@rel32@lo+4
    s_addc_u32 s65, s65, K1_TAB@rel32@hi+12
    s_mul_i32 s66, s51, 3072
    v_lshlrev_b32 v32, 4, v1
    v_add_u32 v32, s66, v32
    v_mov_b32 v33, s65
    v_add_co_u32 v32, vcc, s64, v32
    v_addc_co_u32 v33, vcc, 0, v33, vcc
    global_load_dwordx4 v[16:19], v[32:33], off
    global_load_dwordx4 v[20:23], v[32:33], off offset:1024
    global_load_dwordx4 v[24:27], v[32:33], off offset:2048""")
    xloads(S, [0])
    common_setup(S)
    srd(S, 20, 6, 7, 576 * 3456)
    srd(S, 24, 8, 9, 576 * 9216)
    S("""
    s_lshl_b32 s68, s51, 10
    s_mul_i32 s64, s49, 288
    s_and_b32 s64, s64, -64
    s_mul_i32 s65, s49, 72
    s_and_b32 s65, s65, -32
    v_mov_b32 v106, 0x7f000000
    """)
    srd(S, 4, 10, 11, 2048 * 4096)
    vHW = 26; vH0 = 28
    QH = Stream()
    QH("""
    s_mov_b32 s78, 0x%x
    v_mov_b32 v%d, 0x%x
    s_lshl_b32 s8, s2, 15
    s_lshl_b32 s9, s51, 11
    s_add_u32 s8, s8, s9
    v_lshlrev_b32 v8, 7, v1
    s_mul_i32 s98, s48, %d
    s_sub_u32 s98, s98, %d
    v_add_u32 v100, s98, v27
    v_bfe_u32 v101, v1, 3, 1
    v_add_u32 v101, s%d, v101
    """ % (fbits(C1), vC2, fbits(C2), 128 * 1152, 16 * 1152, sBLK))
    for t in range(5):
        QH('v_add_u32 v102, %d, v101' % (2 * t))
        QH('v_subrev_u32 v103, 9, v102')
        QH('v_min_u32 v102, v102, v103')
        QH('v_lshl_add_u32 v%d, v102, 7, v100' % (vH0 + t))
    QH('''
    v_and_b32 v103, 15, v1
    v_cmp_gt_u32 vcc, 8, v103
    v_cndmask_b32 v%d, v106, v%d, vcc
    ''' % (vH0 + 4, vH0 + 4))
    for t in range(5):
        QH('buffer_load_dwordx4 %s, v%d, s[16:19], 0 offen' % (q4(HL + 4 * t), vH0 + t))
    if stamp: stamp_mid(S, 86)
    layernorm(S, [3], mid=wdma(0), mid2=wdma(1))
    for j in range(NR1, 9): norm4(S, ln(0, j), ST, ST + 6)
    t2_addr(S)
    S.need('W0')
    S('s_barrier')
    if stamp: stamp_mid(S, 88)
    q1 = list(QH) + list(ln_halo(vHW))
    q2 = list(epi_z2())
    V2.S1 = 136; V2.QB_OFF = QB_OFF; V2.VOFF = 72; V2.QOFF = 144
    q3 = list(V2.attention(1))
    B = OPT.get('budget', 64)
    if OPT.get('noside'):
        q1 = []; q2 = q2[-1:]; q3 = []
    pub_step = None
    for n in range(27):
        if n > 0:
            toks = ['W%d' % n]
            if n == 1: toks.append('T2')
            if n == 9: toks.append('XH')
            if pub_step is not None and n == pub_step + 2: toks += ['PUB', 'ZB']
            if OPT.get('trace'):
                S('s_memtime s[96:97]\ns_waitcnt lgkmcnt(0)\ns_sub_u32 s96, s96, s84\nv_writelane_b32 v254, s96, %d' % n)
            S.need(*toks)
            if OPT.get('trace'):
                S('s_memtime s[96:97]\ns_waitcnt lgkmcnt(0)\ns_sub_u32 s96, s96, s84\nv_writelane_b32 v254, s96, %d' % (n + 32))
            S('s_barrier')
            if OPT.get('trace'):
                S('s_memtime s[96:97]\ns_waitcnt lgkmcnt(0)\ns_sub_u32 s96, s96, s84\nv_writelane_b32 v255, s96, %d' % n)
            if pub_step is not None and n == pub_step + 2: S.append('ATOMIC')
        if stamp and n in (9, 18): stamp_mid(S, 88 + 2 * (n // 9))
        mem = []
        if n + 2 < 27 and not OPT.get('nodma'):
            w = list(wdma(n + 2))
            mem = [w[:-8]] + [w[-8 + 2 * k:len(w) - 6 + 2 * k] for k in range(4)]
            assert sum(len(x) for x in mem) == len(w)
            if OPT.get('dg') == 3: mem = [mem[0] + mem[1], mem[2] + mem[3], mem[4]]
            if OPT.get('dg') == 2: mem = [mem[0] + mem[1] + mem[2], mem[3] + mem[4]]
        if n in (2, 4, 6, 9) and not OPT.get('nopf'):
            mem.append(G('''s_mov_b32 m0, %d
            s_mov_b64 exec, 0xffff
            buffer_load_dword v8, s[4:7], s8 offen lds
            s_mov_b64 exec, -1
            s_add_u32 s8, s8, 8192''' % SB_OFF))
        if OPT.get('pf3') and n in (12, 15):
            mem.append(G('''s_load_dwordx2 s[4:5], s[0:1], %d
            s_mov_b32 s6, %d
            s_mul_i32 s8, s2, %d
            s_mul_i32 s12, s51, %d
            s_add_u32 s8, s8, s12
            s_mov_b32 m0, %d
            s_waitcnt lgkmcnt(0)
            s_mov_b64 exec, 0x%x
            buffer_load_dword v8, s[4:7], s8 offen lds
            s_mov_b64 exec, -1''' % ((56, 2304 * 1152, 10368, 2688, SB_OFF, 0x1fffff) if n == 12 else (16, 576 * 1152, 2688, 768, SB_OFF, 0x3f))))
        work = []
        if n == 0: work += list(t2_writes([3]))
        if n == 18: work += G('s_lshl_b32 s9, s48, 4\nv_mov_b32 v6, 0')
        if n == 26: work.append('POLLISSUE')
        if n == 17 and OPT.get('pf3'): work.append('ZERO')
        if OPT.get('cpf') and n == 22: work.append(code_prefetch('k2_kernel', 'k3_kernel', 1, 32, 35, 10, 8))
        def drain(q, budget):
            while q and budget > 0:
                if isinstance(q[0], tuple) and q[0][0] == 'WAITSTEP':
                    if n < q[0][1]: break
                    q.pop(0); continue
                x = q.pop(0); budget -= wt(x); work.append(x)
            return budget
        budget = B
        if 0 <= n <= 8: drain(q1, OPT.get('b1', 34) if n < 8 else 1e9)
        if n >= 10 and q2:
            budget = drain(q2, budget)
            if not q2: pub_step = max(n, 17)
        elif n >= 19: drain(q3, OPT.get('abudget', 36))
        tot = sum(wt(x) for x in work); acc_ = 0.0; k = 0
        for x in work:
            while k < len(mem) and acc_ >= tot * k / (len(mem) + OPT.get('dmaslack', 1)):
                S.extend(mem[k]); k += 1
            S.append(x); acc_ += wt(x)
        while k < len(mem):
            S.extend(mem[k]); k += 1
    late = pub_step is None or pub_step + 2 > 26
    assert late == bool(OPT.get('late')), (pub_step, 'set late option accordingly')
    if late:
        S.extend(q2)
        S.need('ZB')
        h = len(q3) // 2
        S.extend(q3[:h]); q3 = q3[h:]
        S.need('PUB')
        S('s_barrier')
        S.append('ATOMIC')
    if stamp: stamp_mid(S, 94)
    S('s_cmp_lg_u32 s51, 0')
    S('s_cbranch_scc1 K1_NOPOLLH')
    S.append(('KEEPQ', 0))
    S('s_waitcnt vmcnt(0)')
    poll(S, 'H', 3, 6)
    S('s_barrier')
    n2a, n2b = norm_z2(range(NZC, 9))
    S.extend(n2a)
    S.extend(q3)
    S.extend(n2b)
    if stamp:
        stamp_mid(S, 96)
        S('s_waitcnt vmcnt(0)')
        stamp_mid(S, 70)
        stamp_store(S, 84, [86, 88, 90, 92, 94, 96, 70 if not OPT.get('ptrace') else 66], 14, 0, 72, 12, wave_s=50)
    if OPT.get('trace'):
        S('''s_lshl_b32 s75, s2, 11
        s_lshl_b32 s74, s51, 9
        s_add_u32 s75, s75, s74
        s_add_u32 s75, s75, 0x80000
        v_lshlrev_b32 v12, 2, v1
        buffer_store_dword v254, v12, s[76:79], s75 offen
        buffer_store_dword v255, v12, s[76:79], s75 offen offset:256''')
    S('K1_END:')
    S('s_endpgm')
    print('k1 helper: zc', OPT.get('zc_step'), 'pub_step', pub_step, 'att left', sum(wt(x) for x in q3))
    return S

def poll_issue(vr, va):
    return G('s_lshl_b32 s9, s48, 4\nv_mov_b32 v%d, 0' % va) + G('buffer_load_dword v%d, v%d, s[44:47], s9 offen sc1' % (vr, va))
def poll(S, tag, vr=7, va=6):
    S('v_readfirstlane_b32 s11, v%d' % vr)
    S('s_mov_b32 s10, 0')
    S('s_cmp_ge_u32 s11, 16')
    S('s_cbranch_scc1 K1_NOPOLL%s' % tag)
    S("""
    K1_POLL%s:
    s_sleep 4
    buffer_load_dword v7, v6, s[44:47], s9 offen sc1
    s_waitcnt vmcnt(0)
    v_readfirstlane_b32 s11, v7
    s_add_u32 s10, s10, 1
    s_cmp_ge_u32 s11, 16
    s_cbranch_scc1 K1_NOPOLL%s
    s_cmp_lt_u32 s10, 0x20000
    s_cbranch_scc1 K1_POLL%s
    K1_NOPOLL%s:
    """.replace('v7', 'v%d' % vr).replace('v6', 'v%d' % va) % (tag, tag, tag, tag))
    S.append(('KEEPQ', 1))

def ln_halo(vHW):
    A = Stream()
    h0 = ST + 4; t = ST + 6
    for k in range(20):
        r = HL + k; tt = t + 2 * (k & 1)
        A('v_lshlrev_b32 v%d, 16, v%d' % (tt, r))
        A('v_and_b32 v%d, 0xffff0000, v%d' % (tt + 1, r))
        if k == 0:
            A('v_add_f32 v%d, v%d, v%d' % (h0, tt, tt + 1))
            A('v_mul_f32 v%d, v%d, v%d' % (h0 + 1, tt, tt))
        else:
            A('v_add_f32 v%d, v%d, v%d' % (h0, h0, tt))
            A('v_fmac_f32 v%d, v%d, v%d' % (h0 + 1, tt, tt))
            A('v_add_f32 v%d, v%d, v%d' % (h0, h0, tt + 1))
        A('v_fmac_f32 v%d, v%d, v%d' % (h0 + 1, tt + 1, tt + 1))
    for m in ('quad_perm:[1,0,3,2]', 'quad_perm:[2,3,0,1]', 'row_half_mirror', 'row_mirror'):
        for r in (h0, h0 + 1):
            A('v_add_f32_dpp v%d, v%d, v%d %s row_mask:0xf bank_mask:0xf' % (r, r, r, m))
    rowstats(A, h0, ST + 6, 's83')
    for t in range(5):
        norm4(A, HL + 4 * t, h0, ST + 6)
        g = Stream()
        if t == 4:
            g('s_mov_b32 exec_lo, 0x00ff00ff')
            g('s_mov_b32 exec_hi, 0x00ff00ff')
        g('ds_write_b128 v%d, %s offset:%d' % (vHW, q4(HL + 4 * t), t * 4096), tok_w=['XH'])
        if t == 4: g('s_mov_b64 exec, -1')
        A.append(list(g))
    return A

def epi_z2():
    E = Stream()
    PK = 60
    def pk(c, b): return PK + b * 20 + 2 * c
    E.append(G("""
    v_and_b32 v10, 15, v1
    v_lshlrev_b32 v11, 3, v10
    s_lshl_b32 s98, s51, 5
    v_add_u32 v10, s98, v10
    v_mul_u32_u24 v10, %d, v10
    v_lshrrev_b32 v12, 4, v1
    v_lshlrev_b32 v12, 3, v12
    s_mov_b32 s98, %d
    v_add3_u32 v10, v10, v12, s98
    """ % (ZP, ZB_OFF)))
    NC = OPT.get('nc', 0)
    order = [(c, b) for b in range(2) for c in range(9)]
    theirs = order[18 - NC:]; order = order[:18 - NC]
    for c, b in order:
        E('ds_read_b64 v[%d:%d], v10 offset:%d' % (pk(c, b), pk(c, b) + 1, 16 * b * ZP + 32 * c))
    for b in range(2):
        E('v_mov_b32 v%d, 0' % (pk(9, b)))
        E('v_mov_b32 v%d, 0' % (pk(9, b) + 1))
    for k in range(4): E('v_mov_b32 v%d, s82' % (132 + k))
    pend = None
    for k, (c, b) in enumerate(order):
        x = 100 + 8 * (k & 1); p = pk(c, b)
        E('v_lshlrev_b32 v%d, 16, v%d' % (x, p))
        E('v_and_b32 v%d, 0xffff0000, v%d' % (x + 1, p))
        E('v_lshlrev_b32 v%d, 16, v%d' % (x + 2, p + 1))
        E('v_and_b32 v%d, 0xffff0000, v%d' % (x + 3, p + 1))
        gelu4(E, x, x + 4)
        E('v_cvt_pk_bf16_f32 v%d, v%d, v%d' % (p, x, x + 1))
        E('v_cvt_pk_bf16_f32 v%d, v%d, v%d' % (p + 1, x + 2, x + 3))
        E('ds_write_b64 v10, v[%d:%d] offset:%d' % (p, p + 1, 16 * b * ZP + 32 * c), tok_w=['ZB'])
    D1 = [116, 120]; D2 = [124, 128]
    if NC:
        E.append(('WAITSTEP', OPT['zc_step'] + 2))
        for c, b in theirs:
            E('ds_read_b64 v[%d:%d], v10 offset:%d' % (pk(c, b), pk(c, b) + 1, 16 * b * ZP + 32 * c))
    for c in range(0, 9, 2):
        for b in range(2):
            p = q4(pk(c, b))
            E('v_mfma_f32_16x16x32_bf16 %s, v[132:135], %s, %s' % (q4(D1[b]), p, '0' if c == 0 else q4(D1[b])))
            E('v_mfma_f32_16x16x32_bf16 %s, %s, %s, %s' % (q4(D2[b]), p, p, '0' if c == 0 else q4(D2[b])))
    g = G(setm('vcc', m64(lambda i, g: i & 1)))
    for b in range(2):
        g += G('v_cndmask_b32 v%d, v%d, v%d, vcc' % (D2[b], D2[b], D2[b] + 1))
        g += G('v_cndmask_b32 v%d, v%d, v%d, vcc' % (D2[b] + 2, D2[b] + 2, D2[b] + 3))
    g += G(setm('vcc', m64(lambda i, g: i & 2)))
    for b in range(2):
        g += G('v_cndmask_b32 v%d, v%d, v%d, vcc' % (D1[b] + 1, D2[b], D2[b] + 2))
    g += G("""
    s_lshl_b32 s99, s48, 4
    s_add_u32 s99, s99, s49
    s_lshl_b32 s99, s99, 10
    s_lshl_b32 s98, s51, 8
    s_add_u32 s99, s99, s98
    """) + G(setm('exec', m64(lambda i, g: g == i >> 2)))
    for b in range(2):
        g += G('buffer_store_dwordx2 v[%d:%d], v11, s[40:43], s99 offen offset:%d sc1' % (D1[b], D1[b] + 1, 128 * b), tok_w=['PUB'])
    g += G('s_mov_b64 exec, -1')
    E.append(g)
    return E

NZC = 4
def norm_z2(tiles):
    S = Stream()
    pl = 176; zf = 208; tb = 244; a0 = 248
    S("""
    v_lshrrev_b32 v%d, 4, v1
    v_lshlrev_b32 v%d, 12, v%d
    v_and_b32 v%d, 15, v1
    v_lshl_add_u32 v%d, v%d, 4, v%d
    s_lshl_b32 s9, s48, 14
    s_lshl_b32 s10, s51, 8
    s_add_u32 s9, s9, s10
    """ % (a0, a0, a0, a0 + 1, a0, a0 + 1, a0))
    for k in range(4):
        S('buffer_load_dwordx4 %s, v%d, s[40:43], s9 offen offset:%d sc1' % (q4(pl + 4 * k), a0, k * 1024))
    S("""
    v_lshrrev_b32 v{z}, 4, v1
    v_lshlrev_b32 v{r}, 6, v{z}
    v_lshlrev_b32 v{z}, 3, v{z}
    v_bfe_u32 v{t}, v1, 2, 2
    v_add_u32 v{z}, v{z}, v{t}
    s_lshl_b32 s9, s51, 5
    v_add_u32 v{z}, s9, v{z}
    v_mul_u32_u24 v{z}, {ZP}, v{z}
    v_and_b32 v{t}, 3, v1
    v_lshl_add_u32 v{z}, v{t}, 3, v{z}
    v_add_u32 v{z}, {ZB}, v{z}
    """.format(z=a0 + 2, r=a0 + 3, t=tb, ZP=ZP, ZB=ZB_OFF))
    S.need('ZB')
    for c in tiles:
        for hh in range(2):
            S('ds_read_b64_tr_b16 v[%d:%d], v%d offset:%d' % (zf + 4 * c + 2 * hh, zf + 4 * c + 2 * hh + 1, a0 + 2, hh * 4 * ZP + 32 * c))
    S("""
    s_lshl_b32 s9, s50, 8
    s_add_u32 s9, s9, {SB}
    v_lshlrev_b32 v{w}, 4, v{w}
    v_add_u32 v{w}, s9, v{w}
    v_add_u32 v{r}, s9, v{r}
    v_lshlrev_b32 v{p}, 4, v1
    v_xor_b32 v{p1}, 64, v{p}
    s_lshl_b32 s12, s49, 6
    s_lshl_b32 s13, s48, 2
    s_add_u32 s12, s12, s13
    s_add_u32 s12, s12, s51
    s_mul_i32 s12, s12, 9216
    s_add_u32 s13, s12, 4096
    s_add_u32 s10, s12, 8192
    s_mov_b32 s11, 0x{inv:x}
    """.format(SB=SB_OFF, w=a0 + 1, r=a0 + 3, p=a0 + 4, p1=a0 + 5, inv=fbits(1.0 / 2304)))
    A = S
    S = Stream()
    for k in range(2):
        for e in range(4): S('v_add_f32 v%d, v%d, v%d' % (pl + 4 * k + e, pl + 4 * k + e, pl + 8 + 4 * k + e))
    for e in range(4): S('v_add_f32 v%d, v%d, v%d' % (pl + e, pl + e, pl + 4 + e))
    for sw in ('v_permlane16_swap_b32', 'v_permlane32_swap_b32'):
        for k in range(4): S('v_mov_b32 v%d, v%d' % (pl + 4 + k, pl + k))
        for k in range(4): S('%s v%d, v%d' % (sw, pl + k, pl + 4 + k))
        for k in range(4): S('v_add_f32 v%d, v%d, v%d' % (pl + k, pl + k, pl + 4 + k))
    for r in (pl, pl + 2): rowstats(S, r, tb, 's11')
    S('ds_write_b128 v%d, %s' % (a0 + 1, q4(pl)), tok_w=['SB'])
    S.need('SB')
    sr = pl + 16
    for k in range(4): S('ds_read_b128 %s, v%d offset:%d' % (q4(sr + 4 * k), a0 + 3, 16 * k))
    for c in tiles:
        for d in range(4):
            r = zf + 4 * c + d
            t = tb + 2 * (d & 1)
            S('v_lshlrev_b32 v%d, 16, v%d' % (t, r))
            S('v_and_b32 v%d, 0xffff0000, v%d' % (t + 1, r))
            S('v_fma_f32 v%d, v%d, v%d, v%d' % (t, t, sr + 4 * d, sr + 4 * d + 1))
            S('v_fma_f32 v%d, v%d, v%d, v%d' % (t + 1, t + 1, sr + 4 * d + 2, sr + 4 * d + 3))
            S('v_cvt_pk_bf16_f32 v%d, v%d, v%d' % (r, t, t + 1))
        S('buffer_store_dwordx4 %s, v%d, s[36:39], s%d offen offset:%d' % (q4(zf + 4 * c), a0 + 5 if c & 1 else a0 + 4, (12, 13, 10)[c >> 2], (c & 3) * 1024))
    return A, S
```

```python
from common import *
from k1_v2 import fbits, gelu4, C1, C2, q4

ZST = 4 * 34816
K2_LDS = ZST + 6 * 4096
def epi_offsets(S):
    S('''
    s_lshl_b32 s46, s32, 3
    s_lshl_b32 s47, s34, 1
    s_add_u32 s46, s46, s47          ; tt0
    s_mul_i32 s47, s33, 9
    s_add_u32 s47, s47, s48
    s_lshr_b32 s47, s47, 1           ; ff0
    s_mul_i32 s51, s46, 72
    s_add_u32 s51, s51, s47
    s_lshl_b32 s51, s51, 10
    s_add_u32 s52, s51, 73728        ; b=1
    s_mul_i32 s53, s46, 90
    s_add_u32 s53, s53, s47
    s_add_u32 s53, s53, 18
    s_lshl_b32 s53, s53, 10
    s_add_u32 s54, s53, 92160
    s_cmp_eq_u32 s48, 0
    s_cselect_b32 s46, 4608, 0
    s_sub_u32 s46, s46, 512
    s_add_u32 s55, s51, s46
    s_add_u32 s56, s52, s46
    s_add_u32 s57, s53, s46
    s_add_u32 s58, s54, s46
    ''')

def gen_k2(stamp=False, rot=True, nodma=False, nomfma=False, noread=False, same=0, nobar=False, prio=0, xmap='48', onewait=True, D=1, gstart=2, gend=30, pf=True, gelu=True, zstart=29, zl0=0, gq=13, cpf=False, spf=0, fuse=False, k3={}):
    F = Finisher()
    S = Stream()
    ACC = 8; FS = (80, 124); Z1 = 168
    vW = (204, 205, 206, 207); vZ = 208; vB0 = 209; vB1 = 210; vA0 = 211; vA1 = 212; vAs = 213; vP = 214; vS = 215
    SLOT = 34816
    ZLD = [zl0 + 3 * k for k in range(9)]
    def acc(a, b): r = ACC + (a * 2 + b) * 4; return 'v[%d:%d]' % (r, r + 3)
    def fB(s, b): r = FS[s] + b * 4; return 'v[%d:%d]' % (r, r + 3)
    def fA(s, a): r = FS[s] + 8 + a * 4; return 'v[%d:%d]' % (r, r + 3)
    def bar(X):
        if not nobar: X('s_barrier')
    S('''
    s_load_dwordx4 s[4:7], s[0:1], 40
    s_load_dwordx2 s[8:9], s[0:1], 80
    s_cmp_ge_u32 s2, 256
    s_cbranch_scc1 K2_END
    ''')
    if stamp: stamp_begin(S, 60)
    S('''
    v_lshrrev_b32 v1, 6, v0
    v_and_b32 v2, 63, v0
    v_readfirstlane_b32 s62, v1
    s_and_b32 s43, s2, 7
    s_lshr_b32 s46, s2, 3
    ''')
    if xmap == '48':
        S('''
        s_lshr_b32 s32, s43, 1
        s_lshl_b32 s32, s32, 2
        s_and_b32 s47, s46, 3
        s_add_u32 s32, s32, s47
        s_and_b32 s33, s43, 1
        s_lshl_b32 s33, s33, 3
        s_lshr_b32 s46, s46, 2
        s_add_u32 s33, s33, s46
        ''')
    else:
        S('''
        s_and_b32 s32, s43, 1
        s_lshl_b32 s32, s32, 3
        s_and_b32 s47, s46, 7
        s_add_u32 s32, s32, s47
        s_lshr_b32 s33, s43, 1
        s_lshl_b32 s33, s33, 2
        s_lshr_b32 s46, s46, 3
        s_add_u32 s33, s33, s46
        ''')
    S('''
    s_add_u32 s35, s46, s47
    s_and_b32 s35, s35, %d
    v_and_b32 v3, 15, v2
    v_lshrrev_b32 v4, 4, v2
    v_lshlrev_b32 v%d, 4, v2
    s_and_b32 s48, s33, 1
    s_and_b32 s34, s62, 3
    s_lshl_b32 s49, s34, 12
    ''' % (3 if rot else 0, vP))
    if same == 1:
        S('s_and_b32 s32, s32, 1')
        S('s_and_b32 s33, s33, 1')
    S('s_cmp_lt_u32 s62, 4')
    S('s_cbranch_scc1 K2_CONS')
    S('''
    s_lshl_b32 s46, s32, 7
    s_lshl_b32 s47, s34, 5
    s_add_u32 s46, s46, s47
    v_lshrrev_b32 v5, 3, v2
    v_add_u32 v5, s46, v5
    v_lshlrev_b32 v5, 12, v5
    v_and_b32 v6, 7, v2
    v_xor_b32 v6, v6, v4
    v_lshlrev_b32 v6, 4, v6
    v_add_u32 v%d, v5, v6
    v_xor_b32 v7, 64, v%d
    v_add_u32 v%d, 0x%x, v7
    v_add_u32 v%d, 0x%x, v%d
    v_add_u32 v%d, 0x%x, v7
    s_mul_i32 s46, s33, 589824
    s_mul_i32 s47, s34, 4608
    s_add_u32 s46, s46, s47
    v_add_u32 v%d, s46, v%d
    s_add_u32 s50, s47, 16384
    s_mov_b32 s44, -1
    s_mov_b32 s45, 0
    s_mov_b32 s36, 0
    s_waitcnt lgkmcnt(0)
    ''' % (vW[0], vW[0], vW[1], 0x8000 - 1024, vW[2], 0x10000 - 2048, vW[0], vW[3], 0x18000 - 3072, vZ, vP))
    srd(S, 12, 4, 5, 2048 * 4096)
    srd(S, 16, 8, 9, Z2P_SZ, Z2P_OFF)
    def sigma(P, p, base):
        if p == 0 and rot:
            P('''s_add_u32 s43, s%d, s35
            s_add_u32 s43, s43, %d
            s_and_b32 s43, s43, 31''' % (base, 4 * D))
        else:
            P('''s_add_u32 s43, s35, %d
            s_and_b32 s43, s43, 3
            s_add_u32 s43, s43, s%d''' % (p, base))
    def half_a(P, p, base):
        sigma(P, p, base)
        P('s_lshl_b32 s37, s43, 7')
        P('s_add_u32 m0, s49, %d' % (p * SLOT))
        for q in range(4):
            if not nodma: P('buffer_load_dwordx4 v%d, s[12:15], s37 offen offset:%d lds' % (vW[q], q * 1024), tok_w=['P%d' % p])
    def half_b(P, p, base):
        sigma(P, p, base)
        P('s_mul_i32 s38, s43, 18432')
        P('s_add_u32 m0, s50, %d' % (p * SLOT))
        if not nodma:
            P('s_mov_b64 exec, s[44:45]')
            P('buffer_load_dwordx4 v%d, s[16:19], s38 offen lds' % vZ, tok_w=['P%d' % p])
            P('s_mov_b64 exec, -1')
            for q in range(4):
                P('buffer_load_dwordx4 v%d, s[16:19], s38 offen offset:%d lds' % (vZ, 512 + q * 1024), tok_w=['P%d' % p])
    for p in range(2):
        half_a(S, p, 36); half_b(S, p, 36)
    if fuse:
        S('v_mov_b32 v5, 159744\nv_mov_b32 v6, 0\nv_mov_b32 v7, 0')
        S('ds_write_b64 v5, v[6:7]', tok_w=['FL'])
        S.need('FL')
    S.need('P0')
    bar(S)
    half_a(S, 2, 36); half_b(S, 2, 36); half_a(S, 3, 36)
    srd(S, 20, 8, 9, Z1P_SZ, Z1P_OFF)
    S2 = Stream(); epi_offsets(S2)
    for x in S2: S(x.text.replace('s51', 's64').replace('s52', 's65'))
    S("""
    s_lshl_b32 s66, s34, 10
    s_add_u32 s66, s66, %d
    v_and_b32 v5, 31, v2
    v_lshlrev_b32 v5, 4, v5
    v_lshrrev_b32 v6, 5, v2
    v_mul_u32_u24 v6, 73728, v6
    v_add_u32 v5, v5, v6
    """ % ZST)
    if spf:
        assert xmap == '84' and not rot
        S('''
        s_lshr_b32 s68, s2, 3
        s_lshr_b32 s69, s68, 3
        s_lshl_b32 s69, s69, 5
        s_lshl_b32 s70, s32, 7
        s_add_u32 s69, s69, s70
        s_lshl_b32 s70, s34, 3
        s_add_u32 s69, s69, s70
        s_lshl_b32 s69, s69, 12
        s_add_u32 s72, s4, s69
        s_addc_u32 s73, s5, 0
        s_and_b32 s68, s68, 7
        s_mul_i32 s68, s68, 2304
        s_mul_i32 s69, s34, 576
        s_add_u32 s68, s68, s69
        s_mul_i32 s69, s33, 589824
        s_add_u32 s68, s68, s69
        s_add_u32 s68, s68, %d
        s_add_u32 s74, s8, s68
        s_addc_u32 s75, s9, 0
        ''' % Z2P_OFF)
    def sprefetch(P, st):
        if not spf or st > 31: return
        for k in range(8): P.append(('RAW', 's_load_dword s76, s[72:73], %d' % (k * 4096 + st * 128)))
        for k in range(5): P.append(('RAW', 's_load_dword s76, s[74:75], %d' % (k * 128 - (64 if k == 4 else 0) + st * 18432)))
    for st in range(4, 4 + spf - 4): sprefetch(S, st)
    def piece(P, k):
        if nodma: return
        P('s_add_u32 m0, s66, %d' % ((k % 5) * 4096))
        if k < 8:
            P('s_add_u32 s67, s%d, %d' % (64 + (k >> 2), (k & 3) * 1024))
            P('buffer_load_dwordx4 v%d, s[20:23], s67 offen lds' % vP, tok_w=['Z%d' % k])
        else:
            P('buffer_load_dwordx4 v5, s[20:23], s55 offen lds', tok_w=['Z%d' % k])
    for m in range(8):
        issue = m < 7
        S('s_add_u32 s51, s36, 4')
        for p in range(4):
            n = 4 * m + p
            if n == 31: break
            toks = ['P%d' % ((p + 1) & 3)] + ['Z%d' % k for k in range(9) if ZLD[k] + 2 == n]
            S.need(*toks)
            bar(S)
            if p == 0:
                half_b(S, 3, 36)
                if issue: half_a(S, 0, 51)
            elif issue:
                half_b(S, p - 1, 51)
                half_a(S, p, 51)
            for k in range(9):
                if ZLD[k] == n: piece(S, k)
            sprefetch(S, n + spf)
        S('s_mov_b32 s36, s51')
    if fuse:
        from k3f import k3_body
        if stamp: stamp_mid(S, 80)
        S('s_cmp_lt_u32 s2, 234\ns_cbranch_scc1 K3_START\ns_barrier\ns_endpgm\nK3_START:')
        k3_body(S, stamp, **k3)
    S('K2_END:')
    S('s_endpgm')
    for x in S:
        if isinstance(x, tuple) and x[0] == 'RESETQ':
            F.vmq = keepq; F.lgq = keepl
        elif not isinstance(x, tuple) and x.text.startswith('s_mov_b32 s41, 0'):
            keepq = [set(q) for q in F.vmq]; keepl = [(set(a), b) for a, b in F.lgq]
            F.add(x)
        elif isinstance(x, tuple):
            F.out.append(I(x[1])); F.hist.append((F.out[-1], 1))
        else: F.add(x)
    txt = F.text()
    F = Finisher()
    S = Stream()
    S('K2_CONS:')
    if prio: S('s_setprio %d' % prio)
    S('s_waitcnt lgkmcnt(0)')
    srd(S, 28, 6, 7, 4096)
    S('''
    s_lshl_b32 s46, s32, 8
    s_lshl_b32 s47, s34, 6
    s_add_u32 s46, s46, s47
    v_lshlrev_b32 v5, 1, v3
    buffer_load_ushort v216, v5, s[28:31], s46 offen
    buffer_load_ushort v217, v5, s[28:31], s46 offen offset:32
    ''')
    srd(S, 24, 8, 9, AP_SZ, AP_OFF)
    if pf:
        S('''s_load_dwordx2 s[16:17], s[0:1], 56
        s_load_dwordx2 s[12:13], s[0:1], 16
        s_mov_b32 s18, %d
        s_mov_b32 s19, 0x00020000
        s_mov_b32 s14, %d
        s_mov_b32 s15, 0x00020000''' % (2304 * 1152, 576 * 1152))
    S('''
    v_lshrrev_b32 v5, 1, v3
    v_xor_b32 v5, v5, v4
    v_lshlrev_b32 v5, 4, v5
    v_lshlrev_b32 v6, 7, v3
    v_add3_u32 v%d, v5, v6, s49
    v_xor_b32 v%d, 64, v%d
    ''' % (vB0, vB1, vB0))
    S('''
    v_lshrrev_b32 v5, 3, v3
    v_add_u32 v5, s48, v5            ; o + (i>>3)
    v_and_b32 v6, 1, v5
    v_lshlrev_b32 v6, 2, v6          ; 4*(T&1)
    v_and_b32 v7, 3, v3
    v_bfe_u32 v1, v3, 2, 1
    v_lshl_add_u32 v7, v1, 3, v7     ; 8*((i>>2)&1) + (i&3)
    v_xor_b32 v7, v7, v6
    v_lshl_add_u32 v7, v4, 4, v7     ; + g*16
    v_lshlrev_b32 v7, 4, v7
    v_lshl_add_u32 v7, v5, 10, v7
    v_add_u32 v%d, 16384, v7
    v_xor_b32 v%d, 64, v%d
    s_cmp_eq_u32 s48, 0
    s_cselect_b32 s46, %d, 0
    s_add_u32 s46, s46, 16384
    v_add_u32 v%d, s46, v%d
    v_lshrrev_b32 v5, 1, v4
    v_lshlrev_b32 v5, 8, v5
    v_lshl_add_u32 v5, v3, 4, v5
    v_and_b32 v6, 1, v4
    v_lshl_add_u32 v%d, v6, 3, v5
    ''' % (vA0, vA1, vA0, 8192, vAs, vP, vS))
    epi_offsets(S)
    S('v_lshlrev_b32 v216, 16, v216')
    S('v_lshlrev_b32 v217, 16, v217')
    for a in range(9):
        for b in range(2):
            for r in range(4):
                S('v_mov_b32 v%d, v%d' % (ACC + (a * 2 + b) * 4 + r, 216 + b))
    HI = 224
    for k, r in enumerate((vB0, vB1, vA0, vA1, vAs)): S('v_add_u32 v%d, %d, v%d' % (HI + k, 2 * SLOT, r))
    S('s_mov_b32 s78, 0x%x' % fbits(C1))
    S('v_mov_b32 v7, 0x%x' % fbits(C2))
    def reads(s, h, n):
        g = []
        hi = (n & 3) >> 1; so = (n & 1) * SLOT
        R = lambda r: r if not hi else HI + (vB0, vB1, vA0, vA1, vAs).index(r)
        vB = vB1 if h else vB0
        for b in range(2):
            g.append(I('ds_read_b128 %s, v%d offset:%d' % (fB(s, b), R(vB), so + b * 2048)))
        for a in range(9):
            if a < 8:
                g.append(I('ds_read_b128 %s, v%d offset:%d' % (fA(s, a), R(vA1 if a & 1 else vA0), so + h * 9216 + (a >> 1) * 2048)))
            else:
                g.append(I('ds_read_b128 %s, v%d offset:%d' % (fA(s, a), R(vAs), so + h * 9216)))
        if noread: g = []
        return g
    def mfmas(s):
        m = Stream()
        for a in range(9):
            for b in range(2):
                m('v_mfma_f32_16x16x32_bf16 %s, %s, %s, %s' % (acc(a, b), fA(s, a), fB(s, b), acc(a, b)))
        return m
    if stamp: stamp_mid(S, 72)
    bar(S)
    if stamp:
        stamp_mid(S, 74); S('s_waitcnt lgkmcnt(0)')
    S.extend(reads(0, 0, 0))
    zl = Stream()
    if pf:
        zl.append(G("""s_mul_i32 s46, s2, 10368
        s_mul_i32 s47, s34, 2688
        s_add_u32 s46, s46, s47
        s_mov_b64 exec, 0x1fffff
        buffer_load_dword v218, v6, s[16:19], s46 offen
        s_mov_b64 exec, -1"""))
        zl.append(G("""s_mul_i32 s46, s2, 2688
        s_mul_i32 s47, s34, 768
        s_add_u32 s46, s46, s47
        s_mov_b64 exec, 0x3f
        buffer_load_dword v219, v6, s[12:15], s46 offen
        s_mov_b64 exec, -1"""))
        S('v_lshlrev_b32 v6, 7, v2')
    if cpf: zl.append(code_prefetch('k3_kernel', 'TEXT_END', 2, 4, 217, 46, 4))
    S('''s_lshl_b32 s46, s34, 10
    s_add_u32 s46, s46, %d
    v_add_u32 v229, s46, v%d
    v_add_u32 v230, s46, v%d''' % (ZST, vP, vS))
    zr = {}
    for k in range(8): zr[ZLD[k] + 2] = [I('ds_read_b128 %s, v229 offset:%d' % (q4(Z1 + 4 * k), (k % 5) * 4096))]
    zr[ZLD[8] + 2] = [G('ds_read_b64 v[%d:%d], v230 offset:%d\nds_read_b64 v[%d:%d], v230 offset:%d' % (Z1 + 32, Z1 + 33, 3 * 4096, Z1 + 34, Z1 + 35, 3 * 4096 + 512))]
    gw = []
    for k in range(18 if gelu else 0):
        g = Stream()
        p = Z1 + 2 * k; x = 232 + 8 * (k & 1)
        g('v_lshlrev_b32 v%d, 16, v%d' % (x, p))
        g('v_and_b32 v%d, 0xffff0000, v%d' % (x + 1, p))
        g('v_lshlrev_b32 v%d, 16, v%d' % (x + 2, p + 1))
        g('v_and_b32 v%d, 0xffff0000, v%d' % (x + 3, p + 1))
        gelu4(g, x, x + 4, c2=7)
        g('v_cvt_pk_bf16_f32 v%d, v%d, v%d' % (p, x, x + 1))
        g('v_cvt_pk_bf16_f32 v%d, v%d, v%d' % (p + 1, x + 2, x + 3))
        gw += [(ZLD[k // 2] + 3, x) for x in g]
    quota = gq
    def half(B, ms, rds, n, mem):
        left = quota if n >= gstart else 0
        for k, m in enumerate(ms):
            B.append(m)
            room = 2
            if rds: B.append(rds.pop(0)); room = 1
            elif mem:
                x = mem.pop(0); room = 1
                if isinstance(x, list): B.extend(x)
                else: B.append(x)
            while gw and left > 0 and room > 0 and k < 17 and gw[0][0] <= n:
                need = 2 if gw[0][1].kind == 'trans' else 1
                if need > room: break
                B.append(gw.pop(0)[1]); room -= need; left -= 1
    for n in range(32):
        S('s_waitcnt lgkmcnt(0)')
        half(S, mfmas(0), reads(1, 1, n), n, zl if n >= zstart else None)
        if n < 31 or fuse:
            S('s_waitcnt lgkmcnt(0)')
            bar(S)
        half(S, mfmas(1), reads(0, 0, n + 1) if n < 31 else [], n, zr.get(n) or (zl if n >= zstart else None))
    assert not gw and not zl, (len(gw), len(zl))
    F.run(S)
    E = Stream()
    if stamp: stamp_mid(E, 76)
    t0 = 216
    for b in range(2):
        for p in range(5):
            nd = 4 if p < 4 else 2
            zr = Z1 + (b * 4 + p) * 4 if p < 4 else Z1 + 32 + b * 2
            for d in range(nd):
                a = 2 * p + (d >> 1)
                ar = ACC + (a * 2 + b) * 4 + (d & 1) * 2
                t = 220 + (d & 1) * 2
                E('v_lshlrev_b32 v%d, 16, v%d' % (t, zr + d))
                E('v_and_b32 v%d, 0xffff0000, v%d' % (t + 1, zr + d))
                E('v_pk_mul_f32 v[%d:%d], v[%d:%d], v[%d:%d]' % (t, t + 1, t, t + 1, ar, ar + 1))
                E('v_cvt_pk_bf16_f32 v%d, v%d, v%d' % (zr + d, t, t + 1))
            if p < 4:
                E('buffer_store_dwordx4 v[%d:%d], v%d, s[24:27], s%d offen offset:%d%s' % (zr, zr + 3, vP, 53 + b, p * 1024, ' sc1' if fuse else ''))
            else:
                E('buffer_store_dwordx2 v[%d:%d], v%d, s[24:27], s%d offen%s' % (zr, zr + 1, vS, 57 + b, ' sc1' if fuse else ''))
    if fuse:
        srd(E, 28, 8, 9, CN_SZ, CN_OFF)
        E('''v_mov_b32 v5, 159744
        v_mov_b32 v6, 1
        s_lshl_b32 s46, s32, 8''')
        if stamp: stamp_mid(E, 78)
        E('''s_waitcnt vmcnt(0) lgkmcnt(0)
        s_mov_b64 exec, 1
        ds_add_rtn_u32 v7, v5, v6
        s_waitcnt lgkmcnt(0)
        v_readfirstlane_b32 s47, v7
        s_cmp_lg_u32 s47, 3
        s_cbranch_scc1 K2_NOSIG
        v_mov_b32 v5, 0
        buffer_atomic_add v6, v5, s[28:31], s46 offen sc1
        K2_NOSIG:
        s_mov_b64 exec, -1''')
    if stamp:
        if not fuse: stamp_mid(E, 78)
        E('s_waitcnt vmcnt(0)')
        stamp_mid(E, 80)
        stamp_store(E, 60, [72, 74, 76, 78, 80], 8, 1, 64, 216)
    E('s_endpgm')
    F.run(E)
    return txt + F.text(), 248
```

```python
from common import *
K3_P = 272
RED = 0
FLAG = 159744
def k3_body(S, stamp=False, early=2, sleep=12, own=True, pre=0, red2=False):
    ACC = 8; AR = 88; WF = 168
    vA = (200, 201, 202, 203, 204); vW = (205, 206, 207, 208); vT = (209, 210, 211, 212); vT2 = (232, 233, 234, 235)
    XR = 216; vO = 213; vR = 214
    NW = 8
    def acc(ct, a): r = ACC + (ct * 5 + a) * 4; return 'v[%d:%d]' % (r, r + 3)
    def fa(s, a): r = AR + s * 20 + a * 4; return 'v[%d:%d]' % (r, r + 3)
    def fw(s, ct): r = WF + s * 16 + ct * 4; return r
    S('''
    s_load_dwordx2 s[4:5], s[0:1], 0
    s_load_dwordx2 s[6:7], s[0:1], 16
    s_load_dwordx4 s[64:67], s[0:1], 56
    s_and_b32 s43, s2, 7
    s_lshr_b32 s46, s2, 3
    s_mul_i32 s47, s43, 29
    s_min_u32 s43, s43, 2
    s_add_u32 s47, s47, s43
    s_add_u32 s47, s47, s46          ; tile
    s_mul_hi_u32 s32, s47, 0x1c71c71d ; mt
    s_mul_i32 s46, s32, 9
    s_sub_u32 s33, s47, s46          ; nt
    s_mul_i32 s46, s32, 460800
    v_lshlrev_b32 v3, 4, v2
    v_add_u32 v%d, s46, v3
    ''' % vA[0])
    for a in range(1, 5):
        S('v_add_u32 v%d, %d, v%d' % (vA[a], 92160 * a, vA[0]))
    S('''
    v_lshrrev_b32 v3, 3, v2
    v_and_b32 v4, 2, v3
    v_and_b32 v5, 7, v2
    v_xor_b32 v5, v5, v4
    v_lshlrev_b32 v5, 4, v5
    v_mul_u32_u24 v3, 1152, v3
    s_lshl_b32 s46, s33, 7
    v_add3_u32 v%d, v3, v5, s46
    v_xor_b32 v5, 64, v5
    v_add3_u32 v6, v3, v5, s46
    v_add_u32 v%d, %d, v6
    v_add_u32 v%d, %d, v%d
    v_add_u32 v%d, %d, v6
    s_lshl_b32 s49, s34, 12          ; wave part of the ring address
    s_mul_i32 s36, s34, 36864        ; W row offset of k-frag w
    s_lshl_b32 s38, s34, 10          ; A offset of k-frag w
    s_waitcnt lgkmcnt(0)
    ''' % (vW[0], vW[1], 9216 - 1024, vW[2], 2 * (9216 - 1024), vW[0], vW[3], 3 * (9216 - 1024)))
    srd(S, 16, 8, 9, AP_SZ, AP_OFF)
    srd(S, 20, 6, 7, 576 * 1152)
    srd(S, 12, 64, 65, 2304 * 1152)
    def wload(q):
        P = Stream()
        if q <= 3: srdn, off = '20:23', 4 * q * 36864
        elif q >= 5: srdn, off = '12:15', (4 * q - 18) * 36864
        if q == 4:
            P('''s_cmp_lt_u32 s34, 2
            s_cselect_b32 s76, s20, s12
            s_cselect_b32 s77, s21, s13
            s_cselect_b32 s78, s22, s14
            s_mov_b32 s79, 0x00020000
            s_cselect_b32 s37, %d, 0
            s_add_u32 s37, s37, s36
            s_sub_u32 s37, s37, %d''' % (18 * 36864, 2 * 36864))
            srdn = '76:79'
        else:
            P('s_add_u32 s37, s36, %d' % off)
        P('s_add_u32 m0, s49, %d' % ((q % NW) * 16384))
        for j in range(4):
            P('buffer_load_dwordx4 v%d, s[%s], s37 offen offset:%d lds' % (vW[j], srdn, j * 1024), tok_w=['W%d' % (q % NW)])
        return P
    def aload(q):
        P = Stream()
        P('s_add_u32 s39, s38, %d' % (4 * q * 1024))
        if q == 22:
            P('s_cmp_lt_u32 s34, 2')
            P('s_cselect_b32 s39, s39, 0x7f000000')
        for a in range(5):
            P('buffer_load_dwordx4 %s, v%d, s[16:19], s39 offen%s' % (fa(q & 3, a), vA[a], ' sc1' if q >= 4 else ''))
        return P
    NQ = 23
    for q in range(early): S.extend(wload(q)); S.extend(aload(q))
    S('''
    v_lshrrev_b32 v3, 4, v2          ; g
    v_bfe_u32 v4, v2, 2, 2           ; r
    v_and_b32 v5, 3, v2              ; c
    v_lshl_add_u32 v6, v3, 3, v4     ; 8g + r
    v_lshlrev_b32 v6, 7, v6
    v_add_u32 v6, s49, v6
    v_and_b32 v7, 1, v5
    v_lshl_add_u32 v6, v7, 3, v6     ; + (c&1)*8
    v_lshrrev_b32 v5, 1, v5
    v_lshl_add_u32 v6, v5, 4, v6     ; + (c>>1)*16
    v_and_b32 v4, 2, v4
    v_and_b32 v3, 1, v3
    v_lshl_or_b32 v4, v3, 2, v4      ; f
    v_lshlrev_b32 v4, 4, v4
    ''')
    for ct in range(4):
        if red2:
            S('s_add_u32 s46, s34, %d\ns_and_b32 s46, s46, 3\ns_lshl_b32 s46, s46, 5\nv_xor_b32 v5, s46, v4' % ct)
        else:
            S('v_xor_b32 v5, %d, v4' % (32 * ct))
        S('v_add_u32 v%d, v5, v6' % vT[ct])
        S('v_add_u32 v%d, 65536, v%d' % (vT2[ct], vT[ct]))
    srd(S, 24, 4, 5, 2048 * 1152)
    srd(S, 28, 66, 67, 2048 * 1152)
    srd(S, 72, 8, 9, CN_SZ, CN_OFF)
    S('''
    v_subrev_u32 v0, 256, v0
    v_lshrrev_b32 v3, 3, v0
    s_mul_i32 s46, s32, 80
    v_add_u32 v4, s46, v3
    v_mul_u32_u24 v4, 1152, v4
    v_and_b32 v5, 7, v0
    v_lshlrev_b32 v6, 4, v5
    s_lshl_b32 s47, s33, 7
    v_add3_u32 v%d, v4, v6, s47
    v_mul_u32_u24 v3, %d, v3
    v_lshlrev_b32 v5, 5, v5
    v_add_u32 v%d, v3, v5
    s_add_u32 s47, s46, 79
    s_min_u32 s47, s47, 2047
    s_lshr_b32 s46, s46, 7
    s_lshr_b32 s47, s47, 7
    s_lshl_b32 s46, s46, 8
    s_lshl_b32 s47, s47, 8
    v_mov_b32 v228, s46
    v_mov_b32 v229, s47
    v_mov_b32 v230, %d
    s_mov_b32 s52, 0
    s_mov_b32 s53, %d
    s_mov_b32 s54, %d
    ''' % (vO, K3_P, vR, FLAG, 32 * 1152, 64 * 1152))
    if red2:
        S('''v_and_b32 v3, 15, v2
        s_mul_i32 s46, s32, 80
        v_add_u32 v4, s46, v3
        v_mul_u32_u24 v4, 1152, v4
        v_lshrrev_b32 v5, 4, v2
        v_lshlrev_b32 v5, 3, v5
        s_lshl_b32 s47, s33, 7
        s_lshl_b32 s46, s34, 5
        s_add_u32 s47, s47, s46
        v_add3_u32 v%d, v4, v5, s47''' % vO)
        for a in range(5): S('s_mov_b32 s%d, %d' % (52 + a, a * 16 * 1152))
    S('s_barrier')
    def ownwait():
        S('''s_mov_b32 s41, 1
        K3_OWN:
        ds_read_b32 v236, v230
        s_waitcnt lgkmcnt(0)
        s_add_u32 s41, s41, 1
        v_readfirstlane_b32 s42, v236
        s_cmp_ge_u32 s42, 4
        s_cbranch_scc1 K3_OWNED
        s_sleep 2
        s_cmp_lt_u32 s41, 0x400000
        s_cbranch_scc1 K3_OWN
        K3_OWNED:''')
    def trreads(ws, q):
        g = []
        slot = q % NW
        for ct in range(4):
            for h in range(2):
                r = fw(ws, ct) + 2 * h
                g.append(G('ds_read_b64_tr_b16 v[%d:%d], v%d offset:%d' % (r, r + 1, (vT2 if slot >= 4 else vT)[ct], (slot & 3) * 16384 + h * 512)))
        return g
    def mf(ws, q):
        m = Stream()
        for ct in range(4):
            for a in range(5):
                r = fw(ws, ct)
                m('v_mfma_f32_16x16x32_bf16 %s, v[%d:%d], %s, %s' % (acc(ct, a), r, r + 3, fa(q & 3, a), '0' if q == 0 else acc(ct, a)))
        return m
    S.need('W0')
    for g in trreads(0, 0): S.extend(g)
    if stamp:
        stamp_mid(S, 82); S('s_waitcnt lgkmcnt(0)')
    for q in range(NQ):
        if q == pre:
            if own:
                S.append(('SAVEQ',)); ownwait(); S.append(('RESETQ',))
            for k in range(early, 4): S.extend(wload(k)); S.extend(aload(k))
            for k in range(4, 8 + pre): S.extend(wload(k))
        if q == 4:
            S.append(('SAVEQ',))
            if stamp: stamp_mid(S, 84)
            S('''
            s_mov_b32 s41, 0
            s_cmp_lg_u32 s34, 0
            s_cbranch_scc1 K3_WAITL
            K3_POLL:
            buffer_load_dword v236, v228, s[72:75], 0 offen sc1
            buffer_load_dword v237, v229, s[72:75], 0 offen sc1
            s_waitcnt vmcnt(0)
            v_min_u32 v236, v236, v237
            s_add_u32 s41, s41, 1
            v_readfirstlane_b32 s42, v236
            s_cmp_ge_u32 s42, 16
            s_cbranch_scc1 K3_SET
            s_sleep %d
            s_cmp_lt_u32 s41, 0x20000
            s_cbranch_scc1 K3_POLL
            K3_SET:
            v_mov_b32 v236, 1
            ds_write_b32 v230, v236 offset:4
            s_branch K3_GO
            K3_WAITL:
            ds_read_b32 v236, v230 offset:4
            s_waitcnt lgkmcnt(0)
            s_add_u32 s41, s41, 1
            v_readfirstlane_b32 s42, v236
            s_cmp_lg_u32 s42, 0
            s_cbranch_scc1 K3_GO
            s_sleep 1
            s_cmp_lt_u32 s41, 0x400000
            s_cbranch_scc1 K3_WAITL
            K3_GO:
            '''.strip() % sleep)
            S.append(('RESETQ',))
            if stamp:
                stamp_mid(S, 86); S('s_waitcnt lgkmcnt(0)')
            for k in (4, 5, 6): S.extend(aload(k))
        if q > pre and q + 7 < NQ: S.extend(wload(q + 7))
        if q >= 4 and q + 3 < NQ: S.extend(aload(q + 3))
        if q == NQ - 3:
            for rd in range(3 if not red2 else 0):
                S('buffer_load_dwordx4 v[%d:%d], v%d, s[24:27], s%d offen' % (XR + 4 * rd, XR + 4 * rd + 3, vO, 52 + rd))
            for a in range(5 if red2 else 0):
                S('buffer_load_dwordx2 v[%d:%d], v%d, s[24:27], s%d offen' % (XR + 2 * a, XR + 2 * a + 1, vO, 52 + a))
        g = []
        if q + 1 < NQ:
            n = Stream(); n.need('W%d' % ((q + 1) % NW))
            g = trreads((q + 1) & 1, q + 1)
            g[0] = list(n) + g[0]
        S.extend(weave(mf(q & 1, q), g, 2, 14))
    if stamp: stamp_mid(S, 88)
    E = S
    if red2:
        E("""
        v_lshlrev_b32 v3, 4, v2
        s_mul_i32 s46, s34, 15360
        v_add_u32 v4, s46, v3
        s_barrier
        """)
        for d in range(1, 4):
            E("""s_add_u32 s47, s34, %d
            s_and_b32 s47, s47, 3
            s_mul_i32 s47, s47, 15360
            v_add_u32 v5, s47, v3""" % d)
            for a in range(5):
                E('ds_write_b128 v5, %s offset:%d' % (acc(d, a), (d - 1) * 5120 + a * 1024), tok_w=['RED'])
        E.need('RED')
        E('s_barrier')
        for d in range(3):
            for a in range(5):
                r = AR + (d * 5 + a) * 4
                E('ds_read_b128 v[%d:%d], v4 offset:%d' % (r, r + 3, d * 5120 + a * 1024))
        for a in range(5):
            o = ACC + a * 4
            for e in range(4):
                E('v_add_f32 v%d, v%d, v%d' % (o + e, o + e, AR + a * 4 + e))
                E('v_add_f32 v%d, v%d, v%d' % (AR + 20 + a * 4 + e, AR + 20 + a * 4 + e, AR + 40 + a * 4 + e))
            for d in range(2):
                x = XR + 2 * a + d
                E('v_lshlrev_b32 v5, 16, v%d' % x)
                E('v_and_b32 v6, 0xffff0000, v%d' % x)
                E('v_add_f32 v%d, v%d, v%d' % (o + 2 * d, o + 2 * d, AR + 20 + a * 4 + 2 * d))
                E('v_add_f32 v%d, v%d, v%d' % (o + 2 * d + 1, o + 2 * d + 1, AR + 21 + a * 4 + 2 * d))
                E('v_add_f32 v5, v5, v%d' % (o + 2 * d))
                E('v_add_f32 v6, v6, v%d' % (o + 2 * d + 1))
                E('v_cvt_pk_bf16_f32 v%d, v5, v6' % x)
            E('buffer_store_dwordx2 v[%d:%d], v%d, s[28:31], s%d offen' % (XR + 2 * a, XR + 2 * a + 1, vO, 52 + a))
    else:
        E('''
        v_and_b32 v3, 15, v2
        v_mul_u32_u24 v3, %d, v3
        v_lshrrev_b32 v4, 4, v2
        v_lshl_add_u32 v3, v4, 4, v3
        s_mul_i32 s46, s34, %d
        v_add_u32 v3, s46, v3
        s_barrier
        ''' % (K3_P, 80 * K3_P))
        for a in range(5):
            for ct in range(4):
                E('ds_write_b128 v3, %s offset:%d' % (acc(ct, a), a * 16 * K3_P + ct * 64), tok_w=['RED'])
        E.need('RED')
        E('s_barrier')
        for rd in range(3):
            if rd == 2:
                E('s_cmp_ge_u32 s34, 2')
                E('s_cbranch_scc1 K3_DONE')
            base = 88 + rd * 32
            for c in range(4):
                if c == 3: E('v_add_u32 v4, %d, v%d' % (3 * 80 * K3_P, vR))
                for hh in range(2):
                    r = base + c * 8 + hh * 4
                    off = rd * 32 * K3_P + hh * 16 + (c * 80 * K3_P if c < 3 else 0)
                    E('ds_read_b128 v[%d:%d], v%d offset:%d' % (r, r + 3, vR if c < 3 else 4, off))
            for e in range(8):
                E('v_add_f32 v%d, v%d, v%d' % (base + e, base + e, base + 8 + e))
                E('v_add_f32 v%d, v%d, v%d' % (base + 16 + e, base + 16 + e, base + 24 + e))
            for d in range(4):
                x = XR + 4 * rd + d
                E('v_lshlrev_b32 v5, 16, v%d' % x)
                E('v_and_b32 v6, 0xffff0000, v%d' % x)
                E('v_add_f32 v%d, v%d, v%d' % (base + 2 * d, base + 2 * d, base + 16 + 2 * d))
                E('v_add_f32 v%d, v%d, v%d' % (base + 2 * d + 1, base + 2 * d + 1, base + 17 + 2 * d))
                E('v_add_f32 v5, v5, v%d' % (base + 2 * d))
                E('v_add_f32 v6, v6, v%d' % (base + 2 * d + 1))
                E('v_cvt_pk_bf16_f32 v%d, v5, v6' % x)
            E('buffer_store_dwordx4 v[%d:%d], v%d, s[28:31], s%d offen' % (XR + 4 * rd, XR + 4 * rd + 3, vO, 52 + rd))
    E('K3_DONE:')
    if stamp:
        stamp_mid(E, 90)
        E('s_waitcnt vmcnt(0)')
        stamp_mid(E, 92)
        E('v_add_u32 v0, 256, v0')
        stamp_store(E, 60, [80, 82, 84, 86, 88, 90, 92], 8, 1, 64, 4)
```

```python
import sys
from build import *
HDR = open('parallel_sum__sliding_local_dilated__mixer_gmlp__prompt.s.ref').read().split('; Override launch')[0]
def make(path, stamp=False, k1={}, k2={}, k3={}):
    t1, v1 = gen_k1(stamp=stamp, **k1)
    t2, v2 = gen_k2(stamp=stamp, **k2)
    t3, v3 = gen_k3(stamp=stamp, **k3)
    assemble_file(path, [('k1_kernel', t1, v1, 256, 512, K1_LDS), ('k2_kernel', t2, v2, 256, 512, K2_LDS), ('k3_kernel', t3, v3, 234, 256, K3_LDS)])
    s = open(path).read()
    open(path, 'w').write(HDR + s)
def makef(path, stamp=False, k1={}, k2={}):
    t1, v1 = gen_k1(stamp=stamp, **k1)
    t2, v2 = gen_k2(stamp=stamp, fuse=True, **k2)
    assemble_file(path, [('k1_kernel', t1, v1, 256, 512, K1_LDS), ('k2_kernel', t2, v2, 256, 512, K2_LDS)])
    s = open(path).read()
    open(path, 'w').write(HDR + s)
if __name__ == '__main__':
    K1 = dict(budget=66, nc=4); K2 = dict(prio=1, rot=False, xmap='84')
    make('va.s', k1=K1, k2=K2)
    makef('vf.s', k1=dict(pf3=1, **K1), k2=dict(pf=False, **K2))
    make('full_st.s', stamp=True, k1=K1, k2=K2)
    makef('full_f.s', stamp=True, k1=dict(pf3=1, **K1), k2=dict(pf=False, **K2))
    makef('full_g.s', stamp=True, k1=dict(pf3=1, **K1), k2=dict(pf=False, k3=dict(early=1, sleep=24), **K2))
```

```python
from common import *
K3_P = 272
RED = 0
FLAG = 159744
def k3_body(S, stamp=False, early=2, sleep=12):
    ACC = 8; AR = 88; WF = 168
    vA = (200, 201, 202, 203, 204); vW = (205, 206, 207, 208); vT = (209, 210, 211, 212); vT2 = (232, 233, 234, 235)
    XR = 216; vO = 213; vR = 214
    NW = 8
    def acc(ct, a): r = ACC + (ct * 5 + a) * 4; return 'v[%d:%d]' % (r, r + 3)
    def fa(s, a): r = AR + s * 20 + a * 4; return 'v[%d:%d]' % (r, r + 3)
    def fw(s, ct): r = WF + s * 16 + ct * 4; return r
    S('''
    s_load_dwordx2 s[4:5], s[0:1], 0
    s_load_dwordx2 s[6:7], s[0:1], 16
    s_load_dwordx4 s[64:67], s[0:1], 56
    s_and_b32 s43, s2, 7
    s_lshr_b32 s46, s2, 3
    s_mul_i32 s47, s43, 29
    s_min_u32 s43, s43, 2
    s_add_u32 s47, s47, s43
    s_add_u32 s47, s47, s46          ; tile
    s_mul_hi_u32 s32, s47, 0x1c71c71d ; mt
    s_mul_i32 s46, s32, 9
    s_sub_u32 s33, s47, s46          ; nt
    s_mul_i32 s46, s32, 460800
    v_lshlrev_b32 v3, 4, v2
    v_add_u32 v%d, s46, v3
    ''' % vA[0])
    for a in range(1, 5):
        S('v_add_u32 v%d, %d, v%d' % (vA[a], 92160 * a, vA[0]))
    S('''
    v_lshrrev_b32 v3, 3, v2
    v_and_b32 v4, 2, v3
    v_and_b32 v5, 7, v2
    v_xor_b32 v5, v5, v4
    v_lshlrev_b32 v5, 4, v5
    v_mul_u32_u24 v3, 1152, v3
    s_lshl_b32 s46, s33, 7
    v_add3_u32 v%d, v3, v5, s46
    v_xor_b32 v5, 64, v5
    v_add3_u32 v6, v3, v5, s46
    v_add_u32 v%d, %d, v6
    v_add_u32 v%d, %d, v%d
    v_add_u32 v%d, %d, v6
    s_lshl_b32 s49, s34, 12          ; wave part of the ring address
    s_mul_i32 s36, s34, 36864        ; W row offset of k-frag w
    s_lshl_b32 s38, s34, 10          ; A offset of k-frag w
    s_waitcnt lgkmcnt(0)
    ''' % (vW[0], vW[1], 9216 - 1024, vW[2], 2 * (9216 - 1024), vW[0], vW[3], 3 * (9216 - 1024)))
    srd(S, 16, 8, 9, AP_SZ, AP_OFF)
    srd(S, 20, 6, 7, 576 * 1152)
    srd(S, 12, 64, 65, 2304 * 1152)
    def wload(q):
        P = Stream()
        if q <= 3: srdn, off = '20:23', 4 * q * 36864
        elif q >= 5: srdn, off = '12:15', (4 * q - 18) * 36864
        if q == 4:
            P('''s_cmp_lt_u32 s34, 2
            s_cselect_b32 s76, s20, s12
            s_cselect_b32 s77, s21, s13
            s_cselect_b32 s78, s22, s14
            s_mov_b32 s79, 0x00020000
            s_cselect_b32 s37, %d, 0
            s_add_u32 s37, s37, s36
            s_sub_u32 s37, s37, %d''' % (18 * 36864, 2 * 36864))
            srdn = '76:79'
        else:
            P('s_add_u32 s37, s36, %d' % off)
        P('s_add_u32 m0, s49, %d' % ((q % NW) * 16384))
        for j in range(4):
            P('buffer_load_dwordx4 v%d, s[%s], s37 offen offset:%d lds' % (vW[j], srdn, j * 1024), tok_w=['W%d' % (q % NW)])
        return P
    def aload(q):
        P = Stream()
        P('s_add_u32 s39, s38, %d' % (4 * q * 1024))
        if q == 22:
            P('s_cmp_lt_u32 s34, 2')
            P('s_cselect_b32 s39, s39, 0x7f000000')
        for a in range(5):
            P('buffer_load_dwordx4 %s, v%d, s[16:19], s39 offen%s' % (fa(q & 3, a), vA[a], ' sc1' if q >= 4 else ''))
        return P
    NQ = 23
    for q in range(early): S.extend(wload(q)); S.extend(aload(q))
    S('''
    v_lshrrev_b32 v3, 4, v2          ; g
    v_bfe_u32 v4, v2, 2, 2           ; r
    v_and_b32 v5, 3, v2              ; c
    v_lshl_add_u32 v6, v3, 3, v4     ; 8g + r
    v_lshlrev_b32 v6, 7, v6
    v_add_u32 v6, s49, v6
    v_and_b32 v7, 1, v5
    v_lshl_add_u32 v6, v7, 3, v6     ; + (c&1)*8
    v_lshrrev_b32 v5, 1, v5
    v_lshl_add_u32 v6, v5, 4, v6     ; + (c>>1)*16
    v_and_b32 v4, 2, v4
    v_and_b32 v3, 1, v3
    v_lshl_or_b32 v4, v3, 2, v4      ; f
    v_lshlrev_b32 v4, 4, v4
    ''')
    for ct in range(4):
        S('v_xor_b32 v5, %d, v4' % (32 * ct))
        S('v_add_u32 v%d, v5, v6' % vT[ct])
        S('v_add_u32 v%d, 65536, v%d' % (vT2[ct], vT[ct]))
    srd(S, 24, 4, 5, 2048 * 1152)
    srd(S, 28, 66, 67, 2048 * 1152)
    srd(S, 72, 8, 9, CN_SZ, CN_OFF)
    S('''
    v_subrev_u32 v0, 256, v0
    v_lshrrev_b32 v3, 3, v0
    s_mul_i32 s46, s32, 80
    v_add_u32 v4, s46, v3
    v_mul_u32_u24 v4, 1152, v4
    v_and_b32 v5, 7, v0
    v_lshlrev_b32 v6, 4, v5
    s_lshl_b32 s47, s33, 7
    v_add3_u32 v%d, v4, v6, s47
    v_mul_u32_u24 v3, %d, v3
    v_lshlrev_b32 v5, 5, v5
    v_add_u32 v%d, v3, v5
    s_add_u32 s47, s46, 79
    s_min_u32 s47, s47, 2047
    s_lshr_b32 s46, s46, 7
    s_lshr_b32 s47, s47, 7
    s_lshl_b32 s46, s46, 8
    s_lshl_b32 s47, s47, 8
    v_mov_b32 v228, s46
    v_mov_b32 v229, s47
    v_mov_b32 v230, %d
    s_mov_b32 s52, 0
    s_mov_b32 s53, %d
    s_mov_b32 s54, %d
    ''' % (vO, K3_P, vR, FLAG, 32 * 1152, 64 * 1152))
    S('s_barrier')
    S('''s_mov_b32 s41, 1
    K3_OWN:
    ds_read_b32 v236, v230
    s_waitcnt lgkmcnt(0)
    s_add_u32 s41, s41, 1
    v_readfirstlane_b32 s42, v236
    s_cmp_ge_u32 s42, 4
    s_cbranch_scc1 K3_OWNED
    s_sleep 2
    s_cmp_lt_u32 s41, 0x400000
    s_cbranch_scc1 K3_OWN
    K3_OWNED:''')
    for q in range(early, 4): S.extend(wload(q)); S.extend(aload(q))
    for q in range(4, 8): S.extend(wload(q))
    def trreads(ws, q):
        g = []
        slot = q % NW
        for ct in range(4):
            for h in range(2):
                r = fw(ws, ct) + 2 * h
                g.append(G('ds_read_b64_tr_b16 v[%d:%d], v%d offset:%d' % (r, r + 1, (vT2 if slot >= 4 else vT)[ct], (slot & 3) * 16384 + h * 512)))
        return g
    def mf(ws, q):
        m = Stream()
        for ct in range(4):
            for a in range(5):
                r = fw(ws, ct)
                m('v_mfma_f32_16x16x32_bf16 %s, v[%d:%d], %s, %s' % (acc(ct, a), r, r + 3, fa(q & 3, a), '0' if q == 0 else acc(ct, a)))
        return m
    S.need('W0')
    for g in trreads(0, 0): S.extend(g)
    if stamp:
        stamp_mid(S, 82); S('s_waitcnt lgkmcnt(0)')
    for q in range(NQ):
        if q == 4:
            if stamp: stamp_mid(S, 84)
            S('''
            s_mov_b32 s41, 0
            s_cmp_lg_u32 s34, 0
            s_cbranch_scc1 K3_WAITL
            K3_POLL:
            buffer_load_dword v236, v228, s[72:75], 0 offen sc1
            buffer_load_dword v237, v229, s[72:75], 0 offen sc1
            s_waitcnt vmcnt(0)
            v_min_u32 v236, v236, v237
            s_add_u32 s41, s41, 1
            v_readfirstlane_b32 s42, v236
            s_cmp_ge_u32 s42, 16
            s_cbranch_scc1 K3_SET
            s_sleep %d
            s_cmp_lt_u32 s41, 0x20000
            s_cbranch_scc1 K3_POLL
            K3_SET:
            v_mov_b32 v236, 1
            ds_write_b32 v230, v236 offset:4
            s_branch K3_GO
            K3_WAITL:
            ds_read_b32 v236, v230 offset:4
            s_waitcnt lgkmcnt(0)
            s_add_u32 s41, s41, 1
            v_readfirstlane_b32 s42, v236
            s_cmp_lg_u32 s42, 0
            s_cbranch_scc1 K3_GO
            s_sleep 1
            s_cmp_lt_u32 s41, 0x400000
            s_cbranch_scc1 K3_WAITL
            K3_GO:
            '''.strip() % sleep)
            S.append(('RESETQ',))
            if stamp:
                stamp_mid(S, 86); S('s_waitcnt lgkmcnt(0)')
            for k in (4, 5, 6): S.extend(aload(k))
        if q >= 1 and q + 7 < NQ: S.extend(wload(q + 7))
        if q >= 4 and q + 3 < NQ: S.extend(aload(q + 3))
        if q == NQ - 3:
            for rd in range(3):
                S('buffer_load_dwordx4 v[%d:%d], v%d, s[24:27], s%d offen' % (XR + 4 * rd, XR + 4 * rd + 3, vO, 52 + rd))
        g = []
        if q + 1 < NQ:
            n = Stream(); n.need('W%d' % ((q + 1) % NW))
            g = trreads((q + 1) & 1, q + 1)
            g[0] = list(n) + g[0]
        S.extend(weave(mf(q & 1, q), g, 2, 14))
    if stamp: stamp_mid(S, 88)
    E = S
    E('''
    v_and_b32 v3, 15, v2
    v_mul_u32_u24 v3, %d, v3
    v_lshrrev_b32 v4, 4, v2
    v_lshl_add_u32 v3, v4, 4, v3
    s_mul_i32 s46, s34, %d
    v_add_u32 v3, s46, v3
    s_barrier
    ''' % (K3_P, 80 * K3_P))
    for a in range(5):
        for ct in range(4):
            E('ds_write_b128 v3, %s offset:%d' % (acc(ct, a), a * 16 * K3_P + ct * 64), tok_w=['RED'])
    E.need('RED')
    E('s_barrier')
    for rd in range(3):
        if rd == 2:
            E('s_cmp_ge_u32 s34, 2')
            E('s_cbranch_scc1 K3_DONE')
        base = 88 + rd * 32
        for c in range(4):
            if c == 3: E('v_add_u32 v4, %d, v%d' % (3 * 80 * K3_P, vR))
            for hh in range(2):
                r = base + c * 8 + hh * 4
                off = rd * 32 * K3_P + hh * 16 + (c * 80 * K3_P if c < 3 else 0)
                E('ds_read_b128 v[%d:%d], v%d offset:%d' % (r, r + 3, vR if c < 3 else 4, off))
        for e in range(8):
            E('v_add_f32 v%d, v%d, v%d' % (base + e, base + e, base + 8 + e))
            E('v_add_f32 v%d, v%d, v%d' % (base + 16 + e, base + 16 + e, base + 24 + e))
        for d in range(4):
            x = XR + 4 * rd + d
            E('v_lshlrev_b32 v5, 16, v%d' % x)
            E('v_and_b32 v6, 0xffff0000, v%d' % x)
            E('v_add_f32 v%d, v%d, v%d' % (base + 2 * d, base + 2 * d, base + 16 + 2 * d))
            E('v_add_f32 v%d, v%d, v%d' % (base + 2 * d + 1, base + 2 * d + 1, base + 17 + 2 * d))
            E('v_add_f32 v5, v5, v%d' % (base + 2 * d))
            E('v_add_f32 v6, v6, v%d' % (base + 2 * d + 1))
            E('v_cvt_pk_bf16_f32 v%d, v5, v6' % x)
        E('buffer_store_dwordx4 v[%d:%d], v%d, s[28:31], s%d offen' % (XR + 4 * rd, XR + 4 * rd + 3, vO, 52 + rd))
    E('K3_DONE:')
    if stamp:
        stamp_mid(E, 90)
        E('s_waitcnt vmcnt(0)')
        stamp_mid(E, 92)
        E('v_add_u32 v0, 256, v0')
        stamp_store(E, 60, [80, 82, 84, 86, 88, 90, 92], 8, 1, 64, 4)
```

```python
from common import *
K3_P = 272
RED = 0
FLAG = 159744
def k3_body(S, stamp=False, early=2, sleep=12, own=True, pre=0, red2=False):
    ACC = 8; AR = 88; WF = 168
    vA = (200, 201, 202, 203, 204); vW = (205, 206, 207, 208); vT = (209, 210, 211, 212); vT2 = (232, 233, 234, 235)
    XR = 216; vO = 213; vR = 214
    NW = 8
    def acc(ct, a): r = ACC + (ct * 5 + a) * 4; return 'v[%d:%d]' % (r, r + 3)
    def fa(s, a): r = AR + s * 20 + a * 4; return 'v[%d:%d]' % (r, r + 3)
    def fw(s, ct): r = WF + s * 16 + ct * 4; return r
    S('''
    s_load_dwordx2 s[4:5], s[0:1], 0
    s_load_dwordx2 s[6:7], s[0:1], 16
    s_load_dwordx4 s[64:67], s[0:1], 56
    s_and_b32 s43, s2, 7
    s_lshr_b32 s46, s2, 3
    s_mul_i32 s47, s43, 29
    s_min_u32 s43, s43, 2
    s_add_u32 s47, s47, s43
    s_add_u32 s47, s47, s46          ; tile
    s_mul_hi_u32 s32, s47, 0x1c71c71d ; mt
    s_mul_i32 s46, s32, 9
    s_sub_u32 s33, s47, s46          ; nt
    s_mul_i32 s46, s32, 460800
    v_lshlrev_b32 v3, 4, v2
    v_add_u32 v%d, s46, v3
    ''' % vA[0])
    for a in range(1, 5):
        S('v_add_u32 v%d, %d, v%d' % (vA[a], 92160 * a, vA[0]))
    S('''
    v_lshrrev_b32 v3, 3, v2
    v_and_b32 v4, 2, v3
    v_and_b32 v5, 7, v2
    v_xor_b32 v5, v5, v4
    v_lshlrev_b32 v5, 4, v5
    v_mul_u32_u24 v3, 1152, v3
    s_lshl_b32 s46, s33, 7
    v_add3_u32 v%d, v3, v5, s46
    v_xor_b32 v5, 64, v5
    v_add3_u32 v6, v3, v5, s46
    v_add_u32 v%d, %d, v6
    v_add_u32 v%d, %d, v%d
    v_add_u32 v%d, %d, v6
    s_lshl_b32 s49, s34, 12          ; wave part of the ring address
    s_mul_i32 s36, s34, 36864        ; W row offset of k-frag w
    s_lshl_b32 s38, s34, 10          ; A offset of k-frag w
    s_waitcnt lgkmcnt(0)
    ''' % (vW[0], vW[1], 9216 - 1024, vW[2], 2 * (9216 - 1024), vW[0], vW[3], 3 * (9216 - 1024)))
    srd(S, 16, 8, 9, AP_SZ, AP_OFF)
    srd(S, 20, 6, 7, 576 * 1152)
    srd(S, 12, 64, 65, 2304 * 1152)
    def wload(q):
        P = Stream()
        if q <= 3: srdn, off = '20:23', 4 * q * 36864
        elif q >= 5: srdn, off = '12:15', (4 * q - 18) * 36864
        if q == 4:
            P('''s_cmp_lt_u32 s34, 2
            s_cselect_b32 s76, s20, s12
            s_cselect_b32 s77, s21, s13
            s_cselect_b32 s78, s22, s14
            s_mov_b32 s79, 0x00020000
            s_cselect_b32 s37, %d, 0
            s_add_u32 s37, s37, s36
            s_sub_u32 s37, s37, %d''' % (18 * 36864, 2 * 36864))
            srdn = '76:79'
        else:
            P('s_add_u32 s37, s36, %d' % off)
        P('s_add_u32 m0, s49, %d' % ((q % NW) * 16384))
        for j in range(4):
            P('buffer_load_dwordx4 v%d, s[%s], s37 offen offset:%d lds' % (vW[j], srdn, j * 1024), tok_w=['W%d' % (q % NW)])
        return P
    def aload(q):
        P = Stream()
        P('s_add_u32 s39, s38, %d' % (4 * q * 1024))
        if q == 22:
            P('s_cmp_lt_u32 s34, 2')
            P('s_cselect_b32 s39, s39, 0x7f000000')
        for a in range(5):
            P('buffer_load_dwordx4 %s, v%d, s[16:19], s39 offen%s' % (fa(q & 3, a), vA[a], ' sc1' if q >= 4 else ''))
        return P
    NQ = 23
    for q in range(early): S.extend(wload(q)); S.extend(aload(q))
    S('''
    v_lshrrev_b32 v3, 4, v2          ; g
    v_bfe_u32 v4, v2, 2, 2           ; r
    v_and_b32 v5, 3, v2              ; c
    v_lshl_add_u32 v6, v3, 3, v4     ; 8g + r
    v_lshlrev_b32 v6, 7, v6
    v_add_u32 v6, s49, v6
    v_and_b32 v7, 1, v5
    v_lshl_add_u32 v6, v7, 3, v6     ; + (c&1)*8
    v_lshrrev_b32 v5, 1, v5
    v_lshl_add_u32 v6, v5, 4, v6     ; + (c>>1)*16
    v_and_b32 v4, 2, v4
    v_and_b32 v3, 1, v3
    v_lshl_or_b32 v4, v3, 2, v4      ; f
    v_lshlrev_b32 v4, 4, v4
    ''')
    for ct in range(4):
        if red2:
            S('s_add_u32 s46, s34, %d\ns_and_b32 s46, s46, 3\ns_lshl_b32 s46, s46, 5\nv_xor_b32 v5, s46, v4' % ct)
        else:
            S('v_xor_b32 v5, %d, v4' % (32 * ct))
        S('v_add_u32 v%d, v5, v6' % vT[ct])
        S('v_add_u32 v%d, 65536, v%d' % (vT2[ct], vT[ct]))
    srd(S, 24, 4, 5, 2048 * 1152)
    srd(S, 28, 66, 67, 2048 * 1152)
    srd(S, 72, 8, 9, CN_SZ, CN_OFF)
    S('''
    v_subrev_u32 v0, 256, v0
    v_lshrrev_b32 v3, 3, v0
    s_mul_i32 s46, s32, 80
    v_add_u32 v4, s46, v3
    v_mul_u32_u24 v4, 1152, v4
    v_and_b32 v5, 7, v0
    v_lshlrev_b32 v6, 4, v5
    s_lshl_b32 s47, s33, 7
    v_add3_u32 v%d, v4, v6, s47
    v_mul_u32_u24 v3, %d, v3
    v_lshlrev_b32 v5, 5, v5
    v_add_u32 v%d, v3, v5
    s_add_u32 s47, s46, 79
    s_min_u32 s47, s47, 2047
    s_lshr_b32 s46, s46, 7
    s_lshr_b32 s47, s47, 7
    s_lshl_b32 s46, s46, 8
    s_lshl_b32 s47, s47, 8
    v_mov_b32 v228, s46
    v_mov_b32 v229, s47
    v_mov_b32 v230, %d
    s_mov_b32 s52, 0
    s_mov_b32 s53, %d
    s_mov_b32 s54, %d
    ''' % (vO, K3_P, vR, FLAG, 32 * 1152, 64 * 1152))
    if red2:
        S('''v_and_b32 v3, 15, v2
        s_mul_i32 s46, s32, 80
        v_add_u32 v4, s46, v3
        v_mul_u32_u24 v4, 1152, v4
        v_lshrrev_b32 v5, 4, v2
        v_lshlrev_b32 v5, 3, v5
        s_lshl_b32 s47, s33, 7
        s_lshl_b32 s46, s34, 5
        s_add_u32 s47, s47, s46
        v_add3_u32 v%d, v4, v5, s47''' % vO)
        for a in range(5): S('s_mov_b32 s%d, %d' % (52 + a, a * 16 * 1152))
    S('s_barrier')
    def ownwait():
        S('''s_mov_b32 s41, 1
        K3_OWN:
        ds_read_b32 v236, v230
        s_waitcnt lgkmcnt(0)
        s_add_u32 s41, s41, 1
        v_readfirstlane_b32 s42, v236
        s_cmp_ge_u32 s42, 4
        s_cbranch_scc1 K3_OWNED
        s_sleep 2
        s_cmp_lt_u32 s41, 0x400000
        s_cbranch_scc1 K3_OWN
        K3_OWNED:''')
    def trreads(ws, q):
        g = []
        slot = q % NW
        for ct in range(4):
            for h in range(2):
                r = fw(ws, ct) + 2 * h
                g.append(G('ds_read_b64_tr_b16 v[%d:%d], v%d offset:%d' % (r, r + 1, (vT2 if slot >= 4 else vT)[ct], (slot & 3) * 16384 + h * 512)))
        return g
    def mf(ws, q):
        m = Stream()
        for ct in range(4):
            for a in range(5):
                r = fw(ws, ct)
                m('v_mfma_f32_16x16x32_bf16 %s, v[%d:%d], %s, %s' % (acc(ct, a), r, r + 3, fa(q & 3, a), '0' if q == 0 else acc(ct, a)))
        return m
    S.need('W0')
    for g in trreads(0, 0): S.extend(g)
    if stamp:
        stamp_mid(S, 82); S('s_waitcnt lgkmcnt(0)')
    for q in range(NQ):
        if q == pre:
            if own:
                S.append(('SAVEQ',)); ownwait(); S.append(('RESETQ',))
            for k in range(early, 4): S.extend(wload(k)); S.extend(aload(k))
            for k in range(4, 8 + pre): S.extend(wload(k))
        if q == 4:
            S.append(('SAVEQ',))
            if stamp: stamp_mid(S, 84)
            S('''
            s_mov_b32 s41, 0
            s_cmp_lg_u32 s34, 0
            s_cbranch_scc1 K3_WAITL
            K3_POLL:
            buffer_load_dword v236, v228, s[72:75], 0 offen sc1
            buffer_load_dword v237, v229, s[72:75], 0 offen sc1
            s_waitcnt vmcnt(0)
            v_min_u32 v236, v236, v237
            s_add_u32 s41, s41, 1
            v_readfirstlane_b32 s42, v236
            s_cmp_ge_u32 s42, 16
            s_cbranch_scc1 K3_SET
            s_sleep %d
            s_cmp_lt_u32 s41, 0x20000
            s_cbranch_scc1 K3_POLL
            K3_SET:
            v_mov_b32 v236, 1
            ds_write_b32 v230, v236 offset:4
            s_branch K3_GO
            K3_WAITL:
            ds_read_b32 v236, v230 offset:4
            s_waitcnt lgkmcnt(0)
            s_add_u32 s41, s41, 1
            v_readfirstlane_b32 s42, v236
            s_cmp_lg_u32 s42, 0
            s_cbranch_scc1 K3_GO
            s_sleep 1
            s_cmp_lt_u32 s41, 0x400000
            s_cbranch_scc1 K3_WAITL
            K3_GO:
            '''.strip() % sleep)
            S.append(('RESETQ',))
            if stamp:
                stamp_mid(S, 86); S('s_waitcnt lgkmcnt(0)')
            for k in (4, 5, 6): S.extend(aload(k))
        if q > pre and q + 7 < NQ: S.extend(wload(q + 7))
        if q >= 4 and q + 3 < NQ: S.extend(aload(q + 3))
        if q == NQ - 3:
            for rd in range(3 if not red2 else 0):
                S('buffer_load_dwordx4 v[%d:%d], v%d, s[24:27], s%d offen' % (XR + 4 * rd, XR + 4 * rd + 3, vO, 52 + rd))
            for a in range(5 if red2 else 0):
                S('buffer_load_dwordx2 v[%d:%d], v%d, s[24:27], s%d offen' % (XR + 2 * a, XR + 2 * a + 1, vO, 52 + a))
        g = []
        if q + 1 < NQ:
            n = Stream(); n.need('W%d' % ((q + 1) % NW))
            g = trreads((q + 1) & 1, q + 1)
            g[0] = list(n) + g[0]
        S.extend(weave(mf(q & 1, q), g, 2, 14))
    if stamp: stamp_mid(S, 88)
    E = S
    if red2:
        E("""
        v_lshlrev_b32 v3, 4, v2
        s_mul_i32 s46, s34, 15360
        v_add_u32 v4, s46, v3
        s_barrier
        """)
        for d in range(1, 4):
            E("""s_add_u32 s47, s34, %d
            s_and_b32 s47, s47, 3
            s_mul_i32 s47, s47, 15360
            v_add_u32 v5, s47, v3""" % d)
            for a in range(5):
                E('ds_write_b128 v5, %s offset:%d' % (acc(d, a), (d - 1) * 5120 + a * 1024), tok_w=['RED'])
        E.need('RED')
        E('s_barrier')
        for d in range(3):
            for a in range(5):
                r = AR + (d * 5 + a) * 4
                E('ds_read_b128 v[%d:%d], v4 offset:%d' % (r, r + 3, d * 5120 + a * 1024))
        for a in range(5):
            o = ACC + a * 4
            for e in range(4):
                E('v_add_f32 v%d, v%d, v%d' % (o + e, o + e, AR + a * 4 + e))
                E('v_add_f32 v%d, v%d, v%d' % (AR + 20 + a * 4 + e, AR + 20 + a * 4 + e, AR + 40 + a * 4 + e))
            for d in range(2):
                x = XR + 2 * a + d
                E('v_lshlrev_b32 v5, 16, v%d' % x)
                E('v_and_b32 v6, 0xffff0000, v%d' % x)
                E('v_add_f32 v%d, v%d, v%d' % (o + 2 * d, o + 2 * d, AR + 20 + a * 4 + 2 * d))
                E('v_add_f32 v%d, v%d, v%d' % (o + 2 * d + 1, o + 2 * d + 1, AR + 21 + a * 4 + 2 * d))
                E('v_add_f32 v5, v5, v%d' % (o + 2 * d))
                E('v_add_f32 v6, v6, v%d' % (o + 2 * d + 1))
                E('v_cvt_pk_bf16_f32 v%d, v5, v6' % x)
            E('buffer_store_dwordx2 v[%d:%d], v%d, s[28:31], s%d offen' % (XR + 2 * a, XR + 2 * a + 1, vO, 52 + a))
    else:
        E('''
        v_and_b32 v3, 15, v2
        v_mul_u32_u24 v3, %d, v3
        v_lshrrev_b32 v4, 4, v2
        v_lshl_add_u32 v3, v4, 4, v3
        s_mul_i32 s46, s34, %d
        v_add_u32 v3, s46, v3
        s_barrier
        ''' % (K3_P, 80 * K3_P))
        for a in range(5):
            for ct in range(4):
                E('ds_write_b128 v3, %s offset:%d' % (acc(ct, a), a * 16 * K3_P + ct * 64), tok_w=['RED'])
        E.need('RED')
        E('s_barrier')
        for rd in range(3):
            if rd == 2:
                E('s_cmp_ge_u32 s34, 2')
                E('s_cbranch_scc1 K3_DONE')
            base = 88 + rd * 32
            for c in range(4):
                if c == 3: E('v_add_u32 v4, %d, v%d' % (3 * 80 * K3_P, vR))
                for hh in range(2):
                    r = base + c * 8 + hh * 4
                    off = rd * 32 * K3_P + hh * 16 + (c * 80 * K3_P if c < 3 else 0)
                    E('ds_read_b128 v[%d:%d], v%d offset:%d' % (r, r + 3, vR if c < 3 else 4, off))
            for e in range(8):
                E('v_add_f32 v%d, v%d, v%d' % (base + e, base + e, base + 8 + e))
                E('v_add_f32 v%d, v%d, v%d' % (base + 16 + e, base + 16 + e, base + 24 + e))
            for d in range(4):
                x = XR + 4 * rd + d
                E('v_lshlrev_b32 v5, 16, v%d' % x)
                E('v_and_b32 v6, 0xffff0000, v%d' % x)
                E('v_add_f32 v%d, v%d, v%d' % (base + 2 * d, base + 2 * d, base + 16 + 2 * d))
                E('v_add_f32 v%d, v%d, v%d' % (base + 2 * d + 1, base + 2 * d + 1, base + 17 + 2 * d))
                E('v_add_f32 v5, v5, v%d' % (base + 2 * d))
                E('v_add_f32 v6, v6, v%d' % (base + 2 * d + 1))
                E('v_cvt_pk_bf16_f32 v%d, v5, v6' % x)
            E('buffer_store_dwordx4 v[%d:%d], v%d, s[28:31], s%d offen' % (XR + 4 * rd, XR + 4 * rd + 3, vO, 52 + rd))
    E('K3_DONE:')
    if stamp:
        stamp_mid(E, 90)
        E('s_waitcnt vmcnt(0)')
        stamp_mid(E, 92)
        E('v_add_u32 v0, 256, v0')
        stamp_store(E, 60, [80, 82, 84, 86, 88, 90, 92], 8, 1, 64, 4)
        E('''s_and_b32 s46, s2, 63
        s_or_b32 s46, s46, s34
        s_cmp_lg_u32 s46, 0
        s_cbranch_scc1 K3_NODBG
        s_add_u32 s40, s8, 0x%x
        s_addc_u32 s41, s9, 0
        s_lshl_b32 s46, s2, 8
        s_load_dwordx2 s[42:43], s[40:41], s46
        s_add_u32 s40, s8, 0x%x
        s_addc_u32 s41, s9, 0
        s_add_u32 s47, s46, 24
        s_load_dword s44, s[40:41], s47
        s_load_dwordx2 s[12:13], s[0:1], 72
        s_memrealtime s[50:51]
        s_waitcnt lgkmcnt(0)
        s_mov_b32 s14, 256
        s_mov_b32 s15, 0x00020000
        s_sub_u32 s43, s43, s42
        s_sub_u32 s45, s100, s42
        s_sub_u32 s50, s50, s42
        v_mov_b32 v8, s43
        v_mov_b32 v9, s45
        v_mov_b32 v10, s50
        v_mov_b32 v11, s44
        s_lshr_b32 s46, s2, 2
        v_mov_b32 v4, 0
        s_mov_b64 exec, 1
        buffer_store_dwordx4 v[8:11], v4, s[12:15], s46 offen
        s_mov_b64 exec, -1
        K3_NODBG:''' % (TS_OFF + 0x40000, TS_OFF))
```

```python
from common import *
import k1_v2 as V2
from k1_v2 import fbits, q4, gelu4, rowstats, dots, norm4, flatten, m64, setm, is_mem, C1, C2, SCL
SLOT = 20480
T1_OFF = 40960; T2_OFF = 81920; XH_OFF = 143360; ZB_OFF = 81920; QB_OFF = 119808; SB_OFF = 161792
K1_LDS = 163840
QP = 240; ZP = 296
XF = 112; ACC = 40; WFR = 16; NRING = 5
NR1 = 6; P1 = NR1 * 2048; P2 = (9 - NR1) * 2048
sBLK = 54
vT = 4; vC2 = 9
OPT = {}
assert all((i * 3277) >> 16 == i // 20 for i in range(1280)) and all((r * 43) >> 8 == r // 6 for r in range(18))
def xf(j, b): r = XF + (j * 2 + b) * 4; return 'v[%d:%d]' % (r, r + 3)
LN1 = 40; LN2 = XF + 16 * NR1; ST = 88
def ln(g, j): return (LN1 + (g * NR1 + j) * 4 if g < 2 else 16 + 4 * j) if j < NR1 else LN2 + (g * (9 - NR1) + j - NR1) * 4
PH = [('Z2', 9216, 4608), ('Q', 3456, 0), ('Z1', 9216, 0)]
vDZ = 16; vDQ = 21
def wt(x):
    if isinstance(x, str): return 1
    if isinstance(x, list): return sum(wt(y) for y in x)
    if x.kind in ('need', 'label'): return 0
    if x.kind in ('trans', 'mfma'): return 2
    if x.kind == 'salu': return 0.5
    return 1

def wdma(n):
    ph, j = divmod(n, 9)
    nm, pitch, add = PH[ph]
    P = Stream()
    P('s_mul_i32 s63, s%d, %d' % (sBLK + j, 64 * pitch))
    if add: P('s_add_u32 s63, s63, %d' % add)
    isq = nm == 'Q'
    P('s_add_u32 s63, s63, s%d' % (65 if isq else 64))
    for e in range(5):
        P('s_add_u32 m0, s68, %d' % ((n & 3) * SLOT + e * 4096))
        P('buffer_load_dwordx4 v%d, s[%s], s63 offen lds' % ((vDQ if isq else vDZ) + e, '20:23' if isq else '24:27'), tok_w=['W%d' % n])
    return P

def head(S, stamp, xmap, rot):
    S('''
    s_load_dwordx4 s[4:7], s[0:1], 0
    s_load_dwordx2 s[8:9], s[0:1], 32
    s_load_dwordx4 s[12:15], s[0:1], 72
    s_load_dwordx2 s[10:11], s[0:1], 40
    s_cmp_ge_u32 s2, 256
    s_cbranch_scc1 K1_END
    ''')
    if stamp: stamp_begin(S, 84)
    S('''
    v_lshrrev_b32 v10, 6, v0
    v_and_b32 v1, 63, v0
    v_readfirstlane_b32 s50, v10
    s_and_b32 s63, s2, 7
    s_lshr_b32 s64, s2, 3
    ''')
    if xmap == '84':
        S('''
        s_and_b32 s48, s63, 1
        s_lshl_b32 s48, s48, 3
        s_and_b32 s65, s64, 7
        s_add_u32 s48, s48, s65
        s_lshr_b32 s49, s63, 1
        s_lshl_b32 s49, s49, 2
        s_lshr_b32 s64, s64, 3
        s_add_u32 s49, s49, s64
        s_lshl_b32 s64, s64, 1
        s_add_u32 s53, s64, s65
        ''')
    else:
        S('''
        s_lshr_b32 s48, s63, 1
        s_lshl_b32 s48, s48, 2
        s_and_b32 s65, s64, 3
        s_add_u32 s48, s48, s65
        s_and_b32 s49, s63, 1
        s_lshl_b32 s49, s49, 3
        s_lshr_b32 s64, s64, 2
        s_add_u32 s49, s49, s64
        s_lshl_b32 s65, s65, 1
        s_add_u32 s53, s64, s65
        ''')
    if not rot: S('s_mov_b32 s53, 0')
    S('''
    s_sub_u32 s64, s53, 9
    s_cmp_ge_u32 s53, 9
    s_cselect_b32 s%d, s64, s53
    s_and_b32 s51, s50, 3
    s_and_b32 s52, s49, 1
    s_lshl_b32 s63, s48, 7
    s_lshl_b32 s64, s51, 5
    s_add_u32 s63, s63, s64
    s_lshr_b32 s64, s50, 2
    s_mul_i32 s64, s64, 24
    s_add_u32 s63, s63, s64
    v_lshrrev_b32 v12, 3, v1
    v_and_b32 v13, 7, v1
    v_add_u32 v10, s63, v12
    v_mul_u32_u24 v10, 1152, v10
    v_lshl_add_u32 v10, v13, 4, v10
    v_add_u32 v11, 9216, v10
    v_add_u32 v14, 18432, v10
    ''' % sBLK)
    for j in range(1, 9):
        S('s_add_u32 s%d, s%d, 1' % (sBLK + j, sBLK + j - 1))
        S('s_cmp_eq_u32 s%d, 9' % (sBLK + j))
        S('s_cselect_b32 s%d, 0, s%d' % (sBLK + j, sBLK + j))
    for j in range(9): S('s_lshl_b32 s%d, s%d, 7' % (69 + j, sBLK + j))
    S('s_waitcnt lgkmcnt(0)')
    srd(S, 16, 4, 5, 2048 * 1152)
    S('s_cmp_ge_u32 s50, 4')
    S('s_cbranch_scc1 K1_HELP')

def xloads(S, gs):
    for g in gs:
        for j in range(9):
            S('buffer_load_dwordx4 %s, v%d, s[16:19], s%d offen' % (q4(ln(g, j)), (10, 11, 14)[g], 69 + j))
def common_setup(S):
    srd(S, 28, 14, 15, AP_SZ, AP_OFF)
    srd(S, 36, 14, 15, Z2P_SZ, Z2P_OFF)
    srd(S, 40, 14, 15, FL_OFF + FL_SZ - ST_OFF, ST_OFF)
    srd(S, 44, 12, 13, 256)
    S('s_mov_b32 s79, 0x%x' % fbits(SCL))
    S('''
    s_mov_b32 s82, 0x3f803f80
    s_mov_b32 s83, 0x%x
    v_xor_b32 v102, v12, v13
    v_and_b32 v103, 3, v1
    v_lshl_add_u32 v102, v103, 4, v102
    v_lshlrev_b32 v102, 4, v102
    v_bfe_u32 v104, v1, 2, 1
    v_lshl_add_u32 v102, v104, 10, v102
    s_mul_i32 s63, s51, %d
    s_add_u32 s63, s63, %d
    v_add_u32 v5, s63, v102              ; transit write address
    v_and_b32 v101, 15, v1
    v_lshrrev_b32 v105, 4, v1
    v_xor_b32 v102, v101, v105
    v_lshl_add_u32 v102, v105, 4, v102
    v_lshlrev_b32 v6, 4, v102            ; plain frag read offset (even)
    v_mul_u32_u24 v105, 2560, v105
    v_bfe_u32 v101, v1, 2, 2
    v_mul_u32_u24 v101, 320, v101
    v_lshlrev_b32 v103, 3, v103
    v_add3_u32 v%d, v105, v101, v103
    ''' % (fbits(1.0 / 576), 2 * P1, T1_OFF, vT))

def goff(k, P): return (k >> 1) * P + (k & 1) * 128
def layernorm(S, ks, mid=None, mid2=None):
    ng = len(ks)
    for g in range(ng):
        st = ST + 2 * g
        regs = [ln(g, j) + d for j in range(9) for d in range(4)]
        S.extend(dots(regs, st, st + 1))
        if OPT.get('ptrace'): stamp_mid(S, 88 + 4 * (g & 1))
        if g == 0 and ng > 1: xloads(S, [1, 2] if OPT.get('x12', 0) else [1])
        for m in ('quad_perm:[1,0,3,2]', 'quad_perm:[2,3,0,1]', 'row_half_mirror'):
            for r in range(st, st + 2):
                S('v_add_f32_dpp v%d, v%d, v%d %s row_mask:0xf bank_mask:0xf' % (r, r, r, m))
        rowstats(S, st, ST + 6, 's83')
        if g == ng - 1 and mid: S.extend(mid)
        for j in range(NR1):
            norm4(S, ln(g, j), st, ST + 6)
            S('ds_write_b128 v5, %s offset:%d' % (q4(ln(g, j)), goff(ks[g], P1) + j * 2048), tok_w=['T'])
        if g < ng - 1:
            for j in range(NR1, 9): norm4(S, ln(g, j), st, ST + 6)
            if OPT.get('ptrace'): stamp_mid(S, 90)
        if g == 0 and ng > 2 and not OPT.get('x12', 0): xloads(S, [2])
    if mid2: S.extend(mid2)
    if OPT.get('ptrace'): stamp_mid(S, 94)
    S.need('T')
    S('s_barrier')
    if OPT.get('ptrace'): stamp_mid(S, 96)
def t2_writes(ks):
    A = Stream()
    for j in range(NR1, 9):
        for g in range(len(ks)):
            A('ds_write_b128 v5, %s offset:%d' % (q4(ln(g, j)), goff(ks[g], P2) + (j - NR1) * 2048), tok_w=['T2'])
    return A
def t2_addr(S):
    S('s_mul_i32 s63, s51, %d' % (2 * (P2 - P1)))
    S('s_add_u32 s63, s63, %d' % (T2_OFF - T1_OFF))
    S('v_add_u32 v5, s63, v5')

def emit(F, out):
    ren = {'ATOMIC': 'FLAG', 'POLLISSUE': 'FISSUE', 'POLLCHECK': 'FCHECK'} if OPT.get('flags', 1) else {}
    for x in flatten(out):
        if isinstance(x, str): x = ren.get(x, x)
        if isinstance(x, tuple) and x[0] == 'DMA5':
            _, n, txt, off = x
            lab = 'K1_D%d' % n
            F.run(G('s_cmp_eq_u32 s51, 3\ns_cbranch_scc1 %s\ns_add_u32 m0, s68, %d' % (lab, off)))
            F.add(I(txt)); F.vmq.pop()
            F.run(G(lab + ':'))
        elif isinstance(x, tuple) and x[0] == 'KEEPQ':
            if x[1] == 0: keep = [set(q) for q in F.vmq]
            else: F.vmq = keep
        elif x == 'POLLISSUE':
            F.run(G('s_cmp_lg_u32 s51, 0\ns_cbranch_scc1 K1_NOPI'))
            F.run(poll_issue(3, 6)); F.vmq.pop()
            F.run(G('K1_NOPI:'))
        elif x == 'ENTRY1':
            F.run(G('''s_lshl_b32 s67, s48, 8
            s_add_u32 s67, s67, %d
            v_lshlrev_b32 v37, 2, v1
            v_mov_b32 v6, 0
            buffer_load_dword v36, v37, s[40:43], s67 offen sc1''' % (FL_OFF - ST_OFF)))
        elif x == 'ENTRY2':
            F.run(G('''v_add_u32 v36, 1, v36
            v_mov_b32 v7, 1
            s_lshl_b32 s9, s48, 4
            s_cmp_lg_u32 s51, 0
            s_cbranch_scc1 K1_NOENT
            s_mov_b64 exec, 1'''))
            F.add(I('buffer_atomic_add v7, v6, s[44:47], s9 offen sc1')); F.vmq.pop()
            F.run(G('s_mov_b64 exec, -1\nK1_NOENT:'))
        elif x == 'GATE1':
            F.run(G('buffer_load_dword v38, v6, s[44:47], s9 offen sc1'))
        elif x == 'GATE2':
            F.run(G('v_mov_b32 v39, v38\ns_cmp_lg_u32 s51, 0\ns_cbranch_scc1 K1_NOPOLLG'))
            keep = [set(q) for q in F.vmq]
            P = Stream(); poll(P, 'G', 38, 6)
            F.run([y for y in P if not isinstance(y, tuple)]); F.vmq = keep
        elif x == 'FLAG':
            F.run(G('''s_cmp_lg_u32 s51, 0
            s_cbranch_scc1 K1_NOAT
            s_lshl_b64 exec, 1, s49'''))
            F.add(I('buffer_store_dword v36, v37, s[40:43], s67 offen sc1')); F.vmq.pop()
            F.run(G('s_mov_b64 exec, -1\nK1_NOAT:'))
        elif x == 'FISSUE':
            F.run(G('buffer_load_dword v3, v37, s[40:43], s67 offen sc1'))
        elif x == 'FCHECK':
            F.run(G('v_mov_b32 v39, v3\ns_cmp_lg_u32 s51, 0\ns_cbranch_scc1 K1_FOK'))
            keep = [set(q) for q in F.vmq]
            F.run(G('''s_mov_b32 s10, 0
            K1_FPOLL:
            v_cmp_ne_u32 vcc, v3, v36
            s_and_b32 s11, vcc_lo, 0xffff
            s_cbranch_scc0 K1_FOK
            s_sleep %d
            buffer_load_dword v3, v37, s[40:43], s67 offen sc1
            s_add_u32 s10, s10, 1
            s_cmp_lt_u32 s10, 0x20000
            s_waitcnt vmcnt(0)
            s_cbranch_scc1 K1_FPOLL
            K1_FOK:''' % OPT.get('slp', 4)))
            F.vmq = keep
        elif x == 'POLLCHECK':
            P = Stream()
            P('s_cmp_lg_u32 s51, 0\ns_cbranch_scc1 K1_NOPOLLH')
            F.run(P); keep = [set(q) for q in F.vmq]
            P = Stream(); P('s_waitcnt vmcnt(0)'); poll(P, 'H', 3, 6)
            F.run([y for y in P if not isinstance(y, tuple)]); F.vmq = keep
        elif x == 'ZERO':
            Z = Stream()
            Z('s_or_b32 s12, s2, s51\ns_cmp_lg_u32 s12, 0\ns_cbranch_scc1 K1_NOZ')
            srd(Z, 4, 14, 15, CN_SZ, CN_OFF)
            Z('v_lshlrev_b32 v33, 6, v1\nv_mov_b32 v32, 0')
            F.run(Z)
            F.add(I('buffer_store_dword v32, v33, s[4:7], 0 offen')); F.vmq.pop()
            F.run(G('K1_NOZ:'))
        elif x == 'ATOMIC':
            F.run(G('''s_cmp_lg_u32 s51, 0
            s_cbranch_scc1 K1_NOAT
            v_mov_b32 v7, 1
            s_mov_b64 exec, 1'''))
            F.add(I('buffer_atomic_add v7, v6, s[44:47], s9 offen sc1')); F.vmq.pop()
            F.run(G('s_mov_b64 exec, -1\nK1_NOAT:'))
        else:
            F.add(x)

def table_text():
    out = ['.p2align 8', 'K1_TAB:']
    for rg in range(4):
        vals = []
        for lane in range(64):
            v = []
            zq = []
            for e in range(5):
                i = 64 * (rg + 4 * e) + lane
                row, p = divmod(i, 20)
                sh = 2 * ((row >> 3) & 1)
                v.append(row * 9216 + (p ^ sh) * 16)
                pp = p - sh
                zq.append(row * 3456 + (1152, 2304, 0)[pp // 6] + (pp % 6) * 16 if 0 <= pp < 18 else 0x7f000000)
            hi = 4 * rg + (lane >> 4); g = lane & 3
            v += zq + [XH_OFF + ((lane >> 2) & 3) * 1024 + (g * 16 + (hi ^ g)) * 16, (hi * 1152 + (lane & 7) * 16)]
            vals.append(v)
        for q in range(3):
            for l0 in range(0, 64, 4):
                out.append('.long ' + ','.join(str(x) for l in range(l0, l0 + 4) for x in vals[l][4 * q:4 * q + 4]))
    return '\n'.join(out) + '\n'

def gen_k1(stamp=False, xmap='84', rot=True, **opt):
    OPT.clear(); OPT.update(opt); V2.OPT.clear()
    global stamp_mid
    import common
    if OPT.get('ptrace'):
        seen = {}
        def sm(S, r):
            k = (id(S), r)
            if r == 88 and k in seen: r = 70
            k = (id(S), r)
            if k in seen: return
            seen[k] = 1
            if r == 70: common.stamp_mid(S, 66); return
            common.stamp_mid(S, r)
        stamp_mid = sm
    else:
        stamp_mid = common.stamp_mid
    F = Finisher()
    S = Stream()
    head(S, stamp, xmap, rot)
    F.run(S)
    txt = F.text()
    zzq = OPT.get('zzq')
    PH[1:] = [('Z1', 9216, 0), ('Q', 3456, 0)] if zzq else [('Q', 3456, 0), ('Z1', 9216, 0)]
    for role in ((compute2, helper) if zzq else (compute, helper)):
        G2 = Finisher()
        G2.vmq = [set(x) for x in F.vmq]; G2.lgq = [(set(a), b) for a, b in F.lgq]; G2.hist = list(F.hist)
        emit(G2, role(stamp))
        txt += G2.text()
    return txt, 256

def pf_setup(S):
    S("""s_load_dwordx2 s[20:21], s[0:1], 56
    s_load_dwordx2 s[24:25], s[0:1], 16
    s_mov_b32 s4, s10
    s_or_b32 s5, s11, 0x800000
    s_mov_b32 s6, %d
    s_mov_b32 s7, 0x00020000
    s_mov_b32 s22, %d
    s_mov_b32 s23, 0x00020000
    s_mov_b32 s26, %d
    s_mov_b32 s27, 0x00020000
    s_lshl_b32 s8, s2, 15
    s_lshl_b32 s9, s51, 11
    s_add_u32 s8, s8, s9
    s_mul_i32 s9, s2, 10368
    s_mul_i32 s10, s51, 2688
    s_add_u32 s9, s9, s10
    s_min_u32 s9, s9, 2651520
    s_mul_i32 s10, s2, 2688
    s_mul_i32 s11, s51, 768
    s_add_u32 s10, s10, s11
    s_min_u32 s10, s10, 662784
    s_mov_b32 m0, %d
    s_waitcnt lgkmcnt(0)
    s_or_b32 s21, s21, 0x800000
    s_or_b32 s25, s25, 0x800000""" % (2048 * 32, 2304 * 9, 576 * 9, SB_OFF))
def pf_touch(k):
    if k < 4:
        return G("""s_mov_b64 exec, 0xffff
        buffer_load_dword v1, s[4:7], s8 idxen lds
        s_mov_b64 exec, -1
        s_add_u32 s8, s8, 8192""")
    return G("""s_mov_b64 exec, 0x%x
    buffer_load_dword v1, s[%s], s%d idxen lds
    s_mov_b64 exec, -1""" % ((0x1fffff, '20:23', 9) if k == 4 else (0x3f, '24:27', 10)))

def compute(stamp):
    S = Stream()
    vXe = 6; vXo = 7
    xloads(S, [0])
    common_setup(S)
    srd(S, 32, 14, 15, Z1P_SZ, Z1P_OFF)
    if OPT.get('pfc'): pf_setup(S)
    S('''
    s_mul_i32 s63, s51, %d
    s_add_u32 s63, s63, %d
    v_add_u32 v6, s63, v6
    v_xor_b32 v7, 64, v6
    ''' % (2 * P1, T1_OFF))
    if stamp: stamp_mid(S, 86)
    layernorm(S, [0, 1, 2])
    for q in range(2 * NR1):
        for b in range(2):
            S('ds_read_b128 %s, v%d offset:%d' % (xf(q, b), vXo if q & 1 else vXe, b * P1 + q * 1024), tok_w=['TR'])
    for j in range(NR1, 9): norm4(S, ln(2, j), ST + 4, ST + 6)
    t2_addr(S)
    S('s_mul_i32 s63, s51, %d' % (2 * (P2 - P1)))
    S('s_add_u32 s63, s63, %d' % (T2_OFF - T1_OFF))
    S.need('TR')
    S('s_barrier')
    S('v_add_u32 v6, s63, v6')
    S('v_add_u32 v7, s63, v7')
    S('s_setprio %d' % OPT.get('prio', 2))
    if stamp: stamp_mid(S, 88)
    ntile = [9, 7, 9]
    def acc(c, b): return ACC + (c * 2 + b) * 4
    hA = ACC + 56; hX = ACC + 64; hW = ACC + 68
    vTa = 2; vTb = 3; vq2 = 6; vq4 = 8; vQb = 5; vXH = 9; vqh = 7; vTs = 4
    frs = [(n, ks, c) for n in range(27) for ks in range(2) for c in range(ntile[n // 9])]
    bias = {}
    extra_tok = {1: ['T2'], 9: ['TR2'], 10: ['HB'], 18: ['XHR'], 19: ['QB']}
    QIMM = {0: 0, 1: 32, 3: 120, 5: 160 + 48, 6: 192 + 48}
    def zaddr(mode):
        g = Stream()
        g("""v_bfe_u32 v15, v1, 4, 1
        v_lshlrev_b32 v15, 5, v15""")
        if mode == 0:
            g("""s_cmp_eq_u32 s52, 0
            s_cselect_b32 s98, 1, -1
            s_lshl_b32 s99, s52, 5
            v_mul_lo_u32 v15, v15, s98
            v_add3_u32 v%d, v%d, v15, s99
            v_sub_u32 v%d, v%d, v15
            v_add_u32 v%d, s99, v%d""" % (vTa, vT, vTb, vT, vTb, vTb))
        else:
            g("""s_lshl_b32 s99, s52, 6
            v_add3_u32 v%d, v%d, v15, s99
            v_sub_u32 v%d, v%d, v15
            v_add_u32 v%d, 256, v%d
            v_add_u32 v15, 32, v%d
            s_cmp_eq_u32 s52, 0
            s_cselect_b64 vcc, -1, 0
            v_cndmask_b32 v%d, v15, v%d, vcc
            v_add_u32 v%d, s99, v%d
            v_add_u32 v%d, %d, v%d
            v_add_u32 v%d, %d, v%d
            v_add_u32 v%d, %d, v%d""" % (vTa, vT, vTb, vT, vTs, vTa, vTb, vTs, vTs, vTb, vTb, vTa, 2 * SLOT, vTa, vTb, 2 * SLOT, vTb, vTs, 2 * SLOT, vTs))
        return g
    def qaddr():
        g = Stream()
        g("""v_bfe_u32 v15, v1, 4, 1
        v_lshlrev_b32 v15, 5, v15
        s_mul_i32 s98, s49, 72
        s_and_b32 s98, s98, 31
        v_add3_u32 v{qb}, v{T}, v15, s98
        v_and_b32 v15, 3, v1
        v_cmp_le_u32 vcc, 2, v15
        v_cndmask_b32 v14, 0, 24, vcc
        v_add_u32 v14, 152, v14
        v_add_u32 v{q4}, v{qb}, v14
        v_cmp_le_u32 vcc, 1, v15
        v_cndmask_b32 v14, 0, 24, vcc
        v_add_u32 v14, 64, v14
        v_add_u32 v{q2}, v{qb}, v14
        s_lshl_b32 s69, s51, 5
        s_cmp_eq_u32 s51, 3
        s_cselect_b32 s99, 24, 0
        s_add_u32 s99, s99, s69
        v_add_u32 v{qh}, s99, v{qb}
        s_cmp_eq_u32 s51, 2
        s_cselect_b64 vcc, -1, 0
        v_cndmask_b32 v{qh}, v{qh}, v{q2}, vcc
        v_and_b32 v14, 15, v1
        v_lshrrev_b32 v15, 4, v1
        v_xor_b32 v14, v14, v15
        v_lshl_add_u32 v14, v15, 4, v14
        v_lshlrev_b32 v14, 4, v14
        v_add_u32 v{xh}, {XH}, v14""".format(qb=vQb, T=vT, q4=vq4, q2=vq2, qh=vqh, xh=vXH, XH=XH_OFF))
        return g
    def toggle(g, ar, n):
        want = (n & 3) >> 1
        if bias.get(ar, 0) != want:
            g('v_add_u32 v%d, %d, v%d' % (ar, 2 * SLOT if want else -2 * SLOT, ar))
            bias[ar] = want
    def halo_read(q):
        g = Stream()
        n = 9 + q // 2
        g('ds_read_b128 %s, v%d offset:%d' % (q4(hX), vXH, q * 1024), tok_w=['XHR'])
        toggle(g, vqh, n)
        for hh in range(2):
            g('ds_read_b64_tr_b16 v[%d:%d], v%d offset:%d' % (hW + 2 * hh, hW + 2 * hh + 1, vqh, (n & 1) * SLOT + (q & 1) * 10240 + hh * 1280))
        return g
    def read(f):
        n, ks, c = frs[f]
        ph = n // 9
        g = Stream()
        if ks == 0 and c == 0:
            if n > 0:
                if n in extra_tok: g.need(*extra_tok[n])
                if n > 10: g.need('ZCdone')
                g('s_barrier')
            if n == 0: g.extend(zaddr(0))
            if n == 18:
                for r in (vTa, vTb, vTs): bias[r] = 1
        if ph == 0: ar, coff = (vTb if c & 1 else vTa), 32 * c
        elif ph == 1: ar, coff = (vq2, 0) if c == 2 else ((vq4, 0) if c == 4 else (vQb, QIMM[c]))
        else: ar, coff = ((vTb if c & 1 else vTa), 32 * c) if c < 8 else (vTs, 0)
        toggle(g, ar, n)
        r = WFR + (f % NRING) * 4
        for hh in range(2):
            if OPT.get('halfread') and hh == 1:
                g('s_nop 0'); continue
            g('ds_read_b64_tr_b16 v[%d:%d], v%d offset:%d' % (r + 2 * hh, r + 2 * hh + 1, ar, (n & 1) * SLOT + ks * 10240 + hh * 1280 + coff))
        return g
    D = NRING - 1
    for f in range(D): S.extend(read(f))
    def tmpr(ph, c, b):
        pairs = [12, 14, 2] if ph == 0 else [12, 14, 6, 8]
        return pairs[(2 * c + b) % len(pairs)]
    def cvt(ph, c, b):
        a = acc(c, b); t = tmpr(ph, c, b)
        return G('v_cvt_pk_bf16_f32 v%d, v%d, v%d\nv_cvt_pk_bf16_f32 v%d, v%d, v%d' % (t, a, a + 1, t + 1, a + 2, a + 3))
    def cvti(a):
        return G('v_cvt_pk_bf16_f32 v%d, v%d, v%d\nv_cvt_pk_bf16_f32 v%d, v%d, v%d' % (a, a, a + 1, a + 1, a + 2, a + 3))
    def dw(ph, c, b, src=None):
        t = tmpr(ph, c, b) if src is None else src
        if OPT.get('nodw'): return []
        if ph == 0:
            return G('ds_write_b64 v10, v[%d:%d] offset:%d' % (t, t + 1, 16 * b * ZP + 32 * c), tok_w=['HB'])
        return G('ds_write_b64 v11, v[%d:%d] offset:%d' % (t, t + 1, (16 + 16 * b) * QP + 32 * c), tok_w=['QB'])
    x2 = Stream()
    for q in range(2 * NR1, 18):
        for b in range(2):
            x2('ds_read_b128 %s, v%d offset:%d' % (xf(q, b), vXo if q & 1 else vXe, b * P2 + (q - 2 * NR1) * 1024), tok_w=['TR2'])
    t2 = t2_writes([0, 1, 2])
    addr = G('''
    v_and_b32 v10, 15, v1
    s_lshl_b32 s98, s51, 5
    v_add_u32 v10, s98, v10
    v_mul_u32_u24 v11, %d, v10
    v_mul_u32_u24 v10, %d, v10
    v_lshrrev_b32 v12, 4, v1
    v_lshlrev_b32 v12, 3, v12
    s_mov_b32 s98, %d
    v_add3_u32 v10, v10, v12, s98
    s_mov_b32 s98, %d
    v_add3_u32 v11, v11, v12, s98
    ''' % (QP, ZP, ZB_OFF, QB_OFF))
    hw = G('s_mul_i32 s98, s51, %d\nv_subrev_u32 v5, s98, v11\nv_add_u32 v38, s69, v5' % (32 * QP))
    NC = OPT.get('nc', 0)
    share = []
    for k in range(NC):
        c = 9 - NC + k
        g = Stream()
        off = 16 * ZP + 32 * c
        g('ds_read_b64 v[12:13], v10 offset:%d' % off)
        for _ in range(OPT.get('rgap', 6)): g.append(None)
        g("""v_and_b32 v15, 0xffff0000, v13
        v_lshlrev_b32 v14, 16, v13
        v_and_b32 v13, 0xffff0000, v12
        v_lshlrev_b32 v12, 16, v12""")
        gelu4(g, 12, 36, c2=0)
        g('v_cvt_pk_bf16_f32 v36, v12, v13')
        g('v_cvt_pk_bf16_f32 v37, v14, v15')
        g('ds_write_b64 v10, v[36:37] offset:%d' % off, tok_w=['ZCdone'] if k == NC - 1 else [])
        share.append(list(g))
    light = [[3, list(addr) + list(qaddr()) + G('s_mov_b32 s78, 0x%x\nv_mov_b32 v0, 0x%x' % (fbits(C1), fbits(C2)))], [10, list(zaddr(1))]]
    cur = []
    zc_step = [None]
    for f, (n, ks, c) in enumerate(frs):
        ph, j = divmod(n, 9)
        q = 2 * j + ks
        r = WFR + (f % NRING) * 4
        if stamp and q == 0 and c == 0 and ph > 0 and not OPT.get('trace'): stamp_mid(S, 88 + 2 * ph)
        hand = (q == 0 and ph > 0)
        if hand and c == 0:
            if ph == 2: S.extend(hw)
            S.extend(cvt(ph - 1, 0, 0))
        rd = read(f + D) if f + D < len(frs) else []
        if f % 2 == 0 and f + 1 < len(frs) and not OPT.get('allwait'):
            r1 = WFR + ((f + 1) % NRING) * 4
            S.need(*['v%d' % k for k in range(r1, r1 + 4)])
        for b in range(2):
            a = acc(c, b)
            S('v_mfma_f32_16x16x32_bf16 %s, %s, %s, %s' % (q4(a), q4(r), xf(q, b), '0' if q == 0 else q4(a)))
            S.extend(rd[:-1] if b == 0 else rd[-1:])
            if hand and c < 7:
                S.extend(dw(ph - 1, c, b))
                if ph == 1:
                    if c in (1, 2): S.extend(dw(0, 6 + c, b, acc(6 + c, b)))
                    if c == 2 and b == 1: S.extend(halo_read(0))
                else:
                    if c == 1: S.extend(G('ds_write_b64 v%d, v[%d:%d] offset:%d' % (5 if b else 38, hA + 4 * b, hA + 4 * b + 1, 128 * b), tok_w=['QB']))
                if 2 * c + b + 1 < 14: S.extend(cvt(ph - 1, c + b, 1 - b))
                if c == 0 or (c == 1 and ph == 1): S.extend(cvti(acc(7 + c, b)))
            if OPT.get('pfc') and n in OPT['pfc'] and ks == 1 and c == 0 and b == 0: S.extend(pf_touch(OPT['pfc'].index(n)))
            if n == 0 and t2 and b == 1: S.append(t2.pop(0))
            if n in (1, 2) and x2 and b == 1 and (n == 2 or ks == 1 or c > 0): S.append(x2.pop(0))
            gaps_left = sum(2 for ff in range(f, len(frs)) if frs[ff][0] < 18) - 12
            if not cur and share and not (light and n >= light[0][0]) and n >= 10 and (n >= 19 or gaps_left > len(share[0])) and not hand:
                cur.extend(share.pop(0))
            if cur:
                x = cur.pop(0)
                if x is not None: S.append(x)
                if not cur and not share: zc_step[0] = n
            elif light and n >= light[0][0]:
                x = light[0][1].pop(0); S.append(x)
                while x.kind == 'salu' and light[0][1]:
                    x = light[0][1].pop(0); S.append(x)
                if not light[0][1]: light.pop(0)
        if ph == 1 and c == 4:
            S('v_mfma_f32_16x16x32_bf16 %s, %s, %s, %s' % (q4(hA + 4), q4(r), q4(hX), '0' if q == 0 else q4(hA + 4)))
        if ph == 1 and c == 5:
            S('v_mfma_f32_16x16x32_bf16 %s, %s, %s, %s' % (q4(hA), q4(hW), q4(hX), '0' if q == 0 else q4(hA)))
            if q < 17 and (q & 1) == 0: S.extend(halo_read(q + 1))
        if ph == 1 and c == 6 and q < 17 and (q & 1) == 1: S.extend(halo_read(q + 1))
    assert not t2 and not x2 and not share and not cur
    OPT['zc_step'] = zc_step[0]
    n2a, n2b = norm_z2(range(NZC))
    S('s_barrier')
    S.extend(n2a)
    if stamp: stamp_mid(S, 94)
    S('''
    s_lshl_b32 s63, s48, 3
    s_lshl_b32 s98, s51, 1
    s_add_u32 s63, s63, s98
    s_mul_i32 s63, s63, 72
    s_mul_i32 s98, s49, 9
    s_add_u32 s98, s98, s52
    s_lshr_b32 s98, s98, 1
    s_add_u32 s63, s63, s98
    s_lshl_b32 s69, s63, 10
    s_add_u32 s70, s69, 73728
    s_cmp_eq_u32 s52, 0
    s_cselect_b32 s63, 4608, 0
    s_sub_u32 s63, s63, 512
    s_add_u32 s71, s69, s63
    s_add_u32 s72, s70, s63
    v_lshlrev_b32 v10, 4, v1
    v_lshrrev_b32 v12, 5, v1
    v_lshlrev_b32 v12, 8, v12
    v_and_b32 v13, 15, v1
    v_lshl_add_u32 v12, v13, 4, v12
    v_bfe_u32 v13, v1, 4, 1
    v_lshl_add_u32 v12, v13, 3, v12
    ''')
    G1 = OPT.get('gelu1', False)
    if G1:
        S('s_mov_b32 s78, 0x%x' % fbits(C1))
        S('v_mov_b32 v%d, 0x%x' % (vC2, fbits(C2)))
    for p in range(4):
        for b in range(2):
            a0 = acc(2 * p, b); a1 = acc(2 * p + 1, b)
            if G1: gelu4(S, a0, XF); gelu4(S, a1, XF + 4)
            o = XF + 8 + 4 * (2 * p + b)
            S('v_cvt_pk_bf16_f32 v%d, v%d, v%d' % (o, a0, a0 + 1))
            S('v_cvt_pk_bf16_f32 v%d, v%d, v%d' % (o + 1, a0 + 2, a0 + 3))
            S('v_cvt_pk_bf16_f32 v%d, v%d, v%d' % (o + 2, a1, a1 + 1))
            S('v_cvt_pk_bf16_f32 v%d, v%d, v%d' % (o + 3, a1 + 2, a1 + 3))
            for d in range(2): S('v_permlane32_swap_b32 v%d, v%d' % (o + d, o + 2 + d))
            for d in range(2): S('v_permlane16_swap_b32 v%d, v%d' % (o + d, o + 2 + d))
            S('buffer_store_dwordx4 %s, v10, s[32:35], s%d offen offset:%d' % (q4(o), 69 + b, p * 1024))
    for b in range(2):
        a0 = acc(8, b)
        if G1: gelu4(S, a0, XF)
        o = XF + 40 + 2 * b
        S('v_cvt_pk_bf16_f32 v%d, v%d, v%d' % (o, a0, a0 + 1))
        S('v_cvt_pk_bf16_f32 v%d, v%d, v%d' % (o + 1, a0 + 2, a0 + 3))
        S('buffer_store_dwordx2 v[%d:%d], v12, s[32:35], s%d offen' % (o, o + 1, 71 + b))
    V2.S1 = 40; V2.QB_OFF = QB_OFF; V2.VOFF = 72; V2.QOFF = 144
    S.extend(V2.attention(0))
    if OPT.get('late'): S('s_barrier')
    S.extend(n2b)
    if stamp:
        stamp_mid(S, 96)
        S('s_waitcnt vmcnt(0)')
        stamp_mid(S, 70)
        stamp_store(S, 84, [86, 88, 90, 92, 94, 96, 70 if not OPT.get('ptrace') else 66], 14, 0, 72, 12, wave_s=50)
    S('s_endpgm')
    return S

def compute2(stamp):
    S = Stream()
    vXe = 6; vXo = 7
    xloads(S, [0])
    common_setup(S)
    srd(S, 32, 14, 15, Z1P_SZ, Z1P_OFF)
    S('''
    s_mul_i32 s63, s51, %d
    s_add_u32 s63, s63, %d
    v_add_u32 v6, s63, v6
    v_xor_b32 v7, 64, v6
    ''' % (2 * P1, T1_OFF))
    if stamp: stamp_mid(S, 86)
    layernorm(S, [0, 1, 2])
    for q in range(2 * NR1):
        for b in range(2):
            S('ds_read_b128 %s, v%d offset:%d' % (xf(q, b), vXo if q & 1 else vXe, b * P1 + q * 1024), tok_w=['TR'])
    for j in range(NR1, 9): norm4(S, ln(2, j), ST + 4, ST + 6)
    t2_addr(S)
    S('s_mul_i32 s63, s51, %d' % (2 * (P2 - P1)))
    S('s_add_u32 s63, s63, %d' % (T2_OFF - T1_OFF))
    S.need('TR')
    S('s_barrier')
    S('v_add_u32 v6, s63, v6')
    S('v_add_u32 v7, s63, v7')
    S('s_setprio %d' % OPT.get('prio', 2))
    if stamp: stamp_mid(S, 88)
    ntile = [9, 9, 7]
    def acc(c, b): return ACC + (c * 2 + b) * 4
    hA = ACC + 56; hX = ACC + 64; hW = ACC + 68
    vTa = 2; vTb = 3; vq2 = 2; vq4 = 3; vQb = 4; vXH = 9; vqh = 8; vZa = 5; vZb = 6; vTs = 7
    frs = [(n, ks, c) for n in range(27) for ks in range(2) for c in range(ntile[n // 9])]
    def order(n):
        nt = ntile[n // 9]
        if n == 9: return [(ks, c) for c in range(nt) for ks in range(2)]
        if n == 18: return [(ks, c) for c in range(4) for ks in range(2)] + [(ks, c) for ks in range(2) for c in range(4, 7)]
        return [(ks, c) for ks in range(2) for c in range(nt)]
    frs = [(n, ks, c) for n in range(27) for ks, c in order(n)]
    bias = {}
    extra_tok = {1: ['T2'], 9: ['TR2'], 11: ['HB']}
    QIMM = {0: 0, 1: 32, 3: 120, 5: 160 + 48, 6: 192 + 48}
    def zaddr(mode):
        g = Stream()
        g("""v_bfe_u32 v15, v1, 4, 1
        v_lshlrev_b32 v15, 5, v15""")
        if mode == 0:
            g("""s_cmp_eq_u32 s52, 0
            s_cselect_b32 s98, 1, -1
            s_lshl_b32 s99, s52, 5
            v_mul_lo_u32 v15, v15, s98
            v_add3_u32 v%d, v%d, v15, s99
            v_sub_u32 v%d, v%d, v15
            v_add_u32 v%d, s99, v%d""" % (vTa, vT, vTb, vT, vTb, vTb))
        else:
            g("""s_lshl_b32 s99, s52, 6
            v_add3_u32 v%d, v%d, v15, s99
            v_sub_u32 v%d, v%d, v15
            v_add_u32 v%d, 256, v%d
            v_add_u32 v15, 32, v%d
            s_cmp_eq_u32 s52, 0
            s_cselect_b64 vcc, -1, 0
            v_cndmask_b32 v%d, v15, v%d, vcc
            v_add_u32 v%d, s99, v%d""" % (vZa, vT, vZb, vT, vTs, vZa, vZb, vTs, vTs, vZb, vZb))
        return g
    def qaddr():
        g = Stream()
        g("""v_bfe_u32 v15, v1, 4, 1
        v_lshlrev_b32 v15, 5, v15
        s_mul_i32 s98, s49, 72
        s_and_b32 s98, s98, 31
        s_add_u32 s98, s98, {bias}
        v_add3_u32 v{qb}, v{T}, v15, s98
        v_and_b32 v15, 3, v1
        v_cmp_le_u32 vcc, 2, v15
        v_cndmask_b32 v14, 0, 24, vcc
        v_add_u32 v14, 152, v14
        v_add_u32 v{q4}, v{qb}, v14
        v_cmp_le_u32 vcc, 1, v15
        v_cndmask_b32 v14, 0, 24, vcc
        v_add_u32 v14, 64, v14
        v_add_u32 v{q2}, v{qb}, v14
        s_lshl_b32 s73, s51, 5
        s_cmp_eq_u32 s51, 3
        s_cselect_b32 s99, 24, 0
        s_add_u32 s99, s99, s73
        v_add_u32 v{qh}, s99, v{qb}
        s_cmp_eq_u32 s51, 2
        s_cselect_b64 vcc, -1, 0
        v_cndmask_b32 v{qh}, v{qh}, v{q2}, vcc
        v_and_b32 v14, 15, v1
        v_lshrrev_b32 v15, 4, v1
        v_xor_b32 v14, v14, v15
        v_lshl_add_u32 v14, v15, 4, v14
        v_lshlrev_b32 v14, 4, v14
        v_add_u32 v{xh}, {XH}, v14""".format(qb=vQb, T=vT, q4=vq4, q2=vq2, qh=vqh, xh=vXH, XH=XH_OFF, bias=2 * SLOT))
        return g
    def toggle(g, ar, n):
        want = (n & 3) >> 1
        if bias.get(ar, 0) != want:
            g('v_add_u32 v%d, %d, v%d' % (ar, 2 * SLOT if want else -2 * SLOT, ar))
            bias[ar] = want
    def halo_read(q):
        g = Stream()
        n = 18 + q // 2
        g('ds_read_b128 %s, v%d offset:%d' % (q4(hX), vXH, q * 1024), tok_w=['XHR'])
        toggle(g, vqh, n)
        for hh in range(2):
            g('ds_read_b64_tr_b16 v[%d:%d], v%d offset:%d' % (hW + 2 * hh, hW + 2 * hh + 1, vqh, (n & 1) * SLOT + (q & 1) * 10240 + hh * 1280))
        return g
    def read(f):
        n, ks, c = frs[f]
        ph = n // 9
        g = Stream()
        if ks == 0 and c == 0:
            if n > 0:
                if n in extra_tok: g.need(*extra_tok[n])
                if n > 10: g.need('ZCdone')
                g('s_barrier')
            if n == 0: g.extend(zaddr(0))
            if n == 18:
                for r in (vQb, vq2, vq4, vqh): bias[r] = 1
        if ph == 0: ar, coff = (vTb if c & 1 else vTa), 32 * c
        elif ph == 2: ar, coff = (vq2, 0) if c == 2 else ((vq4, 0) if c == 4 else (vQb, QIMM[c]))
        else: ar, coff = ((vZb if c & 1 else vZa), 32 * c) if c < 8 else (vTs, 0)
        toggle(g, ar, n)
        r = WFR + (f % NRING) * 4
        for hh in range(2):
            if OPT.get('halfread') and hh == 1:
                g('s_nop 0'); continue
            g('ds_read_b64_tr_b16 v[%d:%d], v%d offset:%d' % (r + 2 * hh, r + 2 * hh + 1, ar, (n & 1) * SLOT + ks * 10240 + hh * 1280 + coff))
        return g
    D = NRING - 1
    for f in range(D): S.extend(read(f))
    def tmpr(ph, c, b):
        pairs = [12, 14, 2, 36, 38]
        return pairs[(2 * c + b) % len(pairs)]
    def cvt(ph, c, b):
        a = acc(c, b); t = tmpr(ph, c, b)
        return G('v_cvt_pk_bf16_f32 v%d, v%d, v%d\nv_cvt_pk_bf16_f32 v%d, v%d, v%d' % (t, a, a + 1, t + 1, a + 2, a + 3))
    def cvti(a):
        return G('v_cvt_pk_bf16_f32 v%d, v%d, v%d\nv_cvt_pk_bf16_f32 v%d, v%d, v%d' % (a, a, a + 1, a + 1, a + 2, a + 3))
    def dw(ph, c, b, src=None):
        t = tmpr(ph, c, b) if src is None else src
        if OPT.get('nodw'): return []
        if ph == 0:
            return G('ds_write_b64 v10, v[%d:%d] offset:%d' % (t, t + 1, 16 * b * ZP + 32 * c), tok_w=['HB'])
        return G('ds_write_b64 v11, v[%d:%d] offset:%d' % (t, t + 1, (16 + 16 * b) * QP + 32 * c), tok_w=['QB'])
    x2 = Stream()
    for q in range(2 * NR1, 18):
        for b in range(2):
            x2('ds_read_b128 %s, v%d offset:%d' % (xf(q, b), vXo if q & 1 else vXe, b * P2 + (q - 2 * NR1) * 1024), tok_w=['TR2'])
    t2 = t2_writes([0, 1, 2])
    addr = G('''
    v_and_b32 v10, 15, v1
    s_lshl_b32 s98, s51, 5
    v_add_u32 v10, s98, v10
    v_mul_u32_u24 v11, %d, v10
    v_mul_u32_u24 v10, %d, v10
    v_lshrrev_b32 v12, 4, v1
    v_lshlrev_b32 v12, 3, v12
    s_mov_b32 s98, %d
    v_add3_u32 v10, v10, v12, s98
    s_mov_b32 s98, %d
    v_add3_u32 v11, v11, v12, s98
    ''' % (QP, ZP, ZB_OFF, QB_OFF))
    hw = G('s_mul_i32 s98, s51, %d\nv_subrev_u32 v5, s98, v11\nv_add_u32 v38, s69, v5' % (32 * QP))
    NC = OPT.get('nc', 0)
    share = []
    for k in range(NC):
        c = 9 - NC + k
        g = Stream()
        off = 16 * ZP + 32 * c
        g('ds_read_b64 v[12:13], v10 offset:%d' % off)
        for _ in range(OPT.get('rgap', 6)): g.append(None)
        g("""v_and_b32 v15, 0xffff0000, v13
        v_lshlrev_b32 v14, 16, v13
        v_and_b32 v13, 0xffff0000, v12
        v_lshlrev_b32 v12, 16, v12""")
        gelu4(g, 12, 36, c2=0)
        g('v_cvt_pk_bf16_f32 v36, v12, v13')
        g('v_cvt_pk_bf16_f32 v37, v14, v15')
        g('ds_write_b64 v10, v[36:37] offset:%d' % off, tok_w=['ZCdone'] if k == NC - 1 else [])
        share.append(list(g))
    zoff = G("""
    s_lshl_b32 s63, s48, 3
    s_lshl_b32 s98, s51, 1
    s_add_u32 s63, s63, s98
    s_mul_i32 s63, s63, 72
    s_mul_i32 s98, s49, 9
    s_add_u32 s98, s98, s52
    s_lshr_b32 s98, s98, 1
    s_add_u32 s63, s63, s98
    s_lshl_b32 s69, s63, 10
    s_add_u32 s70, s69, 73728
    s_cmp_eq_u32 s52, 0
    s_cselect_b32 s63, 4608, 0
    s_sub_u32 s63, s63, 512
    s_add_u32 s71, s69, s63
    s_add_u32 s72, s70, s63
    v_lshlrev_b32 v10, 4, v1
    v_lshrrev_b32 v0, 5, v1
    v_lshlrev_b32 v0, 8, v0
    v_and_b32 v13, 15, v1
    v_lshl_add_u32 v0, v13, 4, v0
    v_bfe_u32 v13, v1, 4, 1
    v_lshl_add_u32 v0, v13, 3, v0
    """)
    light = [[3, list(addr) + list(zaddr(1)) + G('s_mov_b32 s78, 0x%x\nv_mov_b32 v0, 0x%x' % (fbits(C1), fbits(C2)))], [10, list(qaddr())], [17, zoff]]
    WT = ' sc1' if OPT.get('wt', 1) else ''
    def cv(o, a): return G('v_cvt_pk_bf16_f32 v%d, v%d, v%d\nv_cvt_pk_bf16_f32 v%d, v%d, v%d' % (o, a, a + 1, o + 1, a + 2, a + 3))
    def pairfin(p, dst):
        g = Stream()
        for sw in ('v_permlane32_swap_b32', 'v_permlane16_swap_b32'):
            for b in range(2):
                for d in range(2): g('%s v%d, v%d' % (sw, dst[b] + d, dst[b] + 2 + d))
        for b in range(2): g('buffer_store_dwordx4 %s, v10, s[32:35], s%d offen offset:%d%s' % (q4(dst[b]), 69 + b, p * 1024, WT))
        return list(g)
    def pair(p):
        dst = [acc(2 * p, 0), acc(2 * p, 1)]
        return cv(dst[0], dst[0]) + cv(dst[1], dst[1]) + cv(dst[0] + 2, acc(2 * p + 1, 0)) + cv(dst[1] + 2, acc(2 * p + 1, 1)) + pairfin(p, dst)
    single = []
    for b in range(2): single += cv(acc(8, b), acc(8, b))
    for b in range(2): single += G('buffer_store_dwordx2 v[%d:%d], v0, s[32:35], s%d offen%s' % (acc(8, b), acc(8, b) + 1, 71 + b, WT))
    zw = [(2, x) for x in cv(14, acc(1, 0)) + cv(38, acc(1, 1))] + [(4, x) for x in pair(1)] + [(6, x) for x in single] + [(7, x) for x in pairfin(0, [12, 36])] + [(8, x) for x in pair(2) + pair(3)]
    cur = []
    zc_step = [None]
    fi = 0
    for f, (n, ks, c) in enumerate(frs):
        ph, j = divmod(n, 9)
        q = 2 * j + ks
        r = WFR + (f % NRING) * 4
        first = (j == 0 and ks == 0 and c == 0)
        if first: fi = 0
        if stamp and first and ph > 0 and not OPT.get('trace'): stamp_mid(S, 88 + 2 * ph)
        if first and ph == 1: S.extend(cvt(0, 0, 0))
        if first and ph == 2:
            assert not light and not cur and not share
            S.extend(cv(12, acc(0, 0)) + cv(36, acc(0, 1)))
        if n == 18: assert not zw or zw[0][0] > fi, (fi, zw[0][0])
        rd = read(f + D) if f + D < len(frs) else []
        if f % 2 == 0 and f + 1 < len(frs) and not OPT.get('allwait'):
            r1 = WFR + ((f + 1) % NRING) * 4
            S.need(*['v%d' % k for k in range(r1, r1 + 4)])
        for b in range(2):
            a = acc(c, b)
            S('v_mfma_f32_16x16x32_bf16 %s, %s, %s, %s' % (q4(a), q4(r), xf(q, b), '0' if q == 0 else q4(a)))
            S.extend(rd[:-1] if b == 0 else rd[-1:])
            if n == 9:
                if ks == 0 and b == 0: S.extend(cvt(0, c, 1))
                if ks == 0 and b == 1: S.extend(dw(0, c, 0))
                if ks == 1 and b == 0: S.extend(dw(0, c, 1))
                if ks == 1 and b == 1 and c < 8: S.extend(cvt(0, c + 1, 0))
            if n == 18:
                for _ in range(OPT.get('zrate', 5)):
                    if zw: S.append(zw.pop(0)[1])
                if fi == 6 and b == 1: S.extend(halo_read(0))
            if n == 0 and t2 and b == 1: S.append(t2.pop(0))
            if n in (1, 2) and x2 and b == 1 and (n == 2 or ks == 1 or c > 0): S.append(x2.pop(0))
            gaps_left = sum(2 for ff in range(f, len(frs)) if frs[ff][0] < 17)
            if not cur and share and not (light and n >= light[0][0]) and n >= 10 and gaps_left > len(share[0]):
                cur.extend(share.pop(0))
            if cur:
                x = cur.pop(0)
                if x is not None: S.append(x)
                if not cur and not share: zc_step[0] = n
            elif light and n >= light[0][0] and n != 9:
                x = light[0][1].pop(0); S.append(x)
                while x.kind == 'salu' and light[0][1]:
                    x = light[0][1].pop(0); S.append(x)
                if not light[0][1]: light.pop(0)
        if ph == 2 and c == 4:
            S('v_mfma_f32_16x16x32_bf16 %s, %s, %s, %s' % (q4(hA + 4), q4(r), q4(hX), '0' if q == 0 else q4(hA + 4)))
        if ph == 2 and c == 5:
            S('v_mfma_f32_16x16x32_bf16 %s, %s, %s, %s' % (q4(hA), q4(hW), q4(hX), '0' if q == 0 else q4(hA)))
            if q < 17 and (q & 1) == 0: S.extend(halo_read(q + 1))
        if ph == 2 and c == 6 and q < 17 and (q & 1) == 1: S.extend(halo_read(q + 1))
        fi += 1
    assert not t2 and not x2 and not share and not cur and not zw
    OPT['zc_step'] = zc_step[0]
    if stamp: stamp_mid(S, 94)
    S('s_mul_i32 s98, s51, %d' % (32 * QP))
    S('v_subrev_u32 v5, s98, v11')
    S('v_add_u32 v6, s73, v5')
    for c in range(8):
        for b in range(2): S.extend(cvti(acc(c, b)))
    S('s_barrier')
    for c in range(7):
        for b in range(2): S.extend(dw(1, c, b, acc(c, b)))
    for b in range(2): S('ds_write_b64 v%d, v[%d:%d] offset:%d' % (5 if b else 6, hA + 4 * b, hA + 4 * b + 1, 128 * b), tok_w=['QB'])
    nz = OPT.get('nzc', 0)
    if nz:
        n2a, n2b = norm_z2(range(nz))
        S.extend(n2a)
    S.need('QB')
    S('s_barrier')
    V2.S1 = 40; V2.QB_OFF = QB_OFF; V2.VOFF = 72; V2.QOFF = 144
    S.extend(V2.attention(0))
    if OPT.get('attc'): S.extend(V2.attention(1))
    if nz: S.extend(n2b)
    if stamp:
        stamp_mid(S, 96)
        S('s_waitcnt vmcnt(0)')
        stamp_mid(S, 70)
        stamp_store(S, 84, [86, 88, 90, 92, 94, 96, 70 if not OPT.get('ptrace') else 66], 14, 0, 72, 12, wave_s=50)
    S('s_endpgm')
    return S

HL = 232
def helper(stamp):
    S = Stream()
    S('K1_HELP:')
    if OPT.get('cpf'): S.extend(code_prefetch('k1_kernel', 'k2_kernel', 1, 40, 34, 64, 12, neg=True))
    S("""s_getpc_b64 s[64:65]
    s_add_u32 s64, s64, K1_TAB@rel32@lo+4
    s_addc_u32 s65, s65, K1_TAB@rel32@hi+12
    s_mul_i32 s66, s51, 3072
    v_lshlrev_b32 v32, 4, v1
    v_add_u32 v32, s66, v32
    v_mov_b32 v33, s65
    v_add_co_u32 v32, vcc, s64, v32
    v_addc_co_u32 v33, vcc, 0, v33, vcc
    global_load_dwordx4 v[16:19], v[32:33], off
    global_load_dwordx4 v[20:23], v[32:33], off offset:1024
    global_load_dwordx4 v[24:27], v[32:33], off offset:2048""")
    xloads(S, [0])
    common_setup(S)
    srd(S, 20, 6, 7, 576 * 3456)
    srd(S, 24, 8, 9, 576 * 9216)
    S("""
    s_lshl_b32 s68, s51, 10
    s_mul_i32 s64, s49, 288
    s_and_b32 s64, s64, -64
    s_mul_i32 s65, s49, 72
    s_and_b32 s65, s65, -32
    v_mov_b32 v106, 0x7f000000
    """)
    srd(S, 4, 10, 11, 2048 * 4096)
    vHW = 26; vH0 = 28
    QH = Stream()
    QH("""
    s_mov_b32 s78, 0x%x
    v_mov_b32 v%d, 0x%x
    s_lshl_b32 s8, s2, 15
    s_lshl_b32 s9, s51, 11
    s_add_u32 s8, s8, s9
    v_lshlrev_b32 v8, 7, v1
    s_mul_i32 s98, s48, %d
    s_sub_u32 s98, s98, %d
    v_add_u32 v100, s98, v27
    v_bfe_u32 v101, v1, 3, 1
    v_add_u32 v101, s%d, v101
    """ % (fbits(C1), vC2, fbits(C2), 128 * 1152, 16 * 1152, sBLK))
    for t in range(5):
        QH('v_add_u32 v102, %d, v101' % (2 * t))
        QH('v_subrev_u32 v103, 9, v102')
        QH('v_min_u32 v102, v102, v103')
        QH('v_lshl_add_u32 v%d, v102, 7, v100' % (vH0 + t))
    QH('''
    v_and_b32 v103, 15, v1
    v_cmp_gt_u32 vcc, 8, v103
    v_cndmask_b32 v%d, v106, v%d, vcc
    ''' % (vH0 + 4, vH0 + 4))
    for t in range(5):
        QH('buffer_load_dwordx4 %s, v%d, s[16:19], 0 offen' % (q4(HL + 4 * t), vH0 + t))
    if stamp: stamp_mid(S, 86)
    layernorm(S, [3], mid=wdma(0), mid2=wdma(1))
    for j in range(NR1, 9): norm4(S, ln(0, j), ST, ST + 6)
    t2_addr(S)
    S.need('W0')
    S('s_barrier')
    if stamp: stamp_mid(S, 88)
    q1 = list(QH) + list(ln_halo(vHW))
    q2 = list(epi_z2())
    V2.S1 = 136; V2.QB_OFF = QB_OFF; V2.VOFF = 72; V2.QOFF = 144
    q3 = list(V2.attention(1))
    B = OPT.get('budget', 64)
    if OPT.get('noside'):
        q1 = []; q2 = q2[-1:]; q3 = []
    pub_step = None
    n2a, n2b = norm_z2(range(OPT.get('nzc', 0) if OPT.get('zzq') else NZC, 9))
    q4_ = list(n2a) + list(n2b)
    for n in range(27):
        if n > 0:
            toks = ['W%d' % n]
            if n == 1: toks.append('T2')
            if n == (18 if OPT.get('zzq') else 9): toks.append('XH')
            if OPT.get('zzq') and n == OPT.get('pollstep', 25): S.append('POLLCHECK')
            if pub_step is not None and n == pub_step + 2: toks += ['PUB', 'ZB']
            if OPT.get('trace'):
                S('s_memtime s[96:97]\ns_waitcnt lgkmcnt(0)\ns_sub_u32 s96, s96, s84\nv_writelane_b32 v254, s96, %d' % n)
            S.need(*toks)
            if OPT.get('trace'):
                S('s_memtime s[96:97]\ns_waitcnt lgkmcnt(0)\ns_sub_u32 s96, s96, s84\nv_writelane_b32 v254, s96, %d' % (n + 32))
            S('s_barrier')
            if OPT.get('trace'):
                S('s_memtime s[96:97]\ns_waitcnt lgkmcnt(0)\ns_sub_u32 s96, s96, s84\nv_writelane_b32 v255, s96, %d' % n)
            if pub_step is not None and n == pub_step + 2: S.append('ATOMIC')
        if stamp and n in (9, 18): stamp_mid(S, 88 + 2 * (n // 9))
        mem = []
        if n + 2 < 27 and not OPT.get('nodma'):
            w = list(wdma(n + 2))
            mem = [w[:-8]] + [w[-8 + 2 * k:len(w) - 6 + 2 * k] for k in range(4)]
            assert sum(len(x) for x in mem) == len(w)
            if OPT.get('dg') == 3: mem = [mem[0] + mem[1], mem[2] + mem[3], mem[4]]
            if OPT.get('dg') == 2: mem = [mem[0] + mem[1] + mem[2], mem[3] + mem[4]]
        if n in (2, 4, 6, 9) and not OPT.get('nopf') and not OPT.get('pfc'):
            mem.append(G('''s_mov_b32 m0, %d
            s_mov_b64 exec, 0xffff
            buffer_load_dword v8, s[4:7], s8 offen lds
            s_mov_b64 exec, -1
            s_add_u32 s8, s8, 8192''' % SB_OFF))
        if OPT.get('pf3') and n in (12, 15) and not OPT.get('pfc'):
            mem.append(G('''s_load_dwordx2 s[4:5], s[0:1], %d
            s_mov_b32 s6, %d
            s_mul_i32 s8, s2, %d
            s_mul_i32 s12, s51, %d
            s_add_u32 s8, s8, s12
            s_mov_b32 m0, %d
            s_waitcnt lgkmcnt(0)
            s_mov_b64 exec, 0x%x
            buffer_load_dword v8, s[4:7], s8 offen lds
            s_mov_b64 exec, -1''' % ((56, 2304 * 1152, 10368, 2688, SB_OFF, 0x1fffff) if n == 12 else (16, 576 * 1152, 2688, 768, SB_OFF, 0x3f))))
        work = []
        if n == 0: work += list(t2_writes([3]))
        if n == 18 and not OPT.get('flags', 1): work += G('s_lshl_b32 s9, s48, 4\nv_mov_b32 v6, 0')
        if OPT.get('flags', 1) and n in (1, 4, 13, 16): work.append({1: 'ENTRY1', 4: 'ENTRY2', 13: 'GATE1', 16: 'GATE2'}[n])
        if n == (OPT.get('pollstep', 25) - 1 if OPT.get('zzq') else 26): work.append('POLLISSUE')
        if n == 17 and OPT.get('pf3'): work.append('ZERO')
        if OPT.get('cpf') == 1 and n == 22: work.append(code_prefetch('k2_kernel', 'TEXT_END', 1, 32, 35, 10, 12))
        def drain(q, budget):
            while q and budget > 0:
                if isinstance(q[0], tuple) and q[0][0] == 'WAITSTEP':
                    if n < q[0][1]: break
                    q.pop(0); continue
                x = q.pop(0); budget -= wt(x); work.append(x)
            return budget
        budget = B
        if 0 <= n <= 10 and q1: drain(q1, OPT.get('b1', 34) if n < (10 if OPT.get('zzq') else 8) else 1e9)
        if n >= (11 if OPT.get('zzq') else 10) and q2:
            budget = drain(q2, budget)
            if not q2: pub_step = max(n, 17)
        elif n >= 19 and not OPT.get('zzq'): drain(q3, OPT.get('abudget', 36))
        elif OPT.get('zzq') and n >= OPT.get('pollstep', 25): drain(q4_, OPT.get('nbudget', 50) if n > OPT.get('pollstep', 25) else len(n2a))
        tot = sum(wt(x) for x in work); acc_ = 0.0; k = 0
        for x in work:
            while k < len(mem) and acc_ >= tot * k / (len(mem) + OPT.get('dmaslack', 1)):
                S.extend(mem[k]); k += 1
            S.append(x); acc_ += wt(x)
        while k < len(mem):
            S.extend(mem[k]); k += 1
    late = pub_step is None or pub_step + 2 > 26
    assert late == bool(OPT.get('late')), (pub_step, 'set late option accordingly')
    if late:
        S.extend(q2)
        S.need('ZB')
        h = len(q3) // 2
        S.extend(q3[:h]); q3 = q3[h:]
        S.need('PUB')
        S('s_barrier')
        S.append('ATOMIC')
    if stamp: stamp_mid(S, 94)
    if OPT.get('zzq'):
        assert pub_step + 2 < OPT.get('pollstep', 25)
        if OPT.get('pollstep') == 27: S.append('POLLCHECK')
        S('s_barrier')
        k = min(len(q4_), OPT.get('n2mid', 60))
        S.extend(q4_[:k]); q4_ = q4_[k:]
        S('s_barrier')
        S.extend(q4_)
        if not OPT.get('attc'): S.extend(q3)
    else:
        S.append('POLLCHECK')
        S('s_barrier')
        S.extend(n2a)
        S.extend(q3)
        S.extend(n2b)
    if stamp:
        stamp_mid(S, 96)
        S('s_waitcnt vmcnt(0)')
        stamp_mid(S, 70)
        stamp_store(S, 84, [86, 88, 90, 92, 94, 96, 70 if not OPT.get('ptrace') else 66], 14, 0, 72, 12, wave_s=50)
    if OPT.get('trace'):
        S('''s_lshl_b32 s75, s2, 11
        s_lshl_b32 s74, s51, 9
        s_add_u32 s75, s75, s74
        s_add_u32 s75, s75, 0x80000
        v_lshlrev_b32 v12, 2, v1
        buffer_store_dword v254, v12, s[76:79], s75 offen
        buffer_store_dword v255, v12, s[76:79], s75 offen offset:256''')
    S('K1_END:')
    S('s_endpgm')
    print('k1 helper: zc', OPT.get('zc_step'), 'pub_step', pub_step, 'att left', sum(wt(x) for x in q3))
    return S

def poll_issue(vr, va):
    return G('s_lshl_b32 s9, s48, 4\nv_mov_b32 v%d, 0' % va) + G('buffer_load_dword v%d, v%d, s[44:47], s9 offen sc1' % (vr, va))
def poll(S, tag, vr=7, va=6):
    S('v_readfirstlane_b32 s11, v%d' % vr)
    S('s_mov_b32 s10, 0')
    S('s_cmp_ge_u32 s11, 16')
    S('s_cbranch_scc1 K1_NOPOLL%s' % tag)
    S("""
    K1_POLL%s:
    s_sleep SLP
    buffer_load_dword v7, v6, s[44:47], s9 offen sc1
    s_waitcnt vmcnt(0)
    v_readfirstlane_b32 s11, v7
    s_add_u32 s10, s10, 1
    s_cmp_ge_u32 s11, 16
    s_cbranch_scc1 K1_NOPOLL%s
    s_cmp_lt_u32 s10, 0x20000
    s_cbranch_scc1 K1_POLL%s
    K1_NOPOLL%s:
    """.replace('SLP', str(OPT.get('slp', 4))).replace('v7', 'v%d' % vr).replace('v6', 'v%d' % va) % (tag, tag, tag, tag))
    S.append(('KEEPQ', 1))

def ln_halo(vHW):
    A = Stream()
    h0 = ST + 4; t = ST + 6
    for k in range(20):
        r = HL + k; tt = t + 2 * (k & 1)
        A('v_lshlrev_b32 v%d, 16, v%d' % (tt, r))
        A('v_and_b32 v%d, 0xffff0000, v%d' % (tt + 1, r))
        if k == 0:
            A('v_add_f32 v%d, v%d, v%d' % (h0, tt, tt + 1))
            A('v_mul_f32 v%d, v%d, v%d' % (h0 + 1, tt, tt))
        else:
            A('v_add_f32 v%d, v%d, v%d' % (h0, h0, tt))
            A('v_fmac_f32 v%d, v%d, v%d' % (h0 + 1, tt, tt))
            A('v_add_f32 v%d, v%d, v%d' % (h0, h0, tt + 1))
        A('v_fmac_f32 v%d, v%d, v%d' % (h0 + 1, tt + 1, tt + 1))
    for m in ('quad_perm:[1,0,3,2]', 'quad_perm:[2,3,0,1]', 'row_half_mirror', 'row_mirror'):
        for r in (h0, h0 + 1):
            A('v_add_f32_dpp v%d, v%d, v%d %s row_mask:0xf bank_mask:0xf' % (r, r, r, m))
    rowstats(A, h0, ST + 6, 's83')
    for t in range(5):
        norm4(A, HL + 4 * t, h0, ST + 6)
        g = Stream()
        if t == 4:
            g('s_mov_b32 exec_lo, 0x00ff00ff')
            g('s_mov_b32 exec_hi, 0x00ff00ff')
        g('ds_write_b128 v%d, %s offset:%d' % (vHW, q4(HL + 4 * t), t * 4096), tok_w=['XH'])
        if t == 4: g('s_mov_b64 exec, -1')
        A.append(list(g))
    return A

def epi_z2():
    E = Stream()
    PK = 60
    def pk(c, b): return PK + b * 20 + 2 * c
    E.append(G("""
    v_and_b32 v10, 15, v1
    v_lshlrev_b32 v11, 3, v10
    s_lshl_b32 s98, s51, 5
    v_add_u32 v10, s98, v10
    v_mul_u32_u24 v10, %d, v10
    v_lshrrev_b32 v12, 4, v1
    v_lshlrev_b32 v12, 3, v12
    s_mov_b32 s98, %d
    v_add3_u32 v10, v10, v12, s98
    """ % (ZP, ZB_OFF)))
    NC = OPT.get('nc', 0)
    order = [(c, b) for b in range(2) for c in range(9)]
    theirs = order[18 - NC:]; order = order[:18 - NC]
    for c, b in order:
        E('ds_read_b64 v[%d:%d], v10 offset:%d' % (pk(c, b), pk(c, b) + 1, 16 * b * ZP + 32 * c))
    for b in range(2):
        E('v_mov_b32 v%d, 0' % (pk(9, b)))
        E('v_mov_b32 v%d, 0' % (pk(9, b) + 1))
    for k in range(4): E('v_mov_b32 v%d, s82' % (132 + k))
    pend = None
    for k, (c, b) in enumerate(order):
        x = 100 + 8 * (k & 1); p = pk(c, b)
        E('v_lshlrev_b32 v%d, 16, v%d' % (x, p))
        E('v_and_b32 v%d, 0xffff0000, v%d' % (x + 1, p))
        E('v_lshlrev_b32 v%d, 16, v%d' % (x + 2, p + 1))
        E('v_and_b32 v%d, 0xffff0000, v%d' % (x + 3, p + 1))
        gelu4(E, x, x + 4)
        E('v_cvt_pk_bf16_f32 v%d, v%d, v%d' % (p, x, x + 1))
        E('v_cvt_pk_bf16_f32 v%d, v%d, v%d' % (p + 1, x + 2, x + 3))
        E('ds_write_b64 v10, v[%d:%d] offset:%d' % (p, p + 1, 16 * b * ZP + 32 * c), tok_w=['ZB'])
    D1 = [116, 120]; D2 = [124, 128]
    if NC:
        E.append(('WAITSTEP', OPT['zc_step'] + 2))
        for c, b in theirs:
            E('ds_read_b64 v[%d:%d], v10 offset:%d' % (pk(c, b), pk(c, b) + 1, 16 * b * ZP + 32 * c))
    for c in range(0, 9, 2):
        for b in range(2):
            p = q4(pk(c, b))
            E('v_mfma_f32_16x16x32_bf16 %s, v[132:135], %s, %s' % (q4(D1[b]), p, '0' if c == 0 else q4(D1[b])))
            E('v_mfma_f32_16x16x32_bf16 %s, %s, %s, %s' % (q4(D2[b]), p, p, '0' if c == 0 else q4(D2[b])))
    g = G(setm('vcc', m64(lambda i, g: i & 1)))
    for b in range(2):
        g += G('v_cndmask_b32 v%d, v%d, v%d, vcc' % (D2[b], D2[b], D2[b] + 1))
        g += G('v_cndmask_b32 v%d, v%d, v%d, vcc' % (D2[b] + 2, D2[b] + 2, D2[b] + 3))
    g += G(setm('vcc', m64(lambda i, g: i & 2)))
    for b in range(2):
        g += G('v_cndmask_b32 v%d, v%d, v%d, vcc' % (D1[b] + 1, D2[b], D2[b] + 2))
    g += G("""
    s_lshl_b32 s99, s48, 4
    s_add_u32 s99, s99, s49
    s_lshl_b32 s99, s99, 10
    s_lshl_b32 s98, s51, 8
    s_add_u32 s99, s99, s98
    """) + G(setm('exec', m64(lambda i, g: g == i >> 2)))
    for b in range(2):
        g += G('buffer_store_dwordx2 v[%d:%d], v11, s[40:43], s99 offen offset:%d sc1' % (D1[b], D1[b] + 1, 128 * b), tok_w=['PUB'])
    g += G('s_mov_b64 exec, -1')
    E.append(g)
    return E

NZC = 4
def norm_z2(tiles):
    S = Stream()
    pl = 176; zf = 208; tb = 244; a0 = 248
    S("""
    v_lshrrev_b32 v%d, 4, v1
    v_lshlrev_b32 v%d, 12, v%d
    v_and_b32 v%d, 15, v1
    v_lshl_add_u32 v%d, v%d, 4, v%d
    s_lshl_b32 s9, s48, 14
    s_lshl_b32 s10, s51, 8
    s_add_u32 s9, s9, s10
    """ % (a0, a0, a0, a0 + 1, a0, a0 + 1, a0))
    for k in range(4):
        S('buffer_load_dwordx4 %s, v%d, s[40:43], s9 offen offset:%d sc1' % (q4(pl + 4 * k), a0, k * 1024))
    S("""
    v_lshrrev_b32 v{z}, 4, v1
    v_lshlrev_b32 v{r}, 6, v{z}
    v_lshlrev_b32 v{z}, 3, v{z}
    v_bfe_u32 v{t}, v1, 2, 2
    v_add_u32 v{z}, v{z}, v{t}
    s_lshl_b32 s9, s51, 5
    v_add_u32 v{z}, s9, v{z}
    v_mul_u32_u24 v{z}, {ZP}, v{z}
    v_and_b32 v{t}, 3, v1
    v_lshl_add_u32 v{z}, v{t}, 3, v{z}
    v_add_u32 v{z}, {ZB}, v{z}
    """.format(z=a0 + 2, r=a0 + 3, t=tb, ZP=ZP, ZB=ZB_OFF))
    S.need('ZB')
    for c in tiles:
        for hh in range(2):
            S('ds_read_b64_tr_b16 v[%d:%d], v%d offset:%d' % (zf + 4 * c + 2 * hh, zf + 4 * c + 2 * hh + 1, a0 + 2, hh * 4 * ZP + 32 * c))
    S("""
    s_lshl_b32 s9, s50, 8
    s_add_u32 s9, s9, {SB}
    v_lshlrev_b32 v{w}, 4, v{w}
    v_add_u32 v{w}, s9, v{w}
    v_add_u32 v{r}, s9, v{r}
    v_lshlrev_b32 v{p}, 4, v1
    v_xor_b32 v{p1}, 64, v{p}
    s_lshl_b32 s12, s49, 6
    s_lshl_b32 s13, s48, 2
    s_add_u32 s12, s12, s13
    s_add_u32 s12, s12, s51
    s_mul_i32 s12, s12, 9216
    s_add_u32 s13, s12, 4096
    s_add_u32 s10, s12, 8192
    s_mov_b32 s11, 0x{inv:x}
    """.format(SB=SB_OFF, w=a0 + 1, r=a0 + 3, p=a0 + 4, p1=a0 + 5, inv=fbits(1.0 / 2304)))
    A = S
    S = Stream()
    for k in range(2):
        for e in range(4): S('v_add_f32 v%d, v%d, v%d' % (pl + 4 * k + e, pl + 4 * k + e, pl + 8 + 4 * k + e))
    for e in range(4): S('v_add_f32 v%d, v%d, v%d' % (pl + e, pl + e, pl + 4 + e))
    for sw in ('v_permlane16_swap_b32', 'v_permlane32_swap_b32'):
        for k in range(4): S('v_mov_b32 v%d, v%d' % (pl + 4 + k, pl + k))
        for k in range(4): S('%s v%d, v%d' % (sw, pl + k, pl + 4 + k))
        for k in range(4): S('v_add_f32 v%d, v%d, v%d' % (pl + k, pl + k, pl + 4 + k))
    for r in (pl, pl + 2): rowstats(S, r, tb, 's11')
    S('ds_write_b128 v%d, %s' % (a0 + 1, q4(pl)), tok_w=['SB'])
    S.need('SB')
    sr = pl + 16
    for k in range(4): S('ds_read_b128 %s, v%d offset:%d' % (q4(sr + 4 * k), a0 + 3, 16 * k))
    for c in tiles:
        for d in range(4):
            r = zf + 4 * c + d
            t = tb + 2 * (d & 1)
            S('v_lshlrev_b32 v%d, 16, v%d' % (t, r))
            S('v_and_b32 v%d, 0xffff0000, v%d' % (t + 1, r))
            S('v_fma_f32 v%d, v%d, v%d, v%d' % (t, t, sr + 4 * d, sr + 4 * d + 1))
            S('v_fma_f32 v%d, v%d, v%d, v%d' % (t + 1, t + 1, sr + 4 * d + 2, sr + 4 * d + 3))
            S('v_cvt_pk_bf16_f32 v%d, v%d, v%d' % (r, t, t + 1))
        S('buffer_store_dwordx4 %s, v%d, s[36:39], s%d offen offset:%d' % (q4(zf + 4 * c), a0 + 5 if c & 1 else a0 + 4, (12, 13, 10)[c >> 2], (c & 3) * 1024) + (' sc1' if OPT.get('wt2') else ''))
    return A, S
```

```python
from common import *
from k1_v2 import fbits, gelu4, C1, C2, q4

ZST = 4 * 34816
K2_LDS = ZST + 6 * 4096
def epi_offsets(S):
    S('''
    s_lshl_b32 s46, s32, 3
    s_lshl_b32 s47, s34, 1
    s_add_u32 s46, s46, s47          ; tt0
    s_mul_i32 s47, s33, 9
    s_add_u32 s47, s47, s48
    s_lshr_b32 s47, s47, 1           ; ff0
    s_mul_i32 s51, s46, 72
    s_add_u32 s51, s51, s47
    s_lshl_b32 s51, s51, 10
    s_add_u32 s52, s51, 73728        ; b=1
    s_mul_i32 s53, s46, 90
    s_add_u32 s53, s53, s47
    s_add_u32 s53, s53, 18
    s_lshl_b32 s53, s53, 10
    s_add_u32 s54, s53, 92160
    s_cmp_eq_u32 s48, 0
    s_cselect_b32 s46, 4608, 0
    s_sub_u32 s46, s46, 512
    s_add_u32 s55, s51, s46
    s_add_u32 s56, s52, s46
    s_add_u32 s57, s53, s46
    s_add_u32 s58, s54, s46
    ''')

def gen_k2(stamp=False, rot=True, nodma=False, nomfma=False, noread=False, same=0, nobar=False, prio=0, xmap='48', onewait=True, D=1, gstart=2, gend=30, pf=True, gelu=True, zstart=29, zl0=0, gq=13, cpf=False, spf=0, fuse=False, k3={}):
    F = Finisher()
    S = Stream()
    ACC = 8; FS = (80, 124); Z1 = 168
    vW = (204, 205, 206, 207); vZ = 208; vB0 = 209; vB1 = 210; vA0 = 211; vA1 = 212; vAs = 213; vP = 214; vS = 215
    SLOT = 34816
    ZLD = [zl0 + 3 * k for k in range(9)]
    def acc(a, b): r = ACC + (a * 2 + b) * 4; return 'v[%d:%d]' % (r, r + 3)
    def fB(s, b): r = FS[s] + b * 4; return 'v[%d:%d]' % (r, r + 3)
    def fA(s, a): r = FS[s] + 8 + a * 4; return 'v[%d:%d]' % (r, r + 3)
    def bar(X):
        if not nobar: X('s_barrier')
    S('''
    s_load_dwordx4 s[4:7], s[0:1], 40
    s_load_dwordx2 s[8:9], s[0:1], 80
    s_cmp_ge_u32 s2, 256
    s_cbranch_scc1 K2_END
    ''')
    if stamp: stamp_begin(S, 60)
    S('''
    v_lshrrev_b32 v1, 6, v0
    v_and_b32 v2, 63, v0
    v_readfirstlane_b32 s62, v1
    s_and_b32 s43, s2, 7
    s_lshr_b32 s46, s2, 3
    ''')
    if xmap == '48':
        S('''
        s_lshr_b32 s32, s43, 1
        s_lshl_b32 s32, s32, 2
        s_and_b32 s47, s46, 3
        s_add_u32 s32, s32, s47
        s_and_b32 s33, s43, 1
        s_lshl_b32 s33, s33, 3
        s_lshr_b32 s46, s46, 2
        s_add_u32 s33, s33, s46
        ''')
    else:
        S('''
        s_and_b32 s32, s43, 1
        s_lshl_b32 s32, s32, 3
        s_and_b32 s47, s46, 7
        s_add_u32 s32, s32, s47
        s_lshr_b32 s33, s43, 1
        s_lshl_b32 s33, s33, 2
        s_lshr_b32 s46, s46, 3
        s_add_u32 s33, s33, s46
        ''')
    S('''
    s_add_u32 s35, s46, s47
    s_and_b32 s35, s35, %d
    v_and_b32 v3, 15, v2
    v_lshrrev_b32 v4, 4, v2
    v_lshlrev_b32 v%d, 4, v2
    s_and_b32 s48, s33, 1
    s_and_b32 s34, s62, 3
    s_lshl_b32 s49, s34, 12
    ''' % (3 if rot else 0, vP))
    if same == 1:
        S('s_and_b32 s32, s32, 1')
        S('s_and_b32 s33, s33, 1')
    S('s_cmp_lt_u32 s62, 4')
    S('s_cbranch_scc1 K2_CONS')
    S('''
    s_lshl_b32 s46, s32, 7
    s_lshl_b32 s47, s34, 5
    s_add_u32 s46, s46, s47
    v_lshrrev_b32 v5, 3, v2
    v_add_u32 v5, s46, v5
    v_lshlrev_b32 v5, 12, v5
    v_and_b32 v6, 7, v2
    v_xor_b32 v6, v6, v4
    v_lshlrev_b32 v6, 4, v6
    v_add_u32 v%d, v5, v6
    v_xor_b32 v7, 64, v%d
    v_add_u32 v%d, 0x%x, v7
    v_add_u32 v%d, 0x%x, v%d
    v_add_u32 v%d, 0x%x, v7
    s_mul_i32 s46, s33, 589824
    s_mul_i32 s47, s34, 4608
    s_add_u32 s46, s46, s47
    v_add_u32 v%d, s46, v%d
    s_add_u32 s50, s47, 16384
    s_mov_b32 s44, -1
    s_mov_b32 s45, 0
    s_mov_b32 s36, 0
    s_waitcnt lgkmcnt(0)
    ''' % (vW[0], vW[0], vW[1], 0x8000 - 1024, vW[2], 0x10000 - 2048, vW[0], vW[3], 0x18000 - 3072, vZ, vP))
    srd(S, 12, 4, 5, 2048 * 4096)
    srd(S, 16, 8, 9, Z2P_SZ, Z2P_OFF)
    def sigma(P, p, base):
        if p == 0 and rot:
            P('''s_add_u32 s43, s%d, s35
            s_add_u32 s43, s43, %d
            s_and_b32 s43, s43, 31''' % (base, 4 * D))
        else:
            P('''s_add_u32 s43, s35, %d
            s_and_b32 s43, s43, 3
            s_add_u32 s43, s43, s%d''' % (p, base))
    def half_a(P, p, base):
        sigma(P, p, base)
        P('s_lshl_b32 s37, s43, 7')
        P('s_add_u32 m0, s49, %d' % (p * SLOT))
        for q in range(4):
            if not nodma: P('buffer_load_dwordx4 v%d, s[12:15], s37 offen offset:%d lds' % (vW[q], q * 1024), tok_w=['P%d' % p])
    def half_b(P, p, base):
        sigma(P, p, base)
        P('s_mul_i32 s38, s43, 18432')
        P('s_add_u32 m0, s50, %d' % (p * SLOT))
        if not nodma:
            P('s_mov_b64 exec, s[44:45]')
            P('buffer_load_dwordx4 v%d, s[16:19], s38 offen lds' % vZ, tok_w=['P%d' % p])
            P('s_mov_b64 exec, -1')
            for q in range(4):
                P('buffer_load_dwordx4 v%d, s[16:19], s38 offen offset:%d lds' % (vZ, 512 + q * 1024), tok_w=['P%d' % p])
    for p in range(2):
        half_a(S, p, 36); half_b(S, p, 36)
    if fuse:
        S('v_mov_b32 v5, 159744\nv_mov_b32 v6, 0\nv_mov_b32 v7, 0')
        S('ds_write_b64 v5, v[6:7]', tok_w=['FL'])
        S.need('FL')
    S.need('P0')
    bar(S)
    half_a(S, 2, 36); half_b(S, 2, 36); half_a(S, 3, 36)
    srd(S, 20, 8, 9, Z1P_SZ, Z1P_OFF)
    S2 = Stream(); epi_offsets(S2)
    for x in S2: S(x.text.replace('s51', 's64').replace('s52', 's65'))
    S("""
    s_lshl_b32 s66, s34, 10
    s_add_u32 s66, s66, %d
    v_and_b32 v5, 31, v2
    v_lshlrev_b32 v5, 4, v5
    v_lshrrev_b32 v6, 5, v2
    v_mul_u32_u24 v6, 73728, v6
    v_add_u32 v5, v5, v6
    """ % ZST)
    if spf:
        assert xmap == '84' and not rot
        S('''
        s_lshr_b32 s68, s2, 3
        s_lshr_b32 s69, s68, 3
        s_lshl_b32 s69, s69, 5
        s_lshl_b32 s70, s32, 7
        s_add_u32 s69, s69, s70
        s_lshl_b32 s70, s34, 3
        s_add_u32 s69, s69, s70
        s_lshl_b32 s69, s69, 12
        s_add_u32 s72, s4, s69
        s_addc_u32 s73, s5, 0
        s_and_b32 s68, s68, 7
        s_mul_i32 s68, s68, 2304
        s_mul_i32 s69, s34, 576
        s_add_u32 s68, s68, s69
        s_mul_i32 s69, s33, 589824
        s_add_u32 s68, s68, s69
        s_add_u32 s68, s68, %d
        s_add_u32 s74, s8, s68
        s_addc_u32 s75, s9, 0
        ''' % Z2P_OFF)
    def sprefetch(P, st):
        if not spf or st > 31: return
        for k in range(8): P.append(('RAW', 's_load_dword s76, s[72:73], %d' % (k * 4096 + st * 128)))
        for k in range(5): P.append(('RAW', 's_load_dword s76, s[74:75], %d' % (k * 128 - (64 if k == 4 else 0) + st * 18432)))
    for st in range(4, 4 + spf - 4): sprefetch(S, st)
    def piece(P, k):
        if nodma: return
        P('s_add_u32 m0, s66, %d' % ((k % 5) * 4096))
        if k < 8:
            P('s_add_u32 s67, s%d, %d' % (64 + (k >> 2), (k & 3) * 1024))
            P('buffer_load_dwordx4 v%d, s[20:23], s67 offen lds' % vP, tok_w=['Z%d' % k])
        else:
            P('buffer_load_dwordx4 v5, s[20:23], s55 offen lds', tok_w=['Z%d' % k])
    for m in range(8):
        issue = m < 7
        S('s_add_u32 s51, s36, 4')
        for p in range(4):
            n = 4 * m + p
            if n == 31: break
            if fuse and k3.get('sched') and n >= 29: break
            toks = ['P%d' % ((p + 1) & 3)] + ['Z%d' % k for k in range(9) if ZLD[k] + 2 == n]
            S.need(*toks)
            bar(S)
            if p == 0:
                half_b(S, 3, 36)
                if issue: half_a(S, 0, 51)
            elif issue:
                half_b(S, p - 1, 51)
                half_a(S, p, 51)
            for k in range(9):
                if ZLD[k] == n: piece(S, k)
            sprefetch(S, n + spf)
        S('s_mov_b32 s36, s51')
    if fuse:
        from k3f import k3_body
        if stamp: stamp_mid(S, 80)
        S.append(('SAVEQ',))
        if k3.get('sched'):
            S('s_cmp_lt_u32 s2, 234\ns_cbranch_scc1 K3_START\ns_waitcnt vmcnt(0)\ns_barrier\ns_barrier\ns_barrier\ns_endpgm\nK3_START:')
            S.append(('RESETQ',))
            def mk(tok):
                def f(X):
                    X.need(tok); X('s_barrier')
                return f
            k3_body(S, stamp, bars=[mk('P2'), mk('P3')], **k3)
        else:
            S('s_cmp_lt_u32 s2, 234\ns_cbranch_scc1 K3_START\ns_barrier\ns_endpgm\nK3_START:')
            k3_body(S, stamp, **k3)
    S('K2_END:')
    S('s_endpgm')
    for x in S:
        if isinstance(x, tuple) and x[0] == 'RESETQ':
            F.vmq = keepq; F.lgq = keepl
        elif isinstance(x, tuple) and x[0] == 'SAVEQ':
            keepq = [set(q) for q in F.vmq]; keepl = [(set(a), b) for a, b in F.lgq]
        elif isinstance(x, tuple):
            F.out.append(I(x[1])); F.hist.append((F.out[-1], 1))
        else: F.add(x)
    txt = F.text()
    F = Finisher()
    S = Stream()
    S('K2_CONS:')
    if prio: S('s_setprio %d' % prio)
    S('s_waitcnt lgkmcnt(0)')
    srd(S, 28, 6, 7, 4096)
    S('''
    s_lshl_b32 s46, s32, 8
    s_lshl_b32 s47, s34, 6
    s_add_u32 s46, s46, s47
    v_lshlrev_b32 v5, 1, v3
    buffer_load_ushort v216, v5, s[28:31], s46 offen
    buffer_load_ushort v217, v5, s[28:31], s46 offen offset:32
    ''')
    srd(S, 24, 8, 9, AP_SZ, AP_OFF)
    if pf:
        S('''s_load_dwordx2 s[16:17], s[0:1], 56
        s_load_dwordx2 s[12:13], s[0:1], 16
        s_mov_b32 s18, %d
        s_mov_b32 s19, 0x00020000
        s_mov_b32 s14, %d
        s_mov_b32 s15, 0x00020000''' % (2304 * 1152, 576 * 1152))
    S('''
    v_lshrrev_b32 v5, 1, v3
    v_xor_b32 v5, v5, v4
    v_lshlrev_b32 v5, 4, v5
    v_lshlrev_b32 v6, 7, v3
    v_add3_u32 v%d, v5, v6, s49
    v_xor_b32 v%d, 64, v%d
    ''' % (vB0, vB1, vB0))
    S('''
    v_lshrrev_b32 v5, 3, v3
    v_add_u32 v5, s48, v5            ; o + (i>>3)
    v_and_b32 v6, 1, v5
    v_lshlrev_b32 v6, 2, v6          ; 4*(T&1)
    v_and_b32 v7, 3, v3
    v_bfe_u32 v1, v3, 2, 1
    v_lshl_add_u32 v7, v1, 3, v7     ; 8*((i>>2)&1) + (i&3)
    v_xor_b32 v7, v7, v6
    v_lshl_add_u32 v7, v4, 4, v7     ; + g*16
    v_lshlrev_b32 v7, 4, v7
    v_lshl_add_u32 v7, v5, 10, v7
    v_add_u32 v%d, 16384, v7
    v_xor_b32 v%d, 64, v%d
    s_cmp_eq_u32 s48, 0
    s_cselect_b32 s46, %d, 0
    s_add_u32 s46, s46, 16384
    v_add_u32 v%d, s46, v%d
    v_lshrrev_b32 v5, 1, v4
    v_lshlrev_b32 v5, 8, v5
    v_lshl_add_u32 v5, v3, 4, v5
    v_and_b32 v6, 1, v4
    v_lshl_add_u32 v%d, v6, 3, v5
    ''' % (vA0, vA1, vA0, 8192, vAs, vP, vS))
    epi_offsets(S)
    S('v_lshlrev_b32 v216, 16, v216')
    S('v_lshlrev_b32 v217, 16, v217')
    for a in range(9):
        for b in range(2):
            for r in range(4):
                S('v_mov_b32 v%d, v%d' % (ACC + (a * 2 + b) * 4 + r, 216 + b))
    HI = 224
    for k, r in enumerate((vB0, vB1, vA0, vA1, vAs)): S('v_add_u32 v%d, %d, v%d' % (HI + k, 2 * SLOT, r))
    S('s_mov_b32 s78, 0x%x' % fbits(C1))
    S('v_mov_b32 v7, 0x%x' % fbits(C2))
    def reads(s, h, n):
        g = []
        hi = (n & 3) >> 1; so = (n & 1) * SLOT
        R = lambda r: r if not hi else HI + (vB0, vB1, vA0, vA1, vAs).index(r)
        vB = vB1 if h else vB0
        for b in range(2):
            g.append(I('ds_read_b128 %s, v%d offset:%d' % (fB(s, b), R(vB), so + b * 2048)))
        for a in range(9):
            if a < 8:
                g.append(I('ds_read_b128 %s, v%d offset:%d' % (fA(s, a), R(vA1 if a & 1 else vA0), so + h * 9216 + (a >> 1) * 2048)))
            else:
                g.append(I('ds_read_b128 %s, v%d offset:%d' % (fA(s, a), R(vAs), so + h * 9216)))
        if noread: g = []
        return g
    def mfmas(s):
        m = Stream()
        for a in range(9):
            for b in range(2):
                m('v_mfma_f32_16x16x32_bf16 %s, %s, %s, %s' % (acc(a, b), fA(s, a), fB(s, b), acc(a, b)))
        return m
    if stamp: stamp_mid(S, 72)
    bar(S)
    if stamp:
        stamp_mid(S, 74); S('s_waitcnt lgkmcnt(0)')
    S.extend(reads(0, 0, 0))
    zl = Stream()
    if pf:
        zl.append(G("""s_mul_i32 s46, s2, 10368
        s_mul_i32 s47, s34, 2688
        s_add_u32 s46, s46, s47
        s_mov_b64 exec, 0x1fffff
        buffer_load_dword v218, v6, s[16:19], s46 offen
        s_mov_b64 exec, -1"""))
        zl.append(G("""s_mul_i32 s46, s2, 2688
        s_mul_i32 s47, s34, 768
        s_add_u32 s46, s46, s47
        s_mov_b64 exec, 0x3f
        buffer_load_dword v219, v6, s[12:15], s46 offen
        s_mov_b64 exec, -1"""))
        S('v_lshlrev_b32 v6, 7, v2')
    if cpf: zl.append(code_prefetch('k3_kernel', 'TEXT_END', 2, 4, 217, 46, 4))
    S('''s_lshl_b32 s46, s34, 10
    s_add_u32 s46, s46, %d
    v_add_u32 v229, s46, v%d
    v_add_u32 v230, s46, v%d''' % (ZST, vP, vS))
    zr = {}
    for k in range(8): zr[ZLD[k] + 2] = [I('ds_read_b128 %s, v229 offset:%d' % (q4(Z1 + 4 * k), (k % 5) * 4096))]
    zr[ZLD[8] + 2] = [G('ds_read_b64 v[%d:%d], v230 offset:%d\nds_read_b64 v[%d:%d], v230 offset:%d' % (Z1 + 32, Z1 + 33, 3 * 4096, Z1 + 34, Z1 + 35, 3 * 4096 + 512))]
    gw = []
    for k in range(18 if gelu else 0):
        g = Stream()
        p = Z1 + 2 * k; x = 232 + 8 * (k & 1)
        g('v_lshlrev_b32 v%d, 16, v%d' % (x, p))
        g('v_and_b32 v%d, 0xffff0000, v%d' % (x + 1, p))
        g('v_lshlrev_b32 v%d, 16, v%d' % (x + 2, p + 1))
        g('v_and_b32 v%d, 0xffff0000, v%d' % (x + 3, p + 1))
        gelu4(g, x, x + 4, c2=7)
        g('v_cvt_pk_bf16_f32 v%d, v%d, v%d' % (p, x, x + 1))
        g('v_cvt_pk_bf16_f32 v%d, v%d, v%d' % (p + 1, x + 2, x + 3))
        gw += [(ZLD[k // 2] + 3, x) for x in g]
    quota = gq
    def half(B, ms, rds, n, mem):
        left = quota if n >= gstart else 0
        for k, m in enumerate(ms):
            B.append(m)
            room = 2
            if rds: B.append(rds.pop(0)); room = 1
            elif mem:
                x = mem.pop(0); room = 1
                if isinstance(x, list): B.extend(x)
                else: B.append(x)
            while gw and left > 0 and room > 0 and k < 17 and gw[0][0] <= n:
                need = 2 if gw[0][1].kind == 'trans' else 1
                if need > room: break
                B.append(gw.pop(0)[1]); room -= need; left -= 1
    for n in range(32):
        S('s_waitcnt lgkmcnt(0)')
        half(S, mfmas(0), reads(1, 1, n), n, zl if n >= zstart else None)
        if n < 31 or fuse:
            S('s_waitcnt lgkmcnt(0)')
            bar(S)
        half(S, mfmas(1), reads(0, 0, n + 1) if n < 31 else [], n, zr.get(n) or (zl if n >= zstart else None))
    assert not gw and not zl, (len(gw), len(zl))
    F.run(S)
    E = Stream()
    if stamp: stamp_mid(E, 76)
    t0 = 216
    for b in range(2):
        for p in range(5):
            nd = 4 if p < 4 else 2
            zr = Z1 + (b * 4 + p) * 4 if p < 4 else Z1 + 32 + b * 2
            for d in range(nd):
                a = 2 * p + (d >> 1)
                ar = ACC + (a * 2 + b) * 4 + (d & 1) * 2
                t = 220 + (d & 1) * 2
                E('v_lshlrev_b32 v%d, 16, v%d' % (t, zr + d))
                E('v_and_b32 v%d, 0xffff0000, v%d' % (t + 1, zr + d))
                E('v_pk_mul_f32 v[%d:%d], v[%d:%d], v[%d:%d]' % (t, t + 1, t, t + 1, ar, ar + 1))
                E('v_cvt_pk_bf16_f32 v%d, v%d, v%d' % (zr + d, t, t + 1))
            if p < 4:
                E('buffer_store_dwordx4 v[%d:%d], v%d, s[24:27], s%d offen offset:%d%s' % (zr, zr + 3, vP, 53 + b, p * 1024, ' sc1' if fuse else ''))
            else:
                E('buffer_store_dwordx2 v[%d:%d], v%d, s[24:27], s%d offen%s' % (zr, zr + 1, vS, 57 + b, ' sc1' if fuse else ''))
    if fuse:
        srd(E, 28, 8, 9, CN_SZ, CN_OFF)
        E('''v_mov_b32 v5, 159744
        v_mov_b32 v6, 1
        s_lshl_b32 s46, s32, 8''')
        if stamp: stamp_mid(E, 78)
        E('''s_waitcnt vmcnt(0) lgkmcnt(0)
        s_mov_b64 exec, 1
        ds_add_rtn_u32 v7, v5, v6
        s_waitcnt lgkmcnt(0)
        v_readfirstlane_b32 s47, v7
        s_cmp_lg_u32 s47, 3
        s_cbranch_scc1 K2_NOSIG
        v_mov_b32 v5, 0
        buffer_atomic_add v6, v5, s[28:31], s46 offen sc1
        K2_NOSIG:
        s_mov_b64 exec, -1''')
    if stamp:
        if not fuse: stamp_mid(E, 78)
        E('s_waitcnt vmcnt(0)')
        stamp_mid(E, 80)
        stamp_store(E, 60, [72, 74, 76, 78, 80], 8, 1, 64, 216)
    E('s_endpgm')
    F.run(E)
    return txt + F.text(), 248
```

```python
from common import *
K3_P = 272
RED = 0
FLAG = 159744
def k3_body(S, stamp=False, early=2, sleep=12, own=True, pre=0, red2=False, sched=None, bars=None, rot=0):
    ACC = 8; AR = 88; WF = 168
    vA = (200, 201, 202, 203, 204); vW = (205, 206, 207, 208); vT = (209, 210, 211, 212); vT2 = (232, 233, 234, 235)
    XR = 216; vO = 213; vR = 214
    NW = 8
    def acc(ct, a): r = ACC + (ct * 5 + a) * 4; return 'v[%d:%d]' % (r, r + 3)
    def fa(s, a): r = AR + s * 20 + a * 4; return 'v[%d:%d]' % (r, r + 3)
    def fw(s, ct): r = WF + s * 16 + ct * 4; return r
    S('''
    s_load_dwordx2 s[4:5], s[0:1], 0
    s_load_dwordx2 s[6:7], s[0:1], 16
    s_load_dwordx4 s[64:67], s[0:1], 56
    s_and_b32 s43, s2, 7
    s_lshr_b32 s46, s2, 3
    s_mul_i32 s47, s43, 29
    s_min_u32 s43, s43, 2
    s_add_u32 s47, s47, s43
    s_add_u32 s47, s47, s46          ; tile
    s_mul_hi_u32 s32, s47, 0x1c71c71d ; mt
    s_mul_i32 s46, s32, 9
    s_sub_u32 s33, s47, s46          ; nt
    s_mul_i32 s46, s32, 460800
    v_lshlrev_b32 v3, 4, v2
    v_add_u32 v%d, s46, v3
    ''' % vA[0])
    for a in range(1, 5):
        S('v_add_u32 v%d, %d, v%d' % (vA[a], 92160 * a, vA[0]))
    S('''
    v_lshrrev_b32 v3, 3, v2
    v_and_b32 v4, 2, v3
    v_and_b32 v5, 7, v2
    v_xor_b32 v5, v5, v4
    v_lshlrev_b32 v5, 4, v5
    v_mul_u32_u24 v3, 1152, v3
    s_lshl_b32 s46, s33, 7
    v_add3_u32 v%d, v3, v5, s46
    v_xor_b32 v5, 64, v5
    v_add3_u32 v6, v3, v5, s46
    v_add_u32 v%d, %d, v6
    v_add_u32 v%d, %d, v%d
    v_add_u32 v%d, %d, v6
    s_lshl_b32 s49, s34, 12          ; wave part of the ring address
    s_mul_i32 s36, s34, 36864        ; W row offset of k-frag w
    s_lshl_b32 s38, s34, 10          ; A offset of k-frag w
    s_waitcnt lgkmcnt(0)
    ''' % (vW[0], vW[1], 9216 - 1024, vW[2], 2 * (9216 - 1024), vW[0], vW[3], 3 * (9216 - 1024)))
    S('s_mul_i32 s57, s33, %d\ns_mov_b32 s58, s57' % rot)
    srd(S, 16, 8, 9, AP_SZ, AP_OFF)
    srd(S, 20, 6, 7, 576 * 1152)
    srd(S, 12, 64, 65, 2304 * 1152)
    def wload(q):
        P = Stream()
        if q <= 3: srdn, off = '20:23', 4 * q * 36864
        elif q >= 5: srdn, off = '12:15', (4 * q - 18) * 36864
        if q == 4:
            P('''s_cmp_lt_u32 s34, 2
            s_cselect_b32 s76, s20, s12
            s_cselect_b32 s77, s21, s13
            s_cselect_b32 s78, s22, s14
            s_mov_b32 s79, 0x00020000
            s_cselect_b32 s37, %d, 0
            s_add_u32 s37, s37, s36
            s_sub_u32 s37, s37, %d''' % (18 * 36864, 2 * 36864))
            srdn = '76:79'
        elif rot and q >= 5:
            P('''s_mul_i32 s37, s57, %d
            s_add_u32 s37, s37, s36
            s_add_u32 s37, s37, %d
            s_add_u32 s57, s57, 1
            s_cmp_eq_u32 s57, 18
            s_cselect_b32 s57, 0, s57''' % (4 * 36864, 2 * 36864))
        else:
            P('s_add_u32 s37, s36, %d' % off)
        P('s_add_u32 m0, s49, %d' % ((q % NW) * 16384))
        for j in range(4):
            P('buffer_load_dwordx4 v%d, s[%s], s37 offen offset:%d lds' % (vW[j], srdn, j * 1024), tok_w=['W%d' % (q % NW)])
        return P
    def aload(q):
        P = Stream()
        if rot and q >= 5:
            P('''s_lshl_b32 s39, s58, 12
            s_add_u32 s39, s39, s38
            s_add_u32 s39, s39, %d
            s_cmp_lt_u32 s39, %d
            s_cselect_b32 s39, s39, 0x7f000000
            s_add_u32 s58, s58, 1
            s_cmp_eq_u32 s58, 18
            s_cselect_b32 s58, 0, s58''' % (20 * 1024, 90 * 1024))
        else:
            P('s_add_u32 s39, s38, %d' % (4 * q * 1024))
        if q == 22 and not rot:
            P('s_cmp_lt_u32 s34, 2')
            P('s_cselect_b32 s39, s39, 0x7f000000')
        for a in range(5):
            P('buffer_load_dwordx4 %s, v%d, s[16:19], s39 offen%s' % (fa(q & 3, a), vA[a], ' sc1' if q >= 4 else ''))
        return P
    NQ = 23
    def do(names):
        for nm in names: S.extend(wload(int(nm[1:])) if nm[0] == 'W' else aload(int(nm[1:])))
    done = set()
    if sched:
        do(sched[0]); done.update(sched[0])
    else:
        for q in range(early): S.extend(wload(q)); S.extend(aload(q))
    S('''
    v_lshrrev_b32 v3, 4, v2          ; g
    v_bfe_u32 v4, v2, 2, 2           ; r
    v_and_b32 v5, 3, v2              ; c
    v_lshl_add_u32 v6, v3, 3, v4     ; 8g + r
    v_lshlrev_b32 v6, 7, v6
    v_add_u32 v6, s49, v6
    v_and_b32 v7, 1, v5
    v_lshl_add_u32 v6, v7, 3, v6     ; + (c&1)*8
    v_lshrrev_b32 v5, 1, v5
    v_lshl_add_u32 v6, v5, 4, v6     ; + (c>>1)*16
    v_and_b32 v4, 2, v4
    v_and_b32 v3, 1, v3
    v_lshl_or_b32 v4, v3, 2, v4      ; f
    v_lshlrev_b32 v4, 4, v4
    ''')
    for ct in range(4):
        if red2:
            S('s_add_u32 s46, s34, %d\ns_and_b32 s46, s46, 3\ns_lshl_b32 s46, s46, 5\nv_xor_b32 v5, s46, v4' % ct)
        else:
            S('v_xor_b32 v5, %d, v4' % (32 * ct))
        S('v_add_u32 v%d, v5, v6' % vT[ct])
        S('v_add_u32 v%d, 65536, v%d' % (vT2[ct], vT[ct]))
    srd(S, 24, 4, 5, 2048 * 1152)
    srd(S, 28, 66, 67, 2048 * 1152)
    srd(S, 72, 8, 9, CN_SZ, CN_OFF)
    S('''
    v_subrev_u32 v0, 256, v0
    v_lshrrev_b32 v3, 3, v0
    s_mul_i32 s46, s32, 80
    v_add_u32 v4, s46, v3
    v_mul_u32_u24 v4, 1152, v4
    v_and_b32 v5, 7, v0
    v_lshlrev_b32 v6, 4, v5
    s_lshl_b32 s47, s33, 7
    v_add3_u32 v%d, v4, v6, s47
    v_mul_u32_u24 v3, %d, v3
    v_lshlrev_b32 v5, 5, v5
    v_add_u32 v%d, v3, v5
    s_add_u32 s47, s46, 79
    s_min_u32 s47, s47, 2047
    s_lshr_b32 s46, s46, 7
    s_lshr_b32 s47, s47, 7
    s_lshl_b32 s46, s46, 8
    s_lshl_b32 s47, s47, 8
    v_mov_b32 v228, s46
    v_mov_b32 v229, s47
    v_mov_b32 v230, %d
    s_mov_b32 s52, 0
    s_mov_b32 s53, %d
    s_mov_b32 s54, %d
    ''' % (vO, K3_P, vR, FLAG, 32 * 1152, 64 * 1152))
    if red2:
        S('''v_and_b32 v3, 15, v2
        s_mul_i32 s46, s32, 80
        v_add_u32 v4, s46, v3
        v_mul_u32_u24 v4, 1152, v4
        v_lshrrev_b32 v5, 4, v2
        v_lshlrev_b32 v5, 3, v5
        s_lshl_b32 s47, s33, 7
        s_lshl_b32 s46, s34, 5
        s_add_u32 s47, s47, s46
        v_add3_u32 v%d, v4, v5, s47''' % vO)
        for a in range(5): S('s_mov_b32 s%d, %d' % (52 + a, a * 16 * 1152))
    if sched:
        for k in range(2):
            bars[k](S)
            do(sched[k + 1]); done.update(sched[k + 1])
    S('s_barrier')
    if sched:
        do(sched[3]); done.update(sched[3])
    def ownwait():
        S('''s_mov_b32 s41, 1
        K3_OWN:
        ds_read_b32 v236, v230
        s_waitcnt lgkmcnt(0)
        s_add_u32 s41, s41, 1
        v_readfirstlane_b32 s42, v236
        s_cmp_ge_u32 s42, 4
        s_cbranch_scc1 K3_OWNED
        s_sleep 2
        s_cmp_lt_u32 s41, 0x400000
        s_cbranch_scc1 K3_OWN
        K3_OWNED:''')
    def trreads(ws, q):
        g = []
        slot = q % NW
        for ct in range(4):
            for h in range(2):
                r = fw(ws, ct) + 2 * h
                g.append(G('ds_read_b64_tr_b16 v[%d:%d], v%d offset:%d' % (r, r + 1, (vT2 if slot >= 4 else vT)[ct], (slot & 3) * 16384 + h * 512)))
        return g
    def mf(ws, q):
        m = Stream()
        for ct in range(4):
            for a in range(5):
                r = fw(ws, ct)
                m('v_mfma_f32_16x16x32_bf16 %s, v[%d:%d], %s, %s' % (acc(ct, a), r, r + 3, fa(q & 3, a), '0' if q == 0 else acc(ct, a)))
        return m
    S.need('W0')
    for g in trreads(0, 0): S.extend(g)
    if stamp:
        stamp_mid(S, 82); S('s_waitcnt lgkmcnt(0)')
    for q in range(NQ):
        if q == pre:
            if own:
                S.append(('SAVEQ',)); ownwait(); S.append(('RESETQ',))
            if sched:
                do([x for k in range(8 + pre) for x in ('W%d' % k, 'A%d' % k) if x not in done and (x[0] == 'W' or k < 4)])
            else:
                for k in range(early, 4): S.extend(wload(k)); S.extend(aload(k))
                for k in range(4, 8 + pre): S.extend(wload(k))
        if q == 4:
            S.append(('SAVEQ',))
            if stamp: stamp_mid(S, 84)
            S('''
            s_mov_b32 s41, 0
            s_cmp_lg_u32 s34, 0
            s_cbranch_scc1 K3_WAITL
            K3_POLL:
            buffer_load_dword v236, v228, s[72:75], 0 offen sc1
            buffer_load_dword v237, v229, s[72:75], 0 offen sc1
            s_waitcnt vmcnt(0)
            v_min_u32 v236, v236, v237
            s_add_u32 s41, s41, 1
            v_readfirstlane_b32 s42, v236
            s_cmp_ge_u32 s42, 16
            s_cbranch_scc1 K3_SET
            s_sleep %d
            s_cmp_lt_u32 s41, 0x20000
            s_cbranch_scc1 K3_POLL
            K3_SET:
            v_mov_b32 v236, 1
            ds_write_b32 v230, v236 offset:4
            s_branch K3_GO
            K3_WAITL:
            ds_read_b32 v236, v230 offset:4
            s_waitcnt lgkmcnt(0)
            s_add_u32 s41, s41, 1
            v_readfirstlane_b32 s42, v236
            s_cmp_lg_u32 s42, 0
            s_cbranch_scc1 K3_GO
            s_sleep 1
            s_cmp_lt_u32 s41, 0x400000
            s_cbranch_scc1 K3_WAITL
            K3_GO:
            '''.strip() % sleep)
            S.append(('RESETQ',))
            if stamp:
                stamp_mid(S, 86); S('s_waitcnt lgkmcnt(0)')
            for k in (4, 5, 6): S.extend(aload(k))
        if q > pre and q + 7 < NQ: S.extend(wload(q + 7))
        if q >= 4 and q + 3 < NQ: S.extend(aload(q + 3))
        if q == NQ - 3:
            for rd in range(3 if not red2 else 0):
                S('buffer_load_dwordx4 v[%d:%d], v%d, s[24:27], s%d offen' % (XR + 4 * rd, XR + 4 * rd + 3, vO, 52 + rd))
            for a in range(5 if red2 else 0):
                S('buffer_load_dwordx2 v[%d:%d], v%d, s[24:27], s%d offen' % (XR + 2 * a, XR + 2 * a + 1, vO, 52 + a))
        g = []
        if q + 1 < NQ:
            n = Stream(); n.need('W%d' % ((q + 1) % NW))
            g = trreads((q + 1) & 1, q + 1)
            g[0] = list(n) + g[0]
        S.extend(weave(mf(q & 1, q), g, 2, 14))
    if stamp: stamp_mid(S, 88)
    E = S
    if red2:
        E("""
        v_lshlrev_b32 v3, 4, v2
        s_mul_i32 s46, s34, 15360
        v_add_u32 v4, s46, v3
        s_barrier
        """)
        for d in range(1, 4):
            E("""s_add_u32 s47, s34, %d
            s_and_b32 s47, s47, 3
            s_mul_i32 s47, s47, 15360
            v_add_u32 v5, s47, v3""" % d)
            for a in range(5):
                E('ds_write_b128 v5, %s offset:%d' % (acc(d, a), (d - 1) * 5120 + a * 1024), tok_w=['RED'])
        E.need('RED')
        E('s_barrier')
        for d in range(3):
            for a in range(5):
                r = AR + (d * 5 + a) * 4
                E('ds_read_b128 v[%d:%d], v4 offset:%d' % (r, r + 3, d * 5120 + a * 1024))
        for a in range(5):
            o = ACC + a * 4
            for e in range(4):
                E('v_add_f32 v%d, v%d, v%d' % (o + e, o + e, AR + a * 4 + e))
                E('v_add_f32 v%d, v%d, v%d' % (AR + 20 + a * 4 + e, AR + 20 + a * 4 + e, AR + 40 + a * 4 + e))
            for d in range(2):
                x = XR + 2 * a + d
                E('v_lshlrev_b32 v5, 16, v%d' % x)
                E('v_and_b32 v6, 0xffff0000, v%d' % x)
                E('v_add_f32 v%d, v%d, v%d' % (o + 2 * d, o + 2 * d, AR + 20 + a * 4 + 2 * d))
                E('v_add_f32 v%d, v%d, v%d' % (o + 2 * d + 1, o + 2 * d + 1, AR + 21 + a * 4 + 2 * d))
                E('v_add_f32 v5, v5, v%d' % (o + 2 * d))
                E('v_add_f32 v6, v6, v%d' % (o + 2 * d + 1))
                E('v_cvt_pk_bf16_f32 v%d, v5, v6' % x)
            E('buffer_store_dwordx2 v[%d:%d], v%d, s[28:31], s%d offen' % (XR + 2 * a, XR + 2 * a + 1, vO, 52 + a))
    else:
        E('''
        v_and_b32 v3, 15, v2
        v_mul_u32_u24 v3, %d, v3
        v_lshrrev_b32 v4, 4, v2
        v_lshl_add_u32 v3, v4, 4, v3
        s_mul_i32 s46, s34, %d
        v_add_u32 v3, s46, v3
        s_barrier
        ''' % (K3_P, 80 * K3_P))
        for a in range(5):
            for ct in range(4):
                E('ds_write_b128 v3, %s offset:%d' % (acc(ct, a), a * 16 * K3_P + ct * 64), tok_w=['RED'])
        E.need('RED')
        E('s_barrier')
        for rd in range(3):
            if rd == 2:
                E('s_cmp_ge_u32 s34, 2')
                E('s_cbranch_scc1 K3_DONE')
            base = 88 + rd * 32
            for c in range(4):
                if c == 3: E('v_add_u32 v4, %d, v%d' % (3 * 80 * K3_P, vR))
                for hh in range(2):
                    r = base + c * 8 + hh * 4
                    off = rd * 32 * K3_P + hh * 16 + (c * 80 * K3_P if c < 3 else 0)
                    E('ds_read_b128 v[%d:%d], v%d offset:%d' % (r, r + 3, vR if c < 3 else 4, off))
            for e in range(8):
                E('v_add_f32 v%d, v%d, v%d' % (base + e, base + e, base + 8 + e))
                E('v_add_f32 v%d, v%d, v%d' % (base + 16 + e, base + 16 + e, base + 24 + e))
            for d in range(4):
                x = XR + 4 * rd + d
                E('v_lshlrev_b32 v5, 16, v%d' % x)
                E('v_and_b32 v6, 0xffff0000, v%d' % x)
                E('v_add_f32 v%d, v%d, v%d' % (base + 2 * d, base + 2 * d, base + 16 + 2 * d))
                E('v_add_f32 v%d, v%d, v%d' % (base + 2 * d + 1, base + 2 * d + 1, base + 17 + 2 * d))
                E('v_add_f32 v5, v5, v%d' % (base + 2 * d))
                E('v_add_f32 v6, v6, v%d' % (base + 2 * d + 1))
                E('v_cvt_pk_bf16_f32 v%d, v5, v6' % x)
            E('buffer_store_dwordx4 v[%d:%d], v%d, s[28:31], s%d offen' % (XR + 4 * rd, XR + 4 * rd + 3, vO, 52 + rd))
    E('K3_DONE:')
    if stamp:
        stamp_mid(E, 90)
        E('s_waitcnt vmcnt(0)')
        stamp_mid(E, 92)
        E('v_add_u32 v0, 256, v0')
        stamp_store(E, 60, [80, 82, 84, 86, 88, 90, 92], 8, 1, 64, 4)
        E('''s_and_b32 s46, s2, 63
        s_or_b32 s46, s46, s34
        s_cmp_lg_u32 s46, 0
        s_cbranch_scc1 K3_NODBG
        s_add_u32 s40, s8, 0x%x
        s_addc_u32 s41, s9, 0
        s_lshl_b32 s46, s2, 8
        s_load_dwordx2 s[42:43], s[40:41], s46
        s_add_u32 s40, s8, 0x%x
        s_addc_u32 s41, s9, 0
        s_add_u32 s47, s46, 24
        s_load_dword s44, s[40:41], s47
        s_load_dwordx2 s[12:13], s[0:1], 72
        s_memrealtime s[50:51]
        s_waitcnt lgkmcnt(0)
        s_mov_b32 s14, 256
        s_mov_b32 s15, 0x00020000
        s_sub_u32 s43, s43, s42
        s_sub_u32 s45, s100, s42
        s_sub_u32 s50, s50, s42
        v_mov_b32 v8, s43
        v_mov_b32 v9, s45
        v_mov_b32 v10, s50
        v_mov_b32 v11, s44
        s_lshr_b32 s46, s2, 2
        v_mov_b32 v4, 0
        s_mov_b64 exec, 1
        buffer_store_dwordx4 v[8:11], v4, s[12:15], s46 offen
        s_mov_b64 exec, -1
        K3_NODBG:''' % (TS_OFF + 0x40000, TS_OFF))
```

```python
import sys
from build import *
HDR = open('parallel_sum__sliding_local_dilated__mixer_gmlp__prompt.s.ref').read().split('; Override launch')[0]
def make(path, stamp=False, k1={}, k2={}, k3={}):
    t1, v1 = gen_k1(stamp=stamp, **k1)
    t2, v2 = gen_k2(stamp=stamp, **k2)
    t3, v3 = gen_k3(stamp=stamp, **k3)
    assemble_file(path, [('k1_kernel', t1, v1, 256, 512, K1_LDS), ('k2_kernel', t2, v2, 256, 512, K2_LDS), ('k3_kernel', t3, v3, 234, 256, K3_LDS)])
    s = open(path).read()
    open(path, 'w').write(HDR + s)
def makef(path, stamp=False, k1={}, k2={}):
    t1, v1 = gen_k1(stamp=stamp, **k1)
    t2, v2 = gen_k2(stamp=stamp, fuse=True, **k2)
    assemble_file(path, [('k1_kernel', t1, v1, 256, 512, K1_LDS), ('k2_kernel', t2, v2, 256, 512, K2_LDS)])
    s = open(path).read()
    open(path, 'w').write(HDR + s)
if __name__ == '__main__':
    K2 = dict(prio=1, rot=False, xmap='84', pf=False, k3=dict(early=2, pre=1))
    B = dict(budget=66, nc=4, pf3=1)
    SCH = [['W0', 'W1'], ['W2', 'W3', 'A0'], ['A1', 'W4'], []]
    k2 = dict(K2, k3=dict(early=2, pre=1, sched=SCH))
    B['pfc'] = [5, 8, 11, 14, 17, 20]
    for nm, k1 in (('f', {}), ('g', dict(cpf=1)), ('h', dict(cpf=2))):
        makef('full_%s.s' % nm, stamp=True, k1=dict(B, **k1), k2=k2)
        makef('v%s.s' % nm, k1=dict(B, **k1), k2=k2)
```

```python
from common import *
import k1_v2 as V2
from k1_v2 import fbits, q4, gelu4, rowstats, dots, norm4, flatten, m64, setm, is_mem, C1, C2, SCL
SLOT = 20480
T1_OFF = 40960; T2_OFF = 81920; XH_OFF = 143360; ZB_OFF = 81920; QB_OFF = 119808; SB_OFF = 161792
K1_LDS = 163840
QP = 240; ZP = 296
XF = 112; ACC = 40; WFR = 16; NRING = 5
NR1 = 6; P1 = NR1 * 2048; P2 = (9 - NR1) * 2048
sBLK = 54
vT = 4; vC2 = 9
OPT = {}
assert all((i * 3277) >> 16 == i // 20 for i in range(1280)) and all((r * 43) >> 8 == r // 6 for r in range(18))
def xf(j, b): r = XF + (j * 2 + b) * 4; return 'v[%d:%d]' % (r, r + 3)
LN1 = 40; LN2 = XF + 16 * NR1; ST = 88
def ln(g, j): return (LN1 + (g * NR1 + j) * 4 if g < 2 else 16 + 4 * j) if j < NR1 else LN2 + (g * (9 - NR1) + j - NR1) * 4
PH = [('Z2', 9216, 4608), ('Q', 3456, 0), ('Z1', 9216, 0)]
vDZ = 16; vDQ = 21
def wt(x):
    if isinstance(x, str): return 1
    if isinstance(x, list): return sum(wt(y) for y in x)
    if x.kind in ('need', 'label'): return 0
    if x.kind in ('trans', 'mfma'): return 2
    if x.kind == 'salu': return 0.5
    return 1

def wdma(n):
    ph, j = divmod(n, 9)
    nm, pitch, add = PH[ph]
    P = Stream()
    P('s_mul_i32 s63, s%d, %d' % (sBLK + j, 64 * pitch))
    if add: P('s_add_u32 s63, s63, %d' % add)
    isq = nm == 'Q'
    P('s_add_u32 s63, s63, s%d' % (65 if isq else 64))
    for e in range(5):
        P('s_add_u32 m0, s68, %d' % ((n & 3) * SLOT + e * 4096))
        P('buffer_load_dwordx4 v%d, s[%s], s63 offen lds' % ((vDQ if isq else vDZ) + e, '20:23' if isq else '24:27'), tok_w=['W%d' % n])
    return P

def head(S, stamp, xmap, rot):
    S('''
    s_load_dwordx4 s[4:7], s[0:1], 0
    s_load_dwordx2 s[8:9], s[0:1], 32
    s_load_dwordx4 s[12:15], s[0:1], 72
    s_load_dwordx2 s[10:11], s[0:1], 40
    s_cmp_ge_u32 s2, 256
    s_cbranch_scc1 K1_END
    ''')
    if stamp: stamp_begin(S, 84)
    S('''
    v_lshrrev_b32 v10, 6, v0
    v_and_b32 v1, 63, v0
    v_readfirstlane_b32 s50, v10
    s_and_b32 s63, s2, 7
    s_lshr_b32 s64, s2, 3
    ''')
    if xmap == '84':
        S('''
        s_and_b32 s48, s63, 1
        s_lshl_b32 s48, s48, 3
        s_and_b32 s65, s64, 7
        s_add_u32 s48, s48, s65
        s_lshr_b32 s49, s63, 1
        s_lshl_b32 s49, s49, 2
        s_lshr_b32 s64, s64, 3
        s_add_u32 s49, s49, s64
        s_lshl_b32 s64, s64, 1
        s_add_u32 s53, s64, s65
        ''')
    else:
        S('''
        s_lshr_b32 s48, s63, 1
        s_lshl_b32 s48, s48, 2
        s_and_b32 s65, s64, 3
        s_add_u32 s48, s48, s65
        s_and_b32 s49, s63, 1
        s_lshl_b32 s49, s49, 3
        s_lshr_b32 s64, s64, 2
        s_add_u32 s49, s49, s64
        s_lshl_b32 s65, s65, 1
        s_add_u32 s53, s64, s65
        ''')
    if not rot: S('s_mov_b32 s53, 0')
    S('''
    s_sub_u32 s64, s53, 9
    s_cmp_ge_u32 s53, 9
    s_cselect_b32 s%d, s64, s53
    s_and_b32 s51, s50, 3
    s_and_b32 s52, s49, 1
    s_lshl_b32 s63, s48, 7
    s_lshl_b32 s64, s51, 5
    s_add_u32 s63, s63, s64
    s_lshr_b32 s64, s50, 2
    s_mul_i32 s64, s64, 24
    s_add_u32 s63, s63, s64
    v_lshrrev_b32 v12, 3, v1
    v_and_b32 v13, 7, v1
    v_add_u32 v10, s63, v12
    v_mul_u32_u24 v10, 1152, v10
    v_lshl_add_u32 v10, v13, 4, v10
    v_add_u32 v11, 9216, v10
    v_add_u32 v14, 18432, v10
    ''' % sBLK)
    for j in range(1, 9):
        S('s_add_u32 s%d, s%d, 1' % (sBLK + j, sBLK + j - 1))
        S('s_cmp_eq_u32 s%d, 9' % (sBLK + j))
        S('s_cselect_b32 s%d, 0, s%d' % (sBLK + j, sBLK + j))
    for j in range(9): S('s_lshl_b32 s%d, s%d, 7' % (69 + j, sBLK + j))
    S('s_waitcnt lgkmcnt(0)')
    srd(S, 16, 4, 5, 2048 * 1152)
    S('s_cmp_ge_u32 s50, 4')
    S('s_cbranch_scc1 K1_HELP')

def xloads(S, gs):
    for g in gs:
        for j in range(9):
            S('buffer_load_dwordx4 %s, v%d, s[16:19], s%d offen' % (q4(ln(g, j)), (10, 11, 14)[g], 69 + j))
def common_setup(S):
    srd(S, 28, 14, 15, AP_SZ, AP_OFF)
    srd(S, 36, 14, 15, Z2P_SZ, Z2P_OFF)
    srd(S, 40, 14, 15, FL_OFF + 4 * FL_SZ - ST_OFF, ST_OFF)
    srd(S, 44, 12, 13, 256)
    S('s_mov_b32 s79, 0x%x' % fbits(SCL))
    S('''
    s_mov_b32 s82, 0x3f803f80
    s_mov_b32 s83, 0x%x
    v_xor_b32 v102, v12, v13
    v_and_b32 v103, 3, v1
    v_lshl_add_u32 v102, v103, 4, v102
    v_lshlrev_b32 v102, 4, v102
    v_bfe_u32 v104, v1, 2, 1
    v_lshl_add_u32 v102, v104, 10, v102
    s_mul_i32 s63, s51, %d
    s_add_u32 s63, s63, %d
    v_add_u32 v5, s63, v102              ; transit write address
    v_and_b32 v101, 15, v1
    v_lshrrev_b32 v105, 4, v1
    v_xor_b32 v102, v101, v105
    v_lshl_add_u32 v102, v105, 4, v102
    v_lshlrev_b32 v6, 4, v102            ; plain frag read offset (even)
    v_mul_u32_u24 v105, 2560, v105
    v_bfe_u32 v101, v1, 2, 2
    v_mul_u32_u24 v101, 320, v101
    v_lshlrev_b32 v103, 3, v103
    v_add3_u32 v%d, v105, v101, v103
    ''' % (fbits(1.0 / 576), 2 * P1, T1_OFF, vT))

def goff(k, P): return (k >> 1) * P + (k & 1) * 128
def layernorm(S, ks, mid=None, mid2=None):
    ng = len(ks)
    for g in range(ng):
        st = ST + 2 * g
        regs = [ln(g, j) + d for j in range(9) for d in range(4)]
        S.extend(dots(regs, st, st + 1))
        if OPT.get('ptrace'): stamp_mid(S, 88 + 4 * (g & 1))
        if g == 0 and ng > 1: xloads(S, [1, 2] if OPT.get('x12', 0) else [1])
        for m in ('quad_perm:[1,0,3,2]', 'quad_perm:[2,3,0,1]', 'row_half_mirror'):
            for r in range(st, st + 2):
                S('v_add_f32_dpp v%d, v%d, v%d %s row_mask:0xf bank_mask:0xf' % (r, r, r, m))
        rowstats(S, st, ST + 6, 's83')
        if g == ng - 1 and mid: S.extend(mid)
        for j in range(NR1):
            norm4(S, ln(g, j), st, ST + 6)
            S('ds_write_b128 v5, %s offset:%d' % (q4(ln(g, j)), goff(ks[g], P1) + j * 2048), tok_w=['T'])
        if g < ng - 1:
            for j in range(NR1, 9): norm4(S, ln(g, j), st, ST + 6)
            if OPT.get('ptrace'): stamp_mid(S, 90)
        if g == 0 and ng > 2 and not OPT.get('x12', 0): xloads(S, [2])
    if mid2: S.extend(mid2)
    if OPT.get('ptrace'): stamp_mid(S, 94)
    S.need('T')
    S('s_barrier')
    if OPT.get('ptrace'): stamp_mid(S, 96)
def t2_writes(ks):
    A = Stream()
    for j in range(NR1, 9):
        for g in range(len(ks)):
            A('ds_write_b128 v5, %s offset:%d' % (q4(ln(g, j)), goff(ks[g], P2) + (j - NR1) * 2048), tok_w=['T2'])
    return A
def t2_addr(S):
    S('s_mul_i32 s63, s51, %d' % (2 * (P2 - P1)))
    S('s_add_u32 s63, s63, %d' % (T2_OFF - T1_OFF))
    S('v_add_u32 v5, s63, v5')

def emit(F, out):
    ren = {'ATOMIC': 'FLAG', 'POLLISSUE': 'FISSUE', 'POLLCHECK': 'FCHECK'} if OPT.get('flags', 1) else {}
    for x in flatten(out):
        if isinstance(x, str): x = ren.get(x, x)
        if isinstance(x, tuple) and x[0] == 'DMA5':
            _, n, txt, off = x
            lab = 'K1_D%d' % n
            F.run(G('s_cmp_eq_u32 s51, 3\ns_cbranch_scc1 %s\ns_add_u32 m0, s68, %d' % (lab, off)))
            F.add(I(txt)); F.vmq.pop()
            F.run(G(lab + ':'))
        elif isinstance(x, tuple) and x[0] == 'KEEPQ':
            if x[1] == 0: keep = [set(q) for q in F.vmq]
            else: F.vmq = keep
        elif x == 'POLLISSUE':
            F.run(G('s_cmp_lg_u32 s51, 0\ns_cbranch_scc1 K1_NOPI'))
            F.run(poll_issue(3, 6)); F.vmq.pop()
            F.run(G('K1_NOPI:'))
        elif x == 'ENTRY1' and OPT.get('mega'):
            F.run(G('''s_lshl_b32 s67, s48, 8
            s_add_u32 s67, s67, %d
            v_lshlrev_b32 v37, 2, v1
            v_mov_b32 v6, 0
            v_mov_b32 v36, 1
            s_lshl_b32 s98, s48, 8
            s_lshl_b32 s99, s49, 2
            s_add_u32 s98, s98, s99
            v_lshlrev_b32 v38, 12, v1
            v_add_u32 v38, s98, v38
            s_lshl_b32 s98, s49, 8
            s_lshl_b32 s99, s48, 2
            s_add_u32 s98, s98, s99
            s_add_u32 s98, s98, 4096
            v_writelane_b32 v38, s98, 1
            s_mov_b32 s98, %d
            s_mov_b64 exec, 15''' % (FL_OFF - ST_OFF, FL_OFF - ST_OFF)))
            F.add(I('buffer_store_dword v6, v38, s[40:43], s98 offen sc1', tok_w=['ZE']))
            F.run(G('s_mov_b64 exec, -1'))
        elif x == 'ENTRY2' and OPT.get('mega'):
            F.run(G('''v_mov_b32 v7, 1
            s_lshl_b32 s9, s48, 4
            s_cmp_lg_u32 s51, 0
            s_cbranch_scc1 K1_NOENT
            s_mov_b64 exec, 1'''))
            F.add(I('buffer_atomic_add v7, v6, s[44:47], s9 offen sc1')); F.vmq.pop()
            F.run(G('s_mov_b64 exec, -1\nK1_NOENT:'))
        elif x == 'GATE1' and OPT.get('mega'):
            F.run(G('v_and_b32 v39, 15, v1\nv_lshlrev_b32 v39, 4, v39\nbuffer_load_dword v38, v39, s[44:47], 0 offen sc1'))
        elif x == 'GATE2' and OPT.get('mega'):
            F.run(G('v_cmp_gt_u32 vcc, 16, v38\ns_cmp_lg_u32 s51, 0\ns_cbranch_scc1 K1_GOK'))
            keep = [set(q) for q in F.vmq]
            F.run(G('''s_mov_b32 s10, 0
            K1_GPOLL:
            s_cmp_eq_u32 vcc_lo, 0
            s_cbranch_scc1 K1_GOK
            s_sleep 16
            buffer_load_dword v38, v39, s[44:47], 0 offen sc1
            s_add_u32 s10, s10, 1
            s_waitcnt vmcnt(0)
            v_cmp_gt_u32 vcc, 16, v38
            s_cmp_lt_u32 s10, 0x10000
            s_cbranch_scc1 K1_GPOLL
            K1_GOK:'''))
            F.vmq = keep
        elif isinstance(x, tuple) and x[0] == 'RESETQ':
            F.vmq = keepq; F.lgq = keepl
        elif isinstance(x, tuple) and x[0] == 'SAVEQ':
            keepq = [set(q) for q in F.vmq]; keepl = [(set(a), b) for a, b in F.lgq]
        elif x == 'ENTRY1':
            F.run(G('''s_lshl_b32 s67, s48, 8
            s_add_u32 s67, s67, %d
            v_lshlrev_b32 v37, 2, v1
            v_mov_b32 v6, 0
            buffer_load_dword v36, v37, s[40:43], s67 offen sc1''' % (FL_OFF - ST_OFF)))
        elif x == 'ENTRY2':
            F.run(G('''v_add_u32 v36, 1, v36
            v_mov_b32 v7, 1
            s_lshl_b32 s9, s48, 4
            s_cmp_lg_u32 s51, 0
            s_cbranch_scc1 K1_NOENT
            s_mov_b64 exec, 1'''))
            F.add(I('buffer_atomic_add v7, v6, s[44:47], s9 offen sc1')); F.vmq.pop()
            F.run(G('s_mov_b64 exec, -1\nK1_NOENT:'))
        elif x == 'GATE1':
            F.run(G('buffer_load_dword v38, v6, s[44:47], s9 offen sc1'))
        elif x == 'GATE2':
            F.run(G('v_mov_b32 v39, v38\ns_cmp_lg_u32 s51, 0\ns_cbranch_scc1 K1_NOPOLLG'))
            keep = [set(q) for q in F.vmq]
            P = Stream(); poll(P, 'G', 38, 6)
            F.run([y for y in P if not isinstance(y, tuple)]); F.vmq = keep
        elif x == 'FLAG':
            F.run(G('''s_cmp_lg_u32 s51, 0
            s_cbranch_scc1 K1_NOAT
            s_lshl_b64 exec, 1, s49'''))
            F.add(I('buffer_store_dword v36, v37, s[40:43], s67 offen sc1')); F.vmq.pop()
            F.run(G('s_mov_b64 exec, -1\nK1_NOAT:'))
        elif x == 'FISSUE':
            F.run(G('buffer_load_dword v3, v37, s[40:43], s67 offen sc1'))
        elif x == 'FCHECK':
            F.run(G('v_mov_b32 v39, v3\ns_cmp_lg_u32 s51, 0\ns_cbranch_scc1 K1_FOK'))
            keep = [set(q) for q in F.vmq]
            F.run(G('''s_mov_b32 s10, 0
            K1_FPOLL:
            v_cmp_ne_u32 vcc, v3, v36
            s_and_b32 s11, vcc_lo, 0xffff
            s_cbranch_scc0 K1_FOK
            s_sleep %d
            buffer_load_dword v3, v37, s[40:43], s67 offen sc1
            s_add_u32 s10, s10, 1
            s_cmp_lt_u32 s10, 0x20000
            s_waitcnt vmcnt(0)
            s_cbranch_scc1 K1_FPOLL
            K1_FOK:''' % OPT.get('slp', 4)))
            F.vmq = keep
        elif x == 'POLLCHECK':
            P = Stream()
            P('s_cmp_lg_u32 s51, 0\ns_cbranch_scc1 K1_NOPOLLH')
            F.run(P); keep = [set(q) for q in F.vmq]
            P = Stream(); P('s_waitcnt vmcnt(0)'); poll(P, 'H', 3, 6)
            F.run([y for y in P if not isinstance(y, tuple)]); F.vmq = keep
        elif x == 'ZERO':
            Z = Stream()
            Z('s_or_b32 s12, s2, s51\ns_cmp_lg_u32 s12, 0\ns_cbranch_scc1 K1_NOZ')
            srd(Z, 4, 14, 15, CN_SZ, CN_OFF)
            Z('v_lshlrev_b32 v33, 6, v1\nv_mov_b32 v32, 0')
            F.run(Z)
            F.add(I('buffer_store_dword v32, v33, s[4:7], 0 offen')); F.vmq.pop()
            F.run(G('K1_NOZ:'))
        elif x == 'ATOMIC':
            F.run(G('''s_cmp_lg_u32 s51, 0
            s_cbranch_scc1 K1_NOAT
            v_mov_b32 v7, 1
            s_mov_b64 exec, 1'''))
            F.add(I('buffer_atomic_add v7, v6, s[44:47], s9 offen sc1')); F.vmq.pop()
            F.run(G('s_mov_b64 exec, -1\nK1_NOAT:'))
        else:
            F.add(x)

def table_text():
    out = ['.p2align 8', 'K1_TAB:']
    for rg in range(4):
        vals = []
        for lane in range(64):
            v = []
            zq = []
            for e in range(5):
                i = 64 * (rg + 4 * e) + lane
                row, p = divmod(i, 20)
                sh = 2 * ((row >> 3) & 1)
                v.append(row * 9216 + (p ^ sh) * 16)
                pp = p - sh
                zq.append(row * 3456 + (1152, 2304, 0)[pp // 6] + (pp % 6) * 16 if 0 <= pp < 18 else 0x7f000000)
            hi = 4 * rg + (lane >> 4); g = lane & 3
            v += zq + [XH_OFF + ((lane >> 2) & 3) * 1024 + (g * 16 + (hi ^ g)) * 16, (hi * 1152 + (lane & 7) * 16)]
            vals.append(v)
        for q in range(3):
            for l0 in range(0, 64, 4):
                out.append('.long ' + ','.join(str(x) for l in range(l0, l0 + 4) for x in vals[l][4 * q:4 * q + 4]))
    return '\n'.join(out) + '\n'

def gen_k1(stamp=False, xmap='84', rot=True, **opt):
    OPT.clear(); OPT.update(opt); V2.OPT.clear()
    global stamp_mid
    import common
    if OPT.get('ptrace'):
        seen = {}
        def sm(S, r):
            k = (id(S), r)
            if r == 88 and k in seen: r = 70
            k = (id(S), r)
            if k in seen: return
            seen[k] = 1
            if r == 70: common.stamp_mid(S, 66); return
            common.stamp_mid(S, r)
        stamp_mid = sm
    else:
        stamp_mid = common.stamp_mid
    F = Finisher()
    S = Stream()
    head(S, stamp, xmap, rot)
    F.run(S)
    txt = F.text()
    zzq = OPT.get('zzq')
    PH[1:] = [('Z1', 9216, 0), ('Q', 3456, 0)] if zzq else [('Q', 3456, 0), ('Z1', 9216, 0)]
    for role in ((compute2, helper) if zzq else (compute, helper)):
        G2 = Finisher()
        G2.vmq = [set(x) for x in F.vmq]; G2.lgq = [(set(a), b) for a, b in F.lgq]; G2.hist = list(F.hist)
        emit(G2, role(stamp))
        if role is not helper: OPT['cons_state'] = ([set(x) for x in G2.vmq], [(set(a), b) for a, b in G2.lgq])
        txt += G2.text()
    return txt, 256

def pace(items, dl=8):
    flat = []
    for x in items:
        if isinstance(x, list) and not any('exec' in y.writes or 'vcc' in y.writes for y in x): flat.extend(x)
        else: flat.append(x)
    out = []; ready = {}
    k = 0
    while k < len(flat):
        x = flat[k]
        grp = list(x) if isinstance(x, list) else [x]
        k += 1
        while not isinstance(x, list) and x.kind == 'salu' and k < len(flat) and not isinstance(flat[k], list):
            x = flat[k]; grp.append(x); k += 1
        need = 0
        for y in grp:
            for r in y.reads | y.writes:
                t, kind = ready.get(r, (0, ''))
                if kind == 'valu' and not (y.dpp or y.op.startswith('v_permlane') or y.kind in ('mfma', 'ds', 'vmem')): continue
                need = max(need, t)
        while len(out) < need: out.append(None)
        out.append(grp)
        for y in grp:
            d = {'ds': dl, 'mfma': 4, 'trans': 1, 'valu': 1}.get(y.kind, 0)
            for r in y.writes: ready[r] = (len(out) + d, y.kind)
    return out

def pf_setup(S):
    S("""s_load_dwordx2 s[20:21], s[0:1], 56
    s_load_dwordx2 s[24:25], s[0:1], 16
    s_mov_b32 s4, s10
    s_or_b32 s5, s11, 0x800000
    s_mov_b32 s6, %d
    s_mov_b32 s7, 0x00020000
    s_mov_b32 s22, %d
    s_mov_b32 s23, 0x00020000
    s_mov_b32 s26, %d
    s_mov_b32 s27, 0x00020000
    s_lshl_b32 s8, s2, 15
    s_lshl_b32 s9, s51, 11
    s_add_u32 s8, s8, s9
    s_mul_i32 s9, s2, 10368
    s_mul_i32 s10, s51, 2688
    s_add_u32 s9, s9, s10
    s_min_u32 s9, s9, 2651520
    s_mul_i32 s10, s2, 2688
    s_mul_i32 s11, s51, 768
    s_add_u32 s10, s10, s11
    s_min_u32 s10, s10, 662784
    s_mov_b32 m0, %d
    s_waitcnt lgkmcnt(0)
    s_or_b32 s21, s21, 0x800000
    s_or_b32 s25, s25, 0x800000""" % (2048 * 32, 2304 * 9, 576 * 9, SB_OFF))
def pf_touch(k):
    if k < 4:
        return G("""s_mov_b64 exec, 0xffff
        buffer_load_dword v1, s[4:7], s8 idxen lds
        s_mov_b64 exec, -1
        s_add_u32 s8, s8, 8192""")
    return G("""s_mov_b64 exec, 0x%x
    buffer_load_dword v1, s[%s], s%d idxen lds
    s_mov_b64 exec, -1""" % ((0x1fffff, '20:23', 9) if k == 4 else (0x3f, '24:27', 10)))

def compute(stamp):
    S = Stream()
    vXe = 6; vXo = 7
    xloads(S, [0])
    common_setup(S)
    srd(S, 32, 14, 15, Z1P_SZ, Z1P_OFF)
    if OPT.get('pfc'): pf_setup(S)
    S('''
    s_mul_i32 s63, s51, %d
    s_add_u32 s63, s63, %d
    v_add_u32 v6, s63, v6
    v_xor_b32 v7, 64, v6
    ''' % (2 * P1, T1_OFF))
    if stamp: stamp_mid(S, 86)
    layernorm(S, [0, 1, 2])
    for q in range(2 * NR1):
        for b in range(2):
            S('ds_read_b128 %s, v%d offset:%d' % (xf(q, b), vXo if q & 1 else vXe, b * P1 + q * 1024), tok_w=['TR'])
    for j in range(NR1, 9): norm4(S, ln(2, j), ST + 4, ST + 6)
    t2_addr(S)
    S('s_mul_i32 s63, s51, %d' % (2 * (P2 - P1)))
    S('s_add_u32 s63, s63, %d' % (T2_OFF - T1_OFF))
    S.need('TR')
    S('s_barrier')
    S('v_add_u32 v6, s63, v6')
    S('v_add_u32 v7, s63, v7')
    S('s_setprio %d' % OPT.get('prio', 2))
    if stamp: stamp_mid(S, 88)
    ntile = [9, 7, 9]
    def acc(c, b): return ACC + (c * 2 + b) * 4
    hA = ACC + 56; hX = ACC + 64; hW = ACC + 68
    vTa = 2; vTb = 3; vq2 = 6; vq4 = 8; vQb = 5; vXH = 9; vqh = 7; vTs = 4
    frs = [(n, ks, c) for n in range(27) for ks in range(2) for c in range(ntile[n // 9])]
    bias = {}
    extra_tok = {1: ['T2'], 9: ['TR2'], 10: ['HB'], 18: ['XHR'], 19: ['QB']}
    QIMM = {0: 0, 1: 32, 3: 120, 5: 160 + 48, 6: 192 + 48}
    def zaddr(mode):
        g = Stream()
        g("""v_bfe_u32 v15, v1, 4, 1
        v_lshlrev_b32 v15, 5, v15""")
        if mode == 0:
            g("""s_cmp_eq_u32 s52, 0
            s_cselect_b32 s98, 1, -1
            s_lshl_b32 s99, s52, 5
            v_mul_lo_u32 v15, v15, s98
            v_add3_u32 v%d, v%d, v15, s99
            v_sub_u32 v%d, v%d, v15
            v_add_u32 v%d, s99, v%d""" % (vTa, vT, vTb, vT, vTb, vTb))
        else:
            g("""s_lshl_b32 s99, s52, 6
            v_add3_u32 v%d, v%d, v15, s99
            v_sub_u32 v%d, v%d, v15
            v_add_u32 v%d, 256, v%d
            v_add_u32 v15, 32, v%d
            s_cmp_eq_u32 s52, 0
            s_cselect_b64 vcc, -1, 0
            v_cndmask_b32 v%d, v15, v%d, vcc
            v_add_u32 v%d, s99, v%d
            v_add_u32 v%d, %d, v%d
            v_add_u32 v%d, %d, v%d
            v_add_u32 v%d, %d, v%d""" % (vTa, vT, vTb, vT, vTs, vTa, vTb, vTs, vTs, vTb, vTb, vTa, 2 * SLOT, vTa, vTb, 2 * SLOT, vTb, vTs, 2 * SLOT, vTs))
        return g
    def qaddr():
        g = Stream()
        g("""v_bfe_u32 v15, v1, 4, 1
        v_lshlrev_b32 v15, 5, v15
        s_mul_i32 s98, s49, 72
        s_and_b32 s98, s98, 31
        v_add3_u32 v{qb}, v{T}, v15, s98
        v_and_b32 v15, 3, v1
        v_cmp_le_u32 vcc, 2, v15
        v_cndmask_b32 v14, 0, 24, vcc
        v_add_u32 v14, 152, v14
        v_add_u32 v{q4}, v{qb}, v14
        v_cmp_le_u32 vcc, 1, v15
        v_cndmask_b32 v14, 0, 24, vcc
        v_add_u32 v14, 64, v14
        v_add_u32 v{q2}, v{qb}, v14
        s_lshl_b32 s69, s51, 5
        s_cmp_eq_u32 s51, 3
        s_cselect_b32 s99, 24, 0
        s_add_u32 s99, s99, s69
        v_add_u32 v{qh}, s99, v{qb}
        s_cmp_eq_u32 s51, 2
        s_cselect_b64 vcc, -1, 0
        v_cndmask_b32 v{qh}, v{qh}, v{q2}, vcc
        v_and_b32 v14, 15, v1
        v_lshrrev_b32 v15, 4, v1
        v_xor_b32 v14, v14, v15
        v_lshl_add_u32 v14, v15, 4, v14
        v_lshlrev_b32 v14, 4, v14
        v_add_u32 v{xh}, {XH}, v14""".format(qb=vQb, T=vT, q4=vq4, q2=vq2, qh=vqh, xh=vXH, XH=XH_OFF))
        return g
    def toggle(g, ar, n):
        want = (n & 3) >> 1
        if bias.get(ar, 0) != want:
            g('v_add_u32 v%d, %d, v%d' % (ar, 2 * SLOT if want else -2 * SLOT, ar))
            bias[ar] = want
    def halo_read(q):
        g = Stream()
        n = 9 + q // 2
        g('ds_read_b128 %s, v%d offset:%d' % (q4(hX), vXH, q * 1024), tok_w=['XHR'])
        toggle(g, vqh, n)
        for hh in range(2):
            g('ds_read_b64_tr_b16 v[%d:%d], v%d offset:%d' % (hW + 2 * hh, hW + 2 * hh + 1, vqh, (n & 1) * SLOT + (q & 1) * 10240 + hh * 1280))
        return g
    def read(f):
        n, ks, c = frs[f]
        ph = n // 9
        g = Stream()
        if ks == 0 and c == 0:
            if n > 0:
                if n in extra_tok: g.need(*extra_tok[n])
                if n > 10: g.need('ZCdone')
                g('s_barrier')
            if n == 0: g.extend(zaddr(0))
            if n == 18:
                for r in (vTa, vTb, vTs): bias[r] = 1
        if ph == 0: ar, coff = (vTb if c & 1 else vTa), 32 * c
        elif ph == 1: ar, coff = (vq2, 0) if c == 2 else ((vq4, 0) if c == 4 else (vQb, QIMM[c]))
        else: ar, coff = ((vTb if c & 1 else vTa), 32 * c) if c < 8 else (vTs, 0)
        toggle(g, ar, n)
        r = WFR + (f % NRING) * 4
        for hh in range(2):
            if OPT.get('halfread') and hh == 1:
                g('s_nop 0'); continue
            g('ds_read_b64_tr_b16 v[%d:%d], v%d offset:%d' % (r + 2 * hh, r + 2 * hh + 1, ar, (n & 1) * SLOT + ks * 10240 + hh * 1280 + coff))
        return g
    D = NRING - 1
    for f in range(D): S.extend(read(f))
    def tmpr(ph, c, b):
        pairs = [12, 14, 2] if ph == 0 else [12, 14, 6, 8]
        return pairs[(2 * c + b) % len(pairs)]
    def cvt(ph, c, b):
        a = acc(c, b); t = tmpr(ph, c, b)
        return G('v_cvt_pk_bf16_f32 v%d, v%d, v%d\nv_cvt_pk_bf16_f32 v%d, v%d, v%d' % (t, a, a + 1, t + 1, a + 2, a + 3))
    def cvti(a):
        return G('v_cvt_pk_bf16_f32 v%d, v%d, v%d\nv_cvt_pk_bf16_f32 v%d, v%d, v%d' % (a, a, a + 1, a + 1, a + 2, a + 3))
    def dw(ph, c, b, src=None):
        t = tmpr(ph, c, b) if src is None else src
        if OPT.get('nodw'): return []
        if ph == 0:
            return G('ds_write_b64 v10, v[%d:%d] offset:%d' % (t, t + 1, 16 * b * ZP + 32 * c), tok_w=['HB'])
        return G('ds_write_b64 v11, v[%d:%d] offset:%d' % (t, t + 1, (16 + 16 * b) * QP + 32 * c), tok_w=['QB'])
    x2 = Stream()
    for q in range(2 * NR1, 18):
        for b in range(2):
            x2('ds_read_b128 %s, v%d offset:%d' % (xf(q, b), vXo if q & 1 else vXe, b * P2 + (q - 2 * NR1) * 1024), tok_w=['TR2'])
    t2 = t2_writes([0, 1, 2])
    addr = G('''
    v_and_b32 v10, 15, v1
    s_lshl_b32 s98, s51, 5
    v_add_u32 v10, s98, v10
    v_mul_u32_u24 v11, %d, v10
    v_mul_u32_u24 v10, %d, v10
    v_lshrrev_b32 v12, 4, v1
    v_lshlrev_b32 v12, 3, v12
    s_mov_b32 s98, %d
    v_add3_u32 v10, v10, v12, s98
    s_mov_b32 s98, %d
    v_add3_u32 v11, v11, v12, s98
    ''' % (QP, ZP, ZB_OFF, QB_OFF))
    hw = G('s_mul_i32 s98, s51, %d\nv_subrev_u32 v5, s98, v11\nv_add_u32 v38, s69, v5' % (32 * QP))
    NC = OPT.get('nc', 0)
    share = []
    for k in range(NC):
        c = 9 - NC + k
        g = Stream()
        off = 16 * ZP + 32 * c
        g('ds_read_b64 v[12:13], v10 offset:%d' % off)
        for _ in range(OPT.get('rgap', 6)): g.append(None)
        g("""v_and_b32 v15, 0xffff0000, v13
        v_lshlrev_b32 v14, 16, v13
        v_and_b32 v13, 0xffff0000, v12
        v_lshlrev_b32 v12, 16, v12""")
        gelu4(g, 12, 36, c2=0)
        g('v_cvt_pk_bf16_f32 v36, v12, v13')
        g('v_cvt_pk_bf16_f32 v37, v14, v15')
        g('ds_write_b64 v10, v[36:37] offset:%d' % off, tok_w=['ZCdone'] if k == NC - 1 else [])
        share.append(list(g))
    light = [[3, list(addr) + list(qaddr()) + G('s_mov_b32 s78, 0x%x\nv_mov_b32 v0, 0x%x' % (fbits(C1), fbits(C2)))], [10, list(zaddr(1))]]
    cur = []
    zc_step = [None]
    att = []
    if OPT.get('attgap'):
        V2.S1 = XF; V2.QB_OFF = QB_OFF; V2.VOFF = 72; V2.QOFF = 144
        att = pace(V2.attention(0))
        print('att gaps', len(att))
    for f, (n, ks, c) in enumerate(frs):
        ph, j = divmod(n, 9)
        q = 2 * j + ks
        r = WFR + (f % NRING) * 4
        if stamp and q == 0 and c == 0 and ph > 0 and not OPT.get('trace'): stamp_mid(S, 88 + 2 * ph)
        hand = (q == 0 and ph > 0)
        if hand and c == 0:
            if ph == 2: S.extend(hw)
            S.extend(cvt(ph - 1, 0, 0))
        rd = read(f + D) if f + D < len(frs) else []
        if f % 2 == 0 and f + 1 < len(frs) and not OPT.get('allwait'):
            r1 = WFR + ((f + 1) % NRING) * 4
            S.need(*['v%d' % k for k in range(r1, r1 + 4)])
        for b in range(2):
            a = acc(c, b)
            S('v_mfma_f32_16x16x32_bf16 %s, %s, %s, %s' % (q4(a), q4(r), xf(q, b), '0' if q == 0 else q4(a)))
            S.extend(rd[:-1] if b == 0 else rd[-1:])
            if hand and c < 7:
                S.extend(dw(ph - 1, c, b))
                if ph == 1:
                    if c in (1, 2): S.extend(dw(0, 6 + c, b, acc(6 + c, b)))
                    if c == 2 and b == 1: S.extend(halo_read(0))
                else:
                    if c == 1: S.extend(G('ds_write_b64 v%d, v[%d:%d] offset:%d' % (5 if b else 38, hA + 4 * b, hA + 4 * b + 1, 128 * b), tok_w=['QB']))
                if 2 * c + b + 1 < 14: S.extend(cvt(ph - 1, c + b, 1 - b))
                if c == 0 or (c == 1 and ph == 1): S.extend(cvti(acc(7 + c, b)))
            if OPT.get('pfc') and n in OPT['pfc'] and ks == 1 and c == 0 and b == 0: S.extend(pf_touch(OPT['pfc'].index(n)))
            if n == 0 and t2 and b == 1: S.append(t2.pop(0))
            if n in (1, 2) and x2 and b == 1 and (n == 2 or ks == 1 or c > 0): S.append(x2.pop(0))
            gaps_left = sum(2 for ff in range(f, len(frs)) if frs[ff][0] < 18) - 12
            if not cur and share and not (light and n >= light[0][0]) and n >= 10 and (n >= 19 or gaps_left > len(share[0])) and not hand:
                cur.extend(share.pop(0))
            if cur:
                x = cur.pop(0)
                if x is not None: S.append(x)
                if not cur and not share: zc_step[0] = n
            elif att and n >= OPT['attgap']:
                x = att.pop(0)
                if x is not None: S.extend(x)
            elif light and n >= light[0][0]:
                x = light[0][1].pop(0); S.append(x)
                while x.kind == 'salu' and light[0][1]:
                    x = light[0][1].pop(0); S.append(x)
                if not light[0][1]: light.pop(0)
        if ph == 1 and c == 4:
            S('v_mfma_f32_16x16x32_bf16 %s, %s, %s, %s' % (q4(hA + 4), q4(r), q4(hX), '0' if q == 0 else q4(hA + 4)))
        if ph == 1 and c == 5:
            S('v_mfma_f32_16x16x32_bf16 %s, %s, %s, %s' % (q4(hA), q4(hW), q4(hX), '0' if q == 0 else q4(hA)))
            if q < 17 and (q & 1) == 0: S.extend(halo_read(q + 1))
        if ph == 1 and c == 6 and q < 17 and (q & 1) == 1: S.extend(halo_read(q + 1))
    assert not t2 and not x2 and not share and not cur
    OPT['zc_step'] = zc_step[0]
    for x in att:
        if x is not None: S.extend(x)
    n2a, n2b = norm_z2(range(NZC), (112, 144, 160, 2) if OPT.get('mega') else (176, 208, 244, 248))
    if OPT.get('mega'): OPT['mega'].cons_early(S)
    if not OPT.get('early'):
        S('s_barrier')
        S.extend(n2a)
    if stamp: stamp_mid(S, 94)
    S('''
    s_lshl_b32 s63, s48, 3
    s_lshl_b32 s98, s51, 1
    s_add_u32 s63, s63, s98
    s_mul_i32 s63, s63, 72
    s_mul_i32 s98, s49, 9
    s_add_u32 s98, s98, s52
    s_lshr_b32 s98, s98, 1
    s_add_u32 s63, s63, s98
    s_lshl_b32 s69, s63, 10
    s_add_u32 s70, s69, 73728
    s_cmp_eq_u32 s52, 0
    s_cselect_b32 s63, 4608, 0
    s_sub_u32 s63, s63, 512
    s_add_u32 s71, s69, s63
    s_add_u32 s72, s70, s63
    v_lshlrev_b32 v10, 4, v1
    v_lshrrev_b32 v12, 5, v1
    v_lshlrev_b32 v12, 8, v12
    v_and_b32 v13, 15, v1
    v_lshl_add_u32 v12, v13, 4, v12
    v_bfe_u32 v13, v1, 4, 1
    v_lshl_add_u32 v12, v13, 3, v12
    ''')
    G1 = OPT.get('gelu1', False)
    if G1:
        S('s_mov_b32 s78, 0x%x' % fbits(C1))
        S('v_mov_b32 v%d, 0x%x' % (vC2, fbits(C2)))
    for p in range(4):
        for b in range(2):
            a0 = acc(2 * p, b); a1 = acc(2 * p + 1, b)
            if G1: gelu4(S, a0, XF); gelu4(S, a1, XF + 4)
            o = XF + 8 + 4 * (2 * p + b) if not OPT.get('mega') else 168 + (b * 4 + p) * 4
            S('v_cvt_pk_bf16_f32 v%d, v%d, v%d' % (o, a0, a0 + 1))
            S('v_cvt_pk_bf16_f32 v%d, v%d, v%d' % (o + 1, a0 + 2, a0 + 3))
            S('v_cvt_pk_bf16_f32 v%d, v%d, v%d' % (o + 2, a1, a1 + 1))
            S('v_cvt_pk_bf16_f32 v%d, v%d, v%d' % (o + 3, a1 + 2, a1 + 3))
            for d in range(2): S('v_permlane32_swap_b32 v%d, v%d' % (o + d, o + 2 + d))
            for d in range(2): S('v_permlane16_swap_b32 v%d, v%d' % (o + d, o + 2 + d))
            if not OPT.get('mega'): S('buffer_store_dwordx4 %s, v10, s[32:35], s%d offen offset:%d' % (q4(o), 69 + b, p * 1024))
    for b in range(2):
        a0 = acc(8, b)
        if G1: gelu4(S, a0, XF)
        o = XF + 40 + 2 * b if not OPT.get('mega') else 200 + 2 * b
        S('v_cvt_pk_bf16_f32 v%d, v%d, v%d' % (o, a0, a0 + 1))
        S('v_cvt_pk_bf16_f32 v%d, v%d, v%d' % (o + 1, a0 + 2, a0 + 3))
        if not OPT.get('mega'): S('buffer_store_dwordx2 v[%d:%d], v12, s[32:35], s%d offen' % (o, o + 1, 71 + b))
    V2.S1 = 40; V2.QB_OFF = QB_OFF; V2.VOFF = 72; V2.QOFF = 144
    if not OPT.get('attgap'): S.extend(V2.attention(0))
    if OPT.get('late'): S('s_barrier')
    if not OPT.get('early'): S.extend(n2b)
    if stamp:
        stamp_mid(S, 96)
        if not OPT.get('mega'): S('s_waitcnt vmcnt(0)')
        stamp_mid(S, 70)
        stamp_store(S, 84, [86, 88, 90, 92, 94, 96, 70 if not OPT.get('ptrace') else 66], 14, 0, 72, 12, wave_s=50)
    if OPT.get('mega'): S('s_branch K2_CONS')
    else: S('s_endpgm')
    return S

def compute2(stamp):
    S = Stream()
    vXe = 6; vXo = 7
    xloads(S, [0])
    common_setup(S)
    srd(S, 32, 14, 15, Z1P_SZ, Z1P_OFF)
    S('''
    s_mul_i32 s63, s51, %d
    s_add_u32 s63, s63, %d
    v_add_u32 v6, s63, v6
    v_xor_b32 v7, 64, v6
    ''' % (2 * P1, T1_OFF))
    if stamp: stamp_mid(S, 86)
    layernorm(S, [0, 1, 2])
    for q in range(2 * NR1):
        for b in range(2):
            S('ds_read_b128 %s, v%d offset:%d' % (xf(q, b), vXo if q & 1 else vXe, b * P1 + q * 1024), tok_w=['TR'])
    for j in range(NR1, 9): norm4(S, ln(2, j), ST + 4, ST + 6)
    t2_addr(S)
    S('s_mul_i32 s63, s51, %d' % (2 * (P2 - P1)))
    S('s_add_u32 s63, s63, %d' % (T2_OFF - T1_OFF))
    S.need('TR')
    S('s_barrier')
    S('v_add_u32 v6, s63, v6')
    S('v_add_u32 v7, s63, v7')
    S('s_setprio %d' % OPT.get('prio', 2))
    if stamp: stamp_mid(S, 88)
    ntile = [9, 9, 7]
    def acc(c, b): return ACC + (c * 2 + b) * 4
    hA = ACC + 56; hX = ACC + 64; hW = ACC + 68
    vTa = 2; vTb = 3; vq2 = 2; vq4 = 3; vQb = 4; vXH = 9; vqh = 8; vZa = 5; vZb = 6; vTs = 7
    frs = [(n, ks, c) for n in range(27) for ks in range(2) for c in range(ntile[n // 9])]
    def order(n):
        nt = ntile[n // 9]
        if n == 9: return [(ks, c) for c in range(nt) for ks in range(2)]
        if n == 18: return [(ks, c) for c in range(4) for ks in range(2)] + [(ks, c) for ks in range(2) for c in range(4, 7)]
        return [(ks, c) for ks in range(2) for c in range(nt)]
    frs = [(n, ks, c) for n in range(27) for ks, c in order(n)]
    bias = {}
    extra_tok = {1: ['T2'], 9: ['TR2'], 11: ['HB']}
    QIMM = {0: 0, 1: 32, 3: 120, 5: 160 + 48, 6: 192 + 48}
    def zaddr(mode):
        g = Stream()
        g("""v_bfe_u32 v15, v1, 4, 1
        v_lshlrev_b32 v15, 5, v15""")
        if mode == 0:
            g("""s_cmp_eq_u32 s52, 0
            s_cselect_b32 s98, 1, -1
            s_lshl_b32 s99, s52, 5
            v_mul_lo_u32 v15, v15, s98
            v_add3_u32 v%d, v%d, v15, s99
            v_sub_u32 v%d, v%d, v15
            v_add_u32 v%d, s99, v%d""" % (vTa, vT, vTb, vT, vTb, vTb))
        else:
            g("""s_lshl_b32 s99, s52, 6
            v_add3_u32 v%d, v%d, v15, s99
            v_sub_u32 v%d, v%d, v15
            v_add_u32 v%d, 256, v%d
            v_add_u32 v15, 32, v%d
            s_cmp_eq_u32 s52, 0
            s_cselect_b64 vcc, -1, 0
            v_cndmask_b32 v%d, v15, v%d, vcc
            v_add_u32 v%d, s99, v%d""" % (vZa, vT, vZb, vT, vTs, vZa, vZb, vTs, vTs, vZb, vZb))
        return g
    def qaddr():
        g = Stream()
        g("""v_bfe_u32 v15, v1, 4, 1
        v_lshlrev_b32 v15, 5, v15
        s_mul_i32 s98, s49, 72
        s_and_b32 s98, s98, 31
        s_add_u32 s98, s98, {bias}
        v_add3_u32 v{qb}, v{T}, v15, s98
        v_and_b32 v15, 3, v1
        v_cmp_le_u32 vcc, 2, v15
        v_cndmask_b32 v14, 0, 24, vcc
        v_add_u32 v14, 152, v14
        v_add_u32 v{q4}, v{qb}, v14
        v_cmp_le_u32 vcc, 1, v15
        v_cndmask_b32 v14, 0, 24, vcc
        v_add_u32 v14, 64, v14
        v_add_u32 v{q2}, v{qb}, v14
        s_lshl_b32 s73, s51, 5
        s_cmp_eq_u32 s51, 3
        s_cselect_b32 s99, 24, 0
        s_add_u32 s99, s99, s73
        v_add_u32 v{qh}, s99, v{qb}
        s_cmp_eq_u32 s51, 2
        s_cselect_b64 vcc, -1, 0
        v_cndmask_b32 v{qh}, v{qh}, v{q2}, vcc
        v_and_b32 v14, 15, v1
        v_lshrrev_b32 v15, 4, v1
        v_xor_b32 v14, v14, v15
        v_lshl_add_u32 v14, v15, 4, v14
        v_lshlrev_b32 v14, 4, v14
        v_add_u32 v{xh}, {XH}, v14""".format(qb=vQb, T=vT, q4=vq4, q2=vq2, qh=vqh, xh=vXH, XH=XH_OFF, bias=2 * SLOT))
        return g
    def toggle(g, ar, n):
        want = (n & 3) >> 1
        if bias.get(ar, 0) != want:
            g('v_add_u32 v%d, %d, v%d' % (ar, 2 * SLOT if want else -2 * SLOT, ar))
            bias[ar] = want
    def halo_read(q):
        g = Stream()
        n = 18 + q // 2
        g('ds_read_b128 %s, v%d offset:%d' % (q4(hX), vXH, q * 1024), tok_w=['XHR'])
        toggle(g, vqh, n)
        for hh in range(2):
            g('ds_read_b64_tr_b16 v[%d:%d], v%d offset:%d' % (hW + 2 * hh, hW + 2 * hh + 1, vqh, (n & 1) * SLOT + (q & 1) * 10240 + hh * 1280))
        return g
    def read(f):
        n, ks, c = frs[f]
        ph = n // 9
        g = Stream()
        if ks == 0 and c == 0:
            if n > 0:
                if n in extra_tok: g.need(*extra_tok[n])
                if n > 10: g.need('ZCdone')
                g('s_barrier')
            if n == 0: g.extend(zaddr(0))
            if n == 18:
                for r in (vQb, vq2, vq4, vqh): bias[r] = 1
        if ph == 0: ar, coff = (vTb if c & 1 else vTa), 32 * c
        elif ph == 2: ar, coff = (vq2, 0) if c == 2 else ((vq4, 0) if c == 4 else (vQb, QIMM[c]))
        else: ar, coff = ((vZb if c & 1 else vZa), 32 * c) if c < 8 else (vTs, 0)
        toggle(g, ar, n)
        r = WFR + (f % NRING) * 4
        for hh in range(2):
            if OPT.get('halfread') and hh == 1:
                g('s_nop 0'); continue
            g('ds_read_b64_tr_b16 v[%d:%d], v%d offset:%d' % (r + 2 * hh, r + 2 * hh + 1, ar, (n & 1) * SLOT + ks * 10240 + hh * 1280 + coff))
        return g
    D = NRING - 1
    for f in range(D): S.extend(read(f))
    def tmpr(ph, c, b):
        pairs = [12, 14, 2, 36, 38]
        return pairs[(2 * c + b) % len(pairs)]
    def cvt(ph, c, b):
        a = acc(c, b); t = tmpr(ph, c, b)
        return G('v_cvt_pk_bf16_f32 v%d, v%d, v%d\nv_cvt_pk_bf16_f32 v%d, v%d, v%d' % (t, a, a + 1, t + 1, a + 2, a + 3))
    def cvti(a):
        return G('v_cvt_pk_bf16_f32 v%d, v%d, v%d\nv_cvt_pk_bf16_f32 v%d, v%d, v%d' % (a, a, a + 1, a + 1, a + 2, a + 3))
    def dw(ph, c, b, src=None):
        t = tmpr(ph, c, b) if src is None else src
        if OPT.get('nodw'): return []
        if ph == 0:
            return G('ds_write_b64 v10, v[%d:%d] offset:%d' % (t, t + 1, 16 * b * ZP + 32 * c), tok_w=['HB'])
        return G('ds_write_b64 v11, v[%d:%d] offset:%d' % (t, t + 1, (16 + 16 * b) * QP + 32 * c), tok_w=['QB'])
    x2 = Stream()
    for q in range(2 * NR1, 18):
        for b in range(2):
            x2('ds_read_b128 %s, v%d offset:%d' % (xf(q, b), vXo if q & 1 else vXe, b * P2 + (q - 2 * NR1) * 1024), tok_w=['TR2'])
    t2 = t2_writes([0, 1, 2])
    addr = G('''
    v_and_b32 v10, 15, v1
    s_lshl_b32 s98, s51, 5
    v_add_u32 v10, s98, v10
    v_mul_u32_u24 v11, %d, v10
    v_mul_u32_u24 v10, %d, v10
    v_lshrrev_b32 v12, 4, v1
    v_lshlrev_b32 v12, 3, v12
    s_mov_b32 s98, %d
    v_add3_u32 v10, v10, v12, s98
    s_mov_b32 s98, %d
    v_add3_u32 v11, v11, v12, s98
    ''' % (QP, ZP, ZB_OFF, QB_OFF))
    hw = G('s_mul_i32 s98, s51, %d\nv_subrev_u32 v5, s98, v11\nv_add_u32 v38, s69, v5' % (32 * QP))
    NC = OPT.get('nc', 0)
    share = []
    for k in range(NC):
        c = 9 - NC + k
        g = Stream()
        off = 16 * ZP + 32 * c
        g('ds_read_b64 v[12:13], v10 offset:%d' % off)
        for _ in range(OPT.get('rgap', 6)): g.append(None)
        g("""v_and_b32 v15, 0xffff0000, v13
        v_lshlrev_b32 v14, 16, v13
        v_and_b32 v13, 0xffff0000, v12
        v_lshlrev_b32 v12, 16, v12""")
        gelu4(g, 12, 36, c2=0)
        g('v_cvt_pk_bf16_f32 v36, v12, v13')
        g('v_cvt_pk_bf16_f32 v37, v14, v15')
        g('ds_write_b64 v10, v[36:37] offset:%d' % off, tok_w=['ZCdone'] if k == NC - 1 else [])
        share.append(list(g))
    zoff = G("""
    s_lshl_b32 s63, s48, 3
    s_lshl_b32 s98, s51, 1
    s_add_u32 s63, s63, s98
    s_mul_i32 s63, s63, 72
    s_mul_i32 s98, s49, 9
    s_add_u32 s98, s98, s52
    s_lshr_b32 s98, s98, 1
    s_add_u32 s63, s63, s98
    s_lshl_b32 s69, s63, 10
    s_add_u32 s70, s69, 73728
    s_cmp_eq_u32 s52, 0
    s_cselect_b32 s63, 4608, 0
    s_sub_u32 s63, s63, 512
    s_add_u32 s71, s69, s63
    s_add_u32 s72, s70, s63
    v_lshlrev_b32 v10, 4, v1
    v_lshrrev_b32 v0, 5, v1
    v_lshlrev_b32 v0, 8, v0
    v_and_b32 v13, 15, v1
    v_lshl_add_u32 v0, v13, 4, v0
    v_bfe_u32 v13, v1, 4, 1
    v_lshl_add_u32 v0, v13, 3, v0
    """)
    light = [[3, list(addr) + list(zaddr(1)) + G('s_mov_b32 s78, 0x%x\nv_mov_b32 v0, 0x%x' % (fbits(C1), fbits(C2)))], [10, list(qaddr())], [17, zoff]]
    WT = ' sc1' if OPT.get('wt', 1) else ''
    def cv(o, a): return G('v_cvt_pk_bf16_f32 v%d, v%d, v%d\nv_cvt_pk_bf16_f32 v%d, v%d, v%d' % (o, a, a + 1, o + 1, a + 2, a + 3))
    def pairfin(p, dst):
        g = Stream()
        for sw in ('v_permlane32_swap_b32', 'v_permlane16_swap_b32'):
            for b in range(2):
                for d in range(2): g('%s v%d, v%d' % (sw, dst[b] + d, dst[b] + 2 + d))
        for b in range(2): g('buffer_store_dwordx4 %s, v10, s[32:35], s%d offen offset:%d%s' % (q4(dst[b]), 69 + b, p * 1024, WT))
        return list(g)
    def pair(p):
        dst = [acc(2 * p, 0), acc(2 * p, 1)]
        return cv(dst[0], dst[0]) + cv(dst[1], dst[1]) + cv(dst[0] + 2, acc(2 * p + 1, 0)) + cv(dst[1] + 2, acc(2 * p + 1, 1)) + pairfin(p, dst)
    single = []
    for b in range(2): single += cv(acc(8, b), acc(8, b))
    for b in range(2): single += G('buffer_store_dwordx2 v[%d:%d], v0, s[32:35], s%d offen%s' % (acc(8, b), acc(8, b) + 1, 71 + b, WT))
    zw = [(2, x) for x in cv(14, acc(1, 0)) + cv(38, acc(1, 1))] + [(4, x) for x in pair(1)] + [(6, x) for x in single] + [(7, x) for x in pairfin(0, [12, 36])] + [(8, x) for x in pair(2) + pair(3)]
    cur = []
    zc_step = [None]
    fi = 0
    for f, (n, ks, c) in enumerate(frs):
        ph, j = divmod(n, 9)
        q = 2 * j + ks
        r = WFR + (f % NRING) * 4
        first = (j == 0 and ks == 0 and c == 0)
        if first: fi = 0
        if stamp and first and ph > 0 and not OPT.get('trace'): stamp_mid(S, 88 + 2 * ph)
        if first and ph == 1: S.extend(cvt(0, 0, 0))
        if first and ph == 2:
            assert not light and not cur and not share
            S.extend(cv(12, acc(0, 0)) + cv(36, acc(0, 1)))
        if n == 18: assert not zw or zw[0][0] > fi, (fi, zw[0][0])
        rd = read(f + D) if f + D < len(frs) else []
        if f % 2 == 0 and f + 1 < len(frs) and not OPT.get('allwait'):
            r1 = WFR + ((f + 1) % NRING) * 4
            S.need(*['v%d' % k for k in range(r1, r1 + 4)])
        for b in range(2):
            a = acc(c, b)
            S('v_mfma_f32_16x16x32_bf16 %s, %s, %s, %s' % (q4(a), q4(r), xf(q, b), '0' if q == 0 else q4(a)))
            S.extend(rd[:-1] if b == 0 else rd[-1:])
            if n == 9:
                if ks == 0 and b == 0: S.extend(cvt(0, c, 1))
                if ks == 0 and b == 1: S.extend(dw(0, c, 0))
                if ks == 1 and b == 0: S.extend(dw(0, c, 1))
                if ks == 1 and b == 1 and c < 8: S.extend(cvt(0, c + 1, 0))
            if n == 18:
                for _ in range(OPT.get('zrate', 5)):
                    if zw: S.append(zw.pop(0)[1])
                if fi == 6 and b == 1: S.extend(halo_read(0))
            if n == 0 and t2 and b == 1: S.append(t2.pop(0))
            if n in (1, 2) and x2 and b == 1 and (n == 2 or ks == 1 or c > 0): S.append(x2.pop(0))
            gaps_left = sum(2 for ff in range(f, len(frs)) if frs[ff][0] < 17)
            if not cur and share and not (light and n >= light[0][0]) and n >= 10 and gaps_left > len(share[0]):
                cur.extend(share.pop(0))
            if cur:
                x = cur.pop(0)
                if x is not None: S.append(x)
                if not cur and not share: zc_step[0] = n
            elif light and n >= light[0][0] and n != 9:
                x = light[0][1].pop(0); S.append(x)
                while x.kind == 'salu' and light[0][1]:
                    x = light[0][1].pop(0); S.append(x)
                if not light[0][1]: light.pop(0)
        if ph == 2 and c == 4:
            S('v_mfma_f32_16x16x32_bf16 %s, %s, %s, %s' % (q4(hA + 4), q4(r), q4(hX), '0' if q == 0 else q4(hA + 4)))
        if ph == 2 and c == 5:
            S('v_mfma_f32_16x16x32_bf16 %s, %s, %s, %s' % (q4(hA), q4(hW), q4(hX), '0' if q == 0 else q4(hA)))
            if q < 17 and (q & 1) == 0: S.extend(halo_read(q + 1))
        if ph == 2 and c == 6 and q < 17 and (q & 1) == 1: S.extend(halo_read(q + 1))
        fi += 1
    assert not t2 and not x2 and not share and not cur and not zw
    OPT['zc_step'] = zc_step[0]
    if stamp: stamp_mid(S, 94)
    S('s_mul_i32 s98, s51, %d' % (32 * QP))
    S('v_subrev_u32 v5, s98, v11')
    S('v_add_u32 v6, s73, v5')
    for c in range(8):
        for b in range(2): S.extend(cvti(acc(c, b)))
    S('s_barrier')
    for c in range(7):
        for b in range(2): S.extend(dw(1, c, b, acc(c, b)))
    for b in range(2): S('ds_write_b64 v%d, v[%d:%d] offset:%d' % (5 if b else 6, hA + 4 * b, hA + 4 * b + 1, 128 * b), tok_w=['QB'])
    nz = OPT.get('nzc', 0)
    if nz:
        n2a, n2b = norm_z2(range(nz))
        S.extend(n2a)
    S.need('QB')
    S('s_barrier')
    V2.S1 = 40; V2.QB_OFF = QB_OFF; V2.VOFF = 72; V2.QOFF = 144
    S.extend(V2.attention(0))
    if OPT.get('attc'): S.extend(V2.attention(1))
    if nz: S.extend(n2b)
    if stamp:
        stamp_mid(S, 96)
        S('s_waitcnt vmcnt(0)')
        stamp_mid(S, 70)
        stamp_store(S, 84, [86, 88, 90, 92, 94, 96, 70 if not OPT.get('ptrace') else 66], 14, 0, 72, 12, wave_s=50)
    S('s_endpgm')
    return S

HL = 232
def helper(stamp):
    S = Stream()
    S('K1_HELP:')
    if OPT.get('cpf'): S.extend(code_prefetch('k1_kernel', 'k2_kernel', 1, 40, 34, 64, 12, neg=True))
    S("""s_getpc_b64 s[64:65]
    s_add_u32 s64, s64, K1_TAB@rel32@lo+4
    s_addc_u32 s65, s65, K1_TAB@rel32@hi+12
    s_mul_i32 s66, s51, 3072
    v_lshlrev_b32 v32, 4, v1
    v_add_u32 v32, s66, v32
    v_mov_b32 v33, s65
    v_add_co_u32 v32, vcc, s64, v32
    v_addc_co_u32 v33, vcc, 0, v33, vcc
    global_load_dwordx4 v[16:19], v[32:33], off
    global_load_dwordx4 v[20:23], v[32:33], off offset:1024
    global_load_dwordx4 v[24:27], v[32:33], off offset:2048""")
    xloads(S, [0])
    common_setup(S)
    srd(S, 20, 6, 7, 576 * 3456)
    srd(S, 24, 8, 9, 576 * 9216)
    S("""
    s_lshl_b32 s68, s51, 10
    s_mul_i32 s64, s49, 288
    s_and_b32 s64, s64, -64
    s_mul_i32 s65, s49, 72
    s_and_b32 s65, s65, -32
    v_mov_b32 v106, 0x7f000000
    """)
    srd(S, 4, 10, 11, 2048 * 4096)
    vHW = 26; vH0 = 28
    QH = Stream()
    QH("""
    s_mov_b32 s78, 0x%x
    v_mov_b32 v%d, 0x%x
    s_lshl_b32 s8, s2, 15
    s_lshl_b32 s9, s51, 11
    s_add_u32 s8, s8, s9
    v_lshlrev_b32 v8, 7, v1
    s_mul_i32 s98, s48, %d
    s_sub_u32 s98, s98, %d
    v_add_u32 v100, s98, v27
    v_bfe_u32 v101, v1, 3, 1
    v_add_u32 v101, s%d, v101
    """ % (fbits(C1), vC2, fbits(C2), 128 * 1152, 16 * 1152, sBLK))
    for t in range(5):
        QH('v_add_u32 v102, %d, v101' % (2 * t))
        QH('v_subrev_u32 v103, 9, v102')
        QH('v_min_u32 v102, v102, v103')
        QH('v_lshl_add_u32 v%d, v102, 7, v100' % (vH0 + t))
    QH('''
    v_and_b32 v103, 15, v1
    v_cmp_gt_u32 vcc, 8, v103
    v_cndmask_b32 v%d, v106, v%d, vcc
    ''' % (vH0 + 4, vH0 + 4))
    for t in range(5):
        QH('buffer_load_dwordx4 %s, v%d, s[16:19], 0 offen' % (q4(HL + 4 * t), vH0 + t))
    if stamp: stamp_mid(S, 86)
    layernorm(S, [3], mid=wdma(0), mid2=wdma(1))
    for j in range(NR1, 9): norm4(S, ln(0, j), ST, ST + 6)
    t2_addr(S)
    S.need('W0')
    S('s_barrier')
    if stamp: stamp_mid(S, 88)
    q1 = list(QH) + list(ln_halo(vHW))
    q2 = list(epi_z2())
    V2.S1 = 136; V2.QB_OFF = QB_OFF; V2.VOFF = 72; V2.QOFF = 144
    q3 = list(V2.attention(1))
    B = OPT.get('budget', 64)
    if OPT.get('noside'):
        q1 = []; q2 = q2[-1:]; q3 = []
    pub_step = None
    n2a, n2b = norm_z2(range(OPT.get('nzc', 0) if (OPT.get('zzq') or OPT.get('early')) else NZC, 9))
    q4_ = list(n2a) + list(n2b)
    for n in range(27):
        if n > 0:
            toks = ['W%d' % n]
            if n == 1: toks.append('T2')
            if n == 4: toks.append('ZE')
            if n == (18 if OPT.get('zzq') else 9): toks.append('XH')
            if (OPT.get('zzq') or OPT.get('early')) and n == OPT.get('pollstep', 25): S.append('POLLCHECK')
            if pub_step is not None and n == pub_step + 2: toks += ['PUB', 'ZB']
            if OPT.get('trace'):
                S('s_memtime s[96:97]\ns_waitcnt lgkmcnt(0)\ns_sub_u32 s96, s96, s84\nv_writelane_b32 v254, s96, %d' % n)
            S.need(*toks)
            if OPT.get('trace'):
                S('s_memtime s[96:97]\ns_waitcnt lgkmcnt(0)\ns_sub_u32 s96, s96, s84\nv_writelane_b32 v254, s96, %d' % (n + 32))
            S('s_barrier')
            if OPT.get('trace'):
                S('s_memtime s[96:97]\ns_waitcnt lgkmcnt(0)\ns_sub_u32 s96, s96, s84\nv_writelane_b32 v255, s96, %d' % n)
            if pub_step is not None and n == pub_step + 2: S.append('ATOMIC')
        if stamp and n in (9, 18): stamp_mid(S, 88 + 2 * (n // 9))
        mem = []
        if n + 2 < 27 and not OPT.get('nodma'):
            w = list(wdma(n + 2))
            mem = [w[:-8]] + [w[-8 + 2 * k:len(w) - 6 + 2 * k] for k in range(4)]
            assert sum(len(x) for x in mem) == len(w)
            if OPT.get('dg') == 3: mem = [mem[0] + mem[1], mem[2] + mem[3], mem[4]]
            if OPT.get('dg') == 2: mem = [mem[0] + mem[1] + mem[2], mem[3] + mem[4]]
        if n in (2, 4, 6, 9) and not OPT.get('nopf') and not OPT.get('pfc'):
            mem.append(G('''s_mov_b32 m0, %d
            s_mov_b64 exec, 0xffff
            buffer_load_dword v8, s[4:7], s8 offen lds
            s_mov_b64 exec, -1
            s_add_u32 s8, s8, 8192''' % SB_OFF))
        if OPT.get('pf3') and n in (12, 15) and not OPT.get('pfc'):
            mem.append(G('''s_load_dwordx2 s[4:5], s[0:1], %d
            s_mov_b32 s6, %d
            s_mul_i32 s8, s2, %d
            s_mul_i32 s12, s51, %d
            s_add_u32 s8, s8, s12
            s_mov_b32 m0, %d
            s_waitcnt lgkmcnt(0)
            s_mov_b64 exec, 0x%x
            buffer_load_dword v8, s[4:7], s8 offen lds
            s_mov_b64 exec, -1''' % ((56, 2304 * 1152, 10368, 2688, SB_OFF, 0x1fffff) if n == 12 else (16, 576 * 1152, 2688, 768, SB_OFF, 0x3f))))
        work = []
        if n == 0: work += list(t2_writes([3]))
        if n == 18 and not OPT.get('flags', 1): work += G('s_lshl_b32 s9, s48, 4\nv_mov_b32 v6, 0')
        if OPT.get('flags', 1) and n in (1, 4, 13, 16): work.append({1: 'ENTRY1', 4: 'ENTRY2', 13: 'GATE1', 16: 'GATE2'}[n])
        if n == (OPT.get('pollstep', 25) - 1 if (OPT.get('zzq') or OPT.get('early')) else 26): work.append('POLLISSUE')
        if n == 17 and OPT.get('pf3') and not OPT.get('mega'): work.append('ZERO')
        if n == 19 and OPT.get('mega'): work += G('v_mov_b32 v40, 159744\nv_mov_b32 v42, 0\nv_mov_b32 v43, 0\nv_mov_b32 v44, 0\nv_mov_b32 v45, 0') + G('ds_write_b128 v40, v[42:45]', tok_w=['ZB'])
        if OPT.get('cpf') == 1 and n == 22: work.append(code_prefetch('K2_TEXT' if OPT.get('mega') else 'k2_kernel', 'TEXT_END', 1, 32, 35, 10, 12))
        def drain(q, budget):
            while q and budget > 0:
                if isinstance(q[0], tuple) and q[0][0] == 'WAITSTEP':
                    if n < q[0][1]: break
                    q.pop(0); continue
                x = q.pop(0); budget -= wt(x); work.append(x)
            return budget
        budget = B
        if 0 <= n <= 10 and q1: drain(q1, OPT.get('b1', 34) if n < (10 if OPT.get('zzq') else 8) else 1e9)
        if n >= (11 if OPT.get('zzq') else 10) and q2:
            budget = drain(q2, budget)
            if not q2: pub_step = max(n, 17)
        elif OPT.get('early') and n >= OPT['pollstep']:
            drain(q4_, len(n2a) if n == OPT['pollstep'] else OPT.get('nbudget', 60))
            if n == OPT['pollstep']: drain(q3, OPT.get('abudget', 36))
        elif n >= 19 and not OPT.get('zzq'): drain(q3, OPT.get('abudget', 36))
        elif OPT.get('zzq') and n >= OPT.get('pollstep', 25): drain(q4_, OPT.get('nbudget', 50) if n > OPT.get('pollstep', 25) else len(n2a))
        tot = sum(wt(x) for x in work); acc_ = 0.0; k = 0
        for x in work:
            while k < len(mem) and acc_ >= tot * k / (len(mem) + OPT.get('dmaslack', 1)):
                S.extend(mem[k]); k += 1
            S.append(x); acc_ += wt(x)
        while k < len(mem):
            S.extend(mem[k]); k += 1
    late = pub_step is None or pub_step + 2 > 26
    assert late == bool(OPT.get('late')), (pub_step, 'set late option accordingly')
    if late:
        S.extend(q2)
        S.need('ZB')
        h = len(q3) // 2
        S.extend(q3[:h]); q3 = q3[h:]
        S.need('PUB')
        S('s_barrier')
        S.append('ATOMIC')
    if stamp: stamp_mid(S, 94)
    if OPT.get('zzq'):
        assert pub_step + 2 < OPT.get('pollstep', 25)
        if OPT.get('pollstep') == 27: S.append('POLLCHECK')
        S('s_barrier')
        k = min(len(q4_), OPT.get('n2mid', 60))
        S.extend(q4_[:k]); q4_ = q4_[k:]
        S('s_barrier')
        S.extend(q4_)
        if not OPT.get('attc'): S.extend(q3)
    elif OPT.get('early'):
        assert pub_step + 2 < OPT['pollstep']
        S.extend(q4_); S.extend(q3)
    else:
        S.append('POLLCHECK')
        S('s_barrier')
        S.extend(n2a)
        if OPT.get('mega'): OPT['mega'].prod_early(S)
        S.extend(q3)
        S.extend(n2b)
    if stamp:
        stamp_mid(S, 96)
        if not OPT.get('mega'): S('s_waitcnt vmcnt(0)')
        stamp_mid(S, 70)
        stamp_store(S, 84, [86, 88, 90, 92, 94, 96, 70 if not OPT.get('ptrace') else 66], 14, 0, 72, 12, wave_s=50)
    if OPT.get('trace'):
        S('''s_lshl_b32 s75, s2, 11
        s_lshl_b32 s74, s51, 9
        s_add_u32 s75, s75, s74
        s_add_u32 s75, s75, 0x80000
        v_lshlrev_b32 v12, 2, v1
        buffer_store_dword v254, v12, s[76:79], s75 offen
        buffer_store_dword v255, v12, s[76:79], s75 offen offset:256''')
    if OPT.get('mega'): OPT['mega'].producer(S)
    S('K1_END:')
    S('s_endpgm')
    print('k1 helper: zc', OPT.get('zc_step'), 'pub_step', pub_step, 'att left', sum(wt(x) for x in q3))
    return S

def poll_issue(vr, va):
    return G('s_lshl_b32 s9, s48, 4\nv_mov_b32 v%d, 0' % va) + G('buffer_load_dword v%d, v%d, s[44:47], s9 offen sc1' % (vr, va))
def poll(S, tag, vr=7, va=6):
    S('v_readfirstlane_b32 s11, v%d' % vr)
    S('s_mov_b32 s10, 0')
    S('s_cmp_ge_u32 s11, 16')
    S('s_cbranch_scc1 K1_NOPOLL%s' % tag)
    S("""
    K1_POLL%s:
    s_sleep SLP
    buffer_load_dword v7, v6, s[44:47], s9 offen sc1
    s_waitcnt vmcnt(0)
    v_readfirstlane_b32 s11, v7
    s_add_u32 s10, s10, 1
    s_cmp_ge_u32 s11, 16
    s_cbranch_scc1 K1_NOPOLL%s
    s_cmp_lt_u32 s10, 0x20000
    s_cbranch_scc1 K1_POLL%s
    K1_NOPOLL%s:
    """.replace('SLP', str(OPT.get('slp', 4))).replace('v7', 'v%d' % vr).replace('v6', 'v%d' % va) % (tag, tag, tag, tag))
    S.append(('KEEPQ', 1))

def ln_halo(vHW):
    A = Stream()
    h0 = ST + 4; t = ST + 6
    for k in range(20):
        r = HL + k; tt = t + 2 * (k & 1)
        A('v_lshlrev_b32 v%d, 16, v%d' % (tt, r))
        A('v_and_b32 v%d, 0xffff0000, v%d' % (tt + 1, r))
        if k == 0:
            A('v_add_f32 v%d, v%d, v%d' % (h0, tt, tt + 1))
            A('v_mul_f32 v%d, v%d, v%d' % (h0 + 1, tt, tt))
        else:
            A('v_add_f32 v%d, v%d, v%d' % (h0, h0, tt))
            A('v_fmac_f32 v%d, v%d, v%d' % (h0 + 1, tt, tt))
            A('v_add_f32 v%d, v%d, v%d' % (h0, h0, tt + 1))
        A('v_fmac_f32 v%d, v%d, v%d' % (h0 + 1, tt + 1, tt + 1))
    for m in ('quad_perm:[1,0,3,2]', 'quad_perm:[2,3,0,1]', 'row_half_mirror', 'row_mirror'):
        for r in (h0, h0 + 1):
            A('v_add_f32_dpp v%d, v%d, v%d %s row_mask:0xf bank_mask:0xf' % (r, r, r, m))
    rowstats(A, h0, ST + 6, 's83')
    for t in range(5):
        norm4(A, HL + 4 * t, h0, ST + 6)
        g = Stream()
        if t == 4:
            g('s_mov_b32 exec_lo, 0x00ff00ff')
            g('s_mov_b32 exec_hi, 0x00ff00ff')
        g('ds_write_b128 v%d, %s offset:%d' % (vHW, q4(HL + 4 * t), t * 4096), tok_w=['XH'])
        if t == 4: g('s_mov_b64 exec, -1')
        A.append(list(g))
    return A

def epi_z2():
    E = Stream()
    PK = 60
    def pk(c, b): return PK + b * 20 + 2 * c
    E.append(G("""
    v_and_b32 v10, 15, v1
    v_lshlrev_b32 v11, 3, v10
    s_lshl_b32 s98, s51, 5
    v_add_u32 v10, s98, v10
    v_mul_u32_u24 v10, %d, v10
    v_lshrrev_b32 v12, 4, v1
    v_lshlrev_b32 v12, 3, v12
    s_mov_b32 s98, %d
    v_add3_u32 v10, v10, v12, s98
    """ % (ZP, ZB_OFF)))
    NC = OPT.get('nc', 0)
    order = [(c, b) for b in range(2) for c in range(9)]
    theirs = order[18 - NC:]; order = order[:18 - NC]
    for c, b in order:
        E('ds_read_b64 v[%d:%d], v10 offset:%d' % (pk(c, b), pk(c, b) + 1, 16 * b * ZP + 32 * c))
    for b in range(2):
        E('v_mov_b32 v%d, 0' % (pk(9, b)))
        E('v_mov_b32 v%d, 0' % (pk(9, b) + 1))
    for k in range(4): E('v_mov_b32 v%d, s82' % (132 + k))
    pend = None
    for k, (c, b) in enumerate(order):
        x = 100 + 8 * (k & 1); p = pk(c, b)
        E('v_lshlrev_b32 v%d, 16, v%d' % (x, p))
        E('v_and_b32 v%d, 0xffff0000, v%d' % (x + 1, p))
        E('v_lshlrev_b32 v%d, 16, v%d' % (x + 2, p + 1))
        E('v_and_b32 v%d, 0xffff0000, v%d' % (x + 3, p + 1))
        gelu4(E, x, x + 4)
        E('v_cvt_pk_bf16_f32 v%d, v%d, v%d' % (p, x, x + 1))
        E('v_cvt_pk_bf16_f32 v%d, v%d, v%d' % (p + 1, x + 2, x + 3))
        E('ds_write_b64 v10, v[%d:%d] offset:%d' % (p, p + 1, 16 * b * ZP + 32 * c), tok_w=['ZB'])
    D1 = [116, 120]; D2 = [124, 128]
    if NC:
        E.append(('WAITSTEP', OPT['zc_step'] + 2))
        for c, b in theirs:
            E('ds_read_b64 v[%d:%d], v10 offset:%d' % (pk(c, b), pk(c, b) + 1, 16 * b * ZP + 32 * c))
    for c in range(0, 9, 2):
        for b in range(2):
            p = q4(pk(c, b))
            E('v_mfma_f32_16x16x32_bf16 %s, v[132:135], %s, %s' % (q4(D1[b]), p, '0' if c == 0 else q4(D1[b])))
            E('v_mfma_f32_16x16x32_bf16 %s, %s, %s, %s' % (q4(D2[b]), p, p, '0' if c == 0 else q4(D2[b])))
    g = G(setm('vcc', m64(lambda i, g: i & 1)))
    for b in range(2):
        g += G('v_cndmask_b32 v%d, v%d, v%d, vcc' % (D2[b], D2[b], D2[b] + 1))
        g += G('v_cndmask_b32 v%d, v%d, v%d, vcc' % (D2[b] + 2, D2[b] + 2, D2[b] + 3))
    g += G(setm('vcc', m64(lambda i, g: i & 2)))
    for b in range(2):
        g += G('v_cndmask_b32 v%d, v%d, v%d, vcc' % (D1[b] + 1, D2[b], D2[b] + 2))
    g += G("""
    s_lshl_b32 s99, s48, 4
    s_add_u32 s99, s99, s49
    s_lshl_b32 s99, s99, 10
    s_lshl_b32 s98, s51, 8
    s_add_u32 s99, s99, s98
    """) + G(setm('exec', m64(lambda i, g: g == i >> 2)))
    for b in range(2):
        g += G('buffer_store_dwordx2 v[%d:%d], v11, s[40:43], s99 offen offset:%d sc1' % (D1[b], D1[b] + 1, 128 * b), tok_w=['PUB'])
    g += G('s_mov_b64 exec, -1')
    E.append(g)
    return E

NZC = 4
def norm_z2(tiles, regs=(176, 208, 244, 248)):
    S = Stream()
    pl, zf, tb, a0 = regs
    S("""
    v_lshrrev_b32 v%d, 4, v1
    v_lshlrev_b32 v%d, 12, v%d
    v_and_b32 v%d, 15, v1
    v_lshl_add_u32 v%d, v%d, 4, v%d
    s_lshl_b32 s9, s48, 14
    s_lshl_b32 s10, s51, 8
    s_add_u32 s9, s9, s10
    """ % (a0, a0, a0, a0 + 1, a0, a0 + 1, a0))
    for k in range(4):
        S('buffer_load_dwordx4 %s, v%d, s[40:43], s9 offen offset:%d sc1' % (q4(pl + 4 * k), a0, k * 1024))
    S("""
    v_lshrrev_b32 v{z}, 4, v1
    v_lshlrev_b32 v{r}, 6, v{z}
    v_lshlrev_b32 v{z}, 3, v{z}
    v_bfe_u32 v{t}, v1, 2, 2
    v_add_u32 v{z}, v{z}, v{t}
    s_lshl_b32 s9, s51, 5
    v_add_u32 v{z}, s9, v{z}
    v_mul_u32_u24 v{z}, {ZP}, v{z}
    v_and_b32 v{t}, 3, v1
    v_lshl_add_u32 v{z}, v{t}, 3, v{z}
    v_add_u32 v{z}, {ZB}, v{z}
    """.format(z=a0 + 2, r=a0 + 3, t=tb, ZP=ZP, ZB=ZB_OFF))
    S.need('ZB')
    for c in tiles:
        for hh in range(2):
            S('ds_read_b64_tr_b16 v[%d:%d], v%d offset:%d' % (zf + 4 * c + 2 * hh, zf + 4 * c + 2 * hh + 1, a0 + 2, hh * 4 * ZP + 32 * c))
    S("""
    s_lshl_b32 s9, s50, 8
    s_add_u32 s9, s9, {SB}
    v_lshlrev_b32 v{w}, 4, v{w}
    v_add_u32 v{w}, s9, v{w}
    v_add_u32 v{r}, s9, v{r}
    v_lshlrev_b32 v{p}, 4, v1
    v_xor_b32 v{p1}, 64, v{p}
    s_lshl_b32 s12, s49, 6
    s_lshl_b32 s13, s48, 2
    s_add_u32 s12, s12, s13
    s_add_u32 s12, s12, s51
    s_mul_i32 s12, s12, 9216
    s_add_u32 s13, s12, 4096
    s_add_u32 s10, s12, 8192
    s_mov_b32 s11, 0x{inv:x}
    """.format(SB=SB_OFF, w=a0 + 1, r=a0 + 3, p=a0 + 4, p1=a0 + 5, inv=fbits(1.0 / 2304)))
    A = S
    S = Stream()
    for k in range(2):
        for e in range(4): S('v_add_f32 v%d, v%d, v%d' % (pl + 4 * k + e, pl + 4 * k + e, pl + 8 + 4 * k + e))
    for e in range(4): S('v_add_f32 v%d, v%d, v%d' % (pl + e, pl + e, pl + 4 + e))
    for sw in ('v_permlane16_swap_b32', 'v_permlane32_swap_b32'):
        for k in range(4): S('v_mov_b32 v%d, v%d' % (pl + 4 + k, pl + k))
        for k in range(4): S('%s v%d, v%d' % (sw, pl + k, pl + 4 + k))
        for k in range(4): S('v_add_f32 v%d, v%d, v%d' % (pl + k, pl + k, pl + 4 + k))
    for r in (pl, pl + 2): rowstats(S, r, tb, 's11')
    S('ds_write_b128 v%d, %s' % (a0 + 1, q4(pl)), tok_w=['SB'])
    S.need('SB')
    sr = pl + 16
    for k in range(4): S('ds_read_b128 %s, v%d offset:%d' % (q4(sr + 4 * k), a0 + 3, 16 * k))
    for c in tiles:
        for d in range(4):
            r = zf + 4 * c + d
            t = tb + 2 * (d & 1)
            S('v_lshlrev_b32 v%d, 16, v%d' % (t, r))
            S('v_and_b32 v%d, 0xffff0000, v%d' % (t + 1, r))
            S('v_fma_f32 v%d, v%d, v%d, v%d' % (t, t, sr + 4 * d, sr + 4 * d + 1))
            S('v_fma_f32 v%d, v%d, v%d, v%d' % (t + 1, t + 1, sr + 4 * d + 2, sr + 4 * d + 3))
            S('v_cvt_pk_bf16_f32 v%d, v%d, v%d' % (r, t, t + 1))
        S('buffer_store_dwordx4 %s, v%d, s[36:39], s%d offen offset:%d' % (q4(zf + 4 * c), a0 + 5 if c & 1 else a0 + 4, (12, 13, 10)[c >> 2], (c & 3) * 1024) + (' sc1' if OPT.get('wt2') or OPT.get('mega') else ''))
    return A, S
```

```python
from common import *
import math, struct

def fbits(x): return struct.unpack('<I', struct.pack('<f', x))[0]
SLOT = 19456
T1_OFF = 38912; T2_OFF = 77824; XH_OFF = 143360; ZB_OFF = 77824; QB_OFF = 115712; SB_OFF = 161792
K1_LDS = 163840
QP = 240; ZP = 296; VOFF = 80; QOFF = 160; STFLAG = ''
XF = 112; S0 = 32; S1 = 72; WFR = 16
C1 = -2.0 * math.sqrt(2.0 / math.pi) * math.log2(math.e)
C2 = C1 * 0.044715
SCL = (18 ** -0.5) * math.log2(math.e)
NR1 = 6
P1 = NR1 * 2048; P2 = (9 - NR1) * 2048

def xf(j, b): r = XF + (j * 2 + b) * 4; return 'v[%d:%d]' % (r, r + 3)
def q4(r): return 'v[%d:%d]' % (r, r + 3)

vWq = 2; vWz = 3; vT = 4; vTs = 5; vA1 = 6; vA2 = 7; vA3 = 8; vC2 = 9
sBLK = 54
OPT = {}

def gelu(S, x, t, sc1='s78', c2=vC2):
    S('v_mul_f32 v%d, v%d, v%d' % (t, x, x))
    S('v_fma_f32 v%d, v%d, v%d, %s' % (t, t, c2, sc1))
    S('v_mul_f32 v%d, v%d, v%d' % (t, t, x))
    S('v_exp_f32 v%d, v%d' % (t, t))
    S('v_add_f32 v%d, 1.0, v%d' % (t, t))
    S('v_rcp_f32 v%d, v%d' % (t, t))
    S('v_mul_f32 v%d, v%d, v%d' % (x, x, t))
def gelu4(S, x, t, **kw):
    subs = []
    for k in range(4):
        s = Stream(); gelu(s, x + k, t + k, **kw); subs.append(s)
    for i in range(7):
        for k in range(4): S.append(subs[k][i])

def flatten(lst):
    for x in lst:
        if isinstance(x, list):
            for y in flatten(x): yield y
        else: yield x

def is_mem(x):
    if isinstance(x, list): return any(is_mem(y) for y in x) and not any((not isinstance(y, (str, list))) and y.kind in ('valu', 'trans') for y in x)
    if isinstance(x, str): return False
    return x.kind in ('ds', 'vmem', 'dma')
def merge(main, side, start=0, end=None):
    segs = [[]]
    for x in main:
        if not isinstance(x, (str, list)) and x.kind == 'mfma' and not getattr(x, 'label', None) == 'side': segs.append([])
        segs[-1].append(x)
    nm = len(segs) - 1
    if end is None: end = nm
    if end < 0: end = nm + end
    n = end - start
    def wt(x):
        if isinstance(x, str): return 1
        if isinstance(x, list): return sum(wt(y) for y in x)
        if x.kind in ('need', 'label'): return 0
        if x.kind in ('trans', 'mfma'): return 2
        if x.kind == 'salu': return 0.3
        return 1
    if OPT.get('sidenolds'):
        side = [x for x in side if isinstance(x, (str, list)) or x.kind != 'ds']
    if OPT.get('sidenovalu'):
        side = [x for x in side if isinstance(x, (str, list)) or x.kind not in ('valu', 'trans')]
    w = [wt(x) for x in side]
    total = sum(w); pos = 0; acc = 0.0
    out = Stream()
    out.extend(segs[0])
    for k in range(nm):
        seg = segs[k + 1]
        cut = 1
        while cut < len(seg) and (isinstance(seg[cut], str) or is_mem(seg[cut]) or (not isinstance(seg[cut], list) and seg[cut].kind not in ('valu', 'trans', 'mfma'))): cut += 1
        if start <= k < end:
            target = total * (k - start + 1) / n
            last = (k == end - 1)
            mem = []; val = []
            seen_valu = False
            while pos < len(side) and (acc + w[pos] <= target + 1e-9 or last):
                x = side[pos]
                skip = (not isinstance(x, (str, list))) and x.kind in ('need', 'salu')
                if is_mem(x) and seen_valu and not last: break
                if not seen_valu and (is_mem(x) or skip): mem.append(x)
                else:
                    val.append(x)
                    if not skip: seen_valu = True
                acc += w[pos]; pos += 1
            if all(is_mem(y) or isinstance(y, str) or (not isinstance(y, list) and y.kind not in ('valu', 'trans')) for y in seg[cut:]) or True:
                out.extend(seg[:cut]); out.extend(mem); out.extend(seg[cut:]); out.extend(val)
        else:
            out.extend(seg)
    assert pos == len(side)
    return out

def rowstats(S, r, t, sinv):
    S('''
    v_mul_f32 v%d, %s, v%d
    v_mul_f32 v%d, v%d, v%d
    v_fma_f32 v%d, v%d, %s, -v%d
    v_max_f32 v%d, 0, v%d
    v_add_f32 v%d, 0x3727c5ac, v%d
    v_rsq_f32 v%d, v%d
    v_mul_f32 v%d, v%d, v%d
    v_sub_f32 v%d, 0, v%d
    v_mov_b32 v%d, v%d
    ''' % (r, sinv, r, t, r, r, r + 1, r + 1, sinv, t, r + 1, r + 1, r + 1, r + 1, t, r + 1, r + 1, r, t, r + 1, r + 1, r, t))
def dots(regs, sa, qa):
    out = Stream()
    for k, r in enumerate(regs):
        out('v_dot2_f32_bf16 v%d, v%d, s82, %s' % (sa, r, '0' if k == 0 else 'v%d' % sa))
        out('v_dot2_f32_bf16 v%d, v%d, v%d, %s' % (qa, r, r, '0' if k == 0 else 'v%d' % qa))
    return out
def norm4(S, r, st, tb):
    subs = []
    for d in range(4):
        t = tb + 2 * (d & 1)
        s = Stream()
        s('v_lshlrev_b32 v%d, 16, v%d' % (t, r + d))
        s('v_and_b32 v%d, 0xffff0000, v%d' % (t + 1, r + d))
        s('v_fma_f32 v%d, v%d, v%d, v%d' % (t, t, st, st + 1))
        s('v_fma_f32 v%d, v%d, v%d, v%d' % (t + 1, t + 1, st, st + 1))
        s('v_cvt_pk_bf16_f32 v%d, v%d, v%d' % (r + d, t, t + 1))
        subs.append(s)
    for pair in (0, 2):
        for i in range(5):
            S.append(subs[pair][i]); S.append(subs[pair + 1][i])

PH = [('Z2', 9216, 4608), ('Q', 3456, 0), ('Z1', 9216, 0)]
def wdma_groups(n):
    ph, j = divmod(n, 9)
    nm, pitch, add = PH[ph]
    out = []
    for e in range(4):
        P = Stream()
        if e == 0:
            P('s_mul_i32 s63, s%d, %d' % (sBLK + j, 64 * pitch))
            if add: P('s_add_u32 s63, s63, %d' % add)
            P('s_add_u32 m0, s68, %d' % ((n & 3) * SLOT))
        else:
            P('s_add_u32 s63, s63, %d' % (2 * pitch - 576))
        P('s_mov_b64 exec, s[%s]' % ('66:67' if ph == 1 else '64:65'))
        P('buffer_load_dwordx4 v%d, s[%s], s63 offen offset:%d lds' % (vWq if ph == 1 else vWz, '20:23' if ph == 1 else '24:27', e * 576), tok_w=['W%d' % n])
        P('s_mov_b64 exec, -1')
        out.append(list(P))
    return out

LN1 = 16
LN2 = XF + 16 * NR1
HL = S1 + 24
ST = S1
def ln(g, j): return LN1 + (g * NR1 + j) * 4 if j < NR1 else LN2 + (g * (9 - NR1) + j - NR1) * 4
vTW = S1 + 12; vHW = S1 + 13; vXe = S1 + 14; vXo = S1 + 15; vH0 = S1 + 16

def gen_k1(stamp=False, xmap='84', rot=True, **opt):
    OPT.clear(); OPT.update(opt)
    F = Finisher()
    S = Stream()
    S('''
    s_load_dwordx4 s[4:7], s[0:1], 0
    s_load_dwordx2 s[8:9], s[0:1], 32
    s_load_dwordx4 s[12:15], s[0:1], 72
    s_load_dwordx2 s[10:11], s[0:1], 40
    s_cmp_ge_u32 s2, 256
    s_cbranch_scc1 K1_END
    ''')
    if stamp: stamp_begin(S, 84)
    S('''
    v_lshrrev_b32 v10, 6, v0
    v_and_b32 v1, 63, v0
    v_readfirstlane_b32 s50, v10
    s_and_b32 s63, s2, 7
    s_lshr_b32 s64, s2, 3
    ''')
    if xmap == '84':
        S('''
        s_and_b32 s48, s63, 1
        s_lshl_b32 s48, s48, 3
        s_and_b32 s65, s64, 7
        s_add_u32 s48, s48, s65
        s_lshr_b32 s49, s63, 1
        s_lshl_b32 s49, s49, 2
        s_lshr_b32 s64, s64, 3
        s_add_u32 s49, s49, s64
        s_lshl_b32 s64, s64, 1
        s_add_u32 s53, s64, s65
        ''')
    else:
        S('''
        s_lshr_b32 s48, s63, 1
        s_lshl_b32 s48, s48, 2
        s_and_b32 s65, s64, 3
        s_add_u32 s48, s48, s65
        s_and_b32 s49, s63, 1
        s_lshl_b32 s49, s49, 3
        s_lshr_b32 s64, s64, 2
        s_add_u32 s49, s49, s64
        s_lshl_b32 s65, s65, 1
        s_add_u32 s53, s64, s65
        ''')
    if not rot: S('s_mov_b32 s53, 0')
    S('''
    s_sub_u32 s64, s53, 9
    s_cmp_ge_u32 s53, 9
    s_cselect_b32 s%d, s64, s53
    s_and_b32 s51, s50, 3
    s_and_b32 s52, s49, 1
    s_lshl_b32 s63, s48, 7
    s_lshl_b32 s64, s50, 4
    s_add_u32 s63, s63, s64
    v_lshrrev_b32 v12, 3, v1
    v_and_b32 v13, 7, v1
    v_add_u32 v10, s63, v12
    v_mul_u32_u24 v10, 1152, v10
    v_lshl_add_u32 v10, v13, 4, v10
    v_add_u32 v11, 9216, v10
    ''' % sBLK)
    for j in range(1, 9):
        S('s_add_u32 s%d, s%d, 1' % (sBLK + j, sBLK + j - 1))
        S('s_cmp_eq_u32 s%d, 9' % (sBLK + j))
        S('s_cselect_b32 s%d, 0, s%d' % (sBLK + j, sBLK + j))
    for j in range(9): S('s_lshl_b32 s%d, s%d, 7' % (69 + j, sBLK + j))
    S('s_waitcnt lgkmcnt(0)')
    srd(S, 16, 4, 5, 2048 * 1152)
    for g in range(2):
        for j in range(9):
            S('buffer_load_dwordx4 %s, v%d, s[16:19], s%d offen' % (q4(ln(g, j)), 10 + g, 69 + j))
    srd(S, 20, 6, 7, 576 * 3456)
    srd(S, 24, 8, 9, 576 * 9216)
    S('''
    v_cmp_le_u32 vcc, 18, v1
    v_subrev_u32 v100, 18, v1
    v_cndmask_b32 v100, v1, v100, vcc     ; ch
    v_cndmask_b32 v101, 0, 1, vcc         ; rr
    s_lshl_b32 s63, s50, 3
    v_add_u32 v101, s63, v101             ; 8w + rr
    s_mul_i32 s64, s49, 288
    v_mul_u32_u24 v102, 9216, v101
    v_lshl_add_u32 v102, v100, 4, v102
    v_add_u32 v%d, s64, v102
    v_mul_u32_u24 v102, 3456, v101
    v_lshl_add_u32 v102, v100, 4, v102
    s_mul_i32 s64, s49, 72
    v_add_u32 v102, s64, v102
    v_mov_b32 v103, 1152
    v_mov_b32 v104, %d
    v_cmp_le_u32 vcc, 5, v100
    v_cndmask_b32 v103, v103, v104, vcc
    v_mov_b32 v104, -160
    v_cmp_le_u32 vcc, 10, v100
    v_cndmask_b32 v103, v103, v104, vcc
    v_add_u32 v%d, v102, v103
    s_mov_b32 s64, -1
    s_mov_b32 s65, 15
    s_mov_b32 s66, 0x%x
    s_mov_b32 s67, 1
    s_mul_i32 s68, s50, 2432
    ''' % (vWz, 2304 - 80, vWq, (0x7fff | (0x7fff << 18)) & 0xffffffff))
    for g in wdma_groups(0): S.extend(g)
    srd(S, 28, 14, 15, AP_SZ, AP_OFF)
    srd(S, 32, 14, 15, Z1P_SZ, Z1P_OFF)
    srd(S, 36, 14, 15, Z2P_SZ, Z2P_OFF)
    srd(S, 40, 14, 15, ST_SZ, ST_OFF)
    srd(S, 44, 12, 13, 256)
    srd(S, 4, 10, 11, 2048 * 4096)
    S('''
    s_mov_b32 s78, 0x%x
    s_mov_b32 s79, 0x%x
    s_mov_b32 s80, 0x05040100
    s_mov_b32 s81, 0x07060302
    s_mov_b32 s82, 0x3f803f80
    s_mov_b32 s83, 0x%x
    v_mov_b32 v%d, 0x%x
    s_lshl_b32 s8, s2, 15
    s_lshl_b32 s9, s50, 8
    s_add_u32 s8, s8, s9                 ; prefetch offset
    v_lshlrev_b32 v%d, 7, v1
    ''' % (fbits(C1), fbits(SCL), fbits(1.0 / 576), vC2, fbits(C2), vA3))
    S('''
    v_xor_b32 v102, v12, v13
    v_and_b32 v103, 3, v1
    v_lshl_add_u32 v102, v103, 4, v102
    v_lshlrev_b32 v102, 4, v102
    v_bfe_u32 v104, v1, 2, 1
    v_lshl_add_u32 v102, v104, 10, v102
    s_mul_i32 s63, s50, %d
    s_add_u32 s63, s63, %d
    v_add_u32 v%d, s63, v102
    s_lshl_b32 s63, s50, 1
    v_lshrrev_b32 v100, 5, v1
    v_add_u32 v100, s63, v100            ; halo row i
    v_xor_b32 v102, v100, v13
    v_lshl_add_u32 v102, v103, 4, v102
    v_lshlrev_b32 v102, 4, v102
    v_bfe_u32 v104, v1, 2, 3
    v_lshl_add_u32 v102, v104, 10, v102
    v_add_u32 v%d, %d, v102
    v_and_b32 v101, 15, v1
    v_lshrrev_b32 v105, 4, v1
    v_xor_b32 v102, v101, v105
    v_lshl_add_u32 v102, v105, 4, v102
    v_lshlrev_b32 v102, 4, v102          ; plain frag read offset (even)
    s_mul_i32 s63, s51, %d
    s_add_u32 s63, s63, %d
    v_add_u32 v%d, s63, v102
    v_xor_b32 v%d, 64, v%d
    v_add_u32 v%d, %d, v102
    v_xor_b32 v%d, 64, v%d
    v_mul_u32_u24 v105, 2432, v105
    v_bfe_u32 v101, v1, 2, 2
    v_mul_u32_u24 v101, 288, v101
    v_lshlrev_b32 v103, 3, v103
    v_add3_u32 v%d, v105, v101, v103
    ''' % (P1, T1_OFF, vTW, vHW, XH_OFF, 2 * P1, T1_OFF, vXe, vXo, vXe, vA1, XH_OFF, vA2, vA1, vT))
    S('''
    s_lshl_b32 s63, s48, 7
    s_sub_u32 s63, s63, 16
    v_add_u32 v100, s63, v100
    s_movk_i32 s63, 1152
    v_mul_lo_u32 v100, v100, s63
    v_lshl_add_u32 v100, v13, 4, v100
    v_bfe_u32 v101, v1, 3, 2
    v_add_u32 v101, s%d, v101
    ''' % sBLK)
    for t in range(3):
        S('v_add_u32 v102, %d, v101' % (4 * t))
        S('v_subrev_u32 v103, 9, v102')
        S('v_min_u32 v102, v102, v103')
        S('v_lshl_add_u32 v%d, v102, 7, v100' % (vH0 + t))
    S('''
    v_and_b32 v103, 31, v1
    v_cmp_gt_u32 vcc, 8, v103
    v_mov_b32 v102, 0x7f000000
    v_cndmask_b32 v%d, v102, v%d, vcc
    ''' % (vH0 + 2, vH0 + 2))
    if stamp: stamp_mid(S, 86)
    for g in range(2):
        regs = [ln(g, j) + d for j in range(9) for d in range(4)]
        S.extend(dots(regs, ST + 2 * g, ST + 2 * g + 1))
        if g == 0:
            for x in wdma_groups(1): S.extend(x)
    for m in ('quad_perm:[1,0,3,2]', 'quad_perm:[2,3,0,1]', 'row_half_mirror'):
        for r in range(ST, ST + 4):
            S('v_add_f32_dpp v%d, v%d, v%d %s row_mask:0xf bank_mask:0xf' % (r, r, r, m))
    for g in range(2): rowstats(S, ST + 2 * g, ST + 6 + g, 's83')
    for j in range(NR1):
        for g in range(2):
            norm4(S, ln(g, j), ST + 2 * g, ST + 6)
            S('ds_write_b128 v%d, %s offset:%d' % (vTW, q4(ln(g, j)), g * 128 + j * 2048), tok_w=['T'])
    for t in range(3):
        S('buffer_load_dwordx4 %s, v%d, s[16:19], 0 offen' % (q4(HL + 4 * t), vH0 + t))
    S.need('T')
    S('s_barrier')
    for q in range(2 * NR1):
        for b in range(2):
            S('ds_read_b128 %s, v%d offset:%d' % (xf(q, b), vXo if q & 1 else vXe, b * P1 + q * 1024), tok_w=['TR'])
    d2 = T2_OFF - T1_OFF
    S('s_mul_i32 s63, s50, %d' % (P2 - P1))
    S('s_add_u32 s63, s63, %d' % d2)
    S('v_add_u32 v%d, s63, v%d' % (vTW, vTW))
    S.need('TR', 'W0')
    S('s_barrier')
    for g in wdma_groups(2): S.extend(g)
    S('s_mul_i32 s63, s51, %d' % (2 * (P2 - P1)))
    S('s_add_u32 s63, s63, %d' % d2)
    S('v_add_u32 v%d, s63, v%d' % (vXe, vXe))
    S('v_add_u32 v%d, s63, v%d' % (vXo, vXo))
    if stamp: stamp_mid(S, 88)
    S('s_cmp_ge_u32 s50, 4')
    S('s_cbranch_scc1 K1_H1')
    F.run(S)
    txt = F.text()
    state = (F.vmq, F.lgq)
    for h in range(2):
        G2 = Finisher()
        G2.vmq = [set(x) for x in state[0]]; G2.lgq = [(set(a), b) for a, b in state[1]]
        G2.hist = list(F.hist)
        main_half(G2, h, stamp)
        txt += G2.text()
    return txt, 256

def ln_round2():
    A = Stream()
    for j in range(NR1, 9):
        for g in range(2):
            norm4(A, ln(g, j), ST + 2 * g, ST + 6)
            A('ds_write_b128 v%d, %s offset:%d' % (vTW, q4(ln(g, j)), g * 128 + (j - NR1) * 2048), tok_w=['T2'])
    return A
def ln_halo():
    A = Stream()
    h0 = ST + 4
    U = S0 + 32 if False else None
    t = ST + 6
    for k in range(12):
        r = HL + k; tt = t + 2 * (k & 1)
        A('v_lshlrev_b32 v%d, 16, v%d' % (tt, r))
        A('v_and_b32 v%d, 0xffff0000, v%d' % (tt + 1, r))
        if k == 0:
            A('v_add_f32 v%d, v%d, v%d' % (h0, tt, tt + 1))
            A('v_mul_f32 v%d, v%d, v%d' % (h0 + 1, tt, tt))
        else:
            A('v_add_f32 v%d, v%d, v%d' % (h0, h0, tt))
            A('v_fmac_f32 v%d, v%d, v%d' % (h0 + 1, tt, tt))
            A('v_add_f32 v%d, v%d, v%d' % (h0, h0, tt + 1))
        A('v_fmac_f32 v%d, v%d, v%d' % (h0 + 1, tt + 1, tt + 1))
    for m in ('quad_perm:[1,0,3,2]', 'quad_perm:[2,3,0,1]', 'row_half_mirror', 'row_mirror'):
        for r in (h0, h0 + 1):
            A('v_add_f32_dpp v%d, v%d, v%d %s row_mask:0xf bank_mask:0xf' % (r, r, r, m))
    for r in (h0, h0 + 1): A('v_mov_b32 v%d, v%d' % (r + 2, r))
    for r in (h0, h0 + 1):
        A('v_permlane16_swap_b32 v%d, v%d' % (r, r + 2))
        A('v_add_f32 v%d, v%d, v%d' % (r, r, r + 2))
    rowstats(A, h0, ST + 6, 's83')
    for t in range(3):
        norm4(A, HL + 4 * t, h0, ST + 6)
        g = Stream()
        if t == 2:
            g('s_mov_b32 exec_lo, 0xff')
            g('s_mov_b32 exec_hi, 0xff')
        g('ds_write_b128 v%d, %s offset:%d' % (vHW, q4(HL + 4 * t), t * 8192), tok_w=['XH'])
        if t == 2: g('s_mov_b64 exec, -1')
        A.append(list(g))
    return A
def x_round2_reads():
    A = Stream()
    for q in range(2 * NR1, 18):
        for b in range(2):
            A('ds_read_b128 %s, v%d offset:%d' % (xf(q, b), vXo if q & 1 else vXe, b * P2 + (q - 2 * NR1) * 1024), tok_w=['TR2'])
    return A

def main_half(F, h, stamp):
    S = Stream()
    if h: S('K1_H1:')
    if OPT.get('prio') == h: S('s_setprio 1')
    hA = S1 + 32; hX = S1 + 36; vq = [S0 + 32 + k for k in range(4)]
    ntile = [4 + h, 4, 5 - h]
    accbase = [S0, S1, S0]
    def acc(ph, c, b): return accbase[ph] + (c * 2 + b) * 4
    frs = []
    for n in range(27):
        ph, j = divmod(n, 9)
        for ks in range(2):
            for c in range(ntile[ph]):
                frs.append((n, ks, c))
    bias = {}
    extra_tok = {4: ['T2'], 9: ['XH', 'TR2'], 18: ['XHR'], 19: ['QB'], 20: ['PUB'], }
    def halo_read(q):
        return G('ds_read_b128 %s, v%d offset:%d' % (q4(hX), vA2 if q & 1 else vA1, q * 1024), tok_w=['XHR'])
    def read(f):
        n, ks, c = frs[f]
        ph, j = divmod(n, 9)
        g = Stream()
        first = (ks == 0 and c == 0)
        if first and n > 0:
            if n == POLL_STEP and h == 0: g.append('POLL')
            g.need(*(['W%d' % n] + extra_tok.get(n, [])))
            if not OPT.get('nobar'): g('s_barrier')
            if n == 20 and h == 0: g.append('ATOMIC')
            if n == 9 and h == 0:
                for cc in range(4):
                    g('s_add_u32 s98, s51, %d' % cc)
                    g('s_and_b32 s98, s98, 3')
                    g('s_lshl_b32 s%d, s98, 5' % (69 + cc))
                    g('v_add_u32 v%d, s%d, v%d' % (vq[cc], 69 + cc, vT))
                    bias[vq[cc]] = bias.get(vT, 0)
            if n == 9: g.extend(halo_read(0))
            if n == 18:
                g('s_lshl_b32 s98, s52, 5')
                if h == 1: g('s_add_u32 s98, s98, 128')
                g('v_add_u32 v%d, s98, v%d' % (vTs + 0 if False else vA3, vT))
                bias[vA3] = bias.get(vT, 0)
                if h == 0:
                    g('s_cmp_eq_u32 s52, 0')
                    g('s_cselect_b32 s98, 256, 0')
                    g('v_add_u32 v%d, s98, v%d' % (vTs, vT))
                    bias[vTs] = bias.get(vT, 0)
        if ph == 0: ar, coff = vT, 32 * (c + 4 * h)
        elif ph == 1: ar, coff = (vq[c], 0) if h == 0 else (vT, 128 + 32 * c)
        else: ar, coff = (vA3, 32 * c) if c < 4 else (vTs, 0)
        want = (n & 3) >> 1
        if bias.get(ar, 0) != want:
            g('v_add_u32 v%d, %d, v%d' % (ar, 2 * SLOT if want else -2 * SLOT, ar))
            bias[ar] = want
        r = WFR + (f & 3) * 4
        for hh in range(2):
            if OPT.get('noread'): continue
            g('ds_read_b64_tr_b16 v[%d:%d], v%d offset:%d' % (r + 2 * hh, r + 2 * hh + 1, ar, (n & 1) * SLOT + ks * 9728 + hh * 1152 + coff))
        return g
    POLL_STEP = OPT.get('poll', 23)
    steps = [Stream() for _ in range(27)]
    for f in range(3): S.extend(read(f))
    for f, (n, ks, c) in enumerate(frs):
        ph, j = divmod(n, 9)
        q = 2 * j + ks
        M = steps[n]
        r = WFR + (f & 3) * 4
        rd = read(f + 3) if f + 3 < len(frs) else []
        for b in range(2):
            a = acc(ph, c, b)
            M('v_mfma_f32_16x16x32_bf16 %s, %s, %s, %s' % (q4(a), q4(r), xf(q, b), '0' if q == 0 else q4(a)))
            M.extend(rd[:-1] if b == 0 else rd[-1:])
        if ph == 1 and c == 0:
            M('v_mfma_f32_16x16x32_bf16 %s, %s, %s, %s' % (q4(hA), q4(r), q4(hX), '0' if q == 0 else q4(hA)))
            if q < 17: M.extend(halo_read(q + 1))
    for n in range(1, 25):
        if OPT.get('nodma'): break
        grp = wdma_groups(n + 2)
        if 1 <= n <= 16 and not OPT.get('nopf'):
            grp.append(G('''s_mov_b32 m0, %d
            s_mov_b64 exec, 3
            buffer_load_dword v%d, s[4:7], s8 offen lds
            s_mov_b64 exec, -1
            s_add_u32 s8, s8, 2048''' % (SB_OFF, vA3)))
        nm = sum(1 for x in steps[n] if not isinstance(x, (str, list)) and x.kind == 'mfma')
        if OPT.get('dma_burst'):
            steps[n] = merge(steps[n], [sum(grp, [])], 0, 1)
        else:
            lo, hi = (0, nm // 4 + 1) if h == 0 else (nm // 4, nm // 2 + 1)
            steps[n] = merge(steps[n], grp, lo, hi)
    def cat(a, b):
        o = Stream()
        for n in range(a, b): o.extend(steps[n])
        return o
    side = not OPT.get('noside')
    QW = Stream()
    QW.append(G('''
    v_and_b32 v10, 15, v1
    s_lshl_b32 s98, s51, 5
    v_add_u32 v11, s98, v10
    v_mul_u32_u24 v11, %d, v11
    v_lshrrev_b32 v12, 4, v1
    v_lshlrev_b32 v12, 3, v12
    v_mul_u32_u24 v10, %d, v10
    s_mov_b32 s98, %d
    v_add3_u32 v10, v10, v12, s98
    v_add3_u32 v11, v11, v12, s98
    ''' % (QP, QP, QB_OFF)))
    for c in range(4):
        if h == 0: QW('v_add_u32 v13, s%d, v11' % (69 + c))
        for b in range(2):
            a = acc(1, c, b)
            QW('v_cvt_pk_bf16_f32 v%d, v%d, v%d' % (a, a, a + 1))
            QW('v_cvt_pk_bf16_f32 v%d, v%d, v%d' % (a + 1, a + 2, a + 3))
            grp = Stream()
            if h == 1 and c == 3: grp('s_mov_b32 exec_hi, 0')
            grp('ds_write_b64 v%d, v[%d:%d] offset:%d' % (13 if h == 0 else 11, a, a + 1, (16 + 16 * b) * QP + (0 if h == 0 else 128 + 32 * c)), tok_w=['QB'])
            if h == 1 and c == 3: grp('s_mov_b32 exec_hi, -1')
            QW.append(list(grp))
    QW('v_cvt_pk_bf16_f32 v%d, v%d, v%d' % (hA, hA, hA + 1))
    QW('v_cvt_pk_bf16_f32 v%d, v%d, v%d' % (hA + 1, hA + 2, hA + 3))
    if h == 0:
        QW('v_add_u32 v10, s69, v10')
        QW('ds_write_b64 v10, v[%d:%d]' % (hA, hA + 1), tok_w=['QB'])
    else:
        QW('ds_write_b64 v10, v[%d:%d] offset:128' % (hA, hA + 1), tok_w=['QB'])
    out = Stream()
    out.extend(S)
    out.extend(merge(cat(0, 4), ln_round2(), 0, -8))
    steps[4] = merge(steps[4], x_round2_reads(), 0, -2)
    out.extend(merge(cat(4, 9), ln_halo(), 0, -8))
    if stamp: stamp_mid(out, 90)
    out.extend(merge(cat(9, 18), epi_z2(h, ntile[0], lambda c, b: acc(0, c, b)) if side else [], 2, -2))
    if stamp: stamp_mid(out, 92)
    out.extend(merge(steps[18], QW, 0, -8))
    n2a, n2b = norm_z2(h, ntile[0])
    steps[POLL_STEP] = merge(steps[POLL_STEP], n2a, 0, 6)
    out.extend(merge(cat(19, 25), attention(h) if side else [], 0, None))
    out.extend(merge(cat(25, 27), n2b, 0, None))
    if stamp: stamp_mid(out, 94)
    tail(out, h, ntile, acc, stamp)
    for x in flatten(out):
        if x == 'ATOMIC':
            raw = Stream()
            raw('''s_cmp_lg_u32 s51, 0
            s_cbranch_scc1 K1_NOAT
            s_lshl_b32 s9, s48, 4
            v_mov_b32 v6, 0
            v_mov_b32 v7, 1
            s_mov_b64 exec, 1''')
            F.run(raw)
            F.add(I('buffer_atomic_add v7, v6, s[44:47], s9 offen sc1')); F.vmq.pop()
            raw = Stream()
            raw('''s_mov_b64 exec, -1
            K1_NOAT:''')
            F.run(raw)
        elif x == 'POLL':
            keep = [set(q) for q in F.vmq]
            raw = Stream()
            raw('''
            s_cmp_lg_u32 s51, 0
            s_cbranch_scc1 K1_NOPOLL
            s_mov_b32 s10, 0
            K1_POLL:
            buffer_load_dword v7, v6, s[44:47], s9 offen sc0 sc1
            s_waitcnt vmcnt(0)
            v_readfirstlane_b32 s11, v7
            s_add_u32 s10, s10, 1
            s_cmp_ge_u32 s11, 16
            s_cbranch_scc1 K1_NOPOLL
            s_sleep 1
            s_cmp_lt_u32 s10, 0x40000
            s_cbranch_scc1 K1_POLL
            K1_NOPOLL:
            ''')
            F.run(raw)
            F.vmq = keep
        else:
            F.add(x)

def m64(f):
    v = 0
    for l in range(64):
        if f(l & 15, l >> 4): v |= 1 << l
    return v
def setm(reg, v):
    return 's_mov_b32 %s_lo, 0x%x\ns_mov_b32 %s_hi, 0x%x' % (reg, v & 0xffffffff, reg, v >> 32)

def attention(h):
    A = Stream()
    R = S1
    Qf = (R, R + 4); Kf = (R + 8, R + 12, R + 16)
    D = [[R + 20, R + 24], [R + 28, R + 32]]
    VA = R + 8; VB = R + 14
    O = [[R + 20, R + 24], [R + 28, R + 32]]
    Pk = (R, R + 4)
    tmp = R + 36
    vF = 10; vV = 11; vO0 = 12; vO1 = 13; vNeg = 14; vSh = 15
    w0 = 32 * h
    A.append(G("""
    v_and_b32 v12, 15, v1
    s_lshl_b32 s99, s51, 5
    v_add_u32 v13, s99, v12
    v_mul_u32_u24 v10, %d, v13
    v_lshrrev_b32 v14, 4, v1
    v_lshl_add_u32 v10, v14, 4, v10
    v_add_u32 v10, %d, v10
    """ % (QP, QB_OFF)))
    for b in range(2): A('ds_read_b128 %s, v%d offset:%d' % (q4(Qf[b]), vF, (16 + 16 * b) * QP + QOFF + w0))
    for kt in range(3): A('ds_read_b128 %s, v%d offset:%d' % (q4(Kf[kt]), vF, 16 * kt * QP + w0))
    A.append(G("""
    v_lshrrev_b32 v11, 2, v1
    v_add_u32 v11, s99, v11
    v_mul_u32_u24 v11, %d, v11
    v_and_b32 v15, 3, v1
    v_lshl_add_u32 v11, v15, 3, v11
    v_add_u32 v11, %d, v11
    """ % (QP, QB_OFF + VOFF + w0)))
    A.append(G("""
    s_mul_i32 s98, s49, 36
    s_add_u32 s98, s98, %d
    v_lshl_add_u32 v14, v14, 2, s98
    v_lshlrev_b32 v12, 4, v12
    v_lshrrev_b32 v15, 3, v14
    v_lshl_add_u32 v{t}, v15, 8, v12
    v_and_b32 v15, 7, v14
    v_lshl_add_u32 v{t}, v15, 1, v{t}
    v_add_u32 v14, 2, v14
    v_lshrrev_b32 v15, 3, v14
    v_lshl_add_u32 v13, v15, 8, v12
    v_and_b32 v15, 7, v14
    v_lshl_add_u32 v13, v15, 1, v13
    v_mov_b32 v{u}, v12
    v_mov_b32 v12, v{t}
    s_lshl_b32 s69, s48, 3
    s_lshl_b32 s70, s51, 1
    s_add_u32 s69, s69, s70
    s_mul_i32 s69, s69, 92160
    s_add_u32 s70, s69, 92160
    s_add_u32 s98, s98, 16
    s_lshr_b32 s71, s98, 3
    s_lshl_b32 s71, s71, 8
    s_and_b32 s99, s98, 7
    s_lshl_b32 s99, s99, 1
    s_add_u32 s71, s71, s99
    s_add_u32 s98, s98, 2
    s_lshr_b32 s73, s98, 3
    s_lshl_b32 s73, s73, 8
    s_and_b32 s99, s98, 7
    s_lshl_b32 s99, s99, 1
    s_add_u32 s73, s73, s99
    s_add_u32 s72, s71, s70
    s_add_u32 s71, s71, s69
    s_add_u32 s74, s73, s70
    s_add_u32 s73, s73, s69
    s_or_b32 s98, s48, s51
    s_cmp_eq_u32 s98, 0
    s_cselect_b32 s75, 0, -1
    s_mov_b32 s76, 0x55555555
    s_mov_b32 s77, 0x55555555
    v_mov_b32 v14, 0xce6e6b28
    v_and_b32 v15, 1, v1
    v_lshlrev_b32 v15, 4, v15
    """.format(t=tmp, u=tmp + 3) % (16 * h)))
    vRowOnly = tmp + 3
    for b in range(2):
        q = Qf[b]
        if h == 0:
            g = G('s_mov_b32 exec_lo, 0') + G('v_mov_b32 v%d, 0\nv_mov_b32 v%d, 0\nv_mov_b32 v%d, 0' % (q + 1, q + 2, q + 3)) + G('s_mov_b32 exec_hi, 0xffff0000') + G('v_mov_b32 v%d, 0' % q)
        else:
            g = G('s_mov_b32 exec_lo, 0') + G('v_mov_b32 v%d, 0\nv_mov_b32 v%d, 0' % (q + 2, q + 3)) + G('s_mov_b32 exec_hi, 0xffff0000') + G('v_mov_b32 v%d, 0' % (q + 1)) + G('s_mov_b32 exec_lo, 0xffff') + G('v_mov_b32 v%d, 0' % q)
        A.append(g + G('s_mov_b64 exec, -1'))
    for b in range(2):
        for s_ in range(2):
            A('v_mfma_f32_16x16x32_bf16 %s, %s, %s, 0' % (q4(D[b][s_]), q4(Kf[b + s_]), q4(Qf[b])))
    for kt in range(3):
        A('ds_read_b64_tr_b16 v[%d:%d], v%d offset:%d' % (VA + 2 * kt, VA + 2 * kt + 1, vV, 16 * kt * QP))
        A('ds_read_b64_tr_b16 v[%d:%d], v%d offset:%d' % (VB + 2 * kt, VB + 2 * kt + 1, vV, 16 * kt * QP + 32))
    for b in range(2):
        for s_ in range(2):
            d = D[b][s_]
            A('v_cndmask_b32 v%d, v%d, v%d, s[76:77]' % (d, d + 1, d))
            A('v_cndmask_b32 v%d, v%d, v%d, s[76:77]' % (d + 1, d + 3, d + 2))
    for s_ in range(2):
        for k in range(2):
            def valid(i, g, s_=s_, k=k):
                r = 2 * k + (i & 1)
                dl = i - 4 * g - r + (16 if s_ == 0 else 0)
                return 0 <= dl <= 14
            g = G(setm('vcc', m64(valid)))
            g += G('v_cndmask_b32 v%d, v14, v%d, vcc' % (D[1][s_] + k, D[1][s_] + k))
            if s_ == 0: g += G('s_and_b32 vcc_lo, vcc_lo, s75\ns_and_b32 vcc_hi, vcc_hi, s75')
            g += G('v_cndmask_b32 v%d, v14, v%d, vcc' % (D[0][s_] + k, D[0][s_] + k))
            A.append(g)
    def cand(b): return [D[b][0], D[b][0] + 1, D[b][1], D[b][1] + 1]
    def xred(op, x0, x1, t):
        A('v_permlane16_swap_b32 v%d, v%d' % (x0, x1))
        A('%s v%d, v%d, v%d' % (op, x0, x0, x1))
        A('v_mov_b32 v%d, v%d' % (x1, x0))
        A('v_permlane32_swap_b32 v%d, v%d' % (x0, x1))
        A('%s v%d, v%d, v%d' % (op, x0, x0, x1))
        A('v_mov_b32 v%d, v%d' % (x1, x0))
        A('v_permlane16_swap_b32 v%d, v%d' % (x0, x1))
    for b in range(2):
        c = cand(b)
        A('v_max3_f32 v%d, v%d, v%d, v%d' % (tmp + b, c[0], c[1], c[2]))
        A('v_max_f32 v%d, v%d, v%d' % (tmp + b, tmp + b, c[3]))
    xred('v_max_f32', tmp, tmp + 1, None)
    for b in range(2): A('v_mul_f32 v%d, s79, v%d' % (tmp + b, tmp + b))
    for b in range(2):
        for c in cand(b): A('v_fma_f32 v%d, v%d, s79, -v%d' % (c, c, tmp + b))
    for b in range(2):
        for c in cand(b): A('v_exp_f32 v%d, v%d' % (c, c))
    for b in range(2):
        c = cand(b)
        A('v_add_f32 v%d, v%d, v%d' % (tmp + b, c[0], c[1]))
        A('v_add_f32 v%d, v%d, v%d' % (c[0] + 2, c[2], c[3]))
    for b in range(2): A('v_add_f32 v%d, v%d, v%d' % (tmp + b, tmp + b, cand(b)[0] + 2))
    xred('v_add_f32', tmp, tmp + 1, None)
    for b in range(2): A('v_rcp_f32 v%d, v%d' % (tmp + b, tmp + b))
    for b in range(2):
        for c in cand(b): A('v_mul_f32 v%d, v%d, v%d' % (c, c, tmp + b))
    for b in range(2):
        for k, c in enumerate(cand(b)): A('v_cvt_pk_bf16_f32 v%d, v%d, 0' % (Pk[b] + k, c))
    for b in range(2):
        for k in range(4): A('v_lshlrev_b32 v%d, v15, v%d' % (Pk[b] + k, Pk[b] + k))
    for b in range(2):
        A('v_mfma_f32_16x16x32_bf16 %s, %s, %s, 0' % (q4(O[b][0]), q4(VA + 2 * b), q4(Pk[b])))
        A('v_mfma_f32_16x16x32_bf16 %s, %s, %s, 0' % (q4(O[b][1]), q4(VB + 2 * b), q4(Pk[b])))
    for b in range(2):
        o = O[b][0]; p = O[b][1]
        A('v_cvt_pk_bf16_f32 v%d, v%d, v%d' % (o, o, o + 1))
        A('v_cvt_pk_bf16_f32 v%d, v%d, v%d' % (o + 1, o + 2, o + 3))
        A('v_cvt_pk_bf16_f32 v%d, v%d, v%d' % (p, p, p + 1))
        if h: A('v_cvt_pk_bf16_f32 v%d, v%d, v%d' % (p + 1, p + 2, p + 3))
        g = G('buffer_store_dword v%d, v13, s[28:31], s%d offen' % (o + 1, 69 + b) + STFLAG)
        if h: g += G('s_mov_b32 exec_lo, 0xffff0000')
        g += G('buffer_store_dword v%d, v12, s[28:31], s%d offen' % (o, 69 + b) + STFLAG)
        g += G('s_mov_b64 exec, 0xffff')
        g += G('buffer_store_dword v%d, v%d, s[28:31], s%d offen' % (p, vRowOnly, 71 + b) + STFLAG)
        if h: g += G('buffer_store_dword v%d, v%d, s[28:31], s%d offen' % (p + 1, vRowOnly, 73 + b) + STFLAG)
        g += G('s_mov_b64 exec, -1')
        A.append(g)
    return A

def epi_z2(h, nt, acc):
    E = Stream()
    E.append(G("""
    v_and_b32 v10, 15, v1
    v_lshlrev_b32 v11, 3, v10
    s_lshl_b32 s98, s51, 5
    v_add_u32 v10, s98, v10
    v_mul_u32_u24 v10, %d, v10
    v_lshrrev_b32 v12, 4, v1
    v_lshlrev_b32 v12, 3, v12
    s_mov_b32 s98, %d
    v_add3_u32 v10, v10, v12, s98
    """ % (ZP, ZB_OFF)))
    for b in range(2):
        for c in range(nt):
            T = c + 4 * h
            a = acc(c, b)
            gelu4(E, a, 12)
            o = a if c % 2 == 0 else acc(c - 1, b) + 2
            E('v_cvt_pk_bf16_f32 v%d, v%d, v%d' % (o, a, a + 1))
            E('v_cvt_pk_bf16_f32 v%d, v%d, v%d' % (o + 1, a + 2, a + 3))
            E('ds_write_b64 v10, v[%d:%d] offset:%d' % (o, o + 1, 16 * b * ZP + 32 * T), tok_w=['ZB'])
            if c == 4:
                E('v_mov_b32 v%d, 0' % (a + 2))
                E('v_mov_b32 v%d, 0' % (a + 3))
    for k in range(4): E('v_mov_b32 v%d, s82' % (12 + k))
    D1 = [acc(1, 0), acc(1, 1)]; D2 = [acc(3, 0), acc(3, 1)]
    for c in range(0, nt, 2):
        for b in range(2):
            p = q4(acc(c, b))
            E('v_mfma_f32_16x16x32_bf16 %s, v[12:15], %s, %s' % (q4(D1[b]), p, '0' if c == 0 else q4(D1[b])))
            E('v_mfma_f32_16x16x32_bf16 %s, %s, %s, %s' % (q4(D2[b]), p, p, '0' if c == 0 else q4(D2[b])))
    g = G(setm('vcc', m64(lambda i, g: i & 1)))
    for b in range(2):
        g += G('v_cndmask_b32 v%d, v%d, v%d, vcc' % (D2[b], D2[b], D2[b] + 1))
        g += G('v_cndmask_b32 v%d, v%d, v%d, vcc' % (D2[b] + 2, D2[b] + 2, D2[b] + 3))
    g += G(setm('vcc', m64(lambda i, g: i & 2)))
    for b in range(2):
        g += G('v_cndmask_b32 v%d, v%d, v%d, vcc' % (D1[b] + 1, D2[b], D2[b] + 2))
    g += G("""
    s_lshl_b32 s99, s48, 4
    s_add_u32 s99, s99, s49
    s_lshl_b32 s99, s99, 11
    s_lshl_b32 s98, s51, 8
    s_add_u32 s99, s99, s98
    s_add_u32 s99, s99, %d
    """ % (1024 * h)) + G(setm('exec', m64(lambda i, g: g == i >> 2)))
    for b in range(2):
        g += G('buffer_store_dwordx2 v[%d:%d], v11, s[40:43], s99 offen offset:%d sc0 sc1' % (D1[b], D1[b] + 1, 128 * b), tok_w=['PUB'])
    g += G('s_mov_b64 exec, -1')
    E.append(g)
    return E

def norm_z2(h, n2):
    S = Stream()
    pl = XF; zf = XF + 32; tb = XF + 52; a0 = XF + 56
    S("""
    v_lshrrev_b32 v%d, 4, v1
    v_lshlrev_b32 v%d, 13, v%d
    v_and_b32 v%d, 15, v1
    v_lshl_add_u32 v%d, v%d, 4, v%d
    s_lshl_b32 s9, s48, 15
    s_lshl_b32 s10, s51, 8
    s_add_u32 s9, s9, s10
    s_add_u32 s10, s9, 4096
    """ % (a0, a0, a0, a0 + 1, a0, a0 + 1, a0))
    for k in range(8):
        S('buffer_load_dwordx4 %s, v%d, s[40:43], s%d offen offset:%d sc0 sc1' % (q4(pl + 4 * k), a0, 9 if k < 4 else 10, (k & 3) * 1024))
    A = S
    S = Stream()
    S("""
    v_lshrrev_b32 v{z}, 4, v1
    v_lshlrev_b32 v{r}, 6, v{z}
    v_lshlrev_b32 v{z}, 3, v{z}
    v_bfe_u32 v{t}, v1, 2, 2
    v_add_u32 v{z}, v{z}, v{t}
    s_lshl_b32 s9, s51, 5
    v_add_u32 v{z}, s9, v{z}
    v_mul_u32_u24 v{z}, {ZP}, v{z}
    v_and_b32 v{t}, 3, v1
    v_lshl_add_u32 v{z}, v{t}, 3, v{z}
    v_add_u32 v{z}, {ZB}, v{z}
    """.format(z=a0 + 2, r=a0 + 3, t=tb, ZP=ZP, ZB=ZB_OFF))
    S.need('ZB')
    for c in range(n2):
        T = c + 4 * h
        for hh in range(2):
            S('ds_read_b64_tr_b16 v[%d:%d], v%d offset:%d' % (zf + 4 * c + 2 * hh, zf + 4 * c + 2 * hh + 1, a0 + 2, hh * 4 * ZP + 32 * T))
    S("""
    s_lshl_b32 s9, s50, 8
    s_add_u32 s9, s9, {SB}
    v_lshlrev_b32 v{w}, 4, v{w}
    v_add_u32 v{w}, s9, v{w}
    v_add_u32 v{r}, s9, v{r}
    v_lshlrev_b32 v10, 4, v1
    v_xor_b32 v11, 64, v10
    s_lshl_b32 s12, s49, 6
    s_lshl_b32 s13, s48, 2
    s_add_u32 s12, s12, s13
    s_add_u32 s12, s12, s51
    s_mul_i32 s12, s12, 9216
    s_add_u32 s12, s12, {o}
    s_add_u32 s13, s12, 4096
    s_mov_b32 s11, 0x{inv:x}
    """.format(SB=SB_OFF, w=a0 + 1, r=a0 + 3, o=4 * h * 1024, inv=fbits(1.0 / 2304)))
    for k in range(4):
        for e in range(4): S('v_add_f32 v%d, v%d, v%d' % (pl + 4 * k + e, pl + 4 * k + e, pl + 16 + 4 * k + e))
    for k in range(2):
        for e in range(4): S('v_add_f32 v%d, v%d, v%d' % (pl + 4 * k + e, pl + 4 * k + e, pl + 8 + 4 * k + e))
    for e in range(4): S('v_add_f32 v%d, v%d, v%d' % (pl + e, pl + e, pl + 4 + e))
    for sw in ('v_permlane16_swap_b32', 'v_permlane32_swap_b32'):
        for k in range(4): S('v_mov_b32 v%d, v%d' % (pl + 4 + k, pl + k))
        for k in range(4): S('%s v%d, v%d' % (sw, pl + k, pl + 4 + k))
        for k in range(4): S('v_add_f32 v%d, v%d, v%d' % (pl + k, pl + k, pl + 4 + k))
    for r in (pl, pl + 2): rowstats(S, r, tb, 's11')
    S('ds_write_b128 v%d, %s' % (a0 + 1, q4(pl)), tok_w=['SB'])
    S.need('SB')
    sr = pl + 16
    for k in range(4): S('ds_read_b128 %s, v%d offset:%d' % (q4(sr + 4 * k), a0 + 3, 16 * k))
    for c in range(n2):
        T = c + 4 * h
        for d in range(4):
            r = zf + 4 * c + d
            t = tb + 2 * (d & 1)
            S('v_lshlrev_b32 v%d, 16, v%d' % (t, r))
            S('v_and_b32 v%d, 0xffff0000, v%d' % (t + 1, r))
            S('v_fma_f32 v%d, v%d, v%d, v%d' % (t, t, sr + 4 * d, sr + 4 * d + 1))
            S('v_fma_f32 v%d, v%d, v%d, v%d' % (t + 1, t + 1, sr + 4 * d + 2, sr + 4 * d + 3))
            S('v_cvt_pk_bf16_f32 v%d, v%d, v%d' % (r, t, t + 1))
        S('buffer_store_dwordx4 %s, v%d, s[36:39], s%d offen offset:%d' % (q4(zf + 4 * c), 11 if T & 1 else 10, 12 if c < 4 else 13, (c & 3) * 1024))
    return A, S

def tail(S, h, ntile, acc, stamp):
    S('''
    s_lshl_b32 s63, s48, 3
    s_lshl_b32 s98, s51, 1
    s_add_u32 s63, s63, s98
    s_mul_i32 s63, s63, 72
    s_mul_i32 s98, s49, 9
    s_add_u32 s98, s98, s52
    s_lshr_b32 s98, s98, 1
    s_add_u32 s63, s63, s98
    s_lshl_b32 s69, s63, 10
    s_add_u32 s70, s69, 73728
    s_cmp_eq_u32 s52, 0
    s_cselect_b32 s63, 4608, 0
    s_sub_u32 s63, s63, 512
    s_add_u32 s71, s69, s63
    s_add_u32 s72, s70, s63
    ''')
    G1 = OPT.get('gelu1', False)
    for p in range(2):
        for b in range(2):
            a0 = acc(2, 2 * p, b); a1 = acc(2, 2 * p + 1, b)
            if G1: gelu4(S, a0, S1); gelu4(S, a1, S1 + 4)
            o = S1 + 8 + 4 * (2 * p + b)
            S('v_cvt_pk_bf16_f32 v%d, v%d, v%d' % (o, a0, a0 + 1))
            S('v_cvt_pk_bf16_f32 v%d, v%d, v%d' % (o + 1, a0 + 2, a0 + 3))
            S('v_cvt_pk_bf16_f32 v%d, v%d, v%d' % (o + 2, a1, a1 + 1))
            S('v_cvt_pk_bf16_f32 v%d, v%d, v%d' % (o + 3, a1 + 2, a1 + 3))
            for d in range(2): S('v_permlane32_swap_b32 v%d, v%d' % (o + d, o + 2 + d))
            for d in range(2): S('v_permlane16_swap_b32 v%d, v%d' % (o + d, o + 2 + d))
            S('buffer_store_dwordx4 %s, v10, s[32:35], s%d offen offset:%d' % (q4(o), 69 + b, (2 * h + p) * 1024))
    if h == 0:
        S('''
        v_lshrrev_b32 v12, 5, v1
        v_lshlrev_b32 v12, 8, v12
        v_and_b32 v13, 15, v1
        v_lshl_add_u32 v12, v13, 4, v12
        v_bfe_u32 v13, v1, 4, 1
        v_lshl_add_u32 v12, v13, 3, v12
        ''')
        for b in range(2):
            a0 = acc(2, 4, b)
            if G1: gelu4(S, a0, S1)
            o = S1 + 24 + 2 * b
            S('v_cvt_pk_bf16_f32 v%d, v%d, v%d' % (o, a0, a0 + 1))
            S('v_cvt_pk_bf16_f32 v%d, v%d, v%d' % (o + 1, a0 + 2, a0 + 3))
            S('buffer_store_dwordx2 v[%d:%d], v12, s[32:35], s%d offen' % (o, o + 1, 71 + b))
    if stamp:
        stamp_mid(S, 96)
        S('s_waitcnt vmcnt(0)')
        stamp_mid(S, 70)
        stamp_store(S, 84, [86, 88, 90, 92, 94, 96, 70], 14, 0, 72, 12)
    if h == 1: S('K1_END:')
    S('s_endpgm')
```

```python
from common import *
K3_P = 272
RED = 0
FLAG = 159744
def k3_body(S, stamp=False, early=2, sleep=12, own=True, pre=0, red2=False, sched=None, bars=None, rot=0, mega=False):
    ACC = 8; AR = 88; WF = 168
    vA = (200, 201, 202, 203, 204); vW = (205, 206, 207, 208); vT = (209, 210, 211, 212); vT2 = (232, 233, 234, 235)
    XR = 216; vO = 213; vR = 214
    NW = 8
    sr = (lambda r: r + 6) if mega else (lambda r: r)
    sbase = 84 if mega else 60
    def acc(ct, a): r = ACC + (ct * 5 + a) * 4; return 'v[%d:%d]' % (r, r + 3)
    def fa(s, a): r = AR + s * 20 + a * 4; return 'v[%d:%d]' % (r, r + 3)
    def fw(s, ct): r = WF + s * 16 + ct * 4; return r
    S('''
    s_load_dwordx2 s[4:5], s[0:1], 0
    s_load_dwordx2 s[6:7], s[0:1], 16
    s_load_dwordx4 s[64:67], s[0:1], 56
    s_and_b32 s43, s2, 7
    s_lshr_b32 s46, s2, 3
    s_mul_i32 s47, s43, 29
    s_min_u32 s43, s43, 2
    s_add_u32 s47, s47, s43
    s_add_u32 s47, s47, s46          ; tile
    s_mul_hi_u32 s32, s47, 0x1c71c71d ; mt
    s_mul_i32 s46, s32, 9
    s_sub_u32 s33, s47, s46          ; nt
    s_mul_i32 s46, s32, 460800
    v_lshlrev_b32 v3, 4, v2
    v_add_u32 v%d, s46, v3
    ''' % vA[0])
    for a in range(1, 5):
        S('v_add_u32 v%d, %d, v%d' % (vA[a], 92160 * a, vA[0]))
    S('''
    v_lshrrev_b32 v3, 3, v2
    v_and_b32 v4, 2, v3
    v_and_b32 v5, 7, v2
    v_xor_b32 v5, v5, v4
    v_lshlrev_b32 v5, 4, v5
    v_mul_u32_u24 v3, 1152, v3
    s_lshl_b32 s46, s33, 7
    v_add3_u32 v%d, v3, v5, s46
    v_xor_b32 v5, 64, v5
    v_add3_u32 v6, v3, v5, s46
    v_add_u32 v%d, %d, v6
    v_add_u32 v%d, %d, v%d
    v_add_u32 v%d, %d, v6
    s_lshl_b32 s49, s34, 12          ; wave part of the ring address
    s_mul_i32 s36, s34, 36864        ; W row offset of k-frag w
    s_lshl_b32 s38, s34, 10          ; A offset of k-frag w
    s_waitcnt lgkmcnt(0)
    ''' % (vW[0], vW[1], 9216 - 1024, vW[2], 2 * (9216 - 1024), vW[0], vW[3], 3 * (9216 - 1024)))
    S('s_mul_i32 s57, s33, %d\ns_mov_b32 s58, s57' % rot)
    srd(S, 16, 8, 9, AP_SZ, AP_OFF)
    srd(S, 20, 6, 7, 576 * 1152)
    srd(S, 12, 64, 65, 2304 * 1152)
    def wload(q):
        P = Stream()
        if q <= 3: srdn, off = '20:23', 4 * q * 36864
        elif q >= 5: srdn, off = '12:15', (4 * q - 18) * 36864
        if q == 4:
            P('''s_cmp_lt_u32 s34, 2
            s_cselect_b32 s76, s20, s12
            s_cselect_b32 s77, s21, s13
            s_cselect_b32 s78, s22, s14
            s_mov_b32 s79, 0x00020000
            s_cselect_b32 s37, %d, 0
            s_add_u32 s37, s37, s36
            s_sub_u32 s37, s37, %d''' % (18 * 36864, 2 * 36864))
            srdn = '76:79'
        elif rot and q >= 5:
            P('''s_mul_i32 s37, s57, %d
            s_add_u32 s37, s37, s36
            s_add_u32 s37, s37, %d
            s_add_u32 s57, s57, 1
            s_cmp_eq_u32 s57, 18
            s_cselect_b32 s57, 0, s57''' % (4 * 36864, 2 * 36864))
        else:
            P('s_add_u32 s37, s36, %d' % off)
        P('s_add_u32 m0, s49, %d' % ((q % NW) * 16384))
        for j in range(4):
            P('buffer_load_dwordx4 v%d, s[%s], s37 offen offset:%d lds' % (vW[j], srdn, j * 1024), tok_w=['W%d' % (q % NW)])
        return P
    def aload(q):
        P = Stream()
        if rot and q >= 5:
            P('''s_lshl_b32 s39, s58, 12
            s_add_u32 s39, s39, s38
            s_add_u32 s39, s39, %d
            s_cmp_lt_u32 s39, %d
            s_cselect_b32 s39, s39, 0x7f000000
            s_add_u32 s58, s58, 1
            s_cmp_eq_u32 s58, 18
            s_cselect_b32 s58, 0, s58''' % (20 * 1024, 90 * 1024))
        else:
            P('s_add_u32 s39, s38, %d' % (4 * q * 1024))
        if q == 22 and not rot:
            P('s_cmp_lt_u32 s34, 2')
            P('s_cselect_b32 s39, s39, 0x7f000000')
        for a in range(5):
            P('buffer_load_dwordx4 %s, v%d, s[16:19], s39 offen%s' % (fa(q & 3, a), vA[a], ' sc1' if q >= 4 or mega else ''))
        return P
    NQ = 23
    def do(names):
        for nm in names: S.extend(wload(int(nm[1:])) if nm[0] == 'W' else aload(int(nm[1:])))
    done = set()
    if sched:
        do(sched[0]); done.update(sched[0])
    else:
        for q in range(early): S.extend(wload(q)); S.extend(aload(q))
    S('''
    v_lshrrev_b32 v3, 4, v2          ; g
    v_bfe_u32 v4, v2, 2, 2           ; r
    v_and_b32 v5, 3, v2              ; c
    v_lshl_add_u32 v6, v3, 3, v4     ; 8g + r
    v_lshlrev_b32 v6, 7, v6
    v_add_u32 v6, s49, v6
    v_and_b32 v7, 1, v5
    v_lshl_add_u32 v6, v7, 3, v6     ; + (c&1)*8
    v_lshrrev_b32 v5, 1, v5
    v_lshl_add_u32 v6, v5, 4, v6     ; + (c>>1)*16
    v_and_b32 v4, 2, v4
    v_and_b32 v3, 1, v3
    v_lshl_or_b32 v4, v3, 2, v4      ; f
    v_lshlrev_b32 v4, 4, v4
    ''')
    for ct in range(4):
        if red2:
            S('s_add_u32 s46, s34, %d\ns_and_b32 s46, s46, 3\ns_lshl_b32 s46, s46, 5\nv_xor_b32 v5, s46, v4' % ct)
        else:
            S('v_xor_b32 v5, %d, v4' % (32 * ct))
        S('v_add_u32 v%d, v5, v6' % vT[ct])
        S('v_add_u32 v%d, 65536, v%d' % (vT2[ct], vT[ct]))
    srd(S, 24, 4, 5, 2048 * 1152)
    srd(S, 28, 66, 67, 2048 * 1152)
    if not mega: srd(S, 72, 8, 9, CN_SZ, CN_OFF)
    S('''
    s_lshl_b32 s46, s34, 6
    v_add_u32 v0, s46, v2
    v_lshrrev_b32 v3, 3, v0
    s_mul_i32 s46, s32, 80
    v_add_u32 v4, s46, v3
    v_mul_u32_u24 v4, 1152, v4
    v_and_b32 v5, 7, v0
    v_lshlrev_b32 v6, 4, v5
    s_lshl_b32 s47, s33, 7
    v_add3_u32 v%d, v4, v6, s47
    v_mul_u32_u24 v3, %d, v3
    v_lshlrev_b32 v5, 5, v5
    v_add_u32 v%d, v3, v5
    s_add_u32 s47, s46, 79
    s_min_u32 s47, s47, 2047
    s_lshr_b32 s46, s46, 7
    s_lshr_b32 s47, s47, 7
    s_lshl_b32 s46, s46, 8
    s_lshl_b32 s47, s47, 8
    v_mov_b32 v228, s46
    v_mov_b32 v229, s47
    v_mov_b32 v230, %d
    s_mov_b32 s52, 0
    s_mov_b32 s53, %d
    s_mov_b32 s54, %d
    ''' % (vO, K3_P, vR, FLAG, 32 * 1152, 64 * 1152))
    if red2:
        S('''v_and_b32 v3, 15, v2
        s_mul_i32 s46, s32, 80
        v_add_u32 v4, s46, v3
        v_mul_u32_u24 v4, 1152, v4
        v_lshrrev_b32 v5, 4, v2
        v_lshlrev_b32 v5, 3, v5
        s_lshl_b32 s47, s33, 7
        s_lshl_b32 s46, s34, 5
        s_add_u32 s47, s47, s46
        v_add3_u32 v%d, v4, v5, s47''' % vO)
        for a in range(5): S('s_mov_b32 s%d, %d' % (52 + a, a * 16 * 1152))
    if sched:
        for k in range(2):
            bars[k](S)
            do(sched[k + 1]); done.update(sched[k + 1])
    S('s_barrier')
    if sched:
        do(sched[3]); done.update(sched[3])
    def ownwait():
        S('''s_mov_b32 s41, 1
        K3_OWN:
        ds_read_b32 v236, v230
        s_waitcnt lgkmcnt(0)
        s_add_u32 s41, s41, 1
        v_readfirstlane_b32 s42, v236
        s_cmp_ge_u32 s42, 4
        s_cbranch_scc1 K3_OWNED
        s_sleep 2
        s_cmp_lt_u32 s41, 0x400000
        s_cbranch_scc1 K3_OWN
        K3_OWNED:''')
    def trreads(ws, q):
        g = []
        slot = q % NW
        for ct in range(4):
            for h in range(2):
                r = fw(ws, ct) + 2 * h
                g.append(G('ds_read_b64_tr_b16 v[%d:%d], v%d offset:%d' % (r, r + 1, (vT2 if slot >= 4 else vT)[ct], (slot & 3) * 16384 + h * 512)))
        return g
    def mf(ws, q):
        m = Stream()
        for ct in range(4):
            for a in range(5):
                r = fw(ws, ct)
                m('v_mfma_f32_16x16x32_bf16 %s, v[%d:%d], %s, %s' % (acc(ct, a), r, r + 3, fa(q & 3, a), '0' if q == 0 else acc(ct, a)))
        return m
    S.need('W0')
    for g in trreads(0, 0): S.extend(g)
    if stamp:
        stamp_mid(S, sr(82)); S('s_waitcnt lgkmcnt(0)')
    for q in range(NQ):
        if q == pre:
            if own:
                S.append(('SAVEQ',)); ownwait(); S.append(('RESETQ',))
            if sched:
                do([x for k in range(8 + pre) for x in ('W%d' % k, 'A%d' % k) if x not in done and (x[0] == 'W' or k < 4)])
            else:
                for k in range(early, 4): S.extend(wload(k)); S.extend(aload(k))
                for k in range(4, 8 + pre): S.extend(wload(k))
        if q == 4:
            S.append(('SAVEQ',))
            if stamp: stamp_mid(S, sr(84))
            S('''
            s_mov_b32 s41, 0
            s_cmp_lg_u32 s34, 0
            s_cbranch_scc1 K3_WAITL
            K3_POLL:
            POLLBODY
            s_sleep %d
            s_cmp_lt_u32 s41, 0x20000
            s_cbranch_scc1 K3_POLL
            K3_SET:
            v_mov_b32 v236, 1
            ds_write_b32 v230, v236 offset:4
            s_branch K3_GO
            K3_WAITL:
            ds_read_b32 v236, v230 offset:4
            s_waitcnt lgkmcnt(0)
            s_add_u32 s41, s41, 1
            v_readfirstlane_b32 s42, v236
            s_cmp_lg_u32 s42, 0
            s_cbranch_scc1 K3_GO
            s_sleep 1
            s_cmp_lt_u32 s41, 0x400000
            s_cbranch_scc1 K3_WAITL
            K3_GO:
            '''.strip().replace('POLLBODY', '''buffer_load_dword v236, v238, s[72:75], s59 offen sc1
            s_waitcnt vmcnt(0)
            v_cmp_ne_u32 vcc, 1, v236
            s_add_u32 s41, s41, 1
            s_cmp_eq_u32 vcc_lo, 0
            s_cbranch_scc1 K3_SET''' if mega else '''buffer_load_dword v236, v228, s[72:75], 0 offen sc1
            buffer_load_dword v237, v229, s[72:75], 0 offen sc1
            s_waitcnt vmcnt(0)
            v_min_u32 v236, v236, v237
            s_add_u32 s41, s41, 1
            v_readfirstlane_b32 s42, v236
            s_cmp_ge_u32 s42, 16
            s_cbranch_scc1 K3_SET''') % sleep)
            S.append(('RESETQ',))
            if stamp:
                stamp_mid(S, sr(86)); S('s_waitcnt lgkmcnt(0)')
            for k in (4, 5, 6): S.extend(aload(k))
        if q > pre and q + 7 < NQ: S.extend(wload(q + 7))
        if q >= 4 and q + 3 < NQ: S.extend(aload(q + 3))
        if q == NQ - 3:
            for rd in range(3 if not red2 else 0):
                S('buffer_load_dwordx4 v[%d:%d], v%d, s[24:27], s%d offen' % (XR + 4 * rd, XR + 4 * rd + 3, vO, 52 + rd))
            for a in range(5 if red2 else 0):
                S('buffer_load_dwordx2 v[%d:%d], v%d, s[24:27], s%d offen' % (XR + 2 * a, XR + 2 * a + 1, vO, 52 + a))
        g = []
        if q + 1 < NQ:
            n = Stream(); n.need('W%d' % ((q + 1) % NW))
            g = trreads((q + 1) & 1, q + 1)
            g[0] = list(n) + g[0]
        S.extend(weave(mf(q & 1, q), g, 2, 14))
    if stamp: stamp_mid(S, sr(88))
    E = S
    if red2:
        E("""
        v_lshlrev_b32 v3, 4, v2
        s_mul_i32 s46, s34, 15360
        v_add_u32 v4, s46, v3
        s_barrier
        """)
        for d in range(1, 4):
            E("""s_add_u32 s47, s34, %d
            s_and_b32 s47, s47, 3
            s_mul_i32 s47, s47, 15360
            v_add_u32 v5, s47, v3""" % d)
            for a in range(5):
                E('ds_write_b128 v5, %s offset:%d' % (acc(d, a), (d - 1) * 5120 + a * 1024), tok_w=['RED'])
        E.need('RED')
        E('s_barrier')
        for d in range(3):
            for a in range(5):
                r = AR + (d * 5 + a) * 4
                E('ds_read_b128 v[%d:%d], v4 offset:%d' % (r, r + 3, d * 5120 + a * 1024))
        for a in range(5):
            o = ACC + a * 4
            for e in range(4):
                E('v_add_f32 v%d, v%d, v%d' % (o + e, o + e, AR + a * 4 + e))
                E('v_add_f32 v%d, v%d, v%d' % (AR + 20 + a * 4 + e, AR + 20 + a * 4 + e, AR + 40 + a * 4 + e))
            for d in range(2):
                x = XR + 2 * a + d
                E('v_lshlrev_b32 v5, 16, v%d' % x)
                E('v_and_b32 v6, 0xffff0000, v%d' % x)
                E('v_add_f32 v%d, v%d, v%d' % (o + 2 * d, o + 2 * d, AR + 20 + a * 4 + 2 * d))
                E('v_add_f32 v%d, v%d, v%d' % (o + 2 * d + 1, o + 2 * d + 1, AR + 21 + a * 4 + 2 * d))
                E('v_add_f32 v5, v5, v%d' % (o + 2 * d))
                E('v_add_f32 v6, v6, v%d' % (o + 2 * d + 1))
                E('v_cvt_pk_bf16_f32 v%d, v5, v6' % x)
            E('buffer_store_dwordx2 v[%d:%d], v%d, s[28:31], s%d offen' % (XR + 2 * a, XR + 2 * a + 1, vO, 52 + a))
    else:
        E('''
        v_and_b32 v3, 15, v2
        v_mul_u32_u24 v3, %d, v3
        v_lshrrev_b32 v4, 4, v2
        v_lshl_add_u32 v3, v4, 4, v3
        s_mul_i32 s46, s34, %d
        v_add_u32 v3, s46, v3
        s_barrier
        ''' % (K3_P, 80 * K3_P))
        for a in range(5):
            for ct in range(4):
                E('ds_write_b128 v3, %s offset:%d' % (acc(ct, a), a * 16 * K3_P + ct * 64), tok_w=['RED'])
        E.need('RED')
        E('s_barrier')
        for rd in range(3):
            if rd == 2:
                E('s_cmp_ge_u32 s34, 2')
                E('s_cbranch_scc1 K3_DONE')
            base = 88 + rd * 32
            for c in range(4):
                if c == 3: E('v_add_u32 v4, %d, v%d' % (3 * 80 * K3_P, vR))
                for hh in range(2):
                    r = base + c * 8 + hh * 4
                    off = rd * 32 * K3_P + hh * 16 + (c * 80 * K3_P if c < 3 else 0)
                    E('ds_read_b128 v[%d:%d], v%d offset:%d' % (r, r + 3, vR if c < 3 else 4, off))
            for e in range(8):
                E('v_add_f32 v%d, v%d, v%d' % (base + e, base + e, base + 8 + e))
                E('v_add_f32 v%d, v%d, v%d' % (base + 16 + e, base + 16 + e, base + 24 + e))
            for d in range(4):
                x = XR + 4 * rd + d
                E('v_lshlrev_b32 v5, 16, v%d' % x)
                E('v_and_b32 v6, 0xffff0000, v%d' % x)
                E('v_add_f32 v%d, v%d, v%d' % (base + 2 * d, base + 2 * d, base + 16 + 2 * d))
                E('v_add_f32 v%d, v%d, v%d' % (base + 2 * d + 1, base + 2 * d + 1, base + 17 + 2 * d))
                E('v_add_f32 v5, v5, v%d' % (base + 2 * d))
                E('v_add_f32 v6, v6, v%d' % (base + 2 * d + 1))
                E('v_cvt_pk_bf16_f32 v%d, v5, v6' % x)
            E('buffer_store_dwordx4 v[%d:%d], v%d, s[28:31], s%d offen' % (XR + 4 * rd, XR + 4 * rd + 3, vO, 52 + rd))
    E('K3_DONE:')
    if stamp:
        stamp_mid(E, sr(90))
        E('s_waitcnt vmcnt(0)')
        stamp_mid(E, sr(92))
        E('v_add_u32 v0, 256, v0')
        stamp_store(E, sbase, [sr(r) for r in (80, 82, 84, 86, 88, 90, 92)], 8, 1, 64, 4)
```

```python
from common import *
import k1, k1_v2
from k1_v2 import fbits, gelu4, C1, C2, q4
from k2 import epi_offsets
from k3f import k3_body
KNAME = 'parallel_sum__sliding_local_dilated__mixer_gmlp__prompt_kernel'
SLOT = 34816
FLG = 159744
ACC = 8; FS = (80, 124); Z1 = 168
vW = (40, 41, 42, 43); vZ = 44; vB0 = 209; vB1 = 210; vA0 = 211; vA1 = 212; vAs = 213; vP = 214; vS = 215

def transition(S):
    S('''s_mov_b32 s32, s48
    s_mov_b32 s33, s49
    s_mov_b32 s34, s51
    s_mov_b32 s48, s52
    s_lshl_b32 s49, s34, 12
    s_mov_b32 s8, s14
    s_mov_b32 s9, s15
    v_mov_b32 v2, v1
    v_and_b32 v3, 15, v2
    v_lshrrev_b32 v4, 4, v2
    v_lshlrev_b32 v%d, 4, v2''' % vP)
    srd(S, 72, 8, 9, 4 * FL_SZ, FL_OFF)
def signal(S, word, target, tag, stores):
    S('''v_mov_b32 v5, %d
    v_mov_b32 v6, 1
    s_waitcnt vmcnt(0) lgkmcnt(0)
    s_mov_b64 exec, 1
    ds_add_rtn_u32 v7, v5, v6 offset:%d
    s_waitcnt lgkmcnt(0)
    v_readfirstlane_b32 s47, v7
    s_cmp_lg_u32 s47, %d
    s_cbranch_scc1 %s
    v_mov_b32 v5, 0''' % (FLG, word, target - 1, tag))
    S.append(('SAVEQ',))
    for hi, lo, base in stores:
        S('''s_lshl_b32 s46, s%d, 8
        s_lshl_b32 s47, s%d, 2
        s_add_u32 s46, s46, s47
        s_add_u32 s46, s46, %d
        buffer_store_dword v6, v5, s[72:75], s46 offen sc1''' % (hi, lo, base))
    S.append(('RESETQ',))
    S('%s:' % tag)
    S('s_mov_b64 exec, -1')

class Mega:
    def __init__(self, stamp, gq=13, k3={}, zsleep=3):
        self.stamp = stamp; self.gq = gq; self.k3 = k3; self.zsleep = zsleep
    def cons_early(self, S):
        S('''s_load_dwordx2 s[28:29], s[0:1], 48
        s_mov_b32 s98, s30
        s_lshl_b32 s63, s48, 8
        s_lshl_b32 s99, s51, 6
        s_add_u32 s63, s63, s99
        v_and_b32 v218, 15, v1
        v_lshlrev_b32 v218, 1, v218'''.replace('s[28:29]', 's[32:33]').replace('s_mov_b32 s98, s30\n', ''))
        S('''s_mov_b32 s34, 4096
        s_mov_b32 s35, 0x00020000
        s_waitcnt lgkmcnt(0)
        buffer_load_ushort v216, v218, s[32:35], s63 offen
        buffer_load_ushort v217, v218, s[32:35], s63 offen offset:32''')
    def half_a(self, P, p, st):
        P('s_movk_i32 s37, %d' % (st * 128))
        P('s_add_u32 m0, s66, %d' % (p * SLOT))
        for q in range(4):
            P('buffer_load_dwordx4 v%d, s[4:7], s37 offen offset:%d lds' % (vW[q], q * 1024), tok_w=['P%d' % p])
    def half_b(self, P, p, st):
        P('s_mov_b32 s38, %d' % (st * 18432))
        P('s_add_u32 m0, s50, %d' % (p * SLOT))
        P('s_mov_b64 exec, s[44:45]')
        P('buffer_load_dwordx4 v%d, s[16:19], s38 offen sc1 lds' % vZ, tok_w=['P%d' % p])
        P('s_mov_b64 exec, -1')
        for q in range(4):
            P('buffer_load_dwordx4 v%d, s[16:19], s38 offen offset:%d sc1 lds' % (vZ, 512 + q * 1024), tok_w=['P%d' % p])
    def prod_early(self, S):
        S('''s_lshl_b32 s63, s48, 7
        s_lshl_b32 s66, s51, 5
        s_add_u32 s63, s63, s66
        v_lshrrev_b32 v45, 3, v1
        v_add_u32 v45, s63, v45
        v_lshlrev_b32 v45, 12, v45
        v_and_b32 v46, 7, v1
        v_lshrrev_b32 v47, 4, v1
        v_xor_b32 v46, v46, v47
        v_lshlrev_b32 v46, 4, v46
        v_add_u32 v%d, v45, v46
        v_xor_b32 v47, 64, v%d
        v_add_u32 v%d, 0x%x, v47
        v_add_u32 v%d, 0x%x, v%d
        v_add_u32 v%d, 0x%x, v47
        s_lshl_b32 s66, s51, 12''' % (vW[0], vW[0], vW[1], 0x8000 - 1024, vW[2], 0x10000 - 2048, vW[0], vW[3], 0x18000 - 3072))
        for p in range(2):
            P = Stream(); self.half_a(P, p, p)
            for x in P: S(x.text.replace('s37', 's63'), tok_w=x.tok_w)
    def producer(self, S):
        stamp = self.stamp
        S('K2_TEXT:')
        transition(S)
        S('''s_mul_i32 s46, s33, 589824
        s_mul_i32 s47, s34, 4608
        s_add_u32 s46, s46, s47
        v_add_u32 v%d, s46, v%d
        s_add_u32 s50, s47, 16384
        s_mov_b32 s44, -1
        s_mov_b32 s45, 0
        v_lshlrev_b32 v46, 2, v3
        s_lshl_b32 s59, s33, 8
        s_add_u32 s59, s59, 4096
        v_mov_b32 v47, %d''' % (vZ, vP, FLG))
        srd(S, 16, 8, 9, Z2P_SZ, Z2P_OFF)
        signal(S, 8, 8, 'K1_SIGH', [(33, 32, 4096), (32, 33, 8192)])
        S.append(('SAVEQ',))
        S('''s_mov_b32 s41, 0
        s_cmp_lg_u32 s34, 0
        s_cbranch_scc1 KZ_WAITL
        KZ_POLL:
        buffer_load_dword v45, v46, s[72:75], s59 offen sc1
        s_waitcnt vmcnt(0)
        v_cmp_ne_u32 vcc, 1, v45
        s_add_u32 s41, s41, 1
        s_cmp_eq_u32 vcc_lo, 0
        s_cbranch_scc1 KZ_SET
        s_sleep %d
        s_cmp_lt_u32 s41, 0x20000
        s_cbranch_scc1 KZ_POLL
        KZ_SET:
        v_mov_b32 v45, 1
        ds_write_b32 v47, v45 offset:12
        s_branch KZ_GO
        KZ_WAITL:
        ds_read_b32 v45, v47 offset:12
        s_waitcnt lgkmcnt(0)
        s_add_u32 s41, s41, 1
        v_readfirstlane_b32 s42, v45
        s_cmp_lg_u32 s42, 0
        s_cbranch_scc1 KZ_GO
        s_sleep 1
        s_cmp_lt_u32 s41, 0x400000
        s_cbranch_scc1 KZ_WAITL
        KZ_GO:''' % self.zsleep)
        S.append(('RESETQ',))
        self.half_b(S, 0, 0); self.half_b(S, 1, 1)
        S.need('P0')
        S('s_barrier')
        self.half_a(S, 2, 2); self.half_b(S, 2, 2); self.half_a(S, 3, 3)
        for n in range(29):
            p = n & 3
            S.need('P%d' % ((p + 1) & 3))
            S('s_barrier')
            self.half_b(S, (n + 3) & 3, n + 3)
            if n + 4 < 32: self.half_a(S, p, n + 4)
            if n == 20:
                S('''s_and_b32 s43, s2, 7
                s_lshr_b32 s46, s2, 3
                s_mul_i32 s47, s43, 29
                s_min_u32 s43, s43, 2
                s_add_u32 s47, s47, s43
                s_add_u32 s47, s47, s46
                s_mul_hi_u32 s46, s47, 0x1c71c71d
                s_mul_i32 s46, s46, 80
                s_add_u32 s47, s46, 79
                s_lshr_b32 s46, s46, 7
                s_lshr_b32 s47, s47, 7
                s_min_u32 s46, s46, 15
                s_min_u32 s47, s47, 15
                s_lshl_b32 s46, s46, 8
                s_lshl_b32 s47, s47, 8
                v_mov_b32 v238, s47
                v_mov_b32 v239, s46
                v_cmp_gt_u32 vcc, 16, v2
                v_cndmask_b32 v238, v238, v239, vcc
                v_add_u32 v238, v238, v46
                s_movk_i32 s59, 8192
                buffer_load_dword v236, v238, s[72:75], s59 offen sc1''')
            if n == 24:
                S('v_cmp_ne_u32 vcc, 1, v236')
                S.append(('SAVEQ',))
                S('''s_mov_b32 s41, 0
                KO_POLL:
                s_cmp_eq_u32 vcc_lo, 0
                s_cbranch_scc1 KO_OK
                s_sleep 8
                buffer_load_dword v236, v238, s[72:75], s59 offen sc1
                s_add_u32 s41, s41, 1
                s_waitcnt vmcnt(0)
                v_cmp_ne_u32 vcc, 1, v236
                s_cmp_lt_u32 s41, 0x20000
                s_cbranch_scc1 KO_POLL
                KO_OK:
                s_movk_i32 s59, 12288''')
                S.append(('RESETQ',))
        if stamp: stamp_mid(S, 86)
        S.append(('SAVEQ',))
        S('s_cmp_lt_u32 s2, 234\ns_cbranch_scc1 K3_START\ns_waitcnt vmcnt(0)\ns_barrier\ns_barrier\ns_barrier\ns_endpgm\nK3_START:')
        S.append(('RESETQ',))
        def mk(tok):
            def f(X):
                X.need(tok); X('s_barrier')
            return f
        k3_body(S, stamp, bars=[mk('P2'), mk('P3')], mega=True, **self.k3)
    def consumer(self):
        stamp = self.stamp
        S = Stream()
        def acc(a, b): r = ACC + (a * 2 + b) * 4; return 'v[%d:%d]' % (r, r + 3)
        def fB(s, b): r = FS[s] + b * 4; return 'v[%d:%d]' % (r, r + 3)
        def fA(s, a): r = FS[s] + 8 + a * 4; return 'v[%d:%d]' % (r, r + 3)
        S('K2_CONS:')
        transition(S)
        srd(S, 24, 8, 9, AP_SZ, AP_OFF)
        S('''
        v_lshrrev_b32 v5, 1, v3
        v_xor_b32 v5, v5, v4
        v_lshlrev_b32 v5, 4, v5
        v_lshlrev_b32 v6, 7, v3
        v_add3_u32 v%d, v5, v6, s49
        v_xor_b32 v%d, 64, v%d
        v_lshrrev_b32 v5, 3, v3
        v_add_u32 v5, s48, v5
        v_and_b32 v6, 1, v5
        v_lshlrev_b32 v6, 2, v6
        v_and_b32 v7, 3, v3
        v_bfe_u32 v1, v3, 2, 1
        v_lshl_add_u32 v7, v1, 3, v7
        v_xor_b32 v7, v7, v6
        v_lshl_add_u32 v7, v4, 4, v7
        v_lshlrev_b32 v7, 4, v7
        v_lshl_add_u32 v7, v5, 10, v7
        v_add_u32 v%d, 16384, v7
        v_xor_b32 v%d, 64, v%d
        s_cmp_eq_u32 s48, 0
        s_cselect_b32 s46, 8192, 0
        s_add_u32 s46, s46, 16384
        v_add_u32 v%d, s46, v%d
        v_lshrrev_b32 v5, 1, v4
        v_lshlrev_b32 v5, 8, v5
        v_lshl_add_u32 v5, v3, 4, v5
        v_and_b32 v6, 1, v4
        v_lshl_add_u32 v%d, v6, 3, v5
        ''' % (vB0, vB1, vB0, vA0, vA1, vA0, vAs, vP, vS))
        epi_offsets(S)
        S('v_lshlrev_b32 v216, 16, v216')
        S('v_lshlrev_b32 v217, 16, v217')
        for a in range(9):
            for b in range(2):
                for r in range(4):
                    S('v_mov_b32 v%d, v%d' % (ACC + (a * 2 + b) * 4 + r, 216 + b))
        HI = 224
        for k, r in enumerate((vB0, vB1, vA0, vA1, vAs)): S('v_add_u32 v%d, %d, v%d' % (HI + k, 2 * SLOT, r))
        signal(S, 8, 8, 'K1_SIGC', [(33, 32, 4096), (32, 33, 8192)])
        S('s_mov_b32 s78, 0x%x' % fbits(C1))
        S('v_mov_b32 v7, 0x%x' % fbits(C2))
        S('s_setprio 1')
        def reads(s, h, n):
            g = []
            hi = (n & 3) >> 1; so = (n & 1) * SLOT
            R = lambda r: r if not hi else HI + (vB0, vB1, vA0, vA1, vAs).index(r)
            vB = vB1 if h else vB0
            for b in range(2):
                g.append(I('ds_read_b128 %s, v%d offset:%d' % (fB(s, b), R(vB), so + b * 2048)))
            for a in range(9):
                if a < 8: g.append(I('ds_read_b128 %s, v%d offset:%d' % (fA(s, a), R(vA1 if a & 1 else vA0), so + h * 9216 + (a >> 1) * 2048)))
                else: g.append(I('ds_read_b128 %s, v%d offset:%d' % (fA(s, a), R(vAs), so + h * 9216)))
            return g
        def mfmas(s):
            m = Stream()
            for a in range(9):
                for b in range(2):
                    m('v_mfma_f32_16x16x32_bf16 %s, %s, %s, %s' % (acc(a, b), fA(s, a), fB(s, b), acc(a, b)))
            return m
        gw = []
        for k in range(18):
            g = Stream()
            p = Z1 + 2 * k; x = 232 + 8 * (k & 1)
            g('v_lshlrev_b32 v%d, 16, v%d' % (x, p))
            g('v_and_b32 v%d, 0xffff0000, v%d' % (x + 1, p))
            g('v_lshlrev_b32 v%d, 16, v%d' % (x + 2, p + 1))
            g('v_and_b32 v%d, 0xffff0000, v%d' % (x + 3, p + 1))
            gelu4(g, x, x + 4, c2=7)
            g('v_cvt_pk_bf16_f32 v%d, v%d, v%d' % (p, x, x + 1))
            g('v_cvt_pk_bf16_f32 v%d, v%d, v%d' % (p + 1, x + 2, x + 3))
            gw += list(g)
        npre = self.k3.get('gpre', 0) if False else 0
        if stamp: stamp_mid(S, 86)
        S('s_barrier')
        if stamp:
            stamp_mid(S, 88); S('s_waitcnt lgkmcnt(0)')
        S.extend(reads(0, 0, 0))
        def half(ms, rds):
            left = self.gq
            for k, m in enumerate(ms):
                S.append(m)
                room = 2
                if rds: S.append(rds.pop(0)); room = 1
                while gw and left > 0 and room > 0 and k < 17:
                    need = 2 if gw[0].kind == 'trans' else 1
                    if need > room: break
                    S.append(gw.pop(0)); room -= need; left -= 1
        for n in range(32):
            S('s_waitcnt lgkmcnt(0)')
            half(mfmas(0), reads(1, 1, n))
            S('s_waitcnt lgkmcnt(0)')
            S('s_barrier')
            half(mfmas(1), reads(0, 0, n + 1) if n < 31 else [])
        assert not gw
        E = S
        if stamp: stamp_mid(E, 90)
        for b in range(2):
            for p in range(5):
                nd = 4 if p < 4 else 2
                zr = Z1 + (b * 4 + p) * 4 if p < 4 else Z1 + 32 + b * 2
                for d in range(nd):
                    a = 2 * p + (d >> 1)
                    ar = ACC + (a * 2 + b) * 4 + (d & 1) * 2
                    t = 220 + (d & 1) * 2
                    E('v_lshlrev_b32 v%d, 16, v%d' % (t, zr + d))
                    E('v_and_b32 v%d, 0xffff0000, v%d' % (t + 1, zr + d))
                    E('v_pk_mul_f32 v[%d:%d], v[%d:%d], v[%d:%d]' % (t, t + 1, t, t + 1, ar, ar + 1))
                    E('v_cvt_pk_bf16_f32 v%d, v%d, v%d' % (zr + d, t, t + 1))
                if p < 4: E('buffer_store_dwordx4 v[%d:%d], v%d, s[24:27], s%d offen offset:%d sc1' % (zr, zr + 3, vP, 53 + b, p * 1024))
                else: E('buffer_store_dwordx2 v[%d:%d], v%d, s[24:27], s%d offen sc1' % (zr, zr + 1, vS, 57 + b))
        if stamp: stamp_mid(E, 92)
        signal(E, 0, 4, 'K2_NOSIG', [(32, 33, 12288)])
        if stamp:
            E('s_waitcnt vmcnt(0)')
            stamp_mid(E, 94)
            stamp_store(E, 84, [86, 88, 90, 92, 94], 8, 1, 64, 216, wave_s=34)
        E('s_endpgm')
        return S

def gen_mega(stamp=False, k1opt={}, **kw):
    M = Mega(stamp, **kw)
    k1_v2.STFLAG = ' sc1'
    txt, vg = k1.gen_k1(stamp=stamp, mega=M, **k1opt)
    k1_v2.STFLAG = ''
    F = Finisher()
    F.vmq, F.lgq = k1.OPT['cons_state']
    k1.emit(F, M.consumer())
    return txt + F.text(), 256
```

```python
import sys
from build import *
HDR = open('parallel_sum__sliding_local_dilated__mixer_gmlp__prompt.s.ref').read().split('; Override launch')[0]
def make(path, stamp=False, k1={}, k2={}, k3={}):
    t1, v1 = gen_k1(stamp=stamp, **k1)
    t2, v2 = gen_k2(stamp=stamp, **k2)
    t3, v3 = gen_k3(stamp=stamp, **k3)
    assemble_file(path, [('k1_kernel', t1, v1, 256, 512, K1_LDS), ('k2_kernel', t2, v2, 256, 512, K2_LDS), ('k3_kernel', t3, v3, 234, 256, K3_LDS)])
    s = open(path).read()
    open(path, 'w').write(HDR + s)
def makef(path, stamp=False, k1={}, k2={}):
    t1, v1 = gen_k1(stamp=stamp, **k1)
    t2, v2 = gen_k2(stamp=stamp, fuse=True, **k2)
    assemble_file(path, [('k1_kernel', t1, v1, 256, 512, K1_LDS), ('k2_kernel', t2, v2, 256, 512, K2_LDS)])
    s = open(path).read()
    open(path, 'w').write(HDR + s)
def makem(path, stamp=False, plain=True, **kw):
    import mega
    t, v = mega.gen_mega(stamp=stamp, **kw)
    t = t.replace("'k1_kernel'", mega.KNAME).replace('k1_kernel', mega.KNAME).replace('k2_kernel', 'K2_TEXT')
    assemble_file(path, [(mega.KNAME, t, v, 256, 512, K1_LDS)])
    s = open(path).read()
    if plain: s = s.replace('; @launch kernel=%s grid' % mega.KNAME, '; @launch grid')
    open(path, 'w').write(HDR + s)
if __name__ == '__main__':
    SCH = [['W0', 'W1'], ['W2', 'W3', 'A0'], ['A1', 'W4'], []]
    K2 = dict(prio=1, rot=False, xmap='84', pf=False, k3=dict(early=2, pre=1, sched=SCH))
    B = dict(budget=66, nc=4, pf3=1, pfc=[5, 8, 11, 14, 17, 20], cpf=1)
    makef('full_f.s', stamp=True, k1=B, k2=K2)
    makem('full_m.s', stamp=True, k1opt=B, k3=K2['k3'])
    makem('vm.s', k1opt=B, k3=K2['k3'])
    makem('full_n.s', stamp=True, k1opt=B, k3=K2['k3'], lazy=True)
    makem('vn.s', k1opt=B, k3=K2['k3'], lazy=True)
    makem('vo.s', k1opt=B, k3=K2['k3'], lazy=True, plain=False)
```

```python
from common import *
import k1, k1_v2
from k1_v2 import fbits, gelu4, C1, C2, q4
from k2 import epi_offsets
from k3f import k3_body
KNAME = 'parallel_sum__sliding_local_dilated__mixer_gmlp__prompt_kernel'
SLOT = 34816
FLG = 159744
ACC = 8; FS = (80, 124); Z1 = 168
vW = (40, 41, 42, 43); vZ = 44; vB0 = 209; vB1 = 210; vA0 = 211; vA1 = 212; vAs = 213; vP = 214; vS = 215

def transition(S):
    S('''s_mov_b32 s32, s48
    s_mov_b32 s33, s49
    s_mov_b32 s34, s51
    s_mov_b32 s48, s52
    s_lshl_b32 s49, s34, 12
    s_mov_b32 s8, s14
    s_mov_b32 s9, s15
    v_mov_b32 v2, v1
    v_and_b32 v3, 15, v2
    v_lshrrev_b32 v4, 4, v2
    v_lshlrev_b32 v%d, 4, v2''' % vP)
    srd(S, 72, 8, 9, 4 * FL_SZ, FL_OFF)
def signal(S, word, target, tag, stores):
    S('''v_mov_b32 v5, %d
    v_mov_b32 v6, 1
    s_waitcnt vmcnt(0) lgkmcnt(0)
    s_mov_b64 exec, 1
    ds_add_rtn_u32 v7, v5, v6 offset:%d
    s_waitcnt lgkmcnt(0)
    v_readfirstlane_b32 s47, v7
    s_cmp_lg_u32 s47, %d
    s_cbranch_scc1 %s
    v_mov_b32 v5, 0''' % (FLG, word, target - 1, tag))
    S.append(('SAVEQ',))
    for hi, lo, base in stores:
        S('''s_lshl_b32 s46, s%d, 8
        s_lshl_b32 s47, s%d, 2
        s_add_u32 s46, s46, s47
        s_add_u32 s46, s46, %d
        buffer_store_dword v6, v5, s[72:75], s46 offen sc1''' % (hi, lo, base))
    S.append(('RESETQ',))
    S('%s:' % tag)
    S('s_mov_b64 exec, -1')

class Mega:
    def __init__(self, stamp, gq=13, k3={}, zsleep=3, lazy=False):
        self.lazy = lazy; self.stamp = stamp; self.gq = gq; self.k3 = k3; self.zsleep = zsleep
    def cons_early(self, S):
        S('''s_load_dwordx2 s[28:29], s[0:1], 48
        s_mov_b32 s98, s30
        s_lshl_b32 s63, s48, 8
        s_lshl_b32 s99, s51, 6
        s_add_u32 s63, s63, s99
        v_and_b32 v218, 15, v1
        v_lshlrev_b32 v218, 1, v218'''.replace('s[28:29]', 's[32:33]').replace('s_mov_b32 s98, s30\n', ''))
        S('''s_mov_b32 s34, 4096
        s_mov_b32 s35, 0x00020000
        s_waitcnt lgkmcnt(0)
        buffer_load_ushort v216, v218, s[32:35], s63 offen
        buffer_load_ushort v217, v218, s[32:35], s63 offen offset:32''')
    def half_a(self, P, p, st):
        if self.lazy: P('s_xor_b32 s37, s60, %d' % (st * 128))
        else: P('s_movk_i32 s37, %d' % (st * 128))
        P('s_add_u32 m0, s66, %d' % (p * SLOT))
        for q in range(4):
            P('buffer_load_dwordx4 v%d, s[4:7], s37 offen offset:%d lds' % (vW[q], q * 1024), tok_w=['P%d' % p])
    def half_b(self, P, p, st):
        if self.lazy: P(('s_add_u32 s38, s61, %d' % (st * 18432)) if st < 16 else ('s_sub_u32 s38, %d, s61' % (st * 18432)))
        else: P('s_mov_b32 s38, %d' % (st * 18432))
        P('s_add_u32 m0, s50, %d' % (p * SLOT))
        P('s_mov_b64 exec, s[44:45]')
        P('buffer_load_dwordx4 v%d, s[16:19], s38 offen sc1 lds' % vZ, tok_w=['P%d' % p])
        P('s_mov_b64 exec, -1')
        for q in range(4):
            P('buffer_load_dwordx4 v%d, s[16:19], s38 offen offset:%d sc1 lds' % (vZ, 512 + q * 1024), tok_w=['P%d' % p])
    def prod_early(self, S):
        S('''s_lshl_b32 s63, s48, 7
        s_lshl_b32 s66, s51, 5
        s_add_u32 s63, s63, s66
        v_lshrrev_b32 v45, 3, v1
        v_add_u32 v45, s63, v45
        v_lshlrev_b32 v45, 12, v45
        v_and_b32 v46, 7, v1
        v_lshrrev_b32 v47, 4, v1
        v_xor_b32 v46, v46, v47
        v_lshlrev_b32 v46, 4, v46
        v_add_u32 v%d, v45, v46
        v_xor_b32 v47, 64, v%d
        v_add_u32 v%d, 0x%x, v47
        v_add_u32 v%d, 0x%x, v%d
        v_add_u32 v%d, 0x%x, v47
        s_lshl_b32 s66, s51, 12''' % (vW[0], vW[0], vW[1], 0x8000 - 1024, vW[2], 0x10000 - 2048, vW[0], vW[3], 0x18000 - 3072))
        S('s_lshr_b32 s62, s48, 3\ns_lshl_b32 s60, s62, 11\ns_mul_i32 s61, s62, 294912\ns_lshl_b32 s62, s62, 3')
        for p in range(2):
            P = Stream(); self.half_a(P, p, p)
            for x in P: S(x.text.replace('s37', 's63'), tok_w=x.tok_w)
    def producer(self, S):
        stamp = self.stamp
        S('K2_TEXT:')
        transition(S)
        S('''s_mul_i32 s46, s33, 589824
        s_mul_i32 s47, s34, 4608
        s_add_u32 s46, s46, s47
        v_add_u32 v%d, s46, v%d
        s_add_u32 s50, s47, 16384
        s_mov_b32 s44, -1
        s_mov_b32 s45, 0
        v_lshlrev_b32 v46, 2, v3
        s_lshl_b32 s59, s33, 8
        s_add_u32 s59, s59, 4096
        v_mov_b32 v47, %d''' % (vZ, vP, FLG))
        srd(S, 16, 8, 9, Z2P_SZ, Z2P_OFF)
        signal(S, 8, 8, 'K1_SIGH', [(33, 32, 4096), (32, 33, 8192)])
        S.append(('SAVEQ',))
        S('''s_mov_b32 s41, 0
        s_cmp_lg_u32 s34, 0
        s_cbranch_scc1 KZ_WAITL
        KZ_POLL:
        buffer_load_dword v45, v46, s[72:75], s59 offen sc1
        s_waitcnt vmcnt(0)
        v_cmp_ne_u32 vcc, 1, v45
        s_add_u32 s41, s41, 1
        s_lshr_b32 s65, vcc_lo, s62
        s_and_b32 s42, s65, MASK0
        s_cbranch_scc0 KZ_SET
        s_sleep %d
        s_cmp_lt_u32 s41, 0x20000
        s_cbranch_scc1 KZ_POLL
        KZ_SET:
        v_mov_b32 v45, 1
        ds_write_b32 v47, v45 offset:12
        s_branch KZ_GO
        KZ_WAITL:
        ds_read_b32 v45, v47 offset:12
        s_waitcnt lgkmcnt(0)
        s_add_u32 s41, s41, 1
        v_readfirstlane_b32 s42, v45
        s_cmp_lg_u32 s42, 0
        s_cbranch_scc1 KZ_GO
        s_sleep 1
        s_cmp_lt_u32 s41, 0x400000
        s_cbranch_scc1 KZ_WAITL
        KZ_GO:'''.replace('MASK0', '3' if self.lazy else '0xffff') % self.zsleep)
        S.append(('RESETQ',))
        self.half_b(S, 0, 0); self.half_b(S, 1, 1)
        S.need('P0')
        S('s_barrier')
        self.half_a(S, 2, 2); self.half_b(S, 2, 2); self.half_a(S, 3, 3)
        for n in range(29):
            p = n & 3
            if self.lazy and (n + 3) % 2 == 0 and n + 3 >= 4:
                k = (n + 3) >> 1
                S.append(('SAVEQ',))
                S('''s_cmp_lg_u32 s34, 0
                s_cbranch_scc1 KL_OK{k}
                s_mov_b32 s41, 0
                KL_POLL{k}:
                s_bitcmp1_b32 s65, {k}
                s_cbranch_scc0 KL_OK{k}
                buffer_load_dword v45, v46, s[72:75], s59 offen sc1
                s_add_u32 s41, s41, 1
                s_waitcnt vmcnt(0)
                v_cmp_ne_u32 vcc, 1, v45
                s_cmp_lt_u32 s41, 0x20000
                s_lshr_b32 s65, vcc_lo, s62
                s_sleep 1
                s_cmp_lt_u32 s41, 0x20000
                s_cbranch_scc1 KL_POLL{k}
                KL_OK{k}:'''.format(k=k))
                S.append(('RESETQ',))
            S.need('P%d' % ((p + 1) & 3))
            S('s_barrier')
            self.half_b(S, (n + 3) & 3, n + 3)
            if n + 4 < 32: self.half_a(S, p, n + 4)
            if n == 20:
                S('''s_and_b32 s43, s2, 7
                s_lshr_b32 s46, s2, 3
                s_mul_i32 s47, s43, 29
                s_min_u32 s43, s43, 2
                s_add_u32 s47, s47, s43
                s_add_u32 s47, s47, s46
                s_mul_hi_u32 s46, s47, 0x1c71c71d
                s_mul_i32 s46, s46, 80
                s_add_u32 s47, s46, 79
                s_lshr_b32 s46, s46, 7
                s_lshr_b32 s47, s47, 7
                s_min_u32 s46, s46, 15
                s_min_u32 s47, s47, 15
                s_lshl_b32 s46, s46, 8
                s_lshl_b32 s47, s47, 8
                v_mov_b32 v238, s47
                v_mov_b32 v239, s46
                v_cmp_gt_u32 vcc, 16, v2
                v_cndmask_b32 v238, v238, v239, vcc
                v_add_u32 v238, v238, v46
                s_movk_i32 s64, 8192
                buffer_load_dword v236, v238, s[72:75], s64 offen sc1''')
            if n == 24:
                S('v_cmp_ne_u32 vcc, 1, v236')
                S.append(('SAVEQ',))
                S('''s_mov_b32 s41, 0
                KO_POLL:
                s_cmp_eq_u32 vcc_lo, 0
                s_cbranch_scc1 KO_OK
                s_sleep 8
                buffer_load_dword v236, v238, s[72:75], s64 offen sc1
                s_add_u32 s41, s41, 1
                s_waitcnt vmcnt(0)
                v_cmp_ne_u32 vcc, 1, v236
                s_cmp_lt_u32 s41, 0x20000
                s_cbranch_scc1 KO_POLL
                KO_OK:''')
                S.append(('RESETQ',))
        S('s_movk_i32 s59, 12288')
        if stamp: stamp_mid(S, 86)
        S.append(('SAVEQ',))
        S('s_cmp_lt_u32 s2, 234\ns_cbranch_scc1 K3_START\ns_waitcnt vmcnt(0)\ns_barrier\ns_barrier\ns_barrier\ns_endpgm\nK3_START:')
        S.append(('RESETQ',))
        def mk(tok):
            def f(X):
                X.need(tok); X('s_barrier')
            return f
        k3_body(S, stamp, bars=[mk('P2'), mk('P3')], mega=True, **self.k3)
    def consumer(self):
        stamp = self.stamp
        S = Stream()
        def acc(a, b): r = ACC + (a * 2 + b) * 4; return 'v[%d:%d]' % (r, r + 3)
        def fB(s, b): r = FS[s] + b * 4; return 'v[%d:%d]' % (r, r + 3)
        def fA(s, a): r = FS[s] + 8 + a * 4; return 'v[%d:%d]' % (r, r + 3)
        S('K2_CONS:')
        transition(S)
        srd(S, 24, 8, 9, AP_SZ, AP_OFF)
        S('''
        v_lshrrev_b32 v5, 1, v3
        v_xor_b32 v5, v5, v4
        v_lshlrev_b32 v5, 4, v5
        v_lshlrev_b32 v6, 7, v3
        v_add3_u32 v%d, v5, v6, s49
        v_xor_b32 v%d, 64, v%d
        v_lshrrev_b32 v5, 3, v3
        v_add_u32 v5, s48, v5
        v_and_b32 v6, 1, v5
        v_lshlrev_b32 v6, 2, v6
        v_and_b32 v7, 3, v3
        v_bfe_u32 v1, v3, 2, 1
        v_lshl_add_u32 v7, v1, 3, v7
        v_xor_b32 v7, v7, v6
        v_lshl_add_u32 v7, v4, 4, v7
        v_lshlrev_b32 v7, 4, v7
        v_lshl_add_u32 v7, v5, 10, v7
        v_add_u32 v%d, 16384, v7
        v_xor_b32 v%d, 64, v%d
        s_cmp_eq_u32 s48, 0
        s_cselect_b32 s46, 8192, 0
        s_add_u32 s46, s46, 16384
        v_add_u32 v%d, s46, v%d
        v_lshrrev_b32 v5, 1, v4
        v_lshlrev_b32 v5, 8, v5
        v_lshl_add_u32 v5, v3, 4, v5
        v_and_b32 v6, 1, v4
        v_lshl_add_u32 v%d, v6, 3, v5
        ''' % (vB0, vB1, vB0, vA0, vA1, vA0, vAs, vP, vS))
        epi_offsets(S)
        S('v_lshlrev_b32 v216, 16, v216')
        S('v_lshlrev_b32 v217, 16, v217')
        for a in range(9):
            for b in range(2):
                for r in range(4):
                    S('v_mov_b32 v%d, v%d' % (ACC + (a * 2 + b) * 4 + r, 216 + b))
        HI = 224
        for k, r in enumerate((vB0, vB1, vA0, vA1, vAs)): S('v_add_u32 v%d, %d, v%d' % (HI + k, 2 * SLOT, r))
        signal(S, 8, 8, 'K1_SIGC', [(33, 32, 4096), (32, 33, 8192)])
        S('s_mov_b32 s78, 0x%x' % fbits(C1))
        S('v_mov_b32 v7, 0x%x' % fbits(C2))
        S('s_setprio 1')
        def reads(s, h, n):
            g = []
            hi = (n & 3) >> 1; so = (n & 1) * SLOT
            R = lambda r: r if not hi else HI + (vB0, vB1, vA0, vA1, vAs).index(r)
            vB = vB1 if h else vB0
            for b in range(2):
                g.append(I('ds_read_b128 %s, v%d offset:%d' % (fB(s, b), R(vB), so + b * 2048)))
            for a in range(9):
                if a < 8: g.append(I('ds_read_b128 %s, v%d offset:%d' % (fA(s, a), R(vA1 if a & 1 else vA0), so + h * 9216 + (a >> 1) * 2048)))
                else: g.append(I('ds_read_b128 %s, v%d offset:%d' % (fA(s, a), R(vAs), so + h * 9216)))
            return g
        def mfmas(s):
            m = Stream()
            for a in range(9):
                for b in range(2):
                    m('v_mfma_f32_16x16x32_bf16 %s, %s, %s, %s' % (acc(a, b), fA(s, a), fB(s, b), acc(a, b)))
            return m
        gw = []
        for k in range(18):
            g = Stream()
            p = Z1 + 2 * k; x = 232 + 8 * (k & 1)
            g('v_lshlrev_b32 v%d, 16, v%d' % (x, p))
            g('v_and_b32 v%d, 0xffff0000, v%d' % (x + 1, p))
            g('v_lshlrev_b32 v%d, 16, v%d' % (x + 2, p + 1))
            g('v_and_b32 v%d, 0xffff0000, v%d' % (x + 3, p + 1))
            gelu4(g, x, x + 4, c2=7)
            g('v_cvt_pk_bf16_f32 v%d, v%d, v%d' % (p, x, x + 1))
            g('v_cvt_pk_bf16_f32 v%d, v%d, v%d' % (p + 1, x + 2, x + 3))
            gw += list(g)
        npre = self.k3.get('gpre', 0) if False else 0
        if stamp: stamp_mid(S, 86)
        S('s_barrier')
        if stamp:
            stamp_mid(S, 88); S('s_waitcnt lgkmcnt(0)')
        S.extend(reads(0, 0, 0))
        def half(ms, rds):
            left = self.gq
            for k, m in enumerate(ms):
                S.append(m)
                room = 2
                if rds: S.append(rds.pop(0)); room = 1
                while gw and left > 0 and room > 0 and k < 17:
                    need = 2 if gw[0].kind == 'trans' else 1
                    if need > room: break
                    S.append(gw.pop(0)); room -= need; left -= 1
        for n in range(32):
            S('s_waitcnt lgkmcnt(0)')
            half(mfmas(0), reads(1, 1, n))
            S('s_waitcnt lgkmcnt(0)')
            S('s_barrier')
            half(mfmas(1), reads(0, 0, n + 1) if n < 31 else [])
        assert not gw
        E = S
        if stamp: stamp_mid(E, 90)
        for b in range(2):
            for p in range(5):
                nd = 4 if p < 4 else 2
                zr = Z1 + (b * 4 + p) * 4 if p < 4 else Z1 + 32 + b * 2
                for d in range(nd):
                    a = 2 * p + (d >> 1)
                    ar = ACC + (a * 2 + b) * 4 + (d & 1) * 2
                    t = 220 + (d & 1) * 2
                    E('v_lshlrev_b32 v%d, 16, v%d' % (t, zr + d))
                    E('v_and_b32 v%d, 0xffff0000, v%d' % (t + 1, zr + d))
                    E('v_pk_mul_f32 v[%d:%d], v[%d:%d], v[%d:%d]' % (t, t + 1, t, t + 1, ar, ar + 1))
                    E('v_cvt_pk_bf16_f32 v%d, v%d, v%d' % (zr + d, t, t + 1))
                if p < 4: E('buffer_store_dwordx4 v[%d:%d], v%d, s[24:27], s%d offen offset:%d sc1' % (zr, zr + 3, vP, 53 + b, p * 1024))
                else: E('buffer_store_dwordx2 v[%d:%d], v%d, s[24:27], s%d offen sc1' % (zr, zr + 1, vS, 57 + b))
        if stamp: stamp_mid(E, 92)
        signal(E, 0, 4, 'K2_NOSIG', [(32, 33, 12288)])
        if stamp:
            E('s_waitcnt vmcnt(0)')
            stamp_mid(E, 94)
            stamp_store(E, 84, [86, 88, 90, 92, 94], 8, 1, 64, 216, wave_s=34)
        E('s_endpgm')
        return S

def gen_mega(stamp=False, k1opt={}, **kw):
    M = Mega(stamp, **kw)
    k1_v2.STFLAG = ' sc1'
    txt, vg = k1.gen_k1(stamp=stamp, mega=M, **k1opt)
    k1_v2.STFLAG = ''
    F = Finisher()
    F.vmq, F.lgq = k1.OPT['cons_state']
    k1.emit(F, M.consumer())
    return txt + F.text(), 256
```

```python
from common import *
import k1_v2 as V2
from k1_v2 import fbits, q4, gelu4, rowstats, dots, norm4, flatten, m64, setm, is_mem, C1, C2, SCL
SLOT = 20480
T1_OFF = 40960; T2_OFF = 81920; XH_OFF = 143360; ZB_OFF = 81920; QB_OFF = 119808; SB_OFF = 161792
K1_LDS = 163840
QP = 240; ZP = 296
XF = 112; ACC = 40; WFR = 16; NRING = 5
NR1 = 6; P1 = NR1 * 2048; P2 = (9 - NR1) * 2048
sBLK = 54
vT = 4; vC2 = 9
OPT = {}
assert all((i * 3277) >> 16 == i // 20 for i in range(1280)) and all((r * 43) >> 8 == r // 6 for r in range(18))
def xf(j, b): r = XF + (j * 2 + b) * 4; return 'v[%d:%d]' % (r, r + 3)
LN1 = 40; LN2 = XF + 16 * NR1; ST = 88
def ln(g, j): return (LN1 + (g * NR1 + j) * 4 if g < 2 else 16 + 4 * j) if j < NR1 else LN2 + (g * (9 - NR1) + j - NR1) * 4
PH = [('Z2', 9216, 4608), ('Q', 3456, 0), ('Z1', 9216, 0)]
vDZ = 16; vDQ = 21
def wt(x):
    if isinstance(x, str): return 1
    if isinstance(x, list): return sum(wt(y) for y in x)
    if x.kind in ('need', 'label'): return 0
    if x.kind in ('trans', 'mfma'): return 2
    if x.kind == 'salu': return 0.5
    return 1

def wdma(n):
    ph, j = divmod(n, 9)
    nm, pitch, add = PH[ph]
    P = Stream()
    P('s_mul_i32 s63, s%d, %d' % (sBLK + j, 64 * pitch))
    if add: P('s_add_u32 s63, s63, %d' % add)
    isq = nm == 'Q'
    P('s_add_u32 s63, s63, s%d' % (65 if isq else 64))
    for e in range(5):
        P('s_add_u32 m0, s68, %d' % ((n & 3) * SLOT + e * 4096))
        P('buffer_load_dwordx4 v%d, s[%s], s63 offen lds' % ((vDQ if isq else vDZ) + e, '20:23' if isq else '24:27'), tok_w=['W%d' % n])
    return P

def head(S, stamp, xmap, rot):
    S('''
    s_load_dwordx4 s[4:7], s[0:1], 0
    s_load_dwordx2 s[8:9], s[0:1], 32
    s_load_dwordx4 s[12:15], s[0:1], 72
    s_load_dwordx2 s[10:11], s[0:1], 40
    s_cmp_ge_u32 s2, 256
    s_cbranch_scc1 K1_END
    ''')
    if stamp: stamp_begin(S, 84)
    S('''
    v_lshrrev_b32 v10, 6, v0
    v_and_b32 v1, 63, v0
    v_readfirstlane_b32 s50, v10
    s_and_b32 s63, s2, 7
    s_lshr_b32 s64, s2, 3
    ''')
    if xmap == '84':
        S('''
        s_and_b32 s48, s63, 1
        s_lshl_b32 s48, s48, 3
        s_and_b32 s65, s64, 7
        s_add_u32 s48, s48, s65
        s_lshr_b32 s49, s63, 1
        s_lshl_b32 s49, s49, 2
        s_lshr_b32 s64, s64, 3
        s_add_u32 s49, s49, s64
        s_lshl_b32 s64, s64, 1
        s_add_u32 s53, s64, s65
        ''')
    else:
        S('''
        s_lshr_b32 s48, s63, 1
        s_lshl_b32 s48, s48, 2
        s_and_b32 s65, s64, 3
        s_add_u32 s48, s48, s65
        s_and_b32 s49, s63, 1
        s_lshl_b32 s49, s49, 3
        s_lshr_b32 s64, s64, 2
        s_add_u32 s49, s49, s64
        s_lshl_b32 s65, s65, 1
        s_add_u32 s53, s64, s65
        ''')
    if not rot: S('s_mov_b32 s53, 0')
    S('''
    s_sub_u32 s64, s53, 9
    s_cmp_ge_u32 s53, 9
    s_cselect_b32 s%d, s64, s53
    s_and_b32 s51, s50, 3
    s_and_b32 s52, s49, 1
    s_lshl_b32 s63, s48, 7
    s_lshl_b32 s64, s51, 5
    s_add_u32 s63, s63, s64
    s_lshr_b32 s64, s50, 2
    s_mul_i32 s64, s64, 24
    s_add_u32 s63, s63, s64
    v_lshrrev_b32 v12, 3, v1
    v_and_b32 v13, 7, v1
    v_add_u32 v10, s63, v12
    v_mul_u32_u24 v10, 1152, v10
    v_lshl_add_u32 v10, v13, 4, v10
    v_add_u32 v11, 9216, v10
    v_add_u32 v14, 18432, v10
    ''' % sBLK)
    for j in range(1, 9):
        S('s_add_u32 s%d, s%d, 1' % (sBLK + j, sBLK + j - 1))
        S('s_cmp_eq_u32 s%d, 9' % (sBLK + j))
        S('s_cselect_b32 s%d, 0, s%d' % (sBLK + j, sBLK + j))
    for j in range(9): S('s_lshl_b32 s%d, s%d, 7' % (69 + j, sBLK + j))
    S('s_waitcnt lgkmcnt(0)')
    srd(S, 16, 4, 5, 2048 * 1152)
    S('s_cmp_ge_u32 s50, 4')
    S('s_cbranch_scc1 K1_HELP')

def xloads(S, gs):
    for g in gs:
        for j in range(9):
            S('buffer_load_dwordx4 %s, v%d, s[16:19], s%d offen' % (q4(ln(g, j)), (10, 11, 14)[g], 69 + j))
def common_setup(S):
    srd(S, 28, 14, 15, AP_SZ, AP_OFF)
    srd(S, 36, 14, 15, Z2P_SZ, Z2P_OFF)
    srd(S, 40, 14, 15, FL_OFF + 4 * FL_SZ - ST_OFF, ST_OFF)
    srd(S, 44, 12, 13, 256)
    S('s_mov_b32 s79, 0x%x' % fbits(SCL))
    S('''
    s_mov_b32 s82, 0x3f803f80
    s_mov_b32 s83, 0x%x
    v_xor_b32 v102, v12, v13
    v_and_b32 v103, 3, v1
    v_lshl_add_u32 v102, v103, 4, v102
    v_lshlrev_b32 v102, 4, v102
    v_bfe_u32 v104, v1, 2, 1
    v_lshl_add_u32 v102, v104, 10, v102
    s_mul_i32 s63, s51, %d
    s_add_u32 s63, s63, %d
    v_add_u32 v5, s63, v102              ; transit write address
    v_and_b32 v101, 15, v1
    v_lshrrev_b32 v105, 4, v1
    v_xor_b32 v102, v101, v105
    v_lshl_add_u32 v102, v105, 4, v102
    v_lshlrev_b32 v6, 4, v102            ; plain frag read offset (even)
    v_mul_u32_u24 v105, 2560, v105
    v_bfe_u32 v101, v1, 2, 2
    v_mul_u32_u24 v101, 320, v101
    v_lshlrev_b32 v103, 3, v103
    v_add3_u32 v%d, v105, v101, v103
    ''' % (fbits(1.0 / 576), 2 * P1, T1_OFF, vT))

def goff(k, P): return (k >> 1) * P + (k & 1) * 128
def layernorm(S, ks, mid=None, mid2=None):
    ng = len(ks)
    for g in range(ng):
        st = ST + 2 * g
        regs = [ln(g, j) + d for j in range(9) for d in range(4)]
        S.extend(dots(regs, st, st + 1))
        if OPT.get('ptrace'): stamp_mid(S, 88 + 4 * (g & 1))
        if g == 0 and ng > 1: xloads(S, [1, 2] if OPT.get('x12', 0) else [1])
        for m in ('quad_perm:[1,0,3,2]', 'quad_perm:[2,3,0,1]', 'row_half_mirror'):
            for r in range(st, st + 2):
                S('v_add_f32_dpp v%d, v%d, v%d %s row_mask:0xf bank_mask:0xf' % (r, r, r, m))
        rowstats(S, st, ST + 6, 's83')
        if g == ng - 1 and mid: S.extend(mid)
        for j in range(NR1):
            norm4(S, ln(g, j), st, ST + 6)
            S('ds_write_b128 v5, %s offset:%d' % (q4(ln(g, j)), goff(ks[g], P1) + j * 2048), tok_w=['T'])
        if g < ng - 1:
            for j in range(NR1, 9): norm4(S, ln(g, j), st, ST + 6)
            if OPT.get('ptrace'): stamp_mid(S, 90)
        if g == 0 and ng > 2 and not OPT.get('x12', 0): xloads(S, [2])
    if mid2: S.extend(mid2)
    if OPT.get('ptrace'): stamp_mid(S, 94)
    S.need('T')
    S('s_barrier')
    if OPT.get('ptrace'): stamp_mid(S, 96)
def t2_writes(ks):
    A = Stream()
    for j in range(NR1, 9):
        for g in range(len(ks)):
            A('ds_write_b128 v5, %s offset:%d' % (q4(ln(g, j)), goff(ks[g], P2) + (j - NR1) * 2048), tok_w=['T2'])
    return A
def t2_addr(S):
    S('s_mul_i32 s63, s51, %d' % (2 * (P2 - P1)))
    S('s_add_u32 s63, s63, %d' % (T2_OFF - T1_OFF))
    S('v_add_u32 v5, s63, v5')

def emit(F, out):
    ren = {'ATOMIC': 'FLAG', 'POLLISSUE': 'FISSUE', 'POLLCHECK': 'FCHECK'} if OPT.get('flags', 1) else {}
    for x in flatten(out):
        if isinstance(x, str): x = ren.get(x, x)
        if isinstance(x, tuple) and x[0] == 'DMA5':
            _, n, txt, off = x
            lab = 'K1_D%d' % n
            F.run(G('s_cmp_eq_u32 s51, 3\ns_cbranch_scc1 %s\ns_add_u32 m0, s68, %d' % (lab, off)))
            F.add(I(txt)); F.vmq.pop()
            F.run(G(lab + ':'))
        elif isinstance(x, tuple) and x[0] == 'KEEPQ':
            if x[1] == 0: keep = [set(q) for q in F.vmq]
            else: F.vmq = keep
        elif x == 'POLLISSUE':
            F.run(G('s_cmp_lg_u32 s51, 0\ns_cbranch_scc1 K1_NOPI'))
            F.run(poll_issue(3, 6)); F.vmq.pop()
            F.run(G('K1_NOPI:'))
        elif x == 'ENTRY1' and OPT.get('mega'):
            F.run(G('''s_lshl_b32 s67, s48, 13
            s_add_u32 s67, s67, %d
            v_and_b32 v37, 15, v1
            v_lshlrev_b32 v37, 9, v37
            v_mov_b32 v6, 0
            v_mov_b32 v36, 1''' % (FL_OFF - ST_OFF)))
        elif x == 'ENTRY2' and OPT.get('mega'):
            pass
        elif x == 'CZERO':
            F.run(G('''s_cmp_lg_u32 s51, 0
            s_cbranch_scc1 K1_NOCZ
            s_lshl_b32 s64, s48, 13
            s_lshl_b32 s65, s49, 9
            s_add_u32 s64, s64, s65
            s_add_u32 s64, s64, %d
            v_lshlrev_b32 v12, 3, v1
            v_mov_b32 v14, 0
            v_mov_b32 v15, 0''' % (FL_OFF - ST_OFF)))
            F.add(I('buffer_store_dwordx2 v[14:15], v12, s[40:43], s64 offen sc1')); F.vmq.pop()
            F.run(G('K1_NOCZ:'))
        elif x == 'CARRIVE':
            F.run(G('''s_cmp_lg_u32 s51, 0
            s_cbranch_scc1 K1_NOCA
            s_lshl_b32 s64, s48, 4
            v_mov_b32 v38, 0
            v_mov_b32 v39, 1
            s_mov_b64 exec, 1'''))
            keep = [set(q) for q in F.vmq]
            F.run(G('s_waitcnt vmcnt(0)\nbuffer_atomic_add v39, v38, s[44:47], s64 offen sc1'))
            F.vmq = keep
            F.run(G('s_mov_b64 exec, -1\nK1_NOCA:'))
        elif x == 'FLAG' and OPT.get('mega'):
            F.run(G('''s_cmp_lg_u32 s51, 0
            s_cbranch_scc1 K1_NOAT
            s_lshl_b32 s10, s49, 9
            s_add_u32 s10, s10, s67
            v_lshlrev_b32 v39, 2, v1
            s_mov_b32 exec_hi, 0'''))
            F.add(I('buffer_store_dword v36, v39, s[40:43], s10 offen sc1')); F.vmq.pop()
            F.run(G('s_mov_b64 exec, -1\nK1_NOAT:'))
        elif x == 'GATE1' and OPT.get('mega'):
            F.run(G('v_and_b32 v39, 15, v1\nv_lshlrev_b32 v39, 4, v39\nbuffer_load_dword v38, v39, s[44:47], 0 offen sc1'))
        elif x == 'GATE2' and OPT.get('mega'):
            F.run(G('v_cmp_gt_u32 vcc, 16, v38\ns_cmp_lg_u32 s51, 0\ns_cbranch_scc1 K1_GOK'))
            keep = [set(q) for q in F.vmq]
            F.run(G('''s_mov_b32 s10, 0
            K1_GPOLL:
            s_cmp_eq_u32 vcc_lo, 0
            s_cbranch_scc1 K1_GOK
            s_sleep 16
            buffer_load_dword v38, v39, s[44:47], 0 offen sc1
            s_add_u32 s10, s10, 1
            s_waitcnt vmcnt(0)
            v_cmp_gt_u32 vcc, 16, v38
            s_cmp_lt_u32 s10, 0x10000
            s_cbranch_scc1 K1_GPOLL
            K1_GOK:'''))
            F.vmq = keep
        elif isinstance(x, tuple) and x[0] == 'RESETQ':
            F.vmq = keepq; F.lgq = keepl
        elif isinstance(x, tuple) and x[0] == 'SAVEQ':
            keepq = [set(q) for q in F.vmq]; keepl = [(set(a), b) for a, b in F.lgq]
        elif x == 'ENTRY1':
            F.run(G('''s_lshl_b32 s67, s48, 8
            s_add_u32 s67, s67, %d
            v_lshlrev_b32 v37, 2, v1
            v_mov_b32 v6, 0
            buffer_load_dword v36, v37, s[40:43], s67 offen sc1''' % (FL_OFF - ST_OFF)))
        elif x == 'ENTRY2':
            F.run(G('''v_add_u32 v36, 1, v36
            v_mov_b32 v7, 1
            s_lshl_b32 s9, s48, 4
            s_cmp_lg_u32 s51, 0
            s_cbranch_scc1 K1_NOENT
            s_mov_b64 exec, 1'''))
            F.add(I('buffer_atomic_add v7, v6, s[44:47], s9 offen sc1')); F.vmq.pop()
            F.run(G('s_mov_b64 exec, -1\nK1_NOENT:'))
        elif x == 'GATE1':
            F.run(G('buffer_load_dword v38, v6, s[44:47], s9 offen sc1'))
        elif x == 'GATE2':
            F.run(G('v_mov_b32 v39, v38\ns_cmp_lg_u32 s51, 0\ns_cbranch_scc1 K1_NOPOLLG'))
            keep = [set(q) for q in F.vmq]
            P = Stream(); poll(P, 'G', 38, 6)
            F.run([y for y in P if not isinstance(y, tuple)]); F.vmq = keep
        elif x == 'FLAG':
            F.run(G('''s_cmp_lg_u32 s51, 0
            s_cbranch_scc1 K1_NOAT
            s_lshl_b64 exec, 1, s49'''))
            F.add(I('buffer_store_dword v36, v37, s[40:43], s67 offen sc1')); F.vmq.pop()
            F.run(G('s_mov_b64 exec, -1\nK1_NOAT:'))
        elif x == 'FISSUE':
            F.run(G('buffer_load_dword v3, v37, s[40:43], s67 offen sc1'))
        elif x == 'FCHECK':
            F.run(G('v_mov_b32 v39, v3\ns_cmp_lg_u32 s51, 0\ns_cbranch_scc1 K1_FOK'))
            keep = [set(q) for q in F.vmq]
            F.run(G('''s_mov_b32 s10, 0
            K1_FPOLL:
            v_cmp_ne_u32 vcc, v3, v36
            s_and_b32 s11, vcc_lo, 0xffff
            s_cbranch_scc0 K1_FOK
            s_sleep %d
            buffer_load_dword v3, v37, s[40:43], s67 offen sc1
            s_add_u32 s10, s10, 1
            s_cmp_lt_u32 s10, 0x20000
            s_waitcnt vmcnt(0)
            s_cbranch_scc1 K1_FPOLL
            K1_FOK:''' % OPT.get('slp', 4)))
            F.vmq = keep
        elif x == 'POLLCHECK':
            P = Stream()
            P('s_cmp_lg_u32 s51, 0\ns_cbranch_scc1 K1_NOPOLLH')
            F.run(P); keep = [set(q) for q in F.vmq]
            P = Stream(); P('s_waitcnt vmcnt(0)'); poll(P, 'H', 3, 6)
            F.run([y for y in P if not isinstance(y, tuple)]); F.vmq = keep
        elif x == 'ZERO':
            Z = Stream()
            Z('s_or_b32 s12, s2, s51\ns_cmp_lg_u32 s12, 0\ns_cbranch_scc1 K1_NOZ')
            srd(Z, 4, 14, 15, CN_SZ, CN_OFF)
            Z('v_lshlrev_b32 v33, 6, v1\nv_mov_b32 v32, 0')
            F.run(Z)
            F.add(I('buffer_store_dword v32, v33, s[4:7], 0 offen')); F.vmq.pop()
            F.run(G('K1_NOZ:'))
        elif x == 'ATOMIC':
            F.run(G('''s_cmp_lg_u32 s51, 0
            s_cbranch_scc1 K1_NOAT
            v_mov_b32 v7, 1
            s_mov_b64 exec, 1'''))
            F.add(I('buffer_atomic_add v7, v6, s[44:47], s9 offen sc1')); F.vmq.pop()
            F.run(G('s_mov_b64 exec, -1\nK1_NOAT:'))
        else:
            F.add(x)

def table_text():
    out = ['.p2align 8', 'K1_TAB:']
    for rg in range(4):
        vals = []
        for lane in range(64):
            v = []
            zq = []
            for e in range(5):
                i = 64 * (rg + 4 * e) + lane
                row, p = divmod(i, 20)
                sh = 2 * ((row >> 3) & 1)
                v.append(row * 9216 + (p ^ sh) * 16)
                pp = p - sh
                zq.append(row * 3456 + (1152, 2304, 0)[pp // 6] + (pp % 6) * 16 if 0 <= pp < 18 else 0x7f000000)
            hi = 4 * rg + (lane >> 4); g = lane & 3
            v += zq + [XH_OFF + ((lane >> 2) & 3) * 1024 + (g * 16 + (hi ^ g)) * 16, (hi * 1152 + (lane & 7) * 16)]
            vals.append(v)
        for q in range(3):
            for l0 in range(0, 64, 4):
                out.append('.long ' + ','.join(str(x) for l in range(l0, l0 + 4) for x in vals[l][4 * q:4 * q + 4]))
    return '\n'.join(out) + '\n'

def gen_k1(stamp=False, xmap='84', rot=True, **opt):
    OPT.clear(); OPT.update(opt); V2.OPT.clear()
    global stamp_mid
    import common
    if OPT.get('ptrace'):
        seen = {}
        def sm(S, r):
            k = (id(S), r)
            if r == 88 and k in seen: r = 70
            k = (id(S), r)
            if k in seen: return
            seen[k] = 1
            if r == 70: common.stamp_mid(S, 66); return
            common.stamp_mid(S, r)
        stamp_mid = sm
    else:
        stamp_mid = common.stamp_mid
    F = Finisher()
    S = Stream()
    head(S, stamp, xmap, rot)
    F.run(S)
    txt = F.text()
    zzq = OPT.get('zzq')
    PH[1:] = [('Z1', 9216, 0), ('Q', 3456, 0)] if zzq else [('Q', 3456, 0), ('Z1', 9216, 0)]
    for role in ((compute2, helper) if zzq else (compute, helper)):
        G2 = Finisher()
        G2.vmq = [set(x) for x in F.vmq]; G2.lgq = [(set(a), b) for a, b in F.lgq]; G2.hist = list(F.hist)
        emit(G2, role(stamp))
        if role is not helper: OPT['cons_state'] = ([set(x) for x in G2.vmq], [(set(a), b) for a, b in G2.lgq])
        txt += G2.text()
    return txt, 256

def pace(items, dl=8):
    flat = []
    for x in items:
        if isinstance(x, list) and not any('exec' in y.writes or 'vcc' in y.writes for y in x): flat.extend(x)
        else: flat.append(x)
    out = []; ready = {}
    k = 0
    while k < len(flat):
        x = flat[k]
        grp = list(x) if isinstance(x, list) else [x]
        k += 1
        while not isinstance(x, list) and x.kind == 'salu' and k < len(flat) and not isinstance(flat[k], list):
            x = flat[k]; grp.append(x); k += 1
        need = 0
        for y in grp:
            for r in y.reads | y.writes:
                t, kind = ready.get(r, (0, ''))
                if kind == 'valu' and not (y.dpp or y.op.startswith('v_permlane') or y.kind in ('mfma', 'ds', 'vmem')): continue
                need = max(need, t)
        while len(out) < need: out.append(None)
        out.append(grp)
        for y in grp:
            d = {'ds': dl, 'mfma': 4, 'trans': 1, 'valu': 1}.get(y.kind, 0)
            for r in y.writes: ready[r] = (len(out) + d, y.kind)
    return out

def pf_setup(S):
    S("""s_load_dwordx2 s[20:21], s[0:1], 56
    s_load_dwordx2 s[24:25], s[0:1], 16
    s_mov_b32 s4, s10
    s_or_b32 s5, s11, 0x800000
    s_mov_b32 s6, %d
    s_mov_b32 s7, 0x00020000
    s_mov_b32 s22, %d
    s_mov_b32 s23, 0x00020000
    s_mov_b32 s26, %d
    s_mov_b32 s27, 0x00020000
    s_lshl_b32 s8, s2, 15
    s_lshl_b32 s9, s51, 11
    s_add_u32 s8, s8, s9
    s_mul_i32 s9, s2, 10368
    s_mul_i32 s10, s51, 2688
    s_add_u32 s9, s9, s10
    s_min_u32 s9, s9, 2651520
    s_mul_i32 s10, s2, 2688
    s_mul_i32 s11, s51, 768
    s_add_u32 s10, s10, s11
    s_min_u32 s10, s10, 662784
    s_mov_b32 m0, %d
    s_waitcnt lgkmcnt(0)
    s_or_b32 s21, s21, 0x800000
    s_or_b32 s25, s25, 0x800000""" % (2048 * 32, 2304 * 9, 576 * 9, SB_OFF))
def ws_touch(k):
    g = Stream()
    if k == 0:
        g("""s_add_u32 s16, s14, 0x%x
        s_addc_u32 s17, s15, 0
        s_or_b32 s17, s17, 0x800000
        s_mov_b32 s18, %d
        s_mov_b32 s19, 0x00020000
        s_lshl_b32 s64, s49, 6
        s_lshl_b32 s65, s48, 2
        s_add_u32 s64, s64, s65
        s_add_u32 s64, s64, s51
        s_mul_i32 s64, s64, 9216
        s_lshl_b32 s65, s48, 3
        s_lshl_b32 s66, s51, 1
        s_add_u32 s65, s65, s66
        s_mul_i32 s65, s65, 92160
        s_mul_i32 s66, s49, 4608
        s_add_u32 s65, s65, s66
        s_add_u32 s65, s65, %d
        buffer_load_dword v1, s[16:19], s64 idxen lds""" % (Z2P_OFF, 64, AP_OFF - Z2P_OFF + 18 * 1024))
    elif k == 1:
        g("""s_add_u32 s64, s64, 8192
        s_mov_b64 exec, 0xff
        buffer_load_dword v1, s[16:19], s64 idxen lds
        s_mov_b64 exec, -1""")
    else:
        g("""s_mov_b32 exec_hi, 15
        buffer_load_dword v1, s[16:19], s65 idxen lds
        s_mov_b32 exec_hi, -1
        s_add_u32 s65, s65, 92160""")
    return list(g)
def pf_touch(k):
    if k < 4:
        return G("""s_mov_b64 exec, 0xffff
        buffer_load_dword v1, s[4:7], s8 idxen lds
        s_mov_b64 exec, -1
        s_add_u32 s8, s8, 8192""")
    return G("""s_mov_b64 exec, 0x%x
    buffer_load_dword v1, s[%s], s%d idxen lds
    s_mov_b64 exec, -1""" % ((0x1fffff, '20:23', 9) if k == 4 else (0x3f, '24:27', 10)))

def compute(stamp):
    S = Stream()
    vXe = 6; vXo = 7
    xloads(S, [0])
    common_setup(S)
    srd(S, 32, 14, 15, Z1P_SZ, Z1P_OFF)
    if OPT.get('pfc'): pf_setup(S)
    S('''
    s_mul_i32 s63, s51, %d
    s_add_u32 s63, s63, %d
    v_add_u32 v6, s63, v6
    v_xor_b32 v7, 64, v6
    ''' % (2 * P1, T1_OFF))
    if stamp: stamp_mid(S, 86)
    layernorm(S, [0, 1, 2])
    for q in range(2 * NR1):
        for b in range(2):
            S('ds_read_b128 %s, v%d offset:%d' % (xf(q, b), vXo if q & 1 else vXe, b * P1 + q * 1024), tok_w=['TR'])
    for j in range(NR1, 9): norm4(S, ln(2, j), ST + 4, ST + 6)
    t2_addr(S)
    S('s_mul_i32 s63, s51, %d' % (2 * (P2 - P1)))
    S('s_add_u32 s63, s63, %d' % (T2_OFF - T1_OFF))
    S.need('TR')
    S('s_barrier')
    S('v_add_u32 v6, s63, v6')
    S('v_add_u32 v7, s63, v7')
    S('s_setprio %d' % OPT.get('prio', 2))
    if stamp: stamp_mid(S, 88)
    ntile = [9, 7, 9]
    def acc(c, b): return ACC + (c * 2 + b) * 4
    hA = ACC + 56; hX = ACC + 64; hW = ACC + 68
    vTa = 2; vTb = 3; vq2 = 6; vq4 = 8; vQb = 5; vXH = 9; vqh = 7; vTs = 4
    frs = [(n, ks, c) for n in range(27) for ks in range(2) for c in range(ntile[n // 9])]
    bias = {}
    extra_tok = {1: ['T2'], 9: ['TR2'], 10: ['HB'], 18: ['XHR'], 19: ['QB']}
    QIMM = {0: 0, 1: 32, 3: 120, 5: 160 + 48, 6: 192 + 48}
    def zaddr(mode):
        g = Stream()
        g("""v_bfe_u32 v15, v1, 4, 1
        v_lshlrev_b32 v15, 5, v15""")
        if mode == 0:
            g("""s_cmp_eq_u32 s52, 0
            s_cselect_b32 s98, 1, -1
            s_lshl_b32 s99, s52, 5
            v_mul_lo_u32 v15, v15, s98
            v_add3_u32 v%d, v%d, v15, s99
            v_sub_u32 v%d, v%d, v15
            v_add_u32 v%d, s99, v%d""" % (vTa, vT, vTb, vT, vTb, vTb))
        else:
            g("""s_lshl_b32 s99, s52, 6
            v_add3_u32 v%d, v%d, v15, s99
            v_sub_u32 v%d, v%d, v15
            v_add_u32 v%d, 256, v%d
            v_add_u32 v15, 32, v%d
            s_cmp_eq_u32 s52, 0
            s_cselect_b64 vcc, -1, 0
            v_cndmask_b32 v%d, v15, v%d, vcc
            v_add_u32 v%d, s99, v%d
            v_add_u32 v%d, %d, v%d
            v_add_u32 v%d, %d, v%d
            v_add_u32 v%d, %d, v%d""" % (vTa, vT, vTb, vT, vTs, vTa, vTb, vTs, vTs, vTb, vTb, vTa, 2 * SLOT, vTa, vTb, 2 * SLOT, vTb, vTs, 2 * SLOT, vTs))
        return g
    def qaddr():
        g = Stream()
        g("""v_bfe_u32 v15, v1, 4, 1
        v_lshlrev_b32 v15, 5, v15
        s_mul_i32 s98, s49, 72
        s_and_b32 s98, s98, 31
        v_add3_u32 v{qb}, v{T}, v15, s98
        v_and_b32 v15, 3, v1
        v_cmp_le_u32 vcc, 2, v15
        v_cndmask_b32 v14, 0, 24, vcc
        v_add_u32 v14, 152, v14
        v_add_u32 v{q4}, v{qb}, v14
        v_cmp_le_u32 vcc, 1, v15
        v_cndmask_b32 v14, 0, 24, vcc
        v_add_u32 v14, 64, v14
        v_add_u32 v{q2}, v{qb}, v14
        s_lshl_b32 s69, s51, 5
        s_cmp_eq_u32 s51, 3
        s_cselect_b32 s99, 24, 0
        s_add_u32 s99, s99, s69
        v_add_u32 v{qh}, s99, v{qb}
        s_cmp_eq_u32 s51, 2
        s_cselect_b64 vcc, -1, 0
        v_cndmask_b32 v{qh}, v{qh}, v{q2}, vcc
        v_and_b32 v14, 15, v1
        v_lshrrev_b32 v15, 4, v1
        v_xor_b32 v14, v14, v15
        v_lshl_add_u32 v14, v15, 4, v14
        v_lshlrev_b32 v14, 4, v14
        v_add_u32 v{xh}, {XH}, v14""".format(qb=vQb, T=vT, q4=vq4, q2=vq2, qh=vqh, xh=vXH, XH=XH_OFF))
        return g
    def toggle(g, ar, n):
        want = (n & 3) >> 1
        if bias.get(ar, 0) != want:
            g('v_add_u32 v%d, %d, v%d' % (ar, 2 * SLOT if want else -2 * SLOT, ar))
            bias[ar] = want
    def halo_read(q):
        g = Stream()
        n = 9 + q // 2
        g('ds_read_b128 %s, v%d offset:%d' % (q4(hX), vXH, q * 1024), tok_w=['XHR'])
        toggle(g, vqh, n)
        for hh in range(2):
            g('ds_read_b64_tr_b16 v[%d:%d], v%d offset:%d' % (hW + 2 * hh, hW + 2 * hh + 1, vqh, (n & 1) * SLOT + (q & 1) * 10240 + hh * 1280))
        return g
    def read(f):
        n, ks, c = frs[f]
        ph = n // 9
        g = Stream()
        if ks == 0 and c == 0:
            if n > 0:
                if n in extra_tok: g.need(*extra_tok[n])
                if n > 10: g.need('ZCdone')
                g('s_barrier')
            if n == 0: g.extend(zaddr(0))
            if n == 18:
                for r in (vTa, vTb, vTs): bias[r] = 1
        if ph == 0: ar, coff = (vTb if c & 1 else vTa), 32 * c
        elif ph == 1: ar, coff = (vq2, 0) if c == 2 else ((vq4, 0) if c == 4 else (vQb, QIMM[c]))
        else: ar, coff = ((vTb if c & 1 else vTa), 32 * c) if c < 8 else (vTs, 0)
        toggle(g, ar, n)
        r = WFR + (f % NRING) * 4
        for hh in range(2):
            if OPT.get('halfread') and hh == 1:
                g('s_nop 0'); continue
            g('ds_read_b64_tr_b16 v[%d:%d], v%d offset:%d' % (r + 2 * hh, r + 2 * hh + 1, ar, (n & 1) * SLOT + ks * 10240 + hh * 1280 + coff))
        return g
    D = NRING - 1
    for f in range(D): S.extend(read(f))
    def tmpr(ph, c, b):
        pairs = [12, 14, 2] if ph == 0 else [12, 14, 6, 8]
        return pairs[(2 * c + b) % len(pairs)]
    def cvt(ph, c, b):
        a = acc(c, b); t = tmpr(ph, c, b)
        return G('v_cvt_pk_bf16_f32 v%d, v%d, v%d\nv_cvt_pk_bf16_f32 v%d, v%d, v%d' % (t, a, a + 1, t + 1, a + 2, a + 3))
    def cvti(a):
        return G('v_cvt_pk_bf16_f32 v%d, v%d, v%d\nv_cvt_pk_bf16_f32 v%d, v%d, v%d' % (a, a, a + 1, a + 1, a + 2, a + 3))
    def dw(ph, c, b, src=None):
        t = tmpr(ph, c, b) if src is None else src
        if OPT.get('nodw'): return []
        if ph == 0:
            return G('ds_write_b64 v10, v[%d:%d] offset:%d' % (t, t + 1, 16 * b * ZP + 32 * c), tok_w=['HB'])
        return G('ds_write_b64 v11, v[%d:%d] offset:%d' % (t, t + 1, (16 + 16 * b) * QP + 32 * c), tok_w=['QB'])
    x2 = Stream()
    for q in range(2 * NR1, 18):
        for b in range(2):
            x2('ds_read_b128 %s, v%d offset:%d' % (xf(q, b), vXo if q & 1 else vXe, b * P2 + (q - 2 * NR1) * 1024), tok_w=['TR2'])
    t2 = t2_writes([0, 1, 2])
    addr = G('''
    v_and_b32 v10, 15, v1
    s_lshl_b32 s98, s51, 5
    v_add_u32 v10, s98, v10
    v_mul_u32_u24 v11, %d, v10
    v_mul_u32_u24 v10, %d, v10
    v_lshrrev_b32 v12, 4, v1
    v_lshlrev_b32 v12, 3, v12
    s_mov_b32 s98, %d
    v_add3_u32 v10, v10, v12, s98
    s_mov_b32 s98, %d
    v_add3_u32 v11, v11, v12, s98
    ''' % (QP, ZP, ZB_OFF, QB_OFF))
    hw = G('s_mul_i32 s98, s51, %d\nv_subrev_u32 v5, s98, v11\nv_add_u32 v38, s69, v5' % (32 * QP))
    NC = OPT.get('nc', 0)
    share = []
    for k in range(NC):
        c = 9 - NC + k
        g = Stream()
        off = 16 * ZP + 32 * c
        g('ds_read_b64 v[12:13], v10 offset:%d' % off)
        for _ in range(OPT.get('rgap', 6)): g.append(None)
        g("""v_and_b32 v15, 0xffff0000, v13
        v_lshlrev_b32 v14, 16, v13
        v_and_b32 v13, 0xffff0000, v12
        v_lshlrev_b32 v12, 16, v12""")
        gelu4(g, 12, 36, c2=0)
        g('v_cvt_pk_bf16_f32 v36, v12, v13')
        g('v_cvt_pk_bf16_f32 v37, v14, v15')
        g('ds_write_b64 v10, v[36:37] offset:%d' % off, tok_w=['ZCdone'] if k == NC - 1 else [])
        share.append(list(g))
    light = [[3, list(addr) + list(qaddr()) + G('s_mov_b32 s78, 0x%x\nv_mov_b32 v0, 0x%x' % (fbits(C1), fbits(C2)))], [10, list(zaddr(1))]]
    cur = []
    zc_step = [None]
    att = []
    if OPT.get('attgap'):
        V2.S1 = XF; V2.QB_OFF = QB_OFF; V2.VOFF = 72; V2.QOFF = 144
        att = pace(V2.attention(0))
        print('att gaps', len(att))
    for f, (n, ks, c) in enumerate(frs):
        ph, j = divmod(n, 9)
        q = 2 * j + ks
        r = WFR + (f % NRING) * 4
        if stamp and q == 0 and c == 0 and ph > 0 and not OPT.get('trace'): stamp_mid(S, 88 + 2 * ph)
        hand = (q == 0 and ph > 0)
        if hand and c == 0:
            if ph == 2: S.extend(hw)
            S.extend(cvt(ph - 1, 0, 0))
        rd = read(f + D) if f + D < len(frs) else []
        if f % 2 == 0 and f + 1 < len(frs) and not OPT.get('allwait'):
            r1 = WFR + ((f + 1) % NRING) * 4
            S.need(*['v%d' % k for k in range(r1, r1 + 4)])
        for b in range(2):
            a = acc(c, b)
            S('v_mfma_f32_16x16x32_bf16 %s, %s, %s, %s' % (q4(a), q4(r), xf(q, b), '0' if q == 0 else q4(a)))
            S.extend(rd[:-1] if b == 0 else rd[-1:])
            if hand and c < 7:
                S.extend(dw(ph - 1, c, b))
                if ph == 1:
                    if c in (1, 2): S.extend(dw(0, 6 + c, b, acc(6 + c, b)))
                    if c == 2 and b == 1: S.extend(halo_read(0))
                else:
                    if c == 1: S.extend(G('ds_write_b64 v%d, v[%d:%d] offset:%d' % (5 if b else 38, hA + 4 * b, hA + 4 * b + 1, 128 * b), tok_w=['QB']))
                if 2 * c + b + 1 < 14: S.extend(cvt(ph - 1, c + b, 1 - b))
                if c == 0 or (c == 1 and ph == 1): S.extend(cvti(acc(7 + c, b)))
            if OPT.get('pfc') and n in OPT['pfc'] and ks == 1 and c == 0 and b == 0: S.extend(pf_touch(OPT['pfc'].index(n)))
            if OPT.get('mega') and ks == 0 and c == 2 and b == 0 and n in (1, OPT.get('arr', 4)): S.append('CZERO' if n == 1 else 'CARRIVE')
            if OPT.get('wst') and n in OPT['wst'] and ks == 1 and c == 3 and b == 0: S.extend(ws_touch(OPT['wst'].index(n)))
            if n == 0 and t2 and b == 1: S.append(t2.pop(0))
            if n in (1, 2) and x2 and b == 1 and (n == 2 or ks == 1 or c > 0): S.append(x2.pop(0))
            gaps_left = sum(2 for ff in range(f, len(frs)) if frs[ff][0] < 18) - 12
            if not cur and share and not (light and n >= light[0][0]) and n >= 10 and (n >= 19 or gaps_left > len(share[0])) and not hand:
                cur.extend(share.pop(0))
            if cur:
                x = cur.pop(0)
                if x is not None: S.append(x)
                if not cur and not share: zc_step[0] = n
            elif att and n >= OPT['attgap']:
                x = att.pop(0)
                if x is not None: S.extend(x)
            elif light and n >= light[0][0]:
                x = light[0][1].pop(0); S.append(x)
                while x.kind == 'salu' and light[0][1]:
                    x = light[0][1].pop(0); S.append(x)
                if not light[0][1]: light.pop(0)
        if ph == 1 and c == 4:
            S('v_mfma_f32_16x16x32_bf16 %s, %s, %s, %s' % (q4(hA + 4), q4(r), q4(hX), '0' if q == 0 else q4(hA + 4)))
        if ph == 1 and c == 5:
            S('v_mfma_f32_16x16x32_bf16 %s, %s, %s, %s' % (q4(hA), q4(hW), q4(hX), '0' if q == 0 else q4(hA)))
            if q < 17 and (q & 1) == 0: S.extend(halo_read(q + 1))
        if ph == 1 and c == 6 and q < 17 and (q & 1) == 1: S.extend(halo_read(q + 1))
    assert not t2 and not x2 and not share and not cur
    OPT['zc_step'] = zc_step[0]
    for x in att:
        if x is not None: S.extend(x)
    n2a, n2b = norm_z2(range(NZC), (112, 144, 160, 2) if OPT.get('mega') else (176, 208, 244, 248))
    if OPT.get('mega'): OPT['mega'].cons_early(S)
    if not OPT.get('early'):
        S('s_barrier')
        S.extend(n2a)
    if stamp: stamp_mid(S, 94)
    S('''
    s_lshl_b32 s63, s48, 3
    s_lshl_b32 s98, s51, 1
    s_add_u32 s63, s63, s98
    s_mul_i32 s63, s63, 72
    s_mul_i32 s98, s49, 9
    s_add_u32 s98, s98, s52
    s_lshr_b32 s98, s98, 1
    s_add_u32 s63, s63, s98
    s_lshl_b32 s69, s63, 10
    s_add_u32 s70, s69, 73728
    s_cmp_eq_u32 s52, 0
    s_cselect_b32 s63, 4608, 0
    s_sub_u32 s63, s63, 512
    s_add_u32 s71, s69, s63
    s_add_u32 s72, s70, s63
    v_lshlrev_b32 v10, 4, v1
    v_lshrrev_b32 v12, 5, v1
    v_lshlrev_b32 v12, 8, v12
    v_and_b32 v13, 15, v1
    v_lshl_add_u32 v12, v13, 4, v12
    v_bfe_u32 v13, v1, 4, 1
    v_lshl_add_u32 v12, v13, 3, v12
    ''')
    G1 = OPT.get('gelu1', False)
    if G1:
        S('s_mov_b32 s78, 0x%x' % fbits(C1))
        S('v_mov_b32 v%d, 0x%x' % (vC2, fbits(C2)))
    for p in range(4):
        for b in range(2):
            a0 = acc(2 * p, b); a1 = acc(2 * p + 1, b)
            if G1: gelu4(S, a0, XF); gelu4(S, a1, XF + 4)
            o = XF + 8 + 4 * (2 * p + b) if not OPT.get('mega') else 168 + (b * 4 + p) * 4
            S('v_cvt_pk_bf16_f32 v%d, v%d, v%d' % (o, a0, a0 + 1))
            S('v_cvt_pk_bf16_f32 v%d, v%d, v%d' % (o + 1, a0 + 2, a0 + 3))
            S('v_cvt_pk_bf16_f32 v%d, v%d, v%d' % (o + 2, a1, a1 + 1))
            S('v_cvt_pk_bf16_f32 v%d, v%d, v%d' % (o + 3, a1 + 2, a1 + 3))
            for d in range(2): S('v_permlane32_swap_b32 v%d, v%d' % (o + d, o + 2 + d))
            for d in range(2): S('v_permlane16_swap_b32 v%d, v%d' % (o + d, o + 2 + d))
            if not OPT.get('mega'): S('buffer_store_dwordx4 %s, v10, s[32:35], s%d offen offset:%d' % (q4(o), 69 + b, p * 1024))
    for b in range(2):
        a0 = acc(8, b)
        if G1: gelu4(S, a0, XF)
        o = XF + 40 + 2 * b if not OPT.get('mega') else 200 + 2 * b
        S('v_cvt_pk_bf16_f32 v%d, v%d, v%d' % (o, a0, a0 + 1))
        S('v_cvt_pk_bf16_f32 v%d, v%d, v%d' % (o + 1, a0 + 2, a0 + 3))
        if not OPT.get('mega'): S('buffer_store_dwordx2 v[%d:%d], v12, s[32:35], s%d offen' % (o, o + 1, 71 + b))
    V2.S1 = 40; V2.QB_OFF = QB_OFF; V2.VOFF = 72; V2.QOFF = 144
    ost = []
    if not OPT.get('attgap'):
        for x in V2.attention(0):
            if OPT.get('mega') and isinstance(x, list) and any(y.kind == 'vmem' for y in x): ost.append(x)
            else: S.append(x)
    if OPT.get('late'): S('s_barrier')
    if not OPT.get('early'): S.extend(n2b)
    S.extend(ost)
    OPT['n_ost'] = sum(1 for x in ost for y in x if y.kind == 'vmem')
    if stamp:
        stamp_mid(S, 96)
        if not OPT.get('mega'): S('s_waitcnt vmcnt(0)')
        stamp_mid(S, 70)
        stamp_store(S, 84, [86, 88, 90, 92, 94, 96, 70 if not OPT.get('ptrace') else 66], 14, 0, 72, 12, wave_s=50)
    if OPT.get('mega'): S('s_branch K2_CONS')
    else: S('s_endpgm')
    return S

def compute2(stamp):
    S = Stream()
    vXe = 6; vXo = 7
    xloads(S, [0])
    common_setup(S)
    srd(S, 32, 14, 15, Z1P_SZ, Z1P_OFF)
    S('''
    s_mul_i32 s63, s51, %d
    s_add_u32 s63, s63, %d
    v_add_u32 v6, s63, v6
    v_xor_b32 v7, 64, v6
    ''' % (2 * P1, T1_OFF))
    if stamp: stamp_mid(S, 86)
    layernorm(S, [0, 1, 2])
    for q in range(2 * NR1):
        for b in range(2):
            S('ds_read_b128 %s, v%d offset:%d' % (xf(q, b), vXo if q & 1 else vXe, b * P1 + q * 1024), tok_w=['TR'])
    for j in range(NR1, 9): norm4(S, ln(2, j), ST + 4, ST + 6)
    t2_addr(S)
    S('s_mul_i32 s63, s51, %d' % (2 * (P2 - P1)))
    S('s_add_u32 s63, s63, %d' % (T2_OFF - T1_OFF))
    S.need('TR')
    S('s_barrier')
    S('v_add_u32 v6, s63, v6')
    S('v_add_u32 v7, s63, v7')
    S('s_setprio %d' % OPT.get('prio', 2))
    if stamp: stamp_mid(S, 88)
    ntile = [9, 9, 7]
    def acc(c, b): return ACC + (c * 2 + b) * 4
    hA = ACC + 56; hX = ACC + 64; hW = ACC + 68
    vTa = 2; vTb = 3; vq2 = 2; vq4 = 3; vQb = 4; vXH = 9; vqh = 8; vZa = 5; vZb = 6; vTs = 7
    frs = [(n, ks, c) for n in range(27) for ks in range(2) for c in range(ntile[n // 9])]
    def order(n):
        nt = ntile[n // 9]
        if n == 9: return [(ks, c) for c in range(nt) for ks in range(2)]
        if n == 18: return [(ks, c) for c in range(4) for ks in range(2)] + [(ks, c) for ks in range(2) for c in range(4, 7)]
        return [(ks, c) for ks in range(2) for c in range(nt)]
    frs = [(n, ks, c) for n in range(27) for ks, c in order(n)]
    bias = {}
    extra_tok = {1: ['T2'], 9: ['TR2'], 11: ['HB']}
    QIMM = {0: 0, 1: 32, 3: 120, 5: 160 + 48, 6: 192 + 48}
    def zaddr(mode):
        g = Stream()
        g("""v_bfe_u32 v15, v1, 4, 1
        v_lshlrev_b32 v15, 5, v15""")
        if mode == 0:
            g("""s_cmp_eq_u32 s52, 0
            s_cselect_b32 s98, 1, -1
            s_lshl_b32 s99, s52, 5
            v_mul_lo_u32 v15, v15, s98
            v_add3_u32 v%d, v%d, v15, s99
            v_sub_u32 v%d, v%d, v15
            v_add_u32 v%d, s99, v%d""" % (vTa, vT, vTb, vT, vTb, vTb))
        else:
            g("""s_lshl_b32 s99, s52, 6
            v_add3_u32 v%d, v%d, v15, s99
            v_sub_u32 v%d, v%d, v15
            v_add_u32 v%d, 256, v%d
            v_add_u32 v15, 32, v%d
            s_cmp_eq_u32 s52, 0
            s_cselect_b64 vcc, -1, 0
            v_cndmask_b32 v%d, v15, v%d, vcc
            v_add_u32 v%d, s99, v%d""" % (vZa, vT, vZb, vT, vTs, vZa, vZb, vTs, vTs, vZb, vZb))
        return g
    def qaddr():
        g = Stream()
        g("""v_bfe_u32 v15, v1, 4, 1
        v_lshlrev_b32 v15, 5, v15
        s_mul_i32 s98, s49, 72
        s_and_b32 s98, s98, 31
        s_add_u32 s98, s98, {bias}
        v_add3_u32 v{qb}, v{T}, v15, s98
        v_and_b32 v15, 3, v1
        v_cmp_le_u32 vcc, 2, v15
        v_cndmask_b32 v14, 0, 24, vcc
        v_add_u32 v14, 152, v14
        v_add_u32 v{q4}, v{qb}, v14
        v_cmp_le_u32 vcc, 1, v15
        v_cndmask_b32 v14, 0, 24, vcc
        v_add_u32 v14, 64, v14
        v_add_u32 v{q2}, v{qb}, v14
        s_lshl_b32 s73, s51, 5
        s_cmp_eq_u32 s51, 3
        s_cselect_b32 s99, 24, 0
        s_add_u32 s99, s99, s73
        v_add_u32 v{qh}, s99, v{qb}
        s_cmp_eq_u32 s51, 2
        s_cselect_b64 vcc, -1, 0
        v_cndmask_b32 v{qh}, v{qh}, v{q2}, vcc
        v_and_b32 v14, 15, v1
        v_lshrrev_b32 v15, 4, v1
        v_xor_b32 v14, v14, v15
        v_lshl_add_u32 v14, v15, 4, v14
        v_lshlrev_b32 v14, 4, v14
        v_add_u32 v{xh}, {XH}, v14""".format(qb=vQb, T=vT, q4=vq4, q2=vq2, qh=vqh, xh=vXH, XH=XH_OFF, bias=2 * SLOT))
        return g
    def toggle(g, ar, n):
        want = (n & 3) >> 1
        if bias.get(ar, 0) != want:
            g('v_add_u32 v%d, %d, v%d' % (ar, 2 * SLOT if want else -2 * SLOT, ar))
            bias[ar] = want
    def halo_read(q):
        g = Stream()
        n = 18 + q // 2
        g('ds_read_b128 %s, v%d offset:%d' % (q4(hX), vXH, q * 1024), tok_w=['XHR'])
        toggle(g, vqh, n)
        for hh in range(2):
            g('ds_read_b64_tr_b16 v[%d:%d], v%d offset:%d' % (hW + 2 * hh, hW + 2 * hh + 1, vqh, (n & 1) * SLOT + (q & 1) * 10240 + hh * 1280))
        return g
    def read(f):
        n, ks, c = frs[f]
        ph = n // 9
        g = Stream()
        if ks == 0 and c == 0:
            if n > 0:
                if n in extra_tok: g.need(*extra_tok[n])
                if n > 10: g.need('ZCdone')
                g('s_barrier')
            if n == 0: g.extend(zaddr(0))
            if n == 18:
                for r in (vQb, vq2, vq4, vqh): bias[r] = 1
        if ph == 0: ar, coff = (vTb if c & 1 else vTa), 32 * c
        elif ph == 2: ar, coff = (vq2, 0) if c == 2 else ((vq4, 0) if c == 4 else (vQb, QIMM[c]))
        else: ar, coff = ((vZb if c & 1 else vZa), 32 * c) if c < 8 else (vTs, 0)
        toggle(g, ar, n)
        r = WFR + (f % NRING) * 4
        for hh in range(2):
            if OPT.get('halfread') and hh == 1:
                g('s_nop 0'); continue
            g('ds_read_b64_tr_b16 v[%d:%d], v%d offset:%d' % (r + 2 * hh, r + 2 * hh + 1, ar, (n & 1) * SLOT + ks * 10240 + hh * 1280 + coff))
        return g
    D = NRING - 1
    for f in range(D): S.extend(read(f))
    def tmpr(ph, c, b):
        pairs = [12, 14, 2, 36, 38]
        return pairs[(2 * c + b) % len(pairs)]
    def cvt(ph, c, b):
        a = acc(c, b); t = tmpr(ph, c, b)
        return G('v_cvt_pk_bf16_f32 v%d, v%d, v%d\nv_cvt_pk_bf16_f32 v%d, v%d, v%d' % (t, a, a + 1, t + 1, a + 2, a + 3))
    def cvti(a):
        return G('v_cvt_pk_bf16_f32 v%d, v%d, v%d\nv_cvt_pk_bf16_f32 v%d, v%d, v%d' % (a, a, a + 1, a + 1, a + 2, a + 3))
    def dw(ph, c, b, src=None):
        t = tmpr(ph, c, b) if src is None else src
        if OPT.get('nodw'): return []
        if ph == 0:
            return G('ds_write_b64 v10, v[%d:%d] offset:%d' % (t, t + 1, 16 * b * ZP + 32 * c), tok_w=['HB'])
        return G('ds_write_b64 v11, v[%d:%d] offset:%d' % (t, t + 1, (16 + 16 * b) * QP + 32 * c), tok_w=['QB'])
    x2 = Stream()
    for q in range(2 * NR1, 18):
        for b in range(2):
            x2('ds_read_b128 %s, v%d offset:%d' % (xf(q, b), vXo if q & 1 else vXe, b * P2 + (q - 2 * NR1) * 1024), tok_w=['TR2'])
    t2 = t2_writes([0, 1, 2])
    addr = G('''
    v_and_b32 v10, 15, v1
    s_lshl_b32 s98, s51, 5
    v_add_u32 v10, s98, v10
    v_mul_u32_u24 v11, %d, v10
    v_mul_u32_u24 v10, %d, v10
    v_lshrrev_b32 v12, 4, v1
    v_lshlrev_b32 v12, 3, v12
    s_mov_b32 s98, %d
    v_add3_u32 v10, v10, v12, s98
    s_mov_b32 s98, %d
    v_add3_u32 v11, v11, v12, s98
    ''' % (QP, ZP, ZB_OFF, QB_OFF))
    hw = G('s_mul_i32 s98, s51, %d\nv_subrev_u32 v5, s98, v11\nv_add_u32 v38, s69, v5' % (32 * QP))
    NC = OPT.get('nc', 0)
    share = []
    for k in range(NC):
        c = 9 - NC + k
        g = Stream()
        off = 16 * ZP + 32 * c
        g('ds_read_b64 v[12:13], v10 offset:%d' % off)
        for _ in range(OPT.get('rgap', 6)): g.append(None)
        g("""v_and_b32 v15, 0xffff0000, v13
        v_lshlrev_b32 v14, 16, v13
        v_and_b32 v13, 0xffff0000, v12
        v_lshlrev_b32 v12, 16, v12""")
        gelu4(g, 12, 36, c2=0)
        g('v_cvt_pk_bf16_f32 v36, v12, v13')
        g('v_cvt_pk_bf16_f32 v37, v14, v15')
        g('ds_write_b64 v10, v[36:37] offset:%d' % off, tok_w=['ZCdone'] if k == NC - 1 else [])
        share.append(list(g))
    zoff = G("""
    s_lshl_b32 s63, s48, 3
    s_lshl_b32 s98, s51, 1
    s_add_u32 s63, s63, s98
    s_mul_i32 s63, s63, 72
    s_mul_i32 s98, s49, 9
    s_add_u32 s98, s98, s52
    s_lshr_b32 s98, s98, 1
    s_add_u32 s63, s63, s98
    s_lshl_b32 s69, s63, 10
    s_add_u32 s70, s69, 73728
    s_cmp_eq_u32 s52, 0
    s_cselect_b32 s63, 4608, 0
    s_sub_u32 s63, s63, 512
    s_add_u32 s71, s69, s63
    s_add_u32 s72, s70, s63
    v_lshlrev_b32 v10, 4, v1
    v_lshrrev_b32 v0, 5, v1
    v_lshlrev_b32 v0, 8, v0
    v_and_b32 v13, 15, v1
    v_lshl_add_u32 v0, v13, 4, v0
    v_bfe_u32 v13, v1, 4, 1
    v_lshl_add_u32 v0, v13, 3, v0
    """)
    light = [[3, list(addr) + list(zaddr(1)) + G('s_mov_b32 s78, 0x%x\nv_mov_b32 v0, 0x%x' % (fbits(C1), fbits(C2)))], [10, list(qaddr())], [17, zoff]]
    WT = ' sc1' if OPT.get('wt', 1) else ''
    def cv(o, a): return G('v_cvt_pk_bf16_f32 v%d, v%d, v%d\nv_cvt_pk_bf16_f32 v%d, v%d, v%d' % (o, a, a + 1, o + 1, a + 2, a + 3))
    def pairfin(p, dst):
        g = Stream()
        for sw in ('v_permlane32_swap_b32', 'v_permlane16_swap_b32'):
            for b in range(2):
                for d in range(2): g('%s v%d, v%d' % (sw, dst[b] + d, dst[b] + 2 + d))
        for b in range(2): g('buffer_store_dwordx4 %s, v10, s[32:35], s%d offen offset:%d%s' % (q4(dst[b]), 69 + b, p * 1024, WT))
        return list(g)
    def pair(p):
        dst = [acc(2 * p, 0), acc(2 * p, 1)]
        return cv(dst[0], dst[0]) + cv(dst[1], dst[1]) + cv(dst[0] + 2, acc(2 * p + 1, 0)) + cv(dst[1] + 2, acc(2 * p + 1, 1)) + pairfin(p, dst)
    single = []
    for b in range(2): single += cv(acc(8, b), acc(8, b))
    for b in range(2): single += G('buffer_store_dwordx2 v[%d:%d], v0, s[32:35], s%d offen%s' % (acc(8, b), acc(8, b) + 1, 71 + b, WT))
    zw = [(2, x) for x in cv(14, acc(1, 0)) + cv(38, acc(1, 1))] + [(4, x) for x in pair(1)] + [(6, x) for x in single] + [(7, x) for x in pairfin(0, [12, 36])] + [(8, x) for x in pair(2) + pair(3)]
    cur = []
    zc_step = [None]
    fi = 0
    for f, (n, ks, c) in enumerate(frs):
        ph, j = divmod(n, 9)
        q = 2 * j + ks
        r = WFR + (f % NRING) * 4
        first = (j == 0 and ks == 0 and c == 0)
        if first: fi = 0
        if stamp and first and ph > 0 and not OPT.get('trace'): stamp_mid(S, 88 + 2 * ph)
        if first and ph == 1: S.extend(cvt(0, 0, 0))
        if first and ph == 2:
            assert not light and not cur and not share
            S.extend(cv(12, acc(0, 0)) + cv(36, acc(0, 1)))
        if n == 18: assert not zw or zw[0][0] > fi, (fi, zw[0][0])
        rd = read(f + D) if f + D < len(frs) else []
        if f % 2 == 0 and f + 1 < len(frs) and not OPT.get('allwait'):
            r1 = WFR + ((f + 1) % NRING) * 4
            S.need(*['v%d' % k for k in range(r1, r1 + 4)])
        for b in range(2):
            a = acc(c, b)
            S('v_mfma_f32_16x16x32_bf16 %s, %s, %s, %s' % (q4(a), q4(r), xf(q, b), '0' if q == 0 else q4(a)))
            S.extend(rd[:-1] if b == 0 else rd[-1:])
            if n == 9:
                if ks == 0 and b == 0: S.extend(cvt(0, c, 1))
                if ks == 0 and b == 1: S.extend(dw(0, c, 0))
                if ks == 1 and b == 0: S.extend(dw(0, c, 1))
                if ks == 1 and b == 1 and c < 8: S.extend(cvt(0, c + 1, 0))
            if n == 18:
                for _ in range(OPT.get('zrate', 5)):
                    if zw: S.append(zw.pop(0)[1])
                if fi == 6 and b == 1: S.extend(halo_read(0))
            if n == 0 and t2 and b == 1: S.append(t2.pop(0))
            if n in (1, 2) and x2 and b == 1 and (n == 2 or ks == 1 or c > 0): S.append(x2.pop(0))
            gaps_left = sum(2 for ff in range(f, len(frs)) if frs[ff][0] < 17)
            if not cur and share and not (light and n >= light[0][0]) and n >= 10 and gaps_left > len(share[0]):
                cur.extend(share.pop(0))
            if cur:
                x = cur.pop(0)
                if x is not None: S.append(x)
                if not cur and not share: zc_step[0] = n
            elif light and n >= light[0][0] and n != 9:
                x = light[0][1].pop(0); S.append(x)
                while x.kind == 'salu' and light[0][1]:
                    x = light[0][1].pop(0); S.append(x)
                if not light[0][1]: light.pop(0)
        if ph == 2 and c == 4:
            S('v_mfma_f32_16x16x32_bf16 %s, %s, %s, %s' % (q4(hA + 4), q4(r), q4(hX), '0' if q == 0 else q4(hA + 4)))
        if ph == 2 and c == 5:
            S('v_mfma_f32_16x16x32_bf16 %s, %s, %s, %s' % (q4(hA), q4(hW), q4(hX), '0' if q == 0 else q4(hA)))
            if q < 17 and (q & 1) == 0: S.extend(halo_read(q + 1))
        if ph == 2 and c == 6 and q < 17 and (q & 1) == 1: S.extend(halo_read(q + 1))
        fi += 1
    assert not t2 and not x2 and not share and not cur and not zw
    OPT['zc_step'] = zc_step[0]
    if stamp: stamp_mid(S, 94)
    S('s_mul_i32 s98, s51, %d' % (32 * QP))
    S('v_subrev_u32 v5, s98, v11')
    S('v_add_u32 v6, s73, v5')
    for c in range(8):
        for b in range(2): S.extend(cvti(acc(c, b)))
    S('s_barrier')
    for c in range(7):
        for b in range(2): S.extend(dw(1, c, b, acc(c, b)))
    for b in range(2): S('ds_write_b64 v%d, v[%d:%d] offset:%d' % (5 if b else 6, hA + 4 * b, hA + 4 * b + 1, 128 * b), tok_w=['QB'])
    nz = OPT.get('nzc', 0)
    if nz:
        n2a, n2b = norm_z2(range(nz))
        S.extend(n2a)
    S.need('QB')
    S('s_barrier')
    V2.S1 = 40; V2.QB_OFF = QB_OFF; V2.VOFF = 72; V2.QOFF = 144
    S.extend(V2.attention(0))
    if OPT.get('attc'): S.extend(V2.attention(1))
    if nz: S.extend(n2b)
    if stamp:
        stamp_mid(S, 96)
        S('s_waitcnt vmcnt(0)')
        stamp_mid(S, 70)
        stamp_store(S, 84, [86, 88, 90, 92, 94, 96, 70 if not OPT.get('ptrace') else 66], 14, 0, 72, 12, wave_s=50)
    S('s_endpgm')
    return S

HL = 232
def helper(stamp):
    S = Stream()
    S('K1_HELP:')
    if OPT.get('cpf'): S.extend(code_prefetch('k1_kernel', 'k2_kernel', 1, 40, 34, 64, 12, neg=True))
    S("""s_getpc_b64 s[64:65]
    s_add_u32 s64, s64, K1_TAB@rel32@lo+4
    s_addc_u32 s65, s65, K1_TAB@rel32@hi+12
    s_mul_i32 s66, s51, 3072
    v_lshlrev_b32 v32, 4, v1
    v_add_u32 v32, s66, v32
    v_mov_b32 v33, s65
    v_add_co_u32 v32, vcc, s64, v32
    v_addc_co_u32 v33, vcc, 0, v33, vcc
    global_load_dwordx4 v[16:19], v[32:33], off
    global_load_dwordx4 v[20:23], v[32:33], off offset:1024
    global_load_dwordx4 v[24:27], v[32:33], off offset:2048""")
    xloads(S, [0])
    common_setup(S)
    srd(S, 20, 6, 7, 576 * 3456)
    srd(S, 24, 8, 9, 576 * 9216)
    S("""
    s_lshl_b32 s68, s51, 10
    s_mul_i32 s64, s49, 288
    s_and_b32 s64, s64, -64
    s_mul_i32 s65, s49, 72
    s_and_b32 s65, s65, -32
    v_mov_b32 v106, 0x7f000000
    """)
    srd(S, 4, 10, 11, 2048 * 4096)
    vHW = 26; vH0 = 28
    QH = Stream()
    QH("""
    s_mov_b32 s78, 0x%x
    v_mov_b32 v%d, 0x%x
    s_lshl_b32 s8, s2, 15
    s_lshl_b32 s9, s51, 11
    s_add_u32 s8, s8, s9
    v_lshlrev_b32 v8, 7, v1
    s_mul_i32 s98, s48, %d
    s_sub_u32 s98, s98, %d
    v_add_u32 v100, s98, v27
    v_bfe_u32 v101, v1, 3, 1
    v_add_u32 v101, s%d, v101
    """ % (fbits(C1), vC2, fbits(C2), 128 * 1152, 16 * 1152, sBLK))
    for t in range(5):
        QH('v_add_u32 v102, %d, v101' % (2 * t))
        QH('v_subrev_u32 v103, 9, v102')
        QH('v_min_u32 v102, v102, v103')
        QH('v_lshl_add_u32 v%d, v102, 7, v100' % (vH0 + t))
    QH('''
    v_and_b32 v103, 15, v1
    v_cmp_gt_u32 vcc, 8, v103
    v_cndmask_b32 v%d, v106, v%d, vcc
    ''' % (vH0 + 4, vH0 + 4))
    for t in range(5):
        QH('buffer_load_dwordx4 %s, v%d, s[16:19], 0 offen' % (q4(HL + 4 * t), vH0 + t))
    if stamp: stamp_mid(S, 86)
    layernorm(S, [3], mid=wdma(0), mid2=wdma(1))
    for j in range(NR1, 9): norm4(S, ln(0, j), ST, ST + 6)
    t2_addr(S)
    S.need('W0')
    S('s_barrier')
    if stamp: stamp_mid(S, 88)
    q1 = list(QH) + list(ln_halo(vHW))
    q2 = list(epi_z2())
    V2.S1 = 136; V2.QB_OFF = QB_OFF; V2.VOFF = 72; V2.QOFF = 144
    q3 = list(V2.attention(1))
    B = OPT.get('budget', 64)
    if OPT.get('noside'):
        q1 = []; q2 = q2[-1:]; q3 = []
    pub_step = None
    n2a, n2b = norm_z2(range(OPT.get('nzc', 0) if (OPT.get('zzq') or OPT.get('early')) else NZC, 9))
    q4_ = list(n2a) + list(n2b)
    for n in range(27):
        if n > 0:
            toks = ['W%d' % n]
            if n == 1: toks.append('T2')
            if n == 4: toks.append('ZE')
            if n == (18 if OPT.get('zzq') else 9): toks.append('XH')
            if (OPT.get('zzq') or OPT.get('early')) and n == OPT.get('pollstep', 25): S.append('POLLCHECK')
            if pub_step is not None and n == pub_step + 2: toks += ['PUB', 'ZB']
            if OPT.get('trace'):
                S('s_memtime s[96:97]\ns_waitcnt lgkmcnt(0)\ns_sub_u32 s96, s96, s84\nv_writelane_b32 v254, s96, %d' % n)
            S.need(*toks)
            if OPT.get('trace'):
                S('s_memtime s[96:97]\ns_waitcnt lgkmcnt(0)\ns_sub_u32 s96, s96, s84\nv_writelane_b32 v254, s96, %d' % (n + 32))
            S('s_barrier')
            if OPT.get('trace'):
                S('s_memtime s[96:97]\ns_waitcnt lgkmcnt(0)\ns_sub_u32 s96, s96, s84\nv_writelane_b32 v255, s96, %d' % n)
            if pub_step is not None and n == pub_step + 2: S.append('ATOMIC')
        if stamp and n in (9, 18): stamp_mid(S, 88 + 2 * (n // 9))
        mem = []
        if n + 2 < 27 and not OPT.get('nodma'):
            w = list(wdma(n + 2))
            mem = [w[:-8]] + [w[-8 + 2 * k:len(w) - 6 + 2 * k] for k in range(4)]
            assert sum(len(x) for x in mem) == len(w)
            if OPT.get('dg') == 3: mem = [mem[0] + mem[1], mem[2] + mem[3], mem[4]]
            if OPT.get('dg') == 2: mem = [mem[0] + mem[1] + mem[2], mem[3] + mem[4]]
        if n in (2, 4, 6, 9) and not OPT.get('nopf') and not OPT.get('pfc'):
            mem.append(G('''s_mov_b32 m0, %d
            s_mov_b64 exec, 0xffff
            buffer_load_dword v8, s[4:7], s8 offen lds
            s_mov_b64 exec, -1
            s_add_u32 s8, s8, 8192''' % SB_OFF))
        if OPT.get('pf3') and n in (12, 15) and not OPT.get('pfc'):
            mem.append(G('''s_load_dwordx2 s[4:5], s[0:1], %d
            s_mov_b32 s6, %d
            s_mul_i32 s8, s2, %d
            s_mul_i32 s12, s51, %d
            s_add_u32 s8, s8, s12
            s_mov_b32 m0, %d
            s_waitcnt lgkmcnt(0)
            s_mov_b64 exec, 0x%x
            buffer_load_dword v8, s[4:7], s8 offen lds
            s_mov_b64 exec, -1''' % ((56, 2304 * 1152, 10368, 2688, SB_OFF, 0x1fffff) if n == 12 else (16, 576 * 1152, 2688, 768, SB_OFF, 0x3f))))
        work = []
        if n == 0: work += list(t2_writes([3]))
        if n == 18 and not OPT.get('flags', 1): work += G('s_lshl_b32 s9, s48, 4\nv_mov_b32 v6, 0')
        if OPT.get('flags', 1) and n in (1, 4, 13, 16): work.append({1: 'ENTRY1', 4: 'ENTRY2', 13: 'GATE1', 16: 'GATE2'}[n])
        if n == (OPT.get('pollstep', 25) - 1 if (OPT.get('zzq') or OPT.get('early')) else 26): work.append('POLLISSUE')
        if n == 17 and OPT.get('pf3') and not OPT.get('mega'): work.append('ZERO')
        if n == 19 and OPT.get('mega'): work += G('v_mov_b32 v40, 159744\nv_mov_b32 v42, 0\nv_mov_b32 v43, 0\nv_mov_b32 v44, 0\nv_mov_b32 v45, 0') + G('ds_write_b128 v40, v[42:45]', tok_w=['ZB']) + G('ds_write_b128 v40, v[42:45] offset:16', tok_w=['ZB'])
        if OPT.get('cpf') == 1 and n == 22: work.append(code_prefetch('K2_TEXT' if OPT.get('mega') else 'k2_kernel', 'TEXT_END', 1, 32, 35, 10, 12))
        def drain(q, budget):
            while q and budget > 0:
                if isinstance(q[0], tuple) and q[0][0] == 'WAITSTEP':
                    if n < q[0][1]: break
                    q.pop(0); continue
                x = q.pop(0); budget -= wt(x); work.append(x)
            return budget
        budget = B
        if 0 <= n <= 10 and q1: drain(q1, OPT.get('b1', 34) if n < (10 if OPT.get('zzq') else 8) else 1e9)
        if n >= (11 if OPT.get('zzq') else 10) and q2:
            budget = drain(q2, budget)
            if not q2: pub_step = max(n, 17)
        elif OPT.get('early') and n >= OPT['pollstep']:
            drain(q4_, len(n2a) if n == OPT['pollstep'] else OPT.get('nbudget', 60))
            if n == OPT['pollstep']: drain(q3, OPT.get('abudget', 36))
        elif n >= 19 and not OPT.get('zzq'): drain(q3, OPT.get('abudget', 36))
        elif OPT.get('zzq') and n >= OPT.get('pollstep', 25): drain(q4_, OPT.get('nbudget', 50) if n > OPT.get('pollstep', 25) else len(n2a))
        tot = sum(wt(x) for x in work); acc_ = 0.0; k = 0
        for x in work:
            while k < len(mem) and acc_ >= tot * k / (len(mem) + OPT.get('dmaslack', 1)):
                S.extend(mem[k]); k += 1
            S.append(x); acc_ += wt(x)
        while k < len(mem):
            S.extend(mem[k]); k += 1
    late = pub_step is None or pub_step + 2 > 26
    assert late == bool(OPT.get('late')), (pub_step, 'set late option accordingly')
    if late:
        S.extend(q2)
        S.need('ZB')
        h = len(q3) // 2
        S.extend(q3[:h]); q3 = q3[h:]
        S.need('PUB')
        S('s_barrier')
        S.append('ATOMIC')
    if stamp: stamp_mid(S, 94)
    if OPT.get('zzq'):
        assert pub_step + 2 < OPT.get('pollstep', 25)
        if OPT.get('pollstep') == 27: S.append('POLLCHECK')
        S('s_barrier')
        k = min(len(q4_), OPT.get('n2mid', 60))
        S.extend(q4_[:k]); q4_ = q4_[k:]
        S('s_barrier')
        S.extend(q4_)
        if not OPT.get('attc'): S.extend(q3)
    elif OPT.get('early'):
        assert pub_step + 2 < OPT['pollstep']
        S.extend(q4_); S.extend(q3)
    else:
        S.append('POLLCHECK')
        S('s_barrier')
        S.extend(n2a)
        if OPT.get('mega'): OPT['mega'].prod_early(S)
        S.extend(q3)
        S.extend(n2b)
    if stamp:
        stamp_mid(S, 96)
        if not OPT.get('mega'): S('s_waitcnt vmcnt(0)')
        stamp_mid(S, 70)
        stamp_store(S, 84, [86, 88, 90, 92, 94, 96, 70 if not OPT.get('ptrace') else 66], 14, 0, 72, 12, wave_s=50)
    if OPT.get('trace'):
        S('''s_lshl_b32 s75, s2, 11
        s_lshl_b32 s74, s51, 9
        s_add_u32 s75, s75, s74
        s_add_u32 s75, s75, 0x80000
        v_lshlrev_b32 v12, 2, v1
        buffer_store_dword v254, v12, s[76:79], s75 offen
        buffer_store_dword v255, v12, s[76:79], s75 offen offset:256''')
    if OPT.get('mega'): OPT['mega'].producer(S)
    S('K1_END:')
    S('s_endpgm')
    print('k1 helper: zc', OPT.get('zc_step'), 'pub_step', pub_step, 'att left', sum(wt(x) for x in q3))
    return S

def poll_issue(vr, va):
    return G('s_lshl_b32 s9, s48, 4\nv_mov_b32 v%d, 0' % va) + G('buffer_load_dword v%d, v%d, s[44:47], s9 offen sc1' % (vr, va))
def poll(S, tag, vr=7, va=6):
    S('v_readfirstlane_b32 s11, v%d' % vr)
    S('s_mov_b32 s10, 0')
    S('s_cmp_ge_u32 s11, 16')
    S('s_cbranch_scc1 K1_NOPOLL%s' % tag)
    S("""
    K1_POLL%s:
    s_sleep SLP
    buffer_load_dword v7, v6, s[44:47], s9 offen sc1
    s_waitcnt vmcnt(0)
    v_readfirstlane_b32 s11, v7
    s_add_u32 s10, s10, 1
    s_cmp_ge_u32 s11, 16
    s_cbranch_scc1 K1_NOPOLL%s
    s_cmp_lt_u32 s10, 0x20000
    s_cbranch_scc1 K1_POLL%s
    K1_NOPOLL%s:
    """.replace('SLP', str(OPT.get('slp', 4))).replace('v7', 'v%d' % vr).replace('v6', 'v%d' % va) % (tag, tag, tag, tag))
    S.append(('KEEPQ', 1))

def ln_halo(vHW):
    A = Stream()
    h0 = ST + 4; t = ST + 6
    for k in range(20):
        r = HL + k; tt = t + 2 * (k & 1)
        A('v_lshlrev_b32 v%d, 16, v%d' % (tt, r))
        A('v_and_b32 v%d, 0xffff0000, v%d' % (tt + 1, r))
        if k == 0:
            A('v_add_f32 v%d, v%d, v%d' % (h0, tt, tt + 1))
            A('v_mul_f32 v%d, v%d, v%d' % (h0 + 1, tt, tt))
        else:
            A('v_add_f32 v%d, v%d, v%d' % (h0, h0, tt))
            A('v_fmac_f32 v%d, v%d, v%d' % (h0 + 1, tt, tt))
            A('v_add_f32 v%d, v%d, v%d' % (h0, h0, tt + 1))
        A('v_fmac_f32 v%d, v%d, v%d' % (h0 + 1, tt + 1, tt + 1))
    for m in ('quad_perm:[1,0,3,2]', 'quad_perm:[2,3,0,1]', 'row_half_mirror', 'row_mirror'):
        for r in (h0, h0 + 1):
            A('v_add_f32_dpp v%d, v%d, v%d %s row_mask:0xf bank_mask:0xf' % (r, r, r, m))
    rowstats(A, h0, ST + 6, 's83')
    for t in range(5):
        norm4(A, HL + 4 * t, h0, ST + 6)
        g = Stream()
        if t == 4:
            g('s_mov_b32 exec_lo, 0x00ff00ff')
            g('s_mov_b32 exec_hi, 0x00ff00ff')
        g('ds_write_b128 v%d, %s offset:%d' % (vHW, q4(HL + 4 * t), t * 4096), tok_w=['XH'])
        if t == 4: g('s_mov_b64 exec, -1')
        A.append(list(g))
    return A

def epi_z2():
    E = Stream()
    PK = 60
    def pk(c, b): return PK + b * 20 + 2 * c
    E.append(G("""
    v_and_b32 v10, 15, v1
    v_lshlrev_b32 v11, 3, v10
    s_lshl_b32 s98, s51, 5
    v_add_u32 v10, s98, v10
    v_mul_u32_u24 v10, %d, v10
    v_lshrrev_b32 v12, 4, v1
    v_lshlrev_b32 v12, 3, v12
    s_mov_b32 s98, %d
    v_add3_u32 v10, v10, v12, s98
    """ % (ZP, ZB_OFF)))
    NC = OPT.get('nc', 0)
    order = [(c, b) for b in range(2) for c in range(9)]
    theirs = order[18 - NC:]; order = order[:18 - NC]
    for c, b in order:
        E('ds_read_b64 v[%d:%d], v10 offset:%d' % (pk(c, b), pk(c, b) + 1, 16 * b * ZP + 32 * c))
    for b in range(2):
        E('v_mov_b32 v%d, 0' % (pk(9, b)))
        E('v_mov_b32 v%d, 0' % (pk(9, b) + 1))
    for k in range(4): E('v_mov_b32 v%d, s82' % (132 + k))
    pend = None
    for k, (c, b) in enumerate(order):
        x = 100 + 8 * (k & 1); p = pk(c, b)
        E('v_lshlrev_b32 v%d, 16, v%d' % (x, p))
        E('v_and_b32 v%d, 0xffff0000, v%d' % (x + 1, p))
        E('v_lshlrev_b32 v%d, 16, v%d' % (x + 2, p + 1))
        E('v_and_b32 v%d, 0xffff0000, v%d' % (x + 3, p + 1))
        gelu4(E, x, x + 4)
        E('v_cvt_pk_bf16_f32 v%d, v%d, v%d' % (p, x, x + 1))
        E('v_cvt_pk_bf16_f32 v%d, v%d, v%d' % (p + 1, x + 2, x + 3))
        E('ds_write_b64 v10, v[%d:%d] offset:%d' % (p, p + 1, 16 * b * ZP + 32 * c), tok_w=['ZB'])
    D1 = [116, 120]; D2 = [124, 128]
    if NC:
        E.append(('WAITSTEP', OPT['zc_step'] + 2))
        for c, b in theirs:
            E('ds_read_b64 v[%d:%d], v10 offset:%d' % (pk(c, b), pk(c, b) + 1, 16 * b * ZP + 32 * c))
    for c in range(0, 9, 2):
        for b in range(2):
            p = q4(pk(c, b))
            E('v_mfma_f32_16x16x32_bf16 %s, v[132:135], %s, %s' % (q4(D1[b]), p, '0' if c == 0 else q4(D1[b])))
            E('v_mfma_f32_16x16x32_bf16 %s, %s, %s, %s' % (q4(D2[b]), p, p, '0' if c == 0 else q4(D2[b])))
    g = G(setm('vcc', m64(lambda i, g: i & 1)))
    for b in range(2):
        g += G('v_cndmask_b32 v%d, v%d, v%d, vcc' % (D2[b], D2[b], D2[b] + 1))
        g += G('v_cndmask_b32 v%d, v%d, v%d, vcc' % (D2[b] + 2, D2[b] + 2, D2[b] + 3))
    g += G(setm('vcc', m64(lambda i, g: i & 2)))
    for b in range(2):
        g += G('v_cndmask_b32 v%d, v%d, v%d, vcc' % (D1[b] + 1, D2[b], D2[b] + 2))
    g += G("""
    s_lshl_b32 s99, s48, 4
    s_add_u32 s99, s99, s49
    s_lshl_b32 s99, s99, 10
    s_lshl_b32 s98, s51, 8
    s_add_u32 s99, s99, s98
    """) + G(setm('exec', m64(lambda i, g: g == i >> 2)))
    for b in range(2):
        g += G('buffer_store_dwordx2 v[%d:%d], v11, s[40:43], s99 offen offset:%d sc1' % (D1[b], D1[b] + 1, 128 * b), tok_w=['PUB'])
    g += G('s_mov_b64 exec, -1')
    E.append(g)
    return E

NZC = 4
def norm_z2(tiles, regs=(176, 208, 244, 248)):
    S = Stream()
    pl, zf, tb, a0 = regs
    S("""
    v_lshrrev_b32 v%d, 4, v1
    v_lshlrev_b32 v%d, 12, v%d
    v_and_b32 v%d, 15, v1
    v_lshl_add_u32 v%d, v%d, 4, v%d
    s_lshl_b32 s9, s48, 14
    s_lshl_b32 s10, s51, 8
    s_add_u32 s9, s9, s10
    """ % (a0, a0, a0, a0 + 1, a0, a0 + 1, a0))
    for k in range(4):
        S('buffer_load_dwordx4 %s, v%d, s[40:43], s9 offen offset:%d sc1' % (q4(pl + 4 * k), a0, k * 1024))
    S("""
    v_lshrrev_b32 v{z}, 4, v1
    v_lshlrev_b32 v{r}, 6, v{z}
    v_lshlrev_b32 v{z}, 3, v{z}
    v_bfe_u32 v{t}, v1, 2, 2
    v_add_u32 v{z}, v{z}, v{t}
    s_lshl_b32 s9, s51, 5
    v_add_u32 v{z}, s9, v{z}
    v_mul_u32_u24 v{z}, {ZP}, v{z}
    v_and_b32 v{t}, 3, v1
    v_lshl_add_u32 v{z}, v{t}, 3, v{z}
    v_add_u32 v{z}, {ZB}, v{z}
    """.format(z=a0 + 2, r=a0 + 3, t=tb, ZP=ZP, ZB=ZB_OFF))
    S.need('ZB')
    for c in tiles:
        for hh in range(2):
            S('ds_read_b64_tr_b16 v[%d:%d], v%d offset:%d' % (zf + 4 * c + 2 * hh, zf + 4 * c + 2 * hh + 1, a0 + 2, hh * 4 * ZP + 32 * c))
    S("""
    s_lshl_b32 s9, s50, 8
    s_add_u32 s9, s9, {SB}
    v_lshlrev_b32 v{w}, 4, v{w}
    v_add_u32 v{w}, s9, v{w}
    v_add_u32 v{r}, s9, v{r}
    v_lshlrev_b32 v{p}, 4, v1
    v_xor_b32 v{p1}, 64, v{p}
    s_lshl_b32 s12, s49, 6
    s_lshl_b32 s13, s48, 2
    s_add_u32 s12, s12, s13
    s_add_u32 s12, s12, s51
    s_mul_i32 s12, s12, 9216
    s_add_u32 s13, s12, 4096
    s_add_u32 s10, s12, 8192
    s_mov_b32 s11, 0x{inv:x}
    """.format(SB=SB_OFF, w=a0 + 1, r=a0 + 3, p=a0 + 4, p1=a0 + 5, inv=fbits(1.0 / 2304)))
    A = S
    S = Stream()
    for k in range(2):
        for e in range(4): S('v_add_f32 v%d, v%d, v%d' % (pl + 4 * k + e, pl + 4 * k + e, pl + 8 + 4 * k + e))
    for e in range(4): S('v_add_f32 v%d, v%d, v%d' % (pl + e, pl + e, pl + 4 + e))
    for sw in ('v_permlane16_swap_b32', 'v_permlane32_swap_b32'):
        for k in range(4): S('v_mov_b32 v%d, v%d' % (pl + 4 + k, pl + k))
        for k in range(4): S('%s v%d, v%d' % (sw, pl + k, pl + 4 + k))
        for k in range(4): S('v_add_f32 v%d, v%d, v%d' % (pl + k, pl + k, pl + 4 + k))
    for r in (pl, pl + 2): rowstats(S, r, tb, 's11')
    S('ds_write_b128 v%d, %s' % (a0 + 1, q4(pl)), tok_w=['SB'])
    S.need('SB')
    sr = pl + 16
    for k in range(4): S('ds_read_b128 %s, v%d offset:%d' % (q4(sr + 4 * k), a0 + 3, 16 * k))
    for c in tiles:
        for d in range(4):
            r = zf + 4 * c + d
            t = tb + 2 * (d & 1)
            S('v_lshlrev_b32 v%d, 16, v%d' % (t, r))
            S('v_and_b32 v%d, 0xffff0000, v%d' % (t + 1, r))
            S('v_fma_f32 v%d, v%d, v%d, v%d' % (t, t, sr + 4 * d, sr + 4 * d + 1))
            S('v_fma_f32 v%d, v%d, v%d, v%d' % (t + 1, t + 1, sr + 4 * d + 2, sr + 4 * d + 3))
            S('v_cvt_pk_bf16_f32 v%d, v%d, v%d' % (r, t, t + 1))
        S('buffer_store_dwordx4 %s, v%d, s[36:39], s%d offen offset:%d' % (q4(zf + 4 * c), a0 + 5 if c & 1 else a0 + 4, (12, 13, 10)[c >> 2], (c & 3) * 1024) + (' sc1' if OPT.get('wt2') or OPT.get('mega') else ''))
    return A, S
```

```python
from common import *
import math, struct

def fbits(x): return struct.unpack('<I', struct.pack('<f', x))[0]
SLOT = 19456
T1_OFF = 38912; T2_OFF = 77824; XH_OFF = 143360; ZB_OFF = 77824; QB_OFF = 115712; SB_OFF = 161792
K1_LDS = 163840
QP = 240; ZP = 296; VOFF = 80; QOFF = 160; STFLAG = ''; WIDE = True
XF = 112; S0 = 32; S1 = 72; WFR = 16
C1 = -2.0 * math.sqrt(2.0 / math.pi) * math.log2(math.e)
C2 = C1 * 0.044715
SCL = (18 ** -0.5) * math.log2(math.e)
NR1 = 6
P1 = NR1 * 2048; P2 = (9 - NR1) * 2048

def xf(j, b): r = XF + (j * 2 + b) * 4; return 'v[%d:%d]' % (r, r + 3)
def q4(r): return 'v[%d:%d]' % (r, r + 3)

vWq = 2; vWz = 3; vT = 4; vTs = 5; vA1 = 6; vA2 = 7; vA3 = 8; vC2 = 9
sBLK = 54
OPT = {}

def gelu(S, x, t, sc1='s78', c2=vC2):
    S('v_mul_f32 v%d, v%d, v%d' % (t, x, x))
    S('v_fma_f32 v%d, v%d, v%d, %s' % (t, t, c2, sc1))
    S('v_mul_f32 v%d, v%d, v%d' % (t, t, x))
    S('v_exp_f32 v%d, v%d' % (t, t))
    S('v_add_f32 v%d, 1.0, v%d' % (t, t))
    S('v_rcp_f32 v%d, v%d' % (t, t))
    S('v_mul_f32 v%d, v%d, v%d' % (x, x, t))
def gelu4(S, x, t, **kw):
    subs = []
    for k in range(4):
        s = Stream(); gelu(s, x + k, t + k, **kw); subs.append(s)
    for i in range(7):
        for k in range(4): S.append(subs[k][i])

def flatten(lst):
    for x in lst:
        if isinstance(x, list):
            for y in flatten(x): yield y
        else: yield x

def is_mem(x):
    if isinstance(x, list): return any(is_mem(y) for y in x) and not any((not isinstance(y, (str, list))) and y.kind in ('valu', 'trans') for y in x)
    if isinstance(x, str): return False
    return x.kind in ('ds', 'vmem', 'dma')
def merge(main, side, start=0, end=None):
    segs = [[]]
    for x in main:
        if not isinstance(x, (str, list)) and x.kind == 'mfma' and not getattr(x, 'label', None) == 'side': segs.append([])
        segs[-1].append(x)
    nm = len(segs) - 1
    if end is None: end = nm
    if end < 0: end = nm + end
    n = end - start
    def wt(x):
        if isinstance(x, str): return 1
        if isinstance(x, list): return sum(wt(y) for y in x)
        if x.kind in ('need', 'label'): return 0
        if x.kind in ('trans', 'mfma'): return 2
        if x.kind == 'salu': return 0.3
        return 1
    if OPT.get('sidenolds'):
        side = [x for x in side if isinstance(x, (str, list)) or x.kind != 'ds']
    if OPT.get('sidenovalu'):
        side = [x for x in side if isinstance(x, (str, list)) or x.kind not in ('valu', 'trans')]
    w = [wt(x) for x in side]
    total = sum(w); pos = 0; acc = 0.0
    out = Stream()
    out.extend(segs[0])
    for k in range(nm):
        seg = segs[k + 1]
        cut = 1
        while cut < len(seg) and (isinstance(seg[cut], str) or is_mem(seg[cut]) or (not isinstance(seg[cut], list) and seg[cut].kind not in ('valu', 'trans', 'mfma'))): cut += 1
        if start <= k < end:
            target = total * (k - start + 1) / n
            last = (k == end - 1)
            mem = []; val = []
            seen_valu = False
            while pos < len(side) and (acc + w[pos] <= target + 1e-9 or last):
                x = side[pos]
                skip = (not isinstance(x, (str, list))) and x.kind in ('need', 'salu')
                if is_mem(x) and seen_valu and not last: break
                if not seen_valu and (is_mem(x) or skip): mem.append(x)
                else:
                    val.append(x)
                    if not skip: seen_valu = True
                acc += w[pos]; pos += 1
            if all(is_mem(y) or isinstance(y, str) or (not isinstance(y, list) and y.kind not in ('valu', 'trans')) for y in seg[cut:]) or True:
                out.extend(seg[:cut]); out.extend(mem); out.extend(seg[cut:]); out.extend(val)
        else:
            out.extend(seg)
    assert pos == len(side)
    return out

def rowstats(S, r, t, sinv):
    S('''
    v_mul_f32 v%d, %s, v%d
    v_mul_f32 v%d, v%d, v%d
    v_fma_f32 v%d, v%d, %s, -v%d
    v_max_f32 v%d, 0, v%d
    v_add_f32 v%d, 0x3727c5ac, v%d
    v_rsq_f32 v%d, v%d
    v_mul_f32 v%d, v%d, v%d
    v_sub_f32 v%d, 0, v%d
    v_mov_b32 v%d, v%d
    ''' % (r, sinv, r, t, r, r, r + 1, r + 1, sinv, t, r + 1, r + 1, r + 1, r + 1, t, r + 1, r + 1, r, t, r + 1, r + 1, r, t))
def dots(regs, sa, qa):
    out = Stream()
    for k, r in enumerate(regs):
        out('v_dot2_f32_bf16 v%d, v%d, s82, %s' % (sa, r, '0' if k == 0 else 'v%d' % sa))
        out('v_dot2_f32_bf16 v%d, v%d, v%d, %s' % (qa, r, r, '0' if k == 0 else 'v%d' % qa))
    return out
def norm4(S, r, st, tb):
    subs = []
    for d in range(4):
        t = tb + 2 * (d & 1)
        s = Stream()
        s('v_lshlrev_b32 v%d, 16, v%d' % (t, r + d))
        s('v_and_b32 v%d, 0xffff0000, v%d' % (t + 1, r + d))
        s('v_fma_f32 v%d, v%d, v%d, v%d' % (t, t, st, st + 1))
        s('v_fma_f32 v%d, v%d, v%d, v%d' % (t + 1, t + 1, st, st + 1))
        s('v_cvt_pk_bf16_f32 v%d, v%d, v%d' % (r + d, t, t + 1))
        subs.append(s)
    for pair in (0, 2):
        for i in range(5):
            S.append(subs[pair][i]); S.append(subs[pair + 1][i])

PH = [('Z2', 9216, 4608), ('Q', 3456, 0), ('Z1', 9216, 0)]
def wdma_groups(n):
    ph, j = divmod(n, 9)
    nm, pitch, add = PH[ph]
    out = []
    for e in range(4):
        P = Stream()
        if e == 0:
            P('s_mul_i32 s63, s%d, %d' % (sBLK + j, 64 * pitch))
            if add: P('s_add_u32 s63, s63, %d' % add)
            P('s_add_u32 m0, s68, %d' % ((n & 3) * SLOT))
        else:
            P('s_add_u32 s63, s63, %d' % (2 * pitch - 576))
        P('s_mov_b64 exec, s[%s]' % ('66:67' if ph == 1 else '64:65'))
        P('buffer_load_dwordx4 v%d, s[%s], s63 offen offset:%d lds' % (vWq if ph == 1 else vWz, '20:23' if ph == 1 else '24:27', e * 576), tok_w=['W%d' % n])
        P('s_mov_b64 exec, -1')
        out.append(list(P))
    return out

LN1 = 16
LN2 = XF + 16 * NR1
HL = S1 + 24
ST = S1
def ln(g, j): return LN1 + (g * NR1 + j) * 4 if j < NR1 else LN2 + (g * (9 - NR1) + j - NR1) * 4
vTW = S1 + 12; vHW = S1 + 13; vXe = S1 + 14; vXo = S1 + 15; vH0 = S1 + 16

def gen_k1(stamp=False, xmap='84', rot=True, **opt):
    OPT.clear(); OPT.update(opt)
    F = Finisher()
    S = Stream()
    S('''
    s_load_dwordx4 s[4:7], s[0:1], 0
    s_load_dwordx2 s[8:9], s[0:1], 32
    s_load_dwordx4 s[12:15], s[0:1], 72
    s_load_dwordx2 s[10:11], s[0:1], 40
    s_cmp_ge_u32 s2, 256
    s_cbranch_scc1 K1_END
    ''')
    if stamp: stamp_begin(S, 84)
    S('''
    v_lshrrev_b32 v10, 6, v0
    v_and_b32 v1, 63, v0
    v_readfirstlane_b32 s50, v10
    s_and_b32 s63, s2, 7
    s_lshr_b32 s64, s2, 3
    ''')
    if xmap == '84':
        S('''
        s_and_b32 s48, s63, 1
        s_lshl_b32 s48, s48, 3
        s_and_b32 s65, s64, 7
        s_add_u32 s48, s48, s65
        s_lshr_b32 s49, s63, 1
        s_lshl_b32 s49, s49, 2
        s_lshr_b32 s64, s64, 3
        s_add_u32 s49, s49, s64
        s_lshl_b32 s64, s64, 1
        s_add_u32 s53, s64, s65
        ''')
    else:
        S('''
        s_lshr_b32 s48, s63, 1
        s_lshl_b32 s48, s48, 2
        s_and_b32 s65, s64, 3
        s_add_u32 s48, s48, s65
        s_and_b32 s49, s63, 1
        s_lshl_b32 s49, s49, 3
        s_lshr_b32 s64, s64, 2
        s_add_u32 s49, s49, s64
        s_lshl_b32 s65, s65, 1
        s_add_u32 s53, s64, s65
        ''')
    if not rot: S('s_mov_b32 s53, 0')
    S('''
    s_sub_u32 s64, s53, 9
    s_cmp_ge_u32 s53, 9
    s_cselect_b32 s%d, s64, s53
    s_and_b32 s51, s50, 3
    s_and_b32 s52, s49, 1
    s_lshl_b32 s63, s48, 7
    s_lshl_b32 s64, s50, 4
    s_add_u32 s63, s63, s64
    v_lshrrev_b32 v12, 3, v1
    v_and_b32 v13, 7, v1
    v_add_u32 v10, s63, v12
    v_mul_u32_u24 v10, 1152, v10
    v_lshl_add_u32 v10, v13, 4, v10
    v_add_u32 v11, 9216, v10
    ''' % sBLK)
    for j in range(1, 9):
        S('s_add_u32 s%d, s%d, 1' % (sBLK + j, sBLK + j - 1))
        S('s_cmp_eq_u32 s%d, 9' % (sBLK + j))
        S('s_cselect_b32 s%d, 0, s%d' % (sBLK + j, sBLK + j))
    for j in range(9): S('s_lshl_b32 s%d, s%d, 7' % (69 + j, sBLK + j))
    S('s_waitcnt lgkmcnt(0)')
    srd(S, 16, 4, 5, 2048 * 1152)
    for g in range(2):
        for j in range(9):
            S('buffer_load_dwordx4 %s, v%d, s[16:19], s%d offen' % (q4(ln(g, j)), 10 + g, 69 + j))
    srd(S, 20, 6, 7, 576 * 3456)
    srd(S, 24, 8, 9, 576 * 9216)
    S('''
    v_cmp_le_u32 vcc, 18, v1
    v_subrev_u32 v100, 18, v1
    v_cndmask_b32 v100, v1, v100, vcc     ; ch
    v_cndmask_b32 v101, 0, 1, vcc         ; rr
    s_lshl_b32 s63, s50, 3
    v_add_u32 v101, s63, v101             ; 8w + rr
    s_mul_i32 s64, s49, 288
    v_mul_u32_u24 v102, 9216, v101
    v_lshl_add_u32 v102, v100, 4, v102
    v_add_u32 v%d, s64, v102
    v_mul_u32_u24 v102, 3456, v101
    v_lshl_add_u32 v102, v100, 4, v102
    s_mul_i32 s64, s49, 72
    v_add_u32 v102, s64, v102
    v_mov_b32 v103, 1152
    v_mov_b32 v104, %d
    v_cmp_le_u32 vcc, 5, v100
    v_cndmask_b32 v103, v103, v104, vcc
    v_mov_b32 v104, -160
    v_cmp_le_u32 vcc, 10, v100
    v_cndmask_b32 v103, v103, v104, vcc
    v_add_u32 v%d, v102, v103
    s_mov_b32 s64, -1
    s_mov_b32 s65, 15
    s_mov_b32 s66, 0x%x
    s_mov_b32 s67, 1
    s_mul_i32 s68, s50, 2432
    ''' % (vWz, 2304 - 80, vWq, (0x7fff | (0x7fff << 18)) & 0xffffffff))
    for g in wdma_groups(0): S.extend(g)
    srd(S, 28, 14, 15, AP_SZ, AP_OFF)
    srd(S, 32, 14, 15, Z1P_SZ, Z1P_OFF)
    srd(S, 36, 14, 15, Z2P_SZ, Z2P_OFF)
    srd(S, 40, 14, 15, ST_SZ, ST_OFF)
    srd(S, 44, 12, 13, 256)
    srd(S, 4, 10, 11, 2048 * 4096)
    S('''
    s_mov_b32 s78, 0x%x
    s_mov_b32 s79, 0x%x
    s_mov_b32 s80, 0x05040100
    s_mov_b32 s81, 0x07060302
    s_mov_b32 s82, 0x3f803f80
    s_mov_b32 s83, 0x%x
    v_mov_b32 v%d, 0x%x
    s_lshl_b32 s8, s2, 15
    s_lshl_b32 s9, s50, 8
    s_add_u32 s8, s8, s9                 ; prefetch offset
    v_lshlrev_b32 v%d, 7, v1
    ''' % (fbits(C1), fbits(SCL), fbits(1.0 / 576), vC2, fbits(C2), vA3))
    S('''
    v_xor_b32 v102, v12, v13
    v_and_b32 v103, 3, v1
    v_lshl_add_u32 v102, v103, 4, v102
    v_lshlrev_b32 v102, 4, v102
    v_bfe_u32 v104, v1, 2, 1
    v_lshl_add_u32 v102, v104, 10, v102
    s_mul_i32 s63, s50, %d
    s_add_u32 s63, s63, %d
    v_add_u32 v%d, s63, v102
    s_lshl_b32 s63, s50, 1
    v_lshrrev_b32 v100, 5, v1
    v_add_u32 v100, s63, v100            ; halo row i
    v_xor_b32 v102, v100, v13
    v_lshl_add_u32 v102, v103, 4, v102
    v_lshlrev_b32 v102, 4, v102
    v_bfe_u32 v104, v1, 2, 3
    v_lshl_add_u32 v102, v104, 10, v102
    v_add_u32 v%d, %d, v102
    v_and_b32 v101, 15, v1
    v_lshrrev_b32 v105, 4, v1
    v_xor_b32 v102, v101, v105
    v_lshl_add_u32 v102, v105, 4, v102
    v_lshlrev_b32 v102, 4, v102          ; plain frag read offset (even)
    s_mul_i32 s63, s51, %d
    s_add_u32 s63, s63, %d
    v_add_u32 v%d, s63, v102
    v_xor_b32 v%d, 64, v%d
    v_add_u32 v%d, %d, v102
    v_xor_b32 v%d, 64, v%d
    v_mul_u32_u24 v105, 2432, v105
    v_bfe_u32 v101, v1, 2, 2
    v_mul_u32_u24 v101, 288, v101
    v_lshlrev_b32 v103, 3, v103
    v_add3_u32 v%d, v105, v101, v103
    ''' % (P1, T1_OFF, vTW, vHW, XH_OFF, 2 * P1, T1_OFF, vXe, vXo, vXe, vA1, XH_OFF, vA2, vA1, vT))
    S('''
    s_lshl_b32 s63, s48, 7
    s_sub_u32 s63, s63, 16
    v_add_u32 v100, s63, v100
    s_movk_i32 s63, 1152
    v_mul_lo_u32 v100, v100, s63
    v_lshl_add_u32 v100, v13, 4, v100
    v_bfe_u32 v101, v1, 3, 2
    v_add_u32 v101, s%d, v101
    ''' % sBLK)
    for t in range(3):
        S('v_add_u32 v102, %d, v101' % (4 * t))
        S('v_subrev_u32 v103, 9, v102')
        S('v_min_u32 v102, v102, v103')
        S('v_lshl_add_u32 v%d, v102, 7, v100' % (vH0 + t))
    S('''
    v_and_b32 v103, 31, v1
    v_cmp_gt_u32 vcc, 8, v103
    v_mov_b32 v102, 0x7f000000
    v_cndmask_b32 v%d, v102, v%d, vcc
    ''' % (vH0 + 2, vH0 + 2))
    if stamp: stamp_mid(S, 86)
    for g in range(2):
        regs = [ln(g, j) + d for j in range(9) for d in range(4)]
        S.extend(dots(regs, ST + 2 * g, ST + 2 * g + 1))
        if g == 0:
            for x in wdma_groups(1): S.extend(x)
    for m in ('quad_perm:[1,0,3,2]', 'quad_perm:[2,3,0,1]', 'row_half_mirror'):
        for r in range(ST, ST + 4):
            S('v_add_f32_dpp v%d, v%d, v%d %s row_mask:0xf bank_mask:0xf' % (r, r, r, m))
    for g in range(2): rowstats(S, ST + 2 * g, ST + 6 + g, 's83')
    for j in range(NR1):
        for g in range(2):
            norm4(S, ln(g, j), ST + 2 * g, ST + 6)
            S('ds_write_b128 v%d, %s offset:%d' % (vTW, q4(ln(g, j)), g * 128 + j * 2048), tok_w=['T'])
    for t in range(3):
        S('buffer_load_dwordx4 %s, v%d, s[16:19], 0 offen' % (q4(HL + 4 * t), vH0 + t))
    S.need('T')
    S('s_barrier')
    for q in range(2 * NR1):
        for b in range(2):
            S('ds_read_b128 %s, v%d offset:%d' % (xf(q, b), vXo if q & 1 else vXe, b * P1 + q * 1024), tok_w=['TR'])
    d2 = T2_OFF - T1_OFF
    S('s_mul_i32 s63, s50, %d' % (P2 - P1))
    S('s_add_u32 s63, s63, %d' % d2)
    S('v_add_u32 v%d, s63, v%d' % (vTW, vTW))
    S.need('TR', 'W0')
    S('s_barrier')
    for g in wdma_groups(2): S.extend(g)
    S('s_mul_i32 s63, s51, %d' % (2 * (P2 - P1)))
    S('s_add_u32 s63, s63, %d' % d2)
    S('v_add_u32 v%d, s63, v%d' % (vXe, vXe))
    S('v_add_u32 v%d, s63, v%d' % (vXo, vXo))
    if stamp: stamp_mid(S, 88)
    S('s_cmp_ge_u32 s50, 4')
    S('s_cbranch_scc1 K1_H1')
    F.run(S)
    txt = F.text()
    state = (F.vmq, F.lgq)
    for h in range(2):
        G2 = Finisher()
        G2.vmq = [set(x) for x in state[0]]; G2.lgq = [(set(a), b) for a, b in state[1]]
        G2.hist = list(F.hist)
        main_half(G2, h, stamp)
        txt += G2.text()
    return txt, 256

def ln_round2():
    A = Stream()
    for j in range(NR1, 9):
        for g in range(2):
            norm4(A, ln(g, j), ST + 2 * g, ST + 6)
            A('ds_write_b128 v%d, %s offset:%d' % (vTW, q4(ln(g, j)), g * 128 + (j - NR1) * 2048), tok_w=['T2'])
    return A
def ln_halo():
    A = Stream()
    h0 = ST + 4
    U = S0 + 32 if False else None
    t = ST + 6
    for k in range(12):
        r = HL + k; tt = t + 2 * (k & 1)
        A('v_lshlrev_b32 v%d, 16, v%d' % (tt, r))
        A('v_and_b32 v%d, 0xffff0000, v%d' % (tt + 1, r))
        if k == 0:
            A('v_add_f32 v%d, v%d, v%d' % (h0, tt, tt + 1))
            A('v_mul_f32 v%d, v%d, v%d' % (h0 + 1, tt, tt))
        else:
            A('v_add_f32 v%d, v%d, v%d' % (h0, h0, tt))
            A('v_fmac_f32 v%d, v%d, v%d' % (h0 + 1, tt, tt))
            A('v_add_f32 v%d, v%d, v%d' % (h0, h0, tt + 1))
        A('v_fmac_f32 v%d, v%d, v%d' % (h0 + 1, tt + 1, tt + 1))
    for m in ('quad_perm:[1,0,3,2]', 'quad_perm:[2,3,0,1]', 'row_half_mirror', 'row_mirror'):
        for r in (h0, h0 + 1):
            A('v_add_f32_dpp v%d, v%d, v%d %s row_mask:0xf bank_mask:0xf' % (r, r, r, m))
    for r in (h0, h0 + 1): A('v_mov_b32 v%d, v%d' % (r + 2, r))
    for r in (h0, h0 + 1):
        A('v_permlane16_swap_b32 v%d, v%d' % (r, r + 2))
        A('v_add_f32 v%d, v%d, v%d' % (r, r, r + 2))
    rowstats(A, h0, ST + 6, 's83')
    for t in range(3):
        norm4(A, HL + 4 * t, h0, ST + 6)
        g = Stream()
        if t == 2:
            g('s_mov_b32 exec_lo, 0xff')
            g('s_mov_b32 exec_hi, 0xff')
        g('ds_write_b128 v%d, %s offset:%d' % (vHW, q4(HL + 4 * t), t * 8192), tok_w=['XH'])
        if t == 2: g('s_mov_b64 exec, -1')
        A.append(list(g))
    return A
def x_round2_reads():
    A = Stream()
    for q in range(2 * NR1, 18):
        for b in range(2):
            A('ds_read_b128 %s, v%d offset:%d' % (xf(q, b), vXo if q & 1 else vXe, b * P2 + (q - 2 * NR1) * 1024), tok_w=['TR2'])
    return A

def main_half(F, h, stamp):
    S = Stream()
    if h: S('K1_H1:')
    if OPT.get('prio') == h: S('s_setprio 1')
    hA = S1 + 32; hX = S1 + 36; vq = [S0 + 32 + k for k in range(4)]
    ntile = [4 + h, 4, 5 - h]
    accbase = [S0, S1, S0]
    def acc(ph, c, b): return accbase[ph] + (c * 2 + b) * 4
    frs = []
    for n in range(27):
        ph, j = divmod(n, 9)
        for ks in range(2):
            for c in range(ntile[ph]):
                frs.append((n, ks, c))
    bias = {}
    extra_tok = {4: ['T2'], 9: ['XH', 'TR2'], 18: ['XHR'], 19: ['QB'], 20: ['PUB'], }
    def halo_read(q):
        return G('ds_read_b128 %s, v%d offset:%d' % (q4(hX), vA2 if q & 1 else vA1, q * 1024), tok_w=['XHR'])
    def read(f):
        n, ks, c = frs[f]
        ph, j = divmod(n, 9)
        g = Stream()
        first = (ks == 0 and c == 0)
        if first and n > 0:
            if n == POLL_STEP and h == 0: g.append('POLL')
            g.need(*(['W%d' % n] + extra_tok.get(n, [])))
            if not OPT.get('nobar'): g('s_barrier')
            if n == 20 and h == 0: g.append('ATOMIC')
            if n == 9 and h == 0:
                for cc in range(4):
                    g('s_add_u32 s98, s51, %d' % cc)
                    g('s_and_b32 s98, s98, 3')
                    g('s_lshl_b32 s%d, s98, 5' % (69 + cc))
                    g('v_add_u32 v%d, s%d, v%d' % (vq[cc], 69 + cc, vT))
                    bias[vq[cc]] = bias.get(vT, 0)
            if n == 9: g.extend(halo_read(0))
            if n == 18:
                g('s_lshl_b32 s98, s52, 5')
                if h == 1: g('s_add_u32 s98, s98, 128')
                g('v_add_u32 v%d, s98, v%d' % (vTs + 0 if False else vA3, vT))
                bias[vA3] = bias.get(vT, 0)
                if h == 0:
                    g('s_cmp_eq_u32 s52, 0')
                    g('s_cselect_b32 s98, 256, 0')
                    g('v_add_u32 v%d, s98, v%d' % (vTs, vT))
                    bias[vTs] = bias.get(vT, 0)
        if ph == 0: ar, coff = vT, 32 * (c + 4 * h)
        elif ph == 1: ar, coff = (vq[c], 0) if h == 0 else (vT, 128 + 32 * c)
        else: ar, coff = (vA3, 32 * c) if c < 4 else (vTs, 0)
        want = (n & 3) >> 1
        if bias.get(ar, 0) != want:
            g('v_add_u32 v%d, %d, v%d' % (ar, 2 * SLOT if want else -2 * SLOT, ar))
            bias[ar] = want
        r = WFR + (f & 3) * 4
        for hh in range(2):
            if OPT.get('noread'): continue
            g('ds_read_b64_tr_b16 v[%d:%d], v%d offset:%d' % (r + 2 * hh, r + 2 * hh + 1, ar, (n & 1) * SLOT + ks * 9728 + hh * 1152 + coff))
        return g
    POLL_STEP = OPT.get('poll', 23)
    steps = [Stream() for _ in range(27)]
    for f in range(3): S.extend(read(f))
    for f, (n, ks, c) in enumerate(frs):
        ph, j = divmod(n, 9)
        q = 2 * j + ks
        M = steps[n]
        r = WFR + (f & 3) * 4
        rd = read(f + 3) if f + 3 < len(frs) else []
        for b in range(2):
            a = acc(ph, c, b)
            M('v_mfma_f32_16x16x32_bf16 %s, %s, %s, %s' % (q4(a), q4(r), xf(q, b), '0' if q == 0 else q4(a)))
            M.extend(rd[:-1] if b == 0 else rd[-1:])
        if ph == 1 and c == 0:
            M('v_mfma_f32_16x16x32_bf16 %s, %s, %s, %s' % (q4(hA), q4(r), q4(hX), '0' if q == 0 else q4(hA)))
            if q < 17: M.extend(halo_read(q + 1))
    for n in range(1, 25):
        if OPT.get('nodma'): break
        grp = wdma_groups(n + 2)
        if 1 <= n <= 16 and not OPT.get('nopf'):
            grp.append(G('''s_mov_b32 m0, %d
            s_mov_b64 exec, 3
            buffer_load_dword v%d, s[4:7], s8 offen lds
            s_mov_b64 exec, -1
            s_add_u32 s8, s8, 2048''' % (SB_OFF, vA3)))
        nm = sum(1 for x in steps[n] if not isinstance(x, (str, list)) and x.kind == 'mfma')
        if OPT.get('dma_burst'):
            steps[n] = merge(steps[n], [sum(grp, [])], 0, 1)
        else:
            lo, hi = (0, nm // 4 + 1) if h == 0 else (nm // 4, nm // 2 + 1)
            steps[n] = merge(steps[n], grp, lo, hi)
    def cat(a, b):
        o = Stream()
        for n in range(a, b): o.extend(steps[n])
        return o
    side = not OPT.get('noside')
    QW = Stream()
    QW.append(G('''
    v_and_b32 v10, 15, v1
    s_lshl_b32 s98, s51, 5
    v_add_u32 v11, s98, v10
    v_mul_u32_u24 v11, %d, v11
    v_lshrrev_b32 v12, 4, v1
    v_lshlrev_b32 v12, 3, v12
    v_mul_u32_u24 v10, %d, v10
    s_mov_b32 s98, %d
    v_add3_u32 v10, v10, v12, s98
    v_add3_u32 v11, v11, v12, s98
    ''' % (QP, QP, QB_OFF)))
    for c in range(4):
        if h == 0: QW('v_add_u32 v13, s%d, v11' % (69 + c))
        for b in range(2):
            a = acc(1, c, b)
            QW('v_cvt_pk_bf16_f32 v%d, v%d, v%d' % (a, a, a + 1))
            QW('v_cvt_pk_bf16_f32 v%d, v%d, v%d' % (a + 1, a + 2, a + 3))
            grp = Stream()
            if h == 1 and c == 3: grp('s_mov_b32 exec_hi, 0')
            grp('ds_write_b64 v%d, v[%d:%d] offset:%d' % (13 if h == 0 else 11, a, a + 1, (16 + 16 * b) * QP + (0 if h == 0 else 128 + 32 * c)), tok_w=['QB'])
            if h == 1 and c == 3: grp('s_mov_b32 exec_hi, -1')
            QW.append(list(grp))
    QW('v_cvt_pk_bf16_f32 v%d, v%d, v%d' % (hA, hA, hA + 1))
    QW('v_cvt_pk_bf16_f32 v%d, v%d, v%d' % (hA + 1, hA + 2, hA + 3))
    if h == 0:
        QW('v_add_u32 v10, s69, v10')
        QW('ds_write_b64 v10, v[%d:%d]' % (hA, hA + 1), tok_w=['QB'])
    else:
        QW('ds_write_b64 v10, v[%d:%d] offset:128' % (hA, hA + 1), tok_w=['QB'])
    out = Stream()
    out.extend(S)
    out.extend(merge(cat(0, 4), ln_round2(), 0, -8))
    steps[4] = merge(steps[4], x_round2_reads(), 0, -2)
    out.extend(merge(cat(4, 9), ln_halo(), 0, -8))
    if stamp: stamp_mid(out, 90)
    out.extend(merge(cat(9, 18), epi_z2(h, ntile[0], lambda c, b: acc(0, c, b)) if side else [], 2, -2))
    if stamp: stamp_mid(out, 92)
    out.extend(merge(steps[18], QW, 0, -8))
    n2a, n2b = norm_z2(h, ntile[0])
    steps[POLL_STEP] = merge(steps[POLL_STEP], n2a, 0, 6)
    out.extend(merge(cat(19, 25), attention(h) if side else [], 0, None))
    out.extend(merge(cat(25, 27), n2b, 0, None))
    if stamp: stamp_mid(out, 94)
    tail(out, h, ntile, acc, stamp)
    for x in flatten(out):
        if x == 'ATOMIC':
            raw = Stream()
            raw('''s_cmp_lg_u32 s51, 0
            s_cbranch_scc1 K1_NOAT
            s_lshl_b32 s9, s48, 4
            v_mov_b32 v6, 0
            v_mov_b32 v7, 1
            s_mov_b64 exec, 1''')
            F.run(raw)
            F.add(I('buffer_atomic_add v7, v6, s[44:47], s9 offen sc1')); F.vmq.pop()
            raw = Stream()
            raw('''s_mov_b64 exec, -1
            K1_NOAT:''')
            F.run(raw)
        elif x == 'POLL':
            keep = [set(q) for q in F.vmq]
            raw = Stream()
            raw('''
            s_cmp_lg_u32 s51, 0
            s_cbranch_scc1 K1_NOPOLL
            s_mov_b32 s10, 0
            K1_POLL:
            buffer_load_dword v7, v6, s[44:47], s9 offen sc0 sc1
            s_waitcnt vmcnt(0)
            v_readfirstlane_b32 s11, v7
            s_add_u32 s10, s10, 1
            s_cmp_ge_u32 s11, 16
            s_cbranch_scc1 K1_NOPOLL
            s_sleep 1
            s_cmp_lt_u32 s10, 0x40000
            s_cbranch_scc1 K1_POLL
            K1_NOPOLL:
            ''')
            F.run(raw)
            F.vmq = keep
        else:
            F.add(x)

def m64(f):
    v = 0
    for l in range(64):
        if f(l & 15, l >> 4): v |= 1 << l
    return v
def setm(reg, v):
    return 's_mov_b32 %s_lo, 0x%x\ns_mov_b32 %s_hi, 0x%x' % (reg, v & 0xffffffff, reg, v >> 32)

def attention(h):
    A = Stream()
    R = S1
    Qf = (R, R + 4); Kf = (R + 8, R + 12, R + 16)
    D = [[R + 20, R + 24], [R + 28, R + 32]]
    VA = R + 8; VB = R + 14
    O = [[R + 20, R + 24], [R + 28, R + 32]]
    Pk = (R, R + 4)
    tmp = R + 36
    vF = 10; vV = 11; vO0 = 12; vO1 = 13; vNeg = 14; vSh = 15
    w0 = 32 * h
    A.append(G("""
    v_and_b32 v12, 15, v1
    s_lshl_b32 s99, s51, 5
    v_add_u32 v13, s99, v12
    v_mul_u32_u24 v10, %d, v13
    v_lshrrev_b32 v14, 4, v1
    v_lshl_add_u32 v10, v14, 4, v10
    v_add_u32 v10, %d, v10
    """ % (QP, QB_OFF)))
    for b in range(2): A('ds_read_b128 %s, v%d offset:%d' % (q4(Qf[b]), vF, (16 + 16 * b) * QP + QOFF + w0))
    for kt in range(3): A('ds_read_b128 %s, v%d offset:%d' % (q4(Kf[kt]), vF, 16 * kt * QP + w0))
    A.append(G("""
    v_lshrrev_b32 v11, 2, v1
    v_add_u32 v11, s99, v11
    v_mul_u32_u24 v11, %d, v11
    v_and_b32 v15, 3, v1
    v_lshl_add_u32 v11, v15, 3, v11
    v_add_u32 v11, %d, v11
    """ % (QP, QB_OFF + VOFF + w0)))
    A.append(G("""
    s_mul_i32 s98, s49, 36
    s_add_u32 s98, s98, %d
    v_lshl_add_u32 v14, v14, 2, s98
    v_lshlrev_b32 v12, 4, v12
    v_lshrrev_b32 v15, 3, v14
    v_lshl_add_u32 v{t}, v15, 8, v12
    v_and_b32 v15, 7, v14
    v_lshl_add_u32 v{t}, v15, 1, v{t}
    v_add_u32 v14, 2, v14
    v_lshrrev_b32 v15, 3, v14
    v_lshl_add_u32 v13, v15, 8, v12
    v_and_b32 v15, 7, v14
    v_lshl_add_u32 v13, v15, 1, v13
    v_mov_b32 v{u}, v12
    v_mov_b32 v12, v{t}
    s_lshl_b32 s69, s48, 3
    s_lshl_b32 s70, s51, 1
    s_add_u32 s69, s69, s70
    s_mul_i32 s69, s69, 92160
    s_add_u32 s70, s69, 92160
    s_add_u32 s98, s98, 16
    s_lshr_b32 s71, s98, 3
    s_lshl_b32 s71, s71, 8
    s_and_b32 s99, s98, 7
    s_lshl_b32 s99, s99, 1
    s_add_u32 s71, s71, s99
    s_add_u32 s98, s98, 2
    s_lshr_b32 s73, s98, 3
    s_lshl_b32 s73, s73, 8
    s_and_b32 s99, s98, 7
    s_lshl_b32 s99, s99, 1
    s_add_u32 s73, s73, s99
    s_add_u32 s72, s71, s70
    s_add_u32 s71, s71, s69
    s_add_u32 s74, s73, s70
    s_add_u32 s73, s73, s69
    s_or_b32 s98, s48, s51
    s_cmp_eq_u32 s98, 0
    s_cselect_b32 s75, 0, -1
    s_mov_b32 s76, 0x55555555
    s_mov_b32 s77, 0x55555555
    v_mov_b32 v14, 0xce6e6b28
    v_and_b32 v15, 1, v1
    v_lshlrev_b32 v15, 4, v15
    """.format(t=tmp, u=tmp + 3) % (16 * h)))
    vRowOnly = tmp + 3
    for b in range(2):
        q = Qf[b]
        if h == 0:
            g = G('s_mov_b32 exec_lo, 0') + G('v_mov_b32 v%d, 0\nv_mov_b32 v%d, 0\nv_mov_b32 v%d, 0' % (q + 1, q + 2, q + 3)) + G('s_mov_b32 exec_hi, 0xffff0000') + G('v_mov_b32 v%d, 0' % q)
        else:
            g = G('s_mov_b32 exec_lo, 0') + G('v_mov_b32 v%d, 0\nv_mov_b32 v%d, 0' % (q + 2, q + 3)) + G('s_mov_b32 exec_hi, 0xffff0000') + G('v_mov_b32 v%d, 0' % (q + 1)) + G('s_mov_b32 exec_lo, 0xffff') + G('v_mov_b32 v%d, 0' % q)
        A.append(g + G('s_mov_b64 exec, -1'))
    for b in range(2):
        for s_ in range(2):
            A('v_mfma_f32_16x16x32_bf16 %s, %s, %s, 0' % (q4(D[b][s_]), q4(Kf[b + s_]), q4(Qf[b])))
    for kt in range(3):
        A('ds_read_b64_tr_b16 v[%d:%d], v%d offset:%d' % (VA + 2 * kt, VA + 2 * kt + 1, vV, 16 * kt * QP))
        A('ds_read_b64_tr_b16 v[%d:%d], v%d offset:%d' % (VB + 2 * kt, VB + 2 * kt + 1, vV, 16 * kt * QP + 32))
    for b in range(2):
        for s_ in range(2):
            d = D[b][s_]
            A('v_cndmask_b32 v%d, v%d, v%d, s[76:77]' % (d, d + 1, d))
            A('v_cndmask_b32 v%d, v%d, v%d, s[76:77]' % (d + 1, d + 3, d + 2))
    for s_ in range(2):
        for k in range(2):
            def valid(i, g, s_=s_, k=k):
                r = 2 * k + (i & 1)
                dl = i - 4 * g - r + (16 if s_ == 0 else 0)
                return 0 <= dl <= 14
            g = G(setm('vcc', m64(valid)))
            g += G('v_cndmask_b32 v%d, v14, v%d, vcc' % (D[1][s_] + k, D[1][s_] + k))
            if s_ == 0: g += G('s_and_b32 vcc_lo, vcc_lo, s75\ns_and_b32 vcc_hi, vcc_hi, s75')
            g += G('v_cndmask_b32 v%d, v14, v%d, vcc' % (D[0][s_] + k, D[0][s_] + k))
            A.append(g)
    def cand(b): return [D[b][0], D[b][0] + 1, D[b][1], D[b][1] + 1]
    def xred(op, x0, x1, t):
        A('v_permlane16_swap_b32 v%d, v%d' % (x0, x1))
        A('%s v%d, v%d, v%d' % (op, x0, x0, x1))
        A('v_mov_b32 v%d, v%d' % (x1, x0))
        A('v_permlane32_swap_b32 v%d, v%d' % (x0, x1))
        A('%s v%d, v%d, v%d' % (op, x0, x0, x1))
        A('v_mov_b32 v%d, v%d' % (x1, x0))
        A('v_permlane16_swap_b32 v%d, v%d' % (x0, x1))
    for b in range(2):
        c = cand(b)
        A('v_max3_f32 v%d, v%d, v%d, v%d' % (tmp + b, c[0], c[1], c[2]))
        A('v_max_f32 v%d, v%d, v%d' % (tmp + b, tmp + b, c[3]))
    xred('v_max_f32', tmp, tmp + 1, None)
    for b in range(2): A('v_mul_f32 v%d, s79, v%d' % (tmp + b, tmp + b))
    for b in range(2):
        for c in cand(b): A('v_fma_f32 v%d, v%d, s79, -v%d' % (c, c, tmp + b))
    for b in range(2):
        for c in cand(b): A('v_exp_f32 v%d, v%d' % (c, c))
    for b in range(2):
        c = cand(b)
        A('v_add_f32 v%d, v%d, v%d' % (tmp + b, c[0], c[1]))
        A('v_add_f32 v%d, v%d, v%d' % (c[0] + 2, c[2], c[3]))
    for b in range(2): A('v_add_f32 v%d, v%d, v%d' % (tmp + b, tmp + b, cand(b)[0] + 2))
    xred('v_add_f32', tmp, tmp + 1, None)
    for b in range(2): A('v_rcp_f32 v%d, v%d' % (tmp + b, tmp + b))
    for b in range(2):
        for c in cand(b): A('v_mul_f32 v%d, v%d, v%d' % (c, c, tmp + b))
    for b in range(2):
        for k, c in enumerate(cand(b)): A('v_cvt_pk_bf16_f32 v%d, v%d, 0' % (Pk[b] + k, c))
    for b in range(2):
        for k in range(4): A('v_lshlrev_b32 v%d, v15, v%d' % (Pk[b] + k, Pk[b] + k))
    for b in range(2):
        A('v_mfma_f32_16x16x32_bf16 %s, %s, %s, 0' % (q4(O[b][0]), q4(VA + 2 * b), q4(Pk[b])))
        A('v_mfma_f32_16x16x32_bf16 %s, %s, %s, 0' % (q4(O[b][1]), q4(VB + 2 * b), q4(Pk[b])))
    for b in range(2):
        o = O[b][0]; p = O[b][1]
        A('v_cvt_pk_bf16_f32 v%d, v%d, v%d' % (o, o, o + 1))
        A('v_cvt_pk_bf16_f32 v%d, v%d, v%d' % (o + 1, o + 2, o + 3))
        A('v_cvt_pk_bf16_f32 v%d, v%d, v%d' % (p, p, p + 1))
        if h: A('v_cvt_pk_bf16_f32 v%d, v%d, v%d' % (p + 1, p + 2, p + 3))
        if WIDE:
            g = []
            if h: g += G('s_mov_b32 exec_lo, 0xffff0000')
            g += G('buffer_store_dwordx2 v[%d:%d], v12, s[28:31], s%d offen' % (o, o + 1, 69 + b) + STFLAG)
            g += G('s_mov_b64 exec, 0xffff')
            if h:
                g += G('buffer_store_dword v%d, v13, s[28:31], s%d offen' % (o + 1, 69 + b) + STFLAG)
                g += G('buffer_store_dwordx2 v[%d:%d], v%d, s[28:31], s%d offen' % (p, p + 1, vRowOnly, 71 + b) + STFLAG)
            else:
                g += G('buffer_store_dword v%d, v%d, s[28:31], s%d offen' % (p, vRowOnly, 71 + b) + STFLAG)
        else:
            g = G('buffer_store_dword v%d, v13, s[28:31], s%d offen' % (o + 1, 69 + b) + STFLAG)
            if h: g += G('s_mov_b32 exec_lo, 0xffff0000')
            g += G('buffer_store_dword v%d, v12, s[28:31], s%d offen' % (o, 69 + b) + STFLAG)
            g += G('s_mov_b64 exec, 0xffff')
            g += G('buffer_store_dword v%d, v%d, s[28:31], s%d offen' % (p, vRowOnly, 71 + b) + STFLAG)
            if h: g += G('buffer_store_dword v%d, v%d, s[28:31], s%d offen' % (p + 1, vRowOnly, 73 + b) + STFLAG)
        g += G('s_mov_b64 exec, -1')
        A.append(g)
    return A

def epi_z2(h, nt, acc):
    E = Stream()
    E.append(G("""
    v_and_b32 v10, 15, v1
    v_lshlrev_b32 v11, 3, v10
    s_lshl_b32 s98, s51, 5
    v_add_u32 v10, s98, v10
    v_mul_u32_u24 v10, %d, v10
    v_lshrrev_b32 v12, 4, v1
    v_lshlrev_b32 v12, 3, v12
    s_mov_b32 s98, %d
    v_add3_u32 v10, v10, v12, s98
    """ % (ZP, ZB_OFF)))
    for b in range(2):
        for c in range(nt):
            T = c + 4 * h
            a = acc(c, b)
            gelu4(E, a, 12)
            o = a if c % 2 == 0 else acc(c - 1, b) + 2
            E('v_cvt_pk_bf16_f32 v%d, v%d, v%d' % (o, a, a + 1))
            E('v_cvt_pk_bf16_f32 v%d, v%d, v%d' % (o + 1, a + 2, a + 3))
            E('ds_write_b64 v10, v[%d:%d] offset:%d' % (o, o + 1, 16 * b * ZP + 32 * T), tok_w=['ZB'])
            if c == 4:
                E('v_mov_b32 v%d, 0' % (a + 2))
                E('v_mov_b32 v%d, 0' % (a + 3))
    for k in range(4): E('v_mov_b32 v%d, s82' % (12 + k))
    D1 = [acc(1, 0), acc(1, 1)]; D2 = [acc(3, 0), acc(3, 1)]
    for c in range(0, nt, 2):
        for b in range(2):
            p = q4(acc(c, b))
            E('v_mfma_f32_16x16x32_bf16 %s, v[12:15], %s, %s' % (q4(D1[b]), p, '0' if c == 0 else q4(D1[b])))
            E('v_mfma_f32_16x16x32_bf16 %s, %s, %s, %s' % (q4(D2[b]), p, p, '0' if c == 0 else q4(D2[b])))
    g = G(setm('vcc', m64(lambda i, g: i & 1)))
    for b in range(2):
        g += G('v_cndmask_b32 v%d, v%d, v%d, vcc' % (D2[b], D2[b], D2[b] + 1))
        g += G('v_cndmask_b32 v%d, v%d, v%d, vcc' % (D2[b] + 2, D2[b] + 2, D2[b] + 3))
    g += G(setm('vcc', m64(lambda i, g: i & 2)))
    for b in range(2):
        g += G('v_cndmask_b32 v%d, v%d, v%d, vcc' % (D1[b] + 1, D2[b], D2[b] + 2))
    g += G("""
    s_lshl_b32 s99, s48, 4
    s_add_u32 s99, s99, s49
    s_lshl_b32 s99, s99, 11
    s_lshl_b32 s98, s51, 8
    s_add_u32 s99, s99, s98
    s_add_u32 s99, s99, %d
    """ % (1024 * h)) + G(setm('exec', m64(lambda i, g: g == i >> 2)))
    for b in range(2):
        g += G('buffer_store_dwordx2 v[%d:%d], v11, s[40:43], s99 offen offset:%d sc0 sc1' % (D1[b], D1[b] + 1, 128 * b), tok_w=['PUB'])
    g += G('s_mov_b64 exec, -1')
    E.append(g)
    return E

def norm_z2(h, n2):
    S = Stream()
    pl = XF; zf = XF + 32; tb = XF + 52; a0 = XF + 56
    S("""
    v_lshrrev_b32 v%d, 4, v1
    v_lshlrev_b32 v%d, 13, v%d
    v_and_b32 v%d, 15, v1
    v_lshl_add_u32 v%d, v%d, 4, v%d
    s_lshl_b32 s9, s48, 15
    s_lshl_b32 s10, s51, 8
    s_add_u32 s9, s9, s10
    s_add_u32 s10, s9, 4096
    """ % (a0, a0, a0, a0 + 1, a0, a0 + 1, a0))
    for k in range(8):
        S('buffer_load_dwordx4 %s, v%d, s[40:43], s%d offen offset:%d sc0 sc1' % (q4(pl + 4 * k), a0, 9 if k < 4 else 10, (k & 3) * 1024))
    A = S
    S = Stream()
    S("""
    v_lshrrev_b32 v{z}, 4, v1
    v_lshlrev_b32 v{r}, 6, v{z}
    v_lshlrev_b32 v{z}, 3, v{z}
    v_bfe_u32 v{t}, v1, 2, 2
    v_add_u32 v{z}, v{z}, v{t}
    s_lshl_b32 s9, s51, 5
    v_add_u32 v{z}, s9, v{z}
    v_mul_u32_u24 v{z}, {ZP}, v{z}
    v_and_b32 v{t}, 3, v1
    v_lshl_add_u32 v{z}, v{t}, 3, v{z}
    v_add_u32 v{z}, {ZB}, v{z}
    """.format(z=a0 + 2, r=a0 + 3, t=tb, ZP=ZP, ZB=ZB_OFF))
    S.need('ZB')
    for c in range(n2):
        T = c + 4 * h
        for hh in range(2):
            S('ds_read_b64_tr_b16 v[%d:%d], v%d offset:%d' % (zf + 4 * c + 2 * hh, zf + 4 * c + 2 * hh + 1, a0 + 2, hh * 4 * ZP + 32 * T))
    S("""
    s_lshl_b32 s9, s50, 8
    s_add_u32 s9, s9, {SB}
    v_lshlrev_b32 v{w}, 4, v{w}
    v_add_u32 v{w}, s9, v{w}
    v_add_u32 v{r}, s9, v{r}
    v_lshlrev_b32 v10, 4, v1
    v_xor_b32 v11, 64, v10
    s_lshl_b32 s12, s49, 6
    s_lshl_b32 s13, s48, 2
    s_add_u32 s12, s12, s13
    s_add_u32 s12, s12, s51
    s_mul_i32 s12, s12, 9216
    s_add_u32 s12, s12, {o}
    s_add_u32 s13, s12, 4096
    s_mov_b32 s11, 0x{inv:x}
    """.format(SB=SB_OFF, w=a0 + 1, r=a0 + 3, o=4 * h * 1024, inv=fbits(1.0 / 2304)))
    for k in range(4):
        for e in range(4): S('v_add_f32 v%d, v%d, v%d' % (pl + 4 * k + e, pl + 4 * k + e, pl + 16 + 4 * k + e))
    for k in range(2):
        for e in range(4): S('v_add_f32 v%d, v%d, v%d' % (pl + 4 * k + e, pl + 4 * k + e, pl + 8 + 4 * k + e))
    for e in range(4): S('v_add_f32 v%d, v%d, v%d' % (pl + e, pl + e, pl + 4 + e))
    for sw in ('v_permlane16_swap_b32', 'v_permlane32_swap_b32'):
        for k in range(4): S('v_mov_b32 v%d, v%d' % (pl + 4 + k, pl + k))
        for k in range(4): S('%s v%d, v%d' % (sw, pl + k, pl + 4 + k))
        for k in range(4): S('v_add_f32 v%d, v%d, v%d' % (pl + k, pl + k, pl + 4 + k))
    for r in (pl, pl + 2): rowstats(S, r, tb, 's11')
    S('ds_write_b128 v%d, %s' % (a0 + 1, q4(pl)), tok_w=['SB'])
    S.need('SB')
    sr = pl + 16
    for k in range(4): S('ds_read_b128 %s, v%d offset:%d' % (q4(sr + 4 * k), a0 + 3, 16 * k))
    for c in range(n2):
        T = c + 4 * h
        for d in range(4):
            r = zf + 4 * c + d
            t = tb + 2 * (d & 1)
            S('v_lshlrev_b32 v%d, 16, v%d' % (t, r))
            S('v_and_b32 v%d, 0xffff0000, v%d' % (t + 1, r))
            S('v_fma_f32 v%d, v%d, v%d, v%d' % (t, t, sr + 4 * d, sr + 4 * d + 1))
            S('v_fma_f32 v%d, v%d, v%d, v%d' % (t + 1, t + 1, sr + 4 * d + 2, sr + 4 * d + 3))
            S('v_cvt_pk_bf16_f32 v%d, v%d, v%d' % (r, t, t + 1))
        S('buffer_store_dwordx4 %s, v%d, s[36:39], s%d offen offset:%d' % (q4(zf + 4 * c), 11 if T & 1 else 10, 12 if c < 4 else 13, (c & 3) * 1024))
    return A, S

def tail(S, h, ntile, acc, stamp):
    S('''
    s_lshl_b32 s63, s48, 3
    s_lshl_b32 s98, s51, 1
    s_add_u32 s63, s63, s98
    s_mul_i32 s63, s63, 72
    s_mul_i32 s98, s49, 9
    s_add_u32 s98, s98, s52
    s_lshr_b32 s98, s98, 1
    s_add_u32 s63, s63, s98
    s_lshl_b32 s69, s63, 10
    s_add_u32 s70, s69, 73728
    s_cmp_eq_u32 s52, 0
    s_cselect_b32 s63, 4608, 0
    s_sub_u32 s63, s63, 512
    s_add_u32 s71, s69, s63
    s_add_u32 s72, s70, s63
    ''')
    G1 = OPT.get('gelu1', False)
    for p in range(2):
        for b in range(2):
            a0 = acc(2, 2 * p, b); a1 = acc(2, 2 * p + 1, b)
            if G1: gelu4(S, a0, S1); gelu4(S, a1, S1 + 4)
            o = S1 + 8 + 4 * (2 * p + b)
            S('v_cvt_pk_bf16_f32 v%d, v%d, v%d' % (o, a0, a0 + 1))
            S('v_cvt_pk_bf16_f32 v%d, v%d, v%d' % (o + 1, a0 + 2, a0 + 3))
            S('v_cvt_pk_bf16_f32 v%d, v%d, v%d' % (o + 2, a1, a1 + 1))
            S('v_cvt_pk_bf16_f32 v%d, v%d, v%d' % (o + 3, a1 + 2, a1 + 3))
            for d in range(2): S('v_permlane32_swap_b32 v%d, v%d' % (o + d, o + 2 + d))
            for d in range(2): S('v_permlane16_swap_b32 v%d, v%d' % (o + d, o + 2 + d))
            S('buffer_store_dwordx4 %s, v10, s[32:35], s%d offen offset:%d' % (q4(o), 69 + b, (2 * h + p) * 1024))
    if h == 0:
        S('''
        v_lshrrev_b32 v12, 5, v1
        v_lshlrev_b32 v12, 8, v12
        v_and_b32 v13, 15, v1
        v_lshl_add_u32 v12, v13, 4, v12
        v_bfe_u32 v13, v1, 4, 1
        v_lshl_add_u32 v12, v13, 3, v12
        ''')
        for b in range(2):
            a0 = acc(2, 4, b)
            if G1: gelu4(S, a0, S1)
            o = S1 + 24 + 2 * b
            S('v_cvt_pk_bf16_f32 v%d, v%d, v%d' % (o, a0, a0 + 1))
            S('v_cvt_pk_bf16_f32 v%d, v%d, v%d' % (o + 1, a0 + 2, a0 + 3))
            S('buffer_store_dwordx2 v[%d:%d], v12, s[32:35], s%d offen' % (o, o + 1, 71 + b))
    if stamp:
        stamp_mid(S, 96)
        S('s_waitcnt vmcnt(0)')
        stamp_mid(S, 70)
        stamp_store(S, 84, [86, 88, 90, 92, 94, 96, 70], 14, 0, 72, 12)
    if h == 1: S('K1_END:')
    S('s_endpgm')
```

```python
from common import *
import k1, k1_v2
from k1_v2 import fbits, gelu4, C1, C2, q4
from k2 import epi_offsets
from k3f import k3_body
KNAME = 'parallel_sum__sliding_local_dilated__mixer_gmlp__prompt_kernel'
SLOT = 34816
FLG = 159744
ACC = 8; FS = (80, 124); Z1 = 168
vW = (40, 41, 42, 43); vZ = 44; vB0 = 209; vB1 = 210; vA0 = 211; vA1 = 212; vAs = 213; vP = 214; vS = 215

def transition(S):
    S('''s_mov_b32 s32, s48
    s_mov_b32 s33, s49
    s_mov_b32 s34, s51
    s_mov_b32 s48, s52
    s_lshl_b32 s49, s34, 12
    s_mov_b32 s8, s14
    s_mov_b32 s9, s15
    v_mov_b32 v2, v1
    v_and_b32 v3, 15, v2
    v_lshrrev_b32 v4, 4, v2
    v_lshlrev_b32 v%d, 4, v2''' % vP)
    srd(S, 72, 8, 9, 4 * FL_SZ, FL_OFF)
def signal(S, word, target, tag, stores, keep=0, a=5, b=6, c=7):
    T = Stream(); _signal(T, word, target, tag, stores, keep)
    for x in T:
        if isinstance(x, tuple): S.append(x)
        else:
            import re
            S(re.sub(r'\bv([567])\b', lambda mm: 'v%d' % {'5': a, '6': b, '7': c}[mm.group(1)], x.text))
def _signal(S, word, target, tag, stores, keep):
    S('''v_mov_b32 v5, %d
    v_mov_b32 v6, 1
    s_waitcnt vmcnt(%d) lgkmcnt(0)
    s_mov_b64 exec, 1
    ds_add_rtn_u32 v7, v5, v6 offset:%d
    s_waitcnt lgkmcnt(0)
    v_readfirstlane_b32 s47, v7
    s_cmp_lg_u32 s47, %d
    s_cbranch_scc1 %s''' % (FLG, keep, word, target - 1, tag))
    S.append(('SAVEQ',))
    S('''s_mov_b64 exec, -1
    v_mov_b32 v6, 1
    v_lshlrev_b32 v5, 2, v2
    s_lshl_b32 s46, s32, 13
    s_lshl_b32 s47, s33, 9
    s_add_u32 s46, s46, s47
    s_mov_b32 exec_hi, 0
    buffer_store_dword v6, v5, s[72:75], s46 offen offset:%d sc1''' % stores)
    S.append(('RESETQ',))
    S('%s:' % tag)
    S('s_mov_b64 exec, -1')

class Mega:
    def __init__(self, stamp, gq=13, k3={}, zsleep=3, lazy=False, orel=True):
        self.orel = orel; self.lazy = lazy; self.stamp = stamp; self.gq = gq; self.k3 = k3; self.zsleep = zsleep
    def cons_early(self, S):
        S('''s_load_dwordx2 s[28:29], s[0:1], 48
        s_mov_b32 s98, s30
        s_lshl_b32 s63, s48, 8
        s_lshl_b32 s99, s51, 6
        s_add_u32 s63, s63, s99
        v_and_b32 v218, 15, v1
        v_lshlrev_b32 v218, 1, v218'''.replace('s[28:29]', 's[32:33]').replace('s_mov_b32 s98, s30\n', ''))
        S('''s_mov_b32 s34, 4096
        s_mov_b32 s35, 0x00020000
        s_waitcnt lgkmcnt(0)
        buffer_load_ushort v216, v218, s[32:35], s63 offen
        buffer_load_ushort v217, v218, s[32:35], s63 offen offset:32''')
    def half_a(self, P, p, st):
        if self.lazy: P('s_xor_b32 s37, s60, %d' % (st * 128))
        else: P('s_movk_i32 s37, %d' % (st * 128))
        P('s_add_u32 m0, s66, %d' % (p * SLOT))
        for q in range(4):
            P('buffer_load_dwordx4 v%d, s[4:7], s37 offen offset:%d lds' % (vW[q], q * 1024), tok_w=['P%d' % p])
    def half_b(self, P, p, st):
        if self.lazy: P(('s_add_u32 s38, s61, %d' % (st * 18432)) if st < 16 else ('s_sub_u32 s38, %d, s61' % (st * 18432)))
        else: P('s_mov_b32 s38, %d' % (st * 18432))
        P('s_add_u32 m0, s50, %d' % (p * SLOT))
        P('s_mov_b64 exec, s[44:45]')
        P('buffer_load_dwordx4 v%d, s[16:19], s38 offen sc1 lds' % vZ, tok_w=['P%d' % p])
        P('s_mov_b64 exec, -1')
        for q in range(4):
            P('buffer_load_dwordx4 v%d, s[16:19], s38 offen offset:%d sc1 lds' % (vZ, 512 + q * 1024), tok_w=['P%d' % p])
    def prod_early(self, S):
        S('''s_lshl_b32 s63, s48, 7
        s_lshl_b32 s66, s51, 5
        s_add_u32 s63, s63, s66
        v_lshrrev_b32 v45, 3, v1
        v_add_u32 v45, s63, v45
        v_lshlrev_b32 v45, 12, v45
        v_and_b32 v46, 7, v1
        v_lshrrev_b32 v47, 4, v1
        v_xor_b32 v46, v46, v47
        v_lshlrev_b32 v46, 4, v46
        v_add_u32 v%d, v45, v46
        v_xor_b32 v47, 64, v%d
        v_add_u32 v%d, 0x%x, v47
        v_add_u32 v%d, 0x%x, v%d
        v_add_u32 v%d, 0x%x, v47
        s_lshl_b32 s66, s51, 12''' % (vW[0], vW[0], vW[1], 0x8000 - 1024, vW[2], 0x10000 - 2048, vW[0], vW[3], 0x18000 - 3072))
        S('s_lshr_b32 s62, s48, 3\ns_lshl_b32 s60, s62, 11\ns_mul_i32 s61, s62, 294912\ns_lshl_b32 s62, s62, 3')
        for p in range(2):
            P = Stream(); self.half_a(P, p, p)
            for x in P: S(x.text.replace('s37', 's63'), tok_w=x.tok_w)
    def producer(self, S):
        stamp = self.stamp
        S('K2_TEXT:')
        transition(S)
        S('''s_mul_i32 s46, s33, 589824
        s_mul_i32 s47, s34, 4608
        s_add_u32 s46, s46, s47
        v_add_u32 v%d, s46, v%d
        s_add_u32 s50, s47, 16384
        s_mov_b32 s44, -1
        s_mov_b32 s45, 0
        v_lshlrev_b32 v46, 13, v3
        s_lshl_b32 s59, s33, 9
        s_add_u32 s59, s59, 128
        v_mov_b32 v47, %d''' % (vZ, vP, FLG))
        srd(S, 16, 8, 9, Z2P_SZ, Z2P_OFF)
        signal(S, 8, 8, 'K1_SIGH', 128)
        S.append(('SAVEQ',))
        S('''s_mov_b32 s41, 0
        s_cmp_lg_u32 s34, 0
        s_cbranch_scc1 KZ_WAITL
        KZ_POLL:
        buffer_load_dword v45, v46, s[72:75], s59 offen sc1
        s_waitcnt vmcnt(0)
        v_cmp_ne_u32 vcc, 1, v45
        s_add_u32 s41, s41, 1
        s_lshr_b32 s65, vcc_lo, s62
        s_and_b32 s42, s65, MASK0
        s_cbranch_scc0 KZ_SET
        s_sleep %d
        s_cmp_lt_u32 s41, 0x20000
        s_cbranch_scc1 KZ_POLL
        KZ_SET:
        v_mov_b32 v45, 1
        ds_write_b32 v47, v45 offset:12
        s_branch KZ_GO
        KZ_WAITL:
        ds_read_b32 v45, v47 offset:12
        s_waitcnt lgkmcnt(0)
        s_add_u32 s41, s41, 1
        v_readfirstlane_b32 s42, v45
        s_cmp_lg_u32 s42, 0
        s_cbranch_scc1 KZ_GO
        s_sleep 1
        s_cmp_lt_u32 s41, 0x400000
        s_cbranch_scc1 KZ_WAITL
        KZ_GO:'''.replace('MASK0', '3' if self.lazy else '0xffff') % self.zsleep)
        S.append(('RESETQ',))
        self.half_b(S, 0, 0); self.half_b(S, 1, 1)
        S.need('P0')
        S('s_barrier')
        self.half_a(S, 2, 2); self.half_b(S, 2, 2); self.half_a(S, 3, 3)
        for n in range(29):
            p = n & 3
            if self.lazy and (n + 3) % 2 == 0 and n + 3 >= 4:
                k = (n + 3) >> 1
                S.append(('SAVEQ',))
                S('''s_cmp_lg_u32 s34, 0
                s_cbranch_scc1 KL_OK{k}
                s_mov_b32 s41, 0
                KL_POLL{k}:
                s_bitcmp1_b32 s65, {k}
                s_cbranch_scc0 KL_OK{k}
                buffer_load_dword v45, v46, s[72:75], s59 offen sc1
                s_add_u32 s41, s41, 1
                s_waitcnt vmcnt(0)
                v_cmp_ne_u32 vcc, 1, v45
                s_cmp_lt_u32 s41, 0x20000
                s_lshr_b32 s65, vcc_lo, s62
                s_sleep 1
                s_cmp_lt_u32 s41, 0x20000
                s_cbranch_scc1 KL_POLL{k}
                KL_OK{k}:'''.format(k=k))
                S.append(('RESETQ',))
            S.need('P%d' % ((p + 1) & 3))
            S('s_barrier')
            self.half_b(S, (n + 3) & 3, n + 3)
            if n + 4 < 32: self.half_a(S, p, n + 4)
            if n == 20:
                S('''s_and_b32 s43, s2, 7
                s_lshr_b32 s46, s2, 3
                s_mul_i32 s47, s43, 29
                s_min_u32 s43, s43, 2
                s_add_u32 s47, s47, s43
                s_add_u32 s47, s47, s46
                s_mul_hi_u32 s46, s47, 0x1c71c71d
                s_mul_i32 s46, s46, 80
                s_add_u32 s47, s46, 79
                s_lshr_b32 s46, s46, 7
                s_lshr_b32 s47, s47, 7
                s_min_u32 s46, s46, 15
                s_min_u32 s47, s47, 15
                s_lshl_b32 s46, s46, 13
                s_lshl_b32 s47, s47, 13
                v_mov_b32 v238, s47
                v_mov_b32 v239, s46
                v_cmp_gt_u32 vcc, 16, v2
                v_cndmask_b32 v238, v238, v239, vcc
                v_lshl_add_u32 v238, v3, 9, v238
                s_movk_i32 s64, 384
                buffer_load_dword v236, v238, s[72:75], s64 offen sc1''')
            if n == 24:
                S('v_cmp_ne_u32 vcc, 1, v236')
                S.append(('SAVEQ',))
                S('''s_mov_b32 s41, 0
                KO_POLL:
                s_cmp_eq_u32 vcc_lo, 0
                s_cbranch_scc1 KO_OK
                s_sleep 8
                buffer_load_dword v236, v238, s[72:75], s64 offen sc1
                s_add_u32 s41, s41, 1
                s_waitcnt vmcnt(0)
                v_cmp_ne_u32 vcc, 1, v236
                s_cmp_lt_u32 s41, 0x20000
                s_cbranch_scc1 KO_POLL
                KO_OK:''')
                S.append(('RESETQ',))
        S('s_movk_i32 s59, 256')
        if stamp: stamp_mid(S, 86)
        S.append(('SAVEQ',))
        S('s_cmp_lt_u32 s2, 234\ns_cbranch_scc1 K3_START\ns_waitcnt vmcnt(0)\ns_barrier\ns_barrier\ns_barrier\ns_endpgm\nK3_START:')
        S.append(('RESETQ',))
        def mk(tok):
            def f(X):
                X.need(tok); X('s_barrier')
            return f
        k3_body(S, stamp, bars=[mk('P2'), mk('P3')], mega=True, **self.k3)
    def consumer(self):
        stamp = self.stamp
        S = Stream()
        def acc(a, b): r = ACC + (a * 2 + b) * 4; return 'v[%d:%d]' % (r, r + 3)
        def fB(s, b): r = FS[s] + b * 4; return 'v[%d:%d]' % (r, r + 3)
        def fA(s, a): r = FS[s] + 8 + a * 4; return 'v[%d:%d]' % (r, r + 3)
        S('K2_CONS:')
        transition(S)
        srd(S, 24, 8, 9, AP_SZ, AP_OFF)
        S('''
        v_lshrrev_b32 v5, 1, v3
        v_xor_b32 v5, v5, v4
        v_lshlrev_b32 v5, 4, v5
        v_lshlrev_b32 v6, 7, v3
        v_add3_u32 v%d, v5, v6, s49
        v_xor_b32 v%d, 64, v%d
        v_lshrrev_b32 v5, 3, v3
        v_add_u32 v5, s48, v5
        v_and_b32 v6, 1, v5
        v_lshlrev_b32 v6, 2, v6
        v_and_b32 v7, 3, v3
        v_bfe_u32 v1, v3, 2, 1
        v_lshl_add_u32 v7, v1, 3, v7
        v_xor_b32 v7, v7, v6
        v_lshl_add_u32 v7, v4, 4, v7
        v_lshlrev_b32 v7, 4, v7
        v_lshl_add_u32 v7, v5, 10, v7
        v_add_u32 v%d, 16384, v7
        v_xor_b32 v%d, 64, v%d
        s_cmp_eq_u32 s48, 0
        s_cselect_b32 s46, 8192, 0
        s_add_u32 s46, s46, 16384
        v_add_u32 v%d, s46, v%d
        v_lshrrev_b32 v5, 1, v4
        v_lshlrev_b32 v5, 8, v5
        v_lshl_add_u32 v5, v3, 4, v5
        v_and_b32 v6, 1, v4
        v_lshl_add_u32 v%d, v6, 3, v5
        ''' % (vB0, vB1, vB0, vA0, vA1, vA0, vAs, vP, vS))
        epi_offsets(S)
        S('v_lshlrev_b32 v216, 16, v216')
        S('v_lshlrev_b32 v217, 16, v217')
        for a in range(9):
            for b in range(2):
                for r in range(4):
                    S('v_mov_b32 v%d, v%d' % (ACC + (a * 2 + b) * 4 + r, 216 + b))
        HI = 224
        for k, r in enumerate((vB0, vB1, vA0, vA1, vAs)): S('v_add_u32 v%d, %d, v%d' % (HI + k, 2 * SLOT, r))
        signal(S, 8, 8, 'K1_SIGC', 128, keep=0 if stamp else k1.OPT['n_ost'])
        S('s_mov_b32 s78, 0x%x' % fbits(C1))
        S('v_mov_b32 v7, 0x%x' % fbits(C2))
        S('s_setprio 1')
        def reads(s, h, n):
            g = []
            hi = (n & 3) >> 1; so = (n & 1) * SLOT
            R = lambda r: r if not hi else HI + (vB0, vB1, vA0, vA1, vAs).index(r)
            vB = vB1 if h else vB0
            for b in range(2):
                g.append(I('ds_read_b128 %s, v%d offset:%d' % (fB(s, b), R(vB), so + b * 2048)))
            for a in range(9):
                if a < 8: g.append(I('ds_read_b128 %s, v%d offset:%d' % (fA(s, a), R(vA1 if a & 1 else vA0), so + h * 9216 + (a >> 1) * 2048)))
                else: g.append(I('ds_read_b128 %s, v%d offset:%d' % (fA(s, a), R(vAs), so + h * 9216)))
            return g
        def mfmas(s):
            m = Stream()
            for a in range(9):
                for b in range(2):
                    m('v_mfma_f32_16x16x32_bf16 %s, %s, %s, %s' % (acc(a, b), fA(s, a), fB(s, b), acc(a, b)))
            return m
        gw = []
        for k in range(18):
            g = Stream()
            p = Z1 + 2 * k; x = 232 + 8 * (k & 1)
            g('v_lshlrev_b32 v%d, 16, v%d' % (x, p))
            g('v_and_b32 v%d, 0xffff0000, v%d' % (x + 1, p))
            g('v_lshlrev_b32 v%d, 16, v%d' % (x + 2, p + 1))
            g('v_and_b32 v%d, 0xffff0000, v%d' % (x + 3, p + 1))
            gelu4(g, x, x + 4, c2=7)
            g('v_cvt_pk_bf16_f32 v%d, v%d, v%d' % (p, x, x + 1))
            g('v_cvt_pk_bf16_f32 v%d, v%d, v%d' % (p + 1, x + 2, x + 3))
            gw += list(g)
        npre = self.k3.get('gpre', 0) if False else 0
        if stamp: stamp_mid(S, 86)
        S('s_barrier')
        if stamp:
            stamp_mid(S, 88); S('s_waitcnt lgkmcnt(0)')
        S.extend(reads(0, 0, 0))
        def half(ms, rds):
            left = self.gq
            for k, m in enumerate(ms):
                S.append(m)
                room = 2
                if rds: S.append(rds.pop(0)); room = 1
                while gw and left > 0 and room > 0 and k < 17:
                    need = 2 if gw[0].kind == 'trans' else 1
                    if need > room: break
                    S.append(gw.pop(0)); room -= need; left -= 1
        for n in range(32):
            S('s_waitcnt lgkmcnt(0)')
            if n == 12: signal(S, 16, 4, 'KO_NOFL', 384, a=218, b=219, c=220)
            half(mfmas(0), reads(1, 1, n))
            S('s_waitcnt lgkmcnt(0)')
            S('s_barrier')
            half(mfmas(1), reads(0, 0, n + 1) if n < 31 else [])
        assert not gw
        E = S
        if stamp: stamp_mid(E, 90)
        for b in range(2):
            for p in range(5):
                nd = 4 if p < 4 else 2
                zr = Z1 + (b * 4 + p) * 4 if p < 4 else Z1 + 32 + b * 2
                for d in range(nd):
                    a = 2 * p + (d >> 1)
                    ar = ACC + (a * 2 + b) * 4 + (d & 1) * 2
                    t = 220 + (d & 1) * 2
                    E('v_lshlrev_b32 v%d, 16, v%d' % (t, zr + d))
                    E('v_and_b32 v%d, 0xffff0000, v%d' % (t + 1, zr + d))
                    E('v_pk_mul_f32 v[%d:%d], v[%d:%d], v[%d:%d]' % (t, t + 1, t, t + 1, ar, ar + 1))
                    E('v_cvt_pk_bf16_f32 v%d, v%d, v%d' % (zr + d, t, t + 1))
                if p < 4: E('buffer_store_dwordx4 v[%d:%d], v%d, s[24:27], s%d offen offset:%d sc1' % (zr, zr + 3, vP, 53 + b, p * 1024))
                else: E('buffer_store_dwordx2 v[%d:%d], v%d, s[24:27], s%d offen sc1' % (zr, zr + 1, vS, 57 + b))
        if stamp: stamp_mid(E, 92)
        signal(E, 0, 4, 'K2_NOSIG', 256)
        if stamp:
            E('s_waitcnt vmcnt(0)')
            stamp_mid(E, 94)
            stamp_store(E, 84, [86, 88, 90, 92, 94], 8, 1, 64, 216, wave_s=34)
        E('s_endpgm')
        return S

def gen_mega(stamp=False, k1opt={}, **kw):
    M = Mega(stamp, **kw)
    k1_v2.STFLAG = ' sc1'
    txt, vg = k1.gen_k1(stamp=stamp, mega=M, **k1opt)
    k1_v2.STFLAG = ''
    F = Finisher()
    F.vmq, F.lgq = k1.OPT['cons_state']
    k1.emit(F, M.consumer())
    return txt + F.text(), 256
```

```python
import sys
from build import *
HDR = open('parallel_sum__sliding_local_dilated__mixer_gmlp__prompt.s.ref').read().split('; Override launch')[0]
def make(path, stamp=False, k1={}, k2={}, k3={}):
    t1, v1 = gen_k1(stamp=stamp, **k1)
    t2, v2 = gen_k2(stamp=stamp, **k2)
    t3, v3 = gen_k3(stamp=stamp, **k3)
    assemble_file(path, [('k1_kernel', t1, v1, 256, 512, K1_LDS), ('k2_kernel', t2, v2, 256, 512, K2_LDS), ('k3_kernel', t3, v3, 234, 256, K3_LDS)])
    s = open(path).read()
    open(path, 'w').write(HDR + s)
def makef(path, stamp=False, k1={}, k2={}):
    t1, v1 = gen_k1(stamp=stamp, **k1)
    t2, v2 = gen_k2(stamp=stamp, fuse=True, **k2)
    assemble_file(path, [('k1_kernel', t1, v1, 256, 512, K1_LDS), ('k2_kernel', t2, v2, 256, 512, K2_LDS)])
    s = open(path).read()
    open(path, 'w').write(HDR + s)
def makem(path, stamp=False, plain=True, **kw):
    import mega
    t, v = mega.gen_mega(stamp=stamp, **kw)
    t = t.replace("'k1_kernel'", mega.KNAME).replace('k1_kernel', mega.KNAME).replace('k2_kernel', 'K2_TEXT')
    assemble_file(path, [(mega.KNAME, t, v, 256, 512, K1_LDS)])
    s = open(path).read()
    if plain: s = s.replace('; @launch kernel=%s grid' % mega.KNAME, '; @launch grid')
    open(path, 'w').write(HDR + s)
if __name__ == '__main__':
    SCH = [['W0', 'W1'], ['W2', 'W3', 'A0'], ['A1', 'W4'], []]
    K2 = dict(prio=1, rot=False, xmap='84', pf=False, k3=dict(early=2, pre=1, sched=SCH))
    B = dict(budget=66, nc=4, pf3=1, pfc=[5, 8, 11, 14, 17, 20], cpf=1)
    makef('full_f.s', stamp=True, k1=B, k2=K2)
    makem('full_n.s', stamp=True, k1opt=B, k3=K2['k3'], lazy=True)
    makem('full_o.s', stamp=True, k1opt=dict(B, attgap=21), k3=K2['k3'], lazy=True)
    makem('vo.s', k1opt=dict(B, attgap=21), k3=K2['k3'], lazy=True)
    makef('vf.s', k1=B, k2=K2)
    makem('vn.s', k1opt=B, k3=K2['k3'], lazy=True)
```

```python
import re

def expand(tok):
    tok = tok.strip()
    neg = tok.startswith('-')
    if neg: tok = tok[1:]
    m = re.fullmatch(r'abs\((.*)\)', tok) or re.fullmatch(r'\|(.*)\|', tok)
    if m: tok = m.group(1)
    m = re.fullmatch(r'([vsa])(\d+)', tok)
    if m: return [m.group(1) + m.group(2)]
    m = re.fullmatch(r'([vsa])\[(\d+):(\d+)\]', tok)
    if m: return [m.group(1) + str(i) for i in range(int(m.group(2)), int(m.group(3)) + 1)]
    if tok in ('vcc', 'exec', 'm0', 'scc'): return [tok]
    if tok in ('vcc_lo', 'vcc_hi'): return ['vcc']
    if tok in ('exec_lo', 'exec_hi'): return ['exec']
    return []

TRANS = ('v_exp_f32', 'v_log_f32', 'v_rcp_f32', 'v_rsq_f32', 'v_sqrt_f32', 'v_sin_f32', 'v_cos_f32')

class I:
    __slots__ = ('text', 'op', 'reads', 'writes', 'kind', 'tok_w', 'tok_r', 'wide', 'dpp', 'srcc', 'srcab', 'vm', 'lg', 'label')
    def __init__(self, text, tok_w=(), tok_r=()):
        self.text = text
        self.tok_w = set(tok_w); self.tok_r = set(tok_r)
        self.wide = False; self.dpp = False; self.srcc = set(); self.srcab = set(); self.vm = None; self.lg = None
        self.label = None
        t = text.split(';')[0].strip()
        if t.endswith(':'):
            self.op = 'label'; self.kind = 'label'; self.reads = set(); self.writes = set(); self.label = t[:-1]; return
        parts = t.split(None, 1)
        op = parts[0]; self.op = op
        rest = parts[1] if len(parts) > 1 else ''
        ops = []; depth = 0; cur = ''
        for ch in rest:
            if ch in '[(': depth += 1
            if ch in '])': depth -= 1
            if ch == ',' and depth == 0:
                ops.append(cur.strip()); cur = ''
            else: cur += ch
        if cur.strip(): ops.append(cur.strip())
        mods = ''
        if ops:
            last = ops[-1].split(None, 1)
            ops[-1] = last[0]
            mods = last[1] if len(last) > 1 else ''
        R = set(); W = set()
        ex = [expand(o) for o in ops]
        def allr(k):
            for e in ex[k:]: R.update(e)
        if op.startswith('v_mfma'):
            self.kind = 'mfma'; W.update(ex[0]); allr(1); self.srcc = set(ex[3]); self.srcab = set(ex[1]) | set(ex[2])
        elif op.startswith('v_cmp'):
            self.kind = 'valu'; W.update(ex[0]); allr(1)
        elif op.startswith('v_readfirstlane') or op.startswith('v_readlane'):
            self.kind = 'valu'; W.update(ex[0]); allr(1)
        elif op.startswith('v_permlane'):
            self.kind = 'valu'; W.update(ex[0]); W.update(ex[1]); allr(0)
        elif op.startswith(('v_add_co', 'v_sub_co', 'v_addc_co', 'v_subb_co')):
            self.kind = 'valu'; W.update(ex[0]); W.update(ex[1]); allr(2)
        elif op.startswith('v_'):
            self.kind = 'trans' if op.replace('_e32', '').replace('_e64', '') in TRANS else 'valu'
            W.update(ex[0]); allr(1)
            if op.startswith(('v_fmac', 'v_dot2c', 'v_mac')): R.update(ex[0])
            if '_dpp' in op or 'quad_perm' in mods or 'row_' in mods:
                self.dpp = True; R.update(ex[0])
        elif op.startswith('ds_read') or op.startswith('ds_bpermute') or op.startswith('ds_swizzle') or '_rtn_' in op:
            self.kind = 'ds'; W.update(ex[0]); allr(1)
        elif op.startswith('ds_'):
            self.kind = 'ds'; allr(0)
        elif op.startswith('buffer_load') or op.startswith('global_load'):
            self.kind = 'vmem'
            if ' lds' in (' ' + mods):
                allr(0); R.add('m0'); self.kind = 'dma'
            else:
                W.update(ex[0]); allr(1)
        elif op.startswith('buffer_store') or op.startswith('global_store'):
            self.kind = 'vmem'; allr(0)
            if op.endswith(('x3', 'x4')): self.wide = True; self.srcc = set(ex[0]) if op.startswith('buffer') else set(ex[1])
        elif op.startswith('buffer_atomic'):
            self.kind = 'vmem'; allr(0)
            if 'sc0' in mods: W.update(ex[0])
        elif op.startswith(('buffer_wbl2', 'buffer_inv')):
            self.kind = 'vmem'
        elif op.startswith(('s_load', 's_memtime', 's_memrealtime')):
            self.kind = 'smem'; W.update(ex[0]); allr(1)
        elif op == 's_waitcnt':
            self.kind = 'wait'
            m = re.search(r'vmcnt\((\d+)\)', rest); self.vm = int(m.group(1)) if m else None
            m = re.search(r'lgkmcnt\((\d+)\)', rest); self.lg = int(m.group(1)) if m else None
        elif op == 's_nop':
            self.kind = 'nop'; self.vm = int(rest, 0)
        elif op in ('s_barrier', 's_endpgm', 's_sleep', 's_setprio'):
            self.kind = 'misc'
        elif op.startswith('s_cbranch') or op == 's_branch':
            self.kind = 'branch'
            if 'scc' in op: R.add('scc')
            if 'vcc' in op: R.add('vcc')
            if 'exec' in op: R.add('exec')
        elif op.startswith('s_cmp') or op.startswith('s_bitcmp'):
            self.kind = 'salu'; W.add('scc'); allr(0)
        elif op.startswith('s_'):
            self.kind = 'salu'; W.update(ex[0]); allr(1)
            if op.startswith(('s_cselect', 's_addc', 's_subb')): R.add('scc')
            if not op.startswith(('s_mov', 's_cselect', 's_mul', 's_getreg', 's_movk', 's_getpc')): W.add('scc')
            if 'saveexec' in op: W.add('exec'); R.add('exec')
        elif op == 'need':
            self.kind = 'need'
        else:
            raise ValueError('unknown op ' + text)
        self.reads = R; self.writes = W

class Stream(list):
    def __call__(self, text, tok_w=(), tok_r=()):
        for line in text.strip().split('\n'):
            line = line.strip()
            if not line or line.startswith(';'): continue
            self.append(I(line, tok_w, tok_r))
    def need(self, *toks):
        self.append(I('need', tok_r=toks))

def interleave(main, side, start=0, end=None, weight=None):
    idx = [i for i, x in enumerate(main) if x.kind == 'mfma']
    if end is None: end = len(idx)
    idx = idx[start:end]
    out = Stream()
    n = len(idx)
    if n == 0:
        return Stream(list(main) + list(side))
    w = [(weight(x) if weight else (2 if x.kind == 'trans' else (0 if x.kind in ('need', 'label') else 1))) for x in side]
    total = sum(w)
    pos = 0; acc = 0.0; k = 0
    slot = {j: t for t, j in enumerate(idx)}
    for i, x in enumerate(main):
        out.append(x)
        if i in slot:
            target = total * (slot[i] + 1) / n
            while pos < len(side) and (acc + w[pos] <= target + 1e-9 or slot[i] == n - 1):
                out.append(side[pos]); acc += w[pos]; pos += 1
    assert pos == len(side)
    return out

MARK = I('need')
def h_start(h):
    for k in range(len(h) - 1, -1, -1):
        if h[k][0] is MARK: return k
    return 0
class Finisher:
    def __init__(self):
        self.vmq = []
        self.lgq = []
        self.hist = []
        self.out = []
        self.alts = []
        self.saved = {}
    def state(self):
        return ([frozenset(x) for x in self.vmq], [(frozenset(a), b) for a, b in self.lgq])
    def _emit(self, ins):
        self.out.append(ins)
        st = (ins.vm + 1) if ins.kind == 'nop' else (0 if ins.kind in ('label', 'need') else 1)
        self.hist.append((ins, st))
        if len(self.hist) > 40: self.hist.pop(0)
        for h in self.alts: h.append((ins, st))
        self.alts = [h for h in self.alts if sum(s for _, s in h[h_start(h):]) < 30]
        if ins.kind == 'branch':
            tgt = ins.text.split()[-1]
            self.saved.setdefault(tgt, []).append(list(self.hist) + [(MARK, 0)])
        if ins.kind == 'label' and ins.label in self.saved:
            self.alts.extend(self.saved.pop(ins.label))
    def _required_gap(self, p, c):
        g = 0
        vw = {r for r in p.writes if r[0] in 'va' and r not in ('vcc',)}
        sw = {r for r in p.writes if r[0] == 's' and r != 'scc' or r == 'vcc'}
        pv = p.kind in ('valu', 'trans')
        cv = c.kind in ('valu', 'trans')
        if pv:
            if c.kind == 'mfma' and vw & c.reads: g = max(g, 2)
            if c.dpp and vw & c.reads: g = max(g, 2)
            if c.op.startswith('v_permlane') and vw & c.reads: g = max(g, 2)
            if c.op.startswith(('v_readlane', 'v_readfirstlane')) and vw & c.reads: g = max(g, 1)
            if cv and sw & c.reads: g = max(g, 4 if c.op.startswith(('v_readlane', 'v_writelane')) else 2)
            if c.kind in ('vmem', 'dma') and sw & c.reads: g = max(g, 5)
            if c.kind in ('salu', 'branch', 'smem') and sw & c.reads: g = max(g, 1)
            if p.kind == 'trans' and c.kind != 'trans' and vw & c.reads: g = max(g, 1)
            if 'exec' in p.writes and (c.dpp or c.kind == 'mfma' or c.op.startswith(('v_readlane', 'v_readfirstlane', 'v_permlane'))): g = max(g, 5)
            if ('sdwa' in p.op or 'op_sel' in p.text) and cv and vw & (c.reads | c.writes): g = max(g, 1)
            if p.op.startswith('v_dot'):
                if c.op == p.op:
                    ops = [o.strip() for o in c.text.split(None, 1)[1].split(',')]
                    ab = set(expand(ops[1])) | set(expand(ops[2].split()[0]))
                    if vw & ab: g = max(g, 3)
                elif vw & (c.reads | c.writes): g = max(g, 3)
        if p.kind == 'mfma':
            passes = 8 if '32x32' in p.op else 4
            if c.kind == 'mfma':
                if vw & c.srcab: g = max(g, passes + 4)
                if vw & c.srcc and not (c.srcc == vw and c.op == p.op): g = max(g, passes + 2)
                if vw & c.writes and not (c.writes == vw and c.srcc == vw): g = max(g, passes + 2)
            elif c.kind in ('valu', 'trans', 'vmem', 'dma', 'ds') and vw & (c.reads | c.writes): g = max(g, passes + 4)
            if cv and p.srcc & c.writes: g = max(g, passes - 1)
            if c.kind in ('ds', 'vmem') and p.srcc & c.writes: g = max(g, passes - 1)
        if p.kind == 'salu' and 'm0' in p.writes and c.kind == 'dma': g = max(g, 1)
        if p.kind == 'vmem' and p.wide and p.srcc & c.writes: g = max(g, 2)
        return g
    def add(self, ins):
        if ins.kind == 'wait':
            if ins.vm is not None:
                while len(self.vmq) > ins.vm: self.vmq.pop(0)
            if ins.lg is not None:
                if ins.lg == 0: self.lgq = []
                elif not any(b for a, b in self.lgq):
                    while len(self.lgq) > ins.lg: self.lgq.pop(0)
            self._emit(ins); return
        touch = ins.reads | ins.writes | ins.tok_r
        vm = None; lg = None
        for k in range(len(self.vmq) - 1, -1, -1):
            if self.vmq[k] & touch:
                vm = len(self.vmq) - 1 - k; break
        for k in range(len(self.lgq) - 1, -1, -1):
            if self.lgq[k][0] & touch:
                lg = len(self.lgq) - 1 - k
                if any(b for a, b in self.lgq): lg = 0
                break
        if vm is not None or lg is not None:
            t = 's_waitcnt'
            if vm is not None: t += ' vmcnt(%d)' % min(vm, 63)
            if lg is not None: t += ' lgkmcnt(%d)' % min(lg, 15)
            self.add(I(t))
        if ins.kind == 'need':
            return
        need = 0
        for hh in [self.hist] + self.alts:
            dist = 0
            for p, st in reversed(hh):
                if p.kind not in ('label', 'need', 'nop', 'wait'):
                    g = self._required_gap(p, ins)
                    need = max(need, g - dist)
                dist += st
                if dist > 24: break
        while need > 0:
            k = min(need, 16)
            self._emit(I('s_nop %d' % (k - 1))); need -= k
        self._emit(ins)
        if ins.kind in ('vmem', 'dma'):
            self.vmq.append(set(r for r in ins.writes if r[0] in 'va') | ins.tok_w)
        elif ins.kind == 'ds':
            self.lgq.append((set(ins.writes) | ins.tok_w, False))
        elif ins.kind == 'smem':
            self.lgq.append((set(ins.writes) | ins.tok_w, True))
    def run(self, stream):
        for x in stream: self.add(x)
    def loop(self, label, body, tail):
        import copy
        s0 = self.state()
        start = len(self.out)
        self.add(I(label + ':'))
        self.run(body); self.run(tail)
        first = [x.text for x in self.out[start:]]
        s1 = self.state()
        f2 = Finisher(); f2.vmq = [set(x) for x in self.vmq]; f2.lgq = [(set(a), b) for a, b in self.lgq]; f2.hist = list(self.hist)
        f2.add(I(label + ':')); f2.run(body); f2.run(tail)
        second = [x.text for x in f2.out]
        if first != second:
            import difflib
            print('\n'.join(difflib.unified_diff(first, second, lineterm='', n=2)))
            raise AssertionError('loop %s: first pass differs from steady state' % label)
        assert f2.state() == s1, 'loop %s: queue state not steady' % label
    def text(self):
        return '\n'.join((x.text if x.kind == 'label' else '    ' + x.text) for x in self.out) + '\n'

def kernel_text(name, body_text, vgpr, sgpr=96):
    acc = (vgpr + 3) // 4 * 4
    head = '.text\n.globl %s\n.p2align 8\n.type %s,@function\n%s:\n' % (name, name, name)
    return head + body_text
def descriptor(name, vgpr, sgpr=96):
    acc = min(256, (vgpr + 3) // 4 * 4)
    return '''.p2align 6
.amdhsa_kernel %s
  .amdhsa_next_free_vgpr %d
  .amdhsa_next_free_sgpr %d
  .amdhsa_accum_offset %d
  .amdhsa_group_segment_fixed_size 0
  .amdhsa_kernarg_size 88
  .amdhsa_user_sgpr_count 2
  .amdhsa_user_sgpr_kernarg_segment_ptr 1
  .amdhsa_system_sgpr_workgroup_id_x 1
.end_amdhsa_kernel
''' % (name, vgpr, sgpr, acc)
```

```python
from common import *
import k1_v2 as V2
from k1_v2 import fbits, q4, gelu4, rowstats, dots, norm4, flatten, m64, setm, is_mem, C1, C2, SCL
SLOT = 20480
T1_OFF = 40960; T2_OFF = 81920; XH_OFF = 143360; ZB_OFF = 81920; QB_OFF = 119808; SB_OFF = 161792
K1_LDS = 163840
QP = 240; ZP = 296
XF = 112; ACC = 40; WFR = 16; NRING = 5
NR1 = 6; P1 = NR1 * 2048; P2 = (9 - NR1) * 2048
sBLK = 54
vT = 4; vC2 = 9
OPT = {}
assert all((i * 3277) >> 16 == i // 20 for i in range(1280)) and all((r * 43) >> 8 == r // 6 for r in range(18))
def xf(j, b): r = XF + (j * 2 + b) * 4; return 'v[%d:%d]' % (r, r + 3)
LN1 = 40; LN2 = XF + 16 * NR1; ST = 88
def ln(g, j): return (LN1 + (g * NR1 + j) * 4 if g < 2 else 16 + 4 * j) if j < NR1 else LN2 + (g * (9 - NR1) + j - NR1) * 4
PH = [('Z2', 9216, 4608), ('Q', 3456, 0), ('Z1', 9216, 0)]
vDZ = 16; vDQ = 21
def wt(x):
    if isinstance(x, str): return 1
    if isinstance(x, list): return sum(wt(y) for y in x)
    if x.kind in ('need', 'label'): return 0
    if x.kind in ('trans', 'mfma'): return 2
    if x.kind == 'salu': return 0.5
    return 1

def wdma(n):
    ph, j = divmod(n, 9)
    nm, pitch, add = PH[ph]
    if nm == 'Q' and OPT.get('qpack'): pitch = 288
    P = Stream()
    P('s_mul_i32 s63, s%d, %d' % (sBLK + j, 64 * pitch))
    if add: P('s_add_u32 s63, s63, %d' % add)
    isq = nm == 'Q'
    P('s_add_u32 s63, s63, s%d' % (65 if isq else 64))
    for e in range(5):
        P('s_add_u32 m0, s68, %d' % ((n & 3) * SLOT + e * 4096))
        P('buffer_load_dwordx4 v%d, s[%s], s63 offen%s lds' % ((vDQ if isq else vDZ) + e, '20:23' if isq else '24:27', ' sc1' if isq and OPT.get('qpack') else ''), tok_w=['W%d' % n])
    return P

def head(S, stamp, xmap, rot):
    S('''
    s_load_dwordx4 s[4:7], s[0:1], 0
    s_load_dwordx2 s[8:9], s[0:1], 32
    s_load_dwordx4 s[12:15], s[0:1], 72
    s_load_dwordx2 s[10:11], s[0:1], 40
    s_cmp_ge_u32 s2, 256
    s_cbranch_scc1 K1_END
    ''')
    if stamp: stamp_begin(S, 84)
    S('''
    v_lshrrev_b32 v10, 6, v0
    v_and_b32 v1, 63, v0
    v_readfirstlane_b32 s50, v10
    s_and_b32 s63, s2, 7
    s_lshr_b32 s64, s2, 3
    ''')
    if xmap == '84':
        S('''
        s_and_b32 s48, s63, 1
        s_lshl_b32 s48, s48, 3
        s_and_b32 s65, s64, 7
        s_add_u32 s48, s48, s65
        s_lshr_b32 s49, s63, 1
        s_lshl_b32 s49, s49, 2
        s_lshr_b32 s64, s64, 3
        s_add_u32 s49, s49, s64
        s_lshl_b32 s64, s64, 1
        s_add_u32 s53, s64, s65
        ''')
    else:
        S('''
        s_lshr_b32 s48, s63, 1
        s_lshl_b32 s48, s48, 2
        s_and_b32 s65, s64, 3
        s_add_u32 s48, s48, s65
        s_and_b32 s49, s63, 1
        s_lshl_b32 s49, s49, 3
        s_lshr_b32 s64, s64, 2
        s_add_u32 s49, s49, s64
        s_lshl_b32 s65, s65, 1
        s_add_u32 s53, s64, s65
        ''')
    if not rot: S('s_mov_b32 s53, 0')
    S('''
    s_sub_u32 s64, s53, 9
    s_cmp_ge_u32 s53, 9
    s_cselect_b32 s%d, s64, s53
    s_and_b32 s51, s50, 3
    s_and_b32 s52, s49, 1
    s_lshl_b32 s63, s48, 7
    s_lshl_b32 s64, s51, 5
    s_add_u32 s63, s63, s64
    s_lshr_b32 s64, s50, 2
    s_mul_i32 s64, s64, 24
    s_add_u32 s63, s63, s64
    v_lshrrev_b32 v12, 3, v1
    v_and_b32 v13, 7, v1
    v_add_u32 v10, s63, v12
    v_mul_u32_u24 v10, 1152, v10
    v_lshl_add_u32 v10, v13, 4, v10
    v_add_u32 v11, 9216, v10
    v_add_u32 v14, 18432, v10
    ''' % sBLK)
    for j in range(1, 9):
        S('s_add_u32 s%d, s%d, 1' % (sBLK + j, sBLK + j - 1))
        S('s_cmp_eq_u32 s%d, 9' % (sBLK + j))
        S('s_cselect_b32 s%d, 0, s%d' % (sBLK + j, sBLK + j))
    for j in range(9): S('s_lshl_b32 s%d, s%d, 7' % (69 + j, sBLK + j))
    S('s_waitcnt lgkmcnt(0)')
    srd(S, 16, 4, 5, 2048 * 1152)
    S('s_cmp_ge_u32 s50, 4')
    S('s_cbranch_scc1 K1_HELP')

def xloads(S, gs):
    for g in gs:
        for j in range(9):
            S('buffer_load_dwordx4 %s, v%d, s[16:19], s%d offen' % (q4(ln(g, j)), (10, 11, 14)[g], 69 + j))
def common_setup(S):
    srd(S, 28, 14, 15, AP_SZ, AP_OFF)
    srd(S, 36, 14, 15, Z2P_SZ, Z2P_OFF)
    srd(S, 40, 14, 15, FL_OFF + 4 * FL_SZ - ST_OFF, ST_OFF)
    srd(S, 44, 12, 13, 256)
    S('s_mov_b32 s79, 0x%x' % fbits(SCL))
    S('''
    s_mov_b32 s82, 0x3f803f80
    s_mov_b32 s83, 0x%x
    v_xor_b32 v102, v12, v13
    v_and_b32 v103, 3, v1
    v_lshl_add_u32 v102, v103, 4, v102
    v_lshlrev_b32 v102, 4, v102
    v_bfe_u32 v104, v1, 2, 1
    v_lshl_add_u32 v102, v104, 10, v102
    s_mul_i32 s63, s51, %d
    s_add_u32 s63, s63, %d
    v_add_u32 v5, s63, v102              ; transit write address
    v_and_b32 v101, 15, v1
    v_lshrrev_b32 v105, 4, v1
    v_xor_b32 v102, v101, v105
    v_lshl_add_u32 v102, v105, 4, v102
    v_lshlrev_b32 v6, 4, v102            ; plain frag read offset (even)
    v_mul_u32_u24 v105, 2560, v105
    v_bfe_u32 v101, v1, 2, 2
    v_mul_u32_u24 v101, 320, v101
    v_lshlrev_b32 v103, 3, v103
    v_add3_u32 v%d, v105, v101, v103
    ''' % (fbits(1.0 / 576), 2 * P1, T1_OFF, vT))

def goff(k, P): return (k >> 1) * P + (k & 1) * 128
def layernorm(S, ks, mid=None, mid2=None):
    ng = len(ks)
    for g in range(ng):
        st = ST + 2 * g
        regs = [ln(g, j) + d for j in range(9) for d in range(4)]
        S.extend(dots(regs, st, st + 1))
        if OPT.get('ptrace'): stamp_mid(S, 88 + 4 * (g & 1))
        if g == 0 and ng > 1: xloads(S, [1, 2] if OPT.get('x12', 0) else [1])
        for m in ('quad_perm:[1,0,3,2]', 'quad_perm:[2,3,0,1]', 'row_half_mirror'):
            for r in range(st, st + 2):
                S('v_add_f32_dpp v%d, v%d, v%d %s row_mask:0xf bank_mask:0xf' % (r, r, r, m))
        rowstats(S, st, ST + 6, 's83')
        if g == ng - 1 and mid: S.extend(mid)
        for j in range(NR1):
            norm4(S, ln(g, j), st, ST + 6)
            S('ds_write_b128 v5, %s offset:%d' % (q4(ln(g, j)), goff(ks[g], P1) + j * 2048), tok_w=['T'])
        if g < ng - 1:
            for j in range(NR1, 9): norm4(S, ln(g, j), st, ST + 6)
            if OPT.get('ptrace'): stamp_mid(S, 90)
        if g == 0 and ng > 2 and not OPT.get('x12', 0): xloads(S, [2])
    if mid2: S.extend(mid2)
    if OPT.get('ptrace'): stamp_mid(S, 94)
    S.need('T')
    S('s_barrier')
    if OPT.get('ptrace'): stamp_mid(S, 96)
def t2_writes(ks):
    A = Stream()
    for j in range(NR1, 9):
        for g in range(len(ks)):
            A('ds_write_b128 v5, %s offset:%d' % (q4(ln(g, j)), goff(ks[g], P2) + (j - NR1) * 2048), tok_w=['T2'])
    return A
def t2_addr(S):
    S('s_mul_i32 s63, s51, %d' % (2 * (P2 - P1)))
    S('s_add_u32 s63, s63, %d' % (T2_OFF - T1_OFF))
    S('v_add_u32 v5, s63, v5')

def emit(F, out):
    ren = {'ATOMIC': 'FLAG', 'POLLISSUE': 'FISSUE', 'POLLCHECK': 'FCHECK'} if OPT.get('flags', 1) else {}
    for x in flatten(out):
        if isinstance(x, str): x = ren.get(x, x)
        m32 = isinstance(x, str) and x.endswith('32')
        if m32: x = x[:-2]
        if isinstance(x, tuple) and x[0] == 'DMA5':
            _, n, txt, off = x
            lab = 'K1_D%d' % n
            F.run(G('s_cmp_eq_u32 s51, 3\ns_cbranch_scc1 %s\ns_add_u32 m0, s68, %d' % (lab, off)))
            F.add(I(txt)); F.vmq.pop()
            F.run(G(lab + ':'))
        elif isinstance(x, tuple) and x[0] == 'KEEPQ':
            if x[1] == 0: keep = [set(q) for q in F.vmq]
            else: F.vmq = keep
        elif x == 'POLLISSUE':
            F.run(G('s_cmp_lg_u32 s51, 0\ns_cbranch_scc1 K1_NOPI'))
            F.run(poll_issue(3, 6)); F.vmq.pop()
            F.run(G('K1_NOPI:'))
        elif x == 'ENTRY1' and OPT.get('mega'):
            F.run(G('''s_lshl_b32 s67, s48, 14
            s_add_u32 s67, s67, %d
            v_and_b32 v37, 15, v1
            v_lshlrev_b32 v37, 10, v37
            v_mov_b32 v6, 0
            v_mov_b32 v36, 1''' % (FL_OFF - ST_OFF)))
        elif x == 'ENTRY2' and OPT.get('mega'):
            pass
        elif x == 'HZERO':
            F.run(G('''s_lshl_b32 s64, s48, 14
            s_lshl_b32 s65, s49, 10
            s_add_u32 s64, s64, s65
            s_add_u32 s64, s64, 0x%x
            s_add_u32 s40, s14, s64
            s_addc_u32 s41, s15, 0
            s_movk_i32 s42, 1024
            s_mov_b32 s43, 0x00020000
            v_lshlrev_b32 v68, 4, v1
            v_mov_b32 v36, 0
            v_mov_b32 v37, 0
            v_mov_b32 v38, 0
            v_mov_b32 v39, 0
            s_cmp_lg_u32 s51, 0
            s_cbranch_scc1 K1_NOHZ''' % FL_OFF))
            F.add(I('buffer_store_dwordx4 v[36:39], v68, s[40:43], 0 offen sc1')); F.vmq.pop()
            F.run(G('K1_NOHZ:'))
        elif x == 'HARRIVE':
            F.run(G('''s_cmp_lg_u32 s51, 0
            s_cbranch_scc1 K1_NOHA
            s_lshl_b32 s63, s48, 4
            v_mov_b32 v36, 1
            s_mov_b64 exec, 1'''))
            F.add(I('buffer_atomic_add v36, v37, s[44:47], s63 offen sc1')); F.vmq.pop()
            F.run(G('s_mov_b64 exec, -1\nK1_NOHA:'))
        elif x == 'QFLAG':
            F.run(G('''s_cmp_lg_u32 s51, 0
            s_cbranch_scc1 K1_NOQF
            s_lshl_b32 s10, s49, FSH
            s_add_u32 s10, s10, s67
            v_lshlrev_b32 v39, 2, v1
            s_mov_b32 exec_hi, 0'''.replace('FSH', '10')))
            F.add(I('buffer_store_dword v36, v39, s[40:43], s10 offen offset:512 sc1')); F.vmq.pop()
            F.run(G('s_mov_b64 exec, -1\nK1_NOQF:'))
        elif x == 'QISSUE':
            F.run(G('''v_and_b32 v48, 15, v1
            v_lshlrev_b32 v48, 14, v48
            s_lshl_b32 s12, s49, 10
            s_add_u32 s12, s12, %d
            buffer_load_dword v49, v48, s[40:43], s12 offen sc1''' % (FL_OFF - ST_OFF + 512)))
        elif x == 'QCHECK':
            F.run(G('v_cmp_ne_u32 vcc, 1, v49\ns_cmp_lg_u32 s51, 0\ns_cbranch_scc1 K1_QOK'))
            keep = [set(q) for q in F.vmq]
            F.run(G('''s_mov_b32 s10, 0
            K1_QPOLL:
            s_cmp_eq_u32 vcc_lo, 0
            s_cbranch_scc1 K1_QOK
            s_sleep 4
            buffer_load_dword v49, v48, s[40:43], s12 offen sc1
            s_add_u32 s10, s10, 1
            s_waitcnt vmcnt(0)
            v_cmp_ne_u32 vcc, 1, v49
            s_cmp_lt_u32 s10, 0x20000
            s_cbranch_scc1 K1_QPOLL
            K1_QOK:'''))
            F.vmq = keep
        elif x == 'CZERO':
            F.run(G('''s_cmp_lg_u32 s51, 0
            s_cbranch_scc1 K1_NOCZ
            s_lshl_b32 s64, s48, 14
            s_lshl_b32 s65, s49, 10
            s_add_u32 s64, s64, s65
            s_add_u32 s64, s64, %d
            v_lshlrev_b32 v12, 3, v1
            v_mov_b32 v14, 0
            v_mov_b32 v15, 0''' % (FL_OFF - ST_OFF)))
            F.add(I('buffer_store_dwordx2 v[14:15], v12, s[40:43], s64 offen sc1')); F.vmq.pop()
            F.run(G('K1_NOCZ:'))
            cz_len = len(F.vmq)
        elif x == 'CARRIVE':
            F.run(G('''s_cmp_lg_u32 s51, 0
            s_cbranch_scc1 K1_NOCA
            s_lshl_b32 s64, s48, 4
            v_mov_b32 v38, 0
            v_mov_b32 v39, 1
            s_mov_b64 exec, 1'''.replace('v38', 'v14' if m32 else 'v38').replace('v39', 'v15' if m32 else 'v39')))
            keep = [set(q) for q in F.vmq]
            F.run(G('s_waitcnt vmcnt(%d)\nbuffer_atomic_add v%d, v%d, s[44:47], s64 offen sc1' % ((len(F.vmq) - cz_len,) + ((15, 14) if m32 else (39, 38)))))
            F.vmq = keep
            F.run(G('s_mov_b64 exec, -1\nK1_NOCA:'))
        elif x == 'FLAG' and OPT.get('mega'):
            F.run(G('''s_cmp_lg_u32 s51, 0
            s_cbranch_scc1 K1_NOAT
            s_lshl_b32 s10, s49, 10
            s_add_u32 s10, s10, s67
            v_lshlrev_b32 v39, 2, v1
            s_mov_b32 exec_hi, 0'''))
            F.add(I('buffer_store_dword v36, v39, s[40:43], s10 offen sc1')); F.vmq.pop()
            F.run(G('s_mov_b64 exec, -1\nK1_NOAT:'))
        elif x == 'GATE1' and OPT.get('mega'):
            F.run(G('v_and_b32 v39, 15, v1\nv_lshlrev_b32 v39, 4, v39\nbuffer_load_dword v38, v39, s[44:47], 0 offen sc1'))
        elif x == 'GATE2' and OPT.get('mega'):
            F.run(G('v_cmp_gt_u32 vcc, 16, v38\ns_cmp_lg_u32 s51, 0\ns_cbranch_scc1 K1_GOK'))
            keep = [set(q) for q in F.vmq]
            F.run(G('''s_mov_b32 s10, 0
            K1_GPOLL:
            s_cmp_eq_u32 vcc_lo, 0
            s_cbranch_scc1 K1_GOK
            s_sleep 16
            buffer_load_dword v38, v39, s[44:47], 0 offen sc1
            s_add_u32 s10, s10, 1
            s_waitcnt vmcnt(0)
            v_cmp_gt_u32 vcc, 16, v38
            s_cmp_lt_u32 s10, 0x10000
            s_cbranch_scc1 K1_GPOLL
            K1_GOK:'''))
            F.vmq = keep
        elif isinstance(x, tuple) and x[0] == 'RESETQ':
            F.vmq = keepq; F.lgq = keepl
        elif isinstance(x, tuple) and x[0] == 'SAVEQ':
            keepq = [set(q) for q in F.vmq]; keepl = [(set(a), b) for a, b in F.lgq]
        elif x == 'ENTRY1':
            F.run(G('''s_lshl_b32 s67, s48, 8
            s_add_u32 s67, s67, %d
            v_lshlrev_b32 v37, 2, v1
            v_mov_b32 v6, 0
            buffer_load_dword v36, v37, s[40:43], s67 offen sc1''' % (FL_OFF - ST_OFF)))
        elif x == 'ENTRY2':
            F.run(G('''v_add_u32 v36, 1, v36
            v_mov_b32 v7, 1
            s_lshl_b32 s9, s48, 4
            s_cmp_lg_u32 s51, 0
            s_cbranch_scc1 K1_NOENT
            s_mov_b64 exec, 1'''))
            F.add(I('buffer_atomic_add v7, v6, s[44:47], s9 offen sc1')); F.vmq.pop()
            F.run(G('s_mov_b64 exec, -1\nK1_NOENT:'))
        elif x == 'GATE1':
            F.run(G('buffer_load_dword v38, v6, s[44:47], s9 offen sc1'))
        elif x == 'GATE2':
            F.run(G('v_mov_b32 v39, v38\ns_cmp_lg_u32 s51, 0\ns_cbranch_scc1 K1_NOPOLLG'))
            keep = [set(q) for q in F.vmq]
            P = Stream(); poll(P, 'G', 38, 6)
            F.run([y for y in P if not isinstance(y, tuple)]); F.vmq = keep
        elif x == 'FLAG':
            F.run(G('''s_cmp_lg_u32 s51, 0
            s_cbranch_scc1 K1_NOAT
            s_lshl_b64 exec, 1, s49'''))
            F.add(I('buffer_store_dword v36, v37, s[40:43], s67 offen sc1')); F.vmq.pop()
            F.run(G('s_mov_b64 exec, -1\nK1_NOAT:'))
        elif x == 'FISSUE':
            F.run(G('buffer_load_dword v3, v37, s[40:43], s67 offen sc1'))
        elif x == 'FCHECK':
            F.run(G('v_mov_b32 v39, v3\ns_cmp_lg_u32 s51, 0\ns_cbranch_scc1 K1_FOK'))
            keep = [set(q) for q in F.vmq]
            F.run(G('''s_mov_b32 s10, 0
            K1_FPOLL:
            v_cmp_ne_u32 vcc, v3, v36
            s_and_b32 s11, vcc_lo, 0xffff
            s_cbranch_scc0 K1_FOK
            s_sleep %d
            buffer_load_dword v3, v37, s[40:43], s67 offen sc1
            s_add_u32 s10, s10, 1
            s_cmp_lt_u32 s10, 0x20000
            s_waitcnt vmcnt(0)
            s_cbranch_scc1 K1_FPOLL
            K1_FOK:''' % OPT.get('slp', 4)))
            F.vmq = keep
        elif x == 'POLLCHECK':
            P = Stream()
            P('s_cmp_lg_u32 s51, 0\ns_cbranch_scc1 K1_NOPOLLH')
            F.run(P); keep = [set(q) for q in F.vmq]
            P = Stream(); P('s_waitcnt vmcnt(0)'); poll(P, 'H', 3, 6)
            F.run([y for y in P if not isinstance(y, tuple)]); F.vmq = keep
        elif x == 'ZERO':
            Z = Stream()
            Z('s_or_b32 s12, s2, s51\ns_cmp_lg_u32 s12, 0\ns_cbranch_scc1 K1_NOZ')
            srd(Z, 4, 14, 15, CN_SZ, CN_OFF)
            Z('v_lshlrev_b32 v33, 6, v1\nv_mov_b32 v32, 0')
            F.run(Z)
            F.add(I('buffer_store_dword v32, v33, s[4:7], 0 offen')); F.vmq.pop()
            F.run(G('K1_NOZ:'))
        elif x == 'ATOMIC':
            F.run(G('''s_cmp_lg_u32 s51, 0
            s_cbranch_scc1 K1_NOAT
            v_mov_b32 v7, 1
            s_mov_b64 exec, 1'''))
            F.add(I('buffer_atomic_add v7, v6, s[44:47], s9 offen sc1')); F.vmq.pop()
            F.run(G('s_mov_b64 exec, -1\nK1_NOAT:'))
        else:
            F.add(x)

def table_text():
    out = ['.p2align 8', 'K1_TAB:']
    for rg in range(4):
        vals = []
        for lane in range(64):
            v = []
            zq = []
            for e in range(5):
                i = 64 * (rg + 4 * e) + lane
                row, p = divmod(i, 20)
                sh = 2 * ((row >> 3) & 1)
                v.append(row * 9216 + (p ^ (0 if OPT.get('m32') else sh)) * 16)
                pp = p - sh
                if OPT.get('qpack'): zq.append(row * 288 + pp * 16 if 0 <= pp < 18 else 0x7f000000)
                else: zq.append(row * 3456 + (1152, 2304, 0)[pp // 6] + (pp % 6) * 16 if 0 <= pp < 18 else 0x7f000000)
            hi = 4 * rg + (lane >> 4); g = lane & 3
            v += zq + [XH_OFF + ((lane >> 2) & 3) * 1024 + (g * 16 + (hi ^ g)) * 16, (hi * 1152 + (lane & 7) * 16)]
            for e in range(3):
                i = 162 * rg + 64 * e + lane
                row, pp = divmod(i, 18)
                v.append(row * 3456 + (1152, 2304, 0)[pp // 6] + (pp % 6) * 16 if 64 * e + lane < 162 else 0x7f000000)
            v.append(0)
            vals.append(v)
        for q in range(4):
            for l0 in range(0, 64, 4):
                out.append('.long ' + ','.join(str(x) for l in range(l0, l0 + 4) for x in vals[l][4 * q:4 * q + 4]))
    return '\n'.join(out) + '\n'

def gen_k1(stamp=False, xmap='84', rot=True, **opt):
    OPT.clear(); OPT.update(opt); V2.OPT.clear()
    global stamp_mid
    import common
    if OPT.get('ptrace'):
        seen = {}
        def sm(S, r):
            k = (id(S), r)
            if r == 88 and k in seen: r = 70
            k = (id(S), r)
            if k in seen: return
            seen[k] = 1
            if r == 70: common.stamp_mid(S, 66); return
            common.stamp_mid(S, r)
        stamp_mid = sm
    else:
        stamp_mid = common.stamp_mid
    F = Finisher()
    S = Stream()
    head(S, stamp, xmap, rot)
    F.run(S)
    txt = F.text()
    zzq = OPT.get('zzq')
    PH[1:] = [('Z1', 9216, 0), ('Q', 3456, 0)] if zzq else [('Q', 3456, 0), ('Z1', 9216, 0)]
    V2.QB_OFF = QB_OFF; V2.VOFF = 72; V2.QOFF = 144
    comp = compute2 if zzq else compute
    if OPT.get('m32'):
        import k1c32
        comp = k1c32.compute32
    for role in (comp, helper):
        G2 = Finisher()
        G2.vmq = [set(x) for x in F.vmq]; G2.lgq = [(set(a), b) for a, b in F.lgq]; G2.hist = list(F.hist)
        emit(G2, role(stamp))
        if role is not helper: OPT['cons_state'] = ([set(x) for x in G2.vmq], [(set(a), b) for a, b in G2.lgq])
        txt += G2.text()
    return txt, 256

def pace(items, dl=8, dm=4):
    flat = []
    for x in items:
        if isinstance(x, list) and not any('exec' in y.writes or 'vcc' in y.writes for y in x): flat.extend(x)
        else: flat.append(x)
    out = []; ready = {}
    k = 0
    while k < len(flat):
        x = flat[k]
        grp = list(x) if isinstance(x, list) else [x]
        k += 1
        while not isinstance(x, list) and x.kind == 'salu' and k < len(flat) and not isinstance(flat[k], list):
            x = flat[k]; grp.append(x); k += 1
        need = 0
        for y in grp:
            for r in y.reads | y.writes:
                t, kind = ready.get(r, (0, ''))
                if kind == 'valu' and not (y.dpp or y.op.startswith('v_permlane') or y.kind in ('mfma', 'ds', 'vmem')): continue
                need = max(need, t)
        while len(out) < need: out.append(None)
        out.append(grp)
        for y in grp:
            d = {'ds': dl, 'mfma': dm, 'trans': 0, 'valu': 1}.get(y.kind, 0)
            for r in y.writes: ready[r] = (len(out) + d, y.kind)
    return out

def pf_setup(S):
    S("""s_load_dwordx2 s[20:21], s[0:1], 56
    s_load_dwordx2 s[24:25], s[0:1], 16
    s_mov_b32 s4, s10
    s_or_b32 s5, s11, 0x800000
    s_mov_b32 s6, %d
    s_mov_b32 s7, 0x00020000
    s_mov_b32 s22, %d
    s_mov_b32 s23, 0x00020000
    s_mov_b32 s26, %d
    s_mov_b32 s27, 0x00020000
    s_lshl_b32 s8, s2, 15
    s_lshl_b32 s9, s51, 11
    s_add_u32 s8, s8, s9
    s_mul_i32 s9, s2, 10368
    s_mul_i32 s10, s51, 2688
    s_add_u32 s9, s9, s10
    s_min_u32 s9, s9, 2651520
    s_mul_i32 s10, s2, 2688
    s_mul_i32 s11, s51, 768
    s_add_u32 s10, s10, s11
    s_min_u32 s10, s10, 662784
    s_mov_b32 m0, %d
    s_waitcnt lgkmcnt(0)
    s_or_b32 s21, s21, 0x800000
    s_or_b32 s25, s25, 0x800000""" % (2048 * 32, 2304 * 9, 576 * 9, SB_OFF))
def ws_touch(k):
    g = Stream()
    if k == 0:
        g("""s_add_u32 s16, s14, 0x%x
        s_addc_u32 s17, s15, 0
        s_or_b32 s17, s17, 0x800000
        s_mov_b32 s18, %d
        s_mov_b32 s19, 0x00020000
        s_lshl_b32 s64, s49, 6
        s_lshl_b32 s65, s48, 2
        s_add_u32 s64, s64, s65
        s_add_u32 s64, s64, s51
        s_mul_i32 s64, s64, 9216
        s_lshl_b32 s65, s48, 3
        s_lshl_b32 s66, s51, 1
        s_add_u32 s65, s65, s66
        s_mul_i32 s65, s65, 92160
        s_mul_i32 s66, s49, 4608
        s_add_u32 s65, s65, s66
        s_add_u32 s65, s65, %d
        buffer_load_dword v1, s[16:19], s64 idxen lds""" % (Z2P_OFF, 64, AP_OFF - Z2P_OFF + 18 * 1024))
    elif k == 1:
        g("""s_add_u32 s64, s64, 8192
        s_mov_b64 exec, 0xff
        buffer_load_dword v1, s[16:19], s64 idxen lds
        s_mov_b64 exec, -1""")
    else:
        g("""s_mov_b32 exec_hi, 15
        buffer_load_dword v1, s[16:19], s65 idxen lds
        s_mov_b32 exec_hi, -1
        s_add_u32 s65, s65, 92160""")
    return list(g)
def w_touch(kind, j):
    g = Stream()
    if kind == 'Q':
        g("""s_load_dwordx2 s[16:17], s[0:1], 8
        s_mov_b32 s18, 64
        s_mov_b32 s19, 0x00020000
        s_mul_i32 s64, s%d, %d
        s_mul_i32 s65, s49, 72
        s_and_b32 s65, s65, -32
        s_add_u32 s64, s64, s65
        s_min_u32 s65, s51, 2
        s_mul_i32 s65, s65, 1152
        s_add_u32 s64, s64, s65
        s_waitcnt lgkmcnt(0)
        s_or_b32 s17, s17, 0x%x
        buffer_load_dword v1, s[16:19], s64 idxen lds
        buffer_load_dword v1, s[16:19], s64 idxen offset:92 lds""" % (sBLK + j, 64 * 3456, 3456 << 16))
    else:
        g("""s_load_dwordx2 s[16:17], s[0:1], 32
        s_mov_b32 s18, 64
        s_mov_b32 s19, 0x00020000
        s_mul_i32 s64, s%d, %d
        s_mul_i32 s65, s49, 288
        s_and_b32 s65, s65, -64
        s_add_u32 s64, s64, s65
        s_lshl_b32 s65, s51, 7
        s_min_u32 s65, s65, 316
        s_add_u32 s64, s64, s65
        s_waitcnt lgkmcnt(0)
        s_or_b32 s17, s17, 0x%x
        buffer_load_dword v1, s[16:19], s64 idxen lds""" % (sBLK + j, 64 * 9216, 9216 << 16))
    return list(g)
def pf_touch(k):
    if k < 4:
        return G("""s_mov_b64 exec, 0xffff
        buffer_load_dword v1, s[4:7], s8 idxen lds
        s_mov_b64 exec, -1
        s_add_u32 s8, s8, 8192""")
    return G("""s_mov_b64 exec, 0x%x
    buffer_load_dword v1, s[%s], s%d idxen lds
    s_mov_b64 exec, -1""" % ((0x1fffff, '20:23', 9) if k == 4 else (0x3f, '24:27', 10)))

def compute(stamp):
    S = Stream()
    vXe = 6; vXo = 7
    xloads(S, [0])
    common_setup(S)
    srd(S, 32, 14, 15, Z1P_SZ, Z1P_OFF)
    if OPT.get('pfc'): pf_setup(S)
    S('''
    s_mul_i32 s63, s51, %d
    s_add_u32 s63, s63, %d
    v_add_u32 v6, s63, v6
    v_xor_b32 v7, 64, v6
    ''' % (2 * P1, T1_OFF))
    if stamp: stamp_mid(S, 86)
    layernorm(S, [0, 1, 2], mid=sum([pf_touch(0) for _ in range(OPT.get('pfp', 0))], []))
    for q in range(2 * NR1):
        for b in range(2):
            S('ds_read_b128 %s, v%d offset:%d' % (xf(q, b), vXo if q & 1 else vXe, b * P1 + q * 1024), tok_w=['TR'])
    for j in range(NR1, 9): norm4(S, ln(2, j), ST + 4, ST + 6)
    t2_addr(S)
    S('s_mul_i32 s63, s51, %d' % (2 * (P2 - P1)))
    S('s_add_u32 s63, s63, %d' % (T2_OFF - T1_OFF))
    S.need('TR')
    S('s_barrier')
    S('v_add_u32 v6, s63, v6')
    S('v_add_u32 v7, s63, v7')
    S('s_setprio %d' % OPT.get('prio', 2))
    if stamp: stamp_mid(S, 88)
    ntile = [9, 7, 9]
    def acc(c, b): return ACC + (c * 2 + b) * 4
    hA = ACC + 56; hX = ACC + 64; hW = ACC + 68
    vTa = 2; vTb = 3; vq2 = 6; vq4 = 8; vQb = 5; vXH = 9; vqh = 7; vTs = 4
    frs = [(n, ks, c) for n in range(27) for ks in range(2) for c in range(ntile[n // 9])]
    bias = {}
    extra_tok = {1: ['T2'], 9: ['TR2'], 10: ['HB'], 18: ['XHR'], 19: ['QB']}
    QIMM = {0: 0, 1: 32, 3: 120, 5: 160 + 48, 6: 192 + 48}
    def zaddr(mode):
        g = Stream()
        g("""v_bfe_u32 v15, v1, 4, 1
        v_lshlrev_b32 v15, 5, v15""")
        if mode == 0:
            g("""s_cmp_eq_u32 s52, 0
            s_cselect_b32 s98, 1, -1
            s_lshl_b32 s99, s52, 5
            v_mul_lo_u32 v15, v15, s98
            v_add3_u32 v%d, v%d, v15, s99
            v_sub_u32 v%d, v%d, v15
            v_add_u32 v%d, s99, v%d""" % (vTa, vT, vTb, vT, vTb, vTb))
        else:
            g("""s_lshl_b32 s99, s52, 6
            v_add3_u32 v%d, v%d, v15, s99
            v_sub_u32 v%d, v%d, v15
            v_add_u32 v%d, 256, v%d
            v_add_u32 v15, 32, v%d
            s_cmp_eq_u32 s52, 0
            s_cselect_b64 vcc, -1, 0
            v_cndmask_b32 v%d, v15, v%d, vcc
            v_add_u32 v%d, s99, v%d
            v_add_u32 v%d, %d, v%d
            v_add_u32 v%d, %d, v%d
            v_add_u32 v%d, %d, v%d""" % (vTa, vT, vTb, vT, vTs, vTa, vTb, vTs, vTs, vTb, vTb, vTa, 2 * SLOT, vTa, vTb, 2 * SLOT, vTb, vTs, 2 * SLOT, vTs))
        return g
    def qaddr():
        g = Stream()
        g("""v_bfe_u32 v15, v1, 4, 1
        v_lshlrev_b32 v15, 5, v15
        s_mul_i32 s98, s49, 72
        s_and_b32 s98, s98, 31
        v_add3_u32 v{qb}, v{T}, v15, s98
        v_and_b32 v15, 3, v1
        v_cmp_le_u32 vcc, 2, v15
        v_cndmask_b32 v14, 0, 24, vcc
        v_add_u32 v14, 152, v14
        v_add_u32 v{q4}, v{qb}, v14
        v_cmp_le_u32 vcc, 1, v15
        v_cndmask_b32 v14, 0, 24, vcc
        v_add_u32 v14, 64, v14
        v_add_u32 v{q2}, v{qb}, v14
        s_lshl_b32 s69, s51, 5
        s_cmp_eq_u32 s51, 3
        s_cselect_b32 s99, 24, 0
        s_add_u32 s99, s99, s69
        v_add_u32 v{qh}, s99, v{qb}
        s_cmp_eq_u32 s51, 2
        s_cselect_b64 vcc, -1, 0
        v_cndmask_b32 v{qh}, v{qh}, v{q2}, vcc
        v_and_b32 v14, 15, v1
        v_lshrrev_b32 v15, 4, v1
        v_xor_b32 v14, v14, v15
        v_lshl_add_u32 v14, v15, 4, v14
        v_lshlrev_b32 v14, 4, v14
        v_add_u32 v{xh}, {XH}, v14""".format(qb=vQb, T=vT, q4=vq4, q2=vq2, qh=vqh, xh=vXH, XH=XH_OFF))
        return g
    def toggle(g, ar, n):
        want = (n & 3) >> 1
        if bias.get(ar, 0) != want:
            g('v_add_u32 v%d, %d, v%d' % (ar, 2 * SLOT if want else -2 * SLOT, ar))
            bias[ar] = want
    def halo_read(q):
        g = Stream()
        n = 9 + q // 2
        g('ds_read_b128 %s, v%d offset:%d' % (q4(hX), vXH, q * 1024), tok_w=['XHR'])
        toggle(g, vqh, n)
        for hh in range(2):
            g('ds_read_b64_tr_b16 v[%d:%d], v%d offset:%d' % (hW + 2 * hh, hW + 2 * hh + 1, vqh, (n & 1) * SLOT + (q & 1) * 10240 + hh * 1280))
        return g
    def read(f):
        n, ks, c = frs[f]
        ph = n // 9
        g = Stream()
        if ks == 0 and c == 0:
            if n > 0:
                if n in extra_tok: g.need(*extra_tok[n])
                if n > 10: g.need('ZCdone')
                g('s_barrier')
            if n == 0: g.extend(zaddr(0))
            if n == 18:
                for r in (vTa, vTb, vTs): bias[r] = 1
        if ph == 0: ar, coff = (vTb if c & 1 else vTa), 32 * c
        elif ph == 1: ar, coff = (vq2, 0) if c == 2 else ((vq4, 0) if c == 4 else (vQb, QIMM[c]))
        else: ar, coff = ((vTb if c & 1 else vTa), 32 * c) if c < 8 else (vTs, 0)
        toggle(g, ar, n)
        r = WFR + (f % NRING) * 4
        for hh in range(2):
            if OPT.get('halfread') and hh == 1:
                g('s_nop 0'); continue
            g('ds_read_b64_tr_b16 v[%d:%d], v%d offset:%d' % (r + 2 * hh, r + 2 * hh + 1, ar, (n & 1) * SLOT + ks * 10240 + hh * 1280 + coff))
        return g
    D = NRING - 1
    for f in range(D): S.extend(read(f))
    def tmpr(ph, c, b):
        pairs = [12, 14, 2] if ph == 0 else [12, 14, 6, 8]
        return pairs[(2 * c + b) % len(pairs)]
    def cvt(ph, c, b):
        a = acc(c, b); t = tmpr(ph, c, b)
        return G('v_cvt_pk_bf16_f32 v%d, v%d, v%d\nv_cvt_pk_bf16_f32 v%d, v%d, v%d' % (t, a, a + 1, t + 1, a + 2, a + 3))
    def cvti(a):
        return G('v_cvt_pk_bf16_f32 v%d, v%d, v%d\nv_cvt_pk_bf16_f32 v%d, v%d, v%d' % (a, a, a + 1, a + 1, a + 2, a + 3))
    def dw(ph, c, b, src=None):
        t = tmpr(ph, c, b) if src is None else src
        if OPT.get('nodw'): return []
        if ph == 0:
            return G('ds_write_b64 v10, v[%d:%d] offset:%d' % (t, t + 1, 16 * b * ZP + 32 * c), tok_w=['HB'])
        return G('ds_write_b64 v11, v[%d:%d] offset:%d' % (t, t + 1, (16 + 16 * b) * QP + 32 * c), tok_w=['QB'])
    x2 = Stream()
    for q in range(2 * NR1, 18):
        for b in range(2):
            x2('ds_read_b128 %s, v%d offset:%d' % (xf(q, b), vXo if q & 1 else vXe, b * P2 + (q - 2 * NR1) * 1024), tok_w=['TR2'])
    t2 = t2_writes([0, 1, 2])
    addr = G('''
    v_and_b32 v10, 15, v1
    s_lshl_b32 s98, s51, 5
    v_add_u32 v10, s98, v10
    v_mul_u32_u24 v11, %d, v10
    v_mul_u32_u24 v10, %d, v10
    v_lshrrev_b32 v12, 4, v1
    v_lshlrev_b32 v12, 3, v12
    s_mov_b32 s98, %d
    v_add3_u32 v10, v10, v12, s98
    s_mov_b32 s98, %d
    v_add3_u32 v11, v11, v12, s98
    ''' % (QP, ZP, ZB_OFF, QB_OFF))
    hw = G('s_mul_i32 s98, s51, %d\nv_subrev_u32 v5, s98, v11\nv_add_u32 v38, s69, v5' % (32 * QP))
    NC = OPT.get('nc', 0)
    share = []
    for k in range(NC):
        c = 9 - NC + k
        g = Stream()
        off = 16 * ZP + 32 * c
        g('ds_read_b64 v[12:13], v10 offset:%d' % off)
        for _ in range(OPT.get('rgap', 6)): g.append(None)
        g("""v_and_b32 v15, 0xffff0000, v13
        v_lshlrev_b32 v14, 16, v13
        v_and_b32 v13, 0xffff0000, v12
        v_lshlrev_b32 v12, 16, v12""")
        gelu4(g, 12, 36, c2=0)
        g('v_cvt_pk_bf16_f32 v36, v12, v13')
        g('v_cvt_pk_bf16_f32 v37, v14, v15')
        g('ds_write_b64 v10, v[36:37] offset:%d' % off, tok_w=['ZCdone'] if k == NC - 1 else [])
        share.append(list(g))
    light = [[3, list(addr) + list(qaddr()) + G('s_mov_b32 s78, 0x%x\nv_mov_b32 v0, 0x%x' % (fbits(C1), fbits(C2)))], [10, list(zaddr(1))]]
    cur = []
    zc_step = [None]
    att = []
    if OPT.get('attgap'):
        V2.S1 = XF; V2.QB_OFF = QB_OFF; V2.VOFF = 72; V2.QOFF = 144
        att = pace(V2.attention(0))
        print('att gaps', len(att))
    for f, (n, ks, c) in enumerate(frs):
        ph, j = divmod(n, 9)
        q = 2 * j + ks
        r = WFR + (f % NRING) * 4
        if stamp and q == 0 and c == 0 and ph > 0 and not OPT.get('trace'): stamp_mid(S, 88 + 2 * ph)
        hand = (q == 0 and ph > 0)
        if hand and c == 0:
            if ph == 2: S.extend(hw)
            S.extend(cvt(ph - 1, 0, 0))
        rd = read(f + D) if f + D < len(frs) else []
        if f % 2 == 0 and f + 1 < len(frs) and not OPT.get('allwait'):
            r1 = WFR + ((f + 1) % NRING) * 4
            S.need(*['v%d' % k for k in range(r1, r1 + 4)])
        for b in range(2):
            a = acc(c, b)
            S('v_mfma_f32_16x16x32_bf16 %s, %s, %s, %s' % (q4(a), q4(r), xf(q, b), '0' if q == 0 else q4(a)))
            S.extend(rd[:-1] if b == 0 else rd[-1:])
            if hand and c < 7:
                S.extend(dw(ph - 1, c, b))
                if ph == 1:
                    if c in (1, 2): S.extend(dw(0, 6 + c, b, acc(6 + c, b)))
                    if c == 2 and b == 1: S.extend(halo_read(0))
                else:
                    if c == 1: S.extend(G('ds_write_b64 v%d, v[%d:%d] offset:%d' % (5 if b else 38, hA + 4 * b, hA + 4 * b + 1, 128 * b), tok_w=['QB']))
                if 2 * c + b + 1 < 14: S.extend(cvt(ph - 1, c + b, 1 - b))
                if c == 0 or (c == 1 and ph == 1): S.extend(cvti(acc(7 + c, b)))
            if OPT.get('pfc') and n in OPT['pfc'] and ks == 1 and c == 0 and b == 0: S.extend(pf_touch(OPT['pfc'].index(n)))
            if OPT.get('mega') and not OPT.get('qpack') and ks == 0 and c == 2 and b == 0 and n in (1, OPT.get('arr', 8)): S.append('CZERO' if n == 1 else 'CARRIVE')
            if OPT.get('wtch') and n in OPT['wtch'] and ks == 0 and c == 5 and b == 0: S.extend(w_touch(*OPT['wtch'][n]))
            if OPT.get('wst') and n in OPT['wst'] and ks == 1 and c == 3 and b == 0: S.extend(ws_touch(OPT['wst'].index(n)))
            if n == 0 and t2 and b == 1: S.append(t2.pop(0))
            if n in (1, 2) and x2 and b == 1 and (n == 2 or ks == 1 or c > 0): S.append(x2.pop(0))
            gaps_left = sum(2 for ff in range(f, len(frs)) if frs[ff][0] < 18) - 12
            if not cur and share and not (light and n >= light[0][0]) and n >= 10 and (n >= 19 or gaps_left > len(share[0])) and not hand:
                cur.extend(share.pop(0))
            if cur:
                x = cur.pop(0)
                if x is not None: S.append(x)
                if not cur and not share: zc_step[0] = n
            elif att and n >= OPT['attgap']:
                x = att.pop(0)
                if x is not None: S.extend(x)
            elif light and n >= light[0][0]:
                x = light[0][1].pop(0); S.append(x)
                while x.kind == 'salu' and light[0][1]:
                    x = light[0][1].pop(0); S.append(x)
                if not light[0][1]: light.pop(0)
        if ph == 1 and c == 4:
            S('v_mfma_f32_16x16x32_bf16 %s, %s, %s, %s' % (q4(hA + 4), q4(r), q4(hX), '0' if q == 0 else q4(hA + 4)))
        if ph == 1 and c == 5:
            S('v_mfma_f32_16x16x32_bf16 %s, %s, %s, %s' % (q4(hA), q4(hW), q4(hX), '0' if q == 0 else q4(hA)))
            if q < 17 and (q & 1) == 0: S.extend(halo_read(q + 1))
        if ph == 1 and c == 6 and q < 17 and (q & 1) == 1: S.extend(halo_read(q + 1))
    assert not t2 and not x2 and not share and not cur
    OPT['zc_step'] = zc_step[0]
    for x in att:
        if x is not None: S.extend(x)
    n2a, n2b = norm_z2(range(NZC), (112, 144, 160, 2) if OPT.get('mega') else (176, 208, 244, 248))
    if OPT.get('mega'): OPT['mega'].cons_early(S)
    if not OPT.get('early'):
        S('s_barrier')
        S.extend(n2a)
    elif OPT.get('mega'): S('s_barrier')
    if stamp: stamp_mid(S, 94)
    S('''
    s_lshl_b32 s63, s48, 3
    s_lshl_b32 s98, s51, 1
    s_add_u32 s63, s63, s98
    s_mul_i32 s63, s63, 72
    s_mul_i32 s98, s49, 9
    s_add_u32 s98, s98, s52
    s_lshr_b32 s98, s98, 1
    s_add_u32 s63, s63, s98
    s_lshl_b32 s69, s63, 10
    s_add_u32 s70, s69, 73728
    s_cmp_eq_u32 s52, 0
    s_cselect_b32 s63, 4608, 0
    s_sub_u32 s63, s63, 512
    s_add_u32 s71, s69, s63
    s_add_u32 s72, s70, s63
    v_lshlrev_b32 v10, 4, v1
    v_lshrrev_b32 v12, 5, v1
    v_lshlrev_b32 v12, 8, v12
    v_and_b32 v13, 15, v1
    v_lshl_add_u32 v12, v13, 4, v12
    v_bfe_u32 v13, v1, 4, 1
    v_lshl_add_u32 v12, v13, 3, v12
    ''')
    G1 = OPT.get('gelu1', False)
    if G1:
        S('s_mov_b32 s78, 0x%x' % fbits(C1))
        S('v_mov_b32 v%d, 0x%x' % (vC2, fbits(C2)))
    for p in range(4):
        for b in range(2):
            a0 = acc(2 * p, b); a1 = acc(2 * p + 1, b)
            if G1: gelu4(S, a0, XF); gelu4(S, a1, XF + 4)
            o = XF + 8 + 4 * (2 * p + b) if not OPT.get('mega') else 168 + (b * 4 + p) * 4
            S('v_cvt_pk_bf16_f32 v%d, v%d, v%d' % (o, a0, a0 + 1))
            S('v_cvt_pk_bf16_f32 v%d, v%d, v%d' % (o + 1, a0 + 2, a0 + 3))
            S('v_cvt_pk_bf16_f32 v%d, v%d, v%d' % (o + 2, a1, a1 + 1))
            S('v_cvt_pk_bf16_f32 v%d, v%d, v%d' % (o + 3, a1 + 2, a1 + 3))
            for d in range(2): S('v_permlane32_swap_b32 v%d, v%d' % (o + d, o + 2 + d))
            for d in range(2): S('v_permlane16_swap_b32 v%d, v%d' % (o + d, o + 2 + d))
            if not OPT.get('mega'): S('buffer_store_dwordx4 %s, v10, s[32:35], s%d offen offset:%d' % (q4(o), 69 + b, p * 1024))
    for b in range(2):
        a0 = acc(8, b)
        if G1: gelu4(S, a0, XF)
        o = XF + 40 + 2 * b if not OPT.get('mega') else 200 + 2 * b
        S('v_cvt_pk_bf16_f32 v%d, v%d, v%d' % (o, a0, a0 + 1))
        S('v_cvt_pk_bf16_f32 v%d, v%d, v%d' % (o + 1, a0 + 2, a0 + 3))
        if not OPT.get('mega'): S('buffer_store_dwordx2 v[%d:%d], v12, s[32:35], s%d offen' % (o, o + 1, 71 + b))
    V2.S1 = 40; V2.QB_OFF = QB_OFF; V2.VOFF = 72; V2.QOFF = 144
    ost = []
    if not OPT.get('attgap'):
        for x in V2.attention(0):
            if OPT.get('mega') and isinstance(x, list) and any(y.kind == 'vmem' for y in x): ost.append(x)
            else: S.append(x)
    if OPT.get('late'): S('s_barrier')
    if not OPT.get('early'): S.extend(n2b)
    S.extend(ost)
    OPT['n_ost'] = sum(1 for x in ost for y in x if y.kind == 'vmem')
    if stamp:
        stamp_mid(S, 96)
        if not OPT.get('mega'): S('s_waitcnt vmcnt(0)')
        stamp_mid(S, 70)
        stamp_store(S, 84, [86, 88, 90, 92, 94, 96, 70 if not OPT.get('ptrace') else 66], 14, 0, 72, 12, wave_s=50)
    if OPT.get('mega'): S('s_branch K2_CONS')
    else: S('s_endpgm')
    return S

def compute2(stamp):
    S = Stream()
    vXe = 6; vXo = 7
    xloads(S, [0])
    common_setup(S)
    srd(S, 32, 14, 15, Z1P_SZ, Z1P_OFF)
    S('''
    s_mul_i32 s63, s51, %d
    s_add_u32 s63, s63, %d
    v_add_u32 v6, s63, v6
    v_xor_b32 v7, 64, v6
    ''' % (2 * P1, T1_OFF))
    if stamp: stamp_mid(S, 86)
    layernorm(S, [0, 1, 2])
    for q in range(2 * NR1):
        for b in range(2):
            S('ds_read_b128 %s, v%d offset:%d' % (xf(q, b), vXo if q & 1 else vXe, b * P1 + q * 1024), tok_w=['TR'])
    for j in range(NR1, 9): norm4(S, ln(2, j), ST + 4, ST + 6)
    t2_addr(S)
    S('s_mul_i32 s63, s51, %d' % (2 * (P2 - P1)))
    S('s_add_u32 s63, s63, %d' % (T2_OFF - T1_OFF))
    S.need('TR')
    S('s_barrier')
    S('v_add_u32 v6, s63, v6')
    S('v_add_u32 v7, s63, v7')
    S('s_setprio %d' % OPT.get('prio', 2))
    if stamp: stamp_mid(S, 88)
    ntile = [9, 9, 7]
    def acc(c, b): return ACC + (c * 2 + b) * 4
    hA = ACC + 56; hX = ACC + 64; hW = ACC + 68
    vTa = 2; vTb = 3; vq2 = 2; vq4 = 3; vQb = 4; vXH = 9; vqh = 8; vZa = 5; vZb = 6; vTs = 7
    frs = [(n, ks, c) for n in range(27) for ks in range(2) for c in range(ntile[n // 9])]
    def order(n):
        nt = ntile[n // 9]
        if n == 9: return [(ks, c) for c in range(nt) for ks in range(2)]
        if n == 18: return [(ks, c) for c in range(4) for ks in range(2)] + [(ks, c) for ks in range(2) for c in range(4, 7)]
        return [(ks, c) for ks in range(2) for c in range(nt)]
    frs = [(n, ks, c) for n in range(27) for ks, c in order(n)]
    bias = {}
    extra_tok = {1: ['T2'], 9: ['TR2'], 11: ['HB']}
    QIMM = {0: 0, 1: 32, 3: 120, 5: 160 + 48, 6: 192 + 48}
    def zaddr(mode):
        g = Stream()
        g("""v_bfe_u32 v15, v1, 4, 1
        v_lshlrev_b32 v15, 5, v15""")
        if mode == 0:
            g("""s_cmp_eq_u32 s52, 0
            s_cselect_b32 s98, 1, -1
            s_lshl_b32 s99, s52, 5
            v_mul_lo_u32 v15, v15, s98
            v_add3_u32 v%d, v%d, v15, s99
            v_sub_u32 v%d, v%d, v15
            v_add_u32 v%d, s99, v%d""" % (vTa, vT, vTb, vT, vTb, vTb))
        else:
            g("""s_lshl_b32 s99, s52, 6
            v_add3_u32 v%d, v%d, v15, s99
            v_sub_u32 v%d, v%d, v15
            v_add_u32 v%d, 256, v%d
            v_add_u32 v15, 32, v%d
            s_cmp_eq_u32 s52, 0
            s_cselect_b64 vcc, -1, 0
            v_cndmask_b32 v%d, v15, v%d, vcc
            v_add_u32 v%d, s99, v%d""" % (vZa, vT, vZb, vT, vTs, vZa, vZb, vTs, vTs, vZb, vZb))
        return g
    def qaddr():
        g = Stream()
        g("""v_bfe_u32 v15, v1, 4, 1
        v_lshlrev_b32 v15, 5, v15
        s_mul_i32 s98, s49, 72
        s_and_b32 s98, s98, 31
        s_add_u32 s98, s98, {bias}
        v_add3_u32 v{qb}, v{T}, v15, s98
        v_and_b32 v15, 3, v1
        v_cmp_le_u32 vcc, 2, v15
        v_cndmask_b32 v14, 0, 24, vcc
        v_add_u32 v14, 152, v14
        v_add_u32 v{q4}, v{qb}, v14
        v_cmp_le_u32 vcc, 1, v15
        v_cndmask_b32 v14, 0, 24, vcc
        v_add_u32 v14, 64, v14
        v_add_u32 v{q2}, v{qb}, v14
        s_lshl_b32 s73, s51, 5
        s_cmp_eq_u32 s51, 3
        s_cselect_b32 s99, 24, 0
        s_add_u32 s99, s99, s73
        v_add_u32 v{qh}, s99, v{qb}
        s_cmp_eq_u32 s51, 2
        s_cselect_b64 vcc, -1, 0
        v_cndmask_b32 v{qh}, v{qh}, v{q2}, vcc
        v_and_b32 v14, 15, v1
        v_lshrrev_b32 v15, 4, v1
        v_xor_b32 v14, v14, v15
        v_lshl_add_u32 v14, v15, 4, v14
        v_lshlrev_b32 v14, 4, v14
        v_add_u32 v{xh}, {XH}, v14""".format(qb=vQb, T=vT, q4=vq4, q2=vq2, qh=vqh, xh=vXH, XH=XH_OFF, bias=2 * SLOT))
        return g
    def toggle(g, ar, n):
        want = (n & 3) >> 1
        if bias.get(ar, 0) != want:
            g('v_add_u32 v%d, %d, v%d' % (ar, 2 * SLOT if want else -2 * SLOT, ar))
            bias[ar] = want
    def halo_read(q):
        g = Stream()
        n = 18 + q // 2
        g('ds_read_b128 %s, v%d offset:%d' % (q4(hX), vXH, q * 1024), tok_w=['XHR'])
        toggle(g, vqh, n)
        for hh in range(2):
            g('ds_read_b64_tr_b16 v[%d:%d], v%d offset:%d' % (hW + 2 * hh, hW + 2 * hh + 1, vqh, (n & 1) * SLOT + (q & 1) * 10240 + hh * 1280))
        return g
    def read(f):
        n, ks, c = frs[f]
        ph = n // 9
        g = Stream()
        if ks == 0 and c == 0:
            if n > 0:
                if n in extra_tok: g.need(*extra_tok[n])
                if n > 10: g.need('ZCdone')
                g('s_barrier')
            if n == 0: g.extend(zaddr(0))
            if n == 18:
                for r in (vQb, vq2, vq4, vqh): bias[r] = 1
        if ph == 0: ar, coff = (vTb if c & 1 else vTa), 32 * c
        elif ph == 2: ar, coff = (vq2, 0) if c == 2 else ((vq4, 0) if c == 4 else (vQb, QIMM[c]))
        else: ar, coff = ((vZb if c & 1 else vZa), 32 * c) if c < 8 else (vTs, 0)
        toggle(g, ar, n)
        r = WFR + (f % NRING) * 4
        for hh in range(2):
            if OPT.get('halfread') and hh == 1:
                g('s_nop 0'); continue
            g('ds_read_b64_tr_b16 v[%d:%d], v%d offset:%d' % (r + 2 * hh, r + 2 * hh + 1, ar, (n & 1) * SLOT + ks * 10240 + hh * 1280 + coff))
        return g
    D = NRING - 1
    for f in range(D): S.extend(read(f))
    def tmpr(ph, c, b):
        pairs = [12, 14, 2, 36, 38]
        return pairs[(2 * c + b) % len(pairs)]
    def cvt(ph, c, b):
        a = acc(c, b); t = tmpr(ph, c, b)
        return G('v_cvt_pk_bf16_f32 v%d, v%d, v%d\nv_cvt_pk_bf16_f32 v%d, v%d, v%d' % (t, a, a + 1, t + 1, a + 2, a + 3))
    def cvti(a):
        return G('v_cvt_pk_bf16_f32 v%d, v%d, v%d\nv_cvt_pk_bf16_f32 v%d, v%d, v%d' % (a, a, a + 1, a + 1, a + 2, a + 3))
    def dw(ph, c, b, src=None):
        t = tmpr(ph, c, b) if src is None else src
        if OPT.get('nodw'): return []
        if ph == 0:
            return G('ds_write_b64 v10, v[%d:%d] offset:%d' % (t, t + 1, 16 * b * ZP + 32 * c), tok_w=['HB'])
        return G('ds_write_b64 v11, v[%d:%d] offset:%d' % (t, t + 1, (16 + 16 * b) * QP + 32 * c), tok_w=['QB'])
    x2 = Stream()
    for q in range(2 * NR1, 18):
        for b in range(2):
            x2('ds_read_b128 %s, v%d offset:%d' % (xf(q, b), vXo if q & 1 else vXe, b * P2 + (q - 2 * NR1) * 1024), tok_w=['TR2'])
    t2 = t2_writes([0, 1, 2])
    addr = G('''
    v_and_b32 v10, 15, v1
    s_lshl_b32 s98, s51, 5
    v_add_u32 v10, s98, v10
    v_mul_u32_u24 v11, %d, v10
    v_mul_u32_u24 v10, %d, v10
    v_lshrrev_b32 v12, 4, v1
    v_lshlrev_b32 v12, 3, v12
    s_mov_b32 s98, %d
    v_add3_u32 v10, v10, v12, s98
    s_mov_b32 s98, %d
    v_add3_u32 v11, v11, v12, s98
    ''' % (QP, ZP, ZB_OFF, QB_OFF))
    hw = G('s_mul_i32 s98, s51, %d\nv_subrev_u32 v5, s98, v11\nv_add_u32 v38, s69, v5' % (32 * QP))
    NC = OPT.get('nc', 0)
    share = []
    for k in range(NC):
        c = 9 - NC + k
        g = Stream()
        off = 16 * ZP + 32 * c
        g('ds_read_b64 v[12:13], v10 offset:%d' % off)
        for _ in range(OPT.get('rgap', 6)): g.append(None)
        g("""v_and_b32 v15, 0xffff0000, v13
        v_lshlrev_b32 v14, 16, v13
        v_and_b32 v13, 0xffff0000, v12
        v_lshlrev_b32 v12, 16, v12""")
        gelu4(g, 12, 36, c2=0)
        g('v_cvt_pk_bf16_f32 v36, v12, v13')
        g('v_cvt_pk_bf16_f32 v37, v14, v15')
        g('ds_write_b64 v10, v[36:37] offset:%d' % off, tok_w=['ZCdone'] if k == NC - 1 else [])
        share.append(list(g))
    zoff = G("""
    s_lshl_b32 s63, s48, 3
    s_lshl_b32 s98, s51, 1
    s_add_u32 s63, s63, s98
    s_mul_i32 s63, s63, 72
    s_mul_i32 s98, s49, 9
    s_add_u32 s98, s98, s52
    s_lshr_b32 s98, s98, 1
    s_add_u32 s63, s63, s98
    s_lshl_b32 s69, s63, 10
    s_add_u32 s70, s69, 73728
    s_cmp_eq_u32 s52, 0
    s_cselect_b32 s63, 4608, 0
    s_sub_u32 s63, s63, 512
    s_add_u32 s71, s69, s63
    s_add_u32 s72, s70, s63
    v_lshlrev_b32 v10, 4, v1
    v_lshrrev_b32 v0, 5, v1
    v_lshlrev_b32 v0, 8, v0
    v_and_b32 v13, 15, v1
    v_lshl_add_u32 v0, v13, 4, v0
    v_bfe_u32 v13, v1, 4, 1
    v_lshl_add_u32 v0, v13, 3, v0
    """)
    light = [[3, list(addr) + list(zaddr(1)) + G('s_mov_b32 s78, 0x%x\nv_mov_b32 v0, 0x%x' % (fbits(C1), fbits(C2)))], [10, list(qaddr())], [17, zoff]]
    WT = ' sc1' if OPT.get('wt', 1) else ''
    def cv(o, a): return G('v_cvt_pk_bf16_f32 v%d, v%d, v%d\nv_cvt_pk_bf16_f32 v%d, v%d, v%d' % (o, a, a + 1, o + 1, a + 2, a + 3))
    def pairfin(p, dst):
        g = Stream()
        for sw in ('v_permlane32_swap_b32', 'v_permlane16_swap_b32'):
            for b in range(2):
                for d in range(2): g('%s v%d, v%d' % (sw, dst[b] + d, dst[b] + 2 + d))
        for b in range(2): g('buffer_store_dwordx4 %s, v10, s[32:35], s%d offen offset:%d%s' % (q4(dst[b]), 69 + b, p * 1024, WT))
        return list(g)
    def pair(p):
        dst = [acc(2 * p, 0), acc(2 * p, 1)]
        return cv(dst[0], dst[0]) + cv(dst[1], dst[1]) + cv(dst[0] + 2, acc(2 * p + 1, 0)) + cv(dst[1] + 2, acc(2 * p + 1, 1)) + pairfin(p, dst)
    single = []
    for b in range(2): single += cv(acc(8, b), acc(8, b))
    for b in range(2): single += G('buffer_store_dwordx2 v[%d:%d], v0, s[32:35], s%d offen%s' % (acc(8, b), acc(8, b) + 1, 71 + b, WT))
    zw = [(2, x) for x in cv(14, acc(1, 0)) + cv(38, acc(1, 1))] + [(4, x) for x in pair(1)] + [(6, x) for x in single] + [(7, x) for x in pairfin(0, [12, 36])] + [(8, x) for x in pair(2) + pair(3)]
    cur = []
    zc_step = [None]
    fi = 0
    for f, (n, ks, c) in enumerate(frs):
        ph, j = divmod(n, 9)
        q = 2 * j + ks
        r = WFR + (f % NRING) * 4
        first = (j == 0 and ks == 0 and c == 0)
        if first: fi = 0
        if stamp and first and ph > 0 and not OPT.get('trace'): stamp_mid(S, 88 + 2 * ph)
        if first and ph == 1: S.extend(cvt(0, 0, 0))
        if first and ph == 2:
            assert not light and not cur and not share
            S.extend(cv(12, acc(0, 0)) + cv(36, acc(0, 1)))
        if n == 18: assert not zw or zw[0][0] > fi, (fi, zw[0][0])
        rd = read(f + D) if f + D < len(frs) else []
        if f % 2 == 0 and f + 1 < len(frs) and not OPT.get('allwait'):
            r1 = WFR + ((f + 1) % NRING) * 4
            S.need(*['v%d' % k for k in range(r1, r1 + 4)])
        for b in range(2):
            a = acc(c, b)
            S('v_mfma_f32_16x16x32_bf16 %s, %s, %s, %s' % (q4(a), q4(r), xf(q, b), '0' if q == 0 else q4(a)))
            S.extend(rd[:-1] if b == 0 else rd[-1:])
            if n == 9:
                if ks == 0 and b == 0: S.extend(cvt(0, c, 1))
                if ks == 0 and b == 1: S.extend(dw(0, c, 0))
                if ks == 1 and b == 0: S.extend(dw(0, c, 1))
                if ks == 1 and b == 1 and c < 8: S.extend(cvt(0, c + 1, 0))
            if n == 18:
                for _ in range(OPT.get('zrate', 5)):
                    if zw: S.append(zw.pop(0)[1])
                if fi == 6 and b == 1: S.extend(halo_read(0))
            if n == 0 and t2 and b == 1: S.append(t2.pop(0))
            if n in (1, 2) and x2 and b == 1 and (n == 2 or ks == 1 or c > 0): S.append(x2.pop(0))
            gaps_left = sum(2 for ff in range(f, len(frs)) if frs[ff][0] < 17)
            if not cur and share and not (light and n >= light[0][0]) and n >= 10 and gaps_left > len(share[0]):
                cur.extend(share.pop(0))
            if cur:
                x = cur.pop(0)
                if x is not None: S.append(x)
                if not cur and not share: zc_step[0] = n
            elif light and n >= light[0][0] and n != 9:
                x = light[0][1].pop(0); S.append(x)
                while x.kind == 'salu' and light[0][1]:
                    x = light[0][1].pop(0); S.append(x)
                if not light[0][1]: light.pop(0)
        if ph == 2 and c == 4:
            S('v_mfma_f32_16x16x32_bf16 %s, %s, %s, %s' % (q4(hA + 4), q4(r), q4(hX), '0' if q == 0 else q4(hA + 4)))
        if ph == 2 and c == 5:
            S('v_mfma_f32_16x16x32_bf16 %s, %s, %s, %s' % (q4(hA), q4(hW), q4(hX), '0' if q == 0 else q4(hA)))
            if q < 17 and (q & 1) == 0: S.extend(halo_read(q + 1))
        if ph == 2 and c == 6 and q < 17 and (q & 1) == 1: S.extend(halo_read(q + 1))
        fi += 1
    assert not t2 and not x2 and not share and not cur and not zw
    OPT['zc_step'] = zc_step[0]
    if stamp: stamp_mid(S, 94)
    S('s_mul_i32 s98, s51, %d' % (32 * QP))
    S('v_subrev_u32 v5, s98, v11')
    S('v_add_u32 v6, s73, v5')
    for c in range(8):
        for b in range(2): S.extend(cvti(acc(c, b)))
    S('s_barrier')
    for c in range(7):
        for b in range(2): S.extend(dw(1, c, b, acc(c, b)))
    for b in range(2): S('ds_write_b64 v%d, v[%d:%d] offset:%d' % (5 if b else 6, hA + 4 * b, hA + 4 * b + 1, 128 * b), tok_w=['QB'])
    nz = OPT.get('nzc', 0)
    if nz:
        n2a, n2b = norm_z2(range(nz))
        S.extend(n2a)
    S.need('QB')
    S('s_barrier')
    V2.S1 = 40; V2.QB_OFF = QB_OFF; V2.VOFF = 72; V2.QOFF = 144
    S.extend(V2.attention(0))
    if OPT.get('attc'): S.extend(V2.attention(1))
    if nz: S.extend(n2b)
    if stamp:
        stamp_mid(S, 96)
        S('s_waitcnt vmcnt(0)')
        stamp_mid(S, 70)
        stamp_store(S, 84, [86, 88, 90, 92, 94, 96, 70 if not OPT.get('ptrace') else 66], 14, 0, 72, 12, wave_s=50)
    S('s_endpgm')
    return S

HL = 232
def helper(stamp):
    S = Stream()
    S('K1_HELP:')
    if OPT.get('cpf'): S.extend(code_prefetch('k1_kernel', 'k2_kernel', 1, 40, 34, 64, 12, neg=True))
    S("""s_getpc_b64 s[64:65]
    s_add_u32 s64, s64, K1_TAB@rel32@lo+4
    s_addc_u32 s65, s65, K1_TAB@rel32@hi+12
    s_lshl_b32 s66, s51, 12
    v_lshlrev_b32 v32, 4, v1
    v_add_u32 v32, s66, v32
    v_mov_b32 v33, s65
    v_add_co_u32 v32, vcc, s64, v32
    v_addc_co_u32 v33, vcc, 0, v33, vcc
    global_load_dwordx4 v[16:19], v[32:33], off
    global_load_dwordx4 v[20:23], v[32:33], off offset:1024
    global_load_dwordx4 v[24:27], v[32:33], off offset:2048
    global_load_dwordx4 v[64:67], v[32:33], off offset:3072""")
    if OPT.get('qpack'): S.append('HZERO')
    xloads(S, [0])
    common_setup(S)
    srd(S, 20, 6, 7, 576 * 3456)
    srd(S, 24, 8, 9, 576 * 9216)
    S("""
    s_lshl_b32 s68, s51, 10
    s_mul_i32 s64, s49, 288
    s_and_b32 s64, s64, -64
    s_mul_i32 s65, s49, 72
    s_and_b32 s65, s65, -32
    v_mov_b32 v106, 0x7f000000
    """)
    srd(S, 4, 10, 11, 2048 * 4096)
    vHW = 26; vH0 = 28
    QH = Stream()
    QH("""
    s_mov_b32 s78, 0x%x
    v_mov_b32 v%d, 0x%x
    s_lshl_b32 s8, s2, 15
    s_lshl_b32 s9, s51, 11
    s_add_u32 s8, s8, s9
    v_lshlrev_b32 v8, 7, v1
    s_mul_i32 s98, s48, %d
    s_sub_u32 s98, s98, %d
    v_add_u32 v100, s98, v27
    v_bfe_u32 v101, v1, 3, 1
    v_add_u32 v101, s%d, v101
    """ % (fbits(C1), vC2, fbits(C2), 128 * 1152, 16 * 1152, sBLK))
    for t in range(5):
        QH('v_add_u32 v102, %d, v101' % (2 * t))
        QH('v_subrev_u32 v103, 9, v102')
        QH('v_min_u32 v102, v102, v103')
        QH('v_lshl_add_u32 v%d, v102, 7, v100' % (vH0 + t))
    QH('''
    v_and_b32 v103, 15, v1
    v_cmp_gt_u32 vcc, 8, v103
    v_cndmask_b32 v%d, v106, v%d, vcc
    ''' % (vH0 + 4, vH0 + 4))
    for t in range(5):
        QH('buffer_load_dwordx4 %s, v%d, s[16:19], 0 offen' % (q4(HL + 4 * t), vH0 + t))
    QK = Stream()
    if OPT.get('qpack'):
        S("""s_mul_i32 s63, s48, %d
        s_add_u32 s63, s63, s65""" % (36 * 3456))
        for e in range(3): S('buffer_load_dwordx4 %s, v%d, s[20:23], s63 offen' % (q4(120 + 4 * e), 64 + e))
        srd(QK, 20, 14, 15, QK_SZ, QK_OFF)
        QK("""s_mul_i32 s65, s49, %d
        s_mul_i32 s63, s48, %d
        s_add_u32 s63, s63, s65
        s_mul_i32 s66, s51, 2592
        s_add_u32 s63, s63, s66
        v_lshlrev_b32 v69, 4, v1""" % (576 * 288, 36 * 288))
        for e in range(3):
            if e == 2: QK('s_mov_b32 exec_hi, 3')
            QK('buffer_store_dwordx4 %s, v69, s[20:23], s63 offen offset:%d sc1' % (q4(120 + 4 * e), 1024 * e), tok_w=['QKS'])
        QK('s_mov_b32 exec_hi, -1')
        QK.append('HARRIVE')
    if stamp: stamp_mid(S, 86)
    layernorm(S, [3], mid=list(QK) + list(wdma(0)), mid2=wdma(1))
    for j in range(NR1, 9): norm4(S, ln(0, j), ST, ST + 6)
    t2_addr(S)
    S.need('W0')
    S('s_barrier')
    if stamp: stamp_mid(S, 88)
    q1 = list(QH) + list(ln_halo(vHW))
    q2 = list(epi_z2())
    V2.S1 = 136; V2.QB_OFF = QB_OFF; V2.VOFF = 72; V2.QOFF = 144
    q3 = list(V2.attention(1))
    B = OPT.get('budget', 64)
    if OPT.get('e2cut') is not None:
        keepn = OPT['e2cut']
        q2 = q2[:keepn] + [x for x in q2[-1:]]
    if OPT.get('noside'):
        q1 = []; q2 = q2[-1:]; q3 = []
    pub_step = None
    n2a, n2b = norm_z2(range(OPT.get('nzc', 0) if (OPT.get('zzq') or OPT.get('early')) else NZC, 9))
    q4_ = list(n2a) + list(n2b)
    for n in range(27):
        if n > 0:
            toks = ['W%d' % n]
            if n == 1: toks.append('T2')
            if n == 4: toks.append('ZE')
            if n == 1: toks.append('QKS')
            if n == 7 and OPT.get('qpack'): S.append('QCHECK')
            if n == (18 if OPT.get('zzq') else 9): toks.append('XH')
            if (OPT.get('zzq') or OPT.get('early')) and n == OPT.get('pollstep', 25): S.append('POLLCHECK')
            if pub_step is not None and n == pub_step + 2: toks += ['PUB', 'ZB']
            if OPT.get('trace'):
                S('s_memtime s[96:97]\ns_waitcnt lgkmcnt(0)\ns_sub_u32 s96, s96, s84\nv_writelane_b32 v254, s96, %d' % n)
            S.need(*toks)
            if OPT.get('trace'):
                S('s_memtime s[96:97]\ns_waitcnt lgkmcnt(0)\ns_sub_u32 s96, s96, s84\nv_writelane_b32 v254, s96, %d' % (n + 32))
            S('s_barrier')
            if OPT.get('trace'):
                S('s_memtime s[96:97]\ns_waitcnt lgkmcnt(0)\ns_sub_u32 s96, s96, s84\nv_writelane_b32 v255, s96, %d' % n)
            if pub_step is not None and n == pub_step + 2: S.append('ATOMIC')
        if stamp and n in (9, 18): stamp_mid(S, 88 + 2 * (n // 9))
        mem = []
        if n + 2 < 27 and not OPT.get('nodma'):
            w = list(wdma(n + 2))
            mem = [w[:-8]] + [w[-8 + 2 * k:len(w) - 6 + 2 * k] for k in range(4)]
            assert sum(len(x) for x in mem) == len(w)
            if OPT.get('dg') == 3: mem = [mem[0] + mem[1], mem[2] + mem[3], mem[4]]
            if OPT.get('dg') == 2: mem = [mem[0] + mem[1] + mem[2], mem[3] + mem[4]]
        if n in (2, 4, 6, 9) and not OPT.get('nopf') and not OPT.get('pfc'):
            mem.append(G('''s_mov_b32 m0, %d
            s_mov_b64 exec, 0xffff
            buffer_load_dword v8, s[4:7], s8 offen lds
            s_mov_b64 exec, -1
            s_add_u32 s8, s8, 8192''' % SB_OFF))
        if OPT.get('pf3') and n in (12, 15) and not OPT.get('pfc'):
            mem.append(G('''s_load_dwordx2 s[4:5], s[0:1], %d
            s_mov_b32 s6, %d
            s_mul_i32 s8, s2, %d
            s_mul_i32 s12, s51, %d
            s_add_u32 s8, s8, s12
            s_mov_b32 m0, %d
            s_waitcnt lgkmcnt(0)
            s_mov_b64 exec, 0x%x
            buffer_load_dword v8, s[4:7], s8 offen lds
            s_mov_b64 exec, -1''' % ((56, 2304 * 1152, 10368, 2688, SB_OFF, 0x1fffff) if n == 12 else (16, 576 * 1152, 2688, 768, SB_OFF, 0x3f))))
        for tn, n0 in OPT.get('hspread', {}).items():
            if n0 <= n < n0 + 5:
                w = [x for x in wdma(tn)]
                g = [I(x.text.replace('s63', 's13')) for x in w[:-10]] + G('s_mov_b32 m0, %d' % SB_OFF)
                g += G([x for x in w[-10:] if x.kind == 'dma'][n - n0].text.replace('dwordx4', 'dword').replace('s63', 's13'))
                mem.append(g)
        for tn in OPT.get('htouch', {}).get(n, []):
            w = [x for x in wdma(tn)]
            g = [x for x in w[:-10]] + G('s_mov_b32 m0, %d' % SB_OFF)
            for x in w[-10:]:
                if x.kind == 'dma': g += G(x.text.replace('dwordx4', 'dword'))
            mem.append(g)
        work = []
        if n == 0: work += list(t2_writes([3]))
        if n == 18 and not OPT.get('flags', 1): work += G('s_lshl_b32 s9, s48, 4\nv_mov_b32 v6, 0')
        if OPT.get('qpack'):
            for tk in {1: ['ENTRY1', 'QFLAG'], 2: ['GATE1'], 4: ['GATE2'], 5: ['QISSUE']}.get(n, []): work.append(tk)
        elif OPT.get('flags', 1) and n in (1, 4, 13, 16): work.append({1: 'ENTRY1', 4: 'ENTRY2', 13: 'GATE1', 16: 'GATE2'}[n])
        if n == (OPT.get('pollstep', 25) - 1 if (OPT.get('zzq') or OPT.get('early')) else 26): work.append('POLLISSUE')
        if n == 17 and OPT.get('pf3') and not OPT.get('mega'): work.append('ZERO')
        if n == 19 and OPT.get('mega'): work += G('v_mov_b32 v40, 159744\nv_mov_b32 v42, 0\nv_mov_b32 v43, 0\nv_mov_b32 v44, 0\nv_mov_b32 v45, 0') + G('ds_write_b128 v40, v[42:45]', tok_w=['ZB']) + G('ds_write_b128 v40, v[42:45] offset:16', tok_w=['ZB'])
        if OPT.get('cpf') == 1 and n == 22: work.append(code_prefetch('K2_TEXT' if OPT.get('mega') else 'k2_kernel', 'TEXT_END', 1, 32, 35, 10, 12))
        def drain(q, budget):
            while q and budget > 0:
                if isinstance(q[0], tuple) and q[0][0] == 'WAITSTEP':
                    if n < q[0][1]: break
                    q.pop(0); continue
                x = q.pop(0); budget -= wt(x); work.append(x)
            return budget
        budget = B
        if 0 <= n <= 10 and q1: drain(q1, OPT.get('b1', 34) if n < (10 if OPT.get('zzq') else 8) else 1e9)
        if n >= (11 if OPT.get('zzq') or OPT.get('m32') else 10) and q2:
            budget = drain(q2, budget)
            if not q2: pub_step = max(n, 17)
        elif OPT.get('early') and n >= OPT['pollstep']:
            drain(q4_, len(n2a) if n == OPT['pollstep'] else OPT.get('nbudget', 60))
            if n == OPT['pollstep']: drain(q3, OPT.get('abudget', 36))
        elif n >= (20 if OPT.get('m32') else 19) and not OPT.get('zzq'): drain(q3, OPT.get('abudget', 36))
        elif OPT.get('zzq') and n >= OPT.get('pollstep', 25): drain(q4_, OPT.get('nbudget', 50) if n > OPT.get('pollstep', 25) else len(n2a))
        tot = sum(wt(x) for x in work); acc_ = 0.0; k = 0
        for x in work:
            while k < len(mem) and acc_ >= tot * k / (len(mem) + OPT.get('dmaslack', 1)):
                S.extend(mem[k]); k += 1
            S.append(x); acc_ += wt(x)
        while k < len(mem):
            S.extend(mem[k]); k += 1
    late = pub_step is None or pub_step + 2 > 26
    assert late == bool(OPT.get('late')), (pub_step, 'set late option accordingly')
    if late:
        S.extend(q2)
        S.need('ZB')
        h = len(q3) // 2
        S.extend(q3[:h]); q3 = q3[h:]
        S.need('PUB')
        S('s_barrier')
        S.append('ATOMIC')
    if stamp: stamp_mid(S, 94)
    if OPT.get('zzq'):
        assert pub_step + 2 < OPT.get('pollstep', 25)
        if OPT.get('pollstep') == 27: S.append('POLLCHECK')
        S('s_barrier')
        k = min(len(q4_), OPT.get('n2mid', 60))
        S.extend(q4_[:k]); q4_ = q4_[k:]
        S('s_barrier')
        S.extend(q4_)
        if not OPT.get('attc'): S.extend(q3)
    elif OPT.get('early'):
        assert pub_step + 2 < OPT['pollstep']
        if OPT.get('mega'):
            S('s_barrier')
            OPT['mega'].prod_early(S)
        S.extend(q4_); S.extend(q3)
    else:
        S.append('POLLCHECK')
        S('s_barrier')
        S.extend(n2a)
        if OPT.get('mega'): OPT['mega'].prod_early(S)
        S.extend(q3)
        S.extend(n2b)
    if stamp:
        stamp_mid(S, 96)
        if not OPT.get('mega'): S('s_waitcnt vmcnt(0)')
        stamp_mid(S, 70)
        stamp_store(S, 84, [86, 88, 90, 92, 94, 96, 70 if not OPT.get('ptrace') else 66], 14, 0, 72, 12, wave_s=50)
    if OPT.get('trace'):
        S('''s_lshl_b32 s75, s2, 11
        s_lshl_b32 s74, s51, 9
        s_add_u32 s75, s75, s74
        s_add_u32 s75, s75, 0x80000
        v_lshlrev_b32 v12, 2, v1
        buffer_store_dword v254, v12, s[76:79], s75 offen
        buffer_store_dword v255, v12, s[76:79], s75 offen offset:256''')
    if OPT.get('mega'): OPT['mega'].producer(S)
    S('K1_END:')
    S('s_endpgm')
    print('k1 helper: zc', OPT.get('zc_step'), 'pub_step', pub_step, 'att left', sum(wt(x) for x in q3))
    return S

def poll_issue(vr, va):
    return G('s_lshl_b32 s9, s48, 4\nv_mov_b32 v%d, 0' % va) + G('buffer_load_dword v%d, v%d, s[44:47], s9 offen sc1' % (vr, va))
def poll(S, tag, vr=7, va=6):
    S('v_readfirstlane_b32 s11, v%d' % vr)
    S('s_mov_b32 s10, 0')
    S('s_cmp_ge_u32 s11, 16')
    S('s_cbranch_scc1 K1_NOPOLL%s' % tag)
    S("""
    K1_POLL%s:
    s_sleep SLP
    buffer_load_dword v7, v6, s[44:47], s9 offen sc1
    s_waitcnt vmcnt(0)
    v_readfirstlane_b32 s11, v7
    s_add_u32 s10, s10, 1
    s_cmp_ge_u32 s11, 16
    s_cbranch_scc1 K1_NOPOLL%s
    s_cmp_lt_u32 s10, 0x20000
    s_cbranch_scc1 K1_POLL%s
    K1_NOPOLL%s:
    """.replace('SLP', str(OPT.get('slp', 4))).replace('v7', 'v%d' % vr).replace('v6', 'v%d' % va) % (tag, tag, tag, tag))
    S.append(('KEEPQ', 1))

def ln_halo(vHW):
    A = Stream()
    h0 = ST + 4; t = ST + 6
    for k in range(20):
        r = HL + k; tt = t + 2 * (k & 1)
        A('v_lshlrev_b32 v%d, 16, v%d' % (tt, r))
        A('v_and_b32 v%d, 0xffff0000, v%d' % (tt + 1, r))
        if k == 0:
            A('v_add_f32 v%d, v%d, v%d' % (h0, tt, tt + 1))
            A('v_mul_f32 v%d, v%d, v%d' % (h0 + 1, tt, tt))
        else:
            A('v_add_f32 v%d, v%d, v%d' % (h0, h0, tt))
            A('v_fmac_f32 v%d, v%d, v%d' % (h0 + 1, tt, tt))
            A('v_add_f32 v%d, v%d, v%d' % (h0, h0, tt + 1))
        A('v_fmac_f32 v%d, v%d, v%d' % (h0 + 1, tt + 1, tt + 1))
    for m in ('quad_perm:[1,0,3,2]', 'quad_perm:[2,3,0,1]', 'row_half_mirror', 'row_mirror'):
        for r in (h0, h0 + 1):
            A('v_add_f32_dpp v%d, v%d, v%d %s row_mask:0xf bank_mask:0xf' % (r, r, r, m))
    rowstats(A, h0, ST + 6, 's83')
    for t in range(5):
        norm4(A, HL + 4 * t, h0, ST + 6)
        g = Stream()
        if t == 4:
            g('s_mov_b32 exec_lo, 0x00ff00ff')
            g('s_mov_b32 exec_hi, 0x00ff00ff')
        g('ds_write_b128 v%d, %s offset:%d' % (vHW, q4(HL + 4 * t), t * 4096), tok_w=['XH'])
        if t == 4: g('s_mov_b64 exec, -1')
        A.append(list(g))
    return A

def epi_z2():
    E = Stream()
    PK = 60
    def pk(c, b): return PK + b * 20 + 2 * c
    E.append(G("""
    v_and_b32 v10, 15, v1
    v_lshlrev_b32 v11, 3, v10
    s_lshl_b32 s98, s51, 5
    v_add_u32 v10, s98, v10
    v_mul_u32_u24 v10, %d, v10
    v_lshrrev_b32 v12, 4, v1
    v_lshlrev_b32 v12, 3, v12
    s_mov_b32 s98, %d
    v_add3_u32 v10, v10, v12, s98
    """ % (ZP, ZB_OFF)) + (G("""s_cmp_eq_u32 s52, 0
    s_cselect_b32 s98, 256, 0
    v_add_u32 v13, s98, v10
    s_lshl_b32 s98, s52, 5
    v_add_u32 v10, s98, v10""") if OPT.get('nc32') else []))
    def AD(c, b):
        if OPT.get('nc32') and c == 8: return 'v13', 16 * b * ZP
        return 'v10', 16 * b * ZP + 32 * c
    NC = OPT.get('nc', 0)
    order = [(c, b) for b in range(2) for c in range(9)]
    theirs = order[18 - NC:]; order = order[:18 - NC]
    if OPT.get('nc32'):
        NC = OPT['nc32']
        nt = NC // 2
        theirs = [(c, b) for c, b in order if c < nt]; order = [(c, b) for c, b in order if c >= nt]
    for c, b in order:
        E('ds_read_b64 v[%d:%d], %s offset:%d' % ((pk(c, b), pk(c, b) + 1) + AD(c, b)))
    for b in range(2):
        E('v_mov_b32 v%d, 0' % (pk(9, b)))
        E('v_mov_b32 v%d, 0' % (pk(9, b) + 1))
    for k in range(4): E('v_mov_b32 v%d, s82' % (132 + k))
    pend = None
    if OPT.get('ilp8'):
        E0 = E
    subs = []
    for k, (c, b) in enumerate(order):
        if OPT.get('ilp8'):
            E = Stream(); subs.append(E)
        x = 100 + 8 * (k & 1); p = pk(c, b)
        E('v_lshlrev_b32 v%d, 16, v%d' % (x, p))
        E('v_and_b32 v%d, 0xffff0000, v%d' % (x + 1, p))
        E('v_lshlrev_b32 v%d, 16, v%d' % (x + 2, p + 1))
        E('v_and_b32 v%d, 0xffff0000, v%d' % (x + 3, p + 1))
        gelu4(E, x, x + 4)
        E('v_cvt_pk_bf16_f32 v%d, v%d, v%d' % (p, x, x + 1))
        E('v_cvt_pk_bf16_f32 v%d, v%d, v%d' % (p + 1, x + 2, x + 3))
        E('ds_write_b64 %s, v[%d:%d] offset:%d' % (AD(c, b)[0], p, p + 1, AD(c, b)[1]), tok_w=['ZB'])
    if OPT.get('ilp8'):
        E = E0
        for k in range(0, len(subs), 2):
            a, b = subs[k], subs[k + 1] if k + 1 < len(subs) else []
            for i in range(0, len(a), 4):
                E.extend(a[i:i + 4]); E.extend(b[i:i + 4])
    D1 = [116, 120]; D2 = [124, 128]
    if NC:
        E.append(('WAITSTEP', OPT['zc_step'] + 2))
        for c, b in theirs:
            E('ds_read_b64 v[%d:%d], %s offset:%d' % ((pk(c, b), pk(c, b) + 1) + AD(c, b)))
    for c in range(0, 9, 2):
        for b in range(2):
            p = q4(pk(c, b))
            E('v_mfma_f32_16x16x32_bf16 %s, v[132:135], %s, %s' % (q4(D1[b]), p, '0' if c == 0 else q4(D1[b])))
            E('v_mfma_f32_16x16x32_bf16 %s, %s, %s, %s' % (q4(D2[b]), p, p, '0' if c == 0 else q4(D2[b])))
    g = G(setm('vcc', m64(lambda i, g: i & 1)))
    for b in range(2):
        g += G('v_cndmask_b32 v%d, v%d, v%d, vcc' % (D2[b], D2[b], D2[b] + 1))
        g += G('v_cndmask_b32 v%d, v%d, v%d, vcc' % (D2[b] + 2, D2[b] + 2, D2[b] + 3))
    g += G(setm('vcc', m64(lambda i, g: i & 2)))
    for b in range(2):
        g += G('v_cndmask_b32 v%d, v%d, v%d, vcc' % (D1[b] + 1, D2[b], D2[b] + 2))
    g += G("""
    s_lshl_b32 s99, s48, 4
    s_add_u32 s99, s99, s49
    s_lshl_b32 s99, s99, 10
    s_lshl_b32 s98, s51, 8
    s_add_u32 s99, s99, s98
    """) + G(setm('exec', m64(lambda i, g: g == i >> 2)))
    for b in range(2):
        g += G('buffer_store_dwordx2 v[%d:%d], v11, s[40:43], s99 offen offset:%d sc1' % (D1[b], D1[b] + 1, 128 * b), tok_w=['PUB'])
    g += G('s_mov_b64 exec, -1')
    E.append(g)
    return E

NZC = 4
def norm_z2(tiles, regs=(176, 208, 244, 248)):
    S = Stream()
    pl, zf, tb, a0 = regs
    S("""
    v_lshrrev_b32 v%d, 4, v1
    v_lshlrev_b32 v%d, 12, v%d
    v_and_b32 v%d, 15, v1
    v_lshl_add_u32 v%d, v%d, 4, v%d
    s_lshl_b32 s9, s48, 14
    s_lshl_b32 s10, s51, 8
    s_add_u32 s9, s9, s10
    """ % (a0, a0, a0, a0 + 1, a0, a0 + 1, a0))
    for k in range(4):
        S('buffer_load_dwordx4 %s, v%d, s[40:43], s9 offen offset:%d sc1' % (q4(pl + 4 * k), a0, k * 1024))
    S("""
    v_lshrrev_b32 v{z}, 4, v1
    v_lshlrev_b32 v{r}, 6, v{z}
    v_lshlrev_b32 v{z}, 3, v{z}
    v_bfe_u32 v{t}, v1, 2, 2
    v_add_u32 v{z}, v{z}, v{t}
    s_lshl_b32 s9, s51, 5
    v_add_u32 v{z}, s9, v{z}
    v_mul_u32_u24 v{z}, {ZP}, v{z}
    v_and_b32 v{t}, 3, v1
    v_lshl_add_u32 v{z}, v{t}, 3, v{z}
    v_add_u32 v{z}, {ZB}, v{z}
    """.format(z=a0 + 2, r=a0 + 3, t=tb, ZP=ZP, ZB=ZB_OFF))
    S.need('ZB')
    for c in tiles:
        for hh in range(2):
            S('ds_read_b64_tr_b16 v[%d:%d], v%d offset:%d' % (zf + 4 * c + 2 * hh, zf + 4 * c + 2 * hh + 1, a0 + 2, hh * 4 * ZP + 32 * c))
    S("""
    s_lshl_b32 s9, s50, 8
    s_add_u32 s9, s9, {SB}
    v_lshlrev_b32 v{w}, 4, v{w}
    v_add_u32 v{w}, s9, v{w}
    v_add_u32 v{r}, s9, v{r}
    v_lshlrev_b32 v{p}, 4, v1
    v_xor_b32 v{p1}, 64, v{p}
    s_lshl_b32 s12, s49, 6
    s_lshl_b32 s13, s48, 2
    s_add_u32 s12, s12, s13
    s_add_u32 s12, s12, s51
    s_mul_i32 s12, s12, 9216
    s_add_u32 s13, s12, 4096
    s_add_u32 s10, s12, 8192
    s_mov_b32 s11, 0x{inv:x}
    """.format(SB=SB_OFF, w=a0 + 1, r=a0 + 3, p=a0 + 4, p1=a0 + 5, inv=fbits(1.0 / 2304)))
    A = S
    S = Stream()
    for k in range(2):
        for e in range(4): S('v_add_f32 v%d, v%d, v%d' % (pl + 4 * k + e, pl + 4 * k + e, pl + 8 + 4 * k + e))
    for e in range(4): S('v_add_f32 v%d, v%d, v%d' % (pl + e, pl + e, pl + 4 + e))
    for sw in ('v_permlane16_swap_b32', 'v_permlane32_swap_b32'):
        for k in range(4): S('v_mov_b32 v%d, v%d' % (pl + 4 + k, pl + k))
        for k in range(4): S('%s v%d, v%d' % (sw, pl + k, pl + 4 + k))
        for k in range(4): S('v_add_f32 v%d, v%d, v%d' % (pl + k, pl + k, pl + 4 + k))
    for r in (pl, pl + 2): rowstats(S, r, tb, 's11')
    S('ds_write_b128 v%d, %s' % (a0 + 1, q4(pl)), tok_w=['SB'])
    S.need('SB')
    sr = pl + 16
    for k in range(4): S('ds_read_b128 %s, v%d offset:%d' % (q4(sr + 4 * k), a0 + 3, 16 * k))
    for c in tiles:
        for d in range(4):
            r = zf + 4 * c + d
            t = tb + 2 * (d & 1)
            S('v_lshlrev_b32 v%d, 16, v%d' % (t, r))
            S('v_and_b32 v%d, 0xffff0000, v%d' % (t + 1, r))
            S('v_fma_f32 v%d, v%d, v%d, v%d' % (t, t, sr + 4 * d, sr + 4 * d + 1))
            S('v_fma_f32 v%d, v%d, v%d, v%d' % (t + 1, t + 1, sr + 4 * d + 2, sr + 4 * d + 3))
            S('v_cvt_pk_bf16_f32 v%d, v%d, v%d' % (r, t, t + 1))
        S('buffer_store_dwordx4 %s, v%d, s[36:39], s%d offen offset:%d' % (q4(zf + 4 * c), a0 + 5 if c & 1 else a0 + 4, (12, 13, 10)[c >> 2], (c & 3) * 1024) + (' sc1' if OPT.get('wt2') or OPT.get('mega') else ''))
        if OPT.get('dual'): S('buffer_store_dwordx4 %s, v%d, s[36:39], s%d offen offset:%d' % (q4(zf + 4 * c), a0 + 5 if c & 1 else a0 + 4, (12, 13, 10)[c >> 2], (c & 3) * 1024))
    return A, S
```

```python
from common import *
import k1 as K
import k1_v2 as V2
from k1 import *
from k1 import OPT

def compute32(stamp):
    stamp_mid = K.stamp_mid
    S = Stream()
    A0 = 32; WR = 16; NR = 4; D = NR - 1
    def xq(kk): r = XF + 4 * kk; return q4(r)
    def acc(c): return A0 + 16 * c
    def a16(c): return 'v[%d:%d]' % (acc(c), acc(c) + 15)
    xloads(S, [0])
    common_setup(S)
    if OPT.get('pfc'): pf_setup(S)
    S('''
    v_and_b32 v100, 15, v1
    v_lshrrev_b32 v101, 5, v1
    v_bfe_u32 v102, v1, 4, 1
    s_mul_i32 s63, s51, %d
    s_add_u32 s63, s63, %d
    v_mul_u32_u24 v102, %d, v102
    v_add_u32 v102, s63, v102
    v_xor_b32 v103, v100, v101
    v_lshl_add_u32 v103, v101, 4, v103
    v_lshl_add_u32 v6, v103, 4, v102
    v_xor_b32 v7, 64, v6
    v_xor_b32 v8, 32, v6
    v_add_u32 v8, 512, v8
    v_xor_b32 v9, 64, v8
    ''' % (2 * P1, T1_OFF, P1))
    def xaddr(kk): return 6 + 2 * (kk & 1) + ((kk >> 1) & 1)
    if stamp: stamp_mid(S, 86)
    layernorm(S, [0, 1, 2])
    for kk in range(4 * NR1):
        S('ds_read_b128 %s, v%d offset:%d' % (xq(kk), xaddr(kk), (kk >> 1) * 1024), tok_w=['TR'])
    for j in range(NR1, 9): norm4(S, ln(2, j), ST + 4, ST + 6)
    t2_addr(S)
    S('''
    v_lshrrev_b32 v100, 5, v1
    v_lshlrev_b32 v100, 3, v100
    v_bfe_u32 v101, v1, 2, 2
    v_add_u32 v100, v100, v101
    v_mul_u32_u24 v100, 320, v100
    v_bfe_u32 v101, v1, 4, 1
    v_lshl_add_u32 v100, v101, 5, v100
    v_and_b32 v101, 3, v1
    v_lshl_add_u32 v0, v101, 3, v100
    s_lshl_b32 s98, s52, 6
    v_add_u32 v2, s98, v0
    s_cmp_eq_u32 s52, 0
    s_cselect_b32 s98, 224, 0
    s_add_u32 s98, s98, 32
    v_add_u32 v3, s98, v0
    v_bfe_u32 v100, v1, 4, 1
    v_mul_u32_u24 v100, %d, v100
    s_mul_i32 s63, s51, %d
    s_add_u32 s63, s63, %d
    v_sub_u32 v100, s63, v100
    ''' % (P1 - P2, 2 * (P2 - P1), T2_OFF - T1_OFF))
    S.need('TR')
    S('s_barrier')
    for r in (6, 7, 8, 9): S('v_add_u32 v%d, v100, v%d' % (r, r))
    S('s_setprio %d' % OPT.get('prio', 2))
    if stamp: stamp_mid(S, 88)
    ntile = [5, 4, 5]
    hA = A0 + 64; hX = A0 + 72; hW = A0 + 76
    vQb = 5; vq1 = 6; vq2 = 7; vqh = 8; vq4 = 9; vXH = 4
    def order(n):
        nt = ntile[n // 9]
        if n in (9, 18): return [(kk, c) for c in range(nt) for kk in range(4)]
        return [(kk, c) for kk in range(4) for c in range(nt)]
    frs = [(n, kk, c) for n in range(27) for kk, c in order(n)]
    bias = {}
    extra_tok = {1: ['T2'], 9: ['TR2'], 11: ['HB'], 18: ['XHR'], 20: ['QB']}
    def toggle(g, ar, n):
        want = (n & 3) >> 1
        if bias.get(ar, 0) != want:
            g('v_add_u32 v%d, %d, v%d' % (ar, 2 * SLOT if want else -2 * SLOT, ar))
            bias[ar] = want
    def read(f):
        n, kk, c = frs[f]
        ph = n // 9
        g = Stream()
        if kk == 0 and c == 0 and n > 0:
            if n in extra_tok: g.need(*extra_tok[n])
            if n > 10: g.need('ZCdone')
            if n == 18: assert not sh and not light
            g('s_barrier')
        if ph != 1: ar, coff = (2, 64 * c) if c < 4 else (3, 0)
        else: ar, coff = ((vQb, 0), (vq1, 0), (vq2, 0), (vQb, 192 + 48))[c]
        toggle(g, ar, n)
        r = WR + (f % NR) * 4
        for h2 in range(2):
            g('ds_read_b64_tr_b16 v[%d:%d], v%d offset:%d' % (r + 2 * h2, r + 2 * h2 + 1, ar, (n & 1) * SLOT + kk * 5120 + h2 * 1280 + coff))
        return g
    def qaddr():
        return G("""v_lshrrev_b32 v15, 5, v1
        v_lshlrev_b32 v15, 5, v15
        s_mul_i32 s98, s49, 72
        s_and_b32 s98, s98, 31
        v_add3_u32 v{qb}, v0, v15, s98
        v_and_b32 v15, 19, v1
        v_cmp_ne_u32 vcc, 0, v15
        v_cndmask_b32 v14, 0, 24, vcc
        v_add_u32 v14, 64, v14
        v_add_u32 v{q1}, v{qb}, v14
        v_and_b32 v15, 18, v1
        v_cmp_ne_u32 vcc, 0, v15
        v_cndmask_b32 v14, 0, 24, vcc
        v_add_u32 v14, 152, v14
        v_add_u32 v{q2}, v{qb}, v14
        v_bfe_u32 v15, v1, 4, 1
        v_lshlrev_b32 v15, 5, v15
        v_add3_u32 v4, v4, v15, s98
        v_and_b32 v15, 3, v1
        v_cmp_le_u32 vcc, 2, v15
        v_cndmask_b32 v14, 0, 24, vcc
        v_add_u32 v14, 152, v14
        v_add_u32 v{q4}, v4, v14
        v_cmp_le_u32 vcc, 1, v15
        v_cndmask_b32 v14, 0, 24, vcc
        s_cmp_eq_u32 s51, 2
        s_cselect_b32 s98, 1, 0
        v_mul_lo_u32 v14, v14, s98
        s_lshl_b32 s69, s51, 5
        s_cmp_eq_u32 s51, 3
        s_cselect_b32 s99, 24, 0
        s_add_u32 s99, s99, s69
        v_add3_u32 v{qh}, v4, v14, s99
        v_and_b32 v14, 15, v1
        v_lshrrev_b32 v15, 4, v1
        v_xor_b32 v14, v14, v15
        v_lshl_add_u32 v14, v15, 4, v14
        v_lshlrev_b32 v14, 4, v14
        v_add_u32 v{xh}, {XH}, v14""".format(qb=vQb, q1=vq1, q2=vq2, q4=vq4, qh=vqh, xh=vXH, XH=XH_OFF))
    addr = G('''
    v_and_b32 v14, 31, v1
    s_lshl_b32 s98, s51, 5
    v_add_u32 v14, s98, v14
    v_lshrrev_b32 v15, 5, v1
    v_lshlrev_b32 v15, 3, v15
    v_mul_u32_u24 v11, %d, v14
    s_mov_b32 s98, %d
    v_add3_u32 v11, v11, v15, s98
    v_mul_u32_u24 v12, %d, v14
    s_mov_b32 s98, %d
    v_add3_u32 v12, v12, v15, s98
    s_lshl_b32 s98, s52, 5
    v_add_u32 v10, s98, v12
    s_cmp_eq_u32 s52, 0
    s_cselect_b32 s98, 256, 0
    v_add_u32 v12, s98, v12
    v_and_b32 v14, 15, v1
    v_mul_u32_u24 v13, %d, v14
    v_lshrrev_b32 v15, 4, v1
    v_lshlrev_b32 v15, 3, v15
    s_mov_b32 s98, %d
    v_add3_u32 v13, v13, v15, s98
    ''' % (QP, QB_OFF + 16 * QP, ZP, ZB_OFF, QP, QB_OFF))
    def cvti(a): return G('v_cvt_pk_bf16_f32 v%d, v%d, v%d\nv_cvt_pk_bf16_f32 v%d, v%d, v%d' % (a, a, a + 1, a + 1, a + 2, a + 3))
    def handoff(ph, c):
        nk = 4
        if (ph == 0 and c == 4) or (ph == 1 and c == 3): nk = 2
        g = []
        for k in range(nk): g += cvti(acc(c) + 4 * k)
        for k in range(nk):
            a = acc(c) + 4 * k
            if ph == 0: g += G('ds_write_b64 v%d, v[%d:%d] offset:%d' % (10 if c < 4 else 12, a, a + 1, (64 * c if c < 4 else 0) + 16 * k), tok_w=['HB'])
            else: g += G('ds_write_b64 v11, v[%d:%d] offset:%d' % (a, a + 1, 64 * c + 16 * k), tok_w=['QB'])
        return g
    def halo_out():
        return cvti(hA) + cvti(hA + 4) + G('v_add_u32 v12, s69, v13') + G('ds_write_b64 v12, v[%d:%d]' % (hA, hA + 1), tok_w=['QB']) + G('ds_write_b64 v13, v[%d:%d] offset:128' % (hA + 4, hA + 5), tok_w=['QB'])
    def hread(q, which, withx):
        g = Stream()
        n = 9 + q // 2
        if withx: g('ds_read_b128 %s, v%d offset:%d' % (q4(hX), vXH, q * 1024), tok_w=['XHR'])
        ar = vqh if which == 0 else vq4
        toggle(g, ar, n)
        for hh in range(2):
            g('ds_read_b64_tr_b16 v[%d:%d], v%d offset:%d' % (hW + 2 * hh, hW + 2 * hh + 1, ar, (n & 1) * SLOT + (q & 1) * 10240 + hh * 1280))
        return g
    def hm(q, which):
        a = hA + 4 * which
        return G('v_mfma_f32_16x16x32_bf16 %s, %s, %s, %s' % (q4(a), q4(hW), q4(hX), '0' if q == 0 else q4(a)))
    x2 = Stream()
    for kk in range(4 * NR1, 36):
        x2('ds_read_b128 %s, v%d offset:%d' % (xq(kk), xaddr(kk), ((kk >> 1) - 2 * NR1) * 1024), tok_w=['TR2'])
    t2 = t2_writes([0, 1, 2])
    light = [[3, list(addr) + qaddr()]]
    att = []
    if OPT.get('attgap'):
        V2.S1 = XF
        att = pace(V2.attention(0), dl=OPT.get('adl', 12), dm=8)
    RATE = OPT.get('rate', 3)
    NC = OPT.get('nc32', 0)
    sh = []
    T = (2, 3, 0, 11)
    quads = [(c, k) for c in range(2) for k in range(4)][:NC]
    def goff_(q): return 64 * q[0] + 16 * q[1]
    for n_, q in enumerate(quads):
        g = Stream()
        if n_ == 0:
            g('s_mov_b32 s78, 0x%x' % fbits(C1))
            g('s_mov_b32 s77, 0x%x' % fbits((-C2) ** 0.5))
            g('ds_read_b64 v[2:3], v10 offset:%d' % goff_(q))
        g("""v_lshlrev_b32 v12, 16, v2
        v_and_b32 v13, 0xffff0000, v2
        v_lshlrev_b32 v14, 16, v3
        v_and_b32 v15, 0xffff0000, v3""")
        for k in range(4): g('v_mul_f32 v%d, s77, v%d' % (T[k], 12 + k))
        for k in range(4): g('v_fma_f32 v%d, -v%d, v%d, s78' % (T[k], T[k], T[k]))
        for k in range(4): g('v_mul_f32 v%d, v%d, v%d' % (T[k], T[k], 12 + k))
        for k in range(4): g('v_exp_f32 v%d, v%d' % (T[k], T[k]))
        for k in range(4): g('v_add_f32 v%d, 1.0, v%d' % (T[k], T[k]))
        for k in range(4): g('v_rcp_f32 v%d, v%d' % (T[k], T[k]))
        for k in range(2): g('v_mul_f32 v%d, v%d, v%d' % (12 + k, 12 + k, T[k]))
        if n_ + 1 < len(quads): g('ds_read_b64 v[2:3], v10 offset:%d' % goff_(quads[n_ + 1]))
        for k in range(2, 4): g('v_mul_f32 v%d, v%d, v%d' % (12 + k, 12 + k, T[k]))
        g('v_cvt_pk_bf16_f32 v12, v12, v13')
        g('v_cvt_pk_bf16_f32 v13, v14, v15')
        g('ds_write_b64 v10, v[12:13] offset:%d' % goff_(q), tok_w=['ZCdone'] if n_ == len(quads) - 1 else [])
        sh += list(g)
    sh = pace(sh, dl=OPT.get('sdl', 9)) if NC else []
    print('share slots', len(sh), sum(1 for x in sh if x is None))
    re_addr = G("""
    v_lshrrev_b32 v14, 5, v1
    v_lshlrev_b32 v15, 3, v14
    v_bfe_u32 v12, v1, 2, 2
    v_add_u32 v12, v15, v12
    v_mul_u32_u24 v12, 320, v12
    v_bfe_u32 v14, v1, 4, 1
    v_lshl_add_u32 v12, v14, 5, v12
    v_and_b32 v14, 3, v1
    v_lshl_add_u32 v12, v14, 3, v12
    s_lshl_b32 s98, s52, 6
    s_add_u32 s98, s98, %d
    v_add_u32 v2, s98, v12
    s_cmp_eq_u32 s52, 0
    s_cselect_b32 s98, 224, 0
    s_add_u32 s98, s98, %d
    v_add_u32 v3, s98, v12
    v_and_b32 v14, 31, v1
    s_lshl_b32 s98, s51, 5
    v_add_u32 v14, s98, v14
    v_mul_u32_u24 v11, %d, v14
    s_mov_b32 s98, %d
    v_add3_u32 v11, v11, v15, s98
    """ % (2 * SLOT, 2 * SLOT + 32, QP, QB_OFF + 16 * QP))
    zc = [None]
    for f in range(D): S.extend(read(f))
    pend = []
    for f, (n, kk, c) in enumerate(frs):
        ph, j = divmod(n, 9)
        K4 = 4 * j + kk
        fi = sum(1 for x in frs[:f] if x[0] == n)
        r = WR + (f % NR) * 4
        if fi == 0 and j == 0 and ph > 0:
            if stamp and not OPT.get('trace'): stamp_mid(S, 88 + 2 * ph)
            S.extend(handoff(ph - 1, 0))
        if j == 0 and ph > 0 and kk == 0:
            assert not pend
            if c + 1 < ntile[ph - 1] and not (ph == 1 and c + 1 == 4): pend = handoff(ph - 1, c + 1)
            if ph == 1 and c == 0: pend = pend + handoff(0, 4)
            if ph == 2 and c == 2: pend = pend + halo_out()
        rd = read(f + D) if f + D < len(frs) else []
        S('v_mfma_f32_32x32x16_bf16 %s, %s, %s, %s' % (a16(c), q4(r), xq(K4), '0' if K4 == 0 else a16(c)))
        S.extend(rd)
        room = RATE
        if ph == 1:
            qh, pos = divmod(16 * j + fi, 8)
            if n == 9: qh, pos = (divmod(fi - 8, 4)[0], (1, 3, 5, 7)[(fi - 8) % 4]) if fi >= 8 else (None, None)
            if pos == 1: S.extend(hread(qh, 0, True)); room -= 1
            if pos == 3: S.extend(hm(qh, 0)); S.extend(hread(qh, 1, False)); room -= 2
            if pos == 7 if n != 9 else pos == 7: S.extend(hm(qh, 1)); room -= 1
        if pend:
            take = -(-len(pend) // (4 - kk))
            S.extend(pend[:take]); pend = pend[take:]; room = 0
        if OPT.get('pfc') and n in OPT['pfc'] and fi == 7: S.extend(pf_touch(OPT['pfc'].index(n))); room = 0
        if fi == 2 and n in (1, OPT.get('arr', 8)): S.append('CZERO32' if n == 1 else 'CARRIVE32'); room = 0
        if n == 0 and t2 and fi < 12: S.append(t2.pop(0)); room -= 1
        if n in (1, 2) and x2 and (n == 2 or fi > 3): S.append(x2.pop(0)); room -= 1
        room0 = room
        while room > 0:
            if sh and n >= 10:
                x = sh.pop(0)
                if x is not None:
                    if x[-1].kind == 'ds' and room < room0: sh.insert(0, x); break
                    S.extend(x)
                    if x[-1].kind == 'trans': room -= 1
                if not sh:
                    zc[0] = n; light.append([n, re_addr]); bias[2] = 1; bias[3] = 1
            elif att and n >= OPT['attgap']:
                x = att.pop(0)
                if x is not None: S.extend(x)
            elif light and n >= light[0][0]:
                x = light[0][1].pop(0); S.append(x)
                while x.kind == 'salu' and light[0][1]:
                    x = light[0][1].pop(0); S.append(x)
                if not light[0][1]: light.pop(0)
            room -= 1
    assert not t2 and not x2 and not light and not pend
    OPT['zc_step'] = zc[0]
    for x in att:
        if x is not None: S.extend(x)
    n2a, n2b = norm_z2(range(NZC), (112, 144, 160, 2))
    OPT['mega'].cons_early(S)
    S('s_barrier')
    S.extend(n2a)
    if stamp: stamp_mid(S, 94)
    def cv(o, a): return G('v_cvt_pk_bf16_f32 v%d, v%d, v%d\nv_cvt_pk_bf16_f32 v%d, v%d, v%d' % (o, a, a + 1, o + 1, a + 2, a + 3))
    for p in range(4):
        z0 = 168 + 4 * p; z1 = 168 + 16 + 4 * p
        P = [z0, z1, z0 + 2, z1 + 2]
        for k in range(4): S.extend(cv(P[k], acc(p) + 4 * k))
        for d in range(2):
            S('v_permlane32_swap_b32 v%d, v%d' % (P[0] + d, P[2] + d))
            S('v_permlane32_swap_b32 v%d, v%d' % (P[1] + d, P[3] + d))
        for d in range(2):
            S('v_permlane16_swap_b32 v%d, v%d' % (P[0] + d, P[1] + d))
            S('v_permlane16_swap_b32 v%d, v%d' % (P[2] + d, P[3] + d))
    S.extend(cv(200, acc(4))); S.extend(cv(202, acc(4) + 4))
    for sw in ('v_permlane32_swap_b32', 'v_permlane16_swap_b32'):
        for d in range(2): S('%s v%d, v%d' % (sw, 200 + d, 202 + d))
    ost = []
    if not OPT.get('attgap'):
        V2.S1 = 40
        for x in V2.attention(0):
            if isinstance(x, list) and any(y.kind == 'vmem' for y in x): ost.append(x)
            else: S.append(x)
    S.extend(n2b)
    S.extend(ost)
    OPT['n_ost'] = sum(1 for x in ost for y in x if y.kind == 'vmem')
    if stamp:
        stamp_mid(S, 96)
        stamp_mid(S, 70)
        stamp_store(S, 84, [86, 88, 90, 92, 94, 96, 70], 14, 0, 72, 12, wave_s=50)
    S('s_branch K2_CONS')
    return S
```

```python
from common import *
K3_P = 272
RED = 0
FLAG = 159744
def k3_body(S, stamp=False, early=2, sleep=12, own=True, pre=0, red2=False, sched=None, bars=None, rot=0, mega=False, nw=8, wfirst=False):
    ACC = 8; AR = 88; WF = 168
    vA = (200, 201, 202, 203, 204); vW = (205, 206, 207, 208); vT = (209, 210, 211, 212); vT2 = (232, 233, 234, 235)
    XR = 216; vO = 213; vR = 214
    NW = nw
    vT3 = (240, 241, 242, 243)
    sr = (lambda r: r + 6) if mega else (lambda r: r)
    sbase = 84 if mega else 60
    def acc(ct, a): r = ACC + (ct * 5 + a) * 4; return 'v[%d:%d]' % (r, r + 3)
    def fa(s, a): r = AR + s * 20 + a * 4; return 'v[%d:%d]' % (r, r + 3)
    def fw(s, ct): r = WF + s * 16 + ct * 4; return r
    S('''
    s_load_dwordx2 s[4:5], s[0:1], 0
    s_load_dwordx2 s[6:7], s[0:1], 16
    s_load_dwordx4 s[64:67], s[0:1], 56
    s_and_b32 s43, s2, 7
    s_lshr_b32 s46, s2, 3
    s_mul_i32 s47, s43, 29
    s_min_u32 s43, s43, 2
    s_add_u32 s47, s47, s43
    s_add_u32 s47, s47, s46          ; tile
    s_mul_hi_u32 s32, s47, 0x1c71c71d ; mt
    s_mul_i32 s46, s32, 9
    s_sub_u32 s33, s47, s46          ; nt
    s_mul_i32 s46, s32, 460800
    v_lshlrev_b32 v3, 4, v2
    v_add_u32 v%d, s46, v3
    ''' % vA[0])
    for a in range(1, 5):
        S('v_add_u32 v%d, %d, v%d' % (vA[a], 92160 * a, vA[0]))
    S('''
    v_lshrrev_b32 v3, 3, v2
    v_and_b32 v4, 2, v3
    v_and_b32 v5, 7, v2
    v_xor_b32 v5, v5, v4
    v_lshlrev_b32 v5, 4, v5
    v_mul_u32_u24 v3, 1152, v3
    s_lshl_b32 s46, s33, 7
    v_add3_u32 v%d, v3, v5, s46
    v_xor_b32 v5, 64, v5
    v_add3_u32 v6, v3, v5, s46
    v_add_u32 v%d, %d, v6
    v_add_u32 v%d, %d, v%d
    v_add_u32 v%d, %d, v6
    s_lshl_b32 s49, s34, 12          ; wave part of the ring address
    s_mul_i32 s36, s34, 36864        ; W row offset of k-frag w
    s_lshl_b32 s38, s34, 10          ; A offset of k-frag w
    s_waitcnt lgkmcnt(0)
    ''' % (vW[0], vW[1], 9216 - 1024, vW[2], 2 * (9216 - 1024), vW[0], vW[3], 3 * (9216 - 1024)))
    S('s_mul_i32 s57, s33, %d\ns_mov_b32 s58, s57' % rot)
    srd(S, 16, 8, 9, AP_SZ, AP_OFF)
    srd(S, 20, 6, 7, 576 * 1152)
    srd(S, 12, 64, 65, 2304 * 1152)
    def wload(q):
        P = Stream()
        if q <= 3: srdn, off = '20:23', 4 * q * 36864
        elif q >= 5: srdn, off = '12:15', (4 * q - 18) * 36864
        if q == 4:
            P('''s_cmp_lt_u32 s34, 2
            s_cselect_b32 s76, s20, s12
            s_cselect_b32 s77, s21, s13
            s_cselect_b32 s78, s22, s14
            s_mov_b32 s79, 0x00020000
            s_cselect_b32 s37, %d, 0
            s_add_u32 s37, s37, s36
            s_sub_u32 s37, s37, %d''' % (18 * 36864, 2 * 36864))
            srdn = '76:79'
        elif rot and q >= 5:
            P('''s_mul_i32 s37, s57, %d
            s_add_u32 s37, s37, s36
            s_add_u32 s37, s37, %d
            s_add_u32 s57, s57, 1
            s_cmp_eq_u32 s57, 18
            s_cselect_b32 s57, 0, s57''' % (4 * 36864, 2 * 36864))
        else:
            P('s_add_u32 s37, s36, %d' % off)
        P('s_add_u32 m0, s49, %d' % ((q % NW) * 16384))
        for j in range(4):
            P('buffer_load_dwordx4 v%d, s[%s], s37 offen offset:%d lds' % (vW[j], srdn, j * 1024), tok_w=['W%d' % (q % NW)])
        return P
    def aload(q):
        P = Stream()
        if rot and q >= 5:
            P('''s_lshl_b32 s39, s58, 12
            s_add_u32 s39, s39, s38
            s_add_u32 s39, s39, %d
            s_cmp_lt_u32 s39, %d
            s_cselect_b32 s39, s39, 0x7f000000
            s_add_u32 s58, s58, 1
            s_cmp_eq_u32 s58, 18
            s_cselect_b32 s58, 0, s58''' % (20 * 1024, 90 * 1024))
        else:
            P('s_add_u32 s39, s38, %d' % (4 * q * 1024))
        if q == 22 and not rot:
            P('s_cmp_lt_u32 s34, 2')
            P('s_cselect_b32 s39, s39, 0x7f000000')
        for a in range(5):
            P('buffer_load_dwordx4 %s, v%d, s[16:19], s39 offen%s' % (fa(q & 3, a), vA[a], ' sc1' if q >= 4 or mega else ''))
        return P
    NQ = 23
    def do(names):
        for nm in names: S.extend(wload(int(nm[1:])) if nm[0] == 'W' else aload(int(nm[1:])))
    done = set()
    if sched:
        do(sched[0]); done.update(sched[0])
    else:
        for q in range(early): S.extend(wload(q)); S.extend(aload(q))
    S('''
    v_lshrrev_b32 v3, 4, v2          ; g
    v_bfe_u32 v4, v2, 2, 2           ; r
    v_and_b32 v5, 3, v2              ; c
    v_lshl_add_u32 v6, v3, 3, v4     ; 8g + r
    v_lshlrev_b32 v6, 7, v6
    v_add_u32 v6, s49, v6
    v_and_b32 v7, 1, v5
    v_lshl_add_u32 v6, v7, 3, v6     ; + (c&1)*8
    v_lshrrev_b32 v5, 1, v5
    v_lshl_add_u32 v6, v5, 4, v6     ; + (c>>1)*16
    v_and_b32 v4, 2, v4
    v_and_b32 v3, 1, v3
    v_lshl_or_b32 v4, v3, 2, v4      ; f
    v_lshlrev_b32 v4, 4, v4
    ''')
    for ct in range(4):
        if red2:
            S('s_add_u32 s46, s34, %d\ns_and_b32 s46, s46, 3\ns_lshl_b32 s46, s46, 5\nv_xor_b32 v5, s46, v4' % ct)
        else:
            S('v_xor_b32 v5, %d, v4' % (32 * ct))
        S('v_add_u32 v%d, v5, v6' % vT[ct])
        S('v_add_u32 v%d, 65536, v%d' % (vT2[ct], vT[ct]))
        if NW > 8: S('v_add_u32 v%d, 131072, v%d' % (vT3[ct], vT[ct]))
    srd(S, 24, 4, 5, 2048 * 1152)
    srd(S, 28, 66, 67, 2048 * 1152)
    if not mega: srd(S, 72, 8, 9, CN_SZ, CN_OFF)
    S('''
    s_lshl_b32 s46, s34, 6
    v_add_u32 v0, s46, v2
    v_lshrrev_b32 v3, 3, v0
    s_mul_i32 s46, s32, 80
    v_add_u32 v4, s46, v3
    v_mul_u32_u24 v4, 1152, v4
    v_and_b32 v5, 7, v0
    v_lshlrev_b32 v6, 4, v5
    s_lshl_b32 s47, s33, 7
    v_add3_u32 v%d, v4, v6, s47
    v_mul_u32_u24 v3, %d, v3
    v_lshlrev_b32 v5, 5, v5
    v_add_u32 v%d, v3, v5
    s_add_u32 s47, s46, 79
    s_min_u32 s47, s47, 2047
    s_lshr_b32 s46, s46, 7
    s_lshr_b32 s47, s47, 7
    s_lshl_b32 s46, s46, 8
    s_lshl_b32 s47, s47, 8
    v_mov_b32 v228, s46
    v_mov_b32 v229, s47
    v_mov_b32 v230, %d
    s_mov_b32 s52, 0
    s_mov_b32 s53, %d
    s_mov_b32 s54, %d
    ''' % (vO, K3_P, vR, FLAG, 32 * 1152, 64 * 1152))
    if red2:
        S('''v_and_b32 v3, 15, v2
        s_mul_i32 s46, s32, 80
        v_add_u32 v4, s46, v3
        v_mul_u32_u24 v4, 1152, v4
        v_lshrrev_b32 v5, 4, v2
        v_lshlrev_b32 v5, 3, v5
        s_lshl_b32 s47, s33, 7
        s_lshl_b32 s46, s34, 5
        s_add_u32 s47, s47, s46
        v_add3_u32 v%d, v4, v5, s47''' % vO)
        for a in range(5): S('s_mov_b32 s%d, %d' % (52 + a, a * 16 * 1152))
    if sched:
        for k in range(2):
            bars[k](S)
            do(sched[k + 1]); done.update(sched[k + 1])
    S('s_barrier')
    if sched:
        do(sched[3]); done.update(sched[3])
    def ownwait():
        S('''s_mov_b32 s41, 1
        K3_OWN:
        ds_read_b32 v236, v230
        s_waitcnt lgkmcnt(0)
        s_add_u32 s41, s41, 1
        v_readfirstlane_b32 s42, v236
        s_cmp_ge_u32 s42, 4
        s_cbranch_scc1 K3_OWNED
        s_sleep 2
        s_cmp_lt_u32 s41, 0x400000
        s_cbranch_scc1 K3_OWN
        K3_OWNED:''')
    def trreads(ws, q):
        g = []
        slot = q % NW
        for ct in range(4):
            for h in range(2):
                r = fw(ws, ct) + 2 * h
                g.append(G('ds_read_b64_tr_b16 v[%d:%d], v%d offset:%d' % (r, r + 1, (vT, vT2, vT3)[slot >> 2][ct], (slot & 3) * 16384 + h * 512)))
        return g
    def mf(ws, q):
        m = Stream()
        for ct in range(4):
            for a in range(5):
                r = fw(ws, ct)
                m('v_mfma_f32_16x16x32_bf16 %s, v[%d:%d], %s, %s' % (acc(ct, a), r, r + 3, fa(q & 3, a), '0' if q == 0 else acc(ct, a)))
        return m
    S.need('W0')
    for g in trreads(0, 0): S.extend(g)
    if stamp:
        stamp_mid(S, sr(82)); S('s_waitcnt lgkmcnt(0)')
    for q in range(NQ):
        if q == pre:
            if own:
                S.append(('SAVEQ',)); ownwait(); S.append(('RESETQ',))
            if sched:
                do([x for k in range(NW + pre) for x in ('W%d' % k, 'A%d' % k) if x not in done and (x[0] == 'W' or k < 4)])
            else:
                for k in range(early, 4): S.extend(wload(k)); S.extend(aload(k))
                for k in range(4, 8 + pre): S.extend(wload(k))
        if q == 4 and wfirst: S.extend(wload(q + NW - 1))
        if q == 4:
            S.append(('SAVEQ',))
            if stamp: stamp_mid(S, sr(84))
            S('''
            s_mov_b32 s41, 0
            s_cmp_lg_u32 s34, 0
            s_cbranch_scc1 K3_WAITL
            K3_POLL:
            POLLBODY
            s_sleep %d
            s_cmp_lt_u32 s41, 0x20000
            s_cbranch_scc1 K3_POLL
            K3_SET:
            v_mov_b32 v236, 1
            ds_write_b32 v230, v236 offset:4
            s_branch K3_GO
            K3_WAITL:
            ds_read_b32 v236, v230 offset:4
            s_waitcnt lgkmcnt(0)
            s_add_u32 s41, s41, 1
            v_readfirstlane_b32 s42, v236
            s_cmp_lg_u32 s42, 0
            s_cbranch_scc1 K3_GO
            s_sleep 1
            s_cmp_lt_u32 s41, 0x400000
            s_cbranch_scc1 K3_WAITL
            K3_GO:
            '''.strip().replace('POLLBODY', '''buffer_load_dword v236, v238, s[72:75], s59 offen sc1
            s_waitcnt vmcnt(0)
            v_cmp_ne_u32 vcc, 1, v236
            s_add_u32 s41, s41, 1
            s_cmp_eq_u32 vcc_lo, 0
            s_cbranch_scc1 K3_SET''' if mega else '''buffer_load_dword v236, v228, s[72:75], 0 offen sc1
            buffer_load_dword v237, v229, s[72:75], 0 offen sc1
            s_waitcnt vmcnt(0)
            v_min_u32 v236, v236, v237
            s_add_u32 s41, s41, 1
            v_readfirstlane_b32 s42, v236
            s_cmp_ge_u32 s42, 16
            s_cbranch_scc1 K3_SET''') % sleep)
            S.append(('RESETQ',))
            if stamp:
                stamp_mid(S, sr(86)); S('s_waitcnt lgkmcnt(0)')
            for k in (4, 5, 6): S.extend(aload(k))
        if q > pre and q + NW - 1 < NQ and not (q == 4 and wfirst): S.extend(wload(q + NW - 1))
        if q >= 4 and q + 3 < NQ: S.extend(aload(q + 3))
        if q == NQ - 3:
            for rd in range(3 if not red2 else 0):
                S('buffer_load_dwordx4 v[%d:%d], v%d, s[24:27], s%d offen' % (XR + 4 * rd, XR + 4 * rd + 3, vO, 52 + rd))
            for a in range(5 if red2 else 0):
                S('buffer_load_dwordx2 v[%d:%d], v%d, s[24:27], s%d offen' % (XR + 2 * a, XR + 2 * a + 1, vO, 52 + a))
        g = []
        if q + 1 < NQ:
            n = Stream(); n.need('W%d' % ((q + 1) % NW))
            g = trreads((q + 1) & 1, q + 1)
            g[0] = list(n) + g[0]
        S.extend(weave(mf(q & 1, q), g, 2, 14))
    if stamp: stamp_mid(S, sr(88))
    E = S
    if red2:
        E("""
        v_lshlrev_b32 v3, 4, v2
        s_mul_i32 s46, s34, 15360
        v_add_u32 v4, s46, v3
        s_barrier
        """)
        for d in range(1, 4):
            E("""s_add_u32 s47, s34, %d
            s_and_b32 s47, s47, 3
            s_mul_i32 s47, s47, 15360
            v_add_u32 v5, s47, v3""" % d)
            for a in range(5):
                E('ds_write_b128 v5, %s offset:%d' % (acc(d, a), (d - 1) * 5120 + a * 1024), tok_w=['RED'])
        E.need('RED')
        E('s_barrier')
        for d in range(3):
            for a in range(5):
                r = AR + (d * 5 + a) * 4
                E('ds_read_b128 v[%d:%d], v4 offset:%d' % (r, r + 3, d * 5120 + a * 1024))
        for a in range(5):
            o = ACC + a * 4
            for e in range(4):
                E('v_add_f32 v%d, v%d, v%d' % (o + e, o + e, AR + a * 4 + e))
                E('v_add_f32 v%d, v%d, v%d' % (AR + 20 + a * 4 + e, AR + 20 + a * 4 + e, AR + 40 + a * 4 + e))
            for d in range(2):
                x = XR + 2 * a + d
                E('v_lshlrev_b32 v5, 16, v%d' % x)
                E('v_and_b32 v6, 0xffff0000, v%d' % x)
                E('v_add_f32 v%d, v%d, v%d' % (o + 2 * d, o + 2 * d, AR + 20 + a * 4 + 2 * d))
                E('v_add_f32 v%d, v%d, v%d' % (o + 2 * d + 1, o + 2 * d + 1, AR + 21 + a * 4 + 2 * d))
                E('v_add_f32 v5, v5, v%d' % (o + 2 * d))
                E('v_add_f32 v6, v6, v%d' % (o + 2 * d + 1))
                E('v_cvt_pk_bf16_f32 v%d, v5, v6' % x)
            E('buffer_store_dwordx2 v[%d:%d], v%d, s[28:31], s%d offen' % (XR + 2 * a, XR + 2 * a + 1, vO, 52 + a))
    else:
        E('''
        v_and_b32 v3, 15, v2
        v_mul_u32_u24 v3, %d, v3
        v_lshrrev_b32 v4, 4, v2
        v_lshl_add_u32 v3, v4, 4, v3
        s_mul_i32 s46, s34, %d
        v_add_u32 v3, s46, v3
        s_barrier
        ''' % (K3_P, 80 * K3_P))
        for a in range(5):
            for ct in range(4):
                E('ds_write_b128 v3, %s offset:%d' % (acc(ct, a), a * 16 * K3_P + ct * 64), tok_w=['RED'])
        E.need('RED')
        E('s_barrier')
        for rd in range(3):
            if rd == 2:
                E('s_cmp_ge_u32 s34, 2')
                E('s_cbranch_scc1 K3_DONE')
            base = 88 + rd * 32
            for c in range(4):
                if c == 3: E('v_add_u32 v4, %d, v%d' % (3 * 80 * K3_P, vR))
                for hh in range(2):
                    r = base + c * 8 + hh * 4
                    off = rd * 32 * K3_P + hh * 16 + (c * 80 * K3_P if c < 3 else 0)
                    E('ds_read_b128 v[%d:%d], v%d offset:%d' % (r, r + 3, vR if c < 3 else 4, off))
            for e in range(8):
                E('v_add_f32 v%d, v%d, v%d' % (base + e, base + e, base + 8 + e))
                E('v_add_f32 v%d, v%d, v%d' % (base + 16 + e, base + 16 + e, base + 24 + e))
            for d in range(4):
                x = XR + 4 * rd + d
                E('v_lshlrev_b32 v5, 16, v%d' % x)
                E('v_and_b32 v6, 0xffff0000, v%d' % x)
                E('v_add_f32 v%d, v%d, v%d' % (base + 2 * d, base + 2 * d, base + 16 + 2 * d))
                E('v_add_f32 v%d, v%d, v%d' % (base + 2 * d + 1, base + 2 * d + 1, base + 17 + 2 * d))
                E('v_add_f32 v5, v5, v%d' % (base + 2 * d))
                E('v_add_f32 v6, v6, v%d' % (base + 2 * d + 1))
                E('v_cvt_pk_bf16_f32 v%d, v5, v6' % x)
            E('buffer_store_dwordx4 v[%d:%d], v%d, s[28:31], s%d offen' % (XR + 4 * rd, XR + 4 * rd + 3, vO, 52 + rd))
    E('K3_DONE:')
    if stamp:
        stamp_mid(E, sr(90))
        E('s_waitcnt vmcnt(0)')
        stamp_mid(E, sr(92))
        E('v_add_u32 v0, 256, v0')
        stamp_store(E, sbase, [sr(r) for r in (80, 82, 84, 86, 88, 90, 92)], 8, 1, 64, 4)
```

```python
from common import *
import k1, k1_v2
from k1_v2 import fbits, gelu4, C1, C2, q4
from k2 import epi_offsets
from k3f import k3_body
KNAME = 'parallel_sum__sliding_local_dilated__mixer_gmlp__prompt_kernel'
SLOT = 34816
FLG = 159744
ACC = 8; FS = (80, 124); Z1 = 168
vW = (40, 41, 42, 43); vZ = 44; vB0 = 209; vB1 = 210; vA0 = 211; vA1 = 212; vAs = 213; vP = 214; vS = 215

def transition(S):
    S('''s_mov_b32 s32, s48
    s_mov_b32 s33, s49
    s_mov_b32 s34, s51
    s_mov_b32 s48, s52
    s_lshl_b32 s49, s34, 12
    s_mov_b32 s8, s14
    s_mov_b32 s9, s15
    v_mov_b32 v2, v1
    v_and_b32 v3, 15, v2
    v_lshrrev_b32 v4, 4, v2
    v_lshlrev_b32 v%d, 4, v2''' % vP)
    srd(S, 72, 8, 9, 4 * FL_SZ, FL_OFF)
def signal(S, word, target, tag, stores, keep=0, a=5, b=6, c=7):
    T = Stream(); _signal(T, word, target, tag, stores, keep)
    for x in T:
        if isinstance(x, tuple): S.append(x)
        else:
            import re
            S(re.sub(r'\bv([567])\b', lambda mm: 'v%d' % {'5': a, '6': b, '7': c}[mm.group(1)], x.text))
def _signal(S, word, target, tag, stores, keep):
    S('''v_mov_b32 v5, %d
    v_mov_b32 v6, 1
    s_waitcnt vmcnt(%d) lgkmcnt(0)
    s_mov_b64 exec, 1
    ds_add_rtn_u32 v7, v5, v6 offset:%d
    s_waitcnt lgkmcnt(0)
    v_readfirstlane_b32 s47, v7
    s_cmp_lg_u32 s47, %d
    s_cbranch_scc1 %s''' % (FLG, keep, word, target - 1, tag))
    S.append(('SAVEQ',))
    S('''s_mov_b64 exec, -1
    v_mov_b32 v6, 1
    v_lshlrev_b32 v5, 2, v2
    s_lshl_b32 s46, s32, 14
    s_lshl_b32 s47, s33, 10
    s_add_u32 s46, s46, s47
    s_mov_b32 exec_hi, 0
    buffer_store_dword v6, v5, s[72:75], s46 offen offset:%d sc1''' % stores)
    S.append(('RESETQ',))
    S('%s:' % tag)
    S('s_mov_b64 exec, -1')

class Mega:
    def __init__(self, stamp, gq=13, k3={}, zsleep=3, lazy=False, orel=True, eov=False, pf2=None):
        self.pf2 = pf2
        self.eov = eov
        self.orel = orel; self.lazy = lazy; self.stamp = stamp; self.gq = gq; self.k3 = k3; self.zsleep = zsleep
    def cons_early(self, S):
        S('''s_load_dwordx2 s[28:29], s[0:1], 48
        s_mov_b32 s98, s30
        s_lshl_b32 s63, s48, 8
        s_lshl_b32 s99, s51, 6
        s_add_u32 s63, s63, s99
        v_and_b32 v218, 15, v1
        v_lshlrev_b32 v218, 1, v218'''.replace('s[28:29]', 's[32:33]').replace('s_mov_b32 s98, s30\n', ''))
        S('''s_mov_b32 s34, 4096
        s_mov_b32 s35, 0x00020000
        s_waitcnt lgkmcnt(0)
        buffer_load_ushort v216, v218, s[32:35], s63 offen
        buffer_load_ushort v217, v218, s[32:35], s63 offen offset:32''')
    def half_a(self, P, p, st):
        if self.lazy: P('s_xor_b32 s37, s60, %d' % (st * 128))
        else: P('s_movk_i32 s37, %d' % (st * 128))
        P('s_add_u32 m0, s66, %d' % (p * SLOT))
        for q in range(4):
            P('buffer_load_dwordx4 v%d, s[4:7], s37 offen offset:%d lds' % (vW[q], q * 1024), tok_w=['P%d' % p])
    def half_b(self, P, p, st):
        if self.lazy: P(('s_add_u32 s38, s61, %d' % (st * 18432)) if st < 16 else ('s_sub_u32 s38, %d, s61' % (st * 18432)))
        else: P('s_mov_b32 s38, %d' % (st * 18432))
        P('s_add_u32 m0, s50, %d' % (p * SLOT))
        P('s_mov_b64 exec, s[44:45]')
        P('buffer_load_dwordx4 v%d, s[16:19], s38 offen sc1 lds' % vZ, tok_w=['P%d' % p])
        P('s_mov_b64 exec, -1')
        for q in range(4):
            P('buffer_load_dwordx4 v%d, s[16:19], s38 offen offset:%d sc1 lds' % (vZ, 512 + q * 1024), tok_w=['P%d' % p])
    def prod_early(self, S):
        S('''s_lshl_b32 s63, s48, 7
        s_lshl_b32 s66, s51, 5
        s_add_u32 s63, s63, s66
        v_lshrrev_b32 v45, 3, v1
        v_add_u32 v45, s63, v45
        v_lshlrev_b32 v45, 12, v45
        v_and_b32 v46, 7, v1
        v_lshrrev_b32 v47, 4, v1
        v_xor_b32 v46, v46, v47
        v_lshlrev_b32 v46, 4, v46
        v_add_u32 v%d, v45, v46
        v_xor_b32 v47, 64, v%d
        v_add_u32 v%d, 0x%x, v47
        v_add_u32 v%d, 0x%x, v%d
        v_add_u32 v%d, 0x%x, v47
        s_lshl_b32 s66, s51, 12''' % (vW[0], vW[0], vW[1], 0x8000 - 1024, vW[2], 0x10000 - 2048, vW[0], vW[3], 0x18000 - 3072))
        S('s_lshr_b32 s62, s48, 3\ns_lshl_b32 s60, s62, 11\ns_mul_i32 s61, s62, 294912\ns_lshl_b32 s62, s62, 3')
        for p in range(2):
            P = Stream(); self.half_a(P, p, p)
            for x in P: S(x.text.replace('s37', 's63'), tok_w=x.tok_w)
    def producer(self, S):
        stamp = self.stamp
        S('K2_TEXT:')
        transition(S)
        S('''s_mul_i32 s46, s33, 589824
        s_mul_i32 s47, s34, 4608
        s_add_u32 s46, s46, s47
        v_add_u32 v%d, s46, v%d
        s_add_u32 s50, s47, 16384
        s_mov_b32 s44, -1
        s_mov_b32 s45, 0
        v_lshlrev_b32 v46, 14, v3
        s_lshl_b32 s59, s33, 10
        s_add_u32 s59, s59, 128
        v_mov_b32 v47, %d''' % (vZ, vP, FLG))
        srd(S, 16, 8, 9, Z2P_SZ, Z2P_OFF)
        signal(S, 8, 8, 'K1_SIGH', 128)
        S.append(('SAVEQ',))
        S('''s_mov_b32 s41, 0
        s_cmp_lg_u32 s34, 0
        s_cbranch_scc1 KZ_WAITL
        KZ_POLL:
        buffer_load_dword v45, v46, s[72:75], s59 offen sc1
        s_waitcnt vmcnt(0)
        v_cmp_ne_u32 vcc, 1, v45
        s_add_u32 s41, s41, 1
        s_lshr_b32 s65, vcc_lo, s62
        s_and_b32 s42, s65, MASK0
        s_cbranch_scc0 KZ_SET
        s_sleep %d
        s_cmp_lt_u32 s41, 0x20000
        s_cbranch_scc1 KZ_POLL
        KZ_SET:
        v_mov_b32 v45, 1
        ds_write_b32 v47, v45 offset:12
        s_branch KZ_GO
        KZ_WAITL:
        ds_read_b32 v45, v47 offset:12
        s_waitcnt lgkmcnt(0)
        s_add_u32 s41, s41, 1
        v_readfirstlane_b32 s42, v45
        s_cmp_lg_u32 s42, 0
        s_cbranch_scc1 KZ_GO
        s_sleep 1
        s_cmp_lt_u32 s41, 0x400000
        s_cbranch_scc1 KZ_WAITL
        KZ_GO:'''.replace('MASK0', '3' if self.lazy else '0xffff') % self.zsleep)
        S.append(('RESETQ',))
        self.half_b(S, 0, 0); self.half_b(S, 1, 1)
        S.need('P0')
        S('s_barrier')
        self.half_a(S, 2, 2); self.half_b(S, 2, 2); self.half_a(S, 3, 3)
        for n in range(29):
            p = n & 3
            if self.lazy and (n + 3) % 2 == 0 and n + 3 >= 4:
                k = (n + 3) >> 1
                S.append(('SAVEQ',))
                S('''s_cmp_lg_u32 s34, 0
                s_cbranch_scc1 KL_OK{k}
                s_mov_b32 s41, 0
                KL_POLL{k}:
                s_bitcmp1_b32 s65, {k}
                s_cbranch_scc0 KL_OK{k}
                buffer_load_dword v45, v46, s[72:75], s59 offen sc1
                s_add_u32 s41, s41, 1
                s_waitcnt vmcnt(0)
                v_cmp_ne_u32 vcc, 1, v45
                s_cmp_lt_u32 s41, 0x20000
                s_lshr_b32 s65, vcc_lo, s62
                s_sleep 1
                s_cmp_lt_u32 s41, 0x20000
                s_cbranch_scc1 KL_POLL{k}
                KL_OK{k}:'''.format(k=k))
                S.append(('RESETQ',))
            S.need('P%d' % ((p + 1) & 3))
            S('s_barrier')
            self.half_b(S, (n + 3) & 3, n + 3)
            if n + 4 < 32: self.half_a(S, p, n + 4)
            if n == 20:
                S('''s_and_b32 s43, s2, 7
                s_lshr_b32 s46, s2, 3
                s_mul_i32 s47, s43, 29
                s_min_u32 s43, s43, 2
                s_add_u32 s47, s47, s43
                s_add_u32 s47, s47, s46
                s_mul_hi_u32 s46, s47, 0x1c71c71d
                s_mul_i32 s46, s46, 80
                s_add_u32 s47, s46, 79
                s_lshr_b32 s46, s46, 7
                s_lshr_b32 s47, s47, 7
                s_min_u32 s46, s46, 15
                s_min_u32 s47, s47, 15
                s_lshl_b32 s46, s46, 14
                s_lshl_b32 s47, s47, 14
                v_mov_b32 v238, s47
                v_mov_b32 v239, s46
                v_cmp_gt_u32 vcc, 16, v2
                v_cndmask_b32 v238, v238, v239, vcc
                v_lshl_add_u32 v238, v3, 10, v238
                s_movk_i32 s64, 384
                buffer_load_dword v236, v238, s[72:75], s64 offen sc1''')
            if n == 24:
                S('v_cmp_ne_u32 vcc, 1, v236')
                S.append(('SAVEQ',))
                S('''s_mov_b32 s41, 0
                KO_POLL:
                s_cmp_eq_u32 vcc_lo, 0
                s_cbranch_scc1 KO_OK
                s_sleep 8
                buffer_load_dword v236, v238, s[72:75], s64 offen sc1
                s_add_u32 s41, s41, 1
                s_waitcnt vmcnt(0)
                v_cmp_ne_u32 vcc, 1, v236
                s_cmp_lt_u32 s41, 0x20000
                s_cbranch_scc1 KO_POLL
                KO_OK:''')
                S.append(('RESETQ',))
        S('s_movk_i32 s59, 256')
        if stamp: stamp_mid(S, 86)
        S.append(('SAVEQ',))
        S('s_cmp_lt_u32 s2, 234\ns_cbranch_scc1 K3_START\ns_waitcnt vmcnt(0)\ns_barrier\ns_barrier\ns_barrier\ns_endpgm\nK3_START:')
        S.append(('RESETQ',))
        def mk(tok):
            def f(X):
                X.need(tok); X('s_barrier')
            return f
        k3_body(S, stamp, bars=[mk('P2'), mk('P3')], mega=True, **self.k3)
    def consumer(self):
        stamp = self.stamp
        S = Stream()
        def acc(a, b): r = ACC + (a * 2 + b) * 4; return 'v[%d:%d]' % (r, r + 3)
        def fB(s, b): r = FS[s] + b * 4; return 'v[%d:%d]' % (r, r + 3)
        def fA(s, a): r = FS[s] + 8 + a * 4; return 'v[%d:%d]' % (r, r + 3)
        S('K2_CONS:')
        transition(S)
        srd(S, 24, 8, 9, AP_SZ, AP_OFF)
        S('''
        v_lshrrev_b32 v5, 1, v3
        v_xor_b32 v5, v5, v4
        v_lshlrev_b32 v5, 4, v5
        v_lshlrev_b32 v6, 7, v3
        v_add3_u32 v%d, v5, v6, s49
        v_xor_b32 v%d, 64, v%d
        v_lshrrev_b32 v5, 3, v3
        v_add_u32 v5, s48, v5
        v_and_b32 v6, 1, v5
        v_lshlrev_b32 v6, 2, v6
        v_and_b32 v7, 3, v3
        v_bfe_u32 v1, v3, 2, 1
        v_lshl_add_u32 v7, v1, 3, v7
        v_xor_b32 v7, v7, v6
        v_lshl_add_u32 v7, v4, 4, v7
        v_lshlrev_b32 v7, 4, v7
        v_lshl_add_u32 v7, v5, 10, v7
        v_add_u32 v%d, 16384, v7
        v_xor_b32 v%d, 64, v%d
        s_cmp_eq_u32 s48, 0
        s_cselect_b32 s46, 8192, 0
        s_add_u32 s46, s46, 16384
        v_add_u32 v%d, s46, v%d
        v_lshrrev_b32 v5, 1, v4
        v_lshlrev_b32 v5, 8, v5
        v_lshl_add_u32 v5, v3, 4, v5
        v_and_b32 v6, 1, v4
        v_lshl_add_u32 v%d, v6, 3, v5
        ''' % (vB0, vB1, vB0, vA0, vA1, vA0, vAs, vP, vS))
        epi_offsets(S)
        S('v_lshlrev_b32 v216, 16, v216')
        S('v_lshlrev_b32 v217, 16, v217')
        for a in range(9):
            for b in range(2):
                for r in range(4):
                    S('v_mov_b32 v%d, v%d' % (ACC + (a * 2 + b) * 4 + r, 216 + b))
        HI = 224
        for k, r in enumerate((vB0, vB1, vA0, vA1, vAs)): S('v_add_u32 v%d, %d, v%d' % (HI + k, 2 * SLOT, r))
        signal(S, 8, 8, 'K1_SIGC', 128, keep=0 if stamp else k1.OPT['n_ost'])
        S('s_mov_b32 s78, 0x%x' % fbits(C1))
        S('v_mov_b32 v7, 0x%x' % fbits(C2))
        S('s_setprio 1')
        def reads(s, h, n):
            g = []
            hi = (n & 3) >> 1; so = (n & 1) * SLOT
            R = lambda r: r if not hi else HI + (vB0, vB1, vA0, vA1, vAs).index(r)
            vB = vB1 if h else vB0
            for b in range(2):
                g.append(I('ds_read_b128 %s, v%d offset:%d' % (fB(s, b), R(vB), so + b * 2048)))
            for a in range(9):
                if a < 8: g.append(I('ds_read_b128 %s, v%d offset:%d' % (fA(s, a), R(vA1 if a & 1 else vA0), so + h * 9216 + (a >> 1) * 2048)))
                else: g.append(I('ds_read_b128 %s, v%d offset:%d' % (fA(s, a), R(vAs), so + h * 9216)))
            return g
        def mfmas(s):
            m = Stream()
            for a in range(9):
                for b in range(2):
                    m('v_mfma_f32_16x16x32_bf16 %s, %s, %s, %s' % (acc(a, b), fA(s, a), fB(s, b), acc(a, b)))
            return m
        gw = []
        for k in range(18):
            g = Stream()
            p = Z1 + 2 * k; x = 232 + 8 * (k & 1)
            g('v_lshlrev_b32 v%d, 16, v%d' % (x, p))
            g('v_and_b32 v%d, 0xffff0000, v%d' % (x + 1, p))
            g('v_lshlrev_b32 v%d, 16, v%d' % (x + 2, p + 1))
            g('v_and_b32 v%d, 0xffff0000, v%d' % (x + 3, p + 1))
            gelu4(g, x, x + 4, c2=7)
            g('v_cvt_pk_bf16_f32 v%d, v%d, v%d' % (p, x, x + 1))
            g('v_cvt_pk_bf16_f32 v%d, v%d, v%d' % (p + 1, x + 2, x + 3))
            gw += list(g)
        if self.pf2 == -1:
            S('''s_load_dwordx2 s[60:61], s[0:1], 56
            s_load_dwordx2 s[64:65], s[0:1], 16
            s_mov_b32 s62, %d
            s_mov_b32 s63, 0x00020000
            s_mov_b32 s66, %d
            s_mov_b32 s67, 0x00020000
            s_mul_i32 s68, s2, 10368
            s_mul_i32 s69, s34, 2688
            s_add_u32 s68, s68, s69
            s_mul_i32 s69, s2, 2688
            s_mul_i32 s70, s34, 768
            s_add_u32 s69, s69, s70
            v_lshlrev_b32 v229, 7, v2
            s_mov_b64 exec, 0x1fffff
            buffer_load_dword v230, v229, s[60:63], s68 offen
            s_mov_b64 exec, 0x3f
            buffer_load_dword v231, v229, s[64:67], s69 offen
            s_mov_b64 exec, -1''' % (2304 * 1152, 576 * 1152))
        if stamp: stamp_mid(S, 86)
        S('s_barrier')
        if stamp:
            stamp_mid(S, 88); S('s_waitcnt lgkmcnt(0)')
        S.extend(reads(0, 0, 0))
        def half(ms, rds):
            left = self.gq
            for k, m in enumerate(ms):
                S.append(m)
                room = 2
                if rds: S.append(rds.pop(0)); room = 1
                while gw and left > 0 and room > 0 and k < 17:
                    need = 2 if gw[0].kind == 'trans' else 1
                    if need > room: break
                    S.append(gw.pop(0)); room -= need; left -= 1
        def epi(b, pk=True):
            E = Stream()
            for p in range(5):
                nd = 4 if p < 4 else 2
                zr = Z1 + (b * 4 + p) * 4 if p < 4 else Z1 + 32 + b * 2
                for d in range(nd):
                    a = 2 * p + (d >> 1)
                    ar = ACC + (a * 2 + b) * 4 + (d & 1) * 2
                    t = 220 + (d & 1) * 2
                    E('v_lshlrev_b32 v%d, 16, v%d' % (t, zr + d))
                    E('v_and_b32 v%d, 0xffff0000, v%d' % (t + 1, zr + d))
                    if pk: E('v_pk_mul_f32 v[%d:%d], v[%d:%d], v[%d:%d]' % (t, t + 1, t, t + 1, ar, ar + 1))
                    else:
                        E('v_mul_f32 v%d, v%d, v%d' % (t, t, ar))
                        E('v_mul_f32 v%d, v%d, v%d' % (t + 1, t + 1, ar + 1))
                    E('v_cvt_pk_bf16_f32 v%d, v%d, v%d' % (zr + d, t, t + 1))
                if p < 4: E('buffer_store_dwordx4 v[%d:%d], v%d, s[24:27], s%d offen offset:%d sc1' % (zr, zr + 3, vP, 53 + b, p * 1024))
                else: E('buffer_store_dwordx2 v[%d:%d], v%d, s[24:27], s%d offen sc1' % (zr, zr + 1, vS, 57 + b))
            return E
        for n in range(32):
            S('s_waitcnt lgkmcnt(0)')
            if n == 12: signal(S, 16, 4, 'KO_NOFL', 384, a=218, b=219, c=220)
            if self.pf2 and n == self.pf2 - 2:
                S('''s_load_dwordx2 s[60:61], s[0:1], 56
                s_load_dwordx2 s[64:65], s[0:1], 16
                s_mov_b32 s62, %d
                s_mov_b32 s63, 0x00020000
                s_mov_b32 s66, %d
                s_mov_b32 s67, 0x00020000
                s_mul_i32 s68, s2, 10368
                s_mul_i32 s69, s34, 2688
                s_add_u32 s68, s68, s69
                s_mul_i32 s69, s2, 2688
                s_mul_i32 s70, s34, 768
                s_add_u32 s69, s69, s70
                v_lshlrev_b32 v229, 7, v2''' % (2304 * 1152, 576 * 1152))
            if self.pf2 and n == self.pf2:
                S('''s_mov_b64 exec, 0x1fffff
                buffer_load_dword v230, v229, s[60:63], s68 offen
                s_mov_b64 exec, 0x3f
                buffer_load_dword v231, v229, s[64:67], s69 offen
                s_mov_b64 exec, -1''')
            if n == 31 and self.eov:
                m0, m1 = mfmas(0), mfmas(1)
                half(Stream(m0[0::2] + m0[1::2][:2]), reads(1, 1, n))
                S('s_waitcnt lgkmcnt(0)')
                S('s_barrier')
                S.extend(m1[0::2])
                e0 = list(epi(0, pk=False))
                rest = m0[1::2][2:] + m1[1::2]
                for k, x in enumerate(rest):
                    S.append(x)
                    take = -(-len(e0) // (len(rest) - k))
                    S.extend(e0[:take]); e0 = e0[take:]
                break
            half(mfmas(0), reads(1, 1, n))
            S('s_waitcnt lgkmcnt(0)')
            S('s_barrier')
            half(mfmas(1), reads(0, 0, n + 1) if n < 31 else [])
        assert not gw
        E = S
        if stamp: stamp_mid(E, 90)
        if not self.eov: E.extend(epi(0))
        E.extend(epi(1))
        if stamp: stamp_mid(E, 92)
        signal(E, 0, 4, 'K2_NOSIG', 256)
        if stamp:
            E('s_waitcnt vmcnt(0)')
            stamp_mid(E, 94)
            stamp_store(E, 84, [86, 88, 90, 92, 94], 8, 1, 64, 216, wave_s=34)
        E('s_endpgm')
        return S

def gen_mega(stamp=False, k1opt={}, **kw):
    M = Mega(stamp, **kw)
    k1_v2.STFLAG = ' sc1'
    txt, vg = k1.gen_k1(stamp=stamp, mega=M, **k1opt)
    k1_v2.STFLAG = ''
    F = Finisher()
    F.vmq, F.lgq = k1.OPT['cons_state']
    k1.emit(F, M.consumer())
    return txt + F.text(), 256
```

```python
import sys
from build import *
HDR = open('parallel_sum__sliding_local_dilated__mixer_gmlp__prompt.s.ref').read().split('; Override launch')[0]
def make(path, stamp=False, k1={}, k2={}, k3={}):
    t1, v1 = gen_k1(stamp=stamp, **k1)
    t2, v2 = gen_k2(stamp=stamp, **k2)
    t3, v3 = gen_k3(stamp=stamp, **k3)
    assemble_file(path, [('k1_kernel', t1, v1, 256, 512, K1_LDS), ('k2_kernel', t2, v2, 256, 512, K2_LDS), ('k3_kernel', t3, v3, 234, 256, K3_LDS)])
    s = open(path).read()
    open(path, 'w').write(HDR + s)
def makef(path, stamp=False, k1={}, k2={}):
    t1, v1 = gen_k1(stamp=stamp, **k1)
    t2, v2 = gen_k2(stamp=stamp, fuse=True, **k2)
    assemble_file(path, [('k1_kernel', t1, v1, 256, 512, K1_LDS), ('k2_kernel', t2, v2, 256, 512, K2_LDS)])
    s = open(path).read()
    open(path, 'w').write(HDR + s)
def makem(path, stamp=False, plain=True, **kw):
    import mega
    t, v = mega.gen_mega(stamp=stamp, **kw)
    t = t.replace("'k1_kernel'", mega.KNAME).replace('k1_kernel', mega.KNAME).replace('k2_kernel', 'K2_TEXT')
    assemble_file(path, [(mega.KNAME, t, v, 256, 512, K1_LDS)])
    s = open(path).read()
    if plain: s = s.replace('; @launch kernel=%s grid' % mega.KNAME, '; @launch grid')
    open(path, 'w').write(HDR + s)
if __name__ == '__main__':
    SCH = [['W0', 'W1'], ['W2', 'W3', 'A0'], ['A1', 'W4'], []]
    K2 = dict(prio=1, rot=False, xmap='84', pf=False, k3=dict(early=2, pre=1, sched=SCH))
    B = dict(budget=66, nc=4, pf3=1, pfc=[5, 8, 11, 14, 17, 20], cpf=1)
    B['attgap'] = 21
    M = dict(m32=1, nc=0)
    k3 = dict(K2['k3'], wfirst=True, nw=9)
    makem('vq.s', k1opt=B, k3=k3, lazy=True, eov=True)
    makem('full_q.s', stamp=True, k1opt=B, k3=k3, lazy=True, eov=True)
```

```python
from common import *
import k1_v2 as V2
from k1_v2 import fbits, q4, gelu4, rowstats, dots, norm4, flatten, m64, setm, is_mem, C1, C2, SCL
SLOT = 20480
T1_OFF = 40960; T2_OFF = 81920; XH_OFF = 143360; ZB_OFF = 81920; QB_OFF = 119808; SB_OFF = 161792
K1_LDS = 163840
QP = 240; ZP = 296
XF = 112; ACC = 40; WFR = 16; NRING = 5
NR1 = 6; P1 = NR1 * 2048; P2 = (9 - NR1) * 2048
sBLK = 54
vT = 4; vC2 = 9
OPT = {}
assert all((i * 3277) >> 16 == i // 20 for i in range(1280)) and all((r * 43) >> 8 == r // 6 for r in range(18))
def xf(j, b): r = XF + (j * 2 + b) * 4; return 'v[%d:%d]' % (r, r + 3)
LN1 = 40; LN2 = XF + 16 * NR1; ST = 88
def ln(g, j): return (LN1 + (g * NR1 + j) * 4 if g < 2 else 16 + 4 * j) if j < NR1 else LN2 + (g * (9 - NR1) + j - NR1) * 4
PH = [('Z2', 9216, 4608), ('Q', 3456, 0), ('Z1', 9216, 0)]
vDZ = 16; vDQ = 21
def wt(x):
    if isinstance(x, str): return 1
    if isinstance(x, list): return sum(wt(y) for y in x)
    if x.kind in ('need', 'label'): return 0
    if x.kind in ('trans', 'mfma'): return 2
    if x.kind == 'salu': return 0.5
    return 1

def wdma(n):
    ph, j = divmod(n, 9)
    nm, pitch, add = PH[ph]
    if nm == 'Q' and OPT.get('qpack'): pitch = 288
    P = Stream()
    P('s_mul_i32 s63, s%d, %d' % (sBLK + j, 64 * pitch))
    if add: P('s_add_u32 s63, s63, %d' % add)
    isq = nm == 'Q'
    P('s_add_u32 s63, s63, s%d' % (65 if isq else 64))
    for e in range(5):
        P('s_add_u32 m0, s68, %d' % ((n & 3) * SLOT + e * 4096))
        P('buffer_load_dwordx4 v%d, s[%s], s63 offen%s lds' % ((vDQ if isq else vDZ) + e, '20:23' if isq else '24:27', ' sc1' if isq and OPT.get('qpack') else ''), tok_w=['W%d' % n])
    return P

XROT_OLD = '''    s_lshr_b32 s64, s50, 2
    s_mul_i32 s64, s64, 24
    s_add_u32 s63, s63, s64
    v_lshrrev_b32 v12, 3, v1
    v_and_b32 v13, 7, v1
    v_add_u32 v10, s63, v12
    v_mul_u32_u24 v10, 1152, v10
    v_lshl_add_u32 v10, v13, 4, v10
    v_add_u32 v11, 9216, v10
    v_add_u32 v14, 18432, v10
'''
XROT_NEW = '''    v_lshrrev_b32 v12, 3, v1
    v_and_b32 v13, 7, v1
    v_add_u32 v14, s63, v12
    v_mul_u32_u24 v14, 1152, v14
    v_lshl_add_u32 v14, v13, 4, v14
    s_lshr_b32 s64, s50, 2
    s_mul_i32 s64, s64, 3
    s_add_u32 s64, s64, s49
        s_add_u32 s65, s64, 0
    s_and_b32 s65, s65, 3
    s_mul_i32 s66, s65, 9216
    v_add_u32 v10, s66, v14
    s_mov_b32 s3, s65
    s_add_u32 s65, s64, 1
    s_and_b32 s65, s65, 3
    s_mul_i32 s66, s65, 9216
    v_add_u32 v11, s66, v14
    s_mov_b32 s33, s65
    s_add_u32 s65, s64, 2
    s_and_b32 s65, s65, 3
    s_mul_i32 s66, s65, 9216
    v_add_u32 v14, s66, v14
    s_mov_b32 s34, s65

'''
GSR = (3, 33, 34)
def gaddr(S, g, P, dst):
    S('''s_lshr_b32 s98, s%d, 1
    s_mul_i32 s98, s98, %d
    s_and_b32 s99, s%d, 1
    s_lshl_b32 s99, s99, 7
    s_add_u32 s98, s98, s99
    v_add_u32 v%d, s98, v5''' % (GSR[g], P, GSR[g], dst))
def head(S, stamp, xmap, rot):
    S('''
    s_load_dwordx4 s[4:7], s[0:1], 0
    s_load_dwordx2 s[8:9], s[0:1], 32
    s_load_dwordx4 s[12:15], s[0:1], 72
    s_load_dwordx2 s[10:11], s[0:1], 40
    s_cmp_ge_u32 s2, 256
    s_cbranch_scc1 K1_END
    ''')
    if stamp: stamp_begin(S, 84)
    S('''
    v_lshrrev_b32 v10, 6, v0
    v_and_b32 v1, 63, v0
    v_readfirstlane_b32 s50, v10
    s_and_b32 s63, s2, 7
    s_lshr_b32 s64, s2, 3
    ''')
    if xmap == '84':
        S('''
        s_and_b32 s48, s63, 1
        s_lshl_b32 s48, s48, 3
        s_and_b32 s65, s64, 7
        s_add_u32 s48, s48, s65
        s_lshr_b32 s49, s63, 1
        s_lshl_b32 s49, s49, 2
        s_lshr_b32 s64, s64, 3
        s_add_u32 s49, s49, s64
        s_lshl_b32 s64, s64, 1
        ''')
        if OPT.get('rmode') == 4: S('s_and_b32 s65, s65, 6')
        if OPT.get('rmode') == 2: S('s_and_b32 s65, s65, 4')
        if OPT.get('rmode') == 3: S('s_mul_i32 s65, s65, 3\ns_lshr_b32 s65, s65, 3\ns_mul_i32 s65, s65, 3')
        S('s_add_u32 s53, s64, s65')
    else:
        S('''
        s_lshr_b32 s48, s63, 1
        s_lshl_b32 s48, s48, 2
        s_and_b32 s65, s64, 3
        s_add_u32 s48, s48, s65
        s_and_b32 s49, s63, 1
        s_lshl_b32 s49, s49, 3
        s_lshr_b32 s64, s64, 2
        s_add_u32 s49, s49, s64
        s_lshl_b32 s65, s65, 1
        s_add_u32 s53, s64, s65
        ''')
    if not rot: S('s_mov_b32 s53, 0')
    S('''
    s_sub_u32 s64, s53, 9
    s_cmp_ge_u32 s53, 9
    s_cselect_b32 s%d, s64, s53
    s_and_b32 s51, s50, 3
    s_and_b32 s52, s49, 1
    s_lshl_b32 s63, s48, 7
    s_lshl_b32 s64, s51, 5
    s_add_u32 s63, s63, s64
    XROT
    '''.replace('XROT', XROT_NEW if OPT.get('xrot') else XROT_OLD) % sBLK)
    for j in range(1, 9):
        S('s_add_u32 s%d, s%d, 1' % (sBLK + j, sBLK + j - 1))
        S('s_cmp_eq_u32 s%d, 9' % (sBLK + j))
        S('s_cselect_b32 s%d, 0, s%d' % (sBLK + j, sBLK + j))
    for j in range(9): S('s_lshl_b32 s%d, s%d, 7' % (69 + j, sBLK + j))
    S('s_waitcnt lgkmcnt(0)')
    srd(S, 16, 4, 5, 2048 * 1152)
    S('s_cmp_ge_u32 s50, 4')
    S('s_cbranch_scc1 K1_HELP')

def xloads(S, gs):
    for g in gs:
        for j in range(9):
            S('buffer_load_dwordx4 %s, v%d, s[16:19], s%d offen' % (q4(ln(g, j)), (10, 11, 14)[g], 69 + j))
def common_setup(S):
    srd(S, 28, 14, 15, AP_SZ, AP_OFF)
    srd(S, 36, 14, 15, Z2P_SZ, Z2P_OFF)
    srd(S, 40, 14, 15, FL_OFF + 4 * FL_SZ - ST_OFF, ST_OFF)
    srd(S, 44, 12, 13, 256)
    S('s_mov_b32 s79, 0x%x' % fbits(SCL))
    S('''
    s_mov_b32 s82, 0x3f803f80
    s_mov_b32 s83, 0x%x
    v_xor_b32 v102, v12, v13
    v_and_b32 v103, 3, v1
    v_lshl_add_u32 v102, v103, 4, v102
    v_lshlrev_b32 v102, 4, v102
    v_bfe_u32 v104, v1, 2, 1
    v_lshl_add_u32 v102, v104, 10, v102
    s_mul_i32 s63, s51, %d
    s_add_u32 s63, s63, %d
    v_add_u32 v5, s63, v102              ; transit write address
    v_and_b32 v101, 15, v1
    v_lshrrev_b32 v105, 4, v1
    v_xor_b32 v102, v101, v105
    v_lshl_add_u32 v102, v105, 4, v102
    v_lshlrev_b32 v6, 4, v102            ; plain frag read offset (even)
    v_mul_u32_u24 v105, 2560, v105
    v_bfe_u32 v101, v1, 2, 2
    v_mul_u32_u24 v101, 320, v101
    v_lshlrev_b32 v103, 3, v103
    v_add3_u32 v%d, v105, v101, v103
    ''' % (fbits(1.0 / 576), 2 * P1, T1_OFF, vT))

def goff(k, P): return (k >> 1) * P + (k & 1) * 128
def layernorm(S, ks, mid=None, mid2=None):
    ng = len(ks)
    for g in range(ng):
        st = ST + 2 * g
        regs = [ln(g, j) + d for j in range(9) for d in range(4)]
        S.extend(dots(regs, st, st + 1))
        if OPT.get('ptrace'): stamp_mid(S, 88 + 4 * (g & 1))
        if g == 0 and ng > 1: xloads(S, [2] if OPT.get('x01') else ([1, 2] if OPT.get('x12', 0) else [1]))
        for m in ('quad_perm:[1,0,3,2]', 'quad_perm:[2,3,0,1]', 'row_half_mirror'):
            for r in range(st, st + 2):
                S('v_add_f32_dpp v%d, v%d, v%d %s row_mask:0xf bank_mask:0xf' % (r, r, r, m))
        rowstats(S, st, ST + 6, 's83')
        if g == ng - 1 and mid: S.extend(mid)
        if OPT.get('xrot'): gaddr(S, g, P1, 15)
        for j in range(NR1):
            norm4(S, ln(g, j), st, ST + 6)
            if OPT.get('xrot'): S('ds_write_b128 v15, %s offset:%d' % (q4(ln(g, j)), j * 2048), tok_w=['T'])
            else: S('ds_write_b128 v5, %s offset:%d' % (q4(ln(g, j)), goff(ks[g], P1) + j * 2048), tok_w=['T'])
        if g < ng - 1:
            for j in range(NR1, 9): norm4(S, ln(g, j), st, ST + 6)
            if OPT.get('ptrace'): stamp_mid(S, 90)
        if g == 0 and ng > 2 and not OPT.get('x12', 0) and not OPT.get('x01'): xloads(S, [2])
    if mid2: S.extend(mid2)
    if OPT.get('ptrace'): stamp_mid(S, 94)
    S.need('T')
    S('s_barrier')
    if OPT.get('ptrace'): stamp_mid(S, 96)
def t2_writes(ks):
    A = Stream()
    if OPT.get('xrot'):
        for g in range(len(ks)):
            for j in range(NR1, 9):
                A('ds_write_b128 v%d, %s offset:%d' % (12 + g, q4(ln(g, j)), (j - NR1) * 2048), tok_w=['T2'])
        return A
    for j in range(NR1, 9):
        for g in range(len(ks)):
            A('ds_write_b128 v5, %s offset:%d' % (q4(ln(g, j)), goff(ks[g], P2) + (j - NR1) * 2048), tok_w=['T2'])
    return A
def t2_addr(S):
    S('s_mul_i32 s63, s51, %d' % (2 * (P2 - P1)))
    S('s_add_u32 s63, s63, %d' % (T2_OFF - T1_OFF))
    S('v_add_u32 v5, s63, v5')
    if OPT.get('xrot'):
        for g in range(3): gaddr(S, g, P2, 12 + g)

def emit(F, out):
    ren = {'ATOMIC': 'FLAG', 'POLLISSUE': 'FISSUE', 'POLLCHECK': 'FCHECK'} if OPT.get('flags', 1) else {}
    for x in flatten(out):
        if isinstance(x, str): x = ren.get(x, x)
        m32 = isinstance(x, str) and x.endswith('32')
        if m32: x = x[:-2]
        if isinstance(x, tuple) and x[0] == 'DMA5':
            _, n, txt, off = x
            lab = 'K1_D%d' % n
            F.run(G('s_cmp_eq_u32 s51, 3\ns_cbranch_scc1 %s\ns_add_u32 m0, s68, %d' % (lab, off)))
            F.add(I(txt)); F.vmq.pop()
            F.run(G(lab + ':'))
        elif isinstance(x, tuple) and x[0] == 'KEEPQ':
            if x[1] == 0: keep = [set(q) for q in F.vmq]
            else: F.vmq = keep
        elif x == 'POLLISSUE':
            F.run(G('s_cmp_lg_u32 s51, 0\ns_cbranch_scc1 K1_NOPI'))
            F.run(poll_issue(3, 6)); F.vmq.pop()
            F.run(G('K1_NOPI:'))
        elif x == 'ENTRY1' and OPT.get('mega'):
            F.run(G('''s_lshl_b32 s67, s48, 14
            s_add_u32 s67, s67, %d
            v_and_b32 v37, 15, v1
            v_lshlrev_b32 v37, 10, v37
            v_mov_b32 v6, 0
            v_mov_b32 v36, 1''' % (FL_OFF - ST_OFF)))
        elif x == 'ENTRY2' and OPT.get('mega'):
            pass
        elif x == 'HZERO':
            F.run(G('''s_lshl_b32 s64, s48, 14
            s_lshl_b32 s65, s49, 10
            s_add_u32 s64, s64, s65
            s_add_u32 s64, s64, 0x%x
            s_add_u32 s40, s14, s64
            s_addc_u32 s41, s15, 0
            s_movk_i32 s42, 1024
            s_mov_b32 s43, 0x00020000
            v_lshlrev_b32 v68, 4, v1
            v_mov_b32 v36, 0
            v_mov_b32 v37, 0
            v_mov_b32 v38, 0
            v_mov_b32 v39, 0
            s_cmp_lg_u32 s51, 0
            s_cbranch_scc1 K1_NOHZ''' % FL_OFF))
            F.add(I('buffer_store_dwordx4 v[36:39], v68, s[40:43], 0 offen sc1')); F.vmq.pop()
            F.run(G('K1_NOHZ:'))
        elif x == 'HARRIVE':
            F.run(G('''s_cmp_lg_u32 s51, 0
            s_cbranch_scc1 K1_NOHA
            s_lshl_b32 s63, s48, 4
            v_mov_b32 v36, 1
            s_mov_b64 exec, 1'''))
            F.add(I('buffer_atomic_add v36, v37, s[44:47], s63 offen sc1')); F.vmq.pop()
            F.run(G('s_mov_b64 exec, -1\nK1_NOHA:'))
        elif x == 'QFLAG':
            F.run(G('''s_cmp_lg_u32 s51, 0
            s_cbranch_scc1 K1_NOQF
            s_lshl_b32 s10, s49, FSH
            s_add_u32 s10, s10, s67
            v_lshlrev_b32 v39, 2, v1
            s_mov_b32 exec_hi, 0'''.replace('FSH', '10')))
            F.add(I('buffer_store_dword v36, v39, s[40:43], s10 offen offset:512 sc1')); F.vmq.pop()
            F.run(G('s_mov_b64 exec, -1\nK1_NOQF:'))
        elif x == 'QISSUE':
            F.run(G('''v_and_b32 v48, 15, v1
            v_lshlrev_b32 v48, 14, v48
            s_lshl_b32 s12, s49, 10
            s_add_u32 s12, s12, %d
            buffer_load_dword v49, v48, s[40:43], s12 offen sc1''' % (FL_OFF - ST_OFF + 512)))
        elif x == 'QCHECK':
            F.run(G('v_cmp_ne_u32 vcc, 1, v49\ns_cmp_lg_u32 s51, 0\ns_cbranch_scc1 K1_QOK'))
            keep = [set(q) for q in F.vmq]
            F.run(G('''s_mov_b32 s10, 0
            K1_QPOLL:
            s_cmp_eq_u32 vcc_lo, 0
            s_cbranch_scc1 K1_QOK
            s_sleep 4
            buffer_load_dword v49, v48, s[40:43], s12 offen sc1
            s_add_u32 s10, s10, 1
            s_waitcnt vmcnt(0)
            v_cmp_ne_u32 vcc, 1, v49
            s_cmp_lt_u32 s10, 0x20000
            s_cbranch_scc1 K1_QPOLL
            K1_QOK:'''))
            F.vmq = keep
        elif x == 'CZERO':
            F.run(G('''s_cmp_lg_u32 s51, 0
            s_cbranch_scc1 K1_NOCZ
            s_lshl_b32 s64, s48, 14
            s_lshl_b32 s65, s49, 10
            s_add_u32 s64, s64, s65
            s_add_u32 s64, s64, %d
            v_lshlrev_b32 v12, 3, v1
            v_mov_b32 v14, 0
            v_mov_b32 v15, 0''' % (FL_OFF - ST_OFF)))
            F.add(I('buffer_store_dwordx2 v[14:15], v12, s[40:43], s64 offen sc1')); F.vmq.pop()
            F.run(G('K1_NOCZ:'))
            cz_len = len(F.vmq)
        elif x == 'CARRIVE':
            F.run(G('''s_cmp_lg_u32 s51, 0
            s_cbranch_scc1 K1_NOCA
            s_lshl_b32 s64, s48, 4
            v_mov_b32 v38, 0
            v_mov_b32 v39, 1
            s_mov_b64 exec, 1'''.replace('v38', 'v14' if m32 else 'v38').replace('v39', 'v15' if m32 else 'v39')))
            keep = [set(q) for q in F.vmq]
            F.run(G('s_waitcnt vmcnt(%d)\nbuffer_atomic_add v%d, v%d, s[44:47], s64 offen sc1' % ((len(F.vmq) - cz_len,) + ((15, 14) if m32 else (39, 38)))))
            F.vmq = keep
            F.run(G('s_mov_b64 exec, -1\nK1_NOCA:'))
        elif x == 'FLAG' and OPT.get('mega'):
            F.run(G('''s_cmp_lg_u32 s51, 0
            s_cbranch_scc1 K1_NOAT
            s_lshl_b32 s10, s49, 10
            s_add_u32 s10, s10, s67
            v_lshlrev_b32 v39, 2, v1
            s_mov_b32 exec_hi, 0'''))
            F.add(I('buffer_store_dword v36, v39, s[40:43], s10 offen sc1')); F.vmq.pop()
            F.run(G('s_mov_b64 exec, -1\nK1_NOAT:'))
        elif x == 'GATE1' and OPT.get('mega'):
            F.run(G('v_and_b32 v39, 15, v1\nv_lshlrev_b32 v39, 4, v39\nbuffer_load_dword v38, v39, s[44:47], 0 offen sc1'))
        elif x == 'GATE2' and OPT.get('mega'):
            F.run(G('v_cmp_gt_u32 vcc, 16, v38\ns_cmp_lg_u32 s51, 0\ns_cbranch_scc1 K1_GOK'))
            keep = [set(q) for q in F.vmq]
            F.run(G('''s_mov_b32 s10, 0
            K1_GPOLL:
            s_cmp_eq_u32 vcc_lo, 0
            s_cbranch_scc1 K1_GOK
            s_sleep 16
            buffer_load_dword v38, v39, s[44:47], 0 offen sc1
            s_add_u32 s10, s10, 1
            s_waitcnt vmcnt(0)
            v_cmp_gt_u32 vcc, 16, v38
            s_cmp_lt_u32 s10, 0x10000
            s_cbranch_scc1 K1_GPOLL
            K1_GOK:'''))
            F.vmq = keep
        elif isinstance(x, tuple) and x[0] == 'RESETQ':
            F.vmq = keepq; F.lgq = keepl
        elif isinstance(x, tuple) and x[0] == 'SAVEQ':
            keepq = [set(q) for q in F.vmq]; keepl = [(set(a), b) for a, b in F.lgq]
        elif x == 'ENTRY1':
            F.run(G('''s_lshl_b32 s67, s48, 8
            s_add_u32 s67, s67, %d
            v_lshlrev_b32 v37, 2, v1
            v_mov_b32 v6, 0
            buffer_load_dword v36, v37, s[40:43], s67 offen sc1''' % (FL_OFF - ST_OFF)))
        elif x == 'ENTRY2':
            F.run(G('''v_add_u32 v36, 1, v36
            v_mov_b32 v7, 1
            s_lshl_b32 s9, s48, 4
            s_cmp_lg_u32 s51, 0
            s_cbranch_scc1 K1_NOENT
            s_mov_b64 exec, 1'''))
            F.add(I('buffer_atomic_add v7, v6, s[44:47], s9 offen sc1')); F.vmq.pop()
            F.run(G('s_mov_b64 exec, -1\nK1_NOENT:'))
        elif x == 'GATE1':
            F.run(G('buffer_load_dword v38, v6, s[44:47], s9 offen sc1'))
        elif x == 'GATE2':
            F.run(G('v_mov_b32 v39, v38\ns_cmp_lg_u32 s51, 0\ns_cbranch_scc1 K1_NOPOLLG'))
            keep = [set(q) for q in F.vmq]
            P = Stream(); poll(P, 'G', 38, 6)
            F.run([y for y in P if not isinstance(y, tuple)]); F.vmq = keep
        elif x == 'FLAG':
            F.run(G('''s_cmp_lg_u32 s51, 0
            s_cbranch_scc1 K1_NOAT
            s_lshl_b64 exec, 1, s49'''))
            F.add(I('buffer_store_dword v36, v37, s[40:43], s67 offen sc1')); F.vmq.pop()
            F.run(G('s_mov_b64 exec, -1\nK1_NOAT:'))
        elif x == 'FISSUE':
            F.run(G('buffer_load_dword v3, v37, s[40:43], s67 offen sc1'))
        elif x == 'FCHECK':
            F.run(G('v_mov_b32 v39, v3\ns_cmp_lg_u32 s51, 0\ns_cbranch_scc1 K1_FOK'))
            keep = [set(q) for q in F.vmq]
            F.run(G('''s_mov_b32 s10, 0
            K1_FPOLL:
            v_cmp_ne_u32 vcc, v3, v36
            s_and_b32 s11, vcc_lo, 0xffff
            s_cbranch_scc0 K1_FOK
            s_sleep %d
            buffer_load_dword v3, v37, s[40:43], s67 offen sc1
            s_add_u32 s10, s10, 1
            s_cmp_lt_u32 s10, 0x20000
            s_waitcnt vmcnt(0)
            s_cbranch_scc1 K1_FPOLL
            K1_FOK:''' % OPT.get('slp', 4)))
            F.vmq = keep
        elif x == 'POLLCHECK':
            P = Stream()
            P('s_cmp_lg_u32 s51, 0\ns_cbranch_scc1 K1_NOPOLLH')
            F.run(P); keep = [set(q) for q in F.vmq]
            P = Stream(); P('s_waitcnt vmcnt(0)'); poll(P, 'H', 3, 6)
            F.run([y for y in P if not isinstance(y, tuple)]); F.vmq = keep
        elif x == 'ZERO':
            Z = Stream()
            Z('s_or_b32 s12, s2, s51\ns_cmp_lg_u32 s12, 0\ns_cbranch_scc1 K1_NOZ')
            srd(Z, 4, 14, 15, CN_SZ, CN_OFF)
            Z('v_lshlrev_b32 v33, 6, v1\nv_mov_b32 v32, 0')
            F.run(Z)
            F.add(I('buffer_store_dword v32, v33, s[4:7], 0 offen')); F.vmq.pop()
            F.run(G('K1_NOZ:'))
        elif x == 'ATOMIC':
            F.run(G('''s_cmp_lg_u32 s51, 0
            s_cbranch_scc1 K1_NOAT
            v_mov_b32 v7, 1
            s_mov_b64 exec, 1'''))
            F.add(I('buffer_atomic_add v7, v6, s[44:47], s9 offen sc1')); F.vmq.pop()
            F.run(G('s_mov_b64 exec, -1\nK1_NOAT:'))
        else:
            F.add(x)

def table_text():
    out = ['.p2align 8', 'K1_TAB:']
    for rg in range(4):
        vals = []
        for lane in range(64):
            v = []
            zq = []
            for e in range(5):
                i = 64 * (rg + 4 * e) + lane
                row, p = divmod(i, 20)
                sh = 2 * ((row >> 3) & 1)
                v.append(row * 9216 + (p ^ (0 if OPT.get('m32') else sh)) * 16)
                pp = p - sh
                if OPT.get('qpack'): zq.append(row * 288 + pp * 16 if 0 <= pp < 18 else 0x7f000000)
                else: zq.append(row * 3456 + (1152, 2304, 0)[pp // 6] + (pp % 6) * 16 if 0 <= pp < 18 else 0x7f000000)
            hi = 4 * rg + (lane >> 4); g = lane & 3
            v += zq + [XH_OFF + ((lane >> 2) & 3) * 1024 + (g * 16 + (hi ^ g)) * 16, (hi * 1152 + (lane & 7) * 16)]
            for e in range(3):
                i = 162 * rg + 64 * e + lane
                row, pp = divmod(i, 18)
                v.append(row * 3456 + (1152, 2304, 0)[pp // 6] + (pp % 6) * 16 if 64 * e + lane < 162 else 0x7f000000)
            v.append(0)
            vals.append(v)
        for q in range(4):
            for l0 in range(0, 64, 4):
                out.append('.long ' + ','.join(str(x) for l in range(l0, l0 + 4) for x in vals[l][4 * q:4 * q + 4]))
    return '\n'.join(out) + '\n'

def gen_k1(stamp=False, xmap='84', rot=True, **opt):
    OPT.clear(); OPT.update(opt); V2.OPT.clear()
    global stamp_mid
    import common
    if OPT.get('ptrace'):
        seen = {}
        def sm(S, r):
            k = (id(S), r)
            if r == 88 and k in seen: r = 70
            k = (id(S), r)
            if k in seen: return
            seen[k] = 1
            if r == 70: common.stamp_mid(S, 66); return
            common.stamp_mid(S, r)
        stamp_mid = sm
    else:
        stamp_mid = common.stamp_mid
    F = Finisher()
    S = Stream()
    head(S, stamp, xmap, rot)
    F.run(S)
    txt = F.text()
    zzq = OPT.get('zzq')
    PH[1:] = [('Z1', 9216, 0), ('Q', 3456, 0)] if zzq else [('Q', 3456, 0), ('Z1', 9216, 0)]
    V2.QB_OFF = QB_OFF; V2.VOFF = 72; V2.QOFF = 144
    comp = compute2 if zzq else compute
    if OPT.get('m32'):
        import k1c32
        comp = k1c32.compute32
    for role in (comp, helper):
        G2 = Finisher()
        G2.vmq = [set(x) for x in F.vmq]; G2.lgq = [(set(a), b) for a, b in F.lgq]; G2.hist = list(F.hist)
        emit(G2, role(stamp))
        if role is not helper: OPT['cons_state'] = ([set(x) for x in G2.vmq], [(set(a), b) for a, b in G2.lgq])
        txt += G2.text()
    return txt, 256

def pace(items, dl=8, dm=4):
    flat = []
    for x in items:
        if isinstance(x, list) and not any('exec' in y.writes or 'vcc' in y.writes for y in x): flat.extend(x)
        else: flat.append(x)
    out = []; ready = {}
    k = 0
    while k < len(flat):
        x = flat[k]
        grp = list(x) if isinstance(x, list) else [x]
        k += 1
        while not isinstance(x, list) and x.kind == 'salu' and k < len(flat) and not isinstance(flat[k], list):
            x = flat[k]; grp.append(x); k += 1
        need = 0
        for y in grp:
            for r in y.reads | y.writes:
                t, kind = ready.get(r, (0, ''))
                if kind == 'valu' and not (y.dpp or y.op.startswith('v_permlane') or y.kind in ('mfma', 'ds', 'vmem')): continue
                need = max(need, t)
        while len(out) < need: out.append(None)
        out.append(grp)
        for y in grp:
            d = {'ds': dl, 'mfma': dm, 'trans': 0, 'valu': 1}.get(y.kind, 0)
            for r in y.writes: ready[r] = (len(out) + d, y.kind)
    return out

def pf_setup(S):
    S("""s_load_dwordx2 s[20:21], s[0:1], 56
    s_load_dwordx2 s[24:25], s[0:1], 16
    s_mov_b32 s4, s10
    s_or_b32 s5, s11, 0x800000
    s_mov_b32 s6, %d
    s_mov_b32 s7, 0x00020000
    s_mov_b32 s22, %d
    s_mov_b32 s23, 0x00020000
    s_mov_b32 s26, %d
    s_mov_b32 s27, 0x00020000
    s_lshl_b32 s8, s2, 15
    s_lshl_b32 s9, s51, 11
    s_add_u32 s8, s8, s9
    s_mul_i32 s9, s2, 10368
    s_mul_i32 s10, s51, 2688
    s_add_u32 s9, s9, s10
    s_min_u32 s9, s9, 2651520
    s_mul_i32 s10, s2, 2688
    s_mul_i32 s11, s51, 768
    s_add_u32 s10, s10, s11
    s_min_u32 s10, s10, 662784
    s_mov_b32 m0, %d
    s_waitcnt lgkmcnt(0)
    s_or_b32 s21, s21, 0x800000
    s_or_b32 s25, s25, 0x800000""" % (2048 * 32, 2304 * 9, 576 * 9, SB_OFF))
def ws_touch(k):
    g = Stream()
    if k == 0:
        g("""s_add_u32 s16, s14, 0x%x
        s_addc_u32 s17, s15, 0
        s_or_b32 s17, s17, 0x800000
        s_mov_b32 s18, %d
        s_mov_b32 s19, 0x00020000
        s_lshl_b32 s64, s49, 6
        s_lshl_b32 s65, s48, 2
        s_add_u32 s64, s64, s65
        s_add_u32 s64, s64, s51
        s_mul_i32 s64, s64, 9216
        s_lshl_b32 s65, s48, 3
        s_lshl_b32 s66, s51, 1
        s_add_u32 s65, s65, s66
        s_mul_i32 s65, s65, 92160
        s_mul_i32 s66, s49, 4608
        s_add_u32 s65, s65, s66
        s_add_u32 s65, s65, %d
        buffer_load_dword v1, s[16:19], s64 idxen lds""" % (Z2P_OFF, 64, AP_OFF - Z2P_OFF + 18 * 1024))
    elif k == 1:
        g("""s_add_u32 s64, s64, 8192
        s_mov_b64 exec, 0xff
        buffer_load_dword v1, s[16:19], s64 idxen lds
        s_mov_b64 exec, -1""")
    else:
        g("""s_mov_b32 exec_hi, 15
        buffer_load_dword v1, s[16:19], s65 idxen lds
        s_mov_b32 exec_hi, -1
        s_add_u32 s65, s65, 92160""")
    return list(g)
def w_touch(kind, j):
    g = Stream()
    if kind == 'Q':
        g("""s_load_dwordx2 s[16:17], s[0:1], 8
        s_mov_b32 s18, 64
        s_mov_b32 s19, 0x00020000
        s_mul_i32 s64, s%d, %d
        s_mul_i32 s65, s49, 72
        s_and_b32 s65, s65, -32
        s_add_u32 s64, s64, s65
        s_min_u32 s65, s51, 2
        s_mul_i32 s65, s65, 1152
        s_add_u32 s64, s64, s65
        s_waitcnt lgkmcnt(0)
        s_or_b32 s17, s17, 0x%x
        buffer_load_dword v1, s[16:19], s64 idxen lds
        buffer_load_dword v1, s[16:19], s64 idxen offset:92 lds""" % (sBLK + j, 64 * 3456, 3456 << 16))
    else:
        g("""s_load_dwordx2 s[16:17], s[0:1], 32
        s_mov_b32 s18, 64
        s_mov_b32 s19, 0x00020000
        s_mul_i32 s64, s%d, %d
        s_mul_i32 s65, s49, 288
        s_and_b32 s65, s65, -64
        s_add_u32 s64, s64, s65
        s_lshl_b32 s65, s51, 7
        s_min_u32 s65, s65, 316
        s_add_u32 s64, s64, s65
        s_waitcnt lgkmcnt(0)
        s_or_b32 s17, s17, 0x%x
        buffer_load_dword v1, s[16:19], s64 idxen lds""" % (sBLK + j, 64 * 9216, 9216 << 16))
    return list(g)
def pf_touch(k):
    if k < 4:
        return G("""s_mov_b64 exec, 0xffff
        buffer_load_dword v1, s[4:7], s8 idxen lds
        s_mov_b64 exec, -1
        s_add_u32 s8, s8, 8192""")
    return G("""s_mov_b64 exec, 0x%x
    buffer_load_dword v1, s[%s], s%d idxen lds
    s_mov_b64 exec, -1""" % ((0x1fffff, '20:23', 9) if k == 4 else (0x3f, '24:27', 10)))

def compute(stamp):
    S = Stream()
    vXe = 6; vXo = 7
    xloads(S, [0])
    common_setup(S)
    if OPT.get('x01') == 1: xloads(S, [1])
    if not OPT.get('mega'): srd(S, 32, 14, 15, Z1P_SZ, Z1P_OFF)
    if OPT.get('pfc'): pf_setup(S)
    S('''
    s_mul_i32 s63, s51, %d
    s_add_u32 s63, s63, %d
    v_add_u32 v6, s63, v6
    v_xor_b32 v7, 64, v6
    ''' % (2 * P1, T1_OFF))
    if OPT.get('x01') == 2: xloads(S, [1])
    if stamp: stamp_mid(S, 86)
    layernorm(S, [0, 1, 2], mid=sum([pf_touch(0) for _ in range(OPT.get('pfp', 0))], []))
    for q in range(2 * NR1):
        for b in range(2):
            S('ds_read_b128 %s, v%d offset:%d' % (xf(q, b), vXo if q & 1 else vXe, b * P1 + q * 1024), tok_w=['TR'])
    for j in range(NR1, 9): norm4(S, ln(2, j), ST + 4, ST + 6)
    t2_addr(S)
    S('s_mul_i32 s63, s51, %d' % (2 * (P2 - P1)))
    S('s_add_u32 s63, s63, %d' % (T2_OFF - T1_OFF))
    S.need('TR')
    S('s_barrier')
    S('v_add_u32 v6, s63, v6')
    S('v_add_u32 v7, s63, v7')
    S('s_setprio %d' % OPT.get('prio', 2))
    if stamp: stamp_mid(S, 88)
    ntile = [9, 7, 9]
    def acc(c, b): return ACC + (c * 2 + b) * 4
    hA = ACC + 56; hX = ACC + 64; hW = ACC + 68
    vTa = 2; vTb = 3; vq2 = 6; vq4 = 8; vQb = 5; vXH = 9; vqh = 7; vTs = 4
    frs = [(n, ks, c) for n in range(27) for ks in range(2) for c in range(ntile[n // 9])]
    TM = OPT.get('tm')
    if TM:
        def order(n):
            nt = ntile[n // 9]
            if n == 18: return [(ks, c) for c in range(nt) for ks in range(2)]
            return [(ks, c) for ks in range(2) for c in range(nt)]
        frs = [(n, ks, c) for n in range(27) for ks, c in order(n)]
    bias = {}
    extra_tok = {1: ['T2'], 9: ['TR2'], 10: ['HB'], 18: ['XHR'], (20 if TM else 19): ['QB']}
    QIMM = {0: 0, 1: 32, 3: 120, 5: 160 + 48, 6: 192 + 48}
    def zaddr(mode):
        g = Stream()
        g("""v_bfe_u32 v15, v1, 4, 1
        v_lshlrev_b32 v15, 5, v15""")
        if mode == 0:
            g("""s_cmp_eq_u32 s52, 0
            s_cselect_b32 s98, 1, -1
            s_lshl_b32 s99, s52, 5
            v_mul_lo_u32 v15, v15, s98
            v_add3_u32 v%d, v%d, v15, s99
            v_sub_u32 v%d, v%d, v15
            v_add_u32 v%d, s99, v%d""" % (vTa, vT, vTb, vT, vTb, vTb))
        else:
            g("""s_lshl_b32 s99, s52, 6
            v_add3_u32 v%d, v%d, v15, s99
            v_sub_u32 v%d, v%d, v15
            v_add_u32 v%d, 256, v%d
            v_add_u32 v15, 32, v%d
            s_cmp_eq_u32 s52, 0
            s_cselect_b64 vcc, -1, 0
            v_cndmask_b32 v%d, v15, v%d, vcc
            v_add_u32 v%d, s99, v%d
            v_add_u32 v%d, %d, v%d
            v_add_u32 v%d, %d, v%d
            v_add_u32 v%d, %d, v%d""" % (vTa, vT, vTb, vT, vTs, vTa, vTb, vTs, vTs, vTb, vTb, vTa, 2 * SLOT, vTa, vTb, 2 * SLOT, vTb, vTs, 2 * SLOT, vTs))
        return g
    def qaddr():
        g = Stream()
        g("""v_bfe_u32 v15, v1, 4, 1
        v_lshlrev_b32 v15, 5, v15
        s_mul_i32 s98, s49, 72
        s_and_b32 s98, s98, 31
        v_add3_u32 v{qb}, v{T}, v15, s98
        v_and_b32 v15, 3, v1
        v_cmp_le_u32 vcc, 2, v15
        v_cndmask_b32 v14, 0, 24, vcc
        v_add_u32 v14, 152, v14
        v_add_u32 v{q4}, v{qb}, v14
        v_cmp_le_u32 vcc, 1, v15
        v_cndmask_b32 v14, 0, 24, vcc
        v_add_u32 v14, 64, v14
        v_add_u32 v{q2}, v{qb}, v14
        s_lshl_b32 s69, s51, 5
        s_cmp_eq_u32 s51, 3
        s_cselect_b32 s99, 24, 0
        s_add_u32 s99, s99, s69
        v_add_u32 v{qh}, s99, v{qb}
        s_cmp_eq_u32 s51, 2
        s_cselect_b64 vcc, -1, 0
        v_cndmask_b32 v{qh}, v{qh}, v{q2}, vcc
        v_and_b32 v14, 15, v1
        v_lshrrev_b32 v15, 4, v1
        v_xor_b32 v14, v14, v15
        v_lshl_add_u32 v14, v15, 4, v14
        v_lshlrev_b32 v14, 4, v14
        v_add_u32 v{xh}, {XH}, v14""".format(qb=vQb, T=vT, q4=vq4, q2=vq2, qh=vqh, xh=vXH, XH=XH_OFF))
        return g
    def toggle(g, ar, n):
        want = (n & 3) >> 1
        if bias.get(ar, 0) != want:
            g('v_add_u32 v%d, %d, v%d' % (ar, 2 * SLOT if want else -2 * SLOT, ar))
            bias[ar] = want
    def halo_read(q):
        g = Stream()
        n = 9 + q // 2
        g('ds_read_b128 %s, v%d offset:%d' % (q4(hX), vXH, q * 1024), tok_w=['XHR'])
        toggle(g, vqh, n)
        for hh in range(2):
            g('ds_read_b64_tr_b16 v[%d:%d], v%d offset:%d' % (hW + 2 * hh, hW + 2 * hh + 1, vqh, (n & 1) * SLOT + (q & 1) * 10240 + hh * 1280))
        return g
    def read(f):
        n, ks, c = frs[f]
        ph = n // 9
        g = Stream()
        if ks == 0 and c == 0:
            if n > 0:
                if n in extra_tok: g.need(*extra_tok[n])
                if n > 10: g.need('ZCdone')
                g('s_barrier')
            if n == 0: g.extend(zaddr(0))
            if n == 18:
                for r in (vTa, vTb, vTs): bias[r] = 1
        if ph == 0: ar, coff = (vTb if c & 1 else vTa), 32 * c
        elif ph == 1: ar, coff = (vq2, 0) if c == 2 else ((vq4, 0) if c == 4 else (vQb, QIMM[c]))
        else: ar, coff = ((vTb if c & 1 else vTa), 32 * c) if c < 8 else (vTs, 0)
        toggle(g, ar, n)
        r = WFR + (f % NRING) * 4
        for hh in range(2):
            if OPT.get('halfread') and hh == 1:
                g('s_nop 0'); continue
            g('ds_read_b64_tr_b16 v[%d:%d], v%d offset:%d' % (r + 2 * hh, r + 2 * hh + 1, ar, (n & 1) * SLOT + ks * 10240 + hh * 1280 + coff))
        return g
    D = NRING - 1
    for f in range(D): S.extend(read(f))
    def tmpr(ph, c, b):
        pairs = [12, 14, 2] if ph == 0 else [12, 14, 6, 8]
        return pairs[(2 * c + b) % len(pairs)]
    def cvt(ph, c, b):
        a = acc(c, b); t = tmpr(ph, c, b)
        return G('v_cvt_pk_bf16_f32 v%d, v%d, v%d\nv_cvt_pk_bf16_f32 v%d, v%d, v%d' % (t, a, a + 1, t + 1, a + 2, a + 3))
    def cvti(a):
        return G('v_cvt_pk_bf16_f32 v%d, v%d, v%d\nv_cvt_pk_bf16_f32 v%d, v%d, v%d' % (a, a, a + 1, a + 1, a + 2, a + 3))
    def dw(ph, c, b, src=None):
        t = tmpr(ph, c, b) if src is None else src
        if OPT.get('nodw'): return []
        if ph == 0:
            return G('ds_write_b64 v10, v[%d:%d] offset:%d' % (t, t + 1, 16 * b * ZP + 32 * c), tok_w=['HB'])
        return G('ds_write_b64 v11, v[%d:%d] offset:%d' % (t, t + 1, (16 + 16 * b) * QP + 32 * c), tok_w=['QB'])
    x2 = Stream()
    for q in range(2 * NR1, 18):
        for b in range(2):
            x2('ds_read_b128 %s, v%d offset:%d' % (xf(q, b), vXo if q & 1 else vXe, b * P2 + (q - 2 * NR1) * 1024), tok_w=['TR2'])
    t2 = t2_writes([0, 1, 2])
    addr = G('''
    v_and_b32 v10, 15, v1
    s_lshl_b32 s98, s51, 5
    v_add_u32 v10, s98, v10
    v_mul_u32_u24 v11, %d, v10
    v_mul_u32_u24 v10, %d, v10
    v_lshrrev_b32 v12, 4, v1
    v_lshlrev_b32 v12, 3, v12
    s_mov_b32 s98, %d
    v_add3_u32 v10, v10, v12, s98
    s_mov_b32 s98, %d
    v_add3_u32 v11, v11, v12, s98
    ''' % (QP, ZP, ZB_OFF, QB_OFF))
    hw = G('s_mul_i32 s98, s51, %d\nv_subrev_u32 v5, s98, v11\nv_add_u32 v38, s69, v5' % (32 * QP))
    NC = OPT.get('nc', 0)
    share = []
    for k in range(NC):
        c = 9 - NC + k
        g = Stream()
        off = 16 * ZP + 32 * c
        g('ds_read_b64 v[12:13], v10 offset:%d' % off)
        for _ in range(OPT.get('rgap', 6)): g.append(None)
        g("""v_and_b32 v15, 0xffff0000, v13
        v_lshlrev_b32 v14, 16, v13
        v_and_b32 v13, 0xffff0000, v12
        v_lshlrev_b32 v12, 16, v12""")
        gelu4(g, 12, 36, c2=0)
        g('v_cvt_pk_bf16_f32 v36, v12, v13')
        g('v_cvt_pk_bf16_f32 v37, v14, v15')
        g('ds_write_b64 v10, v[36:37] offset:%d' % off, tok_w=['ZCdone'] if k == NC - 1 else [])
        share.append(list(g))
    light = [[3, list(addr) + list(qaddr()) + G('s_mov_b32 s78, 0x%x\nv_mov_b32 v0, 0x%x' % (fbits(C1), fbits(C2)))], [10, list(zaddr(1))]]
    cur = []
    zc_step = [None]
    att = []
    if OPT.get('attgap'):
        V2.S1 = XF; V2.QB_OFF = QB_OFF; V2.VOFF = 72; V2.QOFF = 144
        att = pace(V2.attention(0))
        print('att gaps', len(att))
    for f, (n, ks, c) in enumerate(frs):
        ph, j = divmod(n, 9)
        q = 2 * j + ks
        r = WFR + (f % NRING) * 4
        if stamp and q == 0 and c == 0 and ph > 0 and not OPT.get('trace'): stamp_mid(S, 88 + 2 * ph)
        hand = (q == 0 and ph > 0)
        if hand and c == 0:
            if ph == 2: S.extend(hw)
            S.extend(cvt(ph - 1, 0, 0))
        rd = read(f + D) if f + D < len(frs) else []
        if f % 2 == 0 and f + 1 < len(frs) and not OPT.get('allwait'):
            r1 = WFR + ((f + 1) % NRING) * 4
            S.need(*['v%d' % k for k in range(r1, r1 + 4)])
        for b in range(2):
            a = acc(c, b)
            S('v_mfma_f32_16x16x32_bf16 %s, %s, %s, %s' % (q4(a), q4(r), xf(q, b), '0' if q == 0 else q4(a)))
            S.extend(rd[:-1] if b == 0 else rd[-1:])
            if TM and n == 18:
                if c < 7:
                    if ks == 0 and b == 0: S.extend(cvt(1, c, 1))
                    if ks == 0 and b == 1: S.extend(dw(1, c, 0))
                    if ks == 1 and b == 0: S.extend(dw(1, c, 1))
                    if ks == 1 and b == 1 and c < 6: S.extend(cvt(1, c + 1, 0))
                if c == 2 and ks == 0: S.extend(cvti(acc(7, b)))
                if c == 3 and ks == 1: S.extend(G('ds_write_b64 v%d, v[%d:%d] offset:%d' % (5 if b else 38, hA + 4 * b, hA + 4 * b + 1, 128 * b), tok_w=['QB']))
            elif hand and c < 7:
                S.extend(dw(ph - 1, c, b))
                if ph == 1:
                    if c in (1, 2): S.extend(dw(0, 6 + c, b, acc(6 + c, b)))
                    if c == 2 and b == 1: S.extend(halo_read(0))
                else:
                    if c == 1: S.extend(G('ds_write_b64 v%d, v[%d:%d] offset:%d' % (5 if b else 38, hA + 4 * b, hA + 4 * b + 1, 128 * b), tok_w=['QB']))
                if 2 * c + b + 1 < 14: S.extend(cvt(ph - 1, c + b, 1 - b))
                if c == 0 or (c == 1 and ph == 1): S.extend(cvti(acc(7 + c, b)))
            if OPT.get('pfc') and n in OPT['pfc'] and ks == 1 and c == 0 and b == 0: S.extend(pf_touch(OPT['pfc'].index(n)))
            if OPT.get('mega') and not OPT.get('qpack') and ks == 0 and c == 2 and b == 0 and n in (1, OPT.get('arr', 8)): S.append('CZERO' if n == 1 else 'CARRIVE')
            if OPT.get('wtch') and n in OPT['wtch'] and ks == 0 and c == 5 and b == 0: S.extend(w_touch(*OPT['wtch'][n]))
            if OPT.get('wst') and n in OPT['wst'] and ks == 1 and c == 3 and b == 0: S.extend(ws_touch(OPT['wst'].index(n)))
            if n == 0 and t2 and b == 1: S.append(t2.pop(0))
            if n in (1, 2) and x2 and b == 1 and (n == 2 or ks == 1 or c > 0): S.append(x2.pop(0))
            gaps_left = sum(2 for ff in range(f, len(frs)) if frs[ff][0] < 18) - 12
            if not cur and share and not (light and n >= light[0][0]) and n >= 10 and (n >= 19 or gaps_left > len(share[0])) and not hand:
                cur.extend(share.pop(0))
            if cur:
                x = cur.pop(0)
                if x is not None: S.append(x)
                if not cur and not share: zc_step[0] = n
            elif att and n >= OPT['attgap']:
                x = att.pop(0)
                if x is not None: S.extend(x)
            elif light and n >= light[0][0]:
                x = light[0][1].pop(0); S.append(x)
                while x.kind == 'salu' and light[0][1]:
                    x = light[0][1].pop(0); S.append(x)
                if not light[0][1]: light.pop(0)
        if ph == 1 and c == 4:
            S('v_mfma_f32_16x16x32_bf16 %s, %s, %s, %s' % (q4(hA + 4), q4(r), q4(hX), '0' if q == 0 else q4(hA + 4)))
        if ph == 1 and c == 5:
            S('v_mfma_f32_16x16x32_bf16 %s, %s, %s, %s' % (q4(hA), q4(hW), q4(hX), '0' if q == 0 else q4(hA)))
            if q < 17 and (q & 1) == 0: S.extend(halo_read(q + 1))
        if ph == 1 and c == 6 and q < 17 and (q & 1) == 1: S.extend(halo_read(q + 1))
    assert not t2 and not x2 and not share and not cur
    OPT['zc_step'] = zc_step[0]
    for x in att:
        if x is not None: S.extend(x)
    n2a, n2b = norm_z2(range(NZC), (112, 144, 160, 2) if OPT.get('mega') else (176, 208, 244, 248))
    if OPT.get('mega'): OPT['mega'].cons_early(S)
    if not OPT.get('early'):
        S('s_barrier')
        S.extend(n2a)
    elif OPT.get('mega'): S('s_barrier')
    if stamp: stamp_mid(S, 94)
    S('''
    s_lshl_b32 s63, s48, 3
    s_lshl_b32 s98, s51, 1
    s_add_u32 s63, s63, s98
    s_mul_i32 s63, s63, 72
    s_mul_i32 s98, s49, 9
    s_add_u32 s98, s98, s52
    s_lshr_b32 s98, s98, 1
    s_add_u32 s63, s63, s98
    s_lshl_b32 s69, s63, 10
    s_add_u32 s70, s69, 73728
    s_cmp_eq_u32 s52, 0
    s_cselect_b32 s63, 4608, 0
    s_sub_u32 s63, s63, 512
    s_add_u32 s71, s69, s63
    s_add_u32 s72, s70, s63
    v_lshlrev_b32 v10, 4, v1
    v_lshrrev_b32 v12, 5, v1
    v_lshlrev_b32 v12, 8, v12
    v_and_b32 v13, 15, v1
    v_lshl_add_u32 v12, v13, 4, v12
    v_bfe_u32 v13, v1, 4, 1
    v_lshl_add_u32 v12, v13, 3, v12
    ''')
    G1 = OPT.get('gelu1', False)
    if G1:
        S('s_mov_b32 s78, 0x%x' % fbits(C1))
        S('v_mov_b32 v%d, 0x%x' % (vC2, fbits(C2)))
    for p in range(4):
        for b in range(2):
            a0 = acc(2 * p, b); a1 = acc(2 * p + 1, b)
            if G1: gelu4(S, a0, XF); gelu4(S, a1, XF + 4)
            o = XF + 8 + 4 * (2 * p + b) if not OPT.get('mega') else 168 + (b * 4 + p) * 4
            S('v_cvt_pk_bf16_f32 v%d, v%d, v%d' % (o, a0, a0 + 1))
            S('v_cvt_pk_bf16_f32 v%d, v%d, v%d' % (o + 1, a0 + 2, a0 + 3))
            S('v_cvt_pk_bf16_f32 v%d, v%d, v%d' % (o + 2, a1, a1 + 1))
            S('v_cvt_pk_bf16_f32 v%d, v%d, v%d' % (o + 3, a1 + 2, a1 + 3))
            for d in range(2): S('v_permlane32_swap_b32 v%d, v%d' % (o + d, o + 2 + d))
            for d in range(2): S('v_permlane16_swap_b32 v%d, v%d' % (o + d, o + 2 + d))
            if not OPT.get('mega'): S('buffer_store_dwordx4 %s, v10, s[32:35], s%d offen offset:%d' % (q4(o), 69 + b, p * 1024))
    for b in range(2):
        a0 = acc(8, b)
        if G1: gelu4(S, a0, XF)
        o = XF + 40 + 2 * b if not OPT.get('mega') else 200 + 2 * b
        S('v_cvt_pk_bf16_f32 v%d, v%d, v%d' % (o, a0, a0 + 1))
        S('v_cvt_pk_bf16_f32 v%d, v%d, v%d' % (o + 1, a0 + 2, a0 + 3))
        if not OPT.get('mega'): S('buffer_store_dwordx2 v[%d:%d], v12, s[32:35], s%d offen' % (o, o + 1, 71 + b))
    V2.S1 = 40; V2.QB_OFF = QB_OFF; V2.VOFF = 72; V2.QOFF = 144
    ost = []
    if not OPT.get('attgap'):
        for x in V2.attention(0):
            if OPT.get('mega') and isinstance(x, list) and any(y.kind == 'vmem' for y in x): ost.append(x)
            else: S.append(x)
    if OPT.get('late'): S('s_barrier')
    if not OPT.get('early'): S.extend(n2b)
    S.extend(ost)
    OPT['n_ost'] = sum(1 for x in ost for y in x if y.kind == 'vmem')
    if stamp:
        stamp_mid(S, 96)
        if not OPT.get('mega'): S('s_waitcnt vmcnt(0)')
        stamp_mid(S, 70)
        stamp_store(S, 84, [86, 88, 90, 92, 94, 96, 70 if not OPT.get('ptrace') else 66], 14, 0, 72, 12, wave_s=50)
    if OPT.get('mega'): S('s_branch K2_CONS')
    else: S('s_endpgm')
    return S

def compute2(stamp):
    S = Stream()
    vXe = 6; vXo = 7
    xloads(S, [0])
    common_setup(S)
    srd(S, 32, 14, 15, Z1P_SZ, Z1P_OFF)
    S('''
    s_mul_i32 s63, s51, %d
    s_add_u32 s63, s63, %d
    v_add_u32 v6, s63, v6
    v_xor_b32 v7, 64, v6
    ''' % (2 * P1, T1_OFF))
    if stamp: stamp_mid(S, 86)
    layernorm(S, [0, 1, 2])
    for q in range(2 * NR1):
        for b in range(2):
            S('ds_read_b128 %s, v%d offset:%d' % (xf(q, b), vXo if q & 1 else vXe, b * P1 + q * 1024), tok_w=['TR'])
    for j in range(NR1, 9): norm4(S, ln(2, j), ST + 4, ST + 6)
    t2_addr(S)
    S('s_mul_i32 s63, s51, %d' % (2 * (P2 - P1)))
    S('s_add_u32 s63, s63, %d' % (T2_OFF - T1_OFF))
    S.need('TR')
    S('s_barrier')
    S('v_add_u32 v6, s63, v6')
    S('v_add_u32 v7, s63, v7')
    S('s_setprio %d' % OPT.get('prio', 2))
    if stamp: stamp_mid(S, 88)
    ntile = [9, 9, 7]
    def acc(c, b): return ACC + (c * 2 + b) * 4
    hA = ACC + 56; hX = ACC + 64; hW = ACC + 68
    vTa = 2; vTb = 3; vq2 = 2; vq4 = 3; vQb = 4; vXH = 9; vqh = 8; vZa = 5; vZb = 6; vTs = 7
    frs = [(n, ks, c) for n in range(27) for ks in range(2) for c in range(ntile[n // 9])]
    def order(n):
        nt = ntile[n // 9]
        if n == 9: return [(ks, c) for c in range(nt) for ks in range(2)]
        if n == 18: return [(ks, c) for c in range(4) for ks in range(2)] + [(ks, c) for ks in range(2) for c in range(4, 7)]
        return [(ks, c) for ks in range(2) for c in range(nt)]
    frs = [(n, ks, c) for n in range(27) for ks, c in order(n)]
    bias = {}
    extra_tok = {1: ['T2'], 9: ['TR2'], 11: ['HB']}
    QIMM = {0: 0, 1: 32, 3: 120, 5: 160 + 48, 6: 192 + 48}
    def zaddr(mode):
        g = Stream()
        g("""v_bfe_u32 v15, v1, 4, 1
        v_lshlrev_b32 v15, 5, v15""")
        if mode == 0:
            g("""s_cmp_eq_u32 s52, 0
            s_cselect_b32 s98, 1, -1
            s_lshl_b32 s99, s52, 5
            v_mul_lo_u32 v15, v15, s98
            v_add3_u32 v%d, v%d, v15, s99
            v_sub_u32 v%d, v%d, v15
            v_add_u32 v%d, s99, v%d""" % (vTa, vT, vTb, vT, vTb, vTb))
        else:
            g("""s_lshl_b32 s99, s52, 6
            v_add3_u32 v%d, v%d, v15, s99
            v_sub_u32 v%d, v%d, v15
            v_add_u32 v%d, 256, v%d
            v_add_u32 v15, 32, v%d
            s_cmp_eq_u32 s52, 0
            s_cselect_b64 vcc, -1, 0
            v_cndmask_b32 v%d, v15, v%d, vcc
            v_add_u32 v%d, s99, v%d""" % (vZa, vT, vZb, vT, vTs, vZa, vZb, vTs, vTs, vZb, vZb))
        return g
    def qaddr():
        g = Stream()
        g("""v_bfe_u32 v15, v1, 4, 1
        v_lshlrev_b32 v15, 5, v15
        s_mul_i32 s98, s49, 72
        s_and_b32 s98, s98, 31
        s_add_u32 s98, s98, {bias}
        v_add3_u32 v{qb}, v{T}, v15, s98
        v_and_b32 v15, 3, v1
        v_cmp_le_u32 vcc, 2, v15
        v_cndmask_b32 v14, 0, 24, vcc
        v_add_u32 v14, 152, v14
        v_add_u32 v{q4}, v{qb}, v14
        v_cmp_le_u32 vcc, 1, v15
        v_cndmask_b32 v14, 0, 24, vcc
        v_add_u32 v14, 64, v14
        v_add_u32 v{q2}, v{qb}, v14
        s_lshl_b32 s73, s51, 5
        s_cmp_eq_u32 s51, 3
        s_cselect_b32 s99, 24, 0
        s_add_u32 s99, s99, s73
        v_add_u32 v{qh}, s99, v{qb}
        s_cmp_eq_u32 s51, 2
        s_cselect_b64 vcc, -1, 0
        v_cndmask_b32 v{qh}, v{qh}, v{q2}, vcc
        v_and_b32 v14, 15, v1
        v_lshrrev_b32 v15, 4, v1
        v_xor_b32 v14, v14, v15
        v_lshl_add_u32 v14, v15, 4, v14
        v_lshlrev_b32 v14, 4, v14
        v_add_u32 v{xh}, {XH}, v14""".format(qb=vQb, T=vT, q4=vq4, q2=vq2, qh=vqh, xh=vXH, XH=XH_OFF, bias=2 * SLOT))
        return g
    def toggle(g, ar, n):
        want = (n & 3) >> 1
        if bias.get(ar, 0) != want:
            g('v_add_u32 v%d, %d, v%d' % (ar, 2 * SLOT if want else -2 * SLOT, ar))
            bias[ar] = want
    def halo_read(q):
        g = Stream()
        n = 18 + q // 2
        g('ds_read_b128 %s, v%d offset:%d' % (q4(hX), vXH, q * 1024), tok_w=['XHR'])
        toggle(g, vqh, n)
        for hh in range(2):
            g('ds_read_b64_tr_b16 v[%d:%d], v%d offset:%d' % (hW + 2 * hh, hW + 2 * hh + 1, vqh, (n & 1) * SLOT + (q & 1) * 10240 + hh * 1280))
        return g
    def read(f):
        n, ks, c = frs[f]
        ph = n // 9
        g = Stream()
        if ks == 0 and c == 0:
            if n > 0:
                if n in extra_tok: g.need(*extra_tok[n])
                if n > 10: g.need('ZCdone')
                g('s_barrier')
            if n == 0: g.extend(zaddr(0))
            if n == 18:
                for r in (vQb, vq2, vq4, vqh): bias[r] = 1
        if ph == 0: ar, coff = (vTb if c & 1 else vTa), 32 * c
        elif ph == 2: ar, coff = (vq2, 0) if c == 2 else ((vq4, 0) if c == 4 else (vQb, QIMM[c]))
        else: ar, coff = ((vZb if c & 1 else vZa), 32 * c) if c < 8 else (vTs, 0)
        toggle(g, ar, n)
        r = WFR + (f % NRING) * 4
        for hh in range(2):
            if OPT.get('halfread') and hh == 1:
                g('s_nop 0'); continue
            g('ds_read_b64_tr_b16 v[%d:%d], v%d offset:%d' % (r + 2 * hh, r + 2 * hh + 1, ar, (n & 1) * SLOT + ks * 10240 + hh * 1280 + coff))
        return g
    D = NRING - 1
    for f in range(D): S.extend(read(f))
    def tmpr(ph, c, b):
        pairs = [12, 14, 2, 36, 38]
        return pairs[(2 * c + b) % len(pairs)]
    def cvt(ph, c, b):
        a = acc(c, b); t = tmpr(ph, c, b)
        return G('v_cvt_pk_bf16_f32 v%d, v%d, v%d\nv_cvt_pk_bf16_f32 v%d, v%d, v%d' % (t, a, a + 1, t + 1, a + 2, a + 3))
    def cvti(a):
        return G('v_cvt_pk_bf16_f32 v%d, v%d, v%d\nv_cvt_pk_bf16_f32 v%d, v%d, v%d' % (a, a, a + 1, a + 1, a + 2, a + 3))
    def dw(ph, c, b, src=None):
        t = tmpr(ph, c, b) if src is None else src
        if OPT.get('nodw'): return []
        if ph == 0:
            return G('ds_write_b64 v10, v[%d:%d] offset:%d' % (t, t + 1, 16 * b * ZP + 32 * c), tok_w=['HB'])
        return G('ds_write_b64 v11, v[%d:%d] offset:%d' % (t, t + 1, (16 + 16 * b) * QP + 32 * c), tok_w=['QB'])
    x2 = Stream()
    for q in range(2 * NR1, 18):
        for b in range(2):
            x2('ds_read_b128 %s, v%d offset:%d' % (xf(q, b), vXo if q & 1 else vXe, b * P2 + (q - 2 * NR1) * 1024), tok_w=['TR2'])
    t2 = t2_writes([0, 1, 2])
    addr = G('''
    v_and_b32 v10, 15, v1
    s_lshl_b32 s98, s51, 5
    v_add_u32 v10, s98, v10
    v_mul_u32_u24 v11, %d, v10
    v_mul_u32_u24 v10, %d, v10
    v_lshrrev_b32 v12, 4, v1
    v_lshlrev_b32 v12, 3, v12
    s_mov_b32 s98, %d
    v_add3_u32 v10, v10, v12, s98
    s_mov_b32 s98, %d
    v_add3_u32 v11, v11, v12, s98
    ''' % (QP, ZP, ZB_OFF, QB_OFF))
    hw = G('s_mul_i32 s98, s51, %d\nv_subrev_u32 v5, s98, v11\nv_add_u32 v38, s69, v5' % (32 * QP))
    NC = OPT.get('nc', 0)
    share = []
    for k in range(NC):
        c = 9 - NC + k
        g = Stream()
        off = 16 * ZP + 32 * c
        g('ds_read_b64 v[12:13], v10 offset:%d' % off)
        for _ in range(OPT.get('rgap', 6)): g.append(None)
        g("""v_and_b32 v15, 0xffff0000, v13
        v_lshlrev_b32 v14, 16, v13
        v_and_b32 v13, 0xffff0000, v12
        v_lshlrev_b32 v12, 16, v12""")
        gelu4(g, 12, 36, c2=0)
        g('v_cvt_pk_bf16_f32 v36, v12, v13')
        g('v_cvt_pk_bf16_f32 v37, v14, v15')
        g('ds_write_b64 v10, v[36:37] offset:%d' % off, tok_w=['ZCdone'] if k == NC - 1 else [])
        share.append(list(g))
    zoff = G("""
    s_lshl_b32 s63, s48, 3
    s_lshl_b32 s98, s51, 1
    s_add_u32 s63, s63, s98
    s_mul_i32 s63, s63, 72
    s_mul_i32 s98, s49, 9
    s_add_u32 s98, s98, s52
    s_lshr_b32 s98, s98, 1
    s_add_u32 s63, s63, s98
    s_lshl_b32 s69, s63, 10
    s_add_u32 s70, s69, 73728
    s_cmp_eq_u32 s52, 0
    s_cselect_b32 s63, 4608, 0
    s_sub_u32 s63, s63, 512
    s_add_u32 s71, s69, s63
    s_add_u32 s72, s70, s63
    v_lshlrev_b32 v10, 4, v1
    v_lshrrev_b32 v0, 5, v1
    v_lshlrev_b32 v0, 8, v0
    v_and_b32 v13, 15, v1
    v_lshl_add_u32 v0, v13, 4, v0
    v_bfe_u32 v13, v1, 4, 1
    v_lshl_add_u32 v0, v13, 3, v0
    """)
    light = [[3, list(addr) + list(zaddr(1)) + G('s_mov_b32 s78, 0x%x\nv_mov_b32 v0, 0x%x' % (fbits(C1), fbits(C2)))], [10, list(qaddr())], [17, zoff]]
    WT = ' sc1' if OPT.get('wt', 1) else ''
    def cv(o, a): return G('v_cvt_pk_bf16_f32 v%d, v%d, v%d\nv_cvt_pk_bf16_f32 v%d, v%d, v%d' % (o, a, a + 1, o + 1, a + 2, a + 3))
    def pairfin(p, dst):
        g = Stream()
        for sw in ('v_permlane32_swap_b32', 'v_permlane16_swap_b32'):
            for b in range(2):
                for d in range(2): g('%s v%d, v%d' % (sw, dst[b] + d, dst[b] + 2 + d))
        for b in range(2): g('buffer_store_dwordx4 %s, v10, s[32:35], s%d offen offset:%d%s' % (q4(dst[b]), 69 + b, p * 1024, WT))
        return list(g)
    def pair(p):
        dst = [acc(2 * p, 0), acc(2 * p, 1)]
        return cv(dst[0], dst[0]) + cv(dst[1], dst[1]) + cv(dst[0] + 2, acc(2 * p + 1, 0)) + cv(dst[1] + 2, acc(2 * p + 1, 1)) + pairfin(p, dst)
    single = []
    for b in range(2): single += cv(acc(8, b), acc(8, b))
    for b in range(2): single += G('buffer_store_dwordx2 v[%d:%d], v0, s[32:35], s%d offen%s' % (acc(8, b), acc(8, b) + 1, 71 + b, WT))
    zw = [(2, x) for x in cv(14, acc(1, 0)) + cv(38, acc(1, 1))] + [(4, x) for x in pair(1)] + [(6, x) for x in single] + [(7, x) for x in pairfin(0, [12, 36])] + [(8, x) for x in pair(2) + pair(3)]
    cur = []
    zc_step = [None]
    fi = 0
    for f, (n, ks, c) in enumerate(frs):
        ph, j = divmod(n, 9)
        q = 2 * j + ks
        r = WFR + (f % NRING) * 4
        first = (j == 0 and ks == 0 and c == 0)
        if first: fi = 0
        if stamp and first and ph > 0 and not OPT.get('trace'): stamp_mid(S, 88 + 2 * ph)
        if first and ph == 1: S.extend(cvt(0, 0, 0))
        if first and ph == 2:
            assert not light and not cur and not share
            S.extend(cv(12, acc(0, 0)) + cv(36, acc(0, 1)))
        if n == 18: assert not zw or zw[0][0] > fi, (fi, zw[0][0])
        rd = read(f + D) if f + D < len(frs) else []
        if f % 2 == 0 and f + 1 < len(frs) and not OPT.get('allwait'):
            r1 = WFR + ((f + 1) % NRING) * 4
            S.need(*['v%d' % k for k in range(r1, r1 + 4)])
        for b in range(2):
            a = acc(c, b)
            S('v_mfma_f32_16x16x32_bf16 %s, %s, %s, %s' % (q4(a), q4(r), xf(q, b), '0' if q == 0 else q4(a)))
            S.extend(rd[:-1] if b == 0 else rd[-1:])
            if n == 9:
                if ks == 0 and b == 0: S.extend(cvt(0, c, 1))
                if ks == 0 and b == 1: S.extend(dw(0, c, 0))
                if ks == 1 and b == 0: S.extend(dw(0, c, 1))
                if ks == 1 and b == 1 and c < 8: S.extend(cvt(0, c + 1, 0))
            if n == 18:
                for _ in range(OPT.get('zrate', 5)):
                    if zw: S.append(zw.pop(0)[1])
                if fi == 6 and b == 1: S.extend(halo_read(0))
            if n == 0 and t2 and b == 1: S.append(t2.pop(0))
            if n in (1, 2) and x2 and b == 1 and (n == 2 or ks == 1 or c > 0): S.append(x2.pop(0))
            gaps_left = sum(2 for ff in range(f, len(frs)) if frs[ff][0] < 17)
            if not cur and share and not (light and n >= light[0][0]) and n >= 10 and gaps_left > len(share[0]):
                cur.extend(share.pop(0))
            if cur:
                x = cur.pop(0)
                if x is not None: S.append(x)
                if not cur and not share: zc_step[0] = n
            elif light and n >= light[0][0] and n != 9:
                x = light[0][1].pop(0); S.append(x)
                while x.kind == 'salu' and light[0][1]:
                    x = light[0][1].pop(0); S.append(x)
                if not light[0][1]: light.pop(0)
        if ph == 2 and c == 4:
            S('v_mfma_f32_16x16x32_bf16 %s, %s, %s, %s' % (q4(hA + 4), q4(r), q4(hX), '0' if q == 0 else q4(hA + 4)))
        if ph == 2 and c == 5:
            S('v_mfma_f32_16x16x32_bf16 %s, %s, %s, %s' % (q4(hA), q4(hW), q4(hX), '0' if q == 0 else q4(hA)))
            if q < 17 and (q & 1) == 0: S.extend(halo_read(q + 1))
        if ph == 2 and c == 6 and q < 17 and (q & 1) == 1: S.extend(halo_read(q + 1))
        fi += 1
    assert not t2 and not x2 and not share and not cur and not zw
    OPT['zc_step'] = zc_step[0]
    if stamp: stamp_mid(S, 94)
    S('s_mul_i32 s98, s51, %d' % (32 * QP))
    S('v_subrev_u32 v5, s98, v11')
    S('v_add_u32 v6, s73, v5')
    for c in range(8):
        for b in range(2): S.extend(cvti(acc(c, b)))
    S('s_barrier')
    for c in range(7):
        for b in range(2): S.extend(dw(1, c, b, acc(c, b)))
    for b in range(2): S('ds_write_b64 v%d, v[%d:%d] offset:%d' % (5 if b else 6, hA + 4 * b, hA + 4 * b + 1, 128 * b), tok_w=['QB'])
    nz = OPT.get('nzc', 0)
    if nz:
        n2a, n2b = norm_z2(range(nz))
        S.extend(n2a)
    S.need('QB')
    S('s_barrier')
    V2.S1 = 40; V2.QB_OFF = QB_OFF; V2.VOFF = 72; V2.QOFF = 144
    S.extend(V2.attention(0))
    if OPT.get('attc'): S.extend(V2.attention(1))
    if nz: S.extend(n2b)
    if stamp:
        stamp_mid(S, 96)
        S('s_waitcnt vmcnt(0)')
        stamp_mid(S, 70)
        stamp_store(S, 84, [86, 88, 90, 92, 94, 96, 70 if not OPT.get('ptrace') else 66], 14, 0, 72, 12, wave_s=50)
    S('s_endpgm')
    return S

HL = 232
def helper(stamp):
    S = Stream()
    S('K1_HELP:')
    if OPT.get('cpf'): S.extend(code_prefetch('k1_kernel', 'k2_kernel', 1, 40, 34, 64, 12, neg=True))
    S("""s_getpc_b64 s[64:65]
    s_add_u32 s64, s64, K1_TAB@rel32@lo+4
    s_addc_u32 s65, s65, K1_TAB@rel32@hi+12
    s_lshl_b32 s66, s51, 12
    v_lshlrev_b32 v32, 4, v1
    v_add_u32 v32, s66, v32
    v_mov_b32 v33, s65
    v_add_co_u32 v32, vcc, s64, v32
    v_addc_co_u32 v33, vcc, 0, v33, vcc
    global_load_dwordx4 v[16:19], v[32:33], off
    global_load_dwordx4 v[20:23], v[32:33], off offset:1024
    global_load_dwordx4 v[24:27], v[32:33], off offset:2048
    global_load_dwordx4 v[64:67], v[32:33], off offset:3072""")
    if OPT.get('qpack'): S.append('HZERO')
    xloads(S, [0])
    common_setup(S)
    srd(S, 20, 6, 7, 576 * 3456)
    srd(S, 24, 8, 9, 576 * 9216)
    S("""
    s_lshl_b32 s68, s51, 10
    s_mul_i32 s64, s49, 288
    s_and_b32 s64, s64, -64
    s_mul_i32 s65, s49, 72
    s_and_b32 s65, s65, -32
    v_mov_b32 v106, 0x7f000000
    """)
    srd(S, 4, 10, 11, 2048 * 4096)
    vHW = 26; vH0 = 28
    QH = Stream()
    QH("""
    s_mov_b32 s78, 0x%x
    v_mov_b32 v%d, 0x%x
    s_lshl_b32 s8, s2, 15
    s_lshl_b32 s9, s51, 11
    s_add_u32 s8, s8, s9
    v_lshlrev_b32 v8, 7, v1
    s_mul_i32 s98, s48, %d
    s_sub_u32 s98, s98, %d
    v_add_u32 v100, s98, v27
    v_bfe_u32 v101, v1, 3, 1
    v_add_u32 v101, s%d, v101
    """ % (fbits(C1), vC2, fbits(C2), 128 * 1152, 16 * 1152, sBLK))
    for t in range(5):
        QH('v_add_u32 v102, %d, v101' % (2 * t))
        QH('v_subrev_u32 v103, 9, v102')
        QH('v_min_u32 v102, v102, v103')
        QH('v_lshl_add_u32 v%d, v102, 7, v100' % (vH0 + t))
    QH('''
    v_and_b32 v103, 15, v1
    v_cmp_gt_u32 vcc, 8, v103
    v_cndmask_b32 v%d, v106, v%d, vcc
    ''' % (vH0 + 4, vH0 + 4))
    for t in range(5):
        QH('buffer_load_dwordx4 %s, v%d, s[16:19], 0 offen' % (q4(HL + 4 * t), vH0 + t))
    QK = Stream()
    if OPT.get('qpack'):
        S("""s_mul_i32 s63, s48, %d
        s_add_u32 s63, s63, s65""" % (36 * 3456))
        for e in range(3): S('buffer_load_dwordx4 %s, v%d, s[20:23], s63 offen' % (q4(120 + 4 * e), 64 + e))
        srd(QK, 20, 14, 15, QK_SZ, QK_OFF)
        QK("""s_mul_i32 s65, s49, %d
        s_mul_i32 s63, s48, %d
        s_add_u32 s63, s63, s65
        s_mul_i32 s66, s51, 2592
        s_add_u32 s63, s63, s66
        v_lshlrev_b32 v69, 4, v1""" % (576 * 288, 36 * 288))
        for e in range(3):
            if e == 2: QK('s_mov_b32 exec_hi, 3')
            QK('buffer_store_dwordx4 %s, v69, s[20:23], s63 offen offset:%d sc1' % (q4(120 + 4 * e), 1024 * e), tok_w=['QKS'])
        QK('s_mov_b32 exec_hi, -1')
        QK.append('HARRIVE')
    if stamp: stamp_mid(S, 86)
    layernorm(S, [3], mid=list(QK) + list(wdma(0)), mid2=wdma(1))
    for j in range(NR1, 9): norm4(S, ln(0, j), ST, ST + 6)
    t2_addr(S)
    S.need('W0')
    S('s_barrier')
    if stamp: stamp_mid(S, 88)
    q1 = list(QH) + list(ln_halo(vHW))
    q2 = list(epi_z2())
    V2.S1 = 136; V2.QB_OFF = QB_OFF; V2.VOFF = 72; V2.QOFF = 144
    q3 = list(V2.attention(1))
    B = OPT.get('budget', 64)
    if OPT.get('e2cut') is not None:
        keepn = OPT['e2cut']
        q2 = q2[:keepn] + [x for x in q2[-1:]]
    if OPT.get('noside'):
        q1 = []; q2 = q2[-1:]; q3 = []
    pub_step = None
    n2a, n2b = norm_z2(range(OPT.get('nzc', 0) if (OPT.get('zzq') or OPT.get('early')) else NZC, 9))
    q4_ = list(n2a) + list(n2b)
    for n in range(27):
        if n > 0:
            toks = ['W%d' % n]
            if n == 1: toks.append('T2')
            if n == 4: toks.append('ZE')
            if n == 1: toks.append('QKS')
            if n == 7 and OPT.get('qpack'): S.append('QCHECK')
            if n == (18 if OPT.get('zzq') else 9): toks.append('XH')
            if (OPT.get('zzq') or OPT.get('early')) and n == OPT.get('pollstep', 25): S.append('POLLCHECK')
            if pub_step is not None and n == pub_step + 2: toks += ['PUB', 'ZB']
            if OPT.get('trace'):
                S('s_memtime s[96:97]\ns_waitcnt lgkmcnt(0)\ns_sub_u32 s96, s96, s84\nv_writelane_b32 v254, s96, %d' % n)
            S.need(*toks)
            if OPT.get('trace'):
                S('s_memtime s[96:97]\ns_waitcnt lgkmcnt(0)\ns_sub_u32 s96, s96, s84\nv_writelane_b32 v254, s96, %d' % (n + 32))
            S('s_barrier')
            if OPT.get('trace'):
                S('s_memtime s[96:97]\ns_waitcnt lgkmcnt(0)\ns_sub_u32 s96, s96, s84\nv_writelane_b32 v255, s96, %d' % n)
            if pub_step is not None and n == pub_step + 2: S.append('ATOMIC')
        if stamp and n in (9, 18): stamp_mid(S, 88 + 2 * (n // 9))
        mem = []
        if n + 2 < 27 and not OPT.get('nodma'):
            w = list(wdma(n + 2))
            mem = [w[:-8]] + [w[-8 + 2 * k:len(w) - 6 + 2 * k] for k in range(4)]
            assert sum(len(x) for x in mem) == len(w)
            if OPT.get('dg') == 3: mem = [mem[0] + mem[1], mem[2] + mem[3], mem[4]]
            if OPT.get('dg') == 2: mem = [mem[0] + mem[1] + mem[2], mem[3] + mem[4]]
        if n in (2, 4, 6, 9) and not OPT.get('nopf') and not OPT.get('pfc'):
            mem.append(G('''s_mov_b32 m0, %d
            s_mov_b64 exec, 0xffff
            buffer_load_dword v8, s[4:7], s8 offen lds
            s_mov_b64 exec, -1
            s_add_u32 s8, s8, 8192''' % SB_OFF))
        if OPT.get('pf3') and n in (12, 15) and not OPT.get('pfc'):
            mem.append(G('''s_load_dwordx2 s[4:5], s[0:1], %d
            s_mov_b32 s6, %d
            s_mul_i32 s8, s2, %d
            s_mul_i32 s12, s51, %d
            s_add_u32 s8, s8, s12
            s_mov_b32 m0, %d
            s_waitcnt lgkmcnt(0)
            s_mov_b64 exec, 0x%x
            buffer_load_dword v8, s[4:7], s8 offen lds
            s_mov_b64 exec, -1''' % ((56, 2304 * 1152, 10368, 2688, SB_OFF, 0x1fffff) if n == 12 else (16, 576 * 1152, 2688, 768, SB_OFF, 0x3f))))
        for tn, n0 in OPT.get('hspread', {}).items():
            if n0 <= n < n0 + 5:
                w = [x for x in wdma(tn)]
                g = [I(x.text.replace('s63', 's13')) for x in w[:-10]] + G('s_mov_b32 m0, %d' % SB_OFF)
                g += G([x for x in w[-10:] if x.kind == 'dma'][n - n0].text.replace('dwordx4', 'dword').replace('s63', 's13'))
                mem.append(g)
        for tn in OPT.get('htouch', {}).get(n, []):
            w = [x for x in wdma(tn)]
            g = [x for x in w[:-10]] + G('s_mov_b32 m0, %d' % SB_OFF)
            for x in w[-10:]:
                if x.kind == 'dma': g += G(x.text.replace('dwordx4', 'dword'))
            mem.append(g)
        work = []
        if n == 0: work += list(t2_writes([3]))
        if n == 18 and not OPT.get('flags', 1): work += G('s_lshl_b32 s9, s48, 4\nv_mov_b32 v6, 0')
        if OPT.get('qpack'):
            for tk in {1: ['ENTRY1', 'QFLAG'], 2: ['GATE1'], 4: ['GATE2'], 5: ['QISSUE']}.get(n, []): work.append(tk)
        elif OPT.get('flags', 1) and n in (1, 4, 13, 16): work.append({1: 'ENTRY1', 4: 'ENTRY2', 13: 'GATE1', 16: 'GATE2'}[n])
        if n == (OPT.get('pollstep', 25) - 1 if (OPT.get('zzq') or OPT.get('early')) else 26): work.append('POLLISSUE')
        if n == 17 and OPT.get('pf3') and not OPT.get('mega'): work.append('ZERO')
        if n == 19 and OPT.get('mega'): work += G('v_mov_b32 v40, 159744\nv_mov_b32 v42, 0\nv_mov_b32 v43, 0\nv_mov_b32 v44, 0\nv_mov_b32 v45, 0') + G('ds_write_b128 v40, v[42:45]', tok_w=['ZB']) + G('ds_write_b128 v40, v[42:45] offset:16', tok_w=['ZB'])
        if OPT.get('cpf') == 1 and n == 22: work.append(code_prefetch('K2_TEXT' if OPT.get('mega') else 'k2_kernel', 'TEXT_END', 1, 32, 35, 10, 12))
        def drain(q, budget):
            while q and budget > 0:
                if isinstance(q[0], tuple) and q[0][0] == 'WAITSTEP':
                    if n < q[0][1]: break
                    q.pop(0); continue
                x = q.pop(0); budget -= wt(x); work.append(x)
            return budget
        budget = B
        if 0 <= n <= 10 and q1: drain(q1, OPT.get('b1', 34) if n < (10 if OPT.get('zzq') else 8) else 1e9)
        if n >= (11 if OPT.get('zzq') or OPT.get('m32') else 10) and q2:
            budget = drain(q2, budget)
            if not q2: pub_step = max(n, 17)
        elif OPT.get('early') and n >= OPT['pollstep']:
            drain(q4_, len(n2a) if n == OPT['pollstep'] else OPT.get('nbudget', 60))
            if n == OPT['pollstep']: drain(q3, OPT.get('abudget', 36))
        elif n >= (20 if OPT.get('m32') or OPT.get('tm') else 19) and not OPT.get('zzq'): drain(q3, OPT.get('abudget', 36))
        elif OPT.get('zzq') and n >= OPT.get('pollstep', 25): drain(q4_, OPT.get('nbudget', 50) if n > OPT.get('pollstep', 25) else len(n2a))
        tot = sum(wt(x) for x in work); acc_ = 0.0; k = 0
        for x in work:
            while k < len(mem) and acc_ >= tot * k / (len(mem) + OPT.get('dmaslack', 1)):
                S.extend(mem[k]); k += 1
            S.append(x); acc_ += wt(x)
        while k < len(mem):
            S.extend(mem[k]); k += 1
    late = pub_step is None or pub_step + 2 > 26
    assert late == bool(OPT.get('late')), (pub_step, 'set late option accordingly')
    if late:
        S.extend(q2)
        S.need('ZB')
        h = len(q3) // 2
        S.extend(q3[:h]); q3 = q3[h:]
        S.need('PUB')
        S('s_barrier')
        S.append('ATOMIC')
    if stamp: stamp_mid(S, 94)
    if OPT.get('zzq'):
        assert pub_step + 2 < OPT.get('pollstep', 25)
        if OPT.get('pollstep') == 27: S.append('POLLCHECK')
        S('s_barrier')
        k = min(len(q4_), OPT.get('n2mid', 60))
        S.extend(q4_[:k]); q4_ = q4_[k:]
        S('s_barrier')
        S.extend(q4_)
        if not OPT.get('attc'): S.extend(q3)
    elif OPT.get('early'):
        assert pub_step + 2 < OPT['pollstep']
        if OPT.get('mega'):
            S('s_barrier')
            OPT['mega'].prod_early(S)
        S.extend(q4_); S.extend(q3)
    else:
        S.append('POLLCHECK')
        S('s_barrier')
        S.extend(n2a)
        if OPT.get('mega'): OPT['mega'].prod_early(S)
        S.extend(q3)
        S.extend(n2b)
    if stamp:
        stamp_mid(S, 96)
        if not OPT.get('mega'): S('s_waitcnt vmcnt(0)')
        stamp_mid(S, 70)
        stamp_store(S, 84, [86, 88, 90, 92, 94, 96, 70 if not OPT.get('ptrace') else 66], 14, 0, 72, 12, wave_s=50)
    if OPT.get('trace'):
        S('''s_lshl_b32 s75, s2, 11
        s_lshl_b32 s74, s51, 9
        s_add_u32 s75, s75, s74
        s_add_u32 s75, s75, 0x80000
        v_lshlrev_b32 v12, 2, v1
        buffer_store_dword v254, v12, s[76:79], s75 offen
        buffer_store_dword v255, v12, s[76:79], s75 offen offset:256''')
    if OPT.get('mega'): OPT['mega'].producer(S)
    S('K1_END:')
    S('s_endpgm')
    print('k1 helper: zc', OPT.get('zc_step'), 'pub_step', pub_step, 'att left', sum(wt(x) for x in q3))
    return S

def poll_issue(vr, va):
    return G('s_lshl_b32 s9, s48, 4\nv_mov_b32 v%d, 0' % va) + G('buffer_load_dword v%d, v%d, s[44:47], s9 offen sc1' % (vr, va))
def poll(S, tag, vr=7, va=6):
    S('v_readfirstlane_b32 s11, v%d' % vr)
    S('s_mov_b32 s10, 0')
    S('s_cmp_ge_u32 s11, 16')
    S('s_cbranch_scc1 K1_NOPOLL%s' % tag)
    S("""
    K1_POLL%s:
    s_sleep SLP
    buffer_load_dword v7, v6, s[44:47], s9 offen sc1
    s_waitcnt vmcnt(0)
    v_readfirstlane_b32 s11, v7
    s_add_u32 s10, s10, 1
    s_cmp_ge_u32 s11, 16
    s_cbranch_scc1 K1_NOPOLL%s
    s_cmp_lt_u32 s10, 0x20000
    s_cbranch_scc1 K1_POLL%s
    K1_NOPOLL%s:
    """.replace('SLP', str(OPT.get('slp', 4))).replace('v7', 'v%d' % vr).replace('v6', 'v%d' % va) % (tag, tag, tag, tag))
    S.append(('KEEPQ', 1))

def ln_halo(vHW):
    A = Stream()
    h0 = ST + 4; t = ST + 6
    for k in range(20):
        r = HL + k; tt = t + 2 * (k & 1)
        A('v_lshlrev_b32 v%d, 16, v%d' % (tt, r))
        A('v_and_b32 v%d, 0xffff0000, v%d' % (tt + 1, r))
        if k == 0:
            A('v_add_f32 v%d, v%d, v%d' % (h0, tt, tt + 1))
            A('v_mul_f32 v%d, v%d, v%d' % (h0 + 1, tt, tt))
        else:
            A('v_add_f32 v%d, v%d, v%d' % (h0, h0, tt))
            A('v_fmac_f32 v%d, v%d, v%d' % (h0 + 1, tt, tt))
            A('v_add_f32 v%d, v%d, v%d' % (h0, h0, tt + 1))
        A('v_fmac_f32 v%d, v%d, v%d' % (h0 + 1, tt + 1, tt + 1))
    for m in ('quad_perm:[1,0,3,2]', 'quad_perm:[2,3,0,1]', 'row_half_mirror', 'row_mirror'):
        for r in (h0, h0 + 1):
            A('v_add_f32_dpp v%d, v%d, v%d %s row_mask:0xf bank_mask:0xf' % (r, r, r, m))
    rowstats(A, h0, ST + 6, 's83')
    for t in range(5):
        norm4(A, HL + 4 * t, h0, ST + 6)
        g = Stream()
        if t == 4:
            g('s_mov_b32 exec_lo, 0x00ff00ff')
            g('s_mov_b32 exec_hi, 0x00ff00ff')
        g('ds_write_b128 v%d, %s offset:%d' % (vHW, q4(HL + 4 * t), t * 4096), tok_w=['XH'])
        if t == 4: g('s_mov_b64 exec, -1')
        A.append(list(g))
    return A

def epi_z2():
    E = Stream()
    PK = 60
    def pk(c, b): return PK + b * 20 + 2 * c
    E.append(G("""
    v_and_b32 v10, 15, v1
    v_lshlrev_b32 v11, 3, v10
    s_lshl_b32 s98, s51, 5
    v_add_u32 v10, s98, v10
    v_mul_u32_u24 v10, %d, v10
    v_lshrrev_b32 v12, 4, v1
    v_lshlrev_b32 v12, 3, v12
    s_mov_b32 s98, %d
    v_add3_u32 v10, v10, v12, s98
    """ % (ZP, ZB_OFF)) + (G("""s_cmp_eq_u32 s52, 0
    s_cselect_b32 s98, 256, 0
    v_add_u32 v13, s98, v10
    s_lshl_b32 s98, s52, 5
    v_add_u32 v10, s98, v10""") if OPT.get('nc32') else []))
    def AD(c, b):
        if OPT.get('nc32') and c == 8: return 'v13', 16 * b * ZP
        return 'v10', 16 * b * ZP + 32 * c
    NC = OPT.get('nc', 0)
    order = [(c, b) for b in range(2) for c in range(9)]
    theirs = order[18 - NC:]; order = order[:18 - NC]
    if OPT.get('nc32'):
        NC = OPT['nc32']
        nt = NC // 2
        theirs = [(c, b) for c, b in order if c < nt]; order = [(c, b) for c, b in order if c >= nt]
    for c, b in order:
        E('ds_read_b64 v[%d:%d], %s offset:%d' % ((pk(c, b), pk(c, b) + 1) + AD(c, b)))
    for b in range(2):
        E('v_mov_b32 v%d, 0' % (pk(9, b)))
        E('v_mov_b32 v%d, 0' % (pk(9, b) + 1))
    for k in range(4): E('v_mov_b32 v%d, s82' % (132 + k))
    pend = None
    if OPT.get('ilp8'):
        E0 = E
    subs = []
    for k, (c, b) in enumerate(order):
        if OPT.get('ilp8'):
            E = Stream(); subs.append(E)
        x = 100 + 8 * (k & 1); p = pk(c, b)
        E('v_lshlrev_b32 v%d, 16, v%d' % (x, p))
        E('v_and_b32 v%d, 0xffff0000, v%d' % (x + 1, p))
        E('v_lshlrev_b32 v%d, 16, v%d' % (x + 2, p + 1))
        E('v_and_b32 v%d, 0xffff0000, v%d' % (x + 3, p + 1))
        gelu4(E, x, x + 4)
        E('v_cvt_pk_bf16_f32 v%d, v%d, v%d' % (p, x, x + 1))
        E('v_cvt_pk_bf16_f32 v%d, v%d, v%d' % (p + 1, x + 2, x + 3))
        E('ds_write_b64 %s, v[%d:%d] offset:%d' % (AD(c, b)[0], p, p + 1, AD(c, b)[1]), tok_w=['ZB'])
    if OPT.get('ilp8'):
        E = E0
        for k in range(0, len(subs), 2):
            a, b = subs[k], subs[k + 1] if k + 1 < len(subs) else []
            for i in range(0, len(a), 4):
                E.extend(a[i:i + 4]); E.extend(b[i:i + 4])
    D1 = [116, 120]; D2 = [124, 128]
    if NC:
        E.append(('WAITSTEP', OPT['zc_step'] + 2))
        for c, b in theirs:
            E('ds_read_b64 v[%d:%d], %s offset:%d' % ((pk(c, b), pk(c, b) + 1) + AD(c, b)))
    for c in range(0, 9, 2):
        for b in range(2):
            p = q4(pk(c, b))
            E('v_mfma_f32_16x16x32_bf16 %s, v[132:135], %s, %s' % (q4(D1[b]), p, '0' if c == 0 else q4(D1[b])))
            E('v_mfma_f32_16x16x32_bf16 %s, %s, %s, %s' % (q4(D2[b]), p, p, '0' if c == 0 else q4(D2[b])))
    g = G(setm('vcc', m64(lambda i, g: i & 1)))
    for b in range(2):
        g += G('v_cndmask_b32 v%d, v%d, v%d, vcc' % (D2[b], D2[b], D2[b] + 1))
        g += G('v_cndmask_b32 v%d, v%d, v%d, vcc' % (D2[b] + 2, D2[b] + 2, D2[b] + 3))
    g += G(setm('vcc', m64(lambda i, g: i & 2)))
    for b in range(2):
        g += G('v_cndmask_b32 v%d, v%d, v%d, vcc' % (D1[b] + 1, D2[b], D2[b] + 2))
    g += G("""
    s_lshl_b32 s99, s48, 4
    s_add_u32 s99, s99, s49
    s_lshl_b32 s99, s99, 10
    s_lshl_b32 s98, s51, 8
    s_add_u32 s99, s99, s98
    """) + G(setm('exec', m64(lambda i, g: g == i >> 2)))
    for b in range(2):
        g += G('buffer_store_dwordx2 v[%d:%d], v11, s[40:43], s99 offen offset:%d sc1' % (D1[b], D1[b] + 1, 128 * b), tok_w=['PUB'])
    g += G('s_mov_b64 exec, -1')
    E.append(g)
    return E

NZC = 4
def norm_z2(tiles, regs=(176, 208, 244, 248)):
    S = Stream()
    pl, zf, tb, a0 = regs
    S("""
    v_lshrrev_b32 v%d, 4, v1
    v_lshlrev_b32 v%d, 12, v%d
    v_and_b32 v%d, 15, v1
    v_lshl_add_u32 v%d, v%d, 4, v%d
    s_lshl_b32 s9, s48, 14
    s_lshl_b32 s10, s51, 8
    s_add_u32 s9, s9, s10
    """ % (a0, a0, a0, a0 + 1, a0, a0 + 1, a0))
    for k in range(4):
        S('buffer_load_dwordx4 %s, v%d, s[40:43], s9 offen offset:%d sc1' % (q4(pl + 4 * k), a0, k * 1024))
    S("""
    v_lshrrev_b32 v{z}, 4, v1
    v_lshlrev_b32 v{r}, 6, v{z}
    v_lshlrev_b32 v{z}, 3, v{z}
    v_bfe_u32 v{t}, v1, 2, 2
    v_add_u32 v{z}, v{z}, v{t}
    s_lshl_b32 s9, s51, 5
    v_add_u32 v{z}, s9, v{z}
    v_mul_u32_u24 v{z}, {ZP}, v{z}
    v_and_b32 v{t}, 3, v1
    v_lshl_add_u32 v{z}, v{t}, 3, v{z}
    v_add_u32 v{z}, {ZB}, v{z}
    """.format(z=a0 + 2, r=a0 + 3, t=tb, ZP=ZP, ZB=ZB_OFF))
    S.need('ZB')
    for c in tiles:
        for hh in range(2):
            S('ds_read_b64_tr_b16 v[%d:%d], v%d offset:%d' % (zf + 4 * c + 2 * hh, zf + 4 * c + 2 * hh + 1, a0 + 2, hh * 4 * ZP + 32 * c))
    S("""
    s_lshl_b32 s9, s50, 8
    s_add_u32 s9, s9, {SB}
    v_lshlrev_b32 v{w}, 4, v{w}
    v_add_u32 v{w}, s9, v{w}
    v_add_u32 v{r}, s9, v{r}
    v_lshlrev_b32 v{p}, 4, v1
    v_xor_b32 v{p1}, 64, v{p}
    s_lshl_b32 s12, s49, 6
    s_lshl_b32 s13, s48, 2
    s_add_u32 s12, s12, s13
    s_add_u32 s12, s12, s51
    s_mul_i32 s12, s12, 9216
    s_add_u32 s13, s12, 4096
    s_add_u32 s10, s12, 8192
    s_mov_b32 s11, 0x{inv:x}
    """.format(SB=SB_OFF, w=a0 + 1, r=a0 + 3, p=a0 + 4, p1=a0 + 5, inv=fbits(1.0 / 2304)))
    A = S
    S = Stream()
    for k in range(2):
        for e in range(4): S('v_add_f32 v%d, v%d, v%d' % (pl + 4 * k + e, pl + 4 * k + e, pl + 8 + 4 * k + e))
    for e in range(4): S('v_add_f32 v%d, v%d, v%d' % (pl + e, pl + e, pl + 4 + e))
    for sw in ('v_permlane16_swap_b32', 'v_permlane32_swap_b32'):
        for k in range(4): S('v_mov_b32 v%d, v%d' % (pl + 4 + k, pl + k))
        for k in range(4): S('%s v%d, v%d' % (sw, pl + k, pl + 4 + k))
        for k in range(4): S('v_add_f32 v%d, v%d, v%d' % (pl + k, pl + k, pl + 4 + k))
    for r in (pl, pl + 2): rowstats(S, r, tb, 's11')
    S('ds_write_b128 v%d, %s' % (a0 + 1, q4(pl)), tok_w=['SB'])
    S.need('SB')
    sr = pl + 16
    for k in range(4): S('ds_read_b128 %s, v%d offset:%d' % (q4(sr + 4 * k), a0 + 3, 16 * k))
    for c in tiles:
        for d in range(4):
            r = zf + 4 * c + d
            t = tb + 2 * (d & 1)
            S('v_lshlrev_b32 v%d, 16, v%d' % (t, r))
            S('v_and_b32 v%d, 0xffff0000, v%d' % (t + 1, r))
            S('v_fma_f32 v%d, v%d, v%d, v%d' % (t, t, sr + 4 * d, sr + 4 * d + 1))
            S('v_fma_f32 v%d, v%d, v%d, v%d' % (t + 1, t + 1, sr + 4 * d + 2, sr + 4 * d + 3))
            S('v_cvt_pk_bf16_f32 v%d, v%d, v%d' % (r, t, t + 1))
        S('buffer_store_dwordx4 %s, v%d, s[36:39], s%d offen offset:%d' % (q4(zf + 4 * c), a0 + 5 if c & 1 else a0 + 4, (12, 13, 10)[c >> 2], (c & 3) * 1024) + (' sc1' if OPT.get('wt2') or OPT.get('mega') else ''))
        if OPT.get('dual'): S('buffer_store_dwordx4 %s, v%d, s[36:39], s%d offen offset:%d' % (q4(zf + 4 * c), a0 + 5 if c & 1 else a0 + 4, (12, 13, 10)[c >> 2], (c & 3) * 1024))
    return A, S
```

```python
from common import *
K3_P = 272
RED = 0
FLAG = 159744
def k3_body(S, stamp=False, early=2, sleep=12, own=True, pre=0, red2=False, sched=None, bars=None, rot=0, mega=False, nw=8, wfirst=False, red3=False):
    ACC = 8; AR = 88; WF = 168
    vA = (200, 201, 202, 203, 204); vW = (205, 206, 207, 208); vT = (209, 210, 211, 212); vT2 = (232, 233, 234, 235)
    XR = 216; vO = 213; vR = 214
    NW = nw
    vT3 = (240, 241, 242, 243)
    sr = (lambda r: r + 6) if mega else (lambda r: r)
    sbase = 84 if mega else 60
    def acc(ct, a): r = ACC + (ct * 5 + a) * 4; return 'v[%d:%d]' % (r, r + 3)
    def fa(s, a): r = AR + s * 20 + a * 4; return 'v[%d:%d]' % (r, r + 3)
    def fw(s, ct): r = WF + s * 16 + ct * 4; return r
    S('''
    s_load_dwordx2 s[4:5], s[0:1], 0
    s_load_dwordx2 s[6:7], s[0:1], 16
    s_load_dwordx4 s[64:67], s[0:1], 56
    s_and_b32 s43, s2, 7
    s_lshr_b32 s46, s2, 3
    s_mul_i32 s47, s43, 29
    s_min_u32 s43, s43, 2
    s_add_u32 s47, s47, s43
    s_add_u32 s47, s47, s46          ; tile
    s_mul_hi_u32 s32, s47, 0x1c71c71d ; mt
    s_mul_i32 s46, s32, 9
    s_sub_u32 s33, s47, s46          ; nt
    s_mul_i32 s46, s32, 460800
    v_lshlrev_b32 v3, 4, v2
    v_add_u32 v%d, s46, v3
    ''' % vA[0])
    for a in range(1, 5):
        S('v_add_u32 v%d, %d, v%d' % (vA[a], 92160 * a, vA[0]))
    S('''
    v_lshrrev_b32 v3, 3, v2
    v_and_b32 v4, 2, v3
    v_and_b32 v5, 7, v2
    v_xor_b32 v5, v5, v4
    v_lshlrev_b32 v5, 4, v5
    v_mul_u32_u24 v3, 1152, v3
    s_lshl_b32 s46, s33, 7
    v_add3_u32 v%d, v3, v5, s46
    v_xor_b32 v5, 64, v5
    v_add3_u32 v6, v3, v5, s46
    v_add_u32 v%d, %d, v6
    v_add_u32 v%d, %d, v%d
    v_add_u32 v%d, %d, v6
    s_lshl_b32 s49, s34, 12          ; wave part of the ring address
    s_mul_i32 s36, s34, 36864        ; W row offset of k-frag w
    s_lshl_b32 s38, s34, 10          ; A offset of k-frag w
    s_waitcnt lgkmcnt(0)
    ''' % (vW[0], vW[1], 9216 - 1024, vW[2], 2 * (9216 - 1024), vW[0], vW[3], 3 * (9216 - 1024)))
    S('s_mul_i32 s57, s33, %d\ns_mov_b32 s58, s57' % rot)
    srd(S, 16, 8, 9, AP_SZ, AP_OFF)
    srd(S, 20, 6, 7, 576 * 1152)
    srd(S, 12, 64, 65, 2304 * 1152)
    def wload(q):
        P = Stream()
        if q <= 3: srdn, off = '20:23', 4 * q * 36864
        elif q >= 5: srdn, off = '12:15', (4 * q - 18) * 36864
        if q == 4:
            P('''s_cmp_lt_u32 s34, 2
            s_cselect_b32 s76, s20, s12
            s_cselect_b32 s77, s21, s13
            s_cselect_b32 s78, s22, s14
            s_mov_b32 s79, 0x00020000
            s_cselect_b32 s37, %d, 0
            s_add_u32 s37, s37, s36
            s_sub_u32 s37, s37, %d''' % (18 * 36864, 2 * 36864))
            srdn = '76:79'
        elif rot and q >= 5:
            P('''s_mul_i32 s37, s57, %d
            s_add_u32 s37, s37, s36
            s_add_u32 s37, s37, %d
            s_add_u32 s57, s57, 1
            s_cmp_eq_u32 s57, 18
            s_cselect_b32 s57, 0, s57''' % (4 * 36864, 2 * 36864))
        else:
            P('s_add_u32 s37, s36, %d' % off)
        P('s_add_u32 m0, s49, %d' % ((q % NW) * 16384))
        for j in range(4):
            P('buffer_load_dwordx4 v%d, s[%s], s37 offen offset:%d lds' % (vW[j], srdn, j * 1024), tok_w=['W%d' % (q % NW)])
        return P
    def aload(q):
        P = Stream()
        if rot and q >= 5:
            P('''s_lshl_b32 s39, s58, 12
            s_add_u32 s39, s39, s38
            s_add_u32 s39, s39, %d
            s_cmp_lt_u32 s39, %d
            s_cselect_b32 s39, s39, 0x7f000000
            s_add_u32 s58, s58, 1
            s_cmp_eq_u32 s58, 18
            s_cselect_b32 s58, 0, s58''' % (20 * 1024, 90 * 1024))
        else:
            P('s_add_u32 s39, s38, %d' % (4 * q * 1024))
        if q == 22 and not rot:
            P('s_cmp_lt_u32 s34, 2')
            P('s_cselect_b32 s39, s39, 0x7f000000')
        for a in range(5):
            P('buffer_load_dwordx4 %s, v%d, s[16:19], s39 offen%s' % (fa(q & 3, a), vA[a], ' sc1' if q >= 4 or mega else ''))
        return P
    NQ = 23
    def do(names):
        for nm in names: S.extend(wload(int(nm[1:])) if nm[0] == 'W' else aload(int(nm[1:])))
    done = set()
    if sched:
        do(sched[0]); done.update(sched[0])
    else:
        for q in range(early): S.extend(wload(q)); S.extend(aload(q))
    S('''
    v_lshrrev_b32 v3, 4, v2          ; g
    v_bfe_u32 v4, v2, 2, 2           ; r
    v_and_b32 v5, 3, v2              ; c
    v_lshl_add_u32 v6, v3, 3, v4     ; 8g + r
    v_lshlrev_b32 v6, 7, v6
    v_add_u32 v6, s49, v6
    v_and_b32 v7, 1, v5
    v_lshl_add_u32 v6, v7, 3, v6     ; + (c&1)*8
    v_lshrrev_b32 v5, 1, v5
    v_lshl_add_u32 v6, v5, 4, v6     ; + (c>>1)*16
    v_and_b32 v4, 2, v4
    v_and_b32 v3, 1, v3
    v_lshl_or_b32 v4, v3, 2, v4      ; f
    v_lshlrev_b32 v4, 4, v4
    ''')
    for ct in range(4):
        if red2:
            S('s_add_u32 s46, s34, %d\ns_and_b32 s46, s46, 3\ns_lshl_b32 s46, s46, 5\nv_xor_b32 v5, s46, v4' % ct)
        else:
            S('v_xor_b32 v5, %d, v4' % (32 * ct))
        S('v_add_u32 v%d, v5, v6' % vT[ct])
        S('v_add_u32 v%d, 65536, v%d' % (vT2[ct], vT[ct]))
        if NW > 8: S('v_add_u32 v%d, 131072, v%d' % (vT3[ct], vT[ct]))
    srd(S, 24, 4, 5, 2048 * 1152)
    srd(S, 28, 66, 67, 2048 * 1152)
    if not mega: srd(S, 72, 8, 9, CN_SZ, CN_OFF)
    S('''
    s_lshl_b32 s46, s34, 6
    v_add_u32 v0, s46, v2
    v_lshrrev_b32 v3, 3, v0
    s_mul_i32 s46, s32, 80
    v_add_u32 v4, s46, v3
    v_mul_u32_u24 v4, 1152, v4
    v_and_b32 v5, 7, v0
    v_lshlrev_b32 v6, 4, v5
    s_lshl_b32 s47, s33, 7
    v_add3_u32 v%d, v4, v6, s47
    v_mul_u32_u24 v3, %d, v3
    v_lshlrev_b32 v5, 5, v5
    v_add_u32 v%d, v3, v5
    s_add_u32 s47, s46, 79
    s_min_u32 s47, s47, 2047
    s_lshr_b32 s46, s46, 7
    s_lshr_b32 s47, s47, 7
    s_lshl_b32 s46, s46, 8
    s_lshl_b32 s47, s47, 8
    v_mov_b32 v228, s46
    v_mov_b32 v229, s47
    v_mov_b32 v230, %d
    s_mov_b32 s52, 0
    s_mov_b32 s53, %d
    s_mov_b32 s54, %d
    ''' % (vO, K3_P, vR, FLAG, 32 * 1152, 64 * 1152))
    if red2:
        S('''v_and_b32 v3, 15, v2
        s_mul_i32 s46, s32, 80
        v_add_u32 v4, s46, v3
        v_mul_u32_u24 v4, 1152, v4
        v_lshrrev_b32 v5, 4, v2
        v_lshlrev_b32 v5, 3, v5
        s_lshl_b32 s47, s33, 7
        s_lshl_b32 s46, s34, 5
        s_add_u32 s47, s47, s46
        v_add3_u32 v%d, v4, v5, s47''' % vO)
        for a in range(5): S('s_mov_b32 s%d, %d' % (52 + a, a * 16 * 1152))
    if sched:
        for k in range(2):
            bars[k](S)
            do(sched[k + 1]); done.update(sched[k + 1])
    S('s_barrier')
    if sched:
        do(sched[3]); done.update(sched[3])
    def ownwait():
        S('''s_mov_b32 s41, 1
        K3_OWN:
        ds_read_b32 v236, v230
        s_waitcnt lgkmcnt(0)
        s_add_u32 s41, s41, 1
        v_readfirstlane_b32 s42, v236
        s_cmp_ge_u32 s42, 4
        s_cbranch_scc1 K3_OWNED
        s_sleep 2
        s_cmp_lt_u32 s41, 0x400000
        s_cbranch_scc1 K3_OWN
        K3_OWNED:''')
    def trreads(ws, q):
        g = []
        slot = q % NW
        for ct in range(4):
            for h in range(2):
                r = fw(ws, ct) + 2 * h
                g.append(G('ds_read_b64_tr_b16 v[%d:%d], v%d offset:%d' % (r, r + 1, (vT, vT2, vT3)[slot >> 2][ct], (slot & 3) * 16384 + h * 512)))
        return g
    def mf(ws, q):
        m = Stream()
        for ct in range(4):
            for a in range(5):
                r = fw(ws, ct)
                m('v_mfma_f32_16x16x32_bf16 %s, v[%d:%d], %s, %s' % (acc(ct, a), r, r + 3, fa(q & 3, a), '0' if q == 0 else acc(ct, a)))
        return m
    S.need('W0')
    for g in trreads(0, 0): S.extend(g)
    if stamp:
        stamp_mid(S, sr(82)); S('s_waitcnt lgkmcnt(0)')
    for q in range(NQ):
        if q == pre:
            if own:
                S.append(('SAVEQ',)); ownwait(); S.append(('RESETQ',))
            if sched:
                do([x for k in range(NW + pre) for x in ('W%d' % k, 'A%d' % k) if x not in done and (x[0] == 'W' or k < 4)])
            else:
                for k in range(early, 4): S.extend(wload(k)); S.extend(aload(k))
                for k in range(4, 8 + pre): S.extend(wload(k))
        if q == 4 and wfirst: S.extend(wload(q + NW - 1))
        if q == 4:
            S.append(('SAVEQ',))
            if stamp: stamp_mid(S, sr(84))
            S('''
            s_mov_b32 s41, 0
            s_cmp_lg_u32 s34, 0
            s_cbranch_scc1 K3_WAITL
            K3_POLL:
            POLLBODY
            s_sleep %d
            s_cmp_lt_u32 s41, 0x20000
            s_cbranch_scc1 K3_POLL
            K3_SET:
            v_mov_b32 v236, 1
            ds_write_b32 v230, v236 offset:4
            s_branch K3_GO
            K3_WAITL:
            ds_read_b32 v236, v230 offset:4
            s_waitcnt lgkmcnt(0)
            s_add_u32 s41, s41, 1
            v_readfirstlane_b32 s42, v236
            s_cmp_lg_u32 s42, 0
            s_cbranch_scc1 K3_GO
            s_sleep 1
            s_cmp_lt_u32 s41, 0x400000
            s_cbranch_scc1 K3_WAITL
            K3_GO:
            '''.strip().replace('POLLBODY', '''buffer_load_dword v236, v238, s[72:75], s59 offen sc1
            s_waitcnt vmcnt(0)
            v_cmp_ne_u32 vcc, 1, v236
            s_add_u32 s41, s41, 1
            s_cmp_eq_u32 vcc_lo, 0
            s_cbranch_scc1 K3_SET''' if mega else '''buffer_load_dword v236, v228, s[72:75], 0 offen sc1
            buffer_load_dword v237, v229, s[72:75], 0 offen sc1
            s_waitcnt vmcnt(0)
            v_min_u32 v236, v236, v237
            s_add_u32 s41, s41, 1
            v_readfirstlane_b32 s42, v236
            s_cmp_ge_u32 s42, 16
            s_cbranch_scc1 K3_SET''') % sleep)
            S.append(('RESETQ',))
            if stamp:
                stamp_mid(S, sr(86)); S('s_waitcnt lgkmcnt(0)')
            for k in (4, 5, 6): S.extend(aload(k))
        if q > pre and q + NW - 1 < NQ and not (q == 4 and wfirst): S.extend(wload(q + NW - 1))
        if q >= 4 and q + 3 < NQ: S.extend(aload(q + 3))
        if q == NQ - 3:
            for rd in range(3 if not red2 else 0):
                S('buffer_load_dwordx4 v[%d:%d], v%d, s[24:27], s%d offen' % (XR + 4 * rd, XR + 4 * rd + 3, vO, 52 + rd))
            for a in range(5 if red2 else 0):
                S('buffer_load_dwordx2 v[%d:%d], v%d, s[24:27], s%d offen' % (XR + 2 * a, XR + 2 * a + 1, vO, 52 + a))
        g = []
        if q + 1 < NQ:
            n = Stream(); n.need('W%d' % ((q + 1) % NW))
            g = trreads((q + 1) & 1, q + 1)
            g[0] = list(n) + g[0]
        if red3 and q == NQ - 2:
            S('''v_and_b32 v3, 15, v2
            v_lshrrev_b32 v4, 4, v2
            v_lshrrev_b32 v5, 5, v2
            v_xor_b32 v3, v3, v5
            v_lshl_add_u32 v3, v4, 4, v3
            v_lshlrev_b32 v3, 4, v3
            v_add_u32 v244, s49, v3''')
            for ct in range(1, 4): S('v_xor_b32 v%d, %d, v244' % (244 + ct, 32 * ct))
            for ct in range(4): S('v_add_u32 v%d, 81920, v%d' % (248 + ct, 244 + ct))
            S('''v_lshrrev_b32 v3, 3, v0
            v_and_b32 v4, 15, v3
            v_and_b32 v5, 7, v0
            v_xor_b32 v4, v4, v5
            v_lshlrev_b32 v4, 4, v4
            v_lshl_add_u32 v4, v5, 9, v4
            v_lshrrev_b32 v3, 4, v3
            v_lshl_add_u32 v%d, v3, 14, v4
            v_add_u32 v252, 81920, v4''' % vR)
        if red3 and q == NQ - 1:
            assert NW == 9
            m = mf(q & 1, q)
            def wr(ct):
                return [G('ds_write_b128 v%d, %s offset:%d' % ((244 if a < 4 else 248) + ct, acc(ct, a), (a * 16384 if a < 4 else 0) + ct * 1024), tok_w=['RED']) for a in range(5)]
            S.extend(m[0:5]); S.extend(m[5:8])
            S.extend(weave(m[8:13], wr(0))); S.extend(weave(m[13:18], wr(1))); S.extend(m[18:20])
            for g_ in wr(2) + wr(3): S.extend(g_)
            continue
        S.extend(weave(mf(q & 1, q), g, 2, 14))
    if stamp: stamp_mid(S, sr(88))
    E = S
    if red3:
        E.need('RED')
        E('s_barrier')
        def rds(rd):
            for c in range(4):
                for hh in range(2):
                    r = 88 + rd * 32 + c * 8 + hh * 4
                    E('ds_read_b128 v[%d:%d], v%d offset:%d' % (r, r + 3, vR if rd < 2 else 252, (rd * 32768 if rd < 2 else 0) + c * 4096 + hh * 256))
        rds(0); rds(1)
        for rd in range(3):
            if rd == 1: rds(2)
            if rd == 2:
                E('s_cmp_ge_u32 s34, 2')
                E('s_cbranch_scc1 K3_DONE')
            base = 88 + rd * 32
            for e in range(8):
                E('v_add_f32 v%d, v%d, v%d' % (base + e, base + e, base + 8 + e))
                E('v_add_f32 v%d, v%d, v%d' % (base + 16 + e, base + 16 + e, base + 24 + e))
            for d in range(4):
                x = XR + 4 * rd + d
                E('v_lshlrev_b32 v5, 16, v%d' % x)
                E('v_and_b32 v6, 0xffff0000, v%d' % x)
                E('v_add_f32 v%d, v%d, v%d' % (base + 2 * d, base + 2 * d, base + 16 + 2 * d))
                E('v_add_f32 v%d, v%d, v%d' % (base + 2 * d + 1, base + 2 * d + 1, base + 17 + 2 * d))
                E('v_add_f32 v5, v5, v%d' % (base + 2 * d))
                E('v_add_f32 v6, v6, v%d' % (base + 2 * d + 1))
                E('v_cvt_pk_bf16_f32 v%d, v5, v6' % x)
            E('buffer_store_dwordx4 v[%d:%d], v%d, s[28:31], s%d offen sc1' % (XR + 4 * rd, XR + 4 * rd + 3, vO, 52 + rd))
    elif red2:
        E("""
        v_lshlrev_b32 v3, 4, v2
        s_mul_i32 s46, s34, 15360
        v_add_u32 v4, s46, v3
        s_barrier
        """)
        for d in range(1, 4):
            E("""s_add_u32 s47, s34, %d
            s_and_b32 s47, s47, 3
            s_mul_i32 s47, s47, 15360
            v_add_u32 v5, s47, v3""" % d)
            for a in range(5):
                E('ds_write_b128 v5, %s offset:%d' % (acc(d, a), (d - 1) * 5120 + a * 1024), tok_w=['RED'])
        E.need('RED')
        E('s_barrier')
        for d in range(3):
            for a in range(5):
                r = AR + (d * 5 + a) * 4
                E('ds_read_b128 v[%d:%d], v4 offset:%d' % (r, r + 3, d * 5120 + a * 1024))
        for a in range(5):
            o = ACC + a * 4
            for e in range(4):
                E('v_add_f32 v%d, v%d, v%d' % (o + e, o + e, AR + a * 4 + e))
                E('v_add_f32 v%d, v%d, v%d' % (AR + 20 + a * 4 + e, AR + 20 + a * 4 + e, AR + 40 + a * 4 + e))
            for d in range(2):
                x = XR + 2 * a + d
                E('v_lshlrev_b32 v5, 16, v%d' % x)
                E('v_and_b32 v6, 0xffff0000, v%d' % x)
                E('v_add_f32 v%d, v%d, v%d' % (o + 2 * d, o + 2 * d, AR + 20 + a * 4 + 2 * d))
                E('v_add_f32 v%d, v%d, v%d' % (o + 2 * d + 1, o + 2 * d + 1, AR + 21 + a * 4 + 2 * d))
                E('v_add_f32 v5, v5, v%d' % (o + 2 * d))
                E('v_add_f32 v6, v6, v%d' % (o + 2 * d + 1))
                E('v_cvt_pk_bf16_f32 v%d, v5, v6' % x)
            E('buffer_store_dwordx2 v[%d:%d], v%d, s[28:31], s%d offen' % (XR + 2 * a, XR + 2 * a + 1, vO, 52 + a))
    else:
        E('''
        v_and_b32 v3, 15, v2
        v_mul_u32_u24 v3, %d, v3
        v_lshrrev_b32 v4, 4, v2
        v_lshl_add_u32 v3, v4, 4, v3
        s_mul_i32 s46, s34, %d
        v_add_u32 v3, s46, v3
        s_barrier
        ''' % (K3_P, 80 * K3_P))
        for a in range(5):
            for ct in range(4):
                E('ds_write_b128 v3, %s offset:%d' % (acc(ct, a), a * 16 * K3_P + ct * 64), tok_w=['RED'])
        E.need('RED')
        E('s_barrier')
        for rd in range(3):
            if rd == 2:
                E('s_cmp_ge_u32 s34, 2')
                E('s_cbranch_scc1 K3_DONE')
            base = 88 + rd * 32
            for c in range(4):
                if c == 3: E('v_add_u32 v4, %d, v%d' % (3 * 80 * K3_P, vR))
                for hh in range(2):
                    r = base + c * 8 + hh * 4
                    off = rd * 32 * K3_P + hh * 16 + (c * 80 * K3_P if c < 3 else 0)
                    E('ds_read_b128 v[%d:%d], v%d offset:%d' % (r, r + 3, vR if c < 3 else 4, off))
            for e in range(8):
                E('v_add_f32 v%d, v%d, v%d' % (base + e, base + e, base + 8 + e))
                E('v_add_f32 v%d, v%d, v%d' % (base + 16 + e, base + 16 + e, base + 24 + e))
            for d in range(4):
                x = XR + 4 * rd + d
                E('v_lshlrev_b32 v5, 16, v%d' % x)
                E('v_and_b32 v6, 0xffff0000, v%d' % x)
                E('v_add_f32 v%d, v%d, v%d' % (base + 2 * d, base + 2 * d, base + 16 + 2 * d))
                E('v_add_f32 v%d, v%d, v%d' % (base + 2 * d + 1, base + 2 * d + 1, base + 17 + 2 * d))
                E('v_add_f32 v5, v5, v%d' % (base + 2 * d))
                E('v_add_f32 v6, v6, v%d' % (base + 2 * d + 1))
                E('v_cvt_pk_bf16_f32 v%d, v5, v6' % x)
            E('buffer_store_dwordx4 v[%d:%d], v%d, s[28:31], s%d offen' % (XR + 4 * rd, XR + 4 * rd + 3, vO, 52 + rd))
    E('K3_DONE:')
    if stamp:
        stamp_mid(E, sr(90))
        E('s_waitcnt vmcnt(0)')
        stamp_mid(E, sr(92))
        E('v_add_u32 v0, 256, v0')
        stamp_store(E, sbase, [sr(r) for r in (80, 82, 84, 86, 88, 90, 92)], 8, 1, 64, 4)
```

```python
from common import *
import k1, k1_v2
from k1_v2 import fbits, gelu4, C1, C2, q4
from k2 import epi_offsets
from k3f import k3_body
KNAME = 'parallel_sum__sliding_local_dilated__mixer_gmlp__prompt_kernel'
SLOT = 34816
FLG = 159744
ACC = 8; FS = (80, 124); Z1 = 168
vW = (40, 41, 42, 43); vZ = 44; vB0 = 209; vB1 = 210; vA0 = 211; vA1 = 212; vAs = 213; vP = 214; vS = 215

def transition(S):
    S('''s_mov_b32 s32, s48
    s_mov_b32 s33, s49
    s_mov_b32 s34, s51
    s_mov_b32 s48, s52
    s_lshl_b32 s49, s34, 12
    s_mov_b32 s8, s14
    s_mov_b32 s9, s15
    v_mov_b32 v2, v1
    v_and_b32 v3, 15, v2
    v_lshrrev_b32 v4, 4, v2
    v_lshlrev_b32 v%d, 4, v2''' % vP)
    srd(S, 72, 8, 9, 4 * FL_SZ, FL_OFF)
def signal(S, word, target, tag, stores, keep=0, a=5, b=6, c=7):
    T = Stream(); _signal(T, word, target, tag, stores, keep)
    for x in T:
        if isinstance(x, tuple): S.append(x)
        else:
            import re
            S(re.sub(r'\bv([567])\b', lambda mm: 'v%d' % {'5': a, '6': b, '7': c}[mm.group(1)], x.text))
def _signal(S, word, target, tag, stores, keep):
    S('''v_mov_b32 v5, %d
    v_mov_b32 v6, 1
    s_waitcnt vmcnt(%d) lgkmcnt(0)
    s_mov_b64 exec, 1
    ds_add_rtn_u32 v7, v5, v6 offset:%d
    s_waitcnt lgkmcnt(0)
    v_readfirstlane_b32 s47, v7
    s_cmp_lg_u32 s47, %d
    s_cbranch_scc1 %s''' % (FLG, keep, word, target - 1, tag))
    S.append(('SAVEQ',))
    S('''s_mov_b64 exec, -1
    v_mov_b32 v6, 1
    v_lshlrev_b32 v5, 2, v2
    s_lshl_b32 s46, s32, 14
    s_lshl_b32 s47, s33, 10
    s_add_u32 s46, s46, s47
    s_mov_b32 exec_hi, 0
    buffer_store_dword v6, v5, s[72:75], s46 offen offset:%d sc1''' % stores)
    S.append(('RESETQ',))
    S('%s:' % tag)
    S('s_mov_b64 exec, -1')

class Mega:
    def __init__(self, stamp, gq=13, k3={}, zsleep=3, lazy=False, orel=True, eov=False, pf2=None, ut=None):
        self.ut = ut
        self.pf2 = pf2
        self.eov = eov
        self.orel = orel; self.lazy = lazy; self.stamp = stamp; self.gq = gq; self.k3 = k3; self.zsleep = zsleep
    def cons_early(self, S):
        S('''s_load_dwordx2 s[28:29], s[0:1], 48
        s_mov_b32 s98, s30
        s_lshl_b32 s63, s48, 8
        s_lshl_b32 s99, s51, 6
        s_add_u32 s63, s63, s99
        v_and_b32 v218, 15, v1
        v_lshlrev_b32 v218, 1, v218'''.replace('s[28:29]', 's[32:33]').replace('s_mov_b32 s98, s30\n', ''))
        S('''s_mov_b32 s34, 4096
        s_mov_b32 s35, 0x00020000
        s_waitcnt lgkmcnt(0)
        buffer_load_ushort v216, v218, s[32:35], s63 offen
        buffer_load_ushort v217, v218, s[32:35], s63 offen offset:32''')
    def half_a(self, P, p, st):
        if self.lazy: P('s_xor_b32 s37, s60, %d' % (st * 128))
        else: P('s_movk_i32 s37, %d' % (st * 128))
        P('s_add_u32 m0, s66, %d' % (p * SLOT))
        for q in range(4):
            P('buffer_load_dwordx4 v%d, s[4:7], s37 offen offset:%d lds' % (vW[q], q * 1024), tok_w=['P%d' % p])
    def half_b(self, P, p, st):
        if self.lazy: P(('s_add_u32 s38, s61, %d' % (st * 18432)) if st < 16 else ('s_sub_u32 s38, %d, s61' % (st * 18432)))
        else: P('s_mov_b32 s38, %d' % (st * 18432))
        P('s_add_u32 m0, s50, %d' % (p * SLOT))
        P('s_mov_b64 exec, s[44:45]')
        P('buffer_load_dwordx4 v%d, s[16:19], s38 offen sc1 lds' % vZ, tok_w=['P%d' % p])
        P('s_mov_b64 exec, -1')
        for q in range(4):
            P('buffer_load_dwordx4 v%d, s[16:19], s38 offen offset:%d sc1 lds' % (vZ, 512 + q * 1024), tok_w=['P%d' % p])
    def prod_early(self, S):
        S('''s_lshl_b32 s63, s48, 7
        s_lshl_b32 s66, s51, 5
        s_add_u32 s63, s63, s66
        v_lshrrev_b32 v45, 3, v1
        v_add_u32 v45, s63, v45
        v_lshlrev_b32 v45, 12, v45
        v_and_b32 v46, 7, v1
        v_lshrrev_b32 v47, 4, v1
        v_xor_b32 v46, v46, v47
        v_lshlrev_b32 v46, 4, v46
        v_add_u32 v%d, v45, v46
        v_xor_b32 v47, 64, v%d
        v_add_u32 v%d, 0x%x, v47
        v_add_u32 v%d, 0x%x, v%d
        v_add_u32 v%d, 0x%x, v47
        s_lshl_b32 s66, s51, 12''' % (vW[0], vW[0], vW[1], 0x8000 - 1024, vW[2], 0x10000 - 2048, vW[0], vW[3], 0x18000 - 3072))
        S('s_lshr_b32 s62, s48, 3\ns_lshl_b32 s60, s62, 11\ns_mul_i32 s61, s62, 294912\ns_lshl_b32 s62, s62, 3')
        for p in range(2):
            P = Stream(); self.half_a(P, p, p)
            for x in P: S(x.text.replace('s37', 's63'), tok_w=x.tok_w)
    def producer(self, S):
        stamp = self.stamp
        S('K2_TEXT:')
        transition(S)
        S('''s_mul_i32 s46, s33, 589824
        s_mul_i32 s47, s34, 4608
        s_add_u32 s46, s46, s47
        v_add_u32 v%d, s46, v%d
        s_add_u32 s50, s47, 16384
        s_mov_b32 s44, -1
        s_mov_b32 s45, 0
        v_lshlrev_b32 v46, 14, v3
        s_lshl_b32 s59, s33, 10
        s_add_u32 s59, s59, 128
        v_mov_b32 v47, %d''' % (vZ, vP, FLG))
        srd(S, 16, 8, 9, Z2P_SZ, Z2P_OFF)
        signal(S, 8, 8, 'K1_SIGH', 128)
        S.append(('SAVEQ',))
        S('''s_mov_b32 s41, 0
        s_cmp_lg_u32 s34, 0
        s_cbranch_scc1 KZ_WAITL
        KZ_POLL:
        buffer_load_dword v45, v46, s[72:75], s59 offen sc1
        s_waitcnt vmcnt(0)
        v_cmp_ne_u32 vcc, 1, v45
        s_add_u32 s41, s41, 1
        s_lshr_b32 s65, vcc_lo, s62
        s_and_b32 s42, s65, MASK0
        s_cbranch_scc0 KZ_SET
        s_sleep %d
        s_cmp_lt_u32 s41, 0x20000
        s_cbranch_scc1 KZ_POLL
        KZ_SET:
        v_mov_b32 v45, 1
        ds_write_b32 v47, v45 offset:12
        s_branch KZ_GO
        KZ_WAITL:
        ds_read_b32 v45, v47 offset:12
        s_waitcnt lgkmcnt(0)
        s_add_u32 s41, s41, 1
        v_readfirstlane_b32 s42, v45
        s_cmp_lg_u32 s42, 0
        s_cbranch_scc1 KZ_GO
        s_sleep 1
        s_cmp_lt_u32 s41, 0x400000
        s_cbranch_scc1 KZ_WAITL
        KZ_GO:'''.replace('MASK0', '3' if self.lazy else '0xffff') % self.zsleep)
        S.append(('RESETQ',))
        self.half_b(S, 0, 0); self.half_b(S, 1, 1)
        S.need('P0')
        S('s_barrier')
        self.half_a(S, 2, 2); self.half_b(S, 2, 2); self.half_a(S, 3, 3)
        for n in range(29):
            p = n & 3
            if self.lazy and (n + 3) % 2 == 0 and n + 3 >= 4:
                k = (n + 3) >> 1
                S.append(('SAVEQ',))
                S('''s_cmp_lg_u32 s34, 0
                s_cbranch_scc1 KL_OK{k}
                s_mov_b32 s41, 0
                KL_POLL{k}:
                s_bitcmp1_b32 s65, {k}
                s_cbranch_scc0 KL_OK{k}
                buffer_load_dword v45, v46, s[72:75], s59 offen sc1
                s_add_u32 s41, s41, 1
                s_waitcnt vmcnt(0)
                v_cmp_ne_u32 vcc, 1, v45
                s_cmp_lt_u32 s41, 0x20000
                s_lshr_b32 s65, vcc_lo, s62
                s_sleep 1
                s_cmp_lt_u32 s41, 0x20000
                s_cbranch_scc1 KL_POLL{k}
                KL_OK{k}:'''.format(k=k))
                S.append(('RESETQ',))
            S.need('P%d' % ((p + 1) & 3))
            S('s_barrier')
            self.half_b(S, (n + 3) & 3, n + 3)
            if n + 4 < 32: self.half_a(S, p, n + 4)
            if n == 20:
                S('''s_and_b32 s43, s2, 7
                s_lshr_b32 s46, s2, 3
                s_mul_i32 s47, s43, 29
                s_min_u32 s43, s43, 2
                s_add_u32 s47, s47, s43
                s_add_u32 s47, s47, s46
                s_mul_hi_u32 s46, s47, 0x1c71c71d
                s_mul_i32 s46, s46, 80
                s_add_u32 s47, s46, 79
                s_lshr_b32 s46, s46, 7
                s_lshr_b32 s47, s47, 7
                s_min_u32 s46, s46, 15
                s_min_u32 s47, s47, 15
                s_lshl_b32 s46, s46, 14
                s_lshl_b32 s47, s47, 14
                v_mov_b32 v238, s47
                v_mov_b32 v239, s46
                v_cmp_gt_u32 vcc, 16, v2
                v_cndmask_b32 v238, v238, v239, vcc
                v_lshl_add_u32 v238, v3, 10, v238
                s_movk_i32 s64, 384
                buffer_load_dword v236, v238, s[72:75], s64 offen sc1''')
            if n == 24:
                S('v_cmp_ne_u32 vcc, 1, v236')
                S.append(('SAVEQ',))
                S('''s_mov_b32 s41, 0
                KO_POLL:
                s_cmp_eq_u32 vcc_lo, 0
                s_cbranch_scc1 KO_OK
                s_sleep 8
                buffer_load_dword v236, v238, s[72:75], s64 offen sc1
                s_add_u32 s41, s41, 1
                s_waitcnt vmcnt(0)
                v_cmp_ne_u32 vcc, 1, v236
                s_cmp_lt_u32 s41, 0x20000
                s_cbranch_scc1 KO_POLL
                KO_OK:''')
                S.append(('RESETQ',))
        S('s_movk_i32 s59, 256')
        if stamp: stamp_mid(S, 86)
        S.append(('SAVEQ',))
        S('s_cmp_lt_u32 s2, 234\ns_cbranch_scc1 K3_START\ns_waitcnt vmcnt(0)\ns_barrier\ns_barrier\ns_barrier\ns_endpgm\nK3_START:')
        S.append(('RESETQ',))
        def mk(tok):
            def f(X):
                X.need(tok); X('s_barrier')
            return f
        k3_body(S, stamp, bars=[mk('P2'), mk('P3')], mega=True, **self.k3)
    def consumer(self):
        stamp = self.stamp
        S = Stream()
        def acc(a, b): r = ACC + (a * 2 + b) * 4; return 'v[%d:%d]' % (r, r + 3)
        def fB(s, b): r = FS[s] + b * 4; return 'v[%d:%d]' % (r, r + 3)
        def fA(s, a): r = FS[s] + 8 + a * 4; return 'v[%d:%d]' % (r, r + 3)
        S('K2_CONS:')
        transition(S)
        srd(S, 24, 8, 9, AP_SZ, AP_OFF)
        S('''
        v_lshrrev_b32 v5, 1, v3
        v_xor_b32 v5, v5, v4
        v_lshlrev_b32 v5, 4, v5
        v_lshlrev_b32 v6, 7, v3
        v_add3_u32 v%d, v5, v6, s49
        v_xor_b32 v%d, 64, v%d
        v_lshrrev_b32 v5, 3, v3
        v_add_u32 v5, s48, v5
        v_and_b32 v6, 1, v5
        v_lshlrev_b32 v6, 2, v6
        v_and_b32 v7, 3, v3
        v_bfe_u32 v1, v3, 2, 1
        v_lshl_add_u32 v7, v1, 3, v7
        v_xor_b32 v7, v7, v6
        v_lshl_add_u32 v7, v4, 4, v7
        v_lshlrev_b32 v7, 4, v7
        v_lshl_add_u32 v7, v5, 10, v7
        v_add_u32 v%d, 16384, v7
        v_xor_b32 v%d, 64, v%d
        s_cmp_eq_u32 s48, 0
        s_cselect_b32 s46, 8192, 0
        s_add_u32 s46, s46, 16384
        v_add_u32 v%d, s46, v%d
        v_lshrrev_b32 v5, 1, v4
        v_lshlrev_b32 v5, 8, v5
        v_lshl_add_u32 v5, v3, 4, v5
        v_and_b32 v6, 1, v4
        v_lshl_add_u32 v%d, v6, 3, v5
        ''' % (vB0, vB1, vB0, vA0, vA1, vA0, vAs, vP, vS))
        epi_offsets(S)
        S('v_lshlrev_b32 v216, 16, v216')
        S('v_lshlrev_b32 v217, 16, v217')
        for a in range(9):
            for b in range(2):
                for r in range(4):
                    S('v_mov_b32 v%d, v%d' % (ACC + (a * 2 + b) * 4 + r, 216 + b))
        HI = 224
        for k, r in enumerate((vB0, vB1, vA0, vA1, vAs)): S('v_add_u32 v%d, %d, v%d' % (HI + k, 2 * SLOT, r))
        signal(S, 8, 8, 'K1_SIGC', 128, keep=0 if stamp else k1.OPT['n_ost'])
        S('s_mov_b32 s78, 0x%x' % fbits(C1))
        S('v_mov_b32 v7, 0x%x' % fbits(C2))
        S('s_setprio 1')
        def reads(s, h, n):
            g = []
            hi = (n & 3) >> 1; so = (n & 1) * SLOT
            R = lambda r: r if not hi else HI + (vB0, vB1, vA0, vA1, vAs).index(r)
            vB = vB1 if h else vB0
            for b in range(2):
                g.append(I('ds_read_b128 %s, v%d offset:%d' % (fB(s, b), R(vB), so + b * 2048)))
            for a in range(9):
                if a < 8: g.append(I('ds_read_b128 %s, v%d offset:%d' % (fA(s, a), R(vA1 if a & 1 else vA0), so + h * 9216 + (a >> 1) * 2048)))
                else: g.append(I('ds_read_b128 %s, v%d offset:%d' % (fA(s, a), R(vAs), so + h * 9216)))
            return g
        def mfmas(s):
            m = Stream()
            for a in range(9):
                for b in range(2):
                    m('v_mfma_f32_16x16x32_bf16 %s, %s, %s, %s' % (acc(a, b), fA(s, a), fB(s, b), acc(a, b)))
            return m
        gw = []
        for k in range(18):
            g = Stream()
            p = Z1 + 2 * k; x = 232 + 8 * (k & 1)
            g('v_lshlrev_b32 v%d, 16, v%d' % (x, p))
            g('v_and_b32 v%d, 0xffff0000, v%d' % (x + 1, p))
            g('v_lshlrev_b32 v%d, 16, v%d' % (x + 2, p + 1))
            g('v_and_b32 v%d, 0xffff0000, v%d' % (x + 3, p + 1))
            gelu4(g, x, x + 4, c2=7)
            g('v_cvt_pk_bf16_f32 v%d, v%d, v%d' % (p, x, x + 1))
            g('v_cvt_pk_bf16_f32 v%d, v%d, v%d' % (p + 1, x + 2, x + 3))
            gw += list(g)
        if self.pf2 == -1:
            S('''s_load_dwordx2 s[60:61], s[0:1], 56
            s_load_dwordx2 s[64:65], s[0:1], 16
            s_mov_b32 s62, %d
            s_mov_b32 s63, 0x00020000
            s_mov_b32 s66, %d
            s_mov_b32 s67, 0x00020000
            s_mul_i32 s68, s2, 10368
            s_mul_i32 s69, s34, 2688
            s_add_u32 s68, s68, s69
            s_mul_i32 s69, s2, 2688
            s_mul_i32 s70, s34, 768
            s_add_u32 s69, s69, s70
            v_lshlrev_b32 v229, 7, v2
            s_mov_b64 exec, 0x1fffff
            buffer_load_dword v230, v229, s[60:63], s68 offen
            s_mov_b64 exec, 0x3f
            buffer_load_dword v231, v229, s[64:67], s69 offen
            s_mov_b64 exec, -1''' % (2304 * 1152, 576 * 1152))
        if stamp: stamp_mid(S, 86)
        S('s_barrier')
        if stamp:
            stamp_mid(S, 88); S('s_waitcnt lgkmcnt(0)')
        S.extend(reads(0, 0, 0))
        def half(ms, rds):
            left = self.gq
            for k, m in enumerate(ms):
                S.append(m)
                room = 2
                if rds: S.append(rds.pop(0)); room = 1
                while gw and left > 0 and room > 0 and k < 17:
                    need = 2 if gw[0].kind == 'trans' else 1
                    if need > room: break
                    S.append(gw.pop(0)); room -= need; left -= 1
        def epi(b, pk=True):
            E = Stream()
            for p in range(5):
                nd = 4 if p < 4 else 2
                zr = Z1 + (b * 4 + p) * 4 if p < 4 else Z1 + 32 + b * 2
                for d in range(nd):
                    a = 2 * p + (d >> 1)
                    ar = ACC + (a * 2 + b) * 4 + (d & 1) * 2
                    t = 220 + (d & 1) * 2
                    E('v_lshlrev_b32 v%d, 16, v%d' % (t, zr + d))
                    E('v_and_b32 v%d, 0xffff0000, v%d' % (t + 1, zr + d))
                    if pk: E('v_pk_mul_f32 v[%d:%d], v[%d:%d], v[%d:%d]' % (t, t + 1, t, t + 1, ar, ar + 1))
                    else:
                        E('v_mul_f32 v%d, v%d, v%d' % (t, t, ar))
                        E('v_mul_f32 v%d, v%d, v%d' % (t + 1, t + 1, ar + 1))
                    E('v_cvt_pk_bf16_f32 v%d, v%d, v%d' % (zr + d, t, t + 1))
                if p < 4: E('buffer_store_dwordx4 v[%d:%d], v%d, s[24:27], s%d offen offset:%d sc1' % (zr, zr + 3, vP, 53 + b, p * 1024))
                else: E('buffer_store_dwordx2 v[%d:%d], v%d, s[24:27], s%d offen sc1' % (zr, zr + 1, vS, 57 + b))
            return E
        for n in range(32):
            S('s_waitcnt lgkmcnt(0)')
            if n == 12: signal(S, 16, 4, 'KO_NOFL', 384, a=218, b=219, c=220)
            if self.ut and n in self.ut:
                k = self.ut.index(n)
                nl = 72 // len(self.ut)
                per = 36 // nl
                S('''s_min_u32 s46, s%d, s%d
                s_add_u32 s46, s46, %d
                v_lshlrev_b32 v229, 7, v2
                s_mov_b64 exec, 0x%x
                buffer_load_dword v%d, v229, s[24:27], s46 offen
                s_mov_b64 exec, -1''' % (53 + k // per, 57 + k // per, (k % per) * nl * 128, (1 << nl) - 1, 248 + k) if nl < 32 else
                  '''s_min_u32 s46, s%d, s%d
                v_lshlrev_b32 v229, 7, v2
                s_mov_b32 exec_hi, 15
                buffer_load_dword v%d, v229, s[24:27], s46 offen
                s_mov_b64 exec, -1''' % (53 + k, 57 + k, 248 + k))
            if self.pf2 and n == self.pf2 - 2:
                S('''s_load_dwordx2 s[60:61], s[0:1], 56
                s_load_dwordx2 s[64:65], s[0:1], 16
                s_mov_b32 s62, %d
                s_mov_b32 s63, 0x00020000
                s_mov_b32 s66, %d
                s_mov_b32 s67, 0x00020000
                s_mul_i32 s68, s2, 10368
                s_mul_i32 s69, s34, 2688
                s_add_u32 s68, s68, s69
                s_mul_i32 s69, s2, 2688
                s_mul_i32 s70, s34, 768
                s_add_u32 s69, s69, s70
                v_lshlrev_b32 v229, 7, v2''' % (2304 * 1152, 576 * 1152))
            if self.pf2 and n == self.pf2:
                S('''s_mov_b64 exec, 0x1fffff
                buffer_load_dword v230, v229, s[60:63], s68 offen
                s_mov_b64 exec, 0x3f
                buffer_load_dword v231, v229, s[64:67], s69 offen
                s_mov_b64 exec, -1''')
            if n == 31 and self.eov:
                m0, m1 = mfmas(0), mfmas(1)
                half(Stream(m0[0::2] + m0[1::2][:2]), reads(1, 1, n))
                S('s_waitcnt lgkmcnt(0)')
                S('s_barrier')
                S.extend(m1[0::2])
                e0 = list(epi(0, pk=False))
                rest = m0[1::2][2:] + m1[1::2]
                for k, x in enumerate(rest):
                    S.append(x)
                    take = -(-len(e0) // (len(rest) - k))
                    S.extend(e0[:take]); e0 = e0[take:]
                break
            half(mfmas(0), reads(1, 1, n))
            S('s_waitcnt lgkmcnt(0)')
            S('s_barrier')
            half(mfmas(1), reads(0, 0, n + 1) if n < 31 else [])
        assert not gw
        E = S
        if stamp: stamp_mid(E, 90)
        if not self.eov: E.extend(epi(0))
        E.extend(epi(1))
        if stamp: stamp_mid(E, 92)
        signal(E, 0, 4, 'K2_NOSIG', 256)
        if stamp:
            E('s_waitcnt vmcnt(0)')
            stamp_mid(E, 94)
            stamp_store(E, 84, [86, 88, 90, 92, 94], 8, 1, 64, 216, wave_s=34)
        E('s_endpgm')
        return S

def gen_mega(stamp=False, k1opt={}, **kw):
    M = Mega(stamp, **kw)
    k1_v2.STFLAG = ' sc1'
    txt, vg = k1.gen_k1(stamp=stamp, mega=M, **k1opt)
    k1_v2.STFLAG = ''
    F = Finisher()
    F.vmq, F.lgq = k1.OPT['cons_state']
    k1.emit(F, M.consumer())
    return txt + F.text(), 256
```

```python
import sys
from build import *
HDR = open('parallel_sum__sliding_local_dilated__mixer_gmlp__prompt.s.ref').read().split('; Override launch')[0]
def make(path, stamp=False, k1={}, k2={}, k3={}):
    t1, v1 = gen_k1(stamp=stamp, **k1)
    t2, v2 = gen_k2(stamp=stamp, **k2)
    t3, v3 = gen_k3(stamp=stamp, **k3)
    assemble_file(path, [('k1_kernel', t1, v1, 256, 512, K1_LDS), ('k2_kernel', t2, v2, 256, 512, K2_LDS), ('k3_kernel', t3, v3, 234, 256, K3_LDS)])
    s = open(path).read()
    open(path, 'w').write(HDR + s)
def makef(path, stamp=False, k1={}, k2={}):
    t1, v1 = gen_k1(stamp=stamp, **k1)
    t2, v2 = gen_k2(stamp=stamp, fuse=True, **k2)
    assemble_file(path, [('k1_kernel', t1, v1, 256, 512, K1_LDS), ('k2_kernel', t2, v2, 256, 512, K2_LDS)])
    s = open(path).read()
    open(path, 'w').write(HDR + s)
def makem(path, stamp=False, plain=True, **kw):
    import mega
    t, v = mega.gen_mega(stamp=stamp, **kw)
    t = t.replace("'k1_kernel'", mega.KNAME).replace('k1_kernel', mega.KNAME).replace('k2_kernel', 'K2_TEXT')
    assemble_file(path, [(mega.KNAME, t, v, 256, 512, K1_LDS)])
    s = open(path).read()
    if plain: s = s.replace('; @launch kernel=%s grid' % mega.KNAME, '; @launch grid')
    open(path, 'w').write(HDR + s)
if __name__ == '__main__':
    SCH = [['W0', 'W1'], ['W2', 'W3', 'A0'], ['A1', 'W4'], []]
    K2 = dict(prio=1, rot=False, xmap='84', pf=False, k3=dict(early=2, pre=1, sched=SCH))
    B = dict(budget=66, nc=4, pf3=1, pfc=[5, 8, 11, 14, 17, 20], cpf=1)
    B['attgap'] = 21
    M = dict(m32=1, nc=0)
    k3 = dict(K2['k3'], wfirst=True, nw=9)
    makem('vq.s', k1opt=B, k3=k3, lazy=True, eov=True)
    makem('full_q.s', stamp=True, k1opt=B, k3=k3, lazy=True, eov=True)
    makem('vr.s', k1opt=B, k3=dict(k3, red3=True), lazy=True, eov=True)
    makem('full_r.s', stamp=True, k1opt=B, k3=dict(k3, red3=True), lazy=True, eov=True)
    makem('vs.s', k1opt=B, k3=dict(k3, red3=True), lazy=True, eov=True, ownz=True)
    makem('full_s.s', stamp=True, k1opt=B, k3=dict(k3, red3=True), lazy=True, eov=True, ownz=True)
```

```python
from common import *
import k1_v2 as V2
from k1_v2 import fbits, q4, gelu4, rowstats, dots, norm4, flatten, m64, setm, is_mem, C1, C2, SCL
SLOT = 20480
T1_OFF = 40960; T2_OFF = 81920; XH_OFF = 143360; ZB_OFF = 81920; QB_OFF = 119808; SB_OFF = 161792
K1_LDS = 163840
QP = 240; ZP = 296
XF = 112; ACC = 40; WFR = 16; NRING = 5
NR1 = 6; P1 = NR1 * 2048; P2 = (9 - NR1) * 2048
sBLK = 54
vT = 4; vC2 = 9
OPT = {}
assert all((i * 3277) >> 16 == i // 20 for i in range(1280)) and all((r * 43) >> 8 == r // 6 for r in range(18))
def xf(j, b): r = XF + (j * 2 + b) * 4; return 'v[%d:%d]' % (r, r + 3)
LN1 = 40; LN2 = XF + 16 * NR1; ST = 88
def ln(g, j): return (LN1 + (g * NR1 + j) * 4 if g < 2 else 16 + 4 * j) if j < NR1 else LN2 + (g * (9 - NR1) + j - NR1) * 4
PH = [('Z2', 9216, 4608), ('Q', 3456, 0), ('Z1', 9216, 0)]
vDZ = 16; vDQ = 21
def wt(x):
    if isinstance(x, str): return 1
    if isinstance(x, list): return sum(wt(y) for y in x)
    if x.kind in ('need', 'label'): return 0
    if x.kind in ('trans', 'mfma'): return 2
    if x.kind == 'salu': return 0.5
    return 1

def wdma(n):
    ph, j = divmod(n, 9)
    nm, pitch, add = PH[ph]
    if nm == 'Q' and OPT.get('qpack'): pitch = 288
    P = Stream()
    P('s_mul_i32 s63, s%d, %d' % (sBLK + j, 64 * pitch))
    if add: P('s_add_u32 s63, s63, %d' % add)
    isq = nm == 'Q'
    P('s_add_u32 s63, s63, s%d' % (65 if isq else 64))
    for e in range(5):
        P('s_add_u32 m0, s68, %d' % ((n & 3) * SLOT + e * 4096))
        P('buffer_load_dwordx4 v%d, s[%s], s63 offen%s lds' % ((vDQ if isq else vDZ) + e, '20:23' if isq else '24:27', ' sc1' if isq and OPT.get('qpack') else ''), tok_w=['W%d' % n])
    return P

XROT_OLD = '''    s_lshr_b32 s64, s50, 2
    s_mul_i32 s64, s64, 24
    s_add_u32 s63, s63, s64
    v_lshrrev_b32 v12, 3, v1
    v_and_b32 v13, 7, v1
    v_add_u32 v10, s63, v12
    v_mul_u32_u24 v10, 1152, v10
    v_lshl_add_u32 v10, v13, 4, v10
    v_add_u32 v11, 9216, v10
    v_add_u32 v14, 18432, v10
'''
XROT_NEW = '''    v_lshrrev_b32 v12, 3, v1
    v_and_b32 v13, 7, v1
    v_add_u32 v14, s63, v12
    v_mul_u32_u24 v14, 1152, v14
    v_lshl_add_u32 v14, v13, 4, v14
    s_lshr_b32 s64, s50, 2
    s_mul_i32 s64, s64, 3
    s_add_u32 s64, s64, s49
        s_add_u32 s65, s64, 0
    s_and_b32 s65, s65, 3
    s_mul_i32 s66, s65, 9216
    v_add_u32 v10, s66, v14
    s_mov_b32 s3, s65
    s_add_u32 s65, s64, 1
    s_and_b32 s65, s65, 3
    s_mul_i32 s66, s65, 9216
    v_add_u32 v11, s66, v14
    s_mov_b32 s33, s65
    s_add_u32 s65, s64, 2
    s_and_b32 s65, s65, 3
    s_mul_i32 s66, s65, 9216
    v_add_u32 v14, s66, v14
    s_mov_b32 s34, s65

'''
GSR = (3, 33, 34)
def gaddr(S, g, P, dst):
    S('''s_lshr_b32 s98, s%d, 1
    s_mul_i32 s98, s98, %d
    s_and_b32 s99, s%d, 1
    s_lshl_b32 s99, s99, 7
    s_add_u32 s98, s98, s99
    v_add_u32 v%d, s98, v5''' % (GSR[g], P, GSR[g], dst))
def head(S, stamp, xmap, rot):
    S('''
    s_load_dwordx4 s[4:7], s[0:1], 0
    s_load_dwordx2 s[8:9], s[0:1], 32
    s_load_dwordx4 s[12:15], s[0:1], 72
    s_load_dwordx2 s[10:11], s[0:1], 40
    s_cmp_ge_u32 s2, 256
    s_cbranch_scc1 K1_END
    ''')
    if stamp: stamp_begin(S, 84)
    S('''
    v_lshrrev_b32 v10, 6, v0
    v_and_b32 v1, 63, v0
    v_readfirstlane_b32 s50, v10
    s_and_b32 s63, s2, 7
    s_lshr_b32 s64, s2, 3
    ''')
    if xmap == '84':
        S('''
        s_and_b32 s48, s63, 1
        s_lshl_b32 s48, s48, 3
        s_and_b32 s65, s64, 7
        s_add_u32 s48, s48, s65
        s_lshr_b32 s49, s63, 1
        s_lshl_b32 s49, s49, 2
        s_lshr_b32 s64, s64, 3
        s_add_u32 s49, s49, s64
        s_lshl_b32 s64, s64, 1
        ''')
        if OPT.get('rmode') == 4: S('s_and_b32 s65, s65, 6')
        if OPT.get('rmode') == 2: S('s_and_b32 s65, s65, 4')
        if OPT.get('rmode') == 3: S('s_mul_i32 s65, s65, 3\ns_lshr_b32 s65, s65, 3\ns_mul_i32 s65, s65, 3')
        S('s_add_u32 s53, s64, s65')
    else:
        S('''
        s_lshr_b32 s48, s63, 1
        s_lshl_b32 s48, s48, 2
        s_and_b32 s65, s64, 3
        s_add_u32 s48, s48, s65
        s_and_b32 s49, s63, 1
        s_lshl_b32 s49, s49, 3
        s_lshr_b32 s64, s64, 2
        s_add_u32 s49, s49, s64
        s_lshl_b32 s65, s65, 1
        s_add_u32 s53, s64, s65
        ''')
    if not rot: S('s_mov_b32 s53, 0')
    S('''
    s_sub_u32 s64, s53, 9
    s_cmp_ge_u32 s53, 9
    s_cselect_b32 s%d, s64, s53
    s_and_b32 s51, s50, 3
    s_and_b32 s52, s49, 1
    s_lshl_b32 s63, s48, 7
    s_lshl_b32 s64, s51, 5
    s_add_u32 s63, s63, s64
    XROT
    '''.replace('XROT', XROT_NEW if OPT.get('xrot') else XROT_OLD) % sBLK)
    for j in range(1, 9):
        S('s_add_u32 s%d, s%d, 1' % (sBLK + j, sBLK + j - 1))
        S('s_cmp_eq_u32 s%d, 9' % (sBLK + j))
        S('s_cselect_b32 s%d, 0, s%d' % (sBLK + j, sBLK + j))
    for j in range(9): S('s_lshl_b32 s%d, s%d, 7' % (69 + j, sBLK + j))
    S('s_waitcnt lgkmcnt(0)')
    srd(S, 16, 4, 5, 2048 * 1152)
    S('s_cmp_ge_u32 s50, 4')
    S('s_cbranch_scc1 K1_HELP')

def xloads(S, gs):
    for g in gs:
        for j in range(9):
            S('buffer_load_dwordx4 %s, v%d, s[16:19], s%d offen' % (q4(ln(g, j)), (10, 11, 14)[g], 69 + j))
def common_setup(S):
    srd(S, 28, 14, 15, AP_SZ, AP_OFF)
    srd(S, 36, 14, 15, Z2P_SZ, Z2P_OFF)
    srd(S, 40, 14, 15, FL_OFF + 4 * FL_SZ - ST_OFF, ST_OFF)
    srd(S, 44, 12, 13, 256)
    S('s_mov_b32 s79, 0x%x' % fbits(SCL))
    S('''
    s_mov_b32 s82, 0x3f803f80
    s_mov_b32 s83, 0x%x
    v_xor_b32 v102, v12, v13
    v_and_b32 v103, 3, v1
    v_lshl_add_u32 v102, v103, 4, v102
    v_lshlrev_b32 v102, 4, v102
    v_bfe_u32 v104, v1, 2, 1
    v_lshl_add_u32 v102, v104, 10, v102
    s_mul_i32 s63, s51, %d
    s_add_u32 s63, s63, %d
    v_add_u32 v5, s63, v102              ; transit write address
    v_and_b32 v101, 15, v1
    v_lshrrev_b32 v105, 4, v1
    v_xor_b32 v102, v101, v105
    v_lshl_add_u32 v102, v105, 4, v102
    v_lshlrev_b32 v6, 4, v102            ; plain frag read offset (even)
    v_mul_u32_u24 v105, 2560, v105
    v_bfe_u32 v101, v1, 2, 2
    v_mul_u32_u24 v101, 320, v101
    v_lshlrev_b32 v103, 3, v103
    v_add3_u32 v%d, v105, v101, v103
    ''' % (fbits(1.0 / 576), 2 * P1, T1_OFF, vT))

def goff(k, P): return (k >> 1) * P + (k & 1) * 128
def layernorm(S, ks, mid=None, mid2=None):
    ng = len(ks)
    for g in range(ng):
        st = ST + 2 * g
        regs = [ln(g, j) + d for j in range(9) for d in range(4)]
        S.extend(dots(regs, st, st + 1))
        if OPT.get('ptrace'): stamp_mid(S, 88 + 4 * (g & 1))
        if g == 0 and ng > 1: xloads(S, [2] if OPT.get('x01') else ([1, 2] if OPT.get('x12', 0) else [1]))
        for m in ('quad_perm:[1,0,3,2]', 'quad_perm:[2,3,0,1]', 'row_half_mirror'):
            for r in range(st, st + 2):
                S('v_add_f32_dpp v%d, v%d, v%d %s row_mask:0xf bank_mask:0xf' % (r, r, r, m))
        rowstats(S, st, ST + 6, 's83')
        if g == ng - 1 and mid: S.extend(mid)
        if OPT.get('xrot'): gaddr(S, g, P1, 15)
        for j in range(NR1):
            norm4(S, ln(g, j), st, ST + 6)
            if OPT.get('xrot'): S('ds_write_b128 v15, %s offset:%d' % (q4(ln(g, j)), j * 2048), tok_w=['T'])
            else: S('ds_write_b128 v5, %s offset:%d' % (q4(ln(g, j)), goff(ks[g], P1) + j * 2048), tok_w=['T'])
        if g < ng - 1:
            for j in range(NR1, 9): norm4(S, ln(g, j), st, ST + 6)
            if OPT.get('ptrace'): stamp_mid(S, 90)
        if g == 0 and ng > 2 and not OPT.get('x12', 0) and not OPT.get('x01'): xloads(S, [2])
    if mid2: S.extend(mid2)
    if OPT.get('ptrace'): stamp_mid(S, 94)
    S.need('T')
    S('s_barrier')
    if OPT.get('ptrace'): stamp_mid(S, 96)
def t2_writes(ks):
    A = Stream()
    if OPT.get('xrot'):
        for g in range(len(ks)):
            for j in range(NR1, 9):
                A('ds_write_b128 v%d, %s offset:%d' % (12 + g, q4(ln(g, j)), (j - NR1) * 2048), tok_w=['T2'])
        return A
    for j in range(NR1, 9):
        for g in range(len(ks)):
            A('ds_write_b128 v5, %s offset:%d' % (q4(ln(g, j)), goff(ks[g], P2) + (j - NR1) * 2048), tok_w=['T2'])
    return A
def t2_addr(S):
    S('s_mul_i32 s63, s51, %d' % (2 * (P2 - P1)))
    S('s_add_u32 s63, s63, %d' % (T2_OFF - T1_OFF))
    S('v_add_u32 v5, s63, v5')
    if OPT.get('xrot'):
        for g in range(3): gaddr(S, g, P2, 12 + g)

def emit(F, out):
    ren = {'ATOMIC': 'FLAG', 'POLLISSUE': 'FISSUE', 'POLLCHECK': 'FCHECK'} if OPT.get('flags', 1) else {}
    for x in flatten(out):
        if isinstance(x, str): x = ren.get(x, x)
        m32 = isinstance(x, str) and x.endswith('32')
        if m32: x = x[:-2]
        if isinstance(x, tuple) and x[0] == 'DMA5':
            _, n, txt, off = x
            lab = 'K1_D%d' % n
            F.run(G('s_cmp_eq_u32 s51, 3\ns_cbranch_scc1 %s\ns_add_u32 m0, s68, %d' % (lab, off)))
            F.add(I(txt)); F.vmq.pop()
            F.run(G(lab + ':'))
        elif isinstance(x, tuple) and x[0] == 'KEEPQ':
            if x[1] == 0: keep = [set(q) for q in F.vmq]
            else: F.vmq = keep
        elif x == 'POLLISSUE':
            F.run(G('s_cmp_lg_u32 s51, 0\ns_cbranch_scc1 K1_NOPI'))
            F.run(poll_issue(3, 6)); F.vmq.pop()
            F.run(G('K1_NOPI:'))
        elif x == 'ENTRY1' and OPT.get('mega'):
            F.run(G('''s_lshl_b32 s67, s48, 14
            s_add_u32 s67, s67, %d
            v_and_b32 v37, 15, v1
            v_lshlrev_b32 v37, 10, v37
            v_mov_b32 v6, 0
            v_mov_b32 v36, 1''' % (FL_OFF - ST_OFF)))
        elif x == 'ENTRY2' and OPT.get('mega'):
            pass
        elif x == 'HZERO':
            F.run(G('''s_lshl_b32 s64, s48, 14
            s_lshl_b32 s65, s49, 10
            s_add_u32 s64, s64, s65
            s_add_u32 s64, s64, 0x%x
            s_add_u32 s40, s14, s64
            s_addc_u32 s41, s15, 0
            s_movk_i32 s42, 1024
            s_mov_b32 s43, 0x00020000
            v_lshlrev_b32 v68, 4, v1
            v_mov_b32 v36, 0
            v_mov_b32 v37, 0
            v_mov_b32 v38, 0
            v_mov_b32 v39, 0
            s_cmp_lg_u32 s51, 0
            s_cbranch_scc1 K1_NOHZ''' % FL_OFF))
            F.add(I('buffer_store_dwordx4 v[36:39], v68, s[40:43], 0 offen sc1')); F.vmq.pop()
            F.run(G('K1_NOHZ:'))
        elif x == 'HARRIVE':
            F.run(G('''s_cmp_lg_u32 s51, 0
            s_cbranch_scc1 K1_NOHA
            s_lshl_b32 s63, s48, 4
            v_mov_b32 v36, 1
            s_mov_b64 exec, 1'''))
            F.add(I('buffer_atomic_add v36, v37, s[44:47], s63 offen sc1')); F.vmq.pop()
            F.run(G('s_mov_b64 exec, -1\nK1_NOHA:'))
        elif x == 'QFLAG':
            F.run(G('''s_cmp_lg_u32 s51, 0
            s_cbranch_scc1 K1_NOQF
            s_lshl_b32 s10, s49, FSH
            s_add_u32 s10, s10, s67
            v_lshlrev_b32 v39, 2, v1
            s_mov_b32 exec_hi, 0'''.replace('FSH', '10')))
            F.add(I('buffer_store_dword v36, v39, s[40:43], s10 offen offset:512 sc1')); F.vmq.pop()
            F.run(G('s_mov_b64 exec, -1\nK1_NOQF:'))
        elif x == 'QISSUE':
            F.run(G('''v_and_b32 v48, 15, v1
            v_lshlrev_b32 v48, 14, v48
            s_lshl_b32 s12, s49, 10
            s_add_u32 s12, s12, %d
            buffer_load_dword v49, v48, s[40:43], s12 offen sc1''' % (FL_OFF - ST_OFF + 512)))
        elif x == 'QCHECK':
            F.run(G('v_cmp_ne_u32 vcc, 1, v49\ns_cmp_lg_u32 s51, 0\ns_cbranch_scc1 K1_QOK'))
            keep = [set(q) for q in F.vmq]
            F.run(G('''s_mov_b32 s10, 0
            K1_QPOLL:
            s_cmp_eq_u32 vcc_lo, 0
            s_cbranch_scc1 K1_QOK
            s_sleep 4
            buffer_load_dword v49, v48, s[40:43], s12 offen sc1
            s_add_u32 s10, s10, 1
            s_waitcnt vmcnt(0)
            v_cmp_ne_u32 vcc, 1, v49
            s_cmp_lt_u32 s10, 0x20000
            s_cbranch_scc1 K1_QPOLL
            K1_QOK:'''))
            F.vmq = keep
        elif x == 'CZERO':
            F.run(G('''s_cmp_lg_u32 s51, 0
            s_cbranch_scc1 K1_NOCZ
            s_lshl_b32 s64, s48, 14
            s_lshl_b32 s65, s49, 10
            s_add_u32 s64, s64, s65
            s_add_u32 s64, s64, %d
            v_lshlrev_b32 v12, 3, v1
            v_mov_b32 v14, 0
            v_mov_b32 v15, 0''' % (FL_OFF - ST_OFF)))
            F.add(I('buffer_store_dwordx2 v[14:15], v12, s[40:43], s64 offen sc1')); F.vmq.pop()
            F.run(G('K1_NOCZ:'))
            cz_len = len(F.vmq)
        elif x == 'CARRIVE':
            F.run(G('''s_cmp_lg_u32 s51, 0
            s_cbranch_scc1 K1_NOCA
            s_lshl_b32 s64, s48, 4
            v_mov_b32 v38, 0
            v_mov_b32 v39, 1
            s_mov_b64 exec, 1'''.replace('v38', 'v14' if m32 else 'v38').replace('v39', 'v15' if m32 else 'v39')))
            keep = [set(q) for q in F.vmq]
            F.run(G('s_waitcnt vmcnt(%d)\nbuffer_atomic_add v%d, v%d, s[44:47], s64 offen sc1' % ((len(F.vmq) - cz_len,) + ((15, 14) if m32 else (39, 38)))))
            F.vmq = keep
            F.run(G('s_mov_b64 exec, -1\nK1_NOCA:'))
        elif x == 'FLAG' and OPT.get('mega'):
            F.run(G('''s_cmp_lg_u32 s51, 0
            s_cbranch_scc1 K1_NOAT
            s_lshl_b32 s10, s49, 10
            s_add_u32 s10, s10, s67
            v_lshlrev_b32 v39, 2, v1
            s_mov_b32 exec_hi, 0'''))
            F.add(I('buffer_store_dword v36, v39, s[40:43], s10 offen sc1')); F.vmq.pop()
            F.run(G('s_mov_b64 exec, -1\nK1_NOAT:'))
        elif x == 'GATE1' and OPT.get('mega'):
            F.run(G('v_and_b32 v39, 15, v1\nv_lshlrev_b32 v39, 4, v39\nbuffer_load_dword v38, v39, s[44:47], 0 offen sc1'))
        elif x == 'GATE2' and OPT.get('mega'):
            F.run(G('v_cmp_gt_u32 vcc, 16, v38\ns_cmp_lg_u32 s51, 0\ns_cbranch_scc1 K1_GOK'))
            keep = [set(q) for q in F.vmq]
            F.run(G('''s_mov_b32 s10, 0
            K1_GPOLL:
            s_cmp_eq_u32 vcc_lo, 0
            s_cbranch_scc1 K1_GOK
            s_sleep 16
            buffer_load_dword v38, v39, s[44:47], 0 offen sc1
            s_add_u32 s10, s10, 1
            s_waitcnt vmcnt(0)
            v_cmp_gt_u32 vcc, 16, v38
            s_cmp_lt_u32 s10, 0x10000
            s_cbranch_scc1 K1_GPOLL
            K1_GOK:'''))
            F.vmq = keep
        elif isinstance(x, tuple) and x[0] == 'RESETQ':
            F.vmq = keepq; F.lgq = keepl
        elif isinstance(x, tuple) and x[0] == 'SAVEQ':
            keepq = [set(q) for q in F.vmq]; keepl = [(set(a), b) for a, b in F.lgq]
        elif x == 'ENTRY1':
            F.run(G('''s_lshl_b32 s67, s48, 8
            s_add_u32 s67, s67, %d
            v_lshlrev_b32 v37, 2, v1
            v_mov_b32 v6, 0
            buffer_load_dword v36, v37, s[40:43], s67 offen sc1''' % (FL_OFF - ST_OFF)))
        elif x == 'ENTRY2':
            F.run(G('''v_add_u32 v36, 1, v36
            v_mov_b32 v7, 1
            s_lshl_b32 s9, s48, 4
            s_cmp_lg_u32 s51, 0
            s_cbranch_scc1 K1_NOENT
            s_mov_b64 exec, 1'''))
            F.add(I('buffer_atomic_add v7, v6, s[44:47], s9 offen sc1')); F.vmq.pop()
            F.run(G('s_mov_b64 exec, -1\nK1_NOENT:'))
        elif x == 'GATE1':
            F.run(G('buffer_load_dword v38, v6, s[44:47], s9 offen sc1'))
        elif x == 'GATE2':
            F.run(G('v_mov_b32 v39, v38\ns_cmp_lg_u32 s51, 0\ns_cbranch_scc1 K1_NOPOLLG'))
            keep = [set(q) for q in F.vmq]
            P = Stream(); poll(P, 'G', 38, 6)
            F.run([y for y in P if not isinstance(y, tuple)]); F.vmq = keep
        elif x == 'FLAG':
            F.run(G('''s_cmp_lg_u32 s51, 0
            s_cbranch_scc1 K1_NOAT
            s_lshl_b64 exec, 1, s49'''))
            F.add(I('buffer_store_dword v36, v37, s[40:43], s67 offen sc1')); F.vmq.pop()
            F.run(G('s_mov_b64 exec, -1\nK1_NOAT:'))
        elif x == 'FISSUE':
            F.run(G('buffer_load_dword v3, v37, s[40:43], s67 offen sc1'))
        elif x == 'FCHECK':
            F.run(G('v_mov_b32 v39, v3\ns_cmp_lg_u32 s51, 0\ns_cbranch_scc1 K1_FOK'))
            keep = [set(q) for q in F.vmq]
            F.run(G('''s_mov_b32 s10, 0
            K1_FPOLL:
            v_cmp_ne_u32 vcc, v3, v36
            s_and_b32 s11, vcc_lo, 0xffff
            s_cbranch_scc0 K1_FOK
            s_sleep %d
            buffer_load_dword v3, v37, s[40:43], s67 offen sc1
            s_add_u32 s10, s10, 1
            s_cmp_lt_u32 s10, 0x20000
            s_waitcnt vmcnt(0)
            s_cbranch_scc1 K1_FPOLL
            K1_FOK:''' % OPT.get('slp', 4)))
            F.vmq = keep
        elif x == 'POLLCHECK':
            P = Stream()
            P('s_cmp_lg_u32 s51, 0\ns_cbranch_scc1 K1_NOPOLLH')
            F.run(P); keep = [set(q) for q in F.vmq]
            P = Stream(); P('s_waitcnt vmcnt(0)'); poll(P, 'H', 3, 6)
            F.run([y for y in P if not isinstance(y, tuple)]); F.vmq = keep
        elif x == 'ZERO':
            Z = Stream()
            Z('s_or_b32 s12, s2, s51\ns_cmp_lg_u32 s12, 0\ns_cbranch_scc1 K1_NOZ')
            srd(Z, 4, 14, 15, CN_SZ, CN_OFF)
            Z('v_lshlrev_b32 v33, 6, v1\nv_mov_b32 v32, 0')
            F.run(Z)
            F.add(I('buffer_store_dword v32, v33, s[4:7], 0 offen')); F.vmq.pop()
            F.run(G('K1_NOZ:'))
        elif x == 'ATOMIC':
            F.run(G('''s_cmp_lg_u32 s51, 0
            s_cbranch_scc1 K1_NOAT
            v_mov_b32 v7, 1
            s_mov_b64 exec, 1'''))
            F.add(I('buffer_atomic_add v7, v6, s[44:47], s9 offen sc1')); F.vmq.pop()
            F.run(G('s_mov_b64 exec, -1\nK1_NOAT:'))
        else:
            F.add(x)

def table_text():
    out = ['.p2align 8', 'K1_TAB:']
    for rg in range(4):
        vals = []
        for lane in range(64):
            v = []
            zq = []
            for e in range(5):
                i = 64 * (rg + 4 * e) + lane
                row, p = divmod(i, 20)
                sh = 2 * ((row >> 3) & 1)
                v.append(row * 9216 + (p ^ (0 if OPT.get('m32') else sh)) * 16)
                pp = p - sh
                if OPT.get('qpack'): zq.append(row * 288 + pp * 16 if 0 <= pp < 18 else 0x7f000000)
                else: zq.append(row * 3456 + (1152, 2304, 0)[pp // 6] + (pp % 6) * 16 if 0 <= pp < 18 else 0x7f000000)
            hi = 4 * rg + (lane >> 4); g = lane & 3
            v += zq + [XH_OFF + ((lane >> 2) & 3) * 1024 + (g * 16 + (hi ^ g)) * 16, (hi * 1152 + (lane & 7) * 16)]
            for e in range(3):
                i = 162 * rg + 64 * e + lane
                row, pp = divmod(i, 18)
                v.append(row * 3456 + (1152, 2304, 0)[pp // 6] + (pp % 6) * 16 if 64 * e + lane < 162 else 0x7f000000)
            v.append(0)
            vals.append(v)
        for q in range(4):
            for l0 in range(0, 64, 4):
                out.append('.long ' + ','.join(str(x) for l in range(l0, l0 + 4) for x in vals[l][4 * q:4 * q + 4]))
    return '\n'.join(out) + '\n'

def gen_k1(stamp=False, xmap='84', rot=True, **opt):
    OPT.clear(); OPT.update(opt); V2.OPT.clear()
    global stamp_mid
    import common
    if OPT.get('ptrace'):
        seen = {}
        def sm(S, r):
            k = (id(S), r)
            if r == 88 and k in seen: r = 70
            k = (id(S), r)
            if k in seen: return
            seen[k] = 1
            if r == 70: common.stamp_mid(S, 66); return
            common.stamp_mid(S, r)
        stamp_mid = sm
    else:
        stamp_mid = common.stamp_mid
    F = Finisher()
    S = Stream()
    head(S, stamp, xmap, rot)
    F.run(S)
    txt = F.text()
    zzq = OPT.get('zzq')
    PH[1:] = [('Z1', 9216, 0), ('Q', 3456, 0)] if zzq else [('Q', 3456, 0), ('Z1', 9216, 0)]
    V2.QB_OFF = QB_OFF; V2.VOFF = 72; V2.QOFF = 144
    comp = compute2 if zzq else compute
    if OPT.get('m32'):
        import k1c32
        comp = k1c32.compute32
    for role in (comp, helper):
        G2 = Finisher()
        G2.vmq = [set(x) for x in F.vmq]; G2.lgq = [(set(a), b) for a, b in F.lgq]; G2.hist = list(F.hist)
        emit(G2, role(stamp))
        if role is not helper: OPT['cons_state'] = ([set(x) for x in G2.vmq], [(set(a), b) for a, b in G2.lgq])
        txt += G2.text()
    return txt, 256

def pace(items, dl=8, dm=4):
    flat = []
    for x in items:
        if isinstance(x, list) and not any('exec' in y.writes or 'vcc' in y.writes for y in x): flat.extend(x)
        else: flat.append(x)
    out = []; ready = {}
    k = 0
    while k < len(flat):
        x = flat[k]
        grp = list(x) if isinstance(x, list) else [x]
        k += 1
        while not isinstance(x, list) and x.kind == 'salu' and k < len(flat) and not isinstance(flat[k], list):
            x = flat[k]; grp.append(x); k += 1
        need = 0
        for y in grp:
            for r in y.reads | y.writes:
                t, kind = ready.get(r, (0, ''))
                if kind == 'valu' and not (y.dpp or y.op.startswith('v_permlane') or y.kind in ('mfma', 'ds', 'vmem')): continue
                need = max(need, t)
        while len(out) < need: out.append(None)
        out.append(grp)
        for y in grp:
            d = {'ds': dl, 'mfma': dm, 'trans': 0, 'valu': 1}.get(y.kind, 0)
            for r in y.writes: ready[r] = (len(out) + d, y.kind)
    return out

def pf_setup(S):
    S("""s_load_dwordx2 s[20:21], s[0:1], 56
    s_load_dwordx2 s[24:25], s[0:1], 16
    s_mov_b32 s4, s10
    s_or_b32 s5, s11, 0x800000
    s_mov_b32 s6, %d
    s_mov_b32 s7, 0x00020000
    s_mov_b32 s22, %d
    s_mov_b32 s23, 0x00020000
    s_mov_b32 s26, %d
    s_mov_b32 s27, 0x00020000
    s_lshl_b32 s8, s2, 15
    s_lshl_b32 s9, s51, 11
    s_add_u32 s8, s8, s9
    s_mul_i32 s9, s2, 10368
    s_mul_i32 s10, s51, 2688
    s_add_u32 s9, s9, s10
    s_min_u32 s9, s9, 2651520
    s_mul_i32 s10, s2, 2688
    s_mul_i32 s11, s51, 768
    s_add_u32 s10, s10, s11
    s_min_u32 s10, s10, 662784
    s_mov_b32 m0, %d
    s_waitcnt lgkmcnt(0)
    s_or_b32 s21, s21, 0x800000
    s_or_b32 s25, s25, 0x800000""" % (2048 * 32, 2304 * 9, 576 * 9, SB_OFF))
def ws_touch(k):
    g = Stream()
    if k == 0:
        g("""s_add_u32 s16, s14, 0x%x
        s_addc_u32 s17, s15, 0
        s_or_b32 s17, s17, 0x800000
        s_mov_b32 s18, %d
        s_mov_b32 s19, 0x00020000
        s_lshl_b32 s64, s49, 6
        s_lshl_b32 s65, s48, 2
        s_add_u32 s64, s64, s65
        s_add_u32 s64, s64, s51
        s_mul_i32 s64, s64, 9216
        s_lshl_b32 s65, s48, 3
        s_lshl_b32 s66, s51, 1
        s_add_u32 s65, s65, s66
        s_mul_i32 s65, s65, 92160
        s_mul_i32 s66, s49, 4608
        s_add_u32 s65, s65, s66
        s_add_u32 s65, s65, %d
        buffer_load_dword v1, s[16:19], s64 idxen lds""" % (Z2P_OFF, 64, AP_OFF - Z2P_OFF + 18 * 1024))
    elif k == 1:
        g("""s_add_u32 s64, s64, 8192
        s_mov_b64 exec, 0xff
        buffer_load_dword v1, s[16:19], s64 idxen lds
        s_mov_b64 exec, -1""")
    else:
        g("""s_mov_b32 exec_hi, 15
        buffer_load_dword v1, s[16:19], s65 idxen lds
        s_mov_b32 exec_hi, -1
        s_add_u32 s65, s65, 92160""")
    return list(g)
def w_touch(kind, j):
    g = Stream()
    if kind == 'Q':
        g("""s_load_dwordx2 s[16:17], s[0:1], 8
        s_mov_b32 s18, 64
        s_mov_b32 s19, 0x00020000
        s_mul_i32 s64, s%d, %d
        s_mul_i32 s65, s49, 72
        s_and_b32 s65, s65, -32
        s_add_u32 s64, s64, s65
        s_min_u32 s65, s51, 2
        s_mul_i32 s65, s65, 1152
        s_add_u32 s64, s64, s65
        s_waitcnt lgkmcnt(0)
        s_or_b32 s17, s17, 0x%x
        buffer_load_dword v1, s[16:19], s64 idxen lds
        buffer_load_dword v1, s[16:19], s64 idxen offset:92 lds""" % (sBLK + j, 64 * 3456, 3456 << 16))
    else:
        g("""s_load_dwordx2 s[16:17], s[0:1], 32
        s_mov_b32 s18, 64
        s_mov_b32 s19, 0x00020000
        s_mul_i32 s64, s%d, %d
        s_mul_i32 s65, s49, 288
        s_and_b32 s65, s65, -64
        s_add_u32 s64, s64, s65
        s_lshl_b32 s65, s51, 7
        s_min_u32 s65, s65, 316
        s_add_u32 s64, s64, s65
        s_waitcnt lgkmcnt(0)
        s_or_b32 s17, s17, 0x%x
        buffer_load_dword v1, s[16:19], s64 idxen lds""" % (sBLK + j, 64 * 9216, 9216 << 16))
    return list(g)
def pf_touch(k):
    if k < 4:
        return G("""s_mov_b64 exec, 0xffff
        buffer_load_dword v1, s[4:7], s8 idxen lds
        s_mov_b64 exec, -1
        s_add_u32 s8, s8, 8192""")
    return G("""s_mov_b64 exec, 0x%x
    buffer_load_dword v1, s[%s], s%d idxen lds
    s_mov_b64 exec, -1""" % ((0x1fffff, '20:23', 9) if k == 4 else (0x3f, '24:27', 10)))

def compute(stamp):
    S = Stream()
    vXe = 6; vXo = 7
    xloads(S, [0])
    common_setup(S)
    if OPT.get('x01') == 1: xloads(S, [1])
    if not OPT.get('mega'): srd(S, 32, 14, 15, Z1P_SZ, Z1P_OFF)
    if OPT.get('pfc'): pf_setup(S)
    S('''
    s_mul_i32 s63, s51, %d
    s_add_u32 s63, s63, %d
    v_add_u32 v6, s63, v6
    v_xor_b32 v7, 64, v6
    ''' % (2 * P1, T1_OFF))
    if OPT.get('x01') == 2: xloads(S, [1])
    if stamp: stamp_mid(S, 86)
    layernorm(S, [0, 1, 2], mid=sum([pf_touch(0) for _ in range(OPT.get('pfp', 0))], []))
    for q in range(2 * NR1):
        for b in range(2):
            S('ds_read_b128 %s, v%d offset:%d' % (xf(q, b), vXo if q & 1 else vXe, b * P1 + q * 1024), tok_w=['TR'])
    for j in range(NR1, 9): norm4(S, ln(2, j), ST + 4, ST + 6)
    t2_addr(S)
    S('s_mul_i32 s63, s51, %d' % (2 * (P2 - P1)))
    S('s_add_u32 s63, s63, %d' % (T2_OFF - T1_OFF))
    S.need('TR')
    S('s_barrier')
    S('v_add_u32 v6, s63, v6')
    S('v_add_u32 v7, s63, v7')
    S('s_setprio %d' % OPT.get('prio', 2))
    if stamp: stamp_mid(S, 88)
    ntile = [9, 7, 9]
    def acc(c, b): return ACC + (c * 2 + b) * 4
    hA = ACC + 56; hX = ACC + 64; hW = ACC + 68
    vTa = 2; vTb = 3; vq2 = 6; vq4 = 8; vQb = 5; vXH = 9; vqh = 7; vTs = 4
    frs = [(n, ks, c) for n in range(27) for ks in range(2) for c in range(ntile[n // 9])]
    TM = OPT.get('tm')
    if TM:
        def order(n):
            nt = ntile[n // 9]
            if n == 18: return [(ks, c) for c in range(nt) for ks in range(2)]
            return [(ks, c) for ks in range(2) for c in range(nt)]
        frs = [(n, ks, c) for n in range(27) for ks, c in order(n)]
    bias = {}
    extra_tok = {1: ['T2'], 9: ['TR2'], 10: ['HB'], 18: ['XHR'], (20 if TM else 19): ['QB']}
    QIMM = {0: 0, 1: 32, 3: 120, 5: 160 + 48, 6: 192 + 48}
    def zaddr(mode):
        g = Stream()
        g("""v_bfe_u32 v15, v1, 4, 1
        v_lshlrev_b32 v15, 5, v15""")
        if mode == 0:
            g("""s_cmp_eq_u32 s52, 0
            s_cselect_b32 s98, 1, -1
            s_lshl_b32 s99, s52, 5
            v_mul_lo_u32 v15, v15, s98
            v_add3_u32 v%d, v%d, v15, s99
            v_sub_u32 v%d, v%d, v15
            v_add_u32 v%d, s99, v%d""" % (vTa, vT, vTb, vT, vTb, vTb))
        else:
            g("""s_lshl_b32 s99, s52, 6
            v_add3_u32 v%d, v%d, v15, s99
            v_sub_u32 v%d, v%d, v15
            v_add_u32 v%d, 256, v%d
            v_add_u32 v15, 32, v%d
            s_cmp_eq_u32 s52, 0
            s_cselect_b64 vcc, -1, 0
            v_cndmask_b32 v%d, v15, v%d, vcc
            v_add_u32 v%d, s99, v%d
            v_add_u32 v%d, %d, v%d
            v_add_u32 v%d, %d, v%d
            v_add_u32 v%d, %d, v%d""" % (vTa, vT, vTb, vT, vTs, vTa, vTb, vTs, vTs, vTb, vTb, vTa, 2 * SLOT, vTa, vTb, 2 * SLOT, vTb, vTs, 2 * SLOT, vTs))
        return g
    def qaddr():
        g = Stream()
        g("""v_bfe_u32 v15, v1, 4, 1
        v_lshlrev_b32 v15, 5, v15
        s_mul_i32 s98, s49, 72
        s_and_b32 s98, s98, 31
        v_add3_u32 v{qb}, v{T}, v15, s98
        v_and_b32 v15, 3, v1
        v_cmp_le_u32 vcc, 2, v15
        v_cndmask_b32 v14, 0, 24, vcc
        v_add_u32 v14, 152, v14
        v_add_u32 v{q4}, v{qb}, v14
        v_cmp_le_u32 vcc, 1, v15
        v_cndmask_b32 v14, 0, 24, vcc
        v_add_u32 v14, 64, v14
        v_add_u32 v{q2}, v{qb}, v14
        s_lshl_b32 s69, s51, 5
        s_cmp_eq_u32 s51, 3
        s_cselect_b32 s99, 24, 0
        s_add_u32 s99, s99, s69
        v_add_u32 v{qh}, s99, v{qb}
        s_cmp_eq_u32 s51, 2
        s_cselect_b64 vcc, -1, 0
        v_cndmask_b32 v{qh}, v{qh}, v{q2}, vcc
        v_and_b32 v14, 15, v1
        v_lshrrev_b32 v15, 4, v1
        v_xor_b32 v14, v14, v15
        v_lshl_add_u32 v14, v15, 4, v14
        v_lshlrev_b32 v14, 4, v14
        v_add_u32 v{xh}, {XH}, v14""".format(qb=vQb, T=vT, q4=vq4, q2=vq2, qh=vqh, xh=vXH, XH=XH_OFF))
        return g
    def toggle(g, ar, n):
        want = (n & 3) >> 1
        if bias.get(ar, 0) != want:
            g('v_add_u32 v%d, %d, v%d' % (ar, 2 * SLOT if want else -2 * SLOT, ar))
            bias[ar] = want
    def halo_read(q):
        g = Stream()
        n = 9 + q // 2
        g('ds_read_b128 %s, v%d offset:%d' % (q4(hX), vXH, q * 1024), tok_w=['XHR'])
        toggle(g, vqh, n)
        for hh in range(2):
            g('ds_read_b64_tr_b16 v[%d:%d], v%d offset:%d' % (hW + 2 * hh, hW + 2 * hh + 1, vqh, (n & 1) * SLOT + (q & 1) * 10240 + hh * 1280))
        return g
    def read(f):
        n, ks, c = frs[f]
        ph = n // 9
        g = Stream()
        if ks == 0 and c == 0:
            if n > 0:
                if n in extra_tok: g.need(*extra_tok[n])
                if n > 10: g.need('ZCdone')
                g('s_barrier')
            if n == 0: g.extend(zaddr(0))
            if n == 18:
                for r in (vTa, vTb, vTs): bias[r] = 1
        if ph == 0: ar, coff = (vTb if c & 1 else vTa), 32 * c
        elif ph == 1: ar, coff = (vq2, 0) if c == 2 else ((vq4, 0) if c == 4 else (vQb, QIMM[c]))
        else: ar, coff = ((vTb if c & 1 else vTa), 32 * c) if c < 8 else (vTs, 0)
        toggle(g, ar, n)
        r = WFR + (f % NRING) * 4
        for hh in range(2):
            if OPT.get('halfread') and hh == 1:
                g('s_nop 0'); continue
            g('ds_read_b64_tr_b16 v[%d:%d], v%d offset:%d' % (r + 2 * hh, r + 2 * hh + 1, ar, (n & 1) * SLOT + ks * 10240 + hh * 1280 + coff))
        return g
    D = NRING - 1
    for f in range(D): S.extend(read(f))
    def tmpr(ph, c, b):
        pairs = [12, 14, 2] if ph == 0 else [12, 14, 6, 8]
        return pairs[(2 * c + b) % len(pairs)]
    def cvt(ph, c, b):
        a = acc(c, b); t = tmpr(ph, c, b)
        return G('v_cvt_pk_bf16_f32 v%d, v%d, v%d\nv_cvt_pk_bf16_f32 v%d, v%d, v%d' % (t, a, a + 1, t + 1, a + 2, a + 3))
    def cvti(a):
        return G('v_cvt_pk_bf16_f32 v%d, v%d, v%d\nv_cvt_pk_bf16_f32 v%d, v%d, v%d' % (a, a, a + 1, a + 1, a + 2, a + 3))
    def dw(ph, c, b, src=None):
        t = tmpr(ph, c, b) if src is None else src
        if OPT.get('nodw'): return []
        if ph == 0:
            return G('ds_write_b64 v10, v[%d:%d] offset:%d' % (t, t + 1, 16 * b * ZP + 32 * c), tok_w=['HB'])
        return G('ds_write_b64 v11, v[%d:%d] offset:%d' % (t, t + 1, (16 + 16 * b) * QP + 32 * c), tok_w=['QB'])
    x2 = Stream()
    for q in range(2 * NR1, 18):
        for b in range(2):
            x2('ds_read_b128 %s, v%d offset:%d' % (xf(q, b), vXo if q & 1 else vXe, b * P2 + (q - 2 * NR1) * 1024), tok_w=['TR2'])
    t2 = t2_writes([0, 1, 2])
    addr = G('''
    v_and_b32 v10, 15, v1
    s_lshl_b32 s98, s51, 5
    v_add_u32 v10, s98, v10
    v_mul_u32_u24 v11, %d, v10
    v_mul_u32_u24 v10, %d, v10
    v_lshrrev_b32 v12, 4, v1
    v_lshlrev_b32 v12, 3, v12
    s_mov_b32 s98, %d
    v_add3_u32 v10, v10, v12, s98
    s_mov_b32 s98, %d
    v_add3_u32 v11, v11, v12, s98
    ''' % (QP, ZP, ZB_OFF, QB_OFF))
    hw = G('s_mul_i32 s98, s51, %d\nv_subrev_u32 v5, s98, v11\nv_add_u32 v38, s69, v5' % (32 * QP))
    NC = OPT.get('nc', 0)
    share = []
    for k in range(NC):
        c = 9 - NC + k
        g = Stream()
        off = 16 * ZP + 32 * c
        g('ds_read_b64 v[12:13], v10 offset:%d' % off)
        for _ in range(OPT.get('rgap', 6)): g.append(None)
        g("""v_and_b32 v15, 0xffff0000, v13
        v_lshlrev_b32 v14, 16, v13
        v_and_b32 v13, 0xffff0000, v12
        v_lshlrev_b32 v12, 16, v12""")
        gelu4(g, 12, 36, c2=0)
        g('v_cvt_pk_bf16_f32 v36, v12, v13')
        g('v_cvt_pk_bf16_f32 v37, v14, v15')
        g('ds_write_b64 v10, v[36:37] offset:%d' % off, tok_w=['ZCdone'] if k == NC - 1 else [])
        share.append(list(g))
    light = [[3, list(addr) + list(qaddr()) + G('s_mov_b32 s78, 0x%x\nv_mov_b32 v0, 0x%x' % (fbits(C1), fbits(C2)))], [10, list(zaddr(1))]]
    cur = []
    zc_step = [None]
    att = []
    if OPT.get('attgap'):
        V2.S1 = XF; V2.QB_OFF = QB_OFF; V2.VOFF = 72; V2.QOFF = 144
        att = pace(V2.attention(0))
        print('att gaps', len(att))
    for f, (n, ks, c) in enumerate(frs):
        ph, j = divmod(n, 9)
        q = 2 * j + ks
        r = WFR + (f % NRING) * 4
        if stamp and q == 0 and c == 0 and ph > 0 and not OPT.get('trace'): stamp_mid(S, 88 + 2 * ph)
        hand = (q == 0 and ph > 0)
        if hand and c == 0:
            if ph == 2: S.extend(hw)
            S.extend(cvt(ph - 1, 0, 0))
        rd = read(f + D) if f + D < len(frs) else []
        if f % 2 == 0 and f + 1 < len(frs) and not OPT.get('allwait'):
            r1 = WFR + ((f + 1) % NRING) * 4
            S.need(*['v%d' % k for k in range(r1, r1 + 4)])
        for b in range(2):
            a = acc(c, b)
            S('v_mfma_f32_16x16x32_bf16 %s, %s, %s, %s' % (q4(a), q4(r), xf(q, b), '0' if q == 0 else q4(a)))
            S.extend(rd[:-1] if b == 0 else rd[-1:])
            if TM and n == 18:
                if c < 7:
                    if ks == 0 and b == 0: S.extend(cvt(1, c, 1))
                    if ks == 0 and b == 1: S.extend(dw(1, c, 0))
                    if ks == 1 and b == 0: S.extend(dw(1, c, 1))
                    if ks == 1 and b == 1 and c < 6: S.extend(cvt(1, c + 1, 0))
                if c == 2 and ks == 0: S.extend(cvti(acc(7, b)))
                if c == 3 and ks == 1: S.extend(G('ds_write_b64 v%d, v[%d:%d] offset:%d' % (5 if b else 38, hA + 4 * b, hA + 4 * b + 1, 128 * b), tok_w=['QB']))
            elif hand and c < 7:
                S.extend(dw(ph - 1, c, b))
                if ph == 1:
                    if c in (1, 2): S.extend(dw(0, 6 + c, b, acc(6 + c, b)))
                    if c == 2 and b == 1: S.extend(halo_read(0))
                else:
                    if c == 1: S.extend(G('ds_write_b64 v%d, v[%d:%d] offset:%d' % (5 if b else 38, hA + 4 * b, hA + 4 * b + 1, 128 * b), tok_w=['QB']))
                if 2 * c + b + 1 < 14: S.extend(cvt(ph - 1, c + b, 1 - b))
                if c == 0 or (c == 1 and ph == 1): S.extend(cvti(acc(7 + c, b)))
            if OPT.get('pfc') and n in OPT['pfc'] and ks == 1 and c == 0 and b == 0: S.extend(pf_touch(OPT['pfc'].index(n)))
            if OPT.get('mega') and not OPT.get('qpack') and ks == 0 and c == 2 and b == 0 and n in (1, OPT.get('arr', 8)): S.append('CZERO' if n == 1 else 'CARRIVE')
            if OPT.get('wtch') and n in OPT['wtch'] and ks == 0 and c == 5 and b == 0: S.extend(w_touch(*OPT['wtch'][n]))
            if OPT.get('wst') and n in OPT['wst'] and ks == 1 and c == 3 and b == 0: S.extend(ws_touch(OPT['wst'].index(n)))
            if n == 0 and t2 and b == 1: S.append(t2.pop(0))
            if n in (1, 2) and x2 and b == 1 and (n == 2 or ks == 1 or c > 0): S.append(x2.pop(0))
            gaps_left = sum(2 for ff in range(f, len(frs)) if frs[ff][0] < 18) - 12
            if not cur and share and not (light and n >= light[0][0]) and n >= 10 and (n >= 19 or gaps_left > len(share[0])) and not hand:
                cur.extend(share.pop(0))
            if cur:
                x = cur.pop(0)
                if x is not None: S.append(x)
                if not cur and not share: zc_step[0] = n
            elif att and n >= OPT['attgap']:
                x = att.pop(0)
                if x is not None: S.extend(x)
            elif light and n >= light[0][0]:
                x = light[0][1].pop(0); S.append(x)
                while x.kind == 'salu' and light[0][1]:
                    x = light[0][1].pop(0); S.append(x)
                if not light[0][1]: light.pop(0)
        if ph == 1 and c == 4:
            S('v_mfma_f32_16x16x32_bf16 %s, %s, %s, %s' % (q4(hA + 4), q4(r), q4(hX), '0' if q == 0 else q4(hA + 4)))
        if ph == 1 and c == 5:
            S('v_mfma_f32_16x16x32_bf16 %s, %s, %s, %s' % (q4(hA), q4(hW), q4(hX), '0' if q == 0 else q4(hA)))
            if q < 17 and (q & 1) == 0: S.extend(halo_read(q + 1))
        if ph == 1 and c == 6 and q < 17 and (q & 1) == 1: S.extend(halo_read(q + 1))
    assert not t2 and not x2 and not share and not cur
    OPT['zc_step'] = zc_step[0]
    for x in att:
        if x is not None: S.extend(x)
    n2a, n2b = norm_z2(range(NZC), (112, 144, 160, 2) if OPT.get('mega') else (176, 208, 244, 248))
    if OPT.get('mega'): OPT['mega'].cons_early(S)
    if not OPT.get('early'):
        S('s_barrier')
        S.extend(n2a)
    elif OPT.get('mega'): S('s_barrier')
    if stamp: stamp_mid(S, 94)
    S('''
    s_lshl_b32 s63, s48, 3
    s_lshl_b32 s98, s51, 1
    s_add_u32 s63, s63, s98
    s_mul_i32 s63, s63, 72
    s_mul_i32 s98, s49, 9
    s_add_u32 s98, s98, s52
    s_lshr_b32 s98, s98, 1
    s_add_u32 s63, s63, s98
    s_lshl_b32 s69, s63, 10
    s_add_u32 s70, s69, 73728
    s_cmp_eq_u32 s52, 0
    s_cselect_b32 s63, 4608, 0
    s_sub_u32 s63, s63, 512
    s_add_u32 s71, s69, s63
    s_add_u32 s72, s70, s63
    v_lshlrev_b32 v10, 4, v1
    v_lshrrev_b32 v12, 5, v1
    v_lshlrev_b32 v12, 8, v12
    v_and_b32 v13, 15, v1
    v_lshl_add_u32 v12, v13, 4, v12
    v_bfe_u32 v13, v1, 4, 1
    v_lshl_add_u32 v12, v13, 3, v12
    ''')
    G1 = OPT.get('gelu1', False)
    if G1:
        S('s_mov_b32 s78, 0x%x' % fbits(C1))
        S('v_mov_b32 v%d, 0x%x' % (vC2, fbits(C2)))
    for p in range(4):
        for b in range(2):
            a0 = acc(2 * p, b); a1 = acc(2 * p + 1, b)
            if G1: gelu4(S, a0, XF); gelu4(S, a1, XF + 4)
            o = XF + 8 + 4 * (2 * p + b) if not OPT.get('mega') else 168 + (b * 4 + p) * 4
            S('v_cvt_pk_bf16_f32 v%d, v%d, v%d' % (o, a0, a0 + 1))
            S('v_cvt_pk_bf16_f32 v%d, v%d, v%d' % (o + 1, a0 + 2, a0 + 3))
            S('v_cvt_pk_bf16_f32 v%d, v%d, v%d' % (o + 2, a1, a1 + 1))
            S('v_cvt_pk_bf16_f32 v%d, v%d, v%d' % (o + 3, a1 + 2, a1 + 3))
            for d in range(2): S('v_permlane32_swap_b32 v%d, v%d' % (o + d, o + 2 + d))
            for d in range(2): S('v_permlane16_swap_b32 v%d, v%d' % (o + d, o + 2 + d))
            if not OPT.get('mega'): S('buffer_store_dwordx4 %s, v10, s[32:35], s%d offen offset:%d' % (q4(o), 69 + b, p * 1024))
    for b in range(2):
        a0 = acc(8, b)
        if G1: gelu4(S, a0, XF)
        o = XF + 40 + 2 * b if not OPT.get('mega') else 200 + 2 * b
        S('v_cvt_pk_bf16_f32 v%d, v%d, v%d' % (o, a0, a0 + 1))
        S('v_cvt_pk_bf16_f32 v%d, v%d, v%d' % (o + 1, a0 + 2, a0 + 3))
        if not OPT.get('mega'): S('buffer_store_dwordx2 v[%d:%d], v12, s[32:35], s%d offen' % (o, o + 1, 71 + b))
    V2.S1 = 40; V2.QB_OFF = QB_OFF; V2.VOFF = 72; V2.QOFF = 144
    ost = []
    if not OPT.get('attgap'):
        for x in V2.attention(0):
            if OPT.get('mega') and isinstance(x, list) and any(y.kind == 'vmem' for y in x): ost.append(x)
            else: S.append(x)
    if OPT.get('late'): S('s_barrier')
    if not OPT.get('early'): S.extend(n2b)
    S.extend(ost)
    OPT['n_ost'] = sum(1 for x in ost for y in x if y.kind == 'vmem')
    if stamp:
        stamp_mid(S, 96)
        if not OPT.get('mega'): S('s_waitcnt vmcnt(0)')
        stamp_mid(S, 70)
        stamp_store(S, 84, [86, 88, 90, 92, 94, 96, 70 if not OPT.get('ptrace') else 66], 14, 0, 72, 12, wave_s=50)
    if OPT.get('mega'): S('s_branch K2_CONS')
    else: S('s_endpgm')
    return S

def compute2(stamp):
    S = Stream()
    vXe = 6; vXo = 7
    xloads(S, [0])
    common_setup(S)
    srd(S, 32, 14, 15, Z1P_SZ, Z1P_OFF)
    S('''
    s_mul_i32 s63, s51, %d
    s_add_u32 s63, s63, %d
    v_add_u32 v6, s63, v6
    v_xor_b32 v7, 64, v6
    ''' % (2 * P1, T1_OFF))
    if stamp: stamp_mid(S, 86)
    layernorm(S, [0, 1, 2])
    for q in range(2 * NR1):
        for b in range(2):
            S('ds_read_b128 %s, v%d offset:%d' % (xf(q, b), vXo if q & 1 else vXe, b * P1 + q * 1024), tok_w=['TR'])
    for j in range(NR1, 9): norm4(S, ln(2, j), ST + 4, ST + 6)
    t2_addr(S)
    S('s_mul_i32 s63, s51, %d' % (2 * (P2 - P1)))
    S('s_add_u32 s63, s63, %d' % (T2_OFF - T1_OFF))
    S.need('TR')
    S('s_barrier')
    S('v_add_u32 v6, s63, v6')
    S('v_add_u32 v7, s63, v7')
    S('s_setprio %d' % OPT.get('prio', 2))
    if stamp: stamp_mid(S, 88)
    ntile = [9, 9, 7]
    def acc(c, b): return ACC + (c * 2 + b) * 4
    hA = ACC + 56; hX = ACC + 64; hW = ACC + 68
    vTa = 2; vTb = 3; vq2 = 2; vq4 = 3; vQb = 4; vXH = 9; vqh = 8; vZa = 5; vZb = 6; vTs = 7
    frs = [(n, ks, c) for n in range(27) for ks in range(2) for c in range(ntile[n // 9])]
    def order(n):
        nt = ntile[n // 9]
        if n == 9: return [(ks, c) for c in range(nt) for ks in range(2)]
        if n == 18: return [(ks, c) for c in range(4) for ks in range(2)] + [(ks, c) for ks in range(2) for c in range(4, 7)]
        return [(ks, c) for ks in range(2) for c in range(nt)]
    frs = [(n, ks, c) for n in range(27) for ks, c in order(n)]
    bias = {}
    extra_tok = {1: ['T2'], 9: ['TR2'], 11: ['HB']}
    QIMM = {0: 0, 1: 32, 3: 120, 5: 160 + 48, 6: 192 + 48}
    def zaddr(mode):
        g = Stream()
        g("""v_bfe_u32 v15, v1, 4, 1
        v_lshlrev_b32 v15, 5, v15""")
        if mode == 0:
            g("""s_cmp_eq_u32 s52, 0
            s_cselect_b32 s98, 1, -1
            s_lshl_b32 s99, s52, 5
            v_mul_lo_u32 v15, v15, s98
            v_add3_u32 v%d, v%d, v15, s99
            v_sub_u32 v%d, v%d, v15
            v_add_u32 v%d, s99, v%d""" % (vTa, vT, vTb, vT, vTb, vTb))
        else:
            g("""s_lshl_b32 s99, s52, 6
            v_add3_u32 v%d, v%d, v15, s99
            v_sub_u32 v%d, v%d, v15
            v_add_u32 v%d, 256, v%d
            v_add_u32 v15, 32, v%d
            s_cmp_eq_u32 s52, 0
            s_cselect_b64 vcc, -1, 0
            v_cndmask_b32 v%d, v15, v%d, vcc
            v_add_u32 v%d, s99, v%d""" % (vZa, vT, vZb, vT, vTs, vZa, vZb, vTs, vTs, vZb, vZb))
        return g
    def qaddr():
        g = Stream()
        g("""v_bfe_u32 v15, v1, 4, 1
        v_lshlrev_b32 v15, 5, v15
        s_mul_i32 s98, s49, 72
        s_and_b32 s98, s98, 31
        s_add_u32 s98, s98, {bias}
        v_add3_u32 v{qb}, v{T}, v15, s98
        v_and_b32 v15, 3, v1
        v_cmp_le_u32 vcc, 2, v15
        v_cndmask_b32 v14, 0, 24, vcc
        v_add_u32 v14, 152, v14
        v_add_u32 v{q4}, v{qb}, v14
        v_cmp_le_u32 vcc, 1, v15
        v_cndmask_b32 v14, 0, 24, vcc
        v_add_u32 v14, 64, v14
        v_add_u32 v{q2}, v{qb}, v14
        s_lshl_b32 s73, s51, 5
        s_cmp_eq_u32 s51, 3
        s_cselect_b32 s99, 24, 0
        s_add_u32 s99, s99, s73
        v_add_u32 v{qh}, s99, v{qb}
        s_cmp_eq_u32 s51, 2
        s_cselect_b64 vcc, -1, 0
        v_cndmask_b32 v{qh}, v{qh}, v{q2}, vcc
        v_and_b32 v14, 15, v1
        v_lshrrev_b32 v15, 4, v1
        v_xor_b32 v14, v14, v15
        v_lshl_add_u32 v14, v15, 4, v14
        v_lshlrev_b32 v14, 4, v14
        v_add_u32 v{xh}, {XH}, v14""".format(qb=vQb, T=vT, q4=vq4, q2=vq2, qh=vqh, xh=vXH, XH=XH_OFF, bias=2 * SLOT))
        return g
    def toggle(g, ar, n):
        want = (n & 3) >> 1
        if bias.get(ar, 0) != want:
            g('v_add_u32 v%d, %d, v%d' % (ar, 2 * SLOT if want else -2 * SLOT, ar))
            bias[ar] = want
    def halo_read(q):
        g = Stream()
        n = 18 + q // 2
        g('ds_read_b128 %s, v%d offset:%d' % (q4(hX), vXH, q * 1024), tok_w=['XHR'])
        toggle(g, vqh, n)
        for hh in range(2):
            g('ds_read_b64_tr_b16 v[%d:%d], v%d offset:%d' % (hW + 2 * hh, hW + 2 * hh + 1, vqh, (n & 1) * SLOT + (q & 1) * 10240 + hh * 1280))
        return g
    def read(f):
        n, ks, c = frs[f]
        ph = n // 9
        g = Stream()
        if ks == 0 and c == 0:
            if n > 0:
                if n in extra_tok: g.need(*extra_tok[n])
                if n > 10: g.need('ZCdone')
                g('s_barrier')
            if n == 0: g.extend(zaddr(0))
            if n == 18:
                for r in (vQb, vq2, vq4, vqh): bias[r] = 1
        if ph == 0: ar, coff = (vTb if c & 1 else vTa), 32 * c
        elif ph == 2: ar, coff = (vq2, 0) if c == 2 else ((vq4, 0) if c == 4 else (vQb, QIMM[c]))
        else: ar, coff = ((vZb if c & 1 else vZa), 32 * c) if c < 8 else (vTs, 0)
        toggle(g, ar, n)
        r = WFR + (f % NRING) * 4
        for hh in range(2):
            if OPT.get('halfread') and hh == 1:
                g('s_nop 0'); continue
            g('ds_read_b64_tr_b16 v[%d:%d], v%d offset:%d' % (r + 2 * hh, r + 2 * hh + 1, ar, (n & 1) * SLOT + ks * 10240 + hh * 1280 + coff))
        return g
    D = NRING - 1
    for f in range(D): S.extend(read(f))
    def tmpr(ph, c, b):
        pairs = [12, 14, 2, 36, 38]
        return pairs[(2 * c + b) % len(pairs)]
    def cvt(ph, c, b):
        a = acc(c, b); t = tmpr(ph, c, b)
        return G('v_cvt_pk_bf16_f32 v%d, v%d, v%d\nv_cvt_pk_bf16_f32 v%d, v%d, v%d' % (t, a, a + 1, t + 1, a + 2, a + 3))
    def cvti(a):
        return G('v_cvt_pk_bf16_f32 v%d, v%d, v%d\nv_cvt_pk_bf16_f32 v%d, v%d, v%d' % (a, a, a + 1, a + 1, a + 2, a + 3))
    def dw(ph, c, b, src=None):
        t = tmpr(ph, c, b) if src is None else src
        if OPT.get('nodw'): return []
        if ph == 0:
            return G('ds_write_b64 v10, v[%d:%d] offset:%d' % (t, t + 1, 16 * b * ZP + 32 * c), tok_w=['HB'])
        return G('ds_write_b64 v11, v[%d:%d] offset:%d' % (t, t + 1, (16 + 16 * b) * QP + 32 * c), tok_w=['QB'])
    x2 = Stream()
    for q in range(2 * NR1, 18):
        for b in range(2):
            x2('ds_read_b128 %s, v%d offset:%d' % (xf(q, b), vXo if q & 1 else vXe, b * P2 + (q - 2 * NR1) * 1024), tok_w=['TR2'])
    t2 = t2_writes([0, 1, 2])
    addr = G('''
    v_and_b32 v10, 15, v1
    s_lshl_b32 s98, s51, 5
    v_add_u32 v10, s98, v10
    v_mul_u32_u24 v11, %d, v10
    v_mul_u32_u24 v10, %d, v10
    v_lshrrev_b32 v12, 4, v1
    v_lshlrev_b32 v12, 3, v12
    s_mov_b32 s98, %d
    v_add3_u32 v10, v10, v12, s98
    s_mov_b32 s98, %d
    v_add3_u32 v11, v11, v12, s98
    ''' % (QP, ZP, ZB_OFF, QB_OFF))
    hw = G('s_mul_i32 s98, s51, %d\nv_subrev_u32 v5, s98, v11\nv_add_u32 v38, s69, v5' % (32 * QP))
    NC = OPT.get('nc', 0)
    share = []
    for k in range(NC):
        c = 9 - NC + k
        g = Stream()
        off = 16 * ZP + 32 * c
        g('ds_read_b64 v[12:13], v10 offset:%d' % off)
        for _ in range(OPT.get('rgap', 6)): g.append(None)
        g("""v_and_b32 v15, 0xffff0000, v13
        v_lshlrev_b32 v14, 16, v13
        v_and_b32 v13, 0xffff0000, v12
        v_lshlrev_b32 v12, 16, v12""")
        gelu4(g, 12, 36, c2=0)
        g('v_cvt_pk_bf16_f32 v36, v12, v13')
        g('v_cvt_pk_bf16_f32 v37, v14, v15')
        g('ds_write_b64 v10, v[36:37] offset:%d' % off, tok_w=['ZCdone'] if k == NC - 1 else [])
        share.append(list(g))
    zoff = G("""
    s_lshl_b32 s63, s48, 3
    s_lshl_b32 s98, s51, 1
    s_add_u32 s63, s63, s98
    s_mul_i32 s63, s63, 72
    s_mul_i32 s98, s49, 9
    s_add_u32 s98, s98, s52
    s_lshr_b32 s98, s98, 1
    s_add_u32 s63, s63, s98
    s_lshl_b32 s69, s63, 10
    s_add_u32 s70, s69, 73728
    s_cmp_eq_u32 s52, 0
    s_cselect_b32 s63, 4608, 0
    s_sub_u32 s63, s63, 512
    s_add_u32 s71, s69, s63
    s_add_u32 s72, s70, s63
    v_lshlrev_b32 v10, 4, v1
    v_lshrrev_b32 v0, 5, v1
    v_lshlrev_b32 v0, 8, v0
    v_and_b32 v13, 15, v1
    v_lshl_add_u32 v0, v13, 4, v0
    v_bfe_u32 v13, v1, 4, 1
    v_lshl_add_u32 v0, v13, 3, v0
    """)
    light = [[3, list(addr) + list(zaddr(1)) + G('s_mov_b32 s78, 0x%x\nv_mov_b32 v0, 0x%x' % (fbits(C1), fbits(C2)))], [10, list(qaddr())], [17, zoff]]
    WT = ' sc1' if OPT.get('wt', 1) else ''
    def cv(o, a): return G('v_cvt_pk_bf16_f32 v%d, v%d, v%d\nv_cvt_pk_bf16_f32 v%d, v%d, v%d' % (o, a, a + 1, o + 1, a + 2, a + 3))
    def pairfin(p, dst):
        g = Stream()
        for sw in ('v_permlane32_swap_b32', 'v_permlane16_swap_b32'):
            for b in range(2):
                for d in range(2): g('%s v%d, v%d' % (sw, dst[b] + d, dst[b] + 2 + d))
        for b in range(2): g('buffer_store_dwordx4 %s, v10, s[32:35], s%d offen offset:%d%s' % (q4(dst[b]), 69 + b, p * 1024, WT))
        return list(g)
    def pair(p):
        dst = [acc(2 * p, 0), acc(2 * p, 1)]
        return cv(dst[0], dst[0]) + cv(dst[1], dst[1]) + cv(dst[0] + 2, acc(2 * p + 1, 0)) + cv(dst[1] + 2, acc(2 * p + 1, 1)) + pairfin(p, dst)
    single = []
    for b in range(2): single += cv(acc(8, b), acc(8, b))
    for b in range(2): single += G('buffer_store_dwordx2 v[%d:%d], v0, s[32:35], s%d offen%s' % (acc(8, b), acc(8, b) + 1, 71 + b, WT))
    zw = [(2, x) for x in cv(14, acc(1, 0)) + cv(38, acc(1, 1))] + [(4, x) for x in pair(1)] + [(6, x) for x in single] + [(7, x) for x in pairfin(0, [12, 36])] + [(8, x) for x in pair(2) + pair(3)]
    cur = []
    zc_step = [None]
    fi = 0
    for f, (n, ks, c) in enumerate(frs):
        ph, j = divmod(n, 9)
        q = 2 * j + ks
        r = WFR + (f % NRING) * 4
        first = (j == 0 and ks == 0 and c == 0)
        if first: fi = 0
        if stamp and first and ph > 0 and not OPT.get('trace'): stamp_mid(S, 88 + 2 * ph)
        if first and ph == 1: S.extend(cvt(0, 0, 0))
        if first and ph == 2:
            assert not light and not cur and not share
            S.extend(cv(12, acc(0, 0)) + cv(36, acc(0, 1)))
        if n == 18: assert not zw or zw[0][0] > fi, (fi, zw[0][0])
        rd = read(f + D) if f + D < len(frs) else []
        if f % 2 == 0 and f + 1 < len(frs) and not OPT.get('allwait'):
            r1 = WFR + ((f + 1) % NRING) * 4
            S.need(*['v%d' % k for k in range(r1, r1 + 4)])
        for b in range(2):
            a = acc(c, b)
            S('v_mfma_f32_16x16x32_bf16 %s, %s, %s, %s' % (q4(a), q4(r), xf(q, b), '0' if q == 0 else q4(a)))
            S.extend(rd[:-1] if b == 0 else rd[-1:])
            if n == 9:
                if ks == 0 and b == 0: S.extend(cvt(0, c, 1))
                if ks == 0 and b == 1: S.extend(dw(0, c, 0))
                if ks == 1 and b == 0: S.extend(dw(0, c, 1))
                if ks == 1 and b == 1 and c < 8: S.extend(cvt(0, c + 1, 0))
            if n == 18:
                for _ in range(OPT.get('zrate', 5)):
                    if zw: S.append(zw.pop(0)[1])
                if fi == 6 and b == 1: S.extend(halo_read(0))
            if n == 0 and t2 and b == 1: S.append(t2.pop(0))
            if n in (1, 2) and x2 and b == 1 and (n == 2 or ks == 1 or c > 0): S.append(x2.pop(0))
            gaps_left = sum(2 for ff in range(f, len(frs)) if frs[ff][0] < 17)
            if not cur and share and not (light and n >= light[0][0]) and n >= 10 and gaps_left > len(share[0]):
                cur.extend(share.pop(0))
            if cur:
                x = cur.pop(0)
                if x is not None: S.append(x)
                if not cur and not share: zc_step[0] = n
            elif light and n >= light[0][0] and n != 9:
                x = light[0][1].pop(0); S.append(x)
                while x.kind == 'salu' and light[0][1]:
                    x = light[0][1].pop(0); S.append(x)
                if not light[0][1]: light.pop(0)
        if ph == 2 and c == 4:
            S('v_mfma_f32_16x16x32_bf16 %s, %s, %s, %s' % (q4(hA + 4), q4(r), q4(hX), '0' if q == 0 else q4(hA + 4)))
        if ph == 2 and c == 5:
            S('v_mfma_f32_16x16x32_bf16 %s, %s, %s, %s' % (q4(hA), q4(hW), q4(hX), '0' if q == 0 else q4(hA)))
            if q < 17 and (q & 1) == 0: S.extend(halo_read(q + 1))
        if ph == 2 and c == 6 and q < 17 and (q & 1) == 1: S.extend(halo_read(q + 1))
        fi += 1
    assert not t2 and not x2 and not share and not cur and not zw
    OPT['zc_step'] = zc_step[0]
    if stamp: stamp_mid(S, 94)
    S('s_mul_i32 s98, s51, %d' % (32 * QP))
    S('v_subrev_u32 v5, s98, v11')
    S('v_add_u32 v6, s73, v5')
    for c in range(8):
        for b in range(2): S.extend(cvti(acc(c, b)))
    S('s_barrier')
    for c in range(7):
        for b in range(2): S.extend(dw(1, c, b, acc(c, b)))
    for b in range(2): S('ds_write_b64 v%d, v[%d:%d] offset:%d' % (5 if b else 6, hA + 4 * b, hA + 4 * b + 1, 128 * b), tok_w=['QB'])
    nz = OPT.get('nzc', 0)
    if nz:
        n2a, n2b = norm_z2(range(nz))
        S.extend(n2a)
    S.need('QB')
    S('s_barrier')
    V2.S1 = 40; V2.QB_OFF = QB_OFF; V2.VOFF = 72; V2.QOFF = 144
    S.extend(V2.attention(0))
    if OPT.get('attc'): S.extend(V2.attention(1))
    if nz: S.extend(n2b)
    if stamp:
        stamp_mid(S, 96)
        S('s_waitcnt vmcnt(0)')
        stamp_mid(S, 70)
        stamp_store(S, 84, [86, 88, 90, 92, 94, 96, 70 if not OPT.get('ptrace') else 66], 14, 0, 72, 12, wave_s=50)
    S('s_endpgm')
    return S

HL = 232
def helper(stamp):
    S = Stream()
    S('K1_HELP:')
    if OPT.get('cpf'): S.extend(code_prefetch('k1_kernel', 'k2_kernel', 1, 40, 34, 64, 12, neg=True))
    S("""s_getpc_b64 s[64:65]
    s_add_u32 s64, s64, K1_TAB@rel32@lo+4
    s_addc_u32 s65, s65, K1_TAB@rel32@hi+12
    s_lshl_b32 s66, s51, 12
    v_lshlrev_b32 v32, 4, v1
    v_add_u32 v32, s66, v32
    v_mov_b32 v33, s65
    v_add_co_u32 v32, vcc, s64, v32
    v_addc_co_u32 v33, vcc, 0, v33, vcc
    global_load_dwordx4 v[16:19], v[32:33], off
    global_load_dwordx4 v[20:23], v[32:33], off offset:1024
    global_load_dwordx4 v[24:27], v[32:33], off offset:2048
    global_load_dwordx4 v[64:67], v[32:33], off offset:3072""")
    if OPT.get('qpack'): S.append('HZERO')
    xloads(S, [0])
    common_setup(S)
    srd(S, 20, 6, 7, 576 * 3456)
    srd(S, 24, 8, 9, 576 * 9216)
    S("""
    s_lshl_b32 s68, s51, 10
    s_mul_i32 s64, s49, 288
    s_and_b32 s64, s64, -64
    s_mul_i32 s65, s49, 72
    s_and_b32 s65, s65, -32
    v_mov_b32 v106, 0x7f000000
    """)
    srd(S, 4, 10, 11, 2048 * 4096)
    vHW = 26; vH0 = 28
    QH = Stream()
    QH("""
    s_mov_b32 s78, 0x%x
    v_mov_b32 v%d, 0x%x
    s_lshl_b32 s8, s2, 15
    s_lshl_b32 s9, s51, 11
    s_add_u32 s8, s8, s9
    v_lshlrev_b32 v8, 7, v1
    s_mul_i32 s98, s48, %d
    s_sub_u32 s98, s98, %d
    v_add_u32 v100, s98, v27
    v_bfe_u32 v101, v1, 3, 1
    v_add_u32 v101, s%d, v101
    """ % (fbits(C1), vC2, fbits(C2), 128 * 1152, 16 * 1152, sBLK))
    for t in range(5):
        QH('v_add_u32 v102, %d, v101' % (2 * t))
        QH('v_subrev_u32 v103, 9, v102')
        QH('v_min_u32 v102, v102, v103')
        QH('v_lshl_add_u32 v%d, v102, 7, v100' % (vH0 + t))
    QH('''
    v_and_b32 v103, 15, v1
    v_cmp_gt_u32 vcc, 8, v103
    v_cndmask_b32 v%d, v106, v%d, vcc
    ''' % (vH0 + 4, vH0 + 4))
    for t in range(5):
        QH('buffer_load_dwordx4 %s, v%d, s[16:19], 0 offen' % (q4(HL + 4 * t), vH0 + t))
    QK = Stream()
    if OPT.get('qpack'):
        S("""s_mul_i32 s63, s48, %d
        s_add_u32 s63, s63, s65""" % (36 * 3456))
        for e in range(3): S('buffer_load_dwordx4 %s, v%d, s[20:23], s63 offen' % (q4(120 + 4 * e), 64 + e))
        srd(QK, 20, 14, 15, QK_SZ, QK_OFF)
        QK("""s_mul_i32 s65, s49, %d
        s_mul_i32 s63, s48, %d
        s_add_u32 s63, s63, s65
        s_mul_i32 s66, s51, 2592
        s_add_u32 s63, s63, s66
        v_lshlrev_b32 v69, 4, v1""" % (576 * 288, 36 * 288))
        for e in range(3):
            if e == 2: QK('s_mov_b32 exec_hi, 3')
            QK('buffer_store_dwordx4 %s, v69, s[20:23], s63 offen offset:%d sc1' % (q4(120 + 4 * e), 1024 * e), tok_w=['QKS'])
        QK('s_mov_b32 exec_hi, -1')
        QK.append('HARRIVE')
    if stamp: stamp_mid(S, 86)
    layernorm(S, [3], mid=list(QK) + list(wdma(0)), mid2=wdma(1))
    for j in range(NR1, 9): norm4(S, ln(0, j), ST, ST + 6)
    t2_addr(S)
    S.need('W0')
    S('s_barrier')
    if stamp: stamp_mid(S, 88)
    q1 = list(QH) + list(ln_halo(vHW))
    q2 = list(epi_z2())
    V2.S1 = 136; V2.QB_OFF = QB_OFF; V2.VOFF = 72; V2.QOFF = 144
    q3 = list(V2.attention(1))
    B = OPT.get('budget', 64)
    if OPT.get('e2cut') is not None:
        keepn = OPT['e2cut']
        q2 = q2[:keepn] + [x for x in q2[-1:]]
    if OPT.get('noside'):
        q1 = []; q2 = q2[-1:]; q3 = []
    pub_step = None
    n2a, n2b = norm_z2(range(OPT.get('nzc', 0) if (OPT.get('zzq') or OPT.get('early')) else NZC, 9))
    q4_ = list(n2a) + list(n2b)
    for n in range(27):
        if n > 0:
            toks = ['W%d' % n]
            if n == 1: toks.append('T2')
            if n == 4: toks.append('ZE')
            if n == 1: toks.append('QKS')
            if n == 7 and OPT.get('qpack'): S.append('QCHECK')
            if n == (18 if OPT.get('zzq') else 9): toks.append('XH')
            if (OPT.get('zzq') or OPT.get('early')) and n == OPT.get('pollstep', 25): S.append('POLLCHECK')
            if pub_step is not None and n == pub_step + 2: toks += ['PUB', 'ZB']
            if OPT.get('trace'):
                S('s_memtime s[96:97]\ns_waitcnt lgkmcnt(0)\ns_sub_u32 s96, s96, s84\nv_writelane_b32 v254, s96, %d' % n)
            S.need(*toks)
            if OPT.get('trace'):
                S('s_memtime s[96:97]\ns_waitcnt lgkmcnt(0)\ns_sub_u32 s96, s96, s84\nv_writelane_b32 v254, s96, %d' % (n + 32))
            S('s_barrier')
            if OPT.get('trace'):
                S('s_memtime s[96:97]\ns_waitcnt lgkmcnt(0)\ns_sub_u32 s96, s96, s84\nv_writelane_b32 v255, s96, %d' % n)
            if pub_step is not None and n == pub_step + 2: S.append('ATOMIC')
        if stamp and n in (9, 18): stamp_mid(S, 88 + 2 * (n // 9))
        mem = []
        if n + 2 < 27 and not OPT.get('nodma'):
            w = list(wdma(n + 2))
            mem = [w[:-8]] + [w[-8 + 2 * k:len(w) - 6 + 2 * k] for k in range(4)]
            assert sum(len(x) for x in mem) == len(w)
            if OPT.get('dg') == 3: mem = [mem[0] + mem[1], mem[2] + mem[3], mem[4]]
            if OPT.get('dg') == 2: mem = [mem[0] + mem[1] + mem[2], mem[3] + mem[4]]
        if n in (2, 4, 6, 9) and not OPT.get('nopf') and not OPT.get('pfc'):
            mem.append(G('''s_mov_b32 m0, %d
            s_mov_b64 exec, 0xffff
            buffer_load_dword v8, s[4:7], s8 offen lds
            s_mov_b64 exec, -1
            s_add_u32 s8, s8, 8192''' % SB_OFF))
        if OPT.get('pf3') and n in (12, 15) and not OPT.get('pfc'):
            mem.append(G('''s_load_dwordx2 s[4:5], s[0:1], %d
            s_mov_b32 s6, %d
            s_mul_i32 s8, s2, %d
            s_mul_i32 s12, s51, %d
            s_add_u32 s8, s8, s12
            s_mov_b32 m0, %d
            s_waitcnt lgkmcnt(0)
            s_mov_b64 exec, 0x%x
            buffer_load_dword v8, s[4:7], s8 offen lds
            s_mov_b64 exec, -1''' % ((56, 2304 * 1152, 10368, 2688, SB_OFF, 0x1fffff) if n == 12 else (16, 576 * 1152, 2688, 768, SB_OFF, 0x3f))))
        for tn, n0 in OPT.get('hspread', {}).items():
            if n0 <= n < n0 + 5:
                w = [x for x in wdma(tn)]
                g = [I(x.text.replace('s63', 's13')) for x in w[:-10]] + G('s_mov_b32 m0, %d' % SB_OFF)
                g += G([x for x in w[-10:] if x.kind == 'dma'][n - n0].text.replace('dwordx4', 'dword').replace('s63', 's13'))
                mem.append(g)
        for tn in OPT.get('htouch', {}).get(n, []):
            w = [x for x in wdma(tn)]
            g = [x for x in w[:-10]] + G('s_mov_b32 m0, %d' % SB_OFF)
            for x in w[-10:]:
                if x.kind == 'dma': g += G(x.text.replace('dwordx4', 'dword'))
            mem.append(g)
        work = []
        if n == 0: work += list(t2_writes([3]))
        if n == 18 and not OPT.get('flags', 1): work += G('s_lshl_b32 s9, s48, 4\nv_mov_b32 v6, 0')
        if OPT.get('qpack'):
            for tk in {1: ['ENTRY1', 'QFLAG'], 2: ['GATE1'], 4: ['GATE2'], 5: ['QISSUE']}.get(n, []): work.append(tk)
        elif OPT.get('flags', 1) and n in (1, 4, 13, 16): work.append({1: 'ENTRY1', 4: 'ENTRY2', 13: 'GATE1', 16: 'GATE2'}[n])
        if n == (OPT.get('pollstep', 25) - 1 if (OPT.get('zzq') or OPT.get('early')) else 26): work.append('POLLISSUE')
        if n == 17 and OPT.get('pf3') and not OPT.get('mega'): work.append('ZERO')
        if n == 19 and OPT.get('mega'): work += G('v_mov_b32 v40, 159744\nv_mov_b32 v42, 0\nv_mov_b32 v43, 0\nv_mov_b32 v44, 0\nv_mov_b32 v45, 0') + G('ds_write_b128 v40, v[42:45]', tok_w=['ZB']) + G('ds_write_b128 v40, v[42:45] offset:16', tok_w=['ZB'])
        if OPT.get('cpf') == 1 and n == 22: work.append(code_prefetch('K2_TEXT' if OPT.get('mega') else 'k2_kernel', 'TEXT_END', 1, 32, 35, 10, 12))
        def drain(q, budget):
            while q and budget > 0:
                if isinstance(q[0], tuple) and q[0][0] == 'WAITSTEP':
                    if n < q[0][1]: break
                    q.pop(0); continue
                x = q.pop(0); budget -= wt(x); work.append(x)
            return budget
        budget = B
        if 0 <= n <= 10 and q1: drain(q1, OPT.get('b1', 34) if n < (10 if OPT.get('zzq') else 8) else 1e9)
        if n >= (11 if OPT.get('zzq') or OPT.get('m32') else 10) and q2:
            budget = drain(q2, budget)
            if not q2: pub_step = max(n, 17)
        elif OPT.get('early') and n >= OPT['pollstep']:
            drain(q4_, len(n2a) if n == OPT['pollstep'] else OPT.get('nbudget', 60))
            if n == OPT['pollstep']: drain(q3, OPT.get('abudget', 36))
        elif n >= (20 if OPT.get('m32') or OPT.get('tm') else 19) and not OPT.get('zzq'): drain(q3, OPT.get('abudget', 36))
        elif OPT.get('zzq') and n >= OPT.get('pollstep', 25): drain(q4_, OPT.get('nbudget', 50) if n > OPT.get('pollstep', 25) else len(n2a))
        tot = sum(wt(x) for x in work); acc_ = 0.0; k = 0
        for x in work:
            while k < len(mem) and acc_ >= tot * k / (len(mem) + OPT.get('dmaslack', 1)):
                S.extend(mem[k]); k += 1
            S.append(x); acc_ += wt(x)
        while k < len(mem):
            S.extend(mem[k]); k += 1
    late = pub_step is None or pub_step + 2 > 26
    assert late == bool(OPT.get('late')), (pub_step, 'set late option accordingly')
    if late:
        S.extend(q2)
        S.need('ZB')
        h = len(q3) // 2
        S.extend(q3[:h]); q3 = q3[h:]
        S.need('PUB')
        S('s_barrier')
        S.append('ATOMIC')
    if stamp: stamp_mid(S, 94)
    if OPT.get('zzq'):
        assert pub_step + 2 < OPT.get('pollstep', 25)
        if OPT.get('pollstep') == 27: S.append('POLLCHECK')
        S('s_barrier')
        k = min(len(q4_), OPT.get('n2mid', 60))
        S.extend(q4_[:k]); q4_ = q4_[k:]
        S('s_barrier')
        S.extend(q4_)
        if not OPT.get('attc'): S.extend(q3)
    elif OPT.get('early'):
        assert pub_step + 2 < OPT['pollstep']
        if OPT.get('mega'):
            S('s_barrier')
            OPT['mega'].prod_early(S)
        S.extend(q4_); S.extend(q3)
    else:
        S.append('POLLCHECK')
        S('s_barrier')
        S.extend(n2a)
        if OPT.get('mega'): OPT['mega'].prod_early(S)
        S.extend(q3)
        S.extend(n2b)
    if stamp:
        stamp_mid(S, 96)
        if not OPT.get('mega'): S('s_waitcnt vmcnt(0)')
        stamp_mid(S, 70)
        stamp_store(S, 84, [86, 88, 90, 92, 94, 96, 70 if not OPT.get('ptrace') else 66], 14, 0, 72, 12, wave_s=50)
    if OPT.get('trace'):
        S('''s_lshl_b32 s75, s2, 11
        s_lshl_b32 s74, s51, 9
        s_add_u32 s75, s75, s74
        s_add_u32 s75, s75, 0x80000
        v_lshlrev_b32 v12, 2, v1
        buffer_store_dword v254, v12, s[76:79], s75 offen
        buffer_store_dword v255, v12, s[76:79], s75 offen offset:256''')
    if OPT.get('mega'): OPT['mega'].producer(S)
    S('K1_END:')
    S('s_endpgm')
    print('k1 helper: zc', OPT.get('zc_step'), 'pub_step', pub_step, 'att left', sum(wt(x) for x in q3))
    return S

def poll_issue(vr, va):
    return G('s_lshl_b32 s9, s48, 4\nv_mov_b32 v%d, 0' % va) + G('buffer_load_dword v%d, v%d, s[44:47], s9 offen sc1' % (vr, va))
def poll(S, tag, vr=7, va=6):
    S('v_readfirstlane_b32 s11, v%d' % vr)
    S('s_mov_b32 s10, 0')
    S('s_cmp_ge_u32 s11, 16')
    S('s_cbranch_scc1 K1_NOPOLL%s' % tag)
    S("""
    K1_POLL%s:
    s_sleep SLP
    buffer_load_dword v7, v6, s[44:47], s9 offen sc1
    s_waitcnt vmcnt(0)
    v_readfirstlane_b32 s11, v7
    s_add_u32 s10, s10, 1
    s_cmp_ge_u32 s11, 16
    s_cbranch_scc1 K1_NOPOLL%s
    s_cmp_lt_u32 s10, 0x20000
    s_cbranch_scc1 K1_POLL%s
    K1_NOPOLL%s:
    """.replace('SLP', str(OPT.get('slp', 4))).replace('v7', 'v%d' % vr).replace('v6', 'v%d' % va) % (tag, tag, tag, tag))
    S.append(('KEEPQ', 1))

def ln_halo(vHW):
    A = Stream()
    h0 = ST + 4; t = ST + 6
    for k in range(20):
        r = HL + k; tt = t + 2 * (k & 1)
        A('v_lshlrev_b32 v%d, 16, v%d' % (tt, r))
        A('v_and_b32 v%d, 0xffff0000, v%d' % (tt + 1, r))
        if k == 0:
            A('v_add_f32 v%d, v%d, v%d' % (h0, tt, tt + 1))
            A('v_mul_f32 v%d, v%d, v%d' % (h0 + 1, tt, tt))
        else:
            A('v_add_f32 v%d, v%d, v%d' % (h0, h0, tt))
            A('v_fmac_f32 v%d, v%d, v%d' % (h0 + 1, tt, tt))
            A('v_add_f32 v%d, v%d, v%d' % (h0, h0, tt + 1))
        A('v_fmac_f32 v%d, v%d, v%d' % (h0 + 1, tt + 1, tt + 1))
    for m in ('quad_perm:[1,0,3,2]', 'quad_perm:[2,3,0,1]', 'row_half_mirror', 'row_mirror'):
        for r in (h0, h0 + 1):
            A('v_add_f32_dpp v%d, v%d, v%d %s row_mask:0xf bank_mask:0xf' % (r, r, r, m))
    rowstats(A, h0, ST + 6, 's83')
    for t in range(5):
        norm4(A, HL + 4 * t, h0, ST + 6)
        g = Stream()
        if t == 4:
            g('s_mov_b32 exec_lo, 0x00ff00ff')
            g('s_mov_b32 exec_hi, 0x00ff00ff')
        g('ds_write_b128 v%d, %s offset:%d' % (vHW, q4(HL + 4 * t), t * 4096), tok_w=['XH'])
        if t == 4: g('s_mov_b64 exec, -1')
        A.append(list(g))
    return A

def epi_z2():
    E = Stream()
    PK = 60
    def pk(c, b): return PK + b * 20 + 2 * c
    E.append(G("""
    v_and_b32 v10, 15, v1
    v_lshlrev_b32 v11, 3, v10
    s_lshl_b32 s98, s51, 5
    v_add_u32 v10, s98, v10
    v_mul_u32_u24 v10, %d, v10
    v_lshrrev_b32 v12, 4, v1
    v_lshlrev_b32 v12, 3, v12
    s_mov_b32 s98, %d
    v_add3_u32 v10, v10, v12, s98
    """ % (ZP, ZB_OFF)) + (G("""s_cmp_eq_u32 s52, 0
    s_cselect_b32 s98, 256, 0
    v_add_u32 v13, s98, v10
    s_lshl_b32 s98, s52, 5
    v_add_u32 v10, s98, v10""") if OPT.get('nc32') else []))
    def AD(c, b):
        if OPT.get('nc32') and c == 8: return 'v13', 16 * b * ZP
        return 'v10', 16 * b * ZP + 32 * c
    NC = OPT.get('nc', 0)
    order = [(c, b) for b in range(2) for c in range(9)]
    theirs = order[18 - NC:]; order = order[:18 - NC]
    if OPT.get('nc32'):
        NC = OPT['nc32']
        nt = NC // 2
        theirs = [(c, b) for c, b in order if c < nt]; order = [(c, b) for c, b in order if c >= nt]
    for c, b in order:
        E('ds_read_b64 v[%d:%d], %s offset:%d' % ((pk(c, b), pk(c, b) + 1) + AD(c, b)))
    for b in range(2):
        E('v_mov_b32 v%d, 0' % (pk(9, b)))
        E('v_mov_b32 v%d, 0' % (pk(9, b) + 1))
    for k in range(4): E('v_mov_b32 v%d, s82' % (132 + k))
    pend = None
    if OPT.get('ilp8'):
        E0 = E
    subs = []
    for k, (c, b) in enumerate(order):
        if OPT.get('ilp8'):
            E = Stream(); subs.append(E)
        x = 100 + 8 * (k & 1); p = pk(c, b)
        E('v_lshlrev_b32 v%d, 16, v%d' % (x, p))
        E('v_and_b32 v%d, 0xffff0000, v%d' % (x + 1, p))
        E('v_lshlrev_b32 v%d, 16, v%d' % (x + 2, p + 1))
        E('v_and_b32 v%d, 0xffff0000, v%d' % (x + 3, p + 1))
        gelu4(E, x, x + 4)
        E('v_cvt_pk_bf16_f32 v%d, v%d, v%d' % (p, x, x + 1))
        E('v_cvt_pk_bf16_f32 v%d, v%d, v%d' % (p + 1, x + 2, x + 3))
        E('ds_write_b64 %s, v[%d:%d] offset:%d' % (AD(c, b)[0], p, p + 1, AD(c, b)[1]), tok_w=['ZB'])
    if OPT.get('ilp8'):
        E = E0
        for k in range(0, len(subs), 2):
            a, b = subs[k], subs[k + 1] if k + 1 < len(subs) else []
            for i in range(0, len(a), 4):
                E.extend(a[i:i + 4]); E.extend(b[i:i + 4])
    D1 = [116, 120]; D2 = [124, 128]
    if NC:
        E.append(('WAITSTEP', OPT['zc_step'] + 2))
        for c, b in theirs:
            E('ds_read_b64 v[%d:%d], %s offset:%d' % ((pk(c, b), pk(c, b) + 1) + AD(c, b)))
    for c in range(0, 9, 2):
        for b in range(2):
            p = q4(pk(c, b))
            E('v_mfma_f32_16x16x32_bf16 %s, v[132:135], %s, %s' % (q4(D1[b]), p, '0' if c == 0 else q4(D1[b])))
            E('v_mfma_f32_16x16x32_bf16 %s, %s, %s, %s' % (q4(D2[b]), p, p, '0' if c == 0 else q4(D2[b])))
    g = G(setm('vcc', m64(lambda i, g: i & 1)))
    for b in range(2):
        g += G('v_cndmask_b32 v%d, v%d, v%d, vcc' % (D2[b], D2[b], D2[b] + 1))
        g += G('v_cndmask_b32 v%d, v%d, v%d, vcc' % (D2[b] + 2, D2[b] + 2, D2[b] + 3))
    g += G(setm('vcc', m64(lambda i, g: i & 2)))
    for b in range(2):
        g += G('v_cndmask_b32 v%d, v%d, v%d, vcc' % (D1[b] + 1, D2[b], D2[b] + 2))
    g += G("""
    s_lshl_b32 s99, s48, 4
    s_add_u32 s99, s99, s49
    s_lshl_b32 s99, s99, 10
    s_lshl_b32 s98, s51, 8
    s_add_u32 s99, s99, s98
    """) + G(setm('exec', m64(lambda i, g: g == i >> 2)))
    for b in range(2):
        g += G('buffer_store_dwordx2 v[%d:%d], v11, s[40:43], s99 offen offset:%d sc1' % (D1[b], D1[b] + 1, 128 * b), tok_w=['PUB'])
    g += G('s_mov_b64 exec, -1')
    E.append(g)
    return E

NZC = 4
def norm_z2(tiles, regs=(176, 208, 244, 248)):
    S = Stream()
    pl, zf, tb, a0 = regs
    S("""
    v_lshrrev_b32 v%d, 4, v1
    v_lshlrev_b32 v%d, 12, v%d
    v_and_b32 v%d, 15, v1
    v_lshl_add_u32 v%d, v%d, 4, v%d
    s_lshl_b32 s9, s48, 14
    s_lshl_b32 s10, s51, 8
    s_add_u32 s9, s9, s10
    """ % (a0, a0, a0, a0 + 1, a0, a0 + 1, a0))
    for k in range(4):
        S('buffer_load_dwordx4 %s, v%d, s[40:43], s9 offen offset:%d sc1' % (q4(pl + 4 * k), a0, k * 1024))
    S("""
    v_lshrrev_b32 v{z}, 4, v1
    v_lshlrev_b32 v{r}, 6, v{z}
    v_lshlrev_b32 v{z}, 3, v{z}
    v_bfe_u32 v{t}, v1, 2, 2
    v_add_u32 v{z}, v{z}, v{t}
    s_lshl_b32 s9, s51, 5
    v_add_u32 v{z}, s9, v{z}
    v_mul_u32_u24 v{z}, {ZP}, v{z}
    v_and_b32 v{t}, 3, v1
    v_lshl_add_u32 v{z}, v{t}, 3, v{z}
    v_add_u32 v{z}, {ZB}, v{z}
    """.format(z=a0 + 2, r=a0 + 3, t=tb, ZP=ZP, ZB=ZB_OFF))
    S.need('ZB')
    for c in tiles:
        for hh in range(2):
            S('ds_read_b64_tr_b16 v[%d:%d], v%d offset:%d' % (zf + 4 * c + 2 * hh, zf + 4 * c + 2 * hh + 1, a0 + 2, hh * 4 * ZP + 32 * c))
    S("""
    s_lshl_b32 s9, s50, 8
    s_add_u32 s9, s9, {SB}
    v_lshlrev_b32 v{w}, 4, v{w}
    v_add_u32 v{w}, s9, v{w}
    v_add_u32 v{r}, s9, v{r}
    v_lshlrev_b32 v{p}, 4, v1
    v_xor_b32 v{p1}, 64, v{p}
    s_lshl_b32 s12, s49, 6
    s_lshl_b32 s13, s48, 2
    s_add_u32 s12, s12, s13
    s_add_u32 s12, s12, s51
    s_mul_i32 s12, s12, 9216
    s_add_u32 s13, s12, 4096
    s_add_u32 s10, s12, 8192
    s_mov_b32 s11, 0x{inv:x}
    """.format(SB=SB_OFF, w=a0 + 1, r=a0 + 3, p=a0 + 4, p1=a0 + 5, inv=fbits(1.0 / 2304)))
    if OPT.get('ownz'):
        S('''s_lshr_b32 s9, s51, 1
        s_mul_i32 s9, s9, %d
        s_and_b32 s53, s51, 1
        s_mul_i32 s53, s53, 9216
        s_add_u32 s9, s9, s53
        s_add_u32 s9, s9, 16384
        v_add_u32 v%d, s9, v%d
        v_add_u32 v%d, s9, v%d''' % (34816, a0 + 6, a0 + 4, a0 + 7, a0 + 5))
    A = S
    S = Stream()
    for k in range(2):
        for e in range(4): S('v_add_f32 v%d, v%d, v%d' % (pl + 4 * k + e, pl + 4 * k + e, pl + 8 + 4 * k + e))
    for e in range(4): S('v_add_f32 v%d, v%d, v%d' % (pl + e, pl + e, pl + 4 + e))
    for sw in ('v_permlane16_swap_b32', 'v_permlane32_swap_b32'):
        for k in range(4): S('v_mov_b32 v%d, v%d' % (pl + 4 + k, pl + k))
        for k in range(4): S('%s v%d, v%d' % (sw, pl + k, pl + 4 + k))
        for k in range(4): S('v_add_f32 v%d, v%d, v%d' % (pl + k, pl + k, pl + 4 + k))
    for r in (pl, pl + 2): rowstats(S, r, tb, 's11')
    S('ds_write_b128 v%d, %s' % (a0 + 1, q4(pl)), tok_w=['SB'])
    S.need('SB')
    sr = pl + 16
    for k in range(4): S('ds_read_b128 %s, v%d offset:%d' % (q4(sr + 4 * k), a0 + 3, 16 * k))
    for c in tiles:
        for d in range(4):
            r = zf + 4 * c + d
            t = tb + 2 * (d & 1)
            S('v_lshlrev_b32 v%d, 16, v%d' % (t, r))
            S('v_and_b32 v%d, 0xffff0000, v%d' % (t + 1, r))
            S('v_fma_f32 v%d, v%d, v%d, v%d' % (t, t, sr + 4 * d, sr + 4 * d + 1))
            S('v_fma_f32 v%d, v%d, v%d, v%d' % (t + 1, t + 1, sr + 4 * d + 2, sr + 4 * d + 3))
            S('v_cvt_pk_bf16_f32 v%d, v%d, v%d' % (r, t, t + 1))
        S('buffer_store_dwordx4 %s, v%d, s[36:39], s%d offen offset:%d' % (q4(zf + 4 * c), a0 + 5 if c & 1 else a0 + 4, (12, 13, 10)[c >> 2], (c & 3) * 1024) + (' sc1' if OPT.get('wt2') or OPT.get('mega') else ''))
        if OPT.get('dual'): S('buffer_store_dwordx4 %s, v%d, s[36:39], s%d offen offset:%d' % (q4(zf + 4 * c), a0 + 5 if c & 1 else a0 + 4, (12, 13, 10)[c >> 2], (c & 3) * 1024))
        if OPT.get('ownz'): S('ds_write_b128 v%d, %s offset:%d' % (a0 + 7 if c & 1 else a0 + 6, q4(zf + 4 * c), c * 1024), tok_w=['OZ'])
    return A, S
```

```python
from common import *
import k1, k1_v2
from k1_v2 import fbits, gelu4, C1, C2, q4
from k2 import epi_offsets
from k3f import k3_body
KNAME = 'parallel_sum__sliding_local_dilated__mixer_gmlp__prompt_kernel'
SLOT = 34816
FLG = 159744
ACC = 8; FS = (80, 124); Z1 = 168
vW = (40, 41, 42, 43); vZ = 44; vB0 = 209; vB1 = 210; vA0 = 211; vA1 = 212; vAs = 213; vP = 214; vS = 215

def transition(S):
    S('''s_mov_b32 s32, s48
    s_mov_b32 s33, s49
    s_mov_b32 s34, s51
    s_mov_b32 s48, s52
    s_lshl_b32 s49, s34, 12
    s_mov_b32 s8, s14
    s_mov_b32 s9, s15
    v_mov_b32 v2, v1
    v_and_b32 v3, 15, v2
    v_lshrrev_b32 v4, 4, v2
    v_lshlrev_b32 v%d, 4, v2''' % vP)
    srd(S, 72, 8, 9, 4 * FL_SZ, FL_OFF)
def signal(S, word, target, tag, stores, keep=0, a=5, b=6, c=7):
    T = Stream(); _signal(T, word, target, tag, stores, keep)
    for x in T:
        if isinstance(x, tuple): S.append(x)
        else:
            import re
            S(re.sub(r'\bv([567])\b', lambda mm: 'v%d' % {'5': a, '6': b, '7': c}[mm.group(1)], x.text))
def _signal(S, word, target, tag, stores, keep):
    S('''v_mov_b32 v5, %d
    v_mov_b32 v6, 1
    s_waitcnt vmcnt(%d) lgkmcnt(0)
    s_mov_b64 exec, 1
    ds_add_rtn_u32 v7, v5, v6 offset:%d
    s_waitcnt lgkmcnt(0)
    v_readfirstlane_b32 s47, v7
    s_cmp_lg_u32 s47, %d
    s_cbranch_scc1 %s''' % (FLG, keep, word, target - 1, tag))
    S.append(('SAVEQ',))
    S('''s_mov_b64 exec, -1
    v_mov_b32 v6, 1
    v_lshlrev_b32 v5, 2, v2
    s_lshl_b32 s46, s32, 14
    s_lshl_b32 s47, s33, 10
    s_add_u32 s46, s46, s47
    s_mov_b32 exec_hi, 0
    buffer_store_dword v6, v5, s[72:75], s46 offen offset:%d sc1''' % stores)
    S.append(('RESETQ',))
    S('%s:' % tag)
    S('s_mov_b64 exec, -1')

class Mega:
    def __init__(self, stamp, gq=13, k3={}, zsleep=3, lazy=False, orel=True, eov=False, pf2=None, ut=None, ownz=False):
        self.ownz = ownz
        self.ut = ut
        self.pf2 = pf2
        self.eov = eov
        self.orel = orel; self.lazy = lazy; self.stamp = stamp; self.gq = gq; self.k3 = k3; self.zsleep = zsleep
    def cons_early(self, S):
        S('''s_load_dwordx2 s[28:29], s[0:1], 48
        s_mov_b32 s98, s30
        s_lshl_b32 s63, s48, 8
        s_lshl_b32 s99, s51, 6
        s_add_u32 s63, s63, s99
        v_and_b32 v218, 15, v1
        v_lshlrev_b32 v218, 1, v218'''.replace('s[28:29]', 's[32:33]').replace('s_mov_b32 s98, s30\n', ''))
        S('''s_mov_b32 s34, 4096
        s_mov_b32 s35, 0x00020000
        s_waitcnt lgkmcnt(0)
        buffer_load_ushort v216, v218, s[32:35], s63 offen
        buffer_load_ushort v217, v218, s[32:35], s63 offen offset:32''')
    def blk(self, P, st, dst):
        k = st >> 1
        if k == 0: P('s_mov_b32 s%d, s58' % dst)
        else:
            P('s_cmp_le_u32 s58, %d' % (k - 1))
            P('s_addc_u32 s%d, %d, 0' % (dst, k - 1))
    def half_a(self, P, p, st):
        if self.ownz:
            self.blk(P, st, 37)
            P('s_lshl_b32 s37, s37, 8')
            if st & 1: P('s_add_u32 s37, s37, 128')
            P('s_xor_b32 s37, s37, s60')
            P('s_add_u32 m0, s66, %d' % (p * SLOT))
            for q in range(4):
                P('buffer_load_dwordx4 v%d, s[4:7], s37 offen offset:%d lds' % (vW[q], q * 1024), tok_w=['P%d' % p])
            return
        if self.lazy: P('s_xor_b32 s37, s60, %d' % (st * 128))
        else: P('s_movk_i32 s37, %d' % (st * 128))
        P('s_add_u32 m0, s66, %d' % (p * SLOT))
        for q in range(4):
            P('buffer_load_dwordx4 v%d, s[4:7], s37 offen offset:%d lds' % (vW[q], q * 1024), tok_w=['P%d' % p])
    def half_b(self, P, p, st):
        if self.ownz:
            self.blk(P, st, 38)
            P('s_xor_b32 s38, s38, s62')
            P('s_mul_i32 s38, s38, 36864')
            if st & 1: P('s_add_u32 s38, s38, 18432')
        elif self.lazy: P(('s_add_u32 s38, s61, %d' % (st * 18432)) if st < 16 else ('s_sub_u32 s38, %d, s61' % (st * 18432)))
        else: P('s_mov_b32 s38, %d' % (st * 18432))
        P('s_add_u32 m0, s50, %d' % (p * SLOT))
        P('s_mov_b64 exec, s[44:45]')
        P('buffer_load_dwordx4 v%d, s[16:19], s38 offen sc1 lds' % vZ, tok_w=['P%d' % p])
        P('s_mov_b64 exec, -1')
        for q in range(4):
            P('buffer_load_dwordx4 v%d, s[16:19], s38 offen offset:%d sc1 lds' % (vZ, 512 + q * 1024), tok_w=['P%d' % p])
    def prod_early(self, S):
        S('''s_lshl_b32 s63, s48, 7
        s_lshl_b32 s66, s51, 5
        s_add_u32 s63, s63, s66
        v_lshrrev_b32 v45, 3, v1
        v_add_u32 v45, s63, v45
        v_lshlrev_b32 v45, 12, v45
        v_and_b32 v46, 7, v1
        v_lshrrev_b32 v47, 4, v1
        v_xor_b32 v46, v46, v47
        v_lshlrev_b32 v46, 4, v46
        v_add_u32 v%d, v45, v46
        v_xor_b32 v47, 64, v%d
        v_add_u32 v%d, 0x%x, v47
        v_add_u32 v%d, 0x%x, v%d
        v_add_u32 v%d, 0x%x, v47
        s_lshl_b32 s66, s51, 12''' % (vW[0], vW[0], vW[1], 0x8000 - 1024, vW[2], 0x10000 - 2048, vW[0], vW[3], 0x18000 - 3072))
        S('s_lshr_b32 s62, s48, 3\ns_lshl_b32 s60, s62, 11\ns_mul_i32 s61, s62, 294912\ns_lshl_b32 s62, s62, 3\ns_and_b32 s58, s48, 7')
        for p in range(2):
            P = Stream(); self.half_a(P, p, p)
            for x in P: S(x.text.replace('s37', 's63'), tok_w=x.tok_w)
    def producer(self, S):
        stamp = self.stamp
        S('K2_TEXT:')
        transition(S)
        S('''s_mul_i32 s46, s33, 589824
        s_mul_i32 s47, s34, 4608
        s_add_u32 s46, s46, s47
        v_add_u32 v%d, s46, v%d
        s_add_u32 s50, s47, 16384
        s_mov_b32 s44, -1
        s_mov_b32 s45, 0
        v_lshlrev_b32 v46, 14, v3
        s_lshl_b32 s59, s33, 10
        s_add_u32 s59, s59, 128
        v_mov_b32 v47, %d''' % (vZ, vP, FLG))
        srd(S, 16, 8, 9, Z2P_SZ, Z2P_OFF)
        if self.ownz:
            S.need('P0', 'P1', 'OZ')
            S('s_barrier')
            self.half_a(S, 2, 2); self.half_a(S, 3, 3)
            signal(S, 8, 4 if k1.OPT.get('early') else 8, 'K1_SIGH', 128, keep=8)
            S('s_barrier')
            T = Stream(); self.blk(T, 2, 57)
            S.extend(T)
            S('s_lshl_b32 s57, 1, s57')
            S.append(('SAVEQ',))
            S('''s_mov_b32 s41, 0
            s_cmp_lg_u32 s34, 0
            s_cbranch_scc1 KZ_WAITL
            KZ_POLL:
            buffer_load_dword v45, v46, s[72:75], s59 offen sc1
            s_waitcnt vmcnt(0)
            v_cmp_ne_u32 vcc, 1, v45
            s_add_u32 s41, s41, 1
            s_lshr_b32 s65, vcc_lo, s62
            s_and_b32 s42, s65, MASK0
            s_cbranch_scc0 KZ_SET
            s_sleep %d
            s_cmp_lt_u32 s41, 0x20000
            s_cbranch_scc1 KZ_POLL
            KZ_SET:
            v_mov_b32 v45, 1
            ds_write_b32 v47, v45 offset:12
            s_branch KZ_GO
            KZ_WAITL:
            ds_read_b32 v45, v47 offset:12
            s_waitcnt lgkmcnt(0)
            s_add_u32 s41, s41, 1
            v_readfirstlane_b32 s42, v45
            s_cmp_lg_u32 s42, 0
            s_cbranch_scc1 KZ_GO
            s_sleep 1
            s_cmp_lt_u32 s41, 0x400000
            s_cbranch_scc1 KZ_WAITL
            KZ_GO:'''.replace('MASK0', 's57') % self.zsleep)
            S.append(('RESETQ',))
            self.half_b(S, 2, 2)
        else:
            signal(S, 8, 8, 'K1_SIGH', 128)
            S.append(('SAVEQ',))
            S('''s_mov_b32 s41, 0
            s_cmp_lg_u32 s34, 0
            s_cbranch_scc1 KZ_WAITL
            KZ_POLL:
            buffer_load_dword v45, v46, s[72:75], s59 offen sc1
            s_waitcnt vmcnt(0)
            v_cmp_ne_u32 vcc, 1, v45
            s_add_u32 s41, s41, 1
            s_lshr_b32 s65, vcc_lo, s62
            s_and_b32 s42, s65, MASK0
            s_cbranch_scc0 KZ_SET
            s_sleep %d
            s_cmp_lt_u32 s41, 0x20000
            s_cbranch_scc1 KZ_POLL
            KZ_SET:
            v_mov_b32 v45, 1
            ds_write_b32 v47, v45 offset:12
            s_branch KZ_GO
            KZ_WAITL:
            ds_read_b32 v45, v47 offset:12
            s_waitcnt lgkmcnt(0)
            s_add_u32 s41, s41, 1
            v_readfirstlane_b32 s42, v45
            s_cmp_lg_u32 s42, 0
            s_cbranch_scc1 KZ_GO
            s_sleep 1
            s_cmp_lt_u32 s41, 0x400000
            s_cbranch_scc1 KZ_WAITL
            KZ_GO:'''.replace('MASK0', '3' if self.lazy else '0xffff') % self.zsleep)
            S.append(('RESETQ',))
            self.half_b(S, 0, 0); self.half_b(S, 1, 1)
            S.need('P0')
            S('s_barrier')
            self.half_a(S, 2, 2); self.half_b(S, 2, 2); self.half_a(S, 3, 3)
        for n in range(29):
            p = n & 3
            if self.lazy and (n + 3) % 2 == 0 and n + 3 >= 4:
                k = (n + 3) >> 1
                S.append(('SAVEQ',))
                if self.ownz: self.blk(S, n + 3, 57)
                S('''s_cmp_lg_u32 s34, 0
                s_cbranch_scc1 KL_OK{k}
                s_mov_b32 s41, 0
                KL_POLL{k}:
                s_bitcmp1_b32 s65, {bit}
                s_cbranch_scc0 KL_OK{k}
                buffer_load_dword v45, v46, s[72:75], s59 offen sc1
                s_add_u32 s41, s41, 1
                s_waitcnt vmcnt(0)
                v_cmp_ne_u32 vcc, 1, v45
                s_cmp_lt_u32 s41, 0x20000
                s_lshr_b32 s65, vcc_lo, s62
                s_sleep 1
                s_cmp_lt_u32 s41, 0x20000
                s_cbranch_scc1 KL_POLL{k}
                KL_OK{k}:'''.format(k=k, bit='s57' if self.ownz else k))
                S.append(('RESETQ',))
            if not (self.ownz and n == 0):
                S.need('P%d' % ((p + 1) & 3))
                S('s_barrier')
            self.half_b(S, (n + 3) & 3, n + 3)
            if n + 4 < 32: self.half_a(S, p, n + 4)
            if n == 20:
                S('''s_and_b32 s43, s2, 7
                s_lshr_b32 s46, s2, 3
                s_mul_i32 s47, s43, 29
                s_min_u32 s43, s43, 2
                s_add_u32 s47, s47, s43
                s_add_u32 s47, s47, s46
                s_mul_hi_u32 s46, s47, 0x1c71c71d
                s_mul_i32 s46, s46, 80
                s_add_u32 s47, s46, 79
                s_lshr_b32 s46, s46, 7
                s_lshr_b32 s47, s47, 7
                s_min_u32 s46, s46, 15
                s_min_u32 s47, s47, 15
                s_lshl_b32 s46, s46, 14
                s_lshl_b32 s47, s47, 14
                v_mov_b32 v238, s47
                v_mov_b32 v239, s46
                v_cmp_gt_u32 vcc, 16, v2
                v_cndmask_b32 v238, v238, v239, vcc
                v_lshl_add_u32 v238, v3, 10, v238
                s_movk_i32 s64, 384
                buffer_load_dword v236, v238, s[72:75], s64 offen sc1''')
            if n == 24:
                S('v_cmp_ne_u32 vcc, 1, v236')
                S.append(('SAVEQ',))
                S('''s_mov_b32 s41, 0
                KO_POLL:
                s_cmp_eq_u32 vcc_lo, 0
                s_cbranch_scc1 KO_OK
                s_sleep 8
                buffer_load_dword v236, v238, s[72:75], s64 offen sc1
                s_add_u32 s41, s41, 1
                s_waitcnt vmcnt(0)
                v_cmp_ne_u32 vcc, 1, v236
                s_cmp_lt_u32 s41, 0x20000
                s_cbranch_scc1 KO_POLL
                KO_OK:''')
                S.append(('RESETQ',))
        S('s_movk_i32 s59, 256')
        if stamp: stamp_mid(S, 86)
        S.append(('SAVEQ',))
        S('s_cmp_lt_u32 s2, 234\ns_cbranch_scc1 K3_START\ns_waitcnt vmcnt(0)\ns_barrier\ns_barrier\ns_barrier\ns_endpgm\nK3_START:')
        S.append(('RESETQ',))
        def mk(tok):
            def f(X):
                X.need(tok); X('s_barrier')
            return f
        k3_body(S, stamp, bars=[mk('P2'), mk('P3')], mega=True, **self.k3)
    def consumer(self):
        stamp = self.stamp
        S = Stream()
        def acc(a, b): r = ACC + (a * 2 + b) * 4; return 'v[%d:%d]' % (r, r + 3)
        def fB(s, b): r = FS[s] + b * 4; return 'v[%d:%d]' % (r, r + 3)
        def fA(s, a): r = FS[s] + 8 + a * 4; return 'v[%d:%d]' % (r, r + 3)
        S('K2_CONS:')
        transition(S)
        srd(S, 24, 8, 9, AP_SZ, AP_OFF)
        S('''
        v_lshrrev_b32 v5, 1, v3
        v_xor_b32 v5, v5, v4
        v_lshlrev_b32 v5, 4, v5
        v_lshlrev_b32 v6, 7, v3
        v_add3_u32 v%d, v5, v6, s49
        v_xor_b32 v%d, 64, v%d
        v_lshrrev_b32 v5, 3, v3
        v_add_u32 v5, s48, v5
        v_and_b32 v6, 1, v5
        v_lshlrev_b32 v6, 2, v6
        v_and_b32 v7, 3, v3
        v_bfe_u32 v1, v3, 2, 1
        v_lshl_add_u32 v7, v1, 3, v7
        v_xor_b32 v7, v7, v6
        v_lshl_add_u32 v7, v4, 4, v7
        v_lshlrev_b32 v7, 4, v7
        v_lshl_add_u32 v7, v5, 10, v7
        v_add_u32 v%d, 16384, v7
        v_xor_b32 v%d, 64, v%d
        s_cmp_eq_u32 s48, 0
        s_cselect_b32 s46, 8192, 0
        s_add_u32 s46, s46, 16384
        v_add_u32 v%d, s46, v%d
        v_lshrrev_b32 v5, 1, v4
        v_lshlrev_b32 v5, 8, v5
        v_lshl_add_u32 v5, v3, 4, v5
        v_and_b32 v6, 1, v4
        v_lshl_add_u32 v%d, v6, 3, v5
        ''' % (vB0, vB1, vB0, vA0, vA1, vA0, vAs, vP, vS))
        epi_offsets(S)
        S('v_lshlrev_b32 v216, 16, v216')
        S('v_lshlrev_b32 v217, 16, v217')
        for a in range(9):
            for b in range(2):
                for r in range(4):
                    S('v_mov_b32 v%d, v%d' % (ACC + (a * 2 + b) * 4 + r, 216 + b))
        HI = 224
        for k, r in enumerate((vB0, vB1, vA0, vA1, vAs)): S('v_add_u32 v%d, %d, v%d' % (HI + k, 2 * SLOT, r))
        if not self.ownz: signal(S, 8, 8, 'K1_SIGC', 128, keep=0 if stamp else k1.OPT['n_ost'])
        else: S.need('OZ')
        S('s_mov_b32 s78, 0x%x' % fbits(C1))
        S('v_mov_b32 v7, 0x%x' % fbits(C2))
        S('s_setprio 1')
        def reads(s, h, n):
            g = []
            hi = (n & 3) >> 1; so = (n & 1) * SLOT
            R = lambda r: r if not hi else HI + (vB0, vB1, vA0, vA1, vAs).index(r)
            vB = vB1 if h else vB0
            for b in range(2):
                g.append(I('ds_read_b128 %s, v%d offset:%d' % (fB(s, b), R(vB), so + b * 2048)))
            for a in range(9):
                if a < 8: g.append(I('ds_read_b128 %s, v%d offset:%d' % (fA(s, a), R(vA1 if a & 1 else vA0), so + h * 9216 + (a >> 1) * 2048)))
                else: g.append(I('ds_read_b128 %s, v%d offset:%d' % (fA(s, a), R(vAs), so + h * 9216)))
            return g
        def mfmas(s):
            m = Stream()
            for a in range(9):
                for b in range(2):
                    m('v_mfma_f32_16x16x32_bf16 %s, %s, %s, %s' % (acc(a, b), fA(s, a), fB(s, b), acc(a, b)))
            return m
        gw = []
        for k in range(18):
            g = Stream()
            p = Z1 + 2 * k; x = 232 + 8 * (k & 1)
            g('v_lshlrev_b32 v%d, 16, v%d' % (x, p))
            g('v_and_b32 v%d, 0xffff0000, v%d' % (x + 1, p))
            g('v_lshlrev_b32 v%d, 16, v%d' % (x + 2, p + 1))
            g('v_and_b32 v%d, 0xffff0000, v%d' % (x + 3, p + 1))
            gelu4(g, x, x + 4, c2=7)
            g('v_cvt_pk_bf16_f32 v%d, v%d, v%d' % (p, x, x + 1))
            g('v_cvt_pk_bf16_f32 v%d, v%d, v%d' % (p + 1, x + 2, x + 3))
            gw += list(g)
        if self.pf2 == -1:
            S('''s_load_dwordx2 s[60:61], s[0:1], 56
            s_load_dwordx2 s[64:65], s[0:1], 16
            s_mov_b32 s62, %d
            s_mov_b32 s63, 0x00020000
            s_mov_b32 s66, %d
            s_mov_b32 s67, 0x00020000
            s_mul_i32 s68, s2, 10368
            s_mul_i32 s69, s34, 2688
            s_add_u32 s68, s68, s69
            s_mul_i32 s69, s2, 2688
            s_mul_i32 s70, s34, 768
            s_add_u32 s69, s69, s70
            v_lshlrev_b32 v229, 7, v2
            s_mov_b64 exec, 0x1fffff
            buffer_load_dword v230, v229, s[60:63], s68 offen
            s_mov_b64 exec, 0x3f
            buffer_load_dword v231, v229, s[64:67], s69 offen
            s_mov_b64 exec, -1''' % (2304 * 1152, 576 * 1152))
        if stamp: stamp_mid(S, 86)
        S('s_barrier')
        if stamp:
            stamp_mid(S, 88); S('s_waitcnt lgkmcnt(0)')
        S.extend(reads(0, 0, 0))
        def half(ms, rds):
            left = self.gq
            for k, m in enumerate(ms):
                S.append(m)
                room = 2
                if rds: S.append(rds.pop(0)); room = 1
                while gw and left > 0 and room > 0 and k < 17:
                    need = 2 if gw[0].kind == 'trans' else 1
                    if need > room: break
                    S.append(gw.pop(0)); room -= need; left -= 1
        def epi(b, pk=True):
            E = Stream()
            for p in range(5):
                nd = 4 if p < 4 else 2
                zr = Z1 + (b * 4 + p) * 4 if p < 4 else Z1 + 32 + b * 2
                for d in range(nd):
                    a = 2 * p + (d >> 1)
                    ar = ACC + (a * 2 + b) * 4 + (d & 1) * 2
                    t = 220 + (d & 1) * 2
                    E('v_lshlrev_b32 v%d, 16, v%d' % (t, zr + d))
                    E('v_and_b32 v%d, 0xffff0000, v%d' % (t + 1, zr + d))
                    if pk: E('v_pk_mul_f32 v[%d:%d], v[%d:%d], v[%d:%d]' % (t, t + 1, t, t + 1, ar, ar + 1))
                    else:
                        E('v_mul_f32 v%d, v%d, v%d' % (t, t, ar))
                        E('v_mul_f32 v%d, v%d, v%d' % (t + 1, t + 1, ar + 1))
                    E('v_cvt_pk_bf16_f32 v%d, v%d, v%d' % (zr + d, t, t + 1))
                if p < 4: E('buffer_store_dwordx4 v[%d:%d], v%d, s[24:27], s%d offen offset:%d sc1' % (zr, zr + 3, vP, 53 + b, p * 1024))
                else: E('buffer_store_dwordx2 v[%d:%d], v%d, s[24:27], s%d offen sc1' % (zr, zr + 1, vS, 57 + b))
            return E
        for n in range(32):
            S('s_waitcnt lgkmcnt(0)')
            if n == 12: signal(S, 16, 4, 'KO_NOFL', 384, a=218, b=219, c=220)
            if self.ut and n in self.ut:
                k = self.ut.index(n)
                nl = 72 // len(self.ut)
                per = 36 // nl
                S('''s_min_u32 s46, s%d, s%d
                s_add_u32 s46, s46, %d
                v_lshlrev_b32 v229, 7, v2
                s_mov_b64 exec, 0x%x
                buffer_load_dword v%d, v229, s[24:27], s46 offen
                s_mov_b64 exec, -1''' % (53 + k // per, 57 + k // per, (k % per) * nl * 128, (1 << nl) - 1, 248 + k) if nl < 32 else
                  '''s_min_u32 s46, s%d, s%d
                v_lshlrev_b32 v229, 7, v2
                s_mov_b32 exec_hi, 15
                buffer_load_dword v%d, v229, s[24:27], s46 offen
                s_mov_b64 exec, -1''' % (53 + k, 57 + k, 248 + k))
            if self.pf2 and n == self.pf2 - 2:
                S('''s_load_dwordx2 s[60:61], s[0:1], 56
                s_load_dwordx2 s[64:65], s[0:1], 16
                s_mov_b32 s62, %d
                s_mov_b32 s63, 0x00020000
                s_mov_b32 s66, %d
                s_mov_b32 s67, 0x00020000
                s_mul_i32 s68, s2, 10368
                s_mul_i32 s69, s34, 2688
                s_add_u32 s68, s68, s69
                s_mul_i32 s69, s2, 2688
                s_mul_i32 s70, s34, 768
                s_add_u32 s69, s69, s70
                v_lshlrev_b32 v229, 7, v2''' % (2304 * 1152, 576 * 1152))
            if self.pf2 and n == self.pf2:
                S('''s_mov_b64 exec, 0x1fffff
                buffer_load_dword v230, v229, s[60:63], s68 offen
                s_mov_b64 exec, 0x3f
                buffer_load_dword v231, v229, s[64:67], s69 offen
                s_mov_b64 exec, -1''')
            if n == 31 and self.eov:
                m0, m1 = mfmas(0), mfmas(1)
                half(Stream(m0[0::2] + m0[1::2][:2]), reads(1, 1, n))
                S('s_waitcnt lgkmcnt(0)')
                S('s_barrier')
                S.extend(m1[0::2])
                e0 = list(epi(0, pk=False))
                rest = m0[1::2][2:] + m1[1::2]
                for k, x in enumerate(rest):
                    S.append(x)
                    take = -(-len(e0) // (len(rest) - k))
                    S.extend(e0[:take]); e0 = e0[take:]
                break
            half(mfmas(0), reads(1, 1, n))
            S('s_waitcnt lgkmcnt(0)')
            if n == 0 and self.ownz and not k1.OPT.get('early'): signal(S, 8, 8, 'K1_SIGC', 128, keep=0 if stamp else k1.OPT['n_ost'], a=218, b=219, c=220)
            S('s_barrier')
            half(mfmas(1), reads(0, 0, n + 1) if n < 31 else [])
        assert not gw
        E = S
        if stamp: stamp_mid(E, 90)
        if not self.eov: E.extend(epi(0))
        E.extend(epi(1))
        if stamp: stamp_mid(E, 92)
        signal(E, 0, 4, 'K2_NOSIG', 256)
        if stamp:
            E('s_waitcnt vmcnt(0)')
            stamp_mid(E, 94)
            stamp_store(E, 84, [86, 88, 90, 92, 94], 8, 1, 64, 216, wave_s=34)
        E('s_endpgm')
        return S

def gen_mega(stamp=False, k1opt={}, **kw):
    M = Mega(stamp, **kw)
    k1_v2.STFLAG = ' sc1'
    txt, vg = k1.gen_k1(stamp=stamp, mega=M, ownz=M.ownz, **k1opt)
    k1_v2.STFLAG = ''
    F = Finisher()
    F.vmq, F.lgq = k1.OPT['cons_state']
    k1.emit(F, M.consumer())
    return txt + F.text(), 256
```

```python
from common import *
import k1_v2 as V2
from k1_v2 import fbits, q4, gelu4, rowstats, dots, norm4, flatten, m64, setm, is_mem, C1, C2, SCL
SLOT = 20480
T1_OFF = 40960; T2_OFF = 81920; XH_OFF = 143360; ZB_OFF = 81920; QB_OFF = 119808; SB_OFF = 161792
K1_LDS = 163840
QP = 240; ZP = 296
XF = 112; ACC = 40; WFR = 16; NRING = 5
NR1 = 6; P1 = NR1 * 2048; P2 = (9 - NR1) * 2048
sBLK = 54
vT = 4; vC2 = 9
OPT = {}
assert all((i * 3277) >> 16 == i // 20 for i in range(1280)) and all((r * 43) >> 8 == r // 6 for r in range(18))
def xf(j, b): r = XF + (j * 2 + b) * 4; return 'v[%d:%d]' % (r, r + 3)
LN1 = 40; LN2 = XF + 16 * NR1; ST = 88
def ln(g, j): return (LN1 + (g * NR1 + j) * 4 if g < 2 else 16 + 4 * j) if j < NR1 else LN2 + (g * (9 - NR1) + j - NR1) * 4
PH = [('Z2', 9216, 4608), ('Q', 3456, 0), ('Z1', 9216, 0)]
vDZ = 16; vDQ = 21
def wt(x):
    if isinstance(x, str): return 1
    if isinstance(x, list): return sum(wt(y) for y in x)
    if x.kind in ('need', 'label'): return 0
    if x.kind in ('trans', 'mfma'): return 2
    if x.kind == 'salu': return 0.5
    return 1

def wdma(n):
    ph, j = divmod(n, 9)
    nm, pitch, add = PH[ph]
    if nm == 'Q' and OPT.get('qpack'): pitch = 288
    P = Stream()
    P('s_mul_i32 s63, s%d, %d' % (sBLK + j, 64 * pitch))
    if add: P('s_add_u32 s63, s63, %d' % add)
    isq = nm == 'Q'
    P('s_add_u32 s63, s63, s%d' % (65 if isq else 64))
    for e in range(5):
        P('s_add_u32 m0, s68, %d' % ((n & 3) * SLOT + e * 4096))
        P('buffer_load_dwordx4 v%d, s[%s], s63 offen%s lds' % ((vDQ if isq else vDZ) + e, '20:23' if isq else '24:27', ' sc1' if isq and OPT.get('qpack') else ''), tok_w=['W%d' % n])
    return P

XROT_OLD = '''    s_lshr_b32 s64, s50, 2
    s_mul_i32 s64, s64, 24
    s_add_u32 s63, s63, s64
    v_lshrrev_b32 v12, 3, v1
    v_and_b32 v13, 7, v1
    v_add_u32 v10, s63, v12
    v_mul_u32_u24 v10, 1152, v10
    v_lshl_add_u32 v10, v13, 4, v10
    v_add_u32 v11, 9216, v10
    v_add_u32 v14, 18432, v10
'''
XROT_NEW = '''    v_lshrrev_b32 v12, 3, v1
    v_and_b32 v13, 7, v1
    v_add_u32 v14, s63, v12
    v_mul_u32_u24 v14, 1152, v14
    v_lshl_add_u32 v14, v13, 4, v14
    s_lshr_b32 s64, s50, 2
    s_mul_i32 s64, s64, 3
    s_add_u32 s64, s64, s49
        s_add_u32 s65, s64, 0
    s_and_b32 s65, s65, 3
    s_mul_i32 s66, s65, 9216
    v_add_u32 v10, s66, v14
    s_mov_b32 s3, s65
    s_add_u32 s65, s64, 1
    s_and_b32 s65, s65, 3
    s_mul_i32 s66, s65, 9216
    v_add_u32 v11, s66, v14
    s_mov_b32 s33, s65
    s_add_u32 s65, s64, 2
    s_and_b32 s65, s65, 3
    s_mul_i32 s66, s65, 9216
    v_add_u32 v14, s66, v14
    s_mov_b32 s34, s65

'''
GSR = (3, 33, 34)
def gaddr(S, g, P, dst):
    S('''s_lshr_b32 s98, s%d, 1
    s_mul_i32 s98, s98, %d
    s_and_b32 s99, s%d, 1
    s_lshl_b32 s99, s99, 7
    s_add_u32 s98, s98, s99
    v_add_u32 v%d, s98, v5''' % (GSR[g], P, GSR[g], dst))
def head(S, stamp, xmap, rot):
    S('''
    s_load_dwordx4 s[4:7], s[0:1], 0
    s_load_dwordx2 s[8:9], s[0:1], 32
    s_load_dwordx4 s[12:15], s[0:1], 72
    s_load_dwordx2 s[10:11], s[0:1], 40
    s_cmp_ge_u32 s2, 256
    s_cbranch_scc1 K1_END
    ''')
    if stamp: stamp_begin(S, 84)
    S('''
    v_lshrrev_b32 v10, 6, v0
    v_and_b32 v1, 63, v0
    v_readfirstlane_b32 s50, v10
    s_and_b32 s63, s2, 7
    s_lshr_b32 s64, s2, 3
    ''')
    if xmap == '84':
        S('''
        s_and_b32 s48, s63, 1
        s_lshl_b32 s48, s48, 3
        s_and_b32 s65, s64, 7
        s_add_u32 s48, s48, s65
        s_lshr_b32 s49, s63, 1
        s_lshl_b32 s49, s49, 2
        s_lshr_b32 s64, s64, 3
        s_add_u32 s49, s49, s64
        s_lshl_b32 s64, s64, 1
        ''')
        if OPT.get('rmode') == 4: S('s_and_b32 s65, s65, 6')
        if OPT.get('rmode') == 2: S('s_and_b32 s65, s65, 4')
        if OPT.get('rmode') == 3: S('s_mul_i32 s65, s65, 3\ns_lshr_b32 s65, s65, 3\ns_mul_i32 s65, s65, 3')
        S('s_add_u32 s53, s64, s65')
    else:
        S('''
        s_lshr_b32 s48, s63, 1
        s_lshl_b32 s48, s48, 2
        s_and_b32 s65, s64, 3
        s_add_u32 s48, s48, s65
        s_and_b32 s49, s63, 1
        s_lshl_b32 s49, s49, 3
        s_lshr_b32 s64, s64, 2
        s_add_u32 s49, s49, s64
        s_lshl_b32 s65, s65, 1
        s_add_u32 s53, s64, s65
        ''')
    if not rot: S('s_mov_b32 s53, 0')
    S('''
    s_sub_u32 s64, s53, 9
    s_cmp_ge_u32 s53, 9
    s_cselect_b32 s%d, s64, s53
    s_and_b32 s51, s50, 3
    s_and_b32 s52, s49, 1
    s_lshl_b32 s63, s48, 7
    s_lshl_b32 s64, s51, 5
    s_add_u32 s63, s63, s64
    XROT
    '''.replace('XROT', XROT_NEW if OPT.get('xrot') else XROT_OLD) % sBLK)
    for j in range(1, 9):
        S('s_add_u32 s%d, s%d, 1' % (sBLK + j, sBLK + j - 1))
        S('s_cmp_eq_u32 s%d, 9' % (sBLK + j))
        S('s_cselect_b32 s%d, 0, s%d' % (sBLK + j, sBLK + j))
    for j in range(9): S('s_lshl_b32 s%d, s%d, 7' % (69 + j, sBLK + j))
    S('s_waitcnt lgkmcnt(0)')
    srd(S, 16, 4, 5, 2048 * 1152)
    S('s_cmp_ge_u32 s50, 4')
    S('s_cbranch_scc1 K1_HELP')

def xloads(S, gs):
    for g in gs:
        for j in range(9):
            S('buffer_load_dwordx4 %s, v%d, s[16:19], s%d offen' % (q4(ln(g, j)), (10, 11, 14)[g], 69 + j))
def common_setup(S):
    srd(S, 28, 14, 15, AP_SZ, AP_OFF)
    srd(S, 36, 14, 15, Z2P_SZ, Z2P_OFF)
    srd(S, 40, 14, 15, FL_OFF + 4 * FL_SZ - ST_OFF, ST_OFF)
    srd(S, 44, 12, 13, 256)
    S('s_mov_b32 s79, 0x%x' % fbits(SCL))
    S('''
    s_mov_b32 s82, 0x3f803f80
    s_mov_b32 s83, 0x%x
    v_xor_b32 v102, v12, v13
    v_and_b32 v103, 3, v1
    v_lshl_add_u32 v102, v103, 4, v102
    v_lshlrev_b32 v102, 4, v102
    v_bfe_u32 v104, v1, 2, 1
    v_lshl_add_u32 v102, v104, 10, v102
    s_mul_i32 s63, s51, %d
    s_add_u32 s63, s63, %d
    v_add_u32 v5, s63, v102              ; transit write address
    v_and_b32 v101, 15, v1
    v_lshrrev_b32 v105, 4, v1
    v_xor_b32 v102, v101, v105
    v_lshl_add_u32 v102, v105, 4, v102
    v_lshlrev_b32 v6, 4, v102            ; plain frag read offset (even)
    v_mul_u32_u24 v105, 2560, v105
    v_bfe_u32 v101, v1, 2, 2
    v_mul_u32_u24 v101, 320, v101
    v_lshlrev_b32 v103, 3, v103
    v_add3_u32 v%d, v105, v101, v103
    ''' % (fbits(1.0 / 576), 2 * P1, T1_OFF, vT))

def goff(k, P): return (k >> 1) * P + (k & 1) * 128
def layernorm(S, ks, mid=None, mid2=None):
    ng = len(ks)
    for g in range(ng):
        st = ST + 2 * g
        regs = [ln(g, j) + d for j in range(9) for d in range(4)]
        S.extend(dots(regs, st, st + 1))
        if OPT.get('ptrace'): stamp_mid(S, 88 + 4 * (g & 1))
        if g == 0 and ng > 1: xloads(S, [2] if OPT.get('x01') else ([1, 2] if OPT.get('x12', 0) else [1]))
        for m in ('quad_perm:[1,0,3,2]', 'quad_perm:[2,3,0,1]', 'row_half_mirror'):
            for r in range(st, st + 2):
                S('v_add_f32_dpp v%d, v%d, v%d %s row_mask:0xf bank_mask:0xf' % (r, r, r, m))
        rowstats(S, st, ST + 6, 's83')
        if g == ng - 1 and mid: S.extend(mid)
        if OPT.get('xrot'): gaddr(S, g, P1, 15)
        for j in range(NR1):
            norm4(S, ln(g, j), st, ST + 6)
            if OPT.get('xrot'): S('ds_write_b128 v15, %s offset:%d' % (q4(ln(g, j)), j * 2048), tok_w=['T'])
            else: S('ds_write_b128 v5, %s offset:%d' % (q4(ln(g, j)), goff(ks[g], P1) + j * 2048), tok_w=['T'])
        if g < ng - 1:
            for j in range(NR1, 9): norm4(S, ln(g, j), st, ST + 6)
            if OPT.get('ptrace'): stamp_mid(S, 90)
        if g == 0 and ng > 2 and not OPT.get('x12', 0) and not OPT.get('x01'): xloads(S, [2])
    if mid2: S.extend(mid2)
    if OPT.get('ptrace'): stamp_mid(S, 94)
    S.need('T')
    S('s_barrier')
    if OPT.get('ptrace'): stamp_mid(S, 96)
def t2_writes(ks):
    A = Stream()
    if OPT.get('xrot'):
        for g in range(len(ks)):
            for j in range(NR1, 9):
                A('ds_write_b128 v%d, %s offset:%d' % (12 + g, q4(ln(g, j)), (j - NR1) * 2048), tok_w=['T2'])
        return A
    for j in range(NR1, 9):
        for g in range(len(ks)):
            A('ds_write_b128 v5, %s offset:%d' % (q4(ln(g, j)), goff(ks[g], P2) + (j - NR1) * 2048), tok_w=['T2'])
    return A
def t2_addr(S):
    S('s_mul_i32 s63, s51, %d' % (2 * (P2 - P1)))
    S('s_add_u32 s63, s63, %d' % (T2_OFF - T1_OFF))
    S('v_add_u32 v5, s63, v5')
    if OPT.get('xrot'):
        for g in range(3): gaddr(S, g, P2, 12 + g)

def emit(F, out):
    ren = {'ATOMIC': 'FLAG', 'POLLISSUE': 'FISSUE', 'POLLCHECK': 'FCHECK'} if OPT.get('flags', 1) else {}
    for x in flatten(out):
        if isinstance(x, str): x = ren.get(x, x)
        m32 = isinstance(x, str) and x.endswith('32')
        if m32: x = x[:-2]
        if isinstance(x, tuple) and x[0] == 'DMA5':
            _, n, txt, off = x
            lab = 'K1_D%d' % n
            F.run(G('s_cmp_eq_u32 s51, 3\ns_cbranch_scc1 %s\ns_add_u32 m0, s68, %d' % (lab, off)))
            F.add(I(txt)); F.vmq.pop()
            F.run(G(lab + ':'))
        elif isinstance(x, tuple) and x[0] == 'KEEPQ':
            if x[1] == 0: keep = [set(q) for q in F.vmq]
            else: F.vmq = keep
        elif x == 'POLLISSUE':
            F.run(G('s_cmp_lg_u32 s51, 0\ns_cbranch_scc1 K1_NOPI'))
            F.run(poll_issue(3, 6)); F.vmq.pop()
            F.run(G('K1_NOPI:'))
        elif x == 'ENTRY1' and OPT.get('mega'):
            F.run(G('''s_lshl_b32 s67, s48, 14
            s_add_u32 s67, s67, %d
            v_and_b32 v37, 15, v1
            v_lshlrev_b32 v37, 10, v37
            v_mov_b32 v6, 0
            v_mov_b32 v36, 1''' % (FL_OFF - ST_OFF)))
        elif x == 'ENTRY2' and OPT.get('mega'):
            pass
        elif x == 'HZERO':
            F.run(G('''s_lshl_b32 s64, s48, 14
            s_lshl_b32 s65, s49, 10
            s_add_u32 s64, s64, s65
            s_add_u32 s64, s64, 0x%x
            s_add_u32 s40, s14, s64
            s_addc_u32 s41, s15, 0
            s_movk_i32 s42, 1024
            s_mov_b32 s43, 0x00020000
            v_lshlrev_b32 v68, 4, v1
            v_mov_b32 v36, 0
            v_mov_b32 v37, 0
            v_mov_b32 v38, 0
            v_mov_b32 v39, 0
            s_cmp_lg_u32 s51, 0
            s_cbranch_scc1 K1_NOHZ''' % FL_OFF))
            F.add(I('buffer_store_dwordx4 v[36:39], v68, s[40:43], 0 offen sc1')); F.vmq.pop()
            F.run(G('K1_NOHZ:'))
        elif x == 'HZERO2':
            F.run(G('''s_lshl_b32 s63, s48, 14
            s_lshl_b32 s66, s49, 10
            s_add_u32 s63, s63, s66
            s_add_u32 s63, s63, 0x%x
            v_lshlrev_b32 v68, 4, v1
            v_mov_b32 v36, 0
            v_mov_b32 v37, 0
            v_mov_b32 v38, 0
            v_mov_b32 v39, 0
            s_cmp_lg_u32 s51, 0
            s_cbranch_scc1 K1_NOHZ''' % (FL_OFF - ST_OFF)))
            F.add(I('buffer_store_dwordx4 v[36:39], v68, s[40:43], s63 offen sc1')); F.vmq.pop()
            F.run(G('K1_NOHZ:'))
        elif x == 'HARRIVE':
            F.run(G('''s_cmp_lg_u32 s51, 0
            s_cbranch_scc1 K1_NOHA
            s_lshl_b32 s63, s48, 4
            v_mov_b32 v36, 1
            s_mov_b64 exec, 1'''))
            F.add(I('buffer_atomic_add v36, v37, s[44:47], s63 offen sc1')); F.vmq.pop()
            F.run(G('s_mov_b64 exec, -1\nK1_NOHA:'))
        elif x == 'QFLAG':
            F.run(G('''s_cmp_lg_u32 s51, 0
            s_cbranch_scc1 K1_NOQF
            s_lshl_b32 s10, s49, FSH
            s_add_u32 s10, s10, s67
            v_lshlrev_b32 v39, 2, v1
            s_mov_b32 exec_hi, 0'''.replace('FSH', '10')))
            F.add(I('buffer_store_dword v36, v39, s[40:43], s10 offen offset:512 sc1')); F.vmq.pop()
            F.run(G('s_mov_b64 exec, -1\nK1_NOQF:'))
        elif x == 'QISSUE':
            F.run(G('''v_and_b32 v48, 15, v1
            v_lshlrev_b32 v48, 14, v48
            s_lshl_b32 s12, s49, 10
            s_add_u32 s12, s12, %d
            buffer_load_dword v49, v48, s[40:43], s12 offen sc1''' % (FL_OFF - ST_OFF + 512)))
        elif x == 'QCHECK':
            F.run(G('v_cmp_ne_u32 vcc, 1, v49\ns_cmp_lg_u32 s51, 0\ns_cbranch_scc1 K1_QOK'))
            keep = [set(q) for q in F.vmq]
            F.run(G('''s_mov_b32 s10, 0
            K1_QPOLL:
            s_cmp_eq_u32 vcc_lo, 0
            s_cbranch_scc1 K1_QOK
            s_sleep 4
            buffer_load_dword v49, v48, s[40:43], s12 offen sc1
            s_add_u32 s10, s10, 1
            s_waitcnt vmcnt(0)
            v_cmp_ne_u32 vcc, 1, v49
            s_cmp_lt_u32 s10, 0x20000
            s_cbranch_scc1 K1_QPOLL
            K1_QOK:'''))
            F.vmq = keep
        elif x == 'CZERO':
            F.run(G('''s_cmp_lg_u32 s51, 0
            s_cbranch_scc1 K1_NOCZ
            s_lshl_b32 s64, s48, 14
            s_lshl_b32 s65, s49, 10
            s_add_u32 s64, s64, s65
            s_add_u32 s64, s64, %d
            v_lshlrev_b32 v12, 3, v1
            v_mov_b32 v14, 0
            v_mov_b32 v15, 0''' % (FL_OFF - ST_OFF)))
            F.add(I('buffer_store_dwordx2 v[14:15], v12, s[40:43], s64 offen sc1')); F.vmq.pop()
            F.run(G('K1_NOCZ:'))
            cz_len = len(F.vmq)
        elif x == 'CARRIVE':
            F.run(G('''s_cmp_lg_u32 s51, 0
            s_cbranch_scc1 K1_NOCA
            s_lshl_b32 s64, s48, 4
            v_mov_b32 v38, 0
            v_mov_b32 v39, 1
            s_mov_b64 exec, 1'''.replace('v38', 'v14' if m32 else 'v38').replace('v39', 'v15' if m32 else 'v39')))
            keep = [set(q) for q in F.vmq]
            F.run(G('s_waitcnt vmcnt(%d)\nbuffer_atomic_add v%d, v%d, s[44:47], s64 offen sc1' % ((len(F.vmq) - cz_len,) + ((15, 14) if m32 else (39, 38)))))
            F.vmq = keep
            F.run(G('s_mov_b64 exec, -1\nK1_NOCA:'))
        elif x == 'FLAG' and OPT.get('mega'):
            F.run(G('''s_cmp_lg_u32 s51, 0
            s_cbranch_scc1 K1_NOAT
            s_lshl_b32 s10, s49, 10
            s_add_u32 s10, s10, s67
            v_lshlrev_b32 v39, 2, v1
            s_mov_b32 exec_hi, 0'''))
            F.add(I('buffer_store_dword v36, v39, s[40:43], s10 offen sc1')); F.vmq.pop()
            F.run(G('s_mov_b64 exec, -1\nK1_NOAT:'))
        elif x == 'GATE1' and OPT.get('mega'):
            F.run(G('v_and_b32 v39, 15, v1\nv_lshlrev_b32 v39, 4, v39\nbuffer_load_dword v38, v39, s[44:47], 0 offen sc1'))
        elif x == 'GATE2' and OPT.get('mega'):
            F.run(G('v_cmp_gt_u32 vcc, 16, v38\ns_cmp_lg_u32 s51, 0\ns_cbranch_scc1 K1_GOK'))
            keep = [set(q) for q in F.vmq]
            F.run(G('''s_mov_b32 s10, 0
            K1_GPOLL:
            s_cmp_eq_u32 vcc_lo, 0
            s_cbranch_scc1 K1_GOK
            s_sleep 16
            buffer_load_dword v38, v39, s[44:47], 0 offen sc1
            s_add_u32 s10, s10, 1
            s_waitcnt vmcnt(0)
            v_cmp_gt_u32 vcc, 16, v38
            s_cmp_lt_u32 s10, 0x10000
            s_cbranch_scc1 K1_GPOLL
            K1_GOK:'''))
            F.vmq = keep
        elif isinstance(x, tuple) and x[0] == 'RESETQ':
            F.vmq = keepq; F.lgq = keepl
        elif isinstance(x, tuple) and x[0] == 'SAVEQ':
            keepq = [set(q) for q in F.vmq]; keepl = [(set(a), b) for a, b in F.lgq]
        elif x == 'ENTRY1':
            F.run(G('''s_lshl_b32 s67, s48, 8
            s_add_u32 s67, s67, %d
            v_lshlrev_b32 v37, 2, v1
            v_mov_b32 v6, 0
            buffer_load_dword v36, v37, s[40:43], s67 offen sc1''' % (FL_OFF - ST_OFF)))
        elif x == 'ENTRY2':
            F.run(G('''v_add_u32 v36, 1, v36
            v_mov_b32 v7, 1
            s_lshl_b32 s9, s48, 4
            s_cmp_lg_u32 s51, 0
            s_cbranch_scc1 K1_NOENT
            s_mov_b64 exec, 1'''))
            F.add(I('buffer_atomic_add v7, v6, s[44:47], s9 offen sc1')); F.vmq.pop()
            F.run(G('s_mov_b64 exec, -1\nK1_NOENT:'))
        elif x == 'GATE1':
            F.run(G('buffer_load_dword v38, v6, s[44:47], s9 offen sc1'))
        elif x == 'GATE2':
            F.run(G('v_mov_b32 v39, v38\ns_cmp_lg_u32 s51, 0\ns_cbranch_scc1 K1_NOPOLLG'))
            keep = [set(q) for q in F.vmq]
            P = Stream(); poll(P, 'G', 38, 6)
            F.run([y for y in P if not isinstance(y, tuple)]); F.vmq = keep
        elif x == 'FLAG':
            F.run(G('''s_cmp_lg_u32 s51, 0
            s_cbranch_scc1 K1_NOAT
            s_lshl_b64 exec, 1, s49'''))
            F.add(I('buffer_store_dword v36, v37, s[40:43], s67 offen sc1')); F.vmq.pop()
            F.run(G('s_mov_b64 exec, -1\nK1_NOAT:'))
        elif x == 'FISSUE':
            F.run(G('buffer_load_dword v3, v37, s[40:43], s67 offen sc1'))
        elif x == 'FCHECK':
            F.run(G('v_mov_b32 v39, v3\ns_cmp_lg_u32 s51, 0\ns_cbranch_scc1 K1_FOK'))
            keep = [set(q) for q in F.vmq]
            F.run(G('''s_mov_b32 s10, 0
            K1_FPOLL:
            v_cmp_ne_u32 vcc, v3, v36
            s_and_b32 s11, vcc_lo, 0xffff
            s_cbranch_scc0 K1_FOK
            s_sleep %d
            buffer_load_dword v3, v37, s[40:43], s67 offen sc1
            s_add_u32 s10, s10, 1
            s_cmp_lt_u32 s10, 0x20000
            s_waitcnt vmcnt(0)
            s_cbranch_scc1 K1_FPOLL
            K1_FOK:''' % OPT.get('slp', 4)))
            F.vmq = keep
        elif x == 'POLLCHECK':
            P = Stream()
            P('s_cmp_lg_u32 s51, 0\ns_cbranch_scc1 K1_NOPOLLH')
            F.run(P); keep = [set(q) for q in F.vmq]
            P = Stream(); P('s_waitcnt vmcnt(0)'); poll(P, 'H', 3, 6)
            F.run([y for y in P if not isinstance(y, tuple)]); F.vmq = keep
        elif x == 'ZERO':
            Z = Stream()
            Z('s_or_b32 s12, s2, s51\ns_cmp_lg_u32 s12, 0\ns_cbranch_scc1 K1_NOZ')
            srd(Z, 4, 14, 15, CN_SZ, CN_OFF)
            Z('v_lshlrev_b32 v33, 6, v1\nv_mov_b32 v32, 0')
            F.run(Z)
            F.add(I('buffer_store_dword v32, v33, s[4:7], 0 offen')); F.vmq.pop()
            F.run(G('K1_NOZ:'))
        elif x == 'ATOMIC':
            F.run(G('''s_cmp_lg_u32 s51, 0
            s_cbranch_scc1 K1_NOAT
            v_mov_b32 v7, 1
            s_mov_b64 exec, 1'''))
            F.add(I('buffer_atomic_add v7, v6, s[44:47], s9 offen sc1')); F.vmq.pop()
            F.run(G('s_mov_b64 exec, -1\nK1_NOAT:'))
        else:
            F.add(x)

def table_text():
    out = ['.p2align 8', 'K1_TAB:']
    for rg in range(4):
        vals = []
        for lane in range(64):
            v = []
            zq = []
            for e in range(5):
                i = 64 * (rg + 4 * e) + lane
                row, p = divmod(i, 20)
                sh = 2 * ((row >> 3) & 1)
                v.append(row * 9216 + (p ^ (0 if OPT.get('m32') else sh)) * 16)
                pp = p - sh
                if OPT.get('qpack'): zq.append(row * 288 + pp * 16 if 0 <= pp < 18 else 0x7f000000)
                else: zq.append(row * 3456 + (1152, 2304, 0)[pp // 6] + (pp % 6) * 16 if 0 <= pp < 18 else 0x7f000000)
            hi = 4 * rg + (lane >> 4); g = lane & 3
            v += zq + [XH_OFF + ((lane >> 2) & 3) * 1024 + (g * 16 + (hi ^ g)) * 16, (hi * 1152 + (lane & 7) * 16)]
            for e in range(3):
                i = 162 * rg + 64 * e + lane
                row, pp = divmod(i, 18)
                v.append(row * 3456 + (1152, 2304, 0)[pp // 6] + (pp % 6) * 16 if 64 * e + lane < 162 else 0x7f000000)
            v.append(0)
            vals.append(v)
        for q in range(4):
            for l0 in range(0, 64, 4):
                out.append('.long ' + ','.join(str(x) for l in range(l0, l0 + 4) for x in vals[l][4 * q:4 * q + 4]))
    return '\n'.join(out) + '\n'

def gen_k1(stamp=False, xmap='84', rot=True, **opt):
    OPT.clear(); OPT.update(opt); V2.OPT.clear()
    global stamp_mid
    import common
    if OPT.get('ptrace'):
        seen = {}
        def sm(S, r):
            k = (id(S), r)
            if r == 88 and k in seen: r = 70
            k = (id(S), r)
            if k in seen: return
            seen[k] = 1
            if r == 70: common.stamp_mid(S, 66); return
            common.stamp_mid(S, r)
        stamp_mid = sm
    else:
        stamp_mid = common.stamp_mid
    F = Finisher()
    S = Stream()
    head(S, stamp, xmap, rot)
    F.run(S)
    txt = F.text()
    zzq = OPT.get('zzq')
    PH[1:] = [('Z1', 9216, 0), ('Q', 3456, 0)] if zzq else [('Q', 3456, 0), ('Z1', 9216, 0)]
    V2.QB_OFF = QB_OFF; V2.VOFF = 72; V2.QOFF = 144
    comp = compute2 if zzq else compute
    if OPT.get('m32'):
        import k1c32
        comp = k1c32.compute32
    for role in (comp, helper):
        G2 = Finisher()
        G2.vmq = [set(x) for x in F.vmq]; G2.lgq = [(set(a), b) for a, b in F.lgq]; G2.hist = list(F.hist)
        emit(G2, role(stamp))
        if role is not helper: OPT['cons_state'] = ([set(x) for x in G2.vmq], [(set(a), b) for a, b in G2.lgq])
        txt += G2.text()
    return txt, 256

def pace(items, dl=8, dm=4):
    flat = []
    for x in items:
        if isinstance(x, list) and not any('exec' in y.writes or 'vcc' in y.writes for y in x): flat.extend(x)
        else: flat.append(x)
    out = []; ready = {}
    k = 0
    while k < len(flat):
        x = flat[k]
        grp = list(x) if isinstance(x, list) else [x]
        k += 1
        while not isinstance(x, list) and x.kind == 'salu' and k < len(flat) and not isinstance(flat[k], list):
            x = flat[k]; grp.append(x); k += 1
        need = 0
        for y in grp:
            for r in y.reads | y.writes | y.tok_r:
                t, kind = ready.get(r, (0, ''))
                if kind == 'valu' and not (y.dpp or y.op.startswith('v_permlane') or y.kind in ('mfma', 'ds', 'vmem')): continue
                need = max(need, t)
        while len(out) < need: out.append(None)
        out.append(grp)
        for y in grp:
            d = {'ds': dl, 'mfma': dm, 'trans': 0, 'valu': 1}.get(y.kind, 0)
            for r in y.writes | y.tok_w: ready[r] = (len(out) + d, y.kind)
    return out

def pf_setup(S):
    S("""s_load_dwordx2 s[20:21], s[0:1], 56
    s_load_dwordx2 s[24:25], s[0:1], 16
    s_mov_b32 s4, s10
    s_or_b32 s5, s11, 0x800000
    s_mov_b32 s6, %d
    s_mov_b32 s7, 0x00020000
    s_mov_b32 s22, %d
    s_mov_b32 s23, 0x00020000
    s_mov_b32 s26, %d
    s_mov_b32 s27, 0x00020000
    s_lshl_b32 s8, s2, 15
    s_lshl_b32 s9, s51, 11
    s_add_u32 s8, s8, s9
    s_mul_i32 s9, s2, 10368
    s_mul_i32 s10, s51, 2688
    s_add_u32 s9, s9, s10
    s_min_u32 s9, s9, 2651520
    s_mul_i32 s10, s2, 2688
    s_mul_i32 s11, s51, 768
    s_add_u32 s10, s10, s11
    s_min_u32 s10, s10, 662784
    s_mov_b32 m0, %d
    s_waitcnt lgkmcnt(0)
    s_or_b32 s21, s21, 0x800000
    s_or_b32 s25, s25, 0x800000""" % (2048 * 32, 2304 * 9, 576 * 9, SB_OFF))
def ws_touch(k):
    g = Stream()
    if k == 0:
        g("""s_add_u32 s16, s14, 0x%x
        s_addc_u32 s17, s15, 0
        s_or_b32 s17, s17, 0x800000
        s_mov_b32 s18, %d
        s_mov_b32 s19, 0x00020000
        s_lshl_b32 s64, s49, 6
        s_lshl_b32 s65, s48, 2
        s_add_u32 s64, s64, s65
        s_add_u32 s64, s64, s51
        s_mul_i32 s64, s64, 9216
        s_lshl_b32 s65, s48, 3
        s_lshl_b32 s66, s51, 1
        s_add_u32 s65, s65, s66
        s_mul_i32 s65, s65, 92160
        s_mul_i32 s66, s49, 4608
        s_add_u32 s65, s65, s66
        s_add_u32 s65, s65, %d
        buffer_load_dword v1, s[16:19], s64 idxen lds""" % (Z2P_OFF, 64, AP_OFF - Z2P_OFF + 18 * 1024))
    elif k == 1:
        g("""s_add_u32 s64, s64, 8192
        s_mov_b64 exec, 0xff
        buffer_load_dword v1, s[16:19], s64 idxen lds
        s_mov_b64 exec, -1""")
    else:
        g("""s_mov_b32 exec_hi, 15
        buffer_load_dword v1, s[16:19], s65 idxen lds
        s_mov_b32 exec_hi, -1
        s_add_u32 s65, s65, 92160""")
    return list(g)
def w_touch(kind, j):
    g = Stream()
    if kind == 'Q':
        g("""s_load_dwordx2 s[16:17], s[0:1], 8
        s_mov_b32 s18, 64
        s_mov_b32 s19, 0x00020000
        s_mul_i32 s64, s%d, %d
        s_mul_i32 s65, s49, 72
        s_and_b32 s65, s65, -32
        s_add_u32 s64, s64, s65
        s_min_u32 s65, s51, 2
        s_mul_i32 s65, s65, 1152
        s_add_u32 s64, s64, s65
        s_waitcnt lgkmcnt(0)
        s_or_b32 s17, s17, 0x%x
        buffer_load_dword v1, s[16:19], s64 idxen lds
        buffer_load_dword v1, s[16:19], s64 idxen offset:92 lds""" % (sBLK + j, 64 * 3456, 3456 << 16))
    else:
        g("""s_load_dwordx2 s[16:17], s[0:1], 32
        s_mov_b32 s18, 64
        s_mov_b32 s19, 0x00020000
        s_mul_i32 s64, s%d, %d
        s_mul_i32 s65, s49, 288
        s_and_b32 s65, s65, -64
        s_add_u32 s64, s64, s65
        s_lshl_b32 s65, s51, 7
        s_min_u32 s65, s65, 316
        s_add_u32 s64, s64, s65
        s_waitcnt lgkmcnt(0)
        s_or_b32 s17, s17, 0x%x
        buffer_load_dword v1, s[16:19], s64 idxen lds""" % (sBLK + j, 64 * 9216, 9216 << 16))
    return list(g)
def pf_touch(k):
    if k < 4:
        return G("""s_mov_b64 exec, 0xffff
        buffer_load_dword v1, s[4:7], s8 idxen lds
        s_mov_b64 exec, -1
        s_add_u32 s8, s8, 8192""")
    return G("""s_mov_b64 exec, 0x%x
    buffer_load_dword v1, s[%s], s%d idxen lds
    s_mov_b64 exec, -1""" % ((0x1fffff, '20:23', 9) if k == 4 else (0x3f, '24:27', 10)))

def compute(stamp):
    S = Stream()
    vXe = 6; vXo = 7
    xloads(S, [0])
    common_setup(S)
    if OPT.get('x01') == 1: xloads(S, [1])
    if not OPT.get('mega'): srd(S, 32, 14, 15, Z1P_SZ, Z1P_OFF)
    if OPT.get('pfc'): pf_setup(S)
    S('''
    s_mul_i32 s63, s51, %d
    s_add_u32 s63, s63, %d
    v_add_u32 v6, s63, v6
    v_xor_b32 v7, 64, v6
    ''' % (2 * P1, T1_OFF))
    if OPT.get('x01') == 2: xloads(S, [1])
    if stamp: stamp_mid(S, 86)
    layernorm(S, [0, 1, 2], mid=sum([pf_touch(0) for _ in range(OPT.get('pfp', 0))], []))
    for q in range(2 * NR1):
        for b in range(2):
            S('ds_read_b128 %s, v%d offset:%d' % (xf(q, b), vXo if q & 1 else vXe, b * P1 + q * 1024), tok_w=['TR'])
    for j in range(NR1, 9): norm4(S, ln(2, j), ST + 4, ST + 6)
    t2_addr(S)
    S('s_mul_i32 s63, s51, %d' % (2 * (P2 - P1)))
    S('s_add_u32 s63, s63, %d' % (T2_OFF - T1_OFF))
    S.need('TR')
    S('s_barrier')
    S('v_add_u32 v6, s63, v6')
    S('v_add_u32 v7, s63, v7')
    S('s_setprio %d' % OPT.get('prio', 2))
    if stamp: stamp_mid(S, 88)
    ntile = [9, 7, 9]
    def acc(c, b): return ACC + (c * 2 + b) * 4
    hA = ACC + 56; hX = ACC + 64; hW = ACC + 68
    vTa = 2; vTb = 3; vq2 = 6; vq4 = 8; vQb = 5; vXH = 9; vqh = 7; vTs = 4
    frs = [(n, ks, c) for n in range(27) for ks in range(2) for c in range(ntile[n // 9])]
    TM = OPT.get('tm')
    if TM:
        def order(n):
            nt = ntile[n // 9]
            if n == 18: return [(ks, c) for c in range(nt) for ks in range(2)]
            return [(ks, c) for ks in range(2) for c in range(nt)]
        frs = [(n, ks, c) for n in range(27) for ks, c in order(n)]
    bias = {}
    extra_tok = {1: ['T2'], 9: ['TR2'], 10: ['HB'], 18: ['XHR'], (20 if TM else 19): ['QB']}
    QIMM = {0: 0, 1: 32, 3: 120, 5: 160 + 48, 6: 192 + 48}
    def zaddr(mode):
        g = Stream()
        g("""v_bfe_u32 v15, v1, 4, 1
        v_lshlrev_b32 v15, 5, v15""")
        if mode == 0:
            g("""s_cmp_eq_u32 s52, 0
            s_cselect_b32 s98, 1, -1
            s_lshl_b32 s99, s52, 5
            v_mul_lo_u32 v15, v15, s98
            v_add3_u32 v%d, v%d, v15, s99
            v_sub_u32 v%d, v%d, v15
            v_add_u32 v%d, s99, v%d""" % (vTa, vT, vTb, vT, vTb, vTb))
        else:
            g("""s_lshl_b32 s99, s52, 6
            v_add3_u32 v%d, v%d, v15, s99
            v_sub_u32 v%d, v%d, v15
            v_add_u32 v%d, 256, v%d
            v_add_u32 v15, 32, v%d
            s_cmp_eq_u32 s52, 0
            s_cselect_b64 vcc, -1, 0
            v_cndmask_b32 v%d, v15, v%d, vcc
            v_add_u32 v%d, s99, v%d
            v_add_u32 v%d, %d, v%d
            v_add_u32 v%d, %d, v%d
            v_add_u32 v%d, %d, v%d""" % (vTa, vT, vTb, vT, vTs, vTa, vTb, vTs, vTs, vTb, vTb, vTa, 2 * SLOT, vTa, vTb, 2 * SLOT, vTb, vTs, 2 * SLOT, vTs))
        return g
    def qaddr():
        g = Stream()
        g("""v_bfe_u32 v15, v1, 4, 1
        v_lshlrev_b32 v15, 5, v15
        s_mul_i32 s98, s49, 72
        s_and_b32 s98, s98, 31
        v_add3_u32 v{qb}, v{T}, v15, s98
        v_and_b32 v15, 3, v1
        v_cmp_le_u32 vcc, 2, v15
        v_cndmask_b32 v14, 0, 24, vcc
        v_add_u32 v14, 152, v14
        v_add_u32 v{q4}, v{qb}, v14
        v_cmp_le_u32 vcc, 1, v15
        v_cndmask_b32 v14, 0, 24, vcc
        v_add_u32 v14, 64, v14
        v_add_u32 v{q2}, v{qb}, v14
        s_lshl_b32 s69, s51, 5
        s_cmp_eq_u32 s51, 3
        s_cselect_b32 s99, 24, 0
        s_add_u32 s99, s99, s69
        v_add_u32 v{qh}, s99, v{qb}
        s_cmp_eq_u32 s51, 2
        s_cselect_b64 vcc, -1, 0
        v_cndmask_b32 v{qh}, v{qh}, v{q2}, vcc
        v_and_b32 v14, 15, v1
        v_lshrrev_b32 v15, 4, v1
        v_xor_b32 v14, v14, v15
        v_lshl_add_u32 v14, v15, 4, v14
        v_lshlrev_b32 v14, 4, v14
        v_add_u32 v{xh}, {XH}, v14""".format(qb=vQb, T=vT, q4=vq4, q2=vq2, qh=vqh, xh=vXH, XH=XH_OFF))
        return g
    def toggle(g, ar, n):
        want = (n & 3) >> 1
        if bias.get(ar, 0) != want:
            g('v_add_u32 v%d, %d, v%d' % (ar, 2 * SLOT if want else -2 * SLOT, ar))
            bias[ar] = want
    def halo_read(q):
        g = Stream()
        n = 9 + q // 2
        g('ds_read_b128 %s, v%d offset:%d' % (q4(hX), vXH, q * 1024), tok_w=['XHR'])
        toggle(g, vqh, n)
        for hh in range(2):
            g('ds_read_b64_tr_b16 v[%d:%d], v%d offset:%d' % (hW + 2 * hh, hW + 2 * hh + 1, vqh, (n & 1) * SLOT + (q & 1) * 10240 + hh * 1280))
        return g
    def read(f):
        n, ks, c = frs[f]
        ph = n // 9
        g = Stream()
        if ks == 0 and c == 0:
            if n > 0:
                if n in extra_tok: g.need(*extra_tok[n])
                if n > 10: g.need('ZCdone')
                g('s_barrier')
            if n == 0: g.extend(zaddr(0))
            if n == 18:
                for r in (vTa, vTb, vTs): bias[r] = 1
        if ph == 0: ar, coff = (vTb if c & 1 else vTa), 32 * c
        elif ph == 1: ar, coff = (vq2, 0) if c == 2 else ((vq4, 0) if c == 4 else (vQb, QIMM[c]))
        else: ar, coff = ((vTb if c & 1 else vTa), 32 * c) if c < 8 else (vTs, 0)
        toggle(g, ar, n)
        r = WFR + (f % NRING) * 4
        for hh in range(2):
            if OPT.get('halfread') and hh == 1:
                g('s_nop 0'); continue
            g('ds_read_b64_tr_b16 v[%d:%d], v%d offset:%d' % (r + 2 * hh, r + 2 * hh + 1, ar, (n & 1) * SLOT + ks * 10240 + hh * 1280 + coff))
        return g
    D = NRING - 1
    for f in range(D): S.extend(read(f))
    def tmpr(ph, c, b):
        pairs = [12, 14, 2] if ph == 0 else [12, 14, 6, 8]
        return pairs[(2 * c + b) % len(pairs)]
    def cvt(ph, c, b):
        a = acc(c, b); t = tmpr(ph, c, b)
        return G('v_cvt_pk_bf16_f32 v%d, v%d, v%d\nv_cvt_pk_bf16_f32 v%d, v%d, v%d' % (t, a, a + 1, t + 1, a + 2, a + 3))
    def cvti(a):
        return G('v_cvt_pk_bf16_f32 v%d, v%d, v%d\nv_cvt_pk_bf16_f32 v%d, v%d, v%d' % (a, a, a + 1, a + 1, a + 2, a + 3))
    def dw(ph, c, b, src=None):
        t = tmpr(ph, c, b) if src is None else src
        if OPT.get('nodw'): return []
        if ph == 0:
            return G('ds_write_b64 v10, v[%d:%d] offset:%d' % (t, t + 1, 16 * b * ZP + 32 * c), tok_w=['HB'])
        return G('ds_write_b64 v11, v[%d:%d] offset:%d' % (t, t + 1, (16 + 16 * b) * QP + 32 * c), tok_w=['QB'])
    x2 = Stream()
    for q in range(2 * NR1, 18):
        for b in range(2):
            x2('ds_read_b128 %s, v%d offset:%d' % (xf(q, b), vXo if q & 1 else vXe, b * P2 + (q - 2 * NR1) * 1024), tok_w=['TR2'])
    t2 = t2_writes([0, 1, 2])
    addr = G('''
    v_and_b32 v10, 15, v1
    s_lshl_b32 s98, s51, 5
    v_add_u32 v10, s98, v10
    v_mul_u32_u24 v11, %d, v10
    v_mul_u32_u24 v10, %d, v10
    v_lshrrev_b32 v12, 4, v1
    v_lshlrev_b32 v12, 3, v12
    s_mov_b32 s98, %d
    v_add3_u32 v10, v10, v12, s98
    s_mov_b32 s98, %d
    v_add3_u32 v11, v11, v12, s98
    ''' % (QP, ZP, ZB_OFF, QB_OFF))
    hw = G('s_mul_i32 s98, s51, %d\nv_subrev_u32 v5, s98, v11\nv_add_u32 v38, s69, v5' % (32 * QP))
    NC = OPT.get('nc', 0)
    share = []
    for k in range(NC):
        c = 9 - NC + k
        g = Stream()
        off = 16 * ZP + 32 * c
        g('ds_read_b64 v[12:13], v10 offset:%d' % off)
        for _ in range(OPT.get('rgap', 6)): g.append(None)
        g("""v_and_b32 v15, 0xffff0000, v13
        v_lshlrev_b32 v14, 16, v13
        v_and_b32 v13, 0xffff0000, v12
        v_lshlrev_b32 v12, 16, v12""")
        gelu4(g, 12, 36, c2=0)
        g('v_cvt_pk_bf16_f32 v36, v12, v13')
        g('v_cvt_pk_bf16_f32 v37, v14, v15')
        g('ds_write_b64 v10, v[36:37] offset:%d' % off, tok_w=['ZCdone'] if k == NC - 1 else [])
        share.append(list(g))
    light = [[3, list(addr) + list(qaddr()) + G('s_mov_b32 s78, 0x%x\nv_mov_b32 v0, 0x%x' % (fbits(C1), fbits(C2)))], [10, list(zaddr(1))]]
    cur = []
    zc_step = [None]
    n2a, n2b = norm_z2(range(NZC), (152, 168 + 36 + 4 - 64, 160 + 48, 210) if False else ((112, 144, 160, 2) if OPT.get('mega') else (176, 208, 244, 248)))
    if OPT.get('p26'): n2a, n2b = norm_z2(range(OPT.get('nz', NZC)), (112, 144, 212, 204))
    att = []
    if OPT.get('attgap'):
        V2.S1 = XF; V2.QB_OFF = QB_OFF; V2.VOFF = 72; V2.QOFF = 144
        att = pace(list(V2.attention(0)) + (list(V2.attention(1)) if OPT.get('attboth') else []))
        print('att gaps', len(att))
        if OPT.get('n2gap'):
            n2a, n2b = norm_z2(range(NZC), (120, 152, 204, 208))
            cut = max(i for i, x in enumerate(n2b) if x.kind == 'ds' and x.op == 'ds_read_b128') + 1
            ld = pace(list(n2a), dl=6)
            rest = pace([x for x in n2b[:cut]], dl=6)
            att = att + ld + [None] * OPT['n2gap'] + rest
            n2a = []; n2b = n2b[cut:]
    for f, (n, ks, c) in enumerate(frs):
        ph, j = divmod(n, 9)
        q = 2 * j + ks
        r = WFR + (f % NRING) * 4
        if stamp and q == 0 and c == 0 and ph > 0 and not OPT.get('trace'): stamp_mid(S, 88 + 2 * ph)
        hand = (q == 0 and ph > 0)
        if hand and c == 0:
            if ph == 2: S.extend(hw)
            S.extend(cvt(ph - 1, 0, 0))
        rd = read(f + D) if f + D < len(frs) else []
        if f % 2 == 0 and f + 1 < len(frs) and not OPT.get('allwait'):
            r1 = WFR + ((f + 1) % NRING) * 4
            S.need(*['v%d' % k for k in range(r1, r1 + 4)])
        for b in range(2):
            a = acc(c, b)
            S('v_mfma_f32_16x16x32_bf16 %s, %s, %s, %s' % (q4(a), q4(r), xf(q, b), '0' if q == 0 else q4(a)))
            S.extend(rd[:-1] if b == 0 else rd[-1:])
            if TM and n == 18:
                if c < 7:
                    if ks == 0 and b == 0: S.extend(cvt(1, c, 1))
                    if ks == 0 and b == 1: S.extend(dw(1, c, 0))
                    if ks == 1 and b == 0: S.extend(dw(1, c, 1))
                    if ks == 1 and b == 1 and c < 6: S.extend(cvt(1, c + 1, 0))
                if c == 2 and ks == 0: S.extend(cvti(acc(7, b)))
                if c == 3 and ks == 1: S.extend(G('ds_write_b64 v%d, v[%d:%d] offset:%d' % (5 if b else 38, hA + 4 * b, hA + 4 * b + 1, 128 * b), tok_w=['QB']))
            elif hand and c < 7:
                S.extend(dw(ph - 1, c, b))
                if ph == 1:
                    if c in (1, 2): S.extend(dw(0, 6 + c, b, acc(6 + c, b)))
                    if c == 2 and b == 1: S.extend(halo_read(0))
                else:
                    if c == 1: S.extend(G('ds_write_b64 v%d, v[%d:%d] offset:%d' % (5 if b else 38, hA + 4 * b, hA + 4 * b + 1, 128 * b), tok_w=['QB']))
                if 2 * c + b + 1 < 14: S.extend(cvt(ph - 1, c + b, 1 - b))
                if c == 0 or (c == 1 and ph == 1): S.extend(cvti(acc(7 + c, b)))
            if OPT.get('pfc') and n in OPT['pfc'] and ks == 1 and c == 0 and b == 0: S.extend(pf_touch(OPT['pfc'].index(n)))
            if OPT.get('mega') and not OPT.get('qpack') and ks == 0 and c == 2 and b == 0 and n in (1, OPT.get('arr', 8)): S.append('CZERO' if n == 1 else 'CARRIVE')
            if OPT.get('wtch') and n in OPT['wtch'] and ks == 0 and c == 5 and b == 0: S.extend(w_touch(*OPT['wtch'][n]))
            if OPT.get('wst') and n in OPT['wst'] and ks == 1 and c == 3 and b == 0: S.extend(ws_touch(OPT['wst'].index(n)))
            if OPT.get('p26') and not OPT.get('n2gap') and n == OPT['p26'] and ks == 0 and c == 1 and b == 0:
                assert not att
                S.extend(n2a[:11]); n2a = n2a[11:]
            if n == 0 and t2 and b == 1: S.append(t2.pop(0))
            if n in (1, 2) and x2 and b == 1 and (n == 2 or ks == 1 or c > 0): S.append(x2.pop(0))
            gaps_left = sum(2 for ff in range(f, len(frs)) if frs[ff][0] < 18) - 12
            if not cur and share and not (light and n >= light[0][0]) and n >= 10 and (n >= 19 or gaps_left > len(share[0])) and not hand:
                cur.extend(share.pop(0))
            if cur:
                x = cur.pop(0)
                if x is not None: S.append(x)
                if not cur and not share: zc_step[0] = n
            elif att and n >= OPT['attgap']:
                x = att.pop(0)
                if x is not None: S.extend(x)
            elif light and n >= light[0][0]:
                x = light[0][1].pop(0); S.append(x)
                while x.kind == 'salu' and light[0][1]:
                    x = light[0][1].pop(0); S.append(x)
                if not light[0][1]: light.pop(0)
        if ph == 1 and c == 4:
            S('v_mfma_f32_16x16x32_bf16 %s, %s, %s, %s' % (q4(hA + 4), q4(r), q4(hX), '0' if q == 0 else q4(hA + 4)))
        if ph == 1 and c == 5:
            S('v_mfma_f32_16x16x32_bf16 %s, %s, %s, %s' % (q4(hA), q4(hW), q4(hX), '0' if q == 0 else q4(hA)))
            if q < 17 and (q & 1) == 0: S.extend(halo_read(q + 1))
        if ph == 1 and c == 6 and q < 17 and (q & 1) == 1: S.extend(halo_read(q + 1))
    assert not t2 and not x2 and not share and not cur
    OPT['zc_step'] = zc_step[0]
    for x in att:
        if x is not None: S.extend(x)
    if OPT.get('mega'): OPT['mega'].cons_early(S)
    if not OPT.get('early'):
        S('s_barrier')
        S.extend(n2a)
    elif OPT.get('mega'): S('s_barrier')
    if stamp: stamp_mid(S, 94)
    S('''
    s_lshl_b32 s63, s48, 3
    s_lshl_b32 s98, s51, 1
    s_add_u32 s63, s63, s98
    s_mul_i32 s63, s63, 72
    s_mul_i32 s98, s49, 9
    s_add_u32 s98, s98, s52
    s_lshr_b32 s98, s98, 1
    s_add_u32 s63, s63, s98
    s_lshl_b32 s69, s63, 10
    s_add_u32 s70, s69, 73728
    s_cmp_eq_u32 s52, 0
    s_cselect_b32 s63, 4608, 0
    s_sub_u32 s63, s63, 512
    s_add_u32 s71, s69, s63
    s_add_u32 s72, s70, s63
    v_lshlrev_b32 v10, 4, v1
    v_lshrrev_b32 v12, 5, v1
    v_lshlrev_b32 v12, 8, v12
    v_and_b32 v13, 15, v1
    v_lshl_add_u32 v12, v13, 4, v12
    v_bfe_u32 v13, v1, 4, 1
    v_lshl_add_u32 v12, v13, 3, v12
    ''')
    G1 = OPT.get('gelu1', False)
    if G1:
        S('s_mov_b32 s78, 0x%x' % fbits(C1))
        S('v_mov_b32 v%d, 0x%x' % (vC2, fbits(C2)))
    for p in range(4):
        for b in range(2):
            a0 = acc(2 * p, b); a1 = acc(2 * p + 1, b)
            if G1: gelu4(S, a0, XF); gelu4(S, a1, XF + 4)
            o = XF + 8 + 4 * (2 * p + b) if not OPT.get('mega') else 168 + (b * 4 + p) * 4
            S('v_cvt_pk_bf16_f32 v%d, v%d, v%d' % (o, a0, a0 + 1))
            S('v_cvt_pk_bf16_f32 v%d, v%d, v%d' % (o + 1, a0 + 2, a0 + 3))
            S('v_cvt_pk_bf16_f32 v%d, v%d, v%d' % (o + 2, a1, a1 + 1))
            S('v_cvt_pk_bf16_f32 v%d, v%d, v%d' % (o + 3, a1 + 2, a1 + 3))
            for d in range(2): S('v_permlane32_swap_b32 v%d, v%d' % (o + d, o + 2 + d))
            for d in range(2): S('v_permlane16_swap_b32 v%d, v%d' % (o + d, o + 2 + d))
            if not OPT.get('mega'): S('buffer_store_dwordx4 %s, v10, s[32:35], s%d offen offset:%d' % (q4(o), 69 + b, p * 1024))
    for b in range(2):
        a0 = acc(8, b)
        if G1: gelu4(S, a0, XF)
        o = XF + 40 + 2 * b if not OPT.get('mega') else 200 + 2 * b
        S('v_cvt_pk_bf16_f32 v%d, v%d, v%d' % (o, a0, a0 + 1))
        S('v_cvt_pk_bf16_f32 v%d, v%d, v%d' % (o + 1, a0 + 2, a0 + 3))
        if not OPT.get('mega'): S('buffer_store_dwordx2 v[%d:%d], v12, s[32:35], s%d offen' % (o, o + 1, 71 + b))
    V2.S1 = 40; V2.QB_OFF = QB_OFF; V2.VOFF = 72; V2.QOFF = 144
    ost = []
    if not OPT.get('attgap'):
        for x in V2.attention(0):
            if OPT.get('mega') and isinstance(x, list) and any(y.kind == 'vmem' for y in x): ost.append(x)
            else: S.append(x)
    if OPT.get('late'): S('s_barrier')
    if not OPT.get('early'): S.extend(n2b)
    S.extend(ost)
    OPT['n_ost'] = sum(1 for x in ost for y in x if y.kind == 'vmem')
    if stamp:
        stamp_mid(S, 96)
        if not OPT.get('mega'): S('s_waitcnt vmcnt(0)')
        stamp_mid(S, 70)
        stamp_store(S, 84, [86, 88, 90, 92, 94, 96, 70 if not OPT.get('ptrace') else 66], 14, 0, 72, 12, wave_s=50)
    if OPT.get('mega'): S('s_branch K2_CONS')
    else: S('s_endpgm')
    return S

def compute2(stamp):
    S = Stream()
    vXe = 6; vXo = 7
    xloads(S, [0])
    common_setup(S)
    srd(S, 32, 14, 15, Z1P_SZ, Z1P_OFF)
    S('''
    s_mul_i32 s63, s51, %d
    s_add_u32 s63, s63, %d
    v_add_u32 v6, s63, v6
    v_xor_b32 v7, 64, v6
    ''' % (2 * P1, T1_OFF))
    if stamp: stamp_mid(S, 86)
    layernorm(S, [0, 1, 2])
    for q in range(2 * NR1):
        for b in range(2):
            S('ds_read_b128 %s, v%d offset:%d' % (xf(q, b), vXo if q & 1 else vXe, b * P1 + q * 1024), tok_w=['TR'])
    for j in range(NR1, 9): norm4(S, ln(2, j), ST + 4, ST + 6)
    t2_addr(S)
    S('s_mul_i32 s63, s51, %d' % (2 * (P2 - P1)))
    S('s_add_u32 s63, s63, %d' % (T2_OFF - T1_OFF))
    S.need('TR')
    S('s_barrier')
    S('v_add_u32 v6, s63, v6')
    S('v_add_u32 v7, s63, v7')
    S('s_setprio %d' % OPT.get('prio', 2))
    if stamp: stamp_mid(S, 88)
    ntile = [9, 9, 7]
    def acc(c, b): return ACC + (c * 2 + b) * 4
    hA = ACC + 56; hX = ACC + 64; hW = ACC + 68
    vTa = 2; vTb = 3; vq2 = 2; vq4 = 3; vQb = 4; vXH = 9; vqh = 8; vZa = 5; vZb = 6; vTs = 7
    frs = [(n, ks, c) for n in range(27) for ks in range(2) for c in range(ntile[n // 9])]
    def order(n):
        nt = ntile[n // 9]
        if n == 9: return [(ks, c) for c in range(nt) for ks in range(2)]
        if n == 18: return [(ks, c) for c in range(4) for ks in range(2)] + [(ks, c) for ks in range(2) for c in range(4, 7)]
        return [(ks, c) for ks in range(2) for c in range(nt)]
    frs = [(n, ks, c) for n in range(27) for ks, c in order(n)]
    bias = {}
    extra_tok = {1: ['T2'], 9: ['TR2'], 11: ['HB']}
    QIMM = {0: 0, 1: 32, 3: 120, 5: 160 + 48, 6: 192 + 48}
    def zaddr(mode):
        g = Stream()
        g("""v_bfe_u32 v15, v1, 4, 1
        v_lshlrev_b32 v15, 5, v15""")
        if mode == 0:
            g("""s_cmp_eq_u32 s52, 0
            s_cselect_b32 s98, 1, -1
            s_lshl_b32 s99, s52, 5
            v_mul_lo_u32 v15, v15, s98
            v_add3_u32 v%d, v%d, v15, s99
            v_sub_u32 v%d, v%d, v15
            v_add_u32 v%d, s99, v%d""" % (vTa, vT, vTb, vT, vTb, vTb))
        else:
            g("""s_lshl_b32 s99, s52, 6
            v_add3_u32 v%d, v%d, v15, s99
            v_sub_u32 v%d, v%d, v15
            v_add_u32 v%d, 256, v%d
            v_add_u32 v15, 32, v%d
            s_cmp_eq_u32 s52, 0
            s_cselect_b64 vcc, -1, 0
            v_cndmask_b32 v%d, v15, v%d, vcc
            v_add_u32 v%d, s99, v%d""" % (vZa, vT, vZb, vT, vTs, vZa, vZb, vTs, vTs, vZb, vZb))
        return g
    def qaddr():
        g = Stream()
        g("""v_bfe_u32 v15, v1, 4, 1
        v_lshlrev_b32 v15, 5, v15
        s_mul_i32 s98, s49, 72
        s_and_b32 s98, s98, 31
        s_add_u32 s98, s98, {bias}
        v_add3_u32 v{qb}, v{T}, v15, s98
        v_and_b32 v15, 3, v1
        v_cmp_le_u32 vcc, 2, v15
        v_cndmask_b32 v14, 0, 24, vcc
        v_add_u32 v14, 152, v14
        v_add_u32 v{q4}, v{qb}, v14
        v_cmp_le_u32 vcc, 1, v15
        v_cndmask_b32 v14, 0, 24, vcc
        v_add_u32 v14, 64, v14
        v_add_u32 v{q2}, v{qb}, v14
        s_lshl_b32 s73, s51, 5
        s_cmp_eq_u32 s51, 3
        s_cselect_b32 s99, 24, 0
        s_add_u32 s99, s99, s73
        v_add_u32 v{qh}, s99, v{qb}
        s_cmp_eq_u32 s51, 2
        s_cselect_b64 vcc, -1, 0
        v_cndmask_b32 v{qh}, v{qh}, v{q2}, vcc
        v_and_b32 v14, 15, v1
        v_lshrrev_b32 v15, 4, v1
        v_xor_b32 v14, v14, v15
        v_lshl_add_u32 v14, v15, 4, v14
        v_lshlrev_b32 v14, 4, v14
        v_add_u32 v{xh}, {XH}, v14""".format(qb=vQb, T=vT, q4=vq4, q2=vq2, qh=vqh, xh=vXH, XH=XH_OFF, bias=2 * SLOT))
        return g
    def toggle(g, ar, n):
        want = (n & 3) >> 1
        if bias.get(ar, 0) != want:
            g('v_add_u32 v%d, %d, v%d' % (ar, 2 * SLOT if want else -2 * SLOT, ar))
            bias[ar] = want
    def halo_read(q):
        g = Stream()
        n = 18 + q // 2
        g('ds_read_b128 %s, v%d offset:%d' % (q4(hX), vXH, q * 1024), tok_w=['XHR'])
        toggle(g, vqh, n)
        for hh in range(2):
            g('ds_read_b64_tr_b16 v[%d:%d], v%d offset:%d' % (hW + 2 * hh, hW + 2 * hh + 1, vqh, (n & 1) * SLOT + (q & 1) * 10240 + hh * 1280))
        return g
    def read(f):
        n, ks, c = frs[f]
        ph = n // 9
        g = Stream()
        if ks == 0 and c == 0:
            if n > 0:
                if n in extra_tok: g.need(*extra_tok[n])
                if n > 10: g.need('ZCdone')
                g('s_barrier')
            if n == 0: g.extend(zaddr(0))
            if n == 18:
                for r in (vQb, vq2, vq4, vqh): bias[r] = 1
        if ph == 0: ar, coff = (vTb if c & 1 else vTa), 32 * c
        elif ph == 2: ar, coff = (vq2, 0) if c == 2 else ((vq4, 0) if c == 4 else (vQb, QIMM[c]))
        else: ar, coff = ((vZb if c & 1 else vZa), 32 * c) if c < 8 else (vTs, 0)
        toggle(g, ar, n)
        r = WFR + (f % NRING) * 4
        for hh in range(2):
            if OPT.get('halfread') and hh == 1:
                g('s_nop 0'); continue
            g('ds_read_b64_tr_b16 v[%d:%d], v%d offset:%d' % (r + 2 * hh, r + 2 * hh + 1, ar, (n & 1) * SLOT + ks * 10240 + hh * 1280 + coff))
        return g
    D = NRING - 1
    for f in range(D): S.extend(read(f))
    def tmpr(ph, c, b):
        pairs = [12, 14, 2, 36, 38]
        return pairs[(2 * c + b) % len(pairs)]
    def cvt(ph, c, b):
        a = acc(c, b); t = tmpr(ph, c, b)
        return G('v_cvt_pk_bf16_f32 v%d, v%d, v%d\nv_cvt_pk_bf16_f32 v%d, v%d, v%d' % (t, a, a + 1, t + 1, a + 2, a + 3))
    def cvti(a):
        return G('v_cvt_pk_bf16_f32 v%d, v%d, v%d\nv_cvt_pk_bf16_f32 v%d, v%d, v%d' % (a, a, a + 1, a + 1, a + 2, a + 3))
    def dw(ph, c, b, src=None):
        t = tmpr(ph, c, b) if src is None else src
        if OPT.get('nodw'): return []
        if ph == 0:
            return G('ds_write_b64 v10, v[%d:%d] offset:%d' % (t, t + 1, 16 * b * ZP + 32 * c), tok_w=['HB'])
        return G('ds_write_b64 v11, v[%d:%d] offset:%d' % (t, t + 1, (16 + 16 * b) * QP + 32 * c), tok_w=['QB'])
    x2 = Stream()
    for q in range(2 * NR1, 18):
        for b in range(2):
            x2('ds_read_b128 %s, v%d offset:%d' % (xf(q, b), vXo if q & 1 else vXe, b * P2 + (q - 2 * NR1) * 1024), tok_w=['TR2'])
    t2 = t2_writes([0, 1, 2])
    addr = G('''
    v_and_b32 v10, 15, v1
    s_lshl_b32 s98, s51, 5
    v_add_u32 v10, s98, v10
    v_mul_u32_u24 v11, %d, v10
    v_mul_u32_u24 v10, %d, v10
    v_lshrrev_b32 v12, 4, v1
    v_lshlrev_b32 v12, 3, v12
    s_mov_b32 s98, %d
    v_add3_u32 v10, v10, v12, s98
    s_mov_b32 s98, %d
    v_add3_u32 v11, v11, v12, s98
    ''' % (QP, ZP, ZB_OFF, QB_OFF))
    hw = G('s_mul_i32 s98, s51, %d\nv_subrev_u32 v5, s98, v11\nv_add_u32 v38, s69, v5' % (32 * QP))
    NC = OPT.get('nc', 0)
    share = []
    for k in range(NC):
        c = 9 - NC + k
        g = Stream()
        off = 16 * ZP + 32 * c
        g('ds_read_b64 v[12:13], v10 offset:%d' % off)
        for _ in range(OPT.get('rgap', 6)): g.append(None)
        g("""v_and_b32 v15, 0xffff0000, v13
        v_lshlrev_b32 v14, 16, v13
        v_and_b32 v13, 0xffff0000, v12
        v_lshlrev_b32 v12, 16, v12""")
        gelu4(g, 12, 36, c2=0)
        g('v_cvt_pk_bf16_f32 v36, v12, v13')
        g('v_cvt_pk_bf16_f32 v37, v14, v15')
        g('ds_write_b64 v10, v[36:37] offset:%d' % off, tok_w=['ZCdone'] if k == NC - 1 else [])
        share.append(list(g))
    zoff = G("""
    s_lshl_b32 s63, s48, 3
    s_lshl_b32 s98, s51, 1
    s_add_u32 s63, s63, s98
    s_mul_i32 s63, s63, 72
    s_mul_i32 s98, s49, 9
    s_add_u32 s98, s98, s52
    s_lshr_b32 s98, s98, 1
    s_add_u32 s63, s63, s98
    s_lshl_b32 s69, s63, 10
    s_add_u32 s70, s69, 73728
    s_cmp_eq_u32 s52, 0
    s_cselect_b32 s63, 4608, 0
    s_sub_u32 s63, s63, 512
    s_add_u32 s71, s69, s63
    s_add_u32 s72, s70, s63
    v_lshlrev_b32 v10, 4, v1
    v_lshrrev_b32 v0, 5, v1
    v_lshlrev_b32 v0, 8, v0
    v_and_b32 v13, 15, v1
    v_lshl_add_u32 v0, v13, 4, v0
    v_bfe_u32 v13, v1, 4, 1
    v_lshl_add_u32 v0, v13, 3, v0
    """)
    light = [[3, list(addr) + list(zaddr(1)) + G('s_mov_b32 s78, 0x%x\nv_mov_b32 v0, 0x%x' % (fbits(C1), fbits(C2)))], [10, list(qaddr())], [17, zoff]]
    WT = ' sc1' if OPT.get('wt', 1) else ''
    def cv(o, a): return G('v_cvt_pk_bf16_f32 v%d, v%d, v%d\nv_cvt_pk_bf16_f32 v%d, v%d, v%d' % (o, a, a + 1, o + 1, a + 2, a + 3))
    def pairfin(p, dst):
        g = Stream()
        for sw in ('v_permlane32_swap_b32', 'v_permlane16_swap_b32'):
            for b in range(2):
                for d in range(2): g('%s v%d, v%d' % (sw, dst[b] + d, dst[b] + 2 + d))
        for b in range(2): g('buffer_store_dwordx4 %s, v10, s[32:35], s%d offen offset:%d%s' % (q4(dst[b]), 69 + b, p * 1024, WT))
        return list(g)
    def pair(p):
        dst = [acc(2 * p, 0), acc(2 * p, 1)]
        return cv(dst[0], dst[0]) + cv(dst[1], dst[1]) + cv(dst[0] + 2, acc(2 * p + 1, 0)) + cv(dst[1] + 2, acc(2 * p + 1, 1)) + pairfin(p, dst)
    single = []
    for b in range(2): single += cv(acc(8, b), acc(8, b))
    for b in range(2): single += G('buffer_store_dwordx2 v[%d:%d], v0, s[32:35], s%d offen%s' % (acc(8, b), acc(8, b) + 1, 71 + b, WT))
    zw = [(2, x) for x in cv(14, acc(1, 0)) + cv(38, acc(1, 1))] + [(4, x) for x in pair(1)] + [(6, x) for x in single] + [(7, x) for x in pairfin(0, [12, 36])] + [(8, x) for x in pair(2) + pair(3)]
    cur = []
    zc_step = [None]
    fi = 0
    for f, (n, ks, c) in enumerate(frs):
        ph, j = divmod(n, 9)
        q = 2 * j + ks
        r = WFR + (f % NRING) * 4
        first = (j == 0 and ks == 0 and c == 0)
        if first: fi = 0
        if stamp and first and ph > 0 and not OPT.get('trace'): stamp_mid(S, 88 + 2 * ph)
        if first and ph == 1: S.extend(cvt(0, 0, 0))
        if first and ph == 2:
            assert not light and not cur and not share
            S.extend(cv(12, acc(0, 0)) + cv(36, acc(0, 1)))
        if n == 18: assert not zw or zw[0][0] > fi, (fi, zw[0][0])
        rd = read(f + D) if f + D < len(frs) else []
        if f % 2 == 0 and f + 1 < len(frs) and not OPT.get('allwait'):
            r1 = WFR + ((f + 1) % NRING) * 4
            S.need(*['v%d' % k for k in range(r1, r1 + 4)])
        for b in range(2):
            a = acc(c, b)
            S('v_mfma_f32_16x16x32_bf16 %s, %s, %s, %s' % (q4(a), q4(r), xf(q, b), '0' if q == 0 else q4(a)))
            S.extend(rd[:-1] if b == 0 else rd[-1:])
            if n == 9:
                if ks == 0 and b == 0: S.extend(cvt(0, c, 1))
                if ks == 0 and b == 1: S.extend(dw(0, c, 0))
                if ks == 1 and b == 0: S.extend(dw(0, c, 1))
                if ks == 1 and b == 1 and c < 8: S.extend(cvt(0, c + 1, 0))
            if n == 18:
                for _ in range(OPT.get('zrate', 5)):
                    if zw: S.append(zw.pop(0)[1])
                if fi == 6 and b == 1: S.extend(halo_read(0))
            if n == 0 and t2 and b == 1: S.append(t2.pop(0))
            if n in (1, 2) and x2 and b == 1 and (n == 2 or ks == 1 or c > 0): S.append(x2.pop(0))
            gaps_left = sum(2 for ff in range(f, len(frs)) if frs[ff][0] < 17)
            if not cur and share and not (light and n >= light[0][0]) and n >= 10 and gaps_left > len(share[0]):
                cur.extend(share.pop(0))
            if cur:
                x = cur.pop(0)
                if x is not None: S.append(x)
                if not cur and not share: zc_step[0] = n
            elif light and n >= light[0][0] and n != 9:
                x = light[0][1].pop(0); S.append(x)
                while x.kind == 'salu' and light[0][1]:
                    x = light[0][1].pop(0); S.append(x)
                if not light[0][1]: light.pop(0)
        if ph == 2 and c == 4:
            S('v_mfma_f32_16x16x32_bf16 %s, %s, %s, %s' % (q4(hA + 4), q4(r), q4(hX), '0' if q == 0 else q4(hA + 4)))
        if ph == 2 and c == 5:
            S('v_mfma_f32_16x16x32_bf16 %s, %s, %s, %s' % (q4(hA), q4(hW), q4(hX), '0' if q == 0 else q4(hA)))
            if q < 17 and (q & 1) == 0: S.extend(halo_read(q + 1))
        if ph == 2 and c == 6 and q < 17 and (q & 1) == 1: S.extend(halo_read(q + 1))
        fi += 1
    assert not t2 and not x2 and not share and not cur and not zw
    OPT['zc_step'] = zc_step[0]
    if stamp: stamp_mid(S, 94)
    S('s_mul_i32 s98, s51, %d' % (32 * QP))
    S('v_subrev_u32 v5, s98, v11')
    S('v_add_u32 v6, s73, v5')
    for c in range(8):
        for b in range(2): S.extend(cvti(acc(c, b)))
    S('s_barrier')
    for c in range(7):
        for b in range(2): S.extend(dw(1, c, b, acc(c, b)))
    for b in range(2): S('ds_write_b64 v%d, v[%d:%d] offset:%d' % (5 if b else 6, hA + 4 * b, hA + 4 * b + 1, 128 * b), tok_w=['QB'])
    nz = OPT.get('nzc', 0)
    if nz:
        n2a, n2b = norm_z2(range(nz))
        S.extend(n2a)
    S.need('QB')
    S('s_barrier')
    V2.S1 = 40; V2.QB_OFF = QB_OFF; V2.VOFF = 72; V2.QOFF = 144
    S.extend(V2.attention(0))
    if OPT.get('attc'): S.extend(V2.attention(1))
    if nz: S.extend(n2b)
    if stamp:
        stamp_mid(S, 96)
        S('s_waitcnt vmcnt(0)')
        stamp_mid(S, 70)
        stamp_store(S, 84, [86, 88, 90, 92, 94, 96, 70 if not OPT.get('ptrace') else 66], 14, 0, 72, 12, wave_s=50)
    S('s_endpgm')
    return S

HL = 232
def helper(stamp):
    S = Stream()
    S('K1_HELP:')
    if OPT.get('cpf'): S.extend(code_prefetch('k1_kernel', 'k2_kernel', 1, 40, 34, 64, 12, neg=True))
    S("""s_getpc_b64 s[64:65]
    s_add_u32 s64, s64, K1_TAB@rel32@lo+4
    s_addc_u32 s65, s65, K1_TAB@rel32@hi+12
    s_lshl_b32 s66, s51, 12
    v_lshlrev_b32 v32, 4, v1
    v_add_u32 v32, s66, v32
    v_mov_b32 v33, s65
    v_add_co_u32 v32, vcc, s64, v32
    v_addc_co_u32 v33, vcc, 0, v33, vcc
    global_load_dwordx4 v[16:19], v[32:33], off
    global_load_dwordx4 v[20:23], v[32:33], off offset:1024
    global_load_dwordx4 v[24:27], v[32:33], off offset:2048
    global_load_dwordx4 v[64:67], v[32:33], off offset:3072""")
    xloads(S, [0])
    common_setup(S)
    srd(S, 20, 6, 7, 576 * 3456)
    srd(S, 24, 8, 9, 576 * 9216)
    S("""
    s_lshl_b32 s68, s51, 10
    s_mul_i32 s64, s49, 288
    s_and_b32 s64, s64, -64
    s_mul_i32 s65, s49, 72
    s_and_b32 s65, s65, -32
    v_mov_b32 v106, 0x7f000000
    """)
    srd(S, 4, 10, 11, 2048 * 4096)
    vHW = 26; vH0 = 28
    QH = Stream()
    QH("""
    s_mov_b32 s78, 0x%x
    v_mov_b32 v%d, 0x%x
    s_lshl_b32 s8, s2, 15
    s_lshl_b32 s9, s51, 11
    s_add_u32 s8, s8, s9
    v_lshlrev_b32 v8, 7, v1
    s_mul_i32 s98, s48, %d
    s_sub_u32 s98, s98, %d
    v_add_u32 v100, s98, v27
    v_bfe_u32 v101, v1, 3, 1
    v_add_u32 v101, s%d, v101
    """ % (fbits(C1), vC2, fbits(C2), 128 * 1152, 16 * 1152, sBLK))
    for t in range(5):
        QH('v_add_u32 v102, %d, v101' % (2 * t))
        QH('v_subrev_u32 v103, 9, v102')
        QH('v_min_u32 v102, v102, v103')
        QH('v_lshl_add_u32 v%d, v102, 7, v100' % (vH0 + t))
    QH('''
    v_and_b32 v103, 15, v1
    v_cmp_gt_u32 vcc, 8, v103
    v_cndmask_b32 v%d, v106, v%d, vcc
    ''' % (vH0 + 4, vH0 + 4))
    for t in range(5):
        QH('buffer_load_dwordx4 %s, v%d, s[16:19], 0 offen' % (q4(HL + 4 * t), vH0 + t))
    QK = Stream()
    if OPT.get('qpack'):
        S("""s_mul_i32 s63, s48, %d
        s_add_u32 s63, s63, s65""" % (36 * 3456))
        for e in range(3): S('buffer_load_dwordx4 %s, v%d, s[20:23], s63 offen' % (q4(120 + 4 * e), 64 + e))
        S.append('HZERO2')
        srd(QK, 20, 14, 15, QK_SZ, QK_OFF)
        QK("""s_mul_i32 s65, s49, %d
        s_mul_i32 s63, s48, %d
        s_add_u32 s63, s63, s65
        s_mul_i32 s66, s51, 2592
        s_add_u32 s63, s63, s66
        v_lshlrev_b32 v69, 4, v1""" % (576 * 288, 36 * 288))
        for e in range(3):
            if e == 2: QK('s_mov_b32 exec_hi, 3')
            QK('buffer_store_dwordx4 %s, v69, s[20:23], s63 offen offset:%d sc1' % (q4(120 + 4 * e), 1024 * e), tok_w=['QKS'])
        QK('s_mov_b32 exec_hi, -1')
        QK.append('HARRIVE')
    if stamp: stamp_mid(S, 86)
    QA = [x for x in QK if x == 'HARRIVE']; QK = [x for x in QK if x != 'HARRIVE']
    layernorm(S, [3], mid=list(wdma(0)), mid2=list(wdma(1)) + QK)
    for j in range(NR1, 9): norm4(S, ln(0, j), ST, ST + 6)
    t2_addr(S)
    S.need('W0')
    S.extend(QA)
    S('s_barrier')
    if stamp: stamp_mid(S, 88)
    q1 = list(QH) + list(ln_halo(vHW))
    q2 = list(epi_z2())
    V2.S1 = 136; V2.QB_OFF = QB_OFF; V2.VOFF = 72; V2.QOFF = 144
    q3 = list(V2.attention(1)) if not OPT.get('attboth') else []
    B = OPT.get('budget', 64)
    if OPT.get('e2cut') is not None:
        keepn = OPT['e2cut']
        q2 = q2[:keepn] + [x for x in q2[-1:]]
    if OPT.get('noside'):
        q1 = []; q2 = q2[-1:]; q3 = []
    pub_step = None
    n2a, n2b = norm_z2(range(OPT.get('nzc', 0) if (OPT.get('zzq') or OPT.get('early')) else OPT.get('nz', NZC), 9))
    q4_ = list(n2a) + list(n2b)
    oz_late = []
    for n in range(27):
        if n > 0:
            toks = ['W%d' % n]
            if n == 1: toks.append('T2')
            if n == 4: toks.append('ZE')
            if n == 2: toks.append('QKS')
            if n == 7 and OPT.get('qpack'): S.append('QCHECK')
            if n == (18 if OPT.get('zzq') else 9): toks.append('XH')
            if (OPT.get('zzq') or OPT.get('early')) and n == OPT.get('pollstep', 25): S.append('POLLCHECK')
            if OPT.get('p26') and n == OPT['p26']: S.append('POLLCHECK')
            if pub_step is not None and n == pub_step + 2: toks += ['PUB', 'ZB']
            if OPT.get('trace'):
                S('s_memtime s[96:97]\ns_waitcnt lgkmcnt(0)\ns_sub_u32 s96, s96, s84\nv_writelane_b32 v254, s96, %d' % n)
            S.need(*toks)
            if OPT.get('trace'):
                S('s_memtime s[96:97]\ns_waitcnt lgkmcnt(0)\ns_sub_u32 s96, s96, s84\nv_writelane_b32 v254, s96, %d' % (n + 32))
            S('s_barrier')
            if OPT.get('trace'):
                S('s_memtime s[96:97]\ns_waitcnt lgkmcnt(0)\ns_sub_u32 s96, s96, s84\nv_writelane_b32 v255, s96, %d' % n)
            if pub_step is not None and n == pub_step + 2: S.append('ATOMIC')
        if stamp and n in (9, 18): stamp_mid(S, 88 + 2 * (n // 9))
        mem = []
        if n + 2 < 27 and not OPT.get('nodma'):
            w = list(wdma(n + 2))
            mem = [w[:-8]] + [w[-8 + 2 * k:len(w) - 6 + 2 * k] for k in range(4)]
            assert sum(len(x) for x in mem) == len(w)
            if OPT.get('dg') == 3: mem = [mem[0] + mem[1], mem[2] + mem[3], mem[4]]
            if OPT.get('dg') == 2: mem = [mem[0] + mem[1] + mem[2], mem[3] + mem[4]]
        if n in (2, 4, 6, 9) and not OPT.get('nopf') and not OPT.get('pfc'):
            mem.append(G('''s_mov_b32 m0, %d
            s_mov_b64 exec, 0xffff
            buffer_load_dword v8, s[4:7], s8 offen lds
            s_mov_b64 exec, -1
            s_add_u32 s8, s8, 8192''' % SB_OFF))
        if OPT.get('pf3') and n in (12, 15) and not OPT.get('pfc'):
            mem.append(G('''s_load_dwordx2 s[4:5], s[0:1], %d
            s_mov_b32 s6, %d
            s_mul_i32 s8, s2, %d
            s_mul_i32 s12, s51, %d
            s_add_u32 s8, s8, s12
            s_mov_b32 m0, %d
            s_waitcnt lgkmcnt(0)
            s_mov_b64 exec, 0x%x
            buffer_load_dword v8, s[4:7], s8 offen lds
            s_mov_b64 exec, -1''' % ((56, 2304 * 1152, 10368, 2688, SB_OFF, 0x1fffff) if n == 12 else (16, 576 * 1152, 2688, 768, SB_OFF, 0x3f))))
        for tn, n0 in OPT.get('hspread', {}).items():
            if n0 <= n < n0 + 5:
                w = [x for x in wdma(tn)]
                g = [I(x.text.replace('s63', 's13')) for x in w[:-10]] + G('s_mov_b32 m0, %d' % SB_OFF)
                g += G([x for x in w[-10:] if x.kind == 'dma'][n - n0].text.replace('dwordx4', 'dword').replace('s63', 's13'))
                mem.append(g)
        for tn in OPT.get('htouch', {}).get(n, []):
            w = [x for x in wdma(tn)]
            g = [x for x in w[:-10]] + G('s_mov_b32 m0, %d' % SB_OFF)
            for x in w[-10:]:
                if x.kind == 'dma': g += G(x.text.replace('dwordx4', 'dword'))
            mem.append(g)
        work = []
        if n == 0: work += list(t2_writes([3]))
        if n == 18 and not OPT.get('flags', 1): work += G('s_lshl_b32 s9, s48, 4\nv_mov_b32 v6, 0')
        if OPT.get('qpack'):
            for tk in {1: ['ENTRY1'], 2: ['QFLAG'], 3: ['GATE1'], 5: ['GATE2', 'QISSUE']}.get(n, []): work.append(tk)
        elif OPT.get('flags', 1) and n in (1, 4, 13, 16): work.append({1: 'ENTRY1', 4: 'ENTRY2', 13: 'GATE1', 16: 'GATE2'}[n])
        if n == (OPT.get('pollstep', 25) - 1 if (OPT.get('zzq') or OPT.get('early')) else (OPT['p26'] - 1 if OPT.get('p26') else 26)): work.append('POLLISSUE')
        if OPT.get('p26') and n == OPT['p26']:
            work += n2a[:11]; n2a = n2a[11:]
        if OPT.get('hn2') and n == 26:
            work += list(n2a) + [x for x in n2b if 'OZ' not in x.tok_w]
            n2a = [x for x in n2b if 'OZ' in x.tok_w]; n2b = []
        if OPT.get('n2gap') and n == 26:
            cut = max(i for i, x in enumerate(n2b) if x.kind == 'ds' and x.op == 'ds_read_b128') + 1
            work += list(n2a) + list(n2b[:cut]); n2a = []; n2b = n2b[cut:]
        if n == 17 and OPT.get('pf3') and not OPT.get('mega'): work.append('ZERO')
        if n == 19 and OPT.get('mega'): work += G('v_mov_b32 v40, 159744\nv_mov_b32 v42, 0\nv_mov_b32 v43, 0\nv_mov_b32 v44, 0\nv_mov_b32 v45, 0') + G('ds_write_b128 v40, v[42:45]', tok_w=['ZB']) + G('ds_write_b128 v40, v[42:45] offset:16', tok_w=['ZB'])
        if OPT.get('cpf') == 1 and n == 22: work.append(code_prefetch('K2_TEXT' if OPT.get('mega') else 'k2_kernel', 'TEXT_END', 1, 32, 35, 10, 12))
        def drain(q, budget):
            while q and budget > 0:
                if isinstance(q[0], tuple) and q[0][0] == 'WAITSTEP':
                    if n < q[0][1]: break
                    q.pop(0); continue
                x = q.pop(0)
                if not isinstance(x, (str, list, tuple)) and 'OZ' in x.tok_w:
                    oz_late.append(x); continue
                budget -= wt(x); work.append(x)
            return budget
        budget = B
        if 0 <= n <= 10 and q1: drain(q1, OPT.get('b1', 34) if n < (10 if OPT.get('zzq') else 8) else 1e9)
        if n >= (11 if OPT.get('zzq') or OPT.get('m32') else 10) and q2:
            budget = drain(q2, budget)
            if not q2: pub_step = max(n, 17)
        elif OPT.get('early') and n >= OPT['pollstep']:
            drain(q4_, len(n2a) if n == OPT['pollstep'] else OPT.get('nbudget', 60))
            if n == OPT['pollstep']: drain(q3, OPT.get('abudget', 36))
        elif n >= (20 if OPT.get('m32') or OPT.get('tm') else 19) and not OPT.get('zzq'): drain(q3, OPT.get('abudget', 36))
        elif OPT.get('zzq') and n >= OPT.get('pollstep', 25): drain(q4_, OPT.get('nbudget', 50) if n > OPT.get('pollstep', 25) else len(n2a))
        tot = sum(wt(x) for x in work); acc_ = 0.0; k = 0
        for x in work:
            while k < len(mem) and acc_ >= tot * k / (len(mem) + OPT.get('dmaslack', 1)):
                S.extend(mem[k]); k += 1
            S.append(x); acc_ += wt(x)
        while k < len(mem):
            S.extend(mem[k]); k += 1
    late = pub_step is None or pub_step + 2 > 26
    assert late == bool(OPT.get('late')), (pub_step, 'set late option accordingly')
    if late:
        S.extend(q2)
        S.need('ZB')
        h = len(q3) // 2
        S.extend(q3[:h]); q3 = q3[h:]
        S.need('PUB')
        S('s_barrier')
        S.append('ATOMIC')
    if stamp: stamp_mid(S, 94)
    if OPT.get('zzq'):
        assert pub_step + 2 < OPT.get('pollstep', 25)
        if OPT.get('pollstep') == 27: S.append('POLLCHECK')
        S('s_barrier')
        k = min(len(q4_), OPT.get('n2mid', 60))
        S.extend(q4_[:k]); q4_ = q4_[k:]
        S('s_barrier')
        S.extend(q4_)
        if not OPT.get('attc'): S.extend(q3)
    elif OPT.get('early'):
        assert pub_step + 2 < OPT['pollstep']
        if OPT.get('mega'):
            S('s_barrier')
            OPT['mega'].prod_early(S)
        S.extend(oz_late)
        S.extend(q4_); S.extend(q3)
    else:
        if not OPT.get('p26'): S.append('POLLCHECK')
        S('s_barrier')
        S.extend(n2a)
        if OPT.get('mega'): OPT['mega'].prod_early(S)
        S.extend(q3)
        S.extend(n2b)
    if stamp:
        stamp_mid(S, 96)
        if not OPT.get('mega'): S('s_waitcnt vmcnt(0)')
        stamp_mid(S, 70)
        stamp_store(S, 84, [86, 88, 90, 92, 94, 96, 70 if not OPT.get('ptrace') else 66], 14, 0, 72, 12, wave_s=50)
    if OPT.get('trace'):
        S('''s_lshl_b32 s75, s2, 11
        s_lshl_b32 s74, s51, 9
        s_add_u32 s75, s75, s74
        s_add_u32 s75, s75, 0x80000
        v_lshlrev_b32 v12, 2, v1
        buffer_store_dword v254, v12, s[76:79], s75 offen
        buffer_store_dword v255, v12, s[76:79], s75 offen offset:256''')
    if OPT.get('mega'): OPT['mega'].producer(S)
    S('K1_END:')
    S('s_endpgm')
    print('k1 helper: zc', OPT.get('zc_step'), 'pub_step', pub_step, 'att left', sum(wt(x) for x in q3))
    return S

def poll_issue(vr, va):
    return G('s_lshl_b32 s9, s48, 4\nv_mov_b32 v%d, 0' % va) + G('buffer_load_dword v%d, v%d, s[44:47], s9 offen sc1' % (vr, va))
def poll(S, tag, vr=7, va=6):
    S('v_readfirstlane_b32 s11, v%d' % vr)
    S('s_mov_b32 s10, 0')
    S('s_cmp_ge_u32 s11, 16')
    S('s_cbranch_scc1 K1_NOPOLL%s' % tag)
    S("""
    K1_POLL%s:
    s_sleep SLP
    buffer_load_dword v7, v6, s[44:47], s9 offen sc1
    s_waitcnt vmcnt(0)
    v_readfirstlane_b32 s11, v7
    s_add_u32 s10, s10, 1
    s_cmp_ge_u32 s11, 16
    s_cbranch_scc1 K1_NOPOLL%s
    s_cmp_lt_u32 s10, 0x20000
    s_cbranch_scc1 K1_POLL%s
    K1_NOPOLL%s:
    """.replace('SLP', str(OPT.get('slp', 4))).replace('v7', 'v%d' % vr).replace('v6', 'v%d' % va) % (tag, tag, tag, tag))
    S.append(('KEEPQ', 1))

def ln_halo(vHW):
    A = Stream()
    h0 = ST + 4; t = ST + 6
    for k in range(20):
        r = HL + k; tt = t + 2 * (k & 1)
        A('v_lshlrev_b32 v%d, 16, v%d' % (tt, r))
        A('v_and_b32 v%d, 0xffff0000, v%d' % (tt + 1, r))
        if k == 0:
            A('v_add_f32 v%d, v%d, v%d' % (h0, tt, tt + 1))
            A('v_mul_f32 v%d, v%d, v%d' % (h0 + 1, tt, tt))
        else:
            A('v_add_f32 v%d, v%d, v%d' % (h0, h0, tt))
            A('v_fmac_f32 v%d, v%d, v%d' % (h0 + 1, tt, tt))
            A('v_add_f32 v%d, v%d, v%d' % (h0, h0, tt + 1))
        A('v_fmac_f32 v%d, v%d, v%d' % (h0 + 1, tt + 1, tt + 1))
    for m in ('quad_perm:[1,0,3,2]', 'quad_perm:[2,3,0,1]', 'row_half_mirror', 'row_mirror'):
        for r in (h0, h0 + 1):
            A('v_add_f32_dpp v%d, v%d, v%d %s row_mask:0xf bank_mask:0xf' % (r, r, r, m))
    rowstats(A, h0, ST + 6, 's83')
    for t in range(5):
        norm4(A, HL + 4 * t, h0, ST + 6)
        g = Stream()
        if t == 4:
            g('s_mov_b32 exec_lo, 0x00ff00ff')
            g('s_mov_b32 exec_hi, 0x00ff00ff')
        g('ds_write_b128 v%d, %s offset:%d' % (vHW, q4(HL + 4 * t), t * 4096), tok_w=['XH'])
        if t == 4: g('s_mov_b64 exec, -1')
        A.append(list(g))
    return A

def epi_z2():
    E = Stream()
    PK = 60
    def pk(c, b): return PK + b * 20 + 2 * c
    E.append(G("""
    v_and_b32 v10, 15, v1
    v_lshlrev_b32 v11, 3, v10
    s_lshl_b32 s98, s51, 5
    v_add_u32 v10, s98, v10
    v_mul_u32_u24 v10, %d, v10
    v_lshrrev_b32 v12, 4, v1
    v_lshlrev_b32 v12, 3, v12
    s_mov_b32 s98, %d
    v_add3_u32 v10, v10, v12, s98
    """ % (ZP, ZB_OFF)) + (G("""s_cmp_eq_u32 s52, 0
    s_cselect_b32 s98, 256, 0
    v_add_u32 v13, s98, v10
    s_lshl_b32 s98, s52, 5
    v_add_u32 v10, s98, v10""") if OPT.get('nc32') else []))
    def AD(c, b):
        if OPT.get('nc32') and c == 8: return 'v13', 16 * b * ZP
        return 'v10', 16 * b * ZP + 32 * c
    NC = OPT.get('nc', 0)
    order = [(c, b) for b in range(2) for c in range(9)]
    theirs = order[18 - NC:]; order = order[:18 - NC]
    if OPT.get('nc32'):
        NC = OPT['nc32']
        nt = NC // 2
        theirs = [(c, b) for c, b in order if c < nt]; order = [(c, b) for c, b in order if c >= nt]
    for c, b in order:
        E('ds_read_b64 v[%d:%d], %s offset:%d' % ((pk(c, b), pk(c, b) + 1) + AD(c, b)))
    for b in range(2):
        E('v_mov_b32 v%d, 0' % (pk(9, b)))
        E('v_mov_b32 v%d, 0' % (pk(9, b) + 1))
    for k in range(4): E('v_mov_b32 v%d, s82' % (132 + k))
    pend = None
    if OPT.get('ilp8'):
        E0 = E
    subs = []
    for k, (c, b) in enumerate(order):
        if OPT.get('ilp8'):
            E = Stream(); subs.append(E)
        x = 100 + 8 * (k & 1); p = pk(c, b)
        E('v_lshlrev_b32 v%d, 16, v%d' % (x, p))
        E('v_and_b32 v%d, 0xffff0000, v%d' % (x + 1, p))
        E('v_lshlrev_b32 v%d, 16, v%d' % (x + 2, p + 1))
        E('v_and_b32 v%d, 0xffff0000, v%d' % (x + 3, p + 1))
        gelu4(E, x, x + 4)
        E('v_cvt_pk_bf16_f32 v%d, v%d, v%d' % (p, x, x + 1))
        E('v_cvt_pk_bf16_f32 v%d, v%d, v%d' % (p + 1, x + 2, x + 3))
        E('ds_write_b64 %s, v[%d:%d] offset:%d' % (AD(c, b)[0], p, p + 1, AD(c, b)[1]), tok_w=['ZB'])
    if OPT.get('ilp8'):
        E = E0
        for k in range(0, len(subs), 2):
            a, b = subs[k], subs[k + 1] if k + 1 < len(subs) else []
            for i in range(0, len(a), 4):
                E.extend(a[i:i + 4]); E.extend(b[i:i + 4])
    D1 = [116, 120]; D2 = [124, 128]
    if NC:
        E.append(('WAITSTEP', OPT['zc_step'] + 2))
        for c, b in theirs:
            E('ds_read_b64 v[%d:%d], %s offset:%d' % ((pk(c, b), pk(c, b) + 1) + AD(c, b)))
    for c in range(0, 9, 2):
        for b in range(2):
            p = q4(pk(c, b))
            E('v_mfma_f32_16x16x32_bf16 %s, v[132:135], %s, %s' % (q4(D1[b]), p, '0' if c == 0 else q4(D1[b])))
            E('v_mfma_f32_16x16x32_bf16 %s, %s, %s, %s' % (q4(D2[b]), p, p, '0' if c == 0 else q4(D2[b])))
    g = G(setm('vcc', m64(lambda i, g: i & 1)))
    for b in range(2):
        g += G('v_cndmask_b32 v%d, v%d, v%d, vcc' % (D2[b], D2[b], D2[b] + 1))
        g += G('v_cndmask_b32 v%d, v%d, v%d, vcc' % (D2[b] + 2, D2[b] + 2, D2[b] + 3))
    g += G(setm('vcc', m64(lambda i, g: i & 2)))
    for b in range(2):
        g += G('v_cndmask_b32 v%d, v%d, v%d, vcc' % (D1[b] + 1, D2[b], D2[b] + 2))
    g += G("""
    s_lshl_b32 s99, s48, 4
    s_add_u32 s99, s99, s49
    s_lshl_b32 s99, s99, 10
    s_lshl_b32 s98, s51, 8
    s_add_u32 s99, s99, s98
    """) + G(setm('exec', m64(lambda i, g: g == i >> 2)))
    for b in range(2):
        g += G('buffer_store_dwordx2 v[%d:%d], v11, s[40:43], s99 offen offset:%d sc1' % (D1[b], D1[b] + 1, 128 * b), tok_w=['PUB'])
    g += G('s_mov_b64 exec, -1')
    E.append(g)
    return E

NZC = 4
def norm_z2(tiles, regs=(176, 208, 244, 248)):
    S = Stream()
    pl, zf, tb, a0 = regs
    S("""
    v_lshrrev_b32 v%d, 4, v1
    v_lshlrev_b32 v%d, 12, v%d
    v_and_b32 v%d, 15, v1
    v_lshl_add_u32 v%d, v%d, 4, v%d
    s_lshl_b32 s9, s48, 14
    s_lshl_b32 s10, s51, 8
    s_add_u32 s9, s9, s10
    """ % (a0, a0, a0, a0 + 1, a0, a0 + 1, a0))
    for k in range(4):
        S('buffer_load_dwordx4 %s, v%d, s[40:43], s9 offen offset:%d sc1' % (q4(pl + 4 * k), a0, k * 1024))
    S("""
    v_lshrrev_b32 v{z}, 4, v1
    v_lshlrev_b32 v{r}, 6, v{z}
    v_lshlrev_b32 v{z}, 3, v{z}
    v_bfe_u32 v{t}, v1, 2, 2
    v_add_u32 v{z}, v{z}, v{t}
    s_lshl_b32 s9, s51, 5
    v_add_u32 v{z}, s9, v{z}
    v_mul_u32_u24 v{z}, {ZP}, v{z}
    v_and_b32 v{t}, 3, v1
    v_lshl_add_u32 v{z}, v{t}, 3, v{z}
    v_add_u32 v{z}, {ZB}, v{z}
    """.format(z=a0 + 2, r=a0 + 3, t=tb, ZP=ZP, ZB=ZB_OFF))
    S.need('ZB')
    for c in tiles:
        for hh in range(2):
            S('ds_read_b64_tr_b16 v[%d:%d], v%d offset:%d' % (zf + 4 * c + 2 * hh, zf + 4 * c + 2 * hh + 1, a0 + 2, hh * 4 * ZP + 32 * c))
    S("""
    s_lshl_b32 s9, s50, 8
    s_add_u32 s9, s9, {SB}
    v_lshlrev_b32 v{w}, 4, v{w}
    v_add_u32 v{w}, s9, v{w}
    v_add_u32 v{r}, s9, v{r}
    v_lshlrev_b32 v{p}, 4, v1
    v_xor_b32 v{p1}, 64, v{p}
    s_lshl_b32 s12, s49, 6
    s_lshl_b32 s13, s48, 2
    s_add_u32 s12, s12, s13
    s_add_u32 s12, s12, s51
    s_mul_i32 s12, s12, 9216
    s_add_u32 s13, s12, 4096
    s_add_u32 s10, s12, 8192
    s_mov_b32 s11, 0x{inv:x}
    """.format(SB=SB_OFF, w=a0 + 1, r=a0 + 3, p=a0 + 4, p1=a0 + 5, inv=fbits(1.0 / 2304)))
    if OPT.get('ownz'):
        S('''s_lshr_b32 s9, s51, 1
        s_mul_i32 s9, s9, %d
        s_and_b32 s53, s51, 1
        s_mul_i32 s53, s53, 9216
        s_add_u32 s9, s9, s53
        s_add_u32 s9, s9, 16384
        v_add_u32 v%d, s9, v%d
        v_add_u32 v%d, s9, v%d''' % (34816, a0 + 6, a0 + 4, a0 + 7, a0 + 5))
    A = S
    S = Stream()
    for k in range(2):
        for e in range(4): S('v_add_f32 v%d, v%d, v%d' % (pl + 4 * k + e, pl + 4 * k + e, pl + 8 + 4 * k + e))
    for e in range(4): S('v_add_f32 v%d, v%d, v%d' % (pl + e, pl + e, pl + 4 + e))
    for sw in ('v_permlane16_swap_b32', 'v_permlane32_swap_b32'):
        for k in range(4): S('v_mov_b32 v%d, v%d' % (pl + 4 + k, pl + k))
        for k in range(4): S('%s v%d, v%d' % (sw, pl + k, pl + 4 + k))
        for k in range(4): S('v_add_f32 v%d, v%d, v%d' % (pl + k, pl + k, pl + 4 + k))
    for r in (pl, pl + 2): rowstats(S, r, tb, 's11')
    S('ds_write_b128 v%d, %s' % (a0 + 1, q4(pl)), tok_w=['SB'])
    S.need('SB')
    sr = pl + 16
    for k in range(4): S('ds_read_b128 %s, v%d offset:%d' % (q4(sr + 4 * k), a0 + 3, 16 * k))
    for c in tiles:
        for d in range(4):
            r = zf + 4 * c + d
            t = tb + 2 * (d & 1)
            S('v_lshlrev_b32 v%d, 16, v%d' % (t, r))
            S('v_and_b32 v%d, 0xffff0000, v%d' % (t + 1, r))
            S('v_fma_f32 v%d, v%d, v%d, v%d' % (t, t, sr + 4 * d, sr + 4 * d + 1))
            S('v_fma_f32 v%d, v%d, v%d, v%d' % (t + 1, t + 1, sr + 4 * d + 2, sr + 4 * d + 3))
            S('v_cvt_pk_bf16_f32 v%d, v%d, v%d' % (r, t, t + 1))
        S('buffer_store_dwordx4 %s, v%d, s[36:39], s%d offen offset:%d' % (q4(zf + 4 * c), a0 + 5 if c & 1 else a0 + 4, (12, 13, 10)[c >> 2], (c & 3) * 1024) + (' sc1' if OPT.get('wt2') or OPT.get('mega') else ''))
        if OPT.get('dual'): S('buffer_store_dwordx4 %s, v%d, s[36:39], s%d offen offset:%d' % (q4(zf + 4 * c), a0 + 5 if c & 1 else a0 + 4, (12, 13, 10)[c >> 2], (c & 3) * 1024))
        if OPT.get('ownz'): S('ds_write_b128 v%d, %s offset:%d' % (a0 + 7 if c & 1 else a0 + 6, q4(zf + 4 * c), c * 1024), tok_w=['OZ'])
    return A, S
```

```python
import sys
from build import *
HDR = open('parallel_sum__sliding_local_dilated__mixer_gmlp__prompt.s.ref').read().split('; Override launch')[0]
def make(path, stamp=False, k1={}, k2={}, k3={}):
    t1, v1 = gen_k1(stamp=stamp, **k1)
    t2, v2 = gen_k2(stamp=stamp, **k2)
    t3, v3 = gen_k3(stamp=stamp, **k3)
    assemble_file(path, [('k1_kernel', t1, v1, 256, 512, K1_LDS), ('k2_kernel', t2, v2, 256, 512, K2_LDS), ('k3_kernel', t3, v3, 234, 256, K3_LDS)])
    s = open(path).read()
    open(path, 'w').write(HDR + s)
def makef(path, stamp=False, k1={}, k2={}):
    t1, v1 = gen_k1(stamp=stamp, **k1)
    t2, v2 = gen_k2(stamp=stamp, fuse=True, **k2)
    assemble_file(path, [('k1_kernel', t1, v1, 256, 512, K1_LDS), ('k2_kernel', t2, v2, 256, 512, K2_LDS)])
    s = open(path).read()
    open(path, 'w').write(HDR + s)
def makem(path, stamp=False, plain=True, **kw):
    import mega
    t, v = mega.gen_mega(stamp=stamp, **kw)
    t = t.replace("'k1_kernel'", mega.KNAME).replace('k1_kernel', mega.KNAME).replace('k2_kernel', 'K2_TEXT')
    assemble_file(path, [(mega.KNAME, t, v, 256, 512, K1_LDS)])
    s = open(path).read()
    if plain: s = s.replace('; @launch kernel=%s grid' % mega.KNAME, '; @launch grid')
    open(path, 'w').write(HDR + s)
DOC = """; Design (generated by own python scripts, one fused launch, 256 workgroups x 8 waves, one per CU):
"""
if __name__ == '__main__':
    SCH = [['W0', 'W1'], ['W2', 'W3', 'A0'], ['A1', 'W4'], []]
    K2 = dict(prio=1, rot=False, xmap='84', pf=False, k3=dict(early=2, pre=1, sched=SCH))
    B = dict(budget=66, nc=4, pf3=1, pfc=[5, 8, 11, 14, 17, 20], cpf=1)
    B['attgap'] = 21
    M = dict(m32=1, nc=0)
    k3 = dict(K2['k3'], wfirst=True, nw=9)
    B.update(p26=26, nz=5)
    kw = dict(k1opt=B, k3=dict(k3, red3=True), lazy=True, eov=True, ownz=True)
    makem('best.s', **kw)
    makem('full_best.s', stamp=True, **kw)
    s = open('best.s').read()
    i = s.index('; @launch grid')
    open('parallel_sum__sliding_local_dilated__mixer_gmlp__prompt.s', 'w').write(s[:i] + DOC + s[i:])
```

```python
from common import *
import k1_v2 as V2
from k1_v2 import fbits, q4, gelu4, rowstats, dots, norm4, flatten, m64, setm, is_mem, C1, C2, SCL
SLOT = 20480
T1_OFF = 40960; T2_OFF = 81920; XH_OFF = 143360; ZB_OFF = 81920; QB_OFF = 119808; SB_OFF = 161792
K1_LDS = 163840
QP = 240; ZP = 296
XF = 112; ACC = 40; WFR = 16; NRING = 5
NR1 = 6; P1 = NR1 * 2048; P2 = (9 - NR1) * 2048
sBLK = 54
vT = 4; vC2 = 9
OPT = {}
assert all((i * 3277) >> 16 == i // 20 for i in range(1280)) and all((r * 43) >> 8 == r // 6 for r in range(18))
def xf(j, b): r = XF + (j * 2 + b) * 4; return 'v[%d:%d]' % (r, r + 3)
LN1 = 40; LN2 = XF + 16 * NR1; ST = 88
def ln(g, j): return (LN1 + (g * NR1 + j) * 4 if g < 2 else 16 + 4 * j) if j < NR1 else LN2 + (g * (9 - NR1) + j - NR1) * 4
PH = [('Z2', 9216, 4608), ('Q', 3456, 0), ('Z1', 9216, 0)]
vDZ = 16; vDQ = 21
def wt(x):
    if isinstance(x, str): return 1
    if isinstance(x, list): return sum(wt(y) for y in x)
    if x.kind in ('need', 'label'): return 0
    if x.kind in ('trans', 'mfma'): return 2
    if x.kind == 'salu': return 0.5
    return 1

def wdma(n):
    ph, j = divmod(n, 9)
    nm, pitch, add = PH[ph]
    if nm == 'Q' and OPT.get('qpack'): pitch = 288
    P = Stream()
    P('s_mul_i32 s63, s%d, %d' % (sBLK + j, 64 * pitch))
    if add: P('s_add_u32 s63, s63, %d' % add)
    isq = nm == 'Q'
    P('s_add_u32 s63, s63, s%d' % (65 if isq else 64))
    for e in range(5):
        P('s_add_u32 m0, s68, %d' % ((n & 3) * SLOT + e * 4096))
        P('buffer_load_dwordx4 v%d, s[%s], s63 offen%s lds' % ((vDQ if isq else vDZ) + e, '20:23' if isq else '24:27', ' sc1' if isq and OPT.get('qpack') else ''), tok_w=['W%d' % n])
    return P

XROT_OLD = '''    s_lshr_b32 s64, s50, 2
    s_mul_i32 s64, s64, 24
    s_add_u32 s63, s63, s64
    v_lshrrev_b32 v12, 3, v1
    v_and_b32 v13, 7, v1
    v_add_u32 v10, s63, v12
    v_mul_u32_u24 v10, 1152, v10
    v_lshl_add_u32 v10, v13, 4, v10
    v_add_u32 v11, 9216, v10
    v_add_u32 v14, 18432, v10
'''
XROT_NEW = '''    v_lshrrev_b32 v12, 3, v1
    v_and_b32 v13, 7, v1
    v_add_u32 v14, s63, v12
    v_mul_u32_u24 v14, 1152, v14
    v_lshl_add_u32 v14, v13, 4, v14
    s_lshr_b32 s64, s50, 2
    s_mul_i32 s64, s64, 3
    s_add_u32 s64, s64, s49
        s_add_u32 s65, s64, 0
    s_and_b32 s65, s65, 3
    s_mul_i32 s66, s65, 9216
    v_add_u32 v10, s66, v14
    s_mov_b32 s3, s65
    s_add_u32 s65, s64, 1
    s_and_b32 s65, s65, 3
    s_mul_i32 s66, s65, 9216
    v_add_u32 v11, s66, v14
    s_mov_b32 s33, s65
    s_add_u32 s65, s64, 2
    s_and_b32 s65, s65, 3
    s_mul_i32 s66, s65, 9216
    v_add_u32 v14, s66, v14
    s_mov_b32 s34, s65

'''
GSR = (3, 33, 34)
def gaddr(S, g, P, dst):
    S('''s_lshr_b32 s98, s%d, 1
    s_mul_i32 s98, s98, %d
    s_and_b32 s99, s%d, 1
    s_lshl_b32 s99, s99, 7
    s_add_u32 s98, s98, s99
    v_add_u32 v%d, s98, v5''' % (GSR[g], P, GSR[g], dst))
def head(S, stamp, xmap, rot):
    S('''
    s_load_dwordx4 s[4:7], s[0:1], 0
    s_load_dwordx2 s[8:9], s[0:1], 32
    s_load_dwordx4 s[12:15], s[0:1], 72
    s_load_dwordx2 s[10:11], s[0:1], 40
    s_cmp_ge_u32 s2, 256
    s_cbranch_scc1 K1_END
    ''')
    if stamp: stamp_begin(S, 84)
    S('''
    v_lshrrev_b32 v10, 6, v0
    v_and_b32 v1, 63, v0
    v_readfirstlane_b32 s50, v10
    s_and_b32 s63, s2, 7
    s_lshr_b32 s64, s2, 3
    ''')
    if xmap == '84':
        S('''
        s_and_b32 s48, s63, 1
        s_lshl_b32 s48, s48, 3
        s_and_b32 s65, s64, 7
        s_add_u32 s48, s48, s65
        s_lshr_b32 s49, s63, 1
        s_lshl_b32 s49, s49, 2
        s_lshr_b32 s64, s64, 3
        s_add_u32 s49, s49, s64
        s_lshl_b32 s64, s64, 1
        ''')
        if OPT.get('rmode') == 4: S('s_and_b32 s65, s65, 6')
        if OPT.get('rmode') == 2: S('s_and_b32 s65, s65, 4')
        if OPT.get('rmode') == 3: S('s_mul_i32 s65, s65, 3\ns_lshr_b32 s65, s65, 3\ns_mul_i32 s65, s65, 3')
        S('s_add_u32 s53, s64, s65')
    else:
        S('''
        s_lshr_b32 s48, s63, 1
        s_lshl_b32 s48, s48, 2
        s_and_b32 s65, s64, 3
        s_add_u32 s48, s48, s65
        s_and_b32 s49, s63, 1
        s_lshl_b32 s49, s49, 3
        s_lshr_b32 s64, s64, 2
        s_add_u32 s49, s49, s64
        s_lshl_b32 s65, s65, 1
        s_add_u32 s53, s64, s65
        ''')
    if not rot: S('s_mov_b32 s53, 0')
    S('''
    s_sub_u32 s64, s53, 9
    s_cmp_ge_u32 s53, 9
    s_cselect_b32 s%d, s64, s53
    s_and_b32 s51, s50, 3
    s_and_b32 s52, s49, 1
    s_lshl_b32 s63, s48, 7
    s_lshl_b32 s64, s51, 5
    s_add_u32 s63, s63, s64
    XROT
    '''.replace('XROT', XROT_NEW if OPT.get('xrot') else XROT_OLD) % sBLK)
    for j in range(1, 9):
        S('s_add_u32 s%d, s%d, 1' % (sBLK + j, sBLK + j - 1))
        S('s_cmp_eq_u32 s%d, 9' % (sBLK + j))
        S('s_cselect_b32 s%d, 0, s%d' % (sBLK + j, sBLK + j))
    for j in range(9): S('s_lshl_b32 s%d, s%d, 7' % (69 + j, sBLK + j))
    S('s_waitcnt lgkmcnt(0)')
    srd(S, 16, 4, 5, 2048 * 1152)
    S('s_cmp_ge_u32 s50, 4')
    S('s_cbranch_scc1 K1_HELP')

def xloads(S, gs):
    for g in gs:
        for j in range(9):
            S('buffer_load_dwordx4 %s, v%d, s[16:19], s%d offen' % (q4(ln(g, j)), (10, 11, 14)[g], 69 + j))
def common_setup(S):
    srd(S, 28, 14, 15, AP_SZ, AP_OFF)
    srd(S, 36, 14, 15, Z2P_SZ, Z2P_OFF)
    srd(S, 40, 14, 15, FL_OFF + 4 * FL_SZ - ST_OFF, ST_OFF)
    srd(S, 44, 12, 13, 256)
    S('s_mov_b32 s79, 0x%x' % fbits(SCL))
    S('''
    s_mov_b32 s82, 0x3f803f80
    s_mov_b32 s83, 0x%x
    v_xor_b32 v102, v12, v13
    v_and_b32 v103, 3, v1
    v_lshl_add_u32 v102, v103, 4, v102
    v_lshlrev_b32 v102, 4, v102
    v_bfe_u32 v104, v1, 2, 1
    v_lshl_add_u32 v102, v104, 10, v102
    s_mul_i32 s63, s51, %d
    s_add_u32 s63, s63, %d
    v_add_u32 v5, s63, v102              ; transit write address
    v_and_b32 v101, 15, v1
    v_lshrrev_b32 v105, 4, v1
    v_xor_b32 v102, v101, v105
    v_lshl_add_u32 v102, v105, 4, v102
    v_lshlrev_b32 v6, 4, v102            ; plain frag read offset (even)
    v_mul_u32_u24 v105, 2560, v105
    v_bfe_u32 v101, v1, 2, 2
    v_mul_u32_u24 v101, 320, v101
    v_lshlrev_b32 v103, 3, v103
    v_add3_u32 v%d, v105, v101, v103
    ''' % (fbits(1.0 / 576), 2 * P1, T1_OFF, vT))

def goff(k, P): return (k >> 1) * P + (k & 1) * 128
def layernorm(S, ks, mid=None, mid2=None):
    ng = len(ks)
    for g in range(ng):
        st = ST + 2 * g
        regs = [ln(g, j) + d for j in range(9) for d in range(4)]
        S.extend(dots(regs, st, st + 1))
        if OPT.get('ptrace'): stamp_mid(S, 88 + 4 * (g & 1))
        if g == 0 and ng > 1: xloads(S, [2] if OPT.get('x01') else ([1, 2] if OPT.get('x12', 0) else [1]))
        for m in ('quad_perm:[1,0,3,2]', 'quad_perm:[2,3,0,1]', 'row_half_mirror'):
            for r in range(st, st + 2):
                S('v_add_f32_dpp v%d, v%d, v%d %s row_mask:0xf bank_mask:0xf' % (r, r, r, m))
        rowstats(S, st, ST + 6, 's83')
        if g == ng - 1 and mid: S.extend(mid)
        if OPT.get('xrot'): gaddr(S, g, P1, 15)
        for j in range(NR1):
            norm4(S, ln(g, j), st, ST + 6)
            if OPT.get('xrot'): S('ds_write_b128 v15, %s offset:%d' % (q4(ln(g, j)), j * 2048), tok_w=['T'])
            else: S('ds_write_b128 v5, %s offset:%d' % (q4(ln(g, j)), goff(ks[g], P1) + j * 2048), tok_w=['T'])
        if g < ng - 1:
            for j in range(NR1, 9): norm4(S, ln(g, j), st, ST + 6)
            if OPT.get('ptrace'): stamp_mid(S, 90)
        if g == 0 and ng > 2 and not OPT.get('x12', 0) and not OPT.get('x01'): xloads(S, [2])
    if mid2: S.extend(mid2)
    if OPT.get('ptrace'): stamp_mid(S, 94)
    S.need('T')
    S('s_barrier')
    if OPT.get('ptrace'): stamp_mid(S, 96)
def t2_writes(ks):
    A = Stream()
    if OPT.get('xrot'):
        for g in range(len(ks)):
            for j in range(NR1, 9):
                A('ds_write_b128 v%d, %s offset:%d' % (12 + g, q4(ln(g, j)), (j - NR1) * 2048), tok_w=['T2'])
        return A
    for j in range(NR1, 9):
        for g in range(len(ks)):
            A('ds_write_b128 v5, %s offset:%d' % (q4(ln(g, j)), goff(ks[g], P2) + (j - NR1) * 2048), tok_w=['T2'])
    return A
def t2_addr(S):
    S('s_mul_i32 s63, s51, %d' % (2 * (P2 - P1)))
    S('s_add_u32 s63, s63, %d' % (T2_OFF - T1_OFF))
    S('v_add_u32 v5, s63, v5')
    if OPT.get('xrot'):
        for g in range(3): gaddr(S, g, P2, 12 + g)

def emit(F, out):
    ren = {'ATOMIC': 'FLAG', 'POLLISSUE': 'FISSUE', 'POLLCHECK': 'FCHECK'} if OPT.get('flags', 1) else {}
    for x in flatten(out):
        if isinstance(x, str): x = ren.get(x, x)
        m32 = isinstance(x, str) and x.endswith('32')
        if m32: x = x[:-2]
        if isinstance(x, tuple) and x[0] == 'DMA5':
            _, n, txt, off = x
            lab = 'K1_D%d' % n
            F.run(G('s_cmp_eq_u32 s51, 3\ns_cbranch_scc1 %s\ns_add_u32 m0, s68, %d' % (lab, off)))
            F.add(I(txt)); F.vmq.pop()
            F.run(G(lab + ':'))
        elif isinstance(x, tuple) and x[0] == 'KEEPQ':
            if x[1] == 0: keep = [set(q) for q in F.vmq]
            else: F.vmq = keep
        elif x == 'POLLISSUE':
            F.run(G('s_cmp_lg_u32 s51, 0\ns_cbranch_scc1 K1_NOPI'))
            F.run(poll_issue(3, 6)); F.vmq.pop()
            F.run(G('K1_NOPI:'))
        elif x == 'ENTRY1' and OPT.get('mega'):
            F.run(G('''s_lshl_b32 s67, s48, 14
            s_add_u32 s67, s67, %d
            v_and_b32 v37, 15, v1
            v_lshlrev_b32 v37, 10, v37
            v_mov_b32 v6, 0
            v_mov_b32 v36, 1''' % (FL_OFF - ST_OFF)))
        elif x == 'ENTRY2' and OPT.get('mega'):
            pass
        elif x == 'HZERO':
            F.run(G('''s_lshl_b32 s64, s48, 14
            s_lshl_b32 s65, s49, 10
            s_add_u32 s64, s64, s65
            s_add_u32 s64, s64, 0x%x
            s_add_u32 s40, s14, s64
            s_addc_u32 s41, s15, 0
            s_movk_i32 s42, 1024
            s_mov_b32 s43, 0x00020000
            v_lshlrev_b32 v68, 4, v1
            v_mov_b32 v36, 0
            v_mov_b32 v37, 0
            v_mov_b32 v38, 0
            v_mov_b32 v39, 0
            s_cmp_lg_u32 s51, 0
            s_cbranch_scc1 K1_NOHZ''' % FL_OFF))
            F.add(I('buffer_store_dwordx4 v[36:39], v68, s[40:43], 0 offen sc1')); F.vmq.pop()
            F.run(G('K1_NOHZ:'))
        elif x == 'HZERO2':
            F.run(G('''s_lshl_b32 s63, s48, 14
            s_lshl_b32 s66, s49, 10
            s_add_u32 s63, s63, s66
            s_add_u32 s63, s63, 0x%x
            v_lshlrev_b32 v68, 4, v1
            v_mov_b32 v36, 0
            v_mov_b32 v37, 0
            v_mov_b32 v38, 0
            v_mov_b32 v39, 0
            s_cmp_lg_u32 s51, 0
            s_cbranch_scc1 K1_NOHZ''' % (FL_OFF - ST_OFF)))
            F.add(I('buffer_store_dwordx4 v[36:39], v68, s[40:43], s63 offen sc1')); F.vmq.pop()
            F.run(G('K1_NOHZ:'))
        elif x == 'HARRIVE':
            F.run(G('''s_cmp_lg_u32 s51, 0
            s_cbranch_scc1 K1_NOHA
            s_lshl_b32 s63, s48, 4
            v_mov_b32 v36, 1
            s_mov_b64 exec, 1'''))
            F.add(I('buffer_atomic_add v36, v37, s[44:47], s63 offen sc1')); F.vmq.pop()
            F.run(G('s_mov_b64 exec, -1\nK1_NOHA:'))
        elif x == 'QFLAG':
            F.run(G('''s_cmp_lg_u32 s51, 0
            s_cbranch_scc1 K1_NOQF
            s_lshl_b32 s10, s49, FSH
            s_add_u32 s10, s10, s67
            v_lshlrev_b32 v39, 2, v1
            s_mov_b32 exec_hi, 0'''.replace('FSH', '10')))
            F.add(I('buffer_store_dword v36, v39, s[40:43], s10 offen offset:512 sc1')); F.vmq.pop()
            F.run(G('s_mov_b64 exec, -1\nK1_NOQF:'))
        elif x == 'QISSUE':
            F.run(G('''v_and_b32 v48, 15, v1
            v_lshlrev_b32 v48, 14, v48
            s_lshl_b32 s12, s49, 10
            s_add_u32 s12, s12, %d
            buffer_load_dword v49, v48, s[40:43], s12 offen sc1''' % (FL_OFF - ST_OFF + 512)))
        elif x == 'QCHECK':
            F.run(G('v_cmp_ne_u32 vcc, 1, v49\ns_cmp_lg_u32 s51, 0\ns_cbranch_scc1 K1_QOK'))
            keep = [set(q) for q in F.vmq]
            F.run(G('''s_mov_b32 s10, 0
            K1_QPOLL:
            s_cmp_eq_u32 vcc_lo, 0
            s_cbranch_scc1 K1_QOK
            s_sleep 4
            buffer_load_dword v49, v48, s[40:43], s12 offen sc1
            s_add_u32 s10, s10, 1
            s_waitcnt vmcnt(0)
            v_cmp_ne_u32 vcc, 1, v49
            s_cmp_lt_u32 s10, 0x20000
            s_cbranch_scc1 K1_QPOLL
            K1_QOK:'''))
            F.vmq = keep
        elif x == 'CZERO':
            F.run(G('''s_cmp_lg_u32 s51, 0
            s_cbranch_scc1 K1_NOCZ
            s_lshl_b32 s64, s48, 14
            s_lshl_b32 s65, s49, 10
            s_add_u32 s64, s64, s65
            s_add_u32 s64, s64, %d
            v_lshlrev_b32 v12, 3, v1
            v_mov_b32 v14, 0
            v_mov_b32 v15, 0''' % (FL_OFF - ST_OFF)))
            F.add(I('buffer_store_dwordx2 v[14:15], v12, s[40:43], s64 offen sc1')); F.vmq.pop()
            F.run(G('K1_NOCZ:'))
            cz_len = len(F.vmq)
        elif x == 'CARRIVE':
            F.run(G('''s_cmp_lg_u32 s51, 0
            s_cbranch_scc1 K1_NOCA
            s_lshl_b32 s64, s48, 4
            v_mov_b32 v38, 0
            v_mov_b32 v39, 1
            s_mov_b64 exec, 1'''.replace('v38', 'v14' if m32 else 'v38').replace('v39', 'v15' if m32 else 'v39')))
            keep = [set(q) for q in F.vmq]
            F.run(G('s_waitcnt vmcnt(%d)\nbuffer_atomic_add v%d, v%d, s[44:47], s64 offen sc1' % ((len(F.vmq) - cz_len,) + ((15, 14) if m32 else (39, 38)))))
            F.vmq = keep
            F.run(G('s_mov_b64 exec, -1\nK1_NOCA:'))
        elif x == 'FLAG' and OPT.get('mega'):
            F.run(G('''s_cmp_lg_u32 s51, 0
            s_cbranch_scc1 K1_NOAT
            s_lshl_b32 s10, s49, 10
            s_add_u32 s10, s10, s67
            v_lshlrev_b32 v39, 2, v1
            s_mov_b32 exec_hi, 0'''))
            F.add(I('buffer_store_dword v36, v39, s[40:43], s10 offen sc1')); F.vmq.pop()
            F.run(G('s_mov_b64 exec, -1\nK1_NOAT:'))
        elif x == 'GATE1' and OPT.get('mega'):
            F.run(G('v_and_b32 v39, 15, v1\nv_lshlrev_b32 v39, 4, v39\nbuffer_load_dword v38, v39, s[44:47], 0 offen sc1'))
        elif x == 'GATE2' and OPT.get('mega'):
            F.run(G('v_cmp_gt_u32 vcc, 16, v38\ns_cmp_lg_u32 s51, 0\ns_cbranch_scc1 K1_GOK'))
            keep = [set(q) for q in F.vmq]
            F.run(G('''s_mov_b32 s10, 0
            K1_GPOLL:
            s_cmp_eq_u32 vcc_lo, 0
            s_cbranch_scc1 K1_GOK
            s_sleep 16
            buffer_load_dword v38, v39, s[44:47], 0 offen sc1
            s_add_u32 s10, s10, 1
            s_waitcnt vmcnt(0)
            v_cmp_gt_u32 vcc, 16, v38
            s_cmp_lt_u32 s10, 0x10000
            s_cbranch_scc1 K1_GPOLL
            K1_GOK:'''))
            F.vmq = keep
        elif isinstance(x, tuple) and x[0] == 'RESETQ':
            F.vmq = keepq; F.lgq = keepl
        elif isinstance(x, tuple) and x[0] == 'SAVEQ':
            keepq = [set(q) for q in F.vmq]; keepl = [(set(a), b) for a, b in F.lgq]
        elif x == 'ENTRY1':
            F.run(G('''s_lshl_b32 s67, s48, 8
            s_add_u32 s67, s67, %d
            v_lshlrev_b32 v37, 2, v1
            v_mov_b32 v6, 0
            buffer_load_dword v36, v37, s[40:43], s67 offen sc1''' % (FL_OFF - ST_OFF)))
        elif x == 'ENTRY2':
            F.run(G('''v_add_u32 v36, 1, v36
            v_mov_b32 v7, 1
            s_lshl_b32 s9, s48, 4
            s_cmp_lg_u32 s51, 0
            s_cbranch_scc1 K1_NOENT
            s_mov_b64 exec, 1'''))
            F.add(I('buffer_atomic_add v7, v6, s[44:47], s9 offen sc1')); F.vmq.pop()
            F.run(G('s_mov_b64 exec, -1\nK1_NOENT:'))
        elif x == 'GATE1':
            F.run(G('buffer_load_dword v38, v6, s[44:47], s9 offen sc1'))
        elif x == 'GATE2':
            F.run(G('v_mov_b32 v39, v38\ns_cmp_lg_u32 s51, 0\ns_cbranch_scc1 K1_NOPOLLG'))
            keep = [set(q) for q in F.vmq]
            P = Stream(); poll(P, 'G', 38, 6)
            F.run([y for y in P if not isinstance(y, tuple)]); F.vmq = keep
        elif x == 'FLAG':
            F.run(G('''s_cmp_lg_u32 s51, 0
            s_cbranch_scc1 K1_NOAT
            s_lshl_b64 exec, 1, s49'''))
            F.add(I('buffer_store_dword v36, v37, s[40:43], s67 offen sc1')); F.vmq.pop()
            F.run(G('s_mov_b64 exec, -1\nK1_NOAT:'))
        elif x == 'FISSUE':
            F.run(G('buffer_load_dword v3, v37, s[40:43], s67 offen sc1'))
        elif x == 'FCHECK':
            F.run(G('v_mov_b32 v39, v3\ns_cmp_lg_u32 s51, 0\ns_cbranch_scc1 K1_FOK'))
            keep = [set(q) for q in F.vmq]
            F.run(G('''s_mov_b32 s10, 0
            K1_FPOLL:
            v_cmp_ne_u32 vcc, v3, v36
            s_and_b32 s11, vcc_lo, 0xffff
            s_cbranch_scc0 K1_FOK
            s_sleep %d
            buffer_load_dword v3, v37, s[40:43], s67 offen sc1
            s_add_u32 s10, s10, 1
            s_cmp_lt_u32 s10, 0x20000
            s_waitcnt vmcnt(0)
            s_cbranch_scc1 K1_FPOLL
            K1_FOK:''' % OPT.get('slp', 4)))
            F.vmq = keep
        elif x == 'POLLCHECK':
            P = Stream()
            P('s_cmp_lg_u32 s51, 0\ns_cbranch_scc1 K1_NOPOLLH')
            F.run(P); keep = [set(q) for q in F.vmq]
            P = Stream(); P('s_waitcnt vmcnt(0)'); poll(P, 'H', 3, 6)
            F.run([y for y in P if not isinstance(y, tuple)]); F.vmq = keep
        elif x == 'ZERO':
            Z = Stream()
            Z('s_or_b32 s12, s2, s51\ns_cmp_lg_u32 s12, 0\ns_cbranch_scc1 K1_NOZ')
            srd(Z, 4, 14, 15, CN_SZ, CN_OFF)
            Z('v_lshlrev_b32 v33, 6, v1\nv_mov_b32 v32, 0')
            F.run(Z)
            F.add(I('buffer_store_dword v32, v33, s[4:7], 0 offen')); F.vmq.pop()
            F.run(G('K1_NOZ:'))
        elif x == 'ATOMIC':
            F.run(G('''s_cmp_lg_u32 s51, 0
            s_cbranch_scc1 K1_NOAT
            v_mov_b32 v7, 1
            s_mov_b64 exec, 1'''))
            F.add(I('buffer_atomic_add v7, v6, s[44:47], s9 offen sc1')); F.vmq.pop()
            F.run(G('s_mov_b64 exec, -1\nK1_NOAT:'))
        else:
            F.add(x)

def table_text():
    out = ['.p2align 8', 'K1_TAB:']
    for rg in range(4):
        vals = []
        for lane in range(64):
            v = []
            zq = []
            for e in range(5):
                i = 64 * (rg + 4 * e) + lane
                row, p = divmod(i, 20)
                sh = 2 * ((row >> 3) & 1)
                v.append(row * 9216 + (p ^ (0 if OPT.get('m32') else sh)) * 16)
                pp = p - sh
                if OPT.get('qpack'): zq.append(row * 288 + pp * 16 if 0 <= pp < 18 else 0x7f000000)
                else: zq.append(row * 3456 + (1152, 2304, 0)[pp // 6] + (pp % 6) * 16 if 0 <= pp < 18 else 0x7f000000)
            hi = 4 * rg + (lane >> 4); g = lane & 3
            v += zq + [XH_OFF + ((lane >> 2) & 3) * 1024 + (g * 16 + (hi ^ g)) * 16, (hi * 1152 + (lane & 7) * 16)]
            for e in range(3):
                i = 162 * rg + 64 * e + lane
                row, pp = divmod(i, 18)
                v.append(row * 3456 + (1152, 2304, 0)[pp // 6] + (pp % 6) * 16 if 64 * e + lane < 162 else 0x7f000000)
            v.append(0)
            vals.append(v)
        for q in range(4):
            for l0 in range(0, 64, 4):
                out.append('.long ' + ','.join(str(x) for l in range(l0, l0 + 4) for x in vals[l][4 * q:4 * q + 4]))
    return '\n'.join(out) + '\n'

def gen_k1(stamp=False, xmap='84', rot=True, **opt):
    OPT.clear(); OPT.update(opt); V2.OPT.clear()
    global stamp_mid
    import common
    if OPT.get('ptrace'):
        seen = {}
        def sm(S, r):
            k = (id(S), r)
            if r == 88 and k in seen: r = 70
            k = (id(S), r)
            if k in seen: return
            seen[k] = 1
            if r == 70: common.stamp_mid(S, 66); return
            common.stamp_mid(S, r)
        stamp_mid = sm
    else:
        stamp_mid = common.stamp_mid
    F = Finisher()
    S = Stream()
    head(S, stamp, xmap, rot)
    F.run(S)
    txt = F.text()
    zzq = OPT.get('zzq')
    PH[1:] = [('Z1', 9216, 0), ('Q', 3456, 0)] if zzq else [('Q', 3456, 0), ('Z1', 9216, 0)]
    V2.QB_OFF = QB_OFF; V2.VOFF = 72; V2.QOFF = 144
    comp = compute2 if zzq else compute
    if OPT.get('m32'):
        import k1c32
        comp = k1c32.compute32
    for role in (comp, helper):
        G2 = Finisher()
        G2.vmq = [set(x) for x in F.vmq]; G2.lgq = [(set(a), b) for a, b in F.lgq]; G2.hist = list(F.hist)
        emit(G2, role(stamp))
        if role is not helper: OPT['cons_state'] = ([set(x) for x in G2.vmq], [(set(a), b) for a, b in G2.lgq])
        txt += G2.text()
    return txt, 256

def pace(items, dl=8, dm=4):
    flat = []
    for x in items:
        if isinstance(x, list) and not any('exec' in y.writes or 'vcc' in y.writes for y in x): flat.extend(x)
        else: flat.append(x)
    out = []; ready = {}
    k = 0
    while k < len(flat):
        x = flat[k]
        grp = list(x) if isinstance(x, list) else [x]
        k += 1
        while not isinstance(x, list) and x.kind == 'salu' and k < len(flat) and not isinstance(flat[k], list):
            x = flat[k]; grp.append(x); k += 1
        need = 0
        for y in grp:
            for r in y.reads | y.writes | y.tok_r:
                t, kind = ready.get(r, (0, ''))
                if kind == 'valu' and not (y.dpp or y.op.startswith('v_permlane') or y.kind in ('mfma', 'ds', 'vmem')): continue
                need = max(need, t)
        while len(out) < need: out.append(None)
        out.append(grp)
        for y in grp:
            d = {'ds': dl, 'mfma': dm, 'trans': 0, 'valu': 1}.get(y.kind, 0)
            for r in y.writes | y.tok_w: ready[r] = (len(out) + d, y.kind)
    return out

def pf_setup(S):
    S("""s_load_dwordx2 s[20:21], s[0:1], 56
    s_load_dwordx2 s[24:25], s[0:1], 16
    s_mov_b32 s4, s10
    s_or_b32 s5, s11, 0x800000
    s_mov_b32 s6, %d
    s_mov_b32 s7, 0x00020000
    s_mov_b32 s22, %d
    s_mov_b32 s23, 0x00020000
    s_mov_b32 s26, %d
    s_mov_b32 s27, 0x00020000
    s_lshl_b32 s8, s2, 15
    s_lshl_b32 s9, s51, WSH
    s_add_u32 s8, s8, s9
    s_mul_i32 s9, s2, 10368
    s_mul_i32 s10, s51, 2688
    s_add_u32 s9, s9, s10
    s_min_u32 s9, s9, 2651520
    s_mul_i32 s10, s2, 2688
    s_mul_i32 s11, s51, 768
    s_add_u32 s10, s10, s11
    s_min_u32 s10, s10, 662784
    s_mov_b32 m0, %d
    s_waitcnt lgkmcnt(0)
    s_or_b32 s21, s21, 0x800000
    s_or_b32 s25, s25, 0x800000""".replace("WSH", "13" if OPT.get("pfs") else "11") % (2048 * 32, 2304 * 9, 576 * 9, SB_OFF))
def ws_touch(k):
    g = Stream()
    if k == 0:
        g("""s_add_u32 s16, s14, 0x%x
        s_addc_u32 s17, s15, 0
        s_or_b32 s17, s17, 0x800000
        s_mov_b32 s18, %d
        s_mov_b32 s19, 0x00020000
        s_lshl_b32 s64, s49, 6
        s_lshl_b32 s65, s48, 2
        s_add_u32 s64, s64, s65
        s_add_u32 s64, s64, s51
        s_mul_i32 s64, s64, 9216
        s_lshl_b32 s65, s48, 3
        s_lshl_b32 s66, s51, 1
        s_add_u32 s65, s65, s66
        s_mul_i32 s65, s65, 92160
        s_mul_i32 s66, s49, 4608
        s_add_u32 s65, s65, s66
        s_add_u32 s65, s65, %d
        buffer_load_dword v1, s[16:19], s64 idxen lds""" % (Z2P_OFF, 64, AP_OFF - Z2P_OFF + 18 * 1024))
    elif k == 1:
        g("""s_add_u32 s64, s64, 8192
        s_mov_b64 exec, 0xff
        buffer_load_dword v1, s[16:19], s64 idxen lds
        s_mov_b64 exec, -1""")
    else:
        g("""s_mov_b32 exec_hi, 15
        buffer_load_dword v1, s[16:19], s65 idxen lds
        s_mov_b32 exec_hi, -1
        s_add_u32 s65, s65, 92160""")
    return list(g)
def w_touch(kind, j):
    g = Stream()
    if kind == 'Q':
        g("""s_load_dwordx2 s[16:17], s[0:1], 8
        s_mov_b32 s18, 64
        s_mov_b32 s19, 0x00020000
        s_mul_i32 s64, s%d, %d
        s_mul_i32 s65, s49, 72
        s_and_b32 s65, s65, -32
        s_add_u32 s64, s64, s65
        s_min_u32 s65, s51, 2
        s_mul_i32 s65, s65, 1152
        s_add_u32 s64, s64, s65
        s_waitcnt lgkmcnt(0)
        s_or_b32 s17, s17, 0x%x
        buffer_load_dword v1, s[16:19], s64 idxen lds
        buffer_load_dword v1, s[16:19], s64 idxen offset:92 lds""" % (sBLK + j, 64 * 3456, 3456 << 16))
    else:
        g("""s_load_dwordx2 s[16:17], s[0:1], 32
        s_mov_b32 s18, 64
        s_mov_b32 s19, 0x00020000
        s_mul_i32 s64, s%d, %d
        s_mul_i32 s65, s49, 288
        s_and_b32 s65, s65, -64
        s_add_u32 s64, s64, s65
        s_lshl_b32 s65, s51, 7
        s_min_u32 s65, s65, 316
        s_add_u32 s64, s64, s65
        s_waitcnt lgkmcnt(0)
        s_or_b32 s17, s17, 0x%x
        buffer_load_dword v1, s[16:19], s64 idxen lds""" % (sBLK + j, 64 * 9216, 9216 << 16))
    return list(g)
def pf_fine(k, nsp):
    if OPT.get('pfbig'):
        if k < nsp:
            nl = 64 // nsp
            pre = {64: 's_nop 0', 32: 's_mov_b32 exec_hi, 0'}[nl]
            return G(pre + """
            buffer_load_dword v1, s[4:7], s8 idxen lds
            s_mov_b64 exec, -1
            s_add_u32 s8, s8, %d""" % (nl * 128))
        return pf_touch(4) + pf_touch(5)
    if k < nsp:
        nl = 64 // nsp
        return G("""s_mov_b64 exec, 0x%x
        buffer_load_dword v1, s[4:7], s8 idxen lds
        s_mov_b64 exec, -1
        s_add_u32 s8, s8, %d""" % ((1 << nl) - 1, nl * 128))
    if k < nsp + 3:
        return G("""s_mov_b64 exec, 0x7f
        buffer_load_dword v1, s[20:23], s9 idxen lds
        s_mov_b64 exec, -1
        s_add_u32 s9, s9, 896""")
    return pf_touch(5)
def pf_touch(k):
    if k < 4:
        return G("""s_mov_b64 exec, 0xffff
        buffer_load_dword v1, s[4:7], s8 idxen lds
        s_mov_b64 exec, -1
        s_add_u32 s8, s8, 8192""")
    return G("""s_mov_b64 exec, 0x%x
    buffer_load_dword v1, s[%s], s%d idxen lds
    s_mov_b64 exec, -1""" % ((0x1fffff, '20:23', 9) if k == 4 else (0x3f, '24:27', 10)))

def compute(stamp):
    S = Stream()
    vXe = 6; vXo = 7
    xloads(S, [0])
    common_setup(S)
    if OPT.get('x01') == 1: xloads(S, [1])
    if not OPT.get('mega'): srd(S, 32, 14, 15, Z1P_SZ, Z1P_OFF)
    if OPT.get('pfc'): pf_setup(S)
    S('''
    s_mul_i32 s63, s51, %d
    s_add_u32 s63, s63, %d
    v_add_u32 v6, s63, v6
    v_xor_b32 v7, 64, v6
    ''' % (2 * P1, T1_OFF))
    if OPT.get('x01') == 2: xloads(S, [1])
    if stamp: stamp_mid(S, 86)
    layernorm(S, [0, 1, 2], mid=sum([pf_touch(0) for _ in range(OPT.get('pfp', 0))], []))
    for q in range(2 * NR1):
        for b in range(2):
            S('ds_read_b128 %s, v%d offset:%d' % (xf(q, b), vXo if q & 1 else vXe, b * P1 + q * 1024), tok_w=['TR'])
    for j in range(NR1, 9): norm4(S, ln(2, j), ST + 4, ST + 6)
    t2_addr(S)
    S('s_mul_i32 s63, s51, %d' % (2 * (P2 - P1)))
    S('s_add_u32 s63, s63, %d' % (T2_OFF - T1_OFF))
    S.need('TR')
    S('s_barrier')
    S('v_add_u32 v6, s63, v6')
    S('v_add_u32 v7, s63, v7')
    S('s_setprio %d' % OPT.get('prio', 2))
    if stamp: stamp_mid(S, 88)
    ntile = [9, 7, 9]
    def acc(c, b): return ACC + (c * 2 + b) * 4
    hA = ACC + 56; hX = ACC + 64; hW = ACC + 68
    vTa = 2; vTb = 3; vq2 = 6; vq4 = 8; vQb = 5; vXH = 9; vqh = 7; vTs = 4
    frs = [(n, ks, c) for n in range(27) for ks in range(2) for c in range(ntile[n // 9])]
    TM = OPT.get('tm')
    if TM:
        def order(n):
            nt = ntile[n // 9]
            if n == 18: return [(ks, c) for c in range(nt) for ks in range(2)]
            return [(ks, c) for ks in range(2) for c in range(nt)]
        frs = [(n, ks, c) for n in range(27) for ks, c in order(n)]
    bias = {}
    extra_tok = {1: ['T2'], 9: ['TR2'], 10: ['HB'], 18: ['XHR'], (20 if TM else 19): ['QB']}
    QIMM = {0: 0, 1: 32, 3: 120, 5: 160 + 48, 6: 192 + 48}
    def zaddr(mode):
        g = Stream()
        g("""v_bfe_u32 v15, v1, 4, 1
        v_lshlrev_b32 v15, 5, v15""")
        if mode == 0:
            g("""s_cmp_eq_u32 s52, 0
            s_cselect_b32 s98, 1, -1
            s_lshl_b32 s99, s52, 5
            v_mul_lo_u32 v15, v15, s98
            v_add3_u32 v%d, v%d, v15, s99
            v_sub_u32 v%d, v%d, v15
            v_add_u32 v%d, s99, v%d""" % (vTa, vT, vTb, vT, vTb, vTb))
        else:
            g("""s_lshl_b32 s99, s52, 6
            v_add3_u32 v%d, v%d, v15, s99
            v_sub_u32 v%d, v%d, v15
            v_add_u32 v%d, 256, v%d
            v_add_u32 v15, 32, v%d
            s_cmp_eq_u32 s52, 0
            s_cselect_b64 vcc, -1, 0
            v_cndmask_b32 v%d, v15, v%d, vcc
            v_add_u32 v%d, s99, v%d
            v_add_u32 v%d, %d, v%d
            v_add_u32 v%d, %d, v%d
            v_add_u32 v%d, %d, v%d""" % (vTa, vT, vTb, vT, vTs, vTa, vTb, vTs, vTs, vTb, vTb, vTa, 2 * SLOT, vTa, vTb, 2 * SLOT, vTb, vTs, 2 * SLOT, vTs))
        return g
    def qaddr():
        g = Stream()
        g("""v_bfe_u32 v15, v1, 4, 1
        v_lshlrev_b32 v15, 5, v15
        s_mul_i32 s98, s49, 72
        s_and_b32 s98, s98, 31
        v_add3_u32 v{qb}, v{T}, v15, s98
        v_and_b32 v15, 3, v1
        v_cmp_le_u32 vcc, 2, v15
        v_cndmask_b32 v14, 0, 24, vcc
        v_add_u32 v14, 152, v14
        v_add_u32 v{q4}, v{qb}, v14
        v_cmp_le_u32 vcc, 1, v15
        v_cndmask_b32 v14, 0, 24, vcc
        v_add_u32 v14, 64, v14
        v_add_u32 v{q2}, v{qb}, v14
        s_lshl_b32 s69, s51, 5
        s_cmp_eq_u32 s51, 3
        s_cselect_b32 s99, 24, 0
        s_add_u32 s99, s99, s69
        v_add_u32 v{qh}, s99, v{qb}
        s_cmp_eq_u32 s51, 2
        s_cselect_b64 vcc, -1, 0
        v_cndmask_b32 v{qh}, v{qh}, v{q2}, vcc
        v_and_b32 v14, 15, v1
        v_lshrrev_b32 v15, 4, v1
        v_xor_b32 v14, v14, v15
        v_lshl_add_u32 v14, v15, 4, v14
        v_lshlrev_b32 v14, 4, v14
        v_add_u32 v{xh}, {XH}, v14""".format(qb=vQb, T=vT, q4=vq4, q2=vq2, qh=vqh, xh=vXH, XH=XH_OFF))
        return g
    def toggle(g, ar, n):
        want = (n & 3) >> 1
        if bias.get(ar, 0) != want:
            g('v_add_u32 v%d, %d, v%d' % (ar, 2 * SLOT if want else -2 * SLOT, ar))
            bias[ar] = want
    def halo_read(q):
        g = Stream()
        n = 9 + q // 2
        g('ds_read_b128 %s, v%d offset:%d' % (q4(hX), vXH, q * 1024), tok_w=['XHR'])
        toggle(g, vqh, n)
        for hh in range(2):
            g('ds_read_b64_tr_b16 v[%d:%d], v%d offset:%d' % (hW + 2 * hh, hW + 2 * hh + 1, vqh, (n & 1) * SLOT + (q & 1) * 10240 + hh * 1280))
        return g
    def read(f):
        n, ks, c = frs[f]
        ph = n // 9
        g = Stream()
        if ks == 0 and c == 0:
            if n > 0:
                if n in extra_tok: g.need(*extra_tok[n])
                if n > 10: g.need('ZCdone')
                g('s_barrier')
            if n == 0: g.extend(zaddr(0))
            if n == 18:
                for r in (vTa, vTb, vTs): bias[r] = 1
        if ph == 0: ar, coff = (vTb if c & 1 else vTa), 32 * c
        elif ph == 1: ar, coff = (vq2, 0) if c == 2 else ((vq4, 0) if c == 4 else (vQb, QIMM[c]))
        else: ar, coff = ((vTb if c & 1 else vTa), 32 * c) if c < 8 else (vTs, 0)
        toggle(g, ar, n)
        r = WFR + (f % NRING) * 4
        for hh in range(2):
            if OPT.get('halfread') and hh == 1:
                g('s_nop 0'); continue
            g('ds_read_b64_tr_b16 v[%d:%d], v%d offset:%d' % (r + 2 * hh, r + 2 * hh + 1, ar, (n & 1) * SLOT + ks * 10240 + hh * 1280 + coff))
        return g
    D = NRING - 1
    for f in range(D): S.extend(read(f))
    def tmpr(ph, c, b):
        pairs = [12, 14, 2] if ph == 0 else [12, 14, 6, 8]
        return pairs[(2 * c + b) % len(pairs)]
    def cvt(ph, c, b):
        a = acc(c, b); t = tmpr(ph, c, b)
        return G('v_cvt_pk_bf16_f32 v%d, v%d, v%d\nv_cvt_pk_bf16_f32 v%d, v%d, v%d' % (t, a, a + 1, t + 1, a + 2, a + 3))
    def cvti(a):
        return G('v_cvt_pk_bf16_f32 v%d, v%d, v%d\nv_cvt_pk_bf16_f32 v%d, v%d, v%d' % (a, a, a + 1, a + 1, a + 2, a + 3))
    def dw(ph, c, b, src=None):
        t = tmpr(ph, c, b) if src is None else src
        if OPT.get('nodw'): return []
        if ph == 0:
            return G('ds_write_b64 v10, v[%d:%d] offset:%d' % (t, t + 1, 16 * b * ZP + 32 * c), tok_w=['HB'])
        return G('ds_write_b64 v11, v[%d:%d] offset:%d' % (t, t + 1, (16 + 16 * b) * QP + 32 * c), tok_w=['QB'])
    x2 = Stream()
    for q in range(2 * NR1, 18):
        for b in range(2):
            x2('ds_read_b128 %s, v%d offset:%d' % (xf(q, b), vXo if q & 1 else vXe, b * P2 + (q - 2 * NR1) * 1024), tok_w=['TR2'])
    t2 = t2_writes([0, 1, 2])
    addr = G('''
    v_and_b32 v10, 15, v1
    s_lshl_b32 s98, s51, 5
    v_add_u32 v10, s98, v10
    v_mul_u32_u24 v11, %d, v10
    v_mul_u32_u24 v10, %d, v10
    v_lshrrev_b32 v12, 4, v1
    v_lshlrev_b32 v12, 3, v12
    s_mov_b32 s98, %d
    v_add3_u32 v10, v10, v12, s98
    s_mov_b32 s98, %d
    v_add3_u32 v11, v11, v12, s98
    ''' % (QP, ZP, ZB_OFF, QB_OFF))
    hw = G('s_mul_i32 s98, s51, %d\nv_subrev_u32 v5, s98, v11\nv_add_u32 v38, s69, v5' % (32 * QP))
    NC = OPT.get('nc', 0)
    share = []
    for k in range(NC):
        c = 9 - NC + k
        g = Stream()
        off = 16 * ZP + 32 * c
        g('ds_read_b64 v[12:13], v10 offset:%d' % off)
        for _ in range(OPT.get('rgap', 6)): g.append(None)
        g("""v_and_b32 v15, 0xffff0000, v13
        v_lshlrev_b32 v14, 16, v13
        v_and_b32 v13, 0xffff0000, v12
        v_lshlrev_b32 v12, 16, v12""")
        gelu4(g, 12, 36, c2=0)
        g('v_cvt_pk_bf16_f32 v36, v12, v13')
        g('v_cvt_pk_bf16_f32 v37, v14, v15')
        g('ds_write_b64 v10, v[36:37] offset:%d' % off, tok_w=['ZCdone'] if k == NC - 1 else [])
        share.append(list(g))
    light = [[3, list(addr) + list(qaddr()) + G('s_mov_b32 s78, 0x%x\nv_mov_b32 v0, 0x%x' % (fbits(C1), fbits(C2)))], [10, list(zaddr(1))]]
    cur = []
    zc_step = [None]
    n2a, n2b = norm_z2(range(NZC), (152, 168 + 36 + 4 - 64, 160 + 48, 210) if False else ((112, 144, 160, 2) if OPT.get('mega') else (176, 208, 244, 248)))
    if OPT.get('p26'): n2a, n2b = norm_z2(range(OPT.get('nz', NZC)), (112, 144, 212, 204))
    att = []
    if OPT.get('attgap'):
        V2.S1 = XF; V2.QB_OFF = QB_OFF; V2.VOFF = 72; V2.QOFF = 144
        att = pace(list(V2.attention(0)) + (list(V2.attention(1)) if OPT.get('attboth') else []))
        print('att gaps', len(att))
        if OPT.get('n2gap'):
            n2a, n2b = norm_z2(range(NZC), (120, 152, 204, 208))
            cut = max(i for i, x in enumerate(n2b) if x.kind == 'ds' and x.op == 'ds_read_b128') + 1
            ld = pace(list(n2a), dl=6)
            rest = pace([x for x in n2b[:cut]], dl=6)
            att = att + ld + [None] * OPT['n2gap'] + rest
            n2a = []; n2b = n2b[cut:]
    for f, (n, ks, c) in enumerate(frs):
        ph, j = divmod(n, 9)
        q = 2 * j + ks
        r = WFR + (f % NRING) * 4
        if stamp and q == 0 and c == 0 and ph > 0 and not OPT.get('trace'): stamp_mid(S, 88 + 2 * ph)
        hand = (q == 0 and ph > 0)
        if hand and c == 0:
            if ph == 2: S.extend(hw)
            S.extend(cvt(ph - 1, 0, 0))
        rd = read(f + D) if f + D < len(frs) else []
        if f % 2 == 0 and f + 1 < len(frs) and not OPT.get('allwait'):
            r1 = WFR + ((f + 1) % NRING) * 4
            S.need(*['v%d' % k for k in range(r1, r1 + 4)])
        for b in range(2):
            a = acc(c, b)
            S('v_mfma_f32_16x16x32_bf16 %s, %s, %s, %s' % (q4(a), q4(r), xf(q, b), '0' if q == 0 else q4(a)))
            S.extend(rd[:-1] if b == 0 else rd[-1:])
            if TM and n == 18:
                if c < 7:
                    if ks == 0 and b == 0: S.extend(cvt(1, c, 1))
                    if ks == 0 and b == 1: S.extend(dw(1, c, 0))
                    if ks == 1 and b == 0: S.extend(dw(1, c, 1))
                    if ks == 1 and b == 1 and c < 6: S.extend(cvt(1, c + 1, 0))
                if c == 2 and ks == 0: S.extend(cvti(acc(7, b)))
                if c == 3 and ks == 1: S.extend(G('ds_write_b64 v%d, v[%d:%d] offset:%d' % (5 if b else 38, hA + 4 * b, hA + 4 * b + 1, 128 * b), tok_w=['QB']))
            elif hand and c < 7:
                S.extend(dw(ph - 1, c, b))
                if ph == 1:
                    if c in (1, 2): S.extend(dw(0, 6 + c, b, acc(6 + c, b)))
                    if c == 2 and b == 1: S.extend(halo_read(0))
                else:
                    if c == 1: S.extend(G('ds_write_b64 v%d, v[%d:%d] offset:%d' % (5 if b else 38, hA + 4 * b, hA + 4 * b + 1, 128 * b), tok_w=['QB']))
                if 2 * c + b + 1 < 14: S.extend(cvt(ph - 1, c + b, 1 - b))
                if c == 0 or (c == 1 and ph == 1): S.extend(cvti(acc(7 + c, b)))
            if OPT.get('pfs'):
                if (n, ks) in OPT['pfs'] and c == 3 and b == 0: S.extend(pf_fine(OPT['pfs'].index((n, ks)), len(OPT['pfs']) - (1 if OPT.get('pfbig') else 4)))
            elif OPT.get('pfc') and n in OPT['pfc'] and ks == OPT.get('pfks', 1) and c == 0 and b == 0: S.extend(pf_touch(OPT['pfc'].index(n)))
            if OPT.get('mega') and not OPT.get('qpack') and ks == 0 and c == 2 and b == 0 and n in (1, OPT.get('arr', 8)): S.append('CZERO' if n == 1 else 'CARRIVE')
            if OPT.get('wtch') and n in OPT['wtch'] and ks == 0 and c == 5 and b == 0: S.extend(w_touch(*OPT['wtch'][n]))
            if OPT.get('wst') and n in OPT['wst'] and ks == 1 and c == 3 and b == 0: S.extend(ws_touch(OPT['wst'].index(n)))
            if OPT.get('p26') and not OPT.get('n2gap') and n == OPT['p26'] and ks == 0 and c == 1 and b == 0:
                assert not att
                S.extend(n2a[:11]); n2a = n2a[11:]
            if n == 0 and t2 and b == 1: S.append(t2.pop(0))
            if n in (1, 2) and x2 and b == 1 and (n == 2 or ks == 1 or c > 0): S.append(x2.pop(0))
            gaps_left = sum(2 for ff in range(f, len(frs)) if frs[ff][0] < 18) - 12
            if not cur and share and not (light and n >= light[0][0]) and n >= 10 and (n >= 19 or gaps_left > len(share[0])) and not hand:
                cur.extend(share.pop(0))
            if cur:
                x = cur.pop(0)
                if x is not None: S.append(x)
                if not cur and not share: zc_step[0] = n
            elif att and n >= OPT['attgap']:
                x = att.pop(0)
                if x is not None: S.extend(x)
            elif light and n >= light[0][0]:
                x = light[0][1].pop(0); S.append(x)
                while x.kind == 'salu' and light[0][1]:
                    x = light[0][1].pop(0); S.append(x)
                if not light[0][1]: light.pop(0)
        if ph == 1 and c == 4:
            S('v_mfma_f32_16x16x32_bf16 %s, %s, %s, %s' % (q4(hA + 4), q4(r), q4(hX), '0' if q == 0 else q4(hA + 4)))
        if ph == 1 and c == 5:
            S('v_mfma_f32_16x16x32_bf16 %s, %s, %s, %s' % (q4(hA), q4(hW), q4(hX), '0' if q == 0 else q4(hA)))
            if q < 17 and (q & 1) == 0: S.extend(halo_read(q + 1))
        if ph == 1 and c == 6 and q < 17 and (q & 1) == 1: S.extend(halo_read(q + 1))
    assert not t2 and not x2 and not share and not cur
    OPT['zc_step'] = zc_step[0]
    for x in att:
        if x is not None: S.extend(x)
    if OPT.get('mega'): OPT['mega'].cons_early(S)
    if not OPT.get('early'):
        S('s_barrier')
        S.extend(n2a)
    elif OPT.get('mega'): S('s_barrier')
    if stamp: stamp_mid(S, 94)
    S('''
    s_lshl_b32 s63, s48, 3
    s_lshl_b32 s98, s51, 1
    s_add_u32 s63, s63, s98
    s_mul_i32 s63, s63, 72
    s_mul_i32 s98, s49, 9
    s_add_u32 s98, s98, s52
    s_lshr_b32 s98, s98, 1
    s_add_u32 s63, s63, s98
    s_lshl_b32 s69, s63, 10
    s_add_u32 s70, s69, 73728
    s_cmp_eq_u32 s52, 0
    s_cselect_b32 s63, 4608, 0
    s_sub_u32 s63, s63, 512
    s_add_u32 s71, s69, s63
    s_add_u32 s72, s70, s63
    v_lshlrev_b32 v10, 4, v1
    v_lshrrev_b32 v12, 5, v1
    v_lshlrev_b32 v12, 8, v12
    v_and_b32 v13, 15, v1
    v_lshl_add_u32 v12, v13, 4, v12
    v_bfe_u32 v13, v1, 4, 1
    v_lshl_add_u32 v12, v13, 3, v12
    ''')
    G1 = OPT.get('gelu1', False)
    if G1:
        S('s_mov_b32 s78, 0x%x' % fbits(C1))
        S('v_mov_b32 v%d, 0x%x' % (vC2, fbits(C2)))
    for p in range(4):
        for b in range(2):
            a0 = acc(2 * p, b); a1 = acc(2 * p + 1, b)
            if G1: gelu4(S, a0, XF); gelu4(S, a1, XF + 4)
            o = XF + 8 + 4 * (2 * p + b) if not OPT.get('mega') else 168 + (b * 4 + p) * 4
            S('v_cvt_pk_bf16_f32 v%d, v%d, v%d' % (o, a0, a0 + 1))
            S('v_cvt_pk_bf16_f32 v%d, v%d, v%d' % (o + 1, a0 + 2, a0 + 3))
            S('v_cvt_pk_bf16_f32 v%d, v%d, v%d' % (o + 2, a1, a1 + 1))
            S('v_cvt_pk_bf16_f32 v%d, v%d, v%d' % (o + 3, a1 + 2, a1 + 3))
            for d in range(2): S('v_permlane32_swap_b32 v%d, v%d' % (o + d, o + 2 + d))
            for d in range(2): S('v_permlane16_swap_b32 v%d, v%d' % (o + d, o + 2 + d))
            if not OPT.get('mega'): S('buffer_store_dwordx4 %s, v10, s[32:35], s%d offen offset:%d' % (q4(o), 69 + b, p * 1024))
    for b in range(2):
        a0 = acc(8, b)
        if G1: gelu4(S, a0, XF)
        o = XF + 40 + 2 * b if not OPT.get('mega') else 200 + 2 * b
        S('v_cvt_pk_bf16_f32 v%d, v%d, v%d' % (o, a0, a0 + 1))
        S('v_cvt_pk_bf16_f32 v%d, v%d, v%d' % (o + 1, a0 + 2, a0 + 3))
        if not OPT.get('mega'): S('buffer_store_dwordx2 v[%d:%d], v12, s[32:35], s%d offen' % (o, o + 1, 71 + b))
    V2.S1 = 40; V2.QB_OFF = QB_OFF; V2.VOFF = 72; V2.QOFF = 144
    ost = []
    if not OPT.get('attgap'):
        for x in V2.attention(0):
            if OPT.get('mega') and isinstance(x, list) and any(y.kind == 'vmem' for y in x): ost.append(x)
            else: S.append(x)
    if OPT.get('late'): S('s_barrier')
    if not OPT.get('early'): S.extend(n2b)
    S.extend(ost)
    OPT['n_ost'] = sum(1 for x in ost for y in x if y.kind == 'vmem')
    if stamp:
        stamp_mid(S, 96)
        if not OPT.get('mega'): S('s_waitcnt vmcnt(0)')
        stamp_mid(S, 70)
        stamp_store(S, 84, [86, 88, 90, 92, 94, 96, 70 if not OPT.get('ptrace') else 66], 14, 0, 72, 12, wave_s=50)
    if OPT.get('mega'): S('s_branch K2_CONS')
    else: S('s_endpgm')
    return S

def compute2(stamp):
    S = Stream()
    vXe = 6; vXo = 7
    xloads(S, [0])
    common_setup(S)
    srd(S, 32, 14, 15, Z1P_SZ, Z1P_OFF)
    S('''
    s_mul_i32 s63, s51, %d
    s_add_u32 s63, s63, %d
    v_add_u32 v6, s63, v6
    v_xor_b32 v7, 64, v6
    ''' % (2 * P1, T1_OFF))
    if stamp: stamp_mid(S, 86)
    layernorm(S, [0, 1, 2])
    for q in range(2 * NR1):
        for b in range(2):
            S('ds_read_b128 %s, v%d offset:%d' % (xf(q, b), vXo if q & 1 else vXe, b * P1 + q * 1024), tok_w=['TR'])
    for j in range(NR1, 9): norm4(S, ln(2, j), ST + 4, ST + 6)
    t2_addr(S)
    S('s_mul_i32 s63, s51, %d' % (2 * (P2 - P1)))
    S('s_add_u32 s63, s63, %d' % (T2_OFF - T1_OFF))
    S.need('TR')
    S('s_barrier')
    S('v_add_u32 v6, s63, v6')
    S('v_add_u32 v7, s63, v7')
    S('s_setprio %d' % OPT.get('prio', 2))
    if stamp: stamp_mid(S, 88)
    ntile = [9, 9, 7]
    def acc(c, b): return ACC + (c * 2 + b) * 4
    hA = ACC + 56; hX = ACC + 64; hW = ACC + 68
    vTa = 2; vTb = 3; vq2 = 2; vq4 = 3; vQb = 4; vXH = 9; vqh = 8; vZa = 5; vZb = 6; vTs = 7
    frs = [(n, ks, c) for n in range(27) for ks in range(2) for c in range(ntile[n // 9])]
    def order(n):
        nt = ntile[n // 9]
        if n == 9: return [(ks, c) for c in range(nt) for ks in range(2)]
        if n == 18: return [(ks, c) for c in range(4) for ks in range(2)] + [(ks, c) for ks in range(2) for c in range(4, 7)]
        return [(ks, c) for ks in range(2) for c in range(nt)]
    frs = [(n, ks, c) for n in range(27) for ks, c in order(n)]
    bias = {}
    extra_tok = {1: ['T2'], 9: ['TR2'], 11: ['HB']}
    QIMM = {0: 0, 1: 32, 3: 120, 5: 160 + 48, 6: 192 + 48}
    def zaddr(mode):
        g = Stream()
        g("""v_bfe_u32 v15, v1, 4, 1
        v_lshlrev_b32 v15, 5, v15""")
        if mode == 0:
            g("""s_cmp_eq_u32 s52, 0
            s_cselect_b32 s98, 1, -1
            s_lshl_b32 s99, s52, 5
            v_mul_lo_u32 v15, v15, s98
            v_add3_u32 v%d, v%d, v15, s99
            v_sub_u32 v%d, v%d, v15
            v_add_u32 v%d, s99, v%d""" % (vTa, vT, vTb, vT, vTb, vTb))
        else:
            g("""s_lshl_b32 s99, s52, 6
            v_add3_u32 v%d, v%d, v15, s99
            v_sub_u32 v%d, v%d, v15
            v_add_u32 v%d, 256, v%d
            v_add_u32 v15, 32, v%d
            s_cmp_eq_u32 s52, 0
            s_cselect_b64 vcc, -1, 0
            v_cndmask_b32 v%d, v15, v%d, vcc
            v_add_u32 v%d, s99, v%d""" % (vZa, vT, vZb, vT, vTs, vZa, vZb, vTs, vTs, vZb, vZb))
        return g
    def qaddr():
        g = Stream()
        g("""v_bfe_u32 v15, v1, 4, 1
        v_lshlrev_b32 v15, 5, v15
        s_mul_i32 s98, s49, 72
        s_and_b32 s98, s98, 31
        s_add_u32 s98, s98, {bias}
        v_add3_u32 v{qb}, v{T}, v15, s98
        v_and_b32 v15, 3, v1
        v_cmp_le_u32 vcc, 2, v15
        v_cndmask_b32 v14, 0, 24, vcc
        v_add_u32 v14, 152, v14
        v_add_u32 v{q4}, v{qb}, v14
        v_cmp_le_u32 vcc, 1, v15
        v_cndmask_b32 v14, 0, 24, vcc
        v_add_u32 v14, 64, v14
        v_add_u32 v{q2}, v{qb}, v14
        s_lshl_b32 s73, s51, 5
        s_cmp_eq_u32 s51, 3
        s_cselect_b32 s99, 24, 0
        s_add_u32 s99, s99, s73
        v_add_u32 v{qh}, s99, v{qb}
        s_cmp_eq_u32 s51, 2
        s_cselect_b64 vcc, -1, 0
        v_cndmask_b32 v{qh}, v{qh}, v{q2}, vcc
        v_and_b32 v14, 15, v1
        v_lshrrev_b32 v15, 4, v1
        v_xor_b32 v14, v14, v15
        v_lshl_add_u32 v14, v15, 4, v14
        v_lshlrev_b32 v14, 4, v14
        v_add_u32 v{xh}, {XH}, v14""".format(qb=vQb, T=vT, q4=vq4, q2=vq2, qh=vqh, xh=vXH, XH=XH_OFF, bias=2 * SLOT))
        return g
    def toggle(g, ar, n):
        want = (n & 3) >> 1
        if bias.get(ar, 0) != want:
            g('v_add_u32 v%d, %d, v%d' % (ar, 2 * SLOT if want else -2 * SLOT, ar))
            bias[ar] = want
    def halo_read(q):
        g = Stream()
        n = 18 + q // 2
        g('ds_read_b128 %s, v%d offset:%d' % (q4(hX), vXH, q * 1024), tok_w=['XHR'])
        toggle(g, vqh, n)
        for hh in range(2):
            g('ds_read_b64_tr_b16 v[%d:%d], v%d offset:%d' % (hW + 2 * hh, hW + 2 * hh + 1, vqh, (n & 1) * SLOT + (q & 1) * 10240 + hh * 1280))
        return g
    def read(f):
        n, ks, c = frs[f]
        ph = n // 9
        g = Stream()
        if ks == 0 and c == 0:
            if n > 0:
                if n in extra_tok: g.need(*extra_tok[n])
                if n > 10: g.need('ZCdone')
                g('s_barrier')
            if n == 0: g.extend(zaddr(0))
            if n == 18:
                for r in (vQb, vq2, vq4, vqh): bias[r] = 1
        if ph == 0: ar, coff = (vTb if c & 1 else vTa), 32 * c
        elif ph == 2: ar, coff = (vq2, 0) if c == 2 else ((vq4, 0) if c == 4 else (vQb, QIMM[c]))
        else: ar, coff = ((vZb if c & 1 else vZa), 32 * c) if c < 8 else (vTs, 0)
        toggle(g, ar, n)
        r = WFR + (f % NRING) * 4
        for hh in range(2):
            if OPT.get('halfread') and hh == 1:
                g('s_nop 0'); continue
            g('ds_read_b64_tr_b16 v[%d:%d], v%d offset:%d' % (r + 2 * hh, r + 2 * hh + 1, ar, (n & 1) * SLOT + ks * 10240 + hh * 1280 + coff))
        return g
    D = NRING - 1
    for f in range(D): S.extend(read(f))
    def tmpr(ph, c, b):
        pairs = [12, 14, 2, 36, 38]
        return pairs[(2 * c + b) % len(pairs)]
    def cvt(ph, c, b):
        a = acc(c, b); t = tmpr(ph, c, b)
        return G('v_cvt_pk_bf16_f32 v%d, v%d, v%d\nv_cvt_pk_bf16_f32 v%d, v%d, v%d' % (t, a, a + 1, t + 1, a + 2, a + 3))
    def cvti(a):
        return G('v_cvt_pk_bf16_f32 v%d, v%d, v%d\nv_cvt_pk_bf16_f32 v%d, v%d, v%d' % (a, a, a + 1, a + 1, a + 2, a + 3))
    def dw(ph, c, b, src=None):
        t = tmpr(ph, c, b) if src is None else src
        if OPT.get('nodw'): return []
        if ph == 0:
            return G('ds_write_b64 v10, v[%d:%d] offset:%d' % (t, t + 1, 16 * b * ZP + 32 * c), tok_w=['HB'])
        return G('ds_write_b64 v11, v[%d:%d] offset:%d' % (t, t + 1, (16 + 16 * b) * QP + 32 * c), tok_w=['QB'])
    x2 = Stream()
    for q in range(2 * NR1, 18):
        for b in range(2):
            x2('ds_read_b128 %s, v%d offset:%d' % (xf(q, b), vXo if q & 1 else vXe, b * P2 + (q - 2 * NR1) * 1024), tok_w=['TR2'])
    t2 = t2_writes([0, 1, 2])
    addr = G('''
    v_and_b32 v10, 15, v1
    s_lshl_b32 s98, s51, 5
    v_add_u32 v10, s98, v10
    v_mul_u32_u24 v11, %d, v10
    v_mul_u32_u24 v10, %d, v10
    v_lshrrev_b32 v12, 4, v1
    v_lshlrev_b32 v12, 3, v12
    s_mov_b32 s98, %d
    v_add3_u32 v10, v10, v12, s98
    s_mov_b32 s98, %d
    v_add3_u32 v11, v11, v12, s98
    ''' % (QP, ZP, ZB_OFF, QB_OFF))
    hw = G('s_mul_i32 s98, s51, %d\nv_subrev_u32 v5, s98, v11\nv_add_u32 v38, s69, v5' % (32 * QP))
    NC = OPT.get('nc', 0)
    share = []
    for k in range(NC):
        c = 9 - NC + k
        g = Stream()
        off = 16 * ZP + 32 * c
        g('ds_read_b64 v[12:13], v10 offset:%d' % off)
        for _ in range(OPT.get('rgap', 6)): g.append(None)
        g("""v_and_b32 v15, 0xffff0000, v13
        v_lshlrev_b32 v14, 16, v13
        v_and_b32 v13, 0xffff0000, v12
        v_lshlrev_b32 v12, 16, v12""")
        gelu4(g, 12, 36, c2=0)
        g('v_cvt_pk_bf16_f32 v36, v12, v13')
        g('v_cvt_pk_bf16_f32 v37, v14, v15')
        g('ds_write_b64 v10, v[36:37] offset:%d' % off, tok_w=['ZCdone'] if k == NC - 1 else [])
        share.append(list(g))
    zoff = G("""
    s_lshl_b32 s63, s48, 3
    s_lshl_b32 s98, s51, 1
    s_add_u32 s63, s63, s98
    s_mul_i32 s63, s63, 72
    s_mul_i32 s98, s49, 9
    s_add_u32 s98, s98, s52
    s_lshr_b32 s98, s98, 1
    s_add_u32 s63, s63, s98
    s_lshl_b32 s69, s63, 10
    s_add_u32 s70, s69, 73728
    s_cmp_eq_u32 s52, 0
    s_cselect_b32 s63, 4608, 0
    s_sub_u32 s63, s63, 512
    s_add_u32 s71, s69, s63
    s_add_u32 s72, s70, s63
    v_lshlrev_b32 v10, 4, v1
    v_lshrrev_b32 v0, 5, v1
    v_lshlrev_b32 v0, 8, v0
    v_and_b32 v13, 15, v1
    v_lshl_add_u32 v0, v13, 4, v0
    v_bfe_u32 v13, v1, 4, 1
    v_lshl_add_u32 v0, v13, 3, v0
    """)
    light = [[3, list(addr) + list(zaddr(1)) + G('s_mov_b32 s78, 0x%x\nv_mov_b32 v0, 0x%x' % (fbits(C1), fbits(C2)))], [10, list(qaddr())], [17, zoff]]
    WT = ' sc1' if OPT.get('wt', 1) else ''
    def cv(o, a): return G('v_cvt_pk_bf16_f32 v%d, v%d, v%d\nv_cvt_pk_bf16_f32 v%d, v%d, v%d' % (o, a, a + 1, o + 1, a + 2, a + 3))
    def pairfin(p, dst):
        g = Stream()
        for sw in ('v_permlane32_swap_b32', 'v_permlane16_swap_b32'):
            for b in range(2):
                for d in range(2): g('%s v%d, v%d' % (sw, dst[b] + d, dst[b] + 2 + d))
        for b in range(2): g('buffer_store_dwordx4 %s, v10, s[32:35], s%d offen offset:%d%s' % (q4(dst[b]), 69 + b, p * 1024, WT))
        return list(g)
    def pair(p):
        dst = [acc(2 * p, 0), acc(2 * p, 1)]
        return cv(dst[0], dst[0]) + cv(dst[1], dst[1]) + cv(dst[0] + 2, acc(2 * p + 1, 0)) + cv(dst[1] + 2, acc(2 * p + 1, 1)) + pairfin(p, dst)
    single = []
    for b in range(2): single += cv(acc(8, b), acc(8, b))
    for b in range(2): single += G('buffer_store_dwordx2 v[%d:%d], v0, s[32:35], s%d offen%s' % (acc(8, b), acc(8, b) + 1, 71 + b, WT))
    zw = [(2, x) for x in cv(14, acc(1, 0)) + cv(38, acc(1, 1))] + [(4, x) for x in pair(1)] + [(6, x) for x in single] + [(7, x) for x in pairfin(0, [12, 36])] + [(8, x) for x in pair(2) + pair(3)]
    cur = []
    zc_step = [None]
    fi = 0
    for f, (n, ks, c) in enumerate(frs):
        ph, j = divmod(n, 9)
        q = 2 * j + ks
        r = WFR + (f % NRING) * 4
        first = (j == 0 and ks == 0 and c == 0)
        if first: fi = 0
        if stamp and first and ph > 0 and not OPT.get('trace'): stamp_mid(S, 88 + 2 * ph)
        if first and ph == 1: S.extend(cvt(0, 0, 0))
        if first and ph == 2:
            assert not light and not cur and not share
            S.extend(cv(12, acc(0, 0)) + cv(36, acc(0, 1)))
        if n == 18: assert not zw or zw[0][0] > fi, (fi, zw[0][0])
        rd = read(f + D) if f + D < len(frs) else []
        if f % 2 == 0 and f + 1 < len(frs) and not OPT.get('allwait'):
            r1 = WFR + ((f + 1) % NRING) * 4
            S.need(*['v%d' % k for k in range(r1, r1 + 4)])
        for b in range(2):
            a = acc(c, b)
            S('v_mfma_f32_16x16x32_bf16 %s, %s, %s, %s' % (q4(a), q4(r), xf(q, b), '0' if q == 0 else q4(a)))
            S.extend(rd[:-1] if b == 0 else rd[-1:])
            if n == 9:
                if ks == 0 and b == 0: S.extend(cvt(0, c, 1))
                if ks == 0 and b == 1: S.extend(dw(0, c, 0))
                if ks == 1 and b == 0: S.extend(dw(0, c, 1))
                if ks == 1 and b == 1 and c < 8: S.extend(cvt(0, c + 1, 0))
            if n == 18:
                for _ in range(OPT.get('zrate', 5)):
                    if zw: S.append(zw.pop(0)[1])
                if fi == 6 and b == 1: S.extend(halo_read(0))
            if n == 0 and t2 and b == 1: S.append(t2.pop(0))
            if n in (1, 2) and x2 and b == 1 and (n == 2 or ks == 1 or c > 0): S.append(x2.pop(0))
            gaps_left = sum(2 for ff in range(f, len(frs)) if frs[ff][0] < 17)
            if not cur and share and not (light and n >= light[0][0]) and n >= 10 and gaps_left > len(share[0]):
                cur.extend(share.pop(0))
            if cur:
                x = cur.pop(0)
                if x is not None: S.append(x)
                if not cur and not share: zc_step[0] = n
            elif light and n >= light[0][0] and n != 9:
                x = light[0][1].pop(0); S.append(x)
                while x.kind == 'salu' and light[0][1]:
                    x = light[0][1].pop(0); S.append(x)
                if not light[0][1]: light.pop(0)
        if ph == 2 and c == 4:
            S('v_mfma_f32_16x16x32_bf16 %s, %s, %s, %s' % (q4(hA + 4), q4(r), q4(hX), '0' if q == 0 else q4(hA + 4)))
        if ph == 2 and c == 5:
            S('v_mfma_f32_16x16x32_bf16 %s, %s, %s, %s' % (q4(hA), q4(hW), q4(hX), '0' if q == 0 else q4(hA)))
            if q < 17 and (q & 1) == 0: S.extend(halo_read(q + 1))
        if ph == 2 and c == 6 and q < 17 and (q & 1) == 1: S.extend(halo_read(q + 1))
        fi += 1
    assert not t2 and not x2 and not share and not cur and not zw
    OPT['zc_step'] = zc_step[0]
    if stamp: stamp_mid(S, 94)
    S('s_mul_i32 s98, s51, %d' % (32 * QP))
    S('v_subrev_u32 v5, s98, v11')
    S('v_add_u32 v6, s73, v5')
    for c in range(8):
        for b in range(2): S.extend(cvti(acc(c, b)))
    S('s_barrier')
    for c in range(7):
        for b in range(2): S.extend(dw(1, c, b, acc(c, b)))
    for b in range(2): S('ds_write_b64 v%d, v[%d:%d] offset:%d' % (5 if b else 6, hA + 4 * b, hA + 4 * b + 1, 128 * b), tok_w=['QB'])
    nz = OPT.get('nzc', 0)
    if nz:
        n2a, n2b = norm_z2(range(nz))
        S.extend(n2a)
    S.need('QB')
    S('s_barrier')
    V2.S1 = 40; V2.QB_OFF = QB_OFF; V2.VOFF = 72; V2.QOFF = 144
    S.extend(V2.attention(0))
    if OPT.get('attc'): S.extend(V2.attention(1))
    if nz: S.extend(n2b)
    if stamp:
        stamp_mid(S, 96)
        S('s_waitcnt vmcnt(0)')
        stamp_mid(S, 70)
        stamp_store(S, 84, [86, 88, 90, 92, 94, 96, 70 if not OPT.get('ptrace') else 66], 14, 0, 72, 12, wave_s=50)
    S('s_endpgm')
    return S

HL = 232
def helper(stamp):
    S = Stream()
    S('K1_HELP:')
    if OPT.get('cpf'): S.extend(code_prefetch('k1_kernel', 'k2_kernel', 1, 40, 34, 64, 12, neg=True))
    S("""s_getpc_b64 s[64:65]
    s_add_u32 s64, s64, K1_TAB@rel32@lo+4
    s_addc_u32 s65, s65, K1_TAB@rel32@hi+12
    s_lshl_b32 s66, s51, 12
    v_lshlrev_b32 v32, 4, v1
    v_add_u32 v32, s66, v32
    v_mov_b32 v33, s65
    v_add_co_u32 v32, vcc, s64, v32
    v_addc_co_u32 v33, vcc, 0, v33, vcc
    global_load_dwordx4 v[16:19], v[32:33], off
    global_load_dwordx4 v[20:23], v[32:33], off offset:1024
    global_load_dwordx4 v[24:27], v[32:33], off offset:2048
    global_load_dwordx4 v[64:67], v[32:33], off offset:3072""")
    xloads(S, [0])
    common_setup(S)
    srd(S, 20, 6, 7, 576 * 3456)
    srd(S, 24, 8, 9, 576 * 9216)
    S("""
    s_lshl_b32 s68, s51, 10
    s_mul_i32 s64, s49, 288
    s_and_b32 s64, s64, -64
    s_mul_i32 s65, s49, 72
    s_and_b32 s65, s65, -32
    v_mov_b32 v106, 0x7f000000
    """)
    srd(S, 4, 10, 11, 2048 * 4096)
    vHW = 26; vH0 = 28
    QH = Stream()
    QH("""
    s_mov_b32 s78, 0x%x
    v_mov_b32 v%d, 0x%x
    s_lshl_b32 s8, s2, 15
    s_lshl_b32 s9, s51, 11
    s_add_u32 s8, s8, s9
    v_lshlrev_b32 v8, 7, v1
    s_mul_i32 s98, s48, %d
    s_sub_u32 s98, s98, %d
    v_add_u32 v100, s98, v27
    v_bfe_u32 v101, v1, 3, 1
    v_add_u32 v101, s%d, v101
    """ % (fbits(C1), vC2, fbits(C2), 128 * 1152, 16 * 1152, sBLK))
    for t in range(5):
        QH('v_add_u32 v102, %d, v101' % (2 * t))
        QH('v_subrev_u32 v103, 9, v102')
        QH('v_min_u32 v102, v102, v103')
        QH('v_lshl_add_u32 v%d, v102, 7, v100' % (vH0 + t))
    QH('''
    v_and_b32 v103, 15, v1
    v_cmp_gt_u32 vcc, 8, v103
    v_cndmask_b32 v%d, v106, v%d, vcc
    ''' % (vH0 + 4, vH0 + 4))
    for t in range(5):
        QH('buffer_load_dwordx4 %s, v%d, s[16:19], 0 offen' % (q4(HL + 4 * t), vH0 + t))
    QK = Stream()
    if OPT.get('qpack'):
        S("""s_mul_i32 s63, s48, %d
        s_add_u32 s63, s63, s65""" % (36 * 3456))
        for e in range(3): S('buffer_load_dwordx4 %s, v%d, s[20:23], s63 offen' % (q4(120 + 4 * e), 64 + e))
        S.append('HZERO2')
        srd(QK, 20, 14, 15, QK_SZ, QK_OFF)
        QK("""s_mul_i32 s65, s49, %d
        s_mul_i32 s63, s48, %d
        s_add_u32 s63, s63, s65
        s_mul_i32 s66, s51, 2592
        s_add_u32 s63, s63, s66
        v_lshlrev_b32 v69, 4, v1""" % (576 * 288, 36 * 288))
        for e in range(3):
            if e == 2: QK('s_mov_b32 exec_hi, 3')
            QK('buffer_store_dwordx4 %s, v69, s[20:23], s63 offen offset:%d sc1' % (q4(120 + 4 * e), 1024 * e), tok_w=['QKS'])
        QK('s_mov_b32 exec_hi, -1')
        QK.append('HARRIVE')
    if stamp: stamp_mid(S, 86)
    QA = [x for x in QK if x == 'HARRIVE']; QK = [x for x in QK if x != 'HARRIVE']
    layernorm(S, [3], mid=list(wdma(0)), mid2=list(wdma(1)) + QK)
    for j in range(NR1, 9): norm4(S, ln(0, j), ST, ST + 6)
    t2_addr(S)
    S.need('W0')
    S.extend(QA)
    S('s_barrier')
    if stamp: stamp_mid(S, 88)
    q1 = list(QH) + list(ln_halo(vHW))
    q2 = list(epi_z2())
    V2.S1 = 136; V2.QB_OFF = QB_OFF; V2.VOFF = 72; V2.QOFF = 144
    q3 = list(V2.attention(1)) if not OPT.get('attboth') else []
    B = OPT.get('budget', 64)
    if OPT.get('e2cut') is not None:
        keepn = OPT['e2cut']
        q2 = q2[:keepn] + [x for x in q2[-1:]]
    if OPT.get('noside'):
        q1 = []; q2 = q2[-1:]; q3 = []
    pub_step = None
    n2a, n2b = norm_z2(range(OPT.get('nzc', 0) if (OPT.get('zzq') or OPT.get('early')) else OPT.get('nz', NZC), 9))
    q4_ = list(n2a) + list(n2b)
    oz_late = []
    for n in range(27):
        if n > 0:
            toks = ['W%d' % n]
            if n == 1: toks.append('T2')
            if n == 4: toks.append('ZE')
            if n == 2: toks.append('QKS')
            if n == 7 and OPT.get('qpack'): S.append('QCHECK')
            if n == (18 if OPT.get('zzq') else 9): toks.append('XH')
            if (OPT.get('zzq') or OPT.get('early')) and n == OPT.get('pollstep', 25): S.append('POLLCHECK')
            if OPT.get('p26') and n == OPT['p26']: S.append('POLLCHECK')
            if pub_step is not None and n == pub_step + 2: toks += ['PUB', 'ZB']
            if OPT.get('trace'):
                S('s_memtime s[96:97]\ns_waitcnt lgkmcnt(0)\ns_sub_u32 s96, s96, s84\nv_writelane_b32 v254, s96, %d' % n)
            S.need(*toks)
            if OPT.get('trace'):
                S('s_memtime s[96:97]\ns_waitcnt lgkmcnt(0)\ns_sub_u32 s96, s96, s84\nv_writelane_b32 v254, s96, %d' % (n + 32))
            S('s_barrier')
            if OPT.get('trace'):
                S('s_memtime s[96:97]\ns_waitcnt lgkmcnt(0)\ns_sub_u32 s96, s96, s84\nv_writelane_b32 v255, s96, %d' % n)
            if pub_step is not None and n == pub_step + 2: S.append('ATOMIC')
        if stamp and n in (9, 18): stamp_mid(S, 88 + 2 * (n // 9))
        mem = []
        if n + 2 < 27 and not OPT.get('nodma'):
            w = list(wdma(n + 2))
            mem = [w[:-8]] + [w[-8 + 2 * k:len(w) - 6 + 2 * k] for k in range(4)]
            assert sum(len(x) for x in mem) == len(w)
            if OPT.get('dg') == 3: mem = [mem[0] + mem[1], mem[2] + mem[3], mem[4]]
            if OPT.get('dg') == 2: mem = [mem[0] + mem[1] + mem[2], mem[3] + mem[4]]
        if n in (2, 4, 6, 9) and not OPT.get('nopf') and not OPT.get('pfc'):
            mem.append(G('''s_mov_b32 m0, %d
            s_mov_b64 exec, 0xffff
            buffer_load_dword v8, s[4:7], s8 offen lds
            s_mov_b64 exec, -1
            s_add_u32 s8, s8, 8192''' % SB_OFF))
        if OPT.get('pf3') and n in (12, 15) and not OPT.get('pfc'):
            mem.append(G('''s_load_dwordx2 s[4:5], s[0:1], %d
            s_mov_b32 s6, %d
            s_mul_i32 s8, s2, %d
            s_mul_i32 s12, s51, %d
            s_add_u32 s8, s8, s12
            s_mov_b32 m0, %d
            s_waitcnt lgkmcnt(0)
            s_mov_b64 exec, 0x%x
            buffer_load_dword v8, s[4:7], s8 offen lds
            s_mov_b64 exec, -1''' % ((56, 2304 * 1152, 10368, 2688, SB_OFF, 0x1fffff) if n == 12 else (16, 576 * 1152, 2688, 768, SB_OFF, 0x3f))))
        for tn, n0 in OPT.get('hspread', {}).items():
            if n0 <= n < n0 + 5:
                w = [x for x in wdma(tn)]
                g = [I(x.text.replace('s63', 's13')) for x in w[:-10]] + G('s_mov_b32 m0, %d' % SB_OFF)
                g += G([x for x in w[-10:] if x.kind == 'dma'][n - n0].text.replace('dwordx4', 'dword').replace('s63', 's13'))
                mem.append(g)
        for tn in OPT.get('htouch', {}).get(n, []):
            w = [x for x in wdma(tn)]
            g = [x for x in w[:-10]] + G('s_mov_b32 m0, %d' % SB_OFF)
            for x in w[-10:]:
                if x.kind == 'dma': g += G(x.text.replace('dwordx4', 'dword'))
            mem.append(g)
        work = []
        if n == 0: work += list(t2_writes([3]))
        if n == 18 and not OPT.get('flags', 1): work += G('s_lshl_b32 s9, s48, 4\nv_mov_b32 v6, 0')
        if OPT.get('qpack'):
            for tk in {1: ['ENTRY1'], 2: ['QFLAG'], 3: ['GATE1'], 5: ['GATE2', 'QISSUE']}.get(n, []): work.append(tk)
        elif OPT.get('flags', 1) and n in (1, 4, OPT.get('g1', 13), OPT.get('g1', 13) + 3): work.append({1: 'ENTRY1', 4: 'ENTRY2', OPT.get('g1', 13): 'GATE1', OPT.get('g1', 13) + 3: 'GATE2'}[n])
        if n == (OPT.get('pollstep', 25) - 1 if (OPT.get('zzq') or OPT.get('early')) else (OPT['p26'] - 1 if OPT.get('p26') else 26)): work.append('POLLISSUE')
        if OPT.get('p26') and n == OPT['p26']:
            work += n2a[:11]; n2a = n2a[11:]
        if OPT.get('hn2') and n == 26:
            work += list(n2a) + [x for x in n2b if 'OZ' not in x.tok_w]
            n2a = [x for x in n2b if 'OZ' in x.tok_w]; n2b = []
        if OPT.get('n2gap') and n == 26:
            cut = max(i for i, x in enumerate(n2b) if x.kind == 'ds' and x.op == 'ds_read_b128') + 1
            work += list(n2a) + list(n2b[:cut]); n2a = []; n2b = n2b[cut:]
        if n == 17 and OPT.get('pf3') and not OPT.get('mega'): work.append('ZERO')
        if n == 19 and OPT.get('mega'): work += G('v_mov_b32 v40, 159744\nv_mov_b32 v42, 0\nv_mov_b32 v43, 0\nv_mov_b32 v44, 0\nv_mov_b32 v45, 0') + G('ds_write_b128 v40, v[42:45]', tok_w=['ZB']) + G('ds_write_b128 v40, v[42:45] offset:16', tok_w=['ZB'])
        if OPT.get('cpf') == 1 and n == OPT.get('cpfn', 22): work.append(code_prefetch('K2_TEXT' if OPT.get('mega') else 'k2_kernel', 'TEXT_END', 1, 32, 35, 10, 12))
        def drain(q, budget):
            while q and budget > 0:
                if isinstance(q[0], tuple) and q[0][0] == 'WAITSTEP':
                    if n < q[0][1]: break
                    q.pop(0); continue
                x = q.pop(0)
                if not isinstance(x, (str, list, tuple)) and 'OZ' in x.tok_w:
                    oz_late.append(x); continue
                budget -= wt(x); work.append(x)
            return budget
        budget = B
        if 0 <= n <= 10 and q1: drain(q1, OPT.get('b1', 34) if n < (10 if OPT.get('zzq') else 8) else 1e9)
        if n >= (11 if OPT.get('zzq') or OPT.get('m32') else 10) and q2:
            budget = drain(q2, budget)
            if not q2: pub_step = max(n, 17)
        elif OPT.get('early') and n >= OPT['pollstep']:
            drain(q4_, len(n2a) if n == OPT['pollstep'] else OPT.get('nbudget', 60))
            if n == OPT['pollstep']: drain(q3, OPT.get('abudget', 36))
        elif n >= (20 if OPT.get('m32') or OPT.get('tm') else 19) and not OPT.get('zzq'): drain(q3, OPT.get('abudget', 36))
        elif OPT.get('zzq') and n >= OPT.get('pollstep', 25): drain(q4_, OPT.get('nbudget', 50) if n > OPT.get('pollstep', 25) else len(n2a))
        tot = sum(wt(x) for x in work); acc_ = 0.0; k = 0
        for x in work:
            while k < len(mem) and acc_ >= tot * k / (len(mem) + OPT.get('dmaslack', 1)):
                S.extend(mem[k]); k += 1
            S.append(x); acc_ += wt(x)
        while k < len(mem):
            S.extend(mem[k]); k += 1
    late = pub_step is None or pub_step + 2 > 26
    assert late == bool(OPT.get('late')), (pub_step, 'set late option accordingly')
    if late:
        S.extend(q2)
        S.need('ZB')
        h = len(q3) // 2
        S.extend(q3[:h]); q3 = q3[h:]
        S.need('PUB')
        S('s_barrier')
        S.append('ATOMIC')
    if stamp: stamp_mid(S, 94)
    if OPT.get('zzq'):
        assert pub_step + 2 < OPT.get('pollstep', 25)
        if OPT.get('pollstep') == 27: S.append('POLLCHECK')
        S('s_barrier')
        k = min(len(q4_), OPT.get('n2mid', 60))
        S.extend(q4_[:k]); q4_ = q4_[k:]
        S('s_barrier')
        S.extend(q4_)
        if not OPT.get('attc'): S.extend(q3)
    elif OPT.get('early'):
        assert pub_step + 2 < OPT['pollstep']
        if OPT.get('mega'):
            S('s_barrier')
            OPT['mega'].prod_early(S)
        S.extend(oz_late)
        S.extend(q4_); S.extend(q3)
    else:
        if not OPT.get('p26'): S.append('POLLCHECK')
        S('s_barrier')
        S.extend(n2a)
        if OPT.get('mega'): OPT['mega'].prod_early(S)
        S.extend(q3)
        S.extend(n2b)
    if stamp:
        stamp_mid(S, 96)
        if not OPT.get('mega'): S('s_waitcnt vmcnt(0)')
        stamp_mid(S, 70)
        stamp_store(S, 84, [86, 88, 90, 92, 94, 96, 70 if not OPT.get('ptrace') else 66], 14, 0, 72, 12, wave_s=50)
    if OPT.get('trace'):
        S('''s_lshl_b32 s75, s2, 11
        s_lshl_b32 s74, s51, 9
        s_add_u32 s75, s75, s74
        s_add_u32 s75, s75, 0x80000
        v_lshlrev_b32 v12, 2, v1
        buffer_store_dword v254, v12, s[76:79], s75 offen
        buffer_store_dword v255, v12, s[76:79], s75 offen offset:256''')
    if OPT.get('mega'): OPT['mega'].producer(S)
    S('K1_END:')
    S('s_endpgm')
    print('k1 helper: zc', OPT.get('zc_step'), 'pub_step', pub_step, 'att left', sum(wt(x) for x in q3))
    return S

def poll_issue(vr, va):
    return G('s_lshl_b32 s9, s48, 4\nv_mov_b32 v%d, 0' % va) + G('buffer_load_dword v%d, v%d, s[44:47], s9 offen sc1' % (vr, va))
def poll(S, tag, vr=7, va=6):
    S('v_readfirstlane_b32 s11, v%d' % vr)
    S('s_mov_b32 s10, 0')
    S('s_cmp_ge_u32 s11, 16')
    S('s_cbranch_scc1 K1_NOPOLL%s' % tag)
    S("""
    K1_POLL%s:
    s_sleep SLP
    buffer_load_dword v7, v6, s[44:47], s9 offen sc1
    s_waitcnt vmcnt(0)
    v_readfirstlane_b32 s11, v7
    s_add_u32 s10, s10, 1
    s_cmp_ge_u32 s11, 16
    s_cbranch_scc1 K1_NOPOLL%s
    s_cmp_lt_u32 s10, 0x20000
    s_cbranch_scc1 K1_POLL%s
    K1_NOPOLL%s:
    """.replace('SLP', str(OPT.get('slp', 4))).replace('v7', 'v%d' % vr).replace('v6', 'v%d' % va) % (tag, tag, tag, tag))
    S.append(('KEEPQ', 1))

def ln_halo(vHW):
    A = Stream()
    h0 = ST + 4; t = ST + 6
    for k in range(20):
        r = HL + k; tt = t + 2 * (k & 1)
        A('v_lshlrev_b32 v%d, 16, v%d' % (tt, r))
        A('v_and_b32 v%d, 0xffff0000, v%d' % (tt + 1, r))
        if k == 0:
            A('v_add_f32 v%d, v%d, v%d' % (h0, tt, tt + 1))
            A('v_mul_f32 v%d, v%d, v%d' % (h0 + 1, tt, tt))
        else:
            A('v_add_f32 v%d, v%d, v%d' % (h0, h0, tt))
            A('v_fmac_f32 v%d, v%d, v%d' % (h0 + 1, tt, tt))
            A('v_add_f32 v%d, v%d, v%d' % (h0, h0, tt + 1))
        A('v_fmac_f32 v%d, v%d, v%d' % (h0 + 1, tt + 1, tt + 1))
    for m in ('quad_perm:[1,0,3,2]', 'quad_perm:[2,3,0,1]', 'row_half_mirror', 'row_mirror'):
        for r in (h0, h0 + 1):
            A('v_add_f32_dpp v%d, v%d, v%d %s row_mask:0xf bank_mask:0xf' % (r, r, r, m))
    rowstats(A, h0, ST + 6, 's83')
    for t in range(5):
        norm4(A, HL + 4 * t, h0, ST + 6)
        g = Stream()
        if t == 4:
            g('s_mov_b32 exec_lo, 0x00ff00ff')
            g('s_mov_b32 exec_hi, 0x00ff00ff')
        g('ds_write_b128 v%d, %s offset:%d' % (vHW, q4(HL + 4 * t), t * 4096), tok_w=['XH'])
        if t == 4: g('s_mov_b64 exec, -1')
        A.append(list(g))
    return A

def epi_z2():
    E = Stream()
    PK = 60
    def pk(c, b): return PK + b * 20 + 2 * c
    E.append(G("""
    v_and_b32 v10, 15, v1
    v_lshlrev_b32 v11, 3, v10
    s_lshl_b32 s98, s51, 5
    v_add_u32 v10, s98, v10
    v_mul_u32_u24 v10, %d, v10
    v_lshrrev_b32 v12, 4, v1
    v_lshlrev_b32 v12, 3, v12
    s_mov_b32 s98, %d
    v_add3_u32 v10, v10, v12, s98
    """ % (ZP, ZB_OFF)) + (G("""s_cmp_eq_u32 s52, 0
    s_cselect_b32 s98, 256, 0
    v_add_u32 v13, s98, v10
    s_lshl_b32 s98, s52, 5
    v_add_u32 v10, s98, v10""") if OPT.get('nc32') else []))
    def AD(c, b):
        if OPT.get('nc32') and c == 8: return 'v13', 16 * b * ZP
        return 'v10', 16 * b * ZP + 32 * c
    NC = OPT.get('nc', 0)
    order = [(c, b) for b in range(2) for c in range(9)]
    theirs = order[18 - NC:]; order = order[:18 - NC]
    if OPT.get('nc32'):
        NC = OPT['nc32']
        nt = NC // 2
        theirs = [(c, b) for c, b in order if c < nt]; order = [(c, b) for c, b in order if c >= nt]
    for c, b in order:
        E('ds_read_b64 v[%d:%d], %s offset:%d' % ((pk(c, b), pk(c, b) + 1) + AD(c, b)))
    for b in range(2):
        E('v_mov_b32 v%d, 0' % (pk(9, b)))
        E('v_mov_b32 v%d, 0' % (pk(9, b) + 1))
    for k in range(4): E('v_mov_b32 v%d, s82' % (132 + k))
    pend = None
    if OPT.get('ilp8'):
        E0 = E
    subs = []
    for k, (c, b) in enumerate(order):
        if OPT.get('ilp8'):
            E = Stream(); subs.append(E)
        x = 100 + 8 * (k & 1); p = pk(c, b)
        E('v_lshlrev_b32 v%d, 16, v%d' % (x, p))
        E('v_and_b32 v%d, 0xffff0000, v%d' % (x + 1, p))
        E('v_lshlrev_b32 v%d, 16, v%d' % (x + 2, p + 1))
        E('v_and_b32 v%d, 0xffff0000, v%d' % (x + 3, p + 1))
        gelu4(E, x, x + 4)
        E('v_cvt_pk_bf16_f32 v%d, v%d, v%d' % (p, x, x + 1))
        E('v_cvt_pk_bf16_f32 v%d, v%d, v%d' % (p + 1, x + 2, x + 3))
        E('ds_write_b64 %s, v[%d:%d] offset:%d' % (AD(c, b)[0], p, p + 1, AD(c, b)[1]), tok_w=['ZB'])
    if OPT.get('ilp8'):
        E = E0
        for k in range(0, len(subs), 2):
            a, b = subs[k], subs[k + 1] if k + 1 < len(subs) else []
            for i in range(0, len(a), 4):
                E.extend(a[i:i + 4]); E.extend(b[i:i + 4])
    D1 = [116, 120]; D2 = [124, 128]
    if NC:
        E.append(('WAITSTEP', OPT['zc_step'] + 2))
        for c, b in theirs:
            E('ds_read_b64 v[%d:%d], %s offset:%d' % ((pk(c, b), pk(c, b) + 1) + AD(c, b)))
    for c in range(0, 9, 2):
        for b in range(2):
            p = q4(pk(c, b))
            E('v_mfma_f32_16x16x32_bf16 %s, v[132:135], %s, %s' % (q4(D1[b]), p, '0' if c == 0 else q4(D1[b])))
            E('v_mfma_f32_16x16x32_bf16 %s, %s, %s, %s' % (q4(D2[b]), p, p, '0' if c == 0 else q4(D2[b])))
    g = G(setm('vcc', m64(lambda i, g: i & 1)))
    for b in range(2):
        g += G('v_cndmask_b32 v%d, v%d, v%d, vcc' % (D2[b], D2[b], D2[b] + 1))
        g += G('v_cndmask_b32 v%d, v%d, v%d, vcc' % (D2[b] + 2, D2[b] + 2, D2[b] + 3))
    g += G(setm('vcc', m64(lambda i, g: i & 2)))
    for b in range(2):
        g += G('v_cndmask_b32 v%d, v%d, v%d, vcc' % (D1[b] + 1, D2[b], D2[b] + 2))
    g += G("""
    s_lshl_b32 s99, s48, 4
    s_add_u32 s99, s99, s49
    s_lshl_b32 s99, s99, 10
    s_lshl_b32 s98, s51, 8
    s_add_u32 s99, s99, s98
    """) + G(setm('exec', m64(lambda i, g: g == i >> 2)))
    for b in range(2):
        g += G('buffer_store_dwordx2 v[%d:%d], v11, s[40:43], s99 offen offset:%d sc1' % (D1[b], D1[b] + 1, 128 * b), tok_w=['PUB'])
    g += G('s_mov_b64 exec, -1')
    E.append(g)
    return E

NZC = 4
def norm_z2(tiles, regs=(176, 208, 244, 248)):
    S = Stream()
    pl, zf, tb, a0 = regs
    S("""
    v_lshrrev_b32 v%d, 4, v1
    v_lshlrev_b32 v%d, 12, v%d
    v_and_b32 v%d, 15, v1
    v_lshl_add_u32 v%d, v%d, 4, v%d
    s_lshl_b32 s9, s48, 14
    s_lshl_b32 s10, s51, 8
    s_add_u32 s9, s9, s10
    """ % (a0, a0, a0, a0 + 1, a0, a0 + 1, a0))
    for k in range(4):
        S('buffer_load_dwordx4 %s, v%d, s[40:43], s9 offen offset:%d sc1' % (q4(pl + 4 * k), a0, k * 1024))
    S("""
    v_lshrrev_b32 v{z}, 4, v1
    v_lshlrev_b32 v{r}, 6, v{z}
    v_lshlrev_b32 v{z}, 3, v{z}
    v_bfe_u32 v{t}, v1, 2, 2
    v_add_u32 v{z}, v{z}, v{t}
    s_lshl_b32 s9, s51, 5
    v_add_u32 v{z}, s9, v{z}
    v_mul_u32_u24 v{z}, {ZP}, v{z}
    v_and_b32 v{t}, 3, v1
    v_lshl_add_u32 v{z}, v{t}, 3, v{z}
    v_add_u32 v{z}, {ZB}, v{z}
    """.format(z=a0 + 2, r=a0 + 3, t=tb, ZP=ZP, ZB=ZB_OFF))
    S.need('ZB')
    for c in tiles:
        for hh in range(2):
            S('ds_read_b64_tr_b16 v[%d:%d], v%d offset:%d' % (zf + 4 * c + 2 * hh, zf + 4 * c + 2 * hh + 1, a0 + 2, hh * 4 * ZP + 32 * c))
    S("""
    s_lshl_b32 s9, s50, 8
    s_add_u32 s9, s9, {SB}
    v_lshlrev_b32 v{w}, 4, v{w}
    v_add_u32 v{w}, s9, v{w}
    v_add_u32 v{r}, s9, v{r}
    v_lshlrev_b32 v{p}, 4, v1
    v_xor_b32 v{p1}, 64, v{p}
    s_lshl_b32 s12, s49, 6
    s_lshl_b32 s13, s48, 2
    s_add_u32 s12, s12, s13
    s_add_u32 s12, s12, s51
    s_mul_i32 s12, s12, 9216
    s_add_u32 s13, s12, 4096
    s_add_u32 s10, s12, 8192
    s_mov_b32 s11, 0x{inv:x}
    """.format(SB=SB_OFF, w=a0 + 1, r=a0 + 3, p=a0 + 4, p1=a0 + 5, inv=fbits(1.0 / 2304)))
    if OPT.get('ownz'):
        S('''s_lshr_b32 s9, s51, 1
        s_mul_i32 s9, s9, %d
        s_and_b32 s53, s51, 1
        s_mul_i32 s53, s53, 9216
        s_add_u32 s9, s9, s53
        s_add_u32 s9, s9, 16384
        v_add_u32 v%d, s9, v%d
        v_add_u32 v%d, s9, v%d''' % (34816, a0 + 6, a0 + 4, a0 + 7, a0 + 5))
    A = S
    S = Stream()
    for k in range(2):
        for e in range(4): S('v_add_f32 v%d, v%d, v%d' % (pl + 4 * k + e, pl + 4 * k + e, pl + 8 + 4 * k + e))
    for e in range(4): S('v_add_f32 v%d, v%d, v%d' % (pl + e, pl + e, pl + 4 + e))
    for sw in ('v_permlane16_swap_b32', 'v_permlane32_swap_b32'):
        for k in range(4): S('v_mov_b32 v%d, v%d' % (pl + 4 + k, pl + k))
        for k in range(4): S('%s v%d, v%d' % (sw, pl + k, pl + 4 + k))
        for k in range(4): S('v_add_f32 v%d, v%d, v%d' % (pl + k, pl + k, pl + 4 + k))
    for r in (pl, pl + 2): rowstats(S, r, tb, 's11')
    S('ds_write_b128 v%d, %s' % (a0 + 1, q4(pl)), tok_w=['SB'])
    S.need('SB')
    sr = pl + 16
    for k in range(4): S('ds_read_b128 %s, v%d offset:%d' % (q4(sr + 4 * k), a0 + 3, 16 * k))
    for c in tiles:
        for d in range(4):
            r = zf + 4 * c + d
            t = tb + 2 * (d & 1)
            S('v_lshlrev_b32 v%d, 16, v%d' % (t, r))
            S('v_and_b32 v%d, 0xffff0000, v%d' % (t + 1, r))
            S('v_fma_f32 v%d, v%d, v%d, v%d' % (t, t, sr + 4 * d, sr + 4 * d + 1))
            S('v_fma_f32 v%d, v%d, v%d, v%d' % (t + 1, t + 1, sr + 4 * d + 2, sr + 4 * d + 3))
            S('v_cvt_pk_bf16_f32 v%d, v%d, v%d' % (r, t, t + 1))
        S('buffer_store_dwordx4 %s, v%d, s[36:39], s%d offen offset:%d' % (q4(zf + 4 * c), a0 + 5 if c & 1 else a0 + 4, (12, 13, 10)[c >> 2], (c & 3) * 1024) + (' sc1' if OPT.get('wt2') or OPT.get('mega') else ''))
        if OPT.get('dual'): S('buffer_store_dwordx4 %s, v%d, s[36:39], s%d offen offset:%d' % (q4(zf + 4 * c), a0 + 5 if c & 1 else a0 + 4, (12, 13, 10)[c >> 2], (c & 3) * 1024))
        if OPT.get('ownz'): S('ds_write_b128 v%d, %s offset:%d' % (a0 + 7 if c & 1 else a0 + 6, q4(zf + 4 * c), c * 1024), tok_w=['OZ'])
    return A, S
```

```python
import sys
from build import *
HDR = open('parallel_sum__sliding_local_dilated__mixer_gmlp__prompt.s.ref').read().split('; Override launch')[0]
def make(path, stamp=False, k1={}, k2={}, k3={}):
    t1, v1 = gen_k1(stamp=stamp, **k1)
    t2, v2 = gen_k2(stamp=stamp, **k2)
    t3, v3 = gen_k3(stamp=stamp, **k3)
    assemble_file(path, [('k1_kernel', t1, v1, 256, 512, K1_LDS), ('k2_kernel', t2, v2, 256, 512, K2_LDS), ('k3_kernel', t3, v3, 234, 256, K3_LDS)])
    s = open(path).read()
    open(path, 'w').write(HDR + s)
def makef(path, stamp=False, k1={}, k2={}):
    t1, v1 = gen_k1(stamp=stamp, **k1)
    t2, v2 = gen_k2(stamp=stamp, fuse=True, **k2)
    assemble_file(path, [('k1_kernel', t1, v1, 256, 512, K1_LDS), ('k2_kernel', t2, v2, 256, 512, K2_LDS)])
    s = open(path).read()
    open(path, 'w').write(HDR + s)
def makem(path, stamp=False, plain=True, **kw):
    import mega
    t, v = mega.gen_mega(stamp=stamp, **kw)
    t = t.replace("'k1_kernel'", mega.KNAME).replace('k1_kernel', mega.KNAME).replace('k2_kernel', 'K2_TEXT')
    assemble_file(path, [(mega.KNAME, t, v, 256, 512, K1_LDS)])
    s = open(path).read()
    if plain: s = s.replace('; @launch kernel=%s grid' % mega.KNAME, '; @launch grid')
    open(path, 'w').write(HDR + s)
DOC = """; Design (generated by own python scripts, one fused launch, 256 workgroups x 8 waves, one per CU):
"""
if __name__ == '__main__':
    SCH = [['W0', 'W1'], ['W2', 'W3', 'A0'], ['A1', 'W4'], []]
    K2 = dict(prio=1, rot=False, xmap='84', pf=False, k3=dict(early=2, pre=1, sched=SCH))
    B = dict(budget=66, nc=4, pf3=1, pfc=[5, 8, 11, 14, 17, 20], cpf=1)
    B['attgap'] = 21
    M = dict(m32=1, nc=0)
    k3 = dict(K2['k3'], wfirst=True, nw=9)
    B.update(p26=26, nz=5)
    kw = dict(k1opt=B, k3=dict(k3, red3=True), lazy=True, eov=True, ownz=True)
    makem('best.s', **kw)
    makem('full_best.s', stamp=True, **kw)
    s = open('best.s').read()
    i = s.index('; @launch grid')
    open('parallel_sum__sliding_local_dilated__mixer_gmlp__prompt.s', 'w').write(s[:i] + DOC + s[i:])
    makem('fa.s', stamp=True, bo=True, **kw)
```

```python
from common import *
import k1, k1_v2
from k1_v2 import fbits, gelu4, C1, C2, q4
from k2 import epi_offsets
from k3f import k3_body
KNAME = 'parallel_sum__sliding_local_dilated__mixer_gmlp__prompt_kernel'
SLOT = 34816
FLG = 159744
ACC = 8; FS = (80, 124); Z1 = 168
vW = (40, 41, 42, 43); vZ = 44; vB0 = 209; vB1 = 210; vA0 = 211; vA1 = 212; vAs = 213; vP = 214; vS = 215

def transition(S):
    S('''s_mov_b32 s32, s48
    s_mov_b32 s33, s49
    s_mov_b32 s34, s51
    s_mov_b32 s48, s52
    s_lshl_b32 s49, s34, 12
    s_mov_b32 s8, s14
    s_mov_b32 s9, s15
    v_mov_b32 v2, v1
    v_and_b32 v3, 15, v2
    v_lshrrev_b32 v4, 4, v2
    v_lshlrev_b32 v%d, 4, v2''' % vP)
    srd(S, 72, 8, 9, 4 * FL_SZ, FL_OFF)
def signal(S, word, target, tag, stores, keep=0, a=5, b=6, c=7):
    T = Stream(); _signal(T, word, target, tag, stores, keep)
    for x in T:
        if isinstance(x, tuple): S.append(x)
        else:
            import re
            S(re.sub(r'\bv([567])\b', lambda mm: 'v%d' % {'5': a, '6': b, '7': c}[mm.group(1)], x.text))
def _signal(S, word, target, tag, stores, keep):
    S('''v_mov_b32 v5, %d
    v_mov_b32 v6, 1
    s_waitcnt vmcnt(%d) lgkmcnt(0)
    s_mov_b64 exec, 1
    ds_add_rtn_u32 v7, v5, v6 offset:%d
    s_waitcnt lgkmcnt(0)
    v_readfirstlane_b32 s47, v7
    s_cmp_lg_u32 s47, %d
    s_cbranch_scc1 %s''' % (FLG, keep, word, target - 1, tag))
    S.append(('SAVEQ',))
    S('''s_mov_b64 exec, -1
    v_mov_b32 v6, 1
    v_lshlrev_b32 v5, 2, v2
    s_lshl_b32 s46, s32, 14
    s_lshl_b32 s47, s33, 10
    s_add_u32 s46, s46, s47
    s_mov_b32 exec_hi, 0
    buffer_store_dword v6, v5, s[72:75], s46 offen offset:%d sc1''' % stores)
    S.append(('RESETQ',))
    S('%s:' % tag)
    S('s_mov_b64 exec, -1')

class Mega:
    def __init__(self, stamp, gq=13, k3={}, zsleep=3, lazy=False, orel=True, eov=False, pf2=None, ut=None, ownz=False, bo=False):
        self.bo = bo
        self.ownz = ownz
        self.ut = ut
        self.pf2 = pf2
        self.eov = eov
        self.orel = orel; self.lazy = lazy; self.stamp = stamp; self.gq = gq; self.k3 = k3; self.zsleep = zsleep
    def cons_early(self, S):
        S('''s_load_dwordx2 s[28:29], s[0:1], 48
        s_mov_b32 s98, s30
        s_lshl_b32 s63, s48, 8
        s_lshl_b32 s99, s51, 6
        s_add_u32 s63, s63, s99
        v_and_b32 v218, 15, v1
        v_lshlrev_b32 v218, 1, v218'''.replace('s[28:29]', 's[32:33]').replace('s_mov_b32 s98, s30\n', ''))
        S('''s_mov_b32 s34, 4096
        s_mov_b32 s35, 0x00020000
        s_waitcnt lgkmcnt(0)
        buffer_load_ushort v216, v218, s[32:35], s63 offen
        buffer_load_ushort v217, v218, s[32:35], s63 offen offset:32''')
    def blk(self, P, st, dst):
        k = st >> 1
        if k == 0: P('s_mov_b32 s%d, s58' % dst)
        else:
            P('s_cmp_le_u32 s58, %d' % (k - 1))
            P('s_addc_u32 s%d, %d, 0' % (dst, k - 1))
    def half_a(self, P, p, st):
        if self.ownz:
            self.blk(P, st, 37)
            P('s_lshl_b32 s37, s37, 8')
            if st & 1: P('s_add_u32 s37, s37, 128')
            P('s_xor_b32 s37, s37, s60')
            P('s_add_u32 m0, s66, %d' % (p * SLOT))
            for q in range(4):
                P('buffer_load_dwordx4 v%d, s[4:7], s37 offen offset:%d lds' % (vW[q], q * 1024), tok_w=['P%d' % p])
            return
        if self.lazy: P('s_xor_b32 s37, s60, %d' % (st * 128))
        else: P('s_movk_i32 s37, %d' % (st * 128))
        P('s_add_u32 m0, s66, %d' % (p * SLOT))
        for q in range(4):
            P('buffer_load_dwordx4 v%d, s[4:7], s37 offen offset:%d lds' % (vW[q], q * 1024), tok_w=['P%d' % p])
    def half_b(self, P, p, st):
        if self.ownz:
            self.blk(P, st, 38)
            P('s_xor_b32 s38, s38, s62')
            P('s_mul_i32 s38, s38, 36864')
            if st & 1: P('s_add_u32 s38, s38, 18432')
        elif self.lazy: P(('s_add_u32 s38, s61, %d' % (st * 18432)) if st < 16 else ('s_sub_u32 s38, %d, s61' % (st * 18432)))
        else: P('s_mov_b32 s38, %d' % (st * 18432))
        P('s_add_u32 m0, s50, %d' % (p * SLOT))
        P('s_mov_b64 exec, s[44:45]')
        P('buffer_load_dwordx4 v%d, s[16:19], s38 offen sc1 lds' % vZ, tok_w=['P%d' % p])
        P('s_mov_b64 exec, -1')
        for q in range(4):
            P('buffer_load_dwordx4 v%d, s[16:19], s38 offen offset:%d sc1 lds' % (vZ, 512 + q * 1024), tok_w=['P%d' % p])
    def prod_early(self, S):
        S('''s_lshl_b32 s63, s48, 7
        s_lshl_b32 s66, s51, 5
        s_add_u32 s63, s63, s66
        v_lshrrev_b32 v45, 3, v1
        v_add_u32 v45, s63, v45
        v_lshlrev_b32 v45, 12, v45
        v_and_b32 v46, 7, v1
        v_lshrrev_b32 v47, 4, v1
        v_xor_b32 v46, v46, v47
        v_lshlrev_b32 v46, 4, v46
        v_add_u32 v%d, v45, v46
        v_xor_b32 v47, 64, v%d
        v_add_u32 v%d, 0x%x, v47
        v_add_u32 v%d, 0x%x, v%d
        v_add_u32 v%d, 0x%x, v47
        s_lshl_b32 s66, s51, 12''' % (vW[0], vW[0], vW[1], 0x8000 - 1024, vW[2], 0x10000 - 2048, vW[0], vW[3], 0x18000 - 3072))
        S('s_lshr_b32 s62, s48, 3\ns_lshl_b32 s60, s62, 11\ns_mul_i32 s61, s62, 294912\ns_lshl_b32 s62, s62, 3\ns_and_b32 s58, s48, 7')
        for p in range(2):
            P = Stream(); self.half_a(P, p, p)
            for x in P: S(x.text.replace('s37', 's63'), tok_w=x.tok_w)
    def producer(self, S):
        stamp = self.stamp
        S('K2_TEXT:')
        transition(S)
        S('''s_mul_i32 s46, s33, 589824
        s_mul_i32 s47, s34, 4608
        s_add_u32 s46, s46, s47
        v_add_u32 v%d, s46, v%d
        s_add_u32 s50, s47, 16384
        s_mov_b32 s44, -1
        s_mov_b32 s45, 0
        v_lshlrev_b32 v46, 14, v3
        s_lshl_b32 s59, s33, 10
        s_add_u32 s59, s59, 128
        v_mov_b32 v47, %d''' % (vZ, vP, FLG))
        srd(S, 16, 8, 9, Z2P_SZ, Z2P_OFF)
        if self.ownz:
            S.need('P0', 'P1', 'OZ')
            S('s_barrier')
            self.half_a(S, 2, 2); self.half_a(S, 3, 3)
            signal(S, 8, 4 if k1.OPT.get('early') else 8, 'K1_SIGH', 128, keep=8)
            S('s_barrier')
            T = Stream(); self.blk(T, 2, 57)
            S.extend(T)
            S('s_lshl_b32 s57, 1, s57')
            S.append(('SAVEQ',))
            S('''s_mov_b32 s41, 0
            s_cmp_lg_u32 s34, 0
            s_cbranch_scc1 KZ_WAITL
            KZ_POLL:
            buffer_load_dword v45, v46, s[72:75], s59 offen sc1
            s_waitcnt vmcnt(0)
            v_cmp_ne_u32 vcc, 1, v45
            s_add_u32 s41, s41, 1
            s_lshr_b32 s65, vcc_lo, s62
            s_and_b32 s42, s65, MASK0
            s_cbranch_scc0 KZ_SET
            s_sleep %d
            s_cmp_lt_u32 s41, 0x20000
            s_cbranch_scc1 KZ_POLL
            KZ_SET:
            v_mov_b32 v45, 1
            ds_write_b32 v47, v45 offset:12
            s_branch KZ_GO
            KZ_WAITL:
            ds_read_b32 v45, v47 offset:12
            s_waitcnt lgkmcnt(0)
            s_add_u32 s41, s41, 1
            v_readfirstlane_b32 s42, v45
            s_cmp_lg_u32 s42, 0
            s_cbranch_scc1 KZ_GO
            s_sleep 1
            s_cmp_lt_u32 s41, 0x400000
            s_cbranch_scc1 KZ_WAITL
            KZ_GO:'''.replace('MASK0', 's57') % self.zsleep)
            S.append(('RESETQ',))
            self.half_b(S, 2, 2)
        else:
            signal(S, 8, 8, 'K1_SIGH', 128)
            S.append(('SAVEQ',))
            S('''s_mov_b32 s41, 0
            s_cmp_lg_u32 s34, 0
            s_cbranch_scc1 KZ_WAITL
            KZ_POLL:
            buffer_load_dword v45, v46, s[72:75], s59 offen sc1
            s_waitcnt vmcnt(0)
            v_cmp_ne_u32 vcc, 1, v45
            s_add_u32 s41, s41, 1
            s_lshr_b32 s65, vcc_lo, s62
            s_and_b32 s42, s65, MASK0
            s_cbranch_scc0 KZ_SET
            s_sleep %d
            s_cmp_lt_u32 s41, 0x20000
            s_cbranch_scc1 KZ_POLL
            KZ_SET:
            v_mov_b32 v45, 1
            ds_write_b32 v47, v45 offset:12
            s_branch KZ_GO
            KZ_WAITL:
            ds_read_b32 v45, v47 offset:12
            s_waitcnt lgkmcnt(0)
            s_add_u32 s41, s41, 1
            v_readfirstlane_b32 s42, v45
            s_cmp_lg_u32 s42, 0
            s_cbranch_scc1 KZ_GO
            s_sleep 1
            s_cmp_lt_u32 s41, 0x400000
            s_cbranch_scc1 KZ_WAITL
            KZ_GO:'''.replace('MASK0', '3' if self.lazy else '0xffff') % self.zsleep)
            S.append(('RESETQ',))
            self.half_b(S, 0, 0); self.half_b(S, 1, 1)
            S.need('P0')
            S('s_barrier')
            self.half_a(S, 2, 2); self.half_b(S, 2, 2); self.half_a(S, 3, 3)
        for n in range(29):
            p = n & 3
            if self.lazy and (n + 3) % 2 == 0 and n + 3 >= 4:
                k = (n + 3) >> 1
                S.append(('SAVEQ',))
                if self.ownz: self.blk(S, n + 3, 57)
                S('''s_cmp_lg_u32 s34, 0
                s_cbranch_scc1 KL_OK{k}
                s_mov_b32 s41, 0
                KL_POLL{k}:
                s_bitcmp1_b32 s65, {bit}
                s_cbranch_scc0 KL_OK{k}
                buffer_load_dword v45, v46, s[72:75], s59 offen sc1
                s_add_u32 s41, s41, 1
                s_waitcnt vmcnt(0)
                v_cmp_ne_u32 vcc, 1, v45
                s_cmp_lt_u32 s41, 0x20000
                s_lshr_b32 s65, vcc_lo, s62
                s_sleep 1
                s_cmp_lt_u32 s41, 0x20000
                s_cbranch_scc1 KL_POLL{k}
                KL_OK{k}:'''.format(k=k, bit='s57' if self.ownz else k))
                S.append(('RESETQ',))
            if not (self.ownz and n == 0):
                S.need('P%d' % ((p + 1) & 3))
                S('s_barrier')
            self.half_b(S, (n + 3) & 3, n + 3)
            if n + 4 < 32: self.half_a(S, p, n + 4)
            if n == 20:
                S('''s_and_b32 s43, s2, 7
                s_lshr_b32 s46, s2, 3
                s_mul_i32 s47, s43, 29
                s_min_u32 s43, s43, 2
                s_add_u32 s47, s47, s43
                s_add_u32 s47, s47, s46
                s_mul_hi_u32 s46, s47, 0x1c71c71d
                s_mul_i32 s46, s46, 80
                s_add_u32 s47, s46, 79
                s_lshr_b32 s46, s46, 7
                s_lshr_b32 s47, s47, 7
                s_min_u32 s46, s46, 15
                s_min_u32 s47, s47, 15
                s_lshl_b32 s46, s46, 14
                s_lshl_b32 s47, s47, 14
                v_mov_b32 v238, s47
                v_mov_b32 v239, s46
                v_cmp_gt_u32 vcc, 16, v2
                v_cndmask_b32 v238, v238, v239, vcc
                v_lshl_add_u32 v238, v3, 10, v238
                s_movk_i32 s64, 384
                buffer_load_dword v236, v238, s[72:75], s64 offen sc1''')
            if n == 24:
                S('v_cmp_ne_u32 vcc, 1, v236')
                S.append(('SAVEQ',))
                S('''s_mov_b32 s41, 0
                KO_POLL:
                s_cmp_eq_u32 vcc_lo, 0
                s_cbranch_scc1 KO_OK
                s_sleep 8
                buffer_load_dword v236, v238, s[72:75], s64 offen sc1
                s_add_u32 s41, s41, 1
                s_waitcnt vmcnt(0)
                v_cmp_ne_u32 vcc, 1, v236
                s_cmp_lt_u32 s41, 0x20000
                s_cbranch_scc1 KO_POLL
                KO_OK:''')
                S.append(('RESETQ',))
        S('s_movk_i32 s59, 256')
        if stamp: stamp_mid(S, 86)
        S.append(('SAVEQ',))
        S('s_cmp_lt_u32 s2, 234\ns_cbranch_scc1 K3_START\ns_waitcnt vmcnt(0)\ns_barrier\ns_barrier\ns_barrier\ns_endpgm\nK3_START:')
        S.append(('RESETQ',))
        def mk(tok):
            def f(X):
                X.need(tok); X('s_barrier')
            return f
        k3_body(S, stamp, bars=[mk('P2'), mk('P3')], mega=True, **self.k3)
    def consumer(self):
        stamp = self.stamp
        S = Stream()
        def acc(a, b): r = ACC + (a * 2 + b) * 4; return 'v[%d:%d]' % (r, r + 3)
        def fB(s, b): r = FS[s] + b * 4; return 'v[%d:%d]' % (r, r + 3)
        def fA(s, a): r = FS[s] + 8 + a * 4; return 'v[%d:%d]' % (r, r + 3)
        S('K2_CONS:')
        transition(S)
        srd(S, 24, 8, 9, AP_SZ, AP_OFF)
        S('''
        v_lshrrev_b32 v5, 1, v3
        v_xor_b32 v5, v5, v4
        v_lshlrev_b32 v5, 4, v5
        v_lshlrev_b32 v6, 7, v3
        v_add3_u32 v%d, v5, v6, s49
        v_xor_b32 v%d, 64, v%d
        v_lshrrev_b32 v5, 3, v3
        v_add_u32 v5, s48, v5
        v_and_b32 v6, 1, v5
        v_lshlrev_b32 v6, 2, v6
        v_and_b32 v7, 3, v3
        v_bfe_u32 v1, v3, 2, 1
        v_lshl_add_u32 v7, v1, 3, v7
        v_xor_b32 v7, v7, v6
        v_lshl_add_u32 v7, v4, 4, v7
        v_lshlrev_b32 v7, 4, v7
        v_lshl_add_u32 v7, v5, 10, v7
        v_add_u32 v%d, 16384, v7
        v_xor_b32 v%d, 64, v%d
        s_cmp_eq_u32 s48, 0
        s_cselect_b32 s46, 8192, 0
        s_add_u32 s46, s46, 16384
        v_add_u32 v%d, s46, v%d
        v_lshrrev_b32 v5, 1, v4
        v_lshlrev_b32 v5, 8, v5
        v_lshl_add_u32 v5, v3, 4, v5
        v_and_b32 v6, 1, v4
        v_lshl_add_u32 v%d, v6, 3, v5
        ''' % (vB0, vB1, vB0, vA0, vA1, vA0, vAs, vP, vS))
        epi_offsets(S)
        S('v_lshlrev_b32 v216, 16, v216')
        S('v_lshlrev_b32 v217, 16, v217')
        for a in range(9):
            for b in range(2):
                for r in range(4):
                    S('v_mov_b32 v%d, v%d' % (ACC + (a * 2 + b) * 4 + r, 216 + b))
        HI = 224
        for k, r in enumerate((vB0, vB1, vA0, vA1, vAs)): S('v_add_u32 v%d, %d, v%d' % (HI + k, 2 * SLOT, r))
        if not self.ownz: signal(S, 8, 8, 'K1_SIGC', 128, keep=0 if stamp else k1.OPT['n_ost'])
        else: S.need('OZ')
        S('s_mov_b32 s78, 0x%x' % fbits(C1))
        S('v_mov_b32 v7, 0x%x' % fbits(C2))
        S('s_setprio 1')
        def reads(s, h, n):
            g = []
            hi = (n & 3) >> 1; so = (n & 1) * SLOT
            R = lambda r: r if not hi else HI + (vB0, vB1, vA0, vA1, vAs).index(r)
            vB = vB1 if h else vB0
            for b in range(2):
                g.append(I('ds_read_b128 %s, v%d offset:%d' % (fB(s, b), R(vB), so + b * 2048)))
            for a in range(9):
                if a < 8: g.append(I('ds_read_b128 %s, v%d offset:%d' % (fA(s, a), R(vA1 if a & 1 else vA0), so + h * 9216 + (a >> 1) * 2048)))
                else: g.append(I('ds_read_b128 %s, v%d offset:%d' % (fA(s, a), R(vAs), so + h * 9216)))
            return g
        def mfmas(s):
            m = Stream()
            for a in range(9):
                for b in range(2):
                    m('v_mfma_f32_16x16x32_bf16 %s, %s, %s, %s' % (acc(a, b), fA(s, a), fB(s, b), acc(a, b)))
            return m
        gw = []
        for k in range(18):
            g = Stream()
            p = Z1 + 2 * k; x = 232 + 8 * (k & 1)
            g('v_lshlrev_b32 v%d, 16, v%d' % (x, p))
            g('v_and_b32 v%d, 0xffff0000, v%d' % (x + 1, p))
            g('v_lshlrev_b32 v%d, 16, v%d' % (x + 2, p + 1))
            g('v_and_b32 v%d, 0xffff0000, v%d' % (x + 3, p + 1))
            gelu4(g, x, x + 4, c2=7)
            g('v_cvt_pk_bf16_f32 v%d, v%d, v%d' % (p, x, x + 1))
            g('v_cvt_pk_bf16_f32 v%d, v%d, v%d' % (p + 1, x + 2, x + 3))
            gw += list(g)
        if self.pf2 == -1:
            S('''s_load_dwordx2 s[60:61], s[0:1], 56
            s_load_dwordx2 s[64:65], s[0:1], 16
            s_mov_b32 s62, %d
            s_mov_b32 s63, 0x00020000
            s_mov_b32 s66, %d
            s_mov_b32 s67, 0x00020000
            s_mul_i32 s68, s2, 10368
            s_mul_i32 s69, s34, 2688
            s_add_u32 s68, s68, s69
            s_mul_i32 s69, s2, 2688
            s_mul_i32 s70, s34, 768
            s_add_u32 s69, s69, s70
            v_lshlrev_b32 v229, 7, v2
            s_mov_b64 exec, 0x1fffff
            buffer_load_dword v230, v229, s[60:63], s68 offen
            s_mov_b64 exec, 0x3f
            buffer_load_dword v231, v229, s[64:67], s69 offen
            s_mov_b64 exec, -1''' % (2304 * 1152, 576 * 1152))
        if stamp: stamp_mid(S, 86)
        S('s_barrier')
        if stamp:
            stamp_mid(S, 88); S('s_waitcnt lgkmcnt(0)')
        S.extend(reads(0, 0, 0))
        def half(ms, rds):
            left = self.gq
            for k, m in enumerate(ms):
                S.append(m)
                room = 2
                if rds: S.append(rds.pop(0)); room = 1
                while gw and left > 0 and room > 0 and k < 17:
                    need = 2 if gw[0].kind == 'trans' else 1
                    if need > room: break
                    S.append(gw.pop(0)); room -= need; left -= 1
        def ro(ms): return Stream(ms[0::2] + ms[1::2]) if self.bo else ms
        def epi(b, pk=True):
            E = Stream()
            for p in range(5):
                nd = 4 if p < 4 else 2
                zr = Z1 + (b * 4 + p) * 4 if p < 4 else Z1 + 32 + b * 2
                for d in range(nd):
                    a = 2 * p + (d >> 1)
                    ar = ACC + (a * 2 + b) * 4 + (d & 1) * 2
                    t = 220 + (d & 1) * 2
                    E('v_lshlrev_b32 v%d, 16, v%d' % (t, zr + d))
                    E('v_and_b32 v%d, 0xffff0000, v%d' % (t + 1, zr + d))
                    if pk: E('v_pk_mul_f32 v[%d:%d], v[%d:%d], v[%d:%d]' % (t, t + 1, t, t + 1, ar, ar + 1))
                    else:
                        E('v_mul_f32 v%d, v%d, v%d' % (t, t, ar))
                        E('v_mul_f32 v%d, v%d, v%d' % (t + 1, t + 1, ar + 1))
                    E('v_cvt_pk_bf16_f32 v%d, v%d, v%d' % (zr + d, t, t + 1))
                if p < 4: E('buffer_store_dwordx4 v[%d:%d], v%d, s[24:27], s%d offen offset:%d sc1' % (zr, zr + 3, vP, 53 + b, p * 1024))
                else: E('buffer_store_dwordx2 v[%d:%d], v%d, s[24:27], s%d offen sc1' % (zr, zr + 1, vS, 57 + b))
            return E
        for n in range(32):
            S('s_waitcnt lgkmcnt(0)')
            if n == 12: signal(S, 16, 4, 'KO_NOFL', 384, a=218, b=219, c=220)
            if self.ut and n in self.ut:
                k = self.ut.index(n)
                nl = 72 // len(self.ut)
                per = 36 // nl
                S('''s_min_u32 s46, s%d, s%d
                s_add_u32 s46, s46, %d
                v_lshlrev_b32 v229, 7, v2
                s_mov_b64 exec, 0x%x
                buffer_load_dword v%d, v229, s[24:27], s46 offen
                s_mov_b64 exec, -1''' % (53 + k // per, 57 + k // per, (k % per) * nl * 128, (1 << nl) - 1, 248 + k) if nl < 32 else
                  '''s_min_u32 s46, s%d, s%d
                v_lshlrev_b32 v229, 7, v2
                s_mov_b32 exec_hi, 15
                buffer_load_dword v%d, v229, s[24:27], s46 offen
                s_mov_b64 exec, -1''' % (53 + k, 57 + k, 248 + k))
            if self.pf2 and n == self.pf2 - 2:
                S('''s_load_dwordx2 s[60:61], s[0:1], 56
                s_load_dwordx2 s[64:65], s[0:1], 16
                s_mov_b32 s62, %d
                s_mov_b32 s63, 0x00020000
                s_mov_b32 s66, %d
                s_mov_b32 s67, 0x00020000
                s_mul_i32 s68, s2, 10368
                s_mul_i32 s69, s34, 2688
                s_add_u32 s68, s68, s69
                s_mul_i32 s69, s2, 2688
                s_mul_i32 s70, s34, 768
                s_add_u32 s69, s69, s70
                v_lshlrev_b32 v229, 7, v2''' % (2304 * 1152, 576 * 1152))
            if self.pf2 and n == self.pf2:
                S('''s_mov_b64 exec, 0x1fffff
                buffer_load_dword v230, v229, s[60:63], s68 offen
                s_mov_b64 exec, 0x3f
                buffer_load_dword v231, v229, s[64:67], s69 offen
                s_mov_b64 exec, -1''')
            if n == 31 and self.eov:
                m0, m1 = mfmas(0), mfmas(1)
                half(Stream(m0[0::2] + m0[1::2][:2]), reads(1, 1, n))
                S('s_waitcnt lgkmcnt(0)')
                S('s_barrier')
                S.extend(m1[0::2])
                e0 = list(epi(0, pk=False))
                rest = m0[1::2][2:] + m1[1::2]
                for k, x in enumerate(rest):
                    S.append(x)
                    take = -(-len(e0) // (len(rest) - k))
                    S.extend(e0[:take]); e0 = e0[take:]
                break
            half(ro(mfmas(0)), reads(1, 1, n))
            S('s_waitcnt lgkmcnt(0)')
            if n == 0 and self.ownz and not k1.OPT.get('early'): signal(S, 8, 8, 'K1_SIGC', 128, keep=0 if stamp else k1.OPT['n_ost'], a=218, b=219, c=220)
            S('s_barrier')
            half(ro(mfmas(1)), reads(0, 0, n + 1) if n < 31 else [])
        assert not gw
        E = S
        if stamp: stamp_mid(E, 90)
        if not self.eov: E.extend(epi(0))
        E.extend(epi(1))
        if stamp: stamp_mid(E, 92)
        signal(E, 0, 4, 'K2_NOSIG', 256)
        if stamp:
            E('s_waitcnt vmcnt(0)')
            stamp_mid(E, 94)
            stamp_store(E, 84, [86, 88, 90, 92, 94], 8, 1, 64, 216, wave_s=34)
        E('s_endpgm')
        return S

def gen_mega(stamp=False, k1opt={}, **kw):
    M = Mega(stamp, **kw)
    k1_v2.STFLAG = ' sc1'
    txt, vg = k1.gen_k1(stamp=stamp, mega=M, ownz=M.ownz, **k1opt)
    k1_v2.STFLAG = ''
    F = Finisher()
    F.vmq, F.lgq = k1.OPT['cons_state']
    k1.emit(F, M.consumer())
    return txt + F.text(), 256
```
